```python
import torch

def _softmax(x, axis=-1):
    return torch.softmax(x, dim=axis)
def _gelu(x):
    return torch.nn.functional.gelu(x, approximate="tanh")
def _silu(x):
    return torch.nn.functional.silu(x)
def _sigmoid(x):
    return torch.sigmoid(x)
def _layernorm(x, axis=-1, eps=1e-5):
    m = x.mean(dim=axis, keepdim=True)
    v = x.var(dim=axis, keepdim=True, unbiased=False)
    return (x - m) / torch.sqrt(v + eps)
def _scatter_add(tgt, idx, src, axis=0):
    return tgt.clone().index_add_(axis, idx, src)
def _segment_sum(src, seg, n):
    out = torch.zeros((n,) + src.shape[1:], dtype=src.dtype)
    return out.index_add_(0, seg, src)
def _pad(x, pw):
    flat = tuple(v for pair in reversed(pw) for v in pair)
    return torch.nn.functional.pad(x, flat)

kernel_name = 'parallel_sum__mha_block__dense_activation_gelu__prompt'

def setup_inputs():

    _w = (lambda a: (lambda t: t.to(torch.bfloat16) if t.is_floating_point() else t)(torch.as_tensor(a)))
    def _A_setup():
        B, S, D, H = 1, 2048, 640, 32
        return {
            "x": _w((lambda *s: torch.randn(*s, dtype=torch.bfloat16) * 0.05)(B, S, D)),
            "wqkv": _w((lambda *s: torch.randn(*s, dtype=torch.bfloat16) * 0.05)(D, 3 * D)),
            "wo": _w((lambda *s: torch.randn(*s, dtype=torch.bfloat16) * 0.05)(D, D)),
        }
    _A_in = _A_setup()

    def _B_setup():
        B, S, D, F = 1, 2048, 640, 1728
        return {
            "x": _w((lambda *s: torch.randn(*s, dtype=torch.bfloat16) * 0.05)(B, S, D)),
            "w1": _w((lambda *s: torch.randn(*s, dtype=torch.bfloat16) * 1.6)(D, F) * (D ** -0.5)),
            "b1": _w((lambda *s: torch.randn(*s, dtype=torch.bfloat16) * 1.6)(F) * 0.01),
            "w2": _w((lambda *s: torch.randn(*s, dtype=torch.bfloat16) * 0.2)(F, D) * (F ** -0.5)),
            "b2": _w((lambda *s: torch.randn(*s, dtype=torch.bfloat16) * 0.2)(D) * 0.01),
        }
    _B_in = _B_setup()

    return {
        "A_x": _A_in["x"],
        "A_wqkv": _A_in["wqkv"],
        "A_wo": _A_in["wo"],
        "B_x": _B_in["x"],
        "B_w1": _B_in["w1"],
        "B_b1": _B_in["b1"],
        "B_w2": _B_in["w2"],
        "B_b2": _B_in["b2"],
    }

def reference(A_x, A_wqkv, A_wo, B_x, B_w1, B_b1, B_w2, B_b2):
    def _A_ref(x, wqkv, wo):
        B, S, D = x.shape
        H = 32
        Dh = D // H
        qkv = (lambda x, *d: x.permute(*d))((x @ wqkv).reshape(B, S, 3, H, Dh), 2, 0, 3, 1, 4)
        q, k, v = qkv[0], qkv[1], qkv[2]
        scores = torch.einsum("bhqd,bhkd->bhqk", q, k) * (Dh ** -0.5)
        p = _softmax(scores, axis=-1)
        o = torch.einsum("bhqk,bhkd->bhqd", p, v)
        return (lambda x, *d: x.permute(*d))(o, 0, 2, 1, 3).reshape(B, S, D) @ wo

    def _B_ref(x, w1, b1, w2, b2):
        h = torch.einsum("bsd,df->bsf", x, w1) + b1
        h = _gelu(h)
        return torch.einsum("bsf,fd->bsd", h, w2) + b2

    x = A_x
    xn = _layernorm(x, axis=-1)
    return x + _A_ref(xn, A_wqkv, A_wo) + _B_ref(xn, B_w1, B_b1, B_w2, B_b2)
```

```python
import struct, math, sys

NAME = "parallel_sum__mha_block__dense_activation_gelu__prompt"

QB_OFF = 0
KV_OFF = 0x280000
AB_OFF = 0x780000
WT_OFF = 0x10C0000
WS_END = WT_OFF + 296 * 10240
AB_SIZE = 296 * 32768
WT_SIZE = 296 * 10240
assert AB_OFF + AB_SIZE == WT_OFF


def f32(x):
    return struct.unpack("<I", struct.pack("<f", x))[0]


def hx(x):
    return "0x%08x" % (x & 0xFFFFFFFF)


class Asm:
    def __init__(self):
        self.lines = []

    def e(self, s):
        if s.startswith("s_cselect_b32"):
            ops = [x.strip() for x in s[len("s_cselect_b32"):].split(",")]

            def is_lit(x):
                try:
                    v = int(x, 0)
                except ValueError:
                    return False
                return not (-16 <= v <= 64)
            if is_lit(ops[1]) and is_lit(ops[2]):
                self.lines.append(f"    s_mov_b32 {ops[0]}, {ops[2]}")
                s = f"s_cselect_b32 {ops[0]}, {ops[1]}, {ops[0]}"
        self.lines.append("    " + s)

    def lab(self, s):
        self.lines.append(s + ":")

    def c(self, s):
        self.lines.append("    ; " + s)

    def raw(self, s):
        self.lines.append(s)

    def text(self):
        return "\n".join(self.lines) + "\n"


def vr(a, n):
    return f"v[{a}:{a+n-1}]" if n > 1 else f"v{a}"


def sr(a, n):
    return f"s[{a}:{a+n-1}]" if n > 1 else f"s{a}"


def kernel_header(a, name):
    a.raw(".p2align 8")
    a.raw(f".globl {name}")
    a.raw(f".type {name},@function")
    a.lab(name)


def kd(name, nv, ns):
    acc = (nv + 3) // 4 * 4
    return f""".p2align 6
.amdhsa_kernel {name}
  .amdhsa_next_free_vgpr {nv}
  .amdhsa_next_free_sgpr {ns}
  .amdhsa_accum_offset {acc}
  .amdhsa_group_segment_fixed_size 0
  .amdhsa_kernarg_size 88
  .amdhsa_user_sgpr_count 2
  .amdhsa_user_sgpr_kernarg_segment_ptr 1
  .amdhsa_system_sgpr_workgroup_id_x 1
.end_amdhsa_kernel
"""


def srd(a, d, lo, hi, size):
    a.e(f"s_mov_b32 s{d}, {lo}")
    a.e(f"s_mov_b32 s{d+1}, {hi}")
    a.e(f"s_mov_b32 s{d+2}, {hx(size)}")
    a.e(f"s_mov_b32 s{d+3}, 0x00020000")


def srd_off(a, d, lo, hi, off, size):
    a.e(f"s_add_u32 s{d}, {lo}, {hx(off)}")
    a.e(f"s_addc_u32 s{d+1}, {hi}, 0")
    a.e(f"s_mov_b32 s{d+2}, {hx(size)}")
    a.e(f"s_mov_b32 s{d+3}, 0x00020000")


def round_bf16_inplace(a, v, vtmp=None):
    a.e(f"v_cvt_pk_bf16_f32 v{v}, v{v}, v{v}")
    a.e(f"v_lshlrev_b32 v{v}, 16, v{v}")


OOB = 0x40000000

K1_SLOT = 24576
K1_NSLOT = 6
K1_SCR = K1_SLOT * K1_NSLOT
K1_LDS = K1_SCR + 2048
QSCALE = math.log2(math.e) / math.sqrt(20.0)


def gen_k1(a):
    name = "k1_gemm1_kernel"
    kernel_header(a, name)
    sX, sB0, sB1, sWS, sT, sBI = 20, 24, 28, 32, 36, 40
    sW, sRG, sHALF, sRB, sCB, sCBQ, sT0 = 44, 45, 46, 47, 48, 49, 50
    sOA, sOB0, sOB1, sSB0, sSB1 = 51, 52, 53, 54, 55
    sWR, sRD, sIT, sDA, sDB0, sDB1 = 56, 57, 58, 59, 60, 61
    t0, t1, t2, t3, t4, t5, t6, t7 = 62, 63, 64, 65, 66, 67, 68, 69
    sC1 = 70
    sSTG = 72
    vLANE = 1
    vAOFF, vB0OFF, vB1OFF = 2, 3, 4
    vA0, vBa0, vBb0 = 5, 6, 7
    vA, vBa, vBb = 8, 9, 10
    vS = 12
    vC = 14
    vT = 16
    vBIAS = 32
    vTR = 48
    vTL = 104
    FA = [64, 104]
    ACC = 144
    NV = 208

    def acc(j, mt):
        return ACC + (j * 2 + mt) * 4

    def fa(s, mt):
        return FA[s] + mt * 4

    def fb(s, j):
        return FA[s] + 8 + j * 4

    a.e("s_cmp_ge_u32 s2, 256")
    a.e("s_cbranch_scc1 K1_END")
    a.e("s_load_dwordx4 s[4:7], s[0:1], 0")
    a.e("s_load_dwordx2 s[8:9], s[0:1], 16")
    a.e("s_load_dwordx4 s[12:15], s[0:1], 32")
    a.e("s_load_dwordx2 s[16:17], s[0:1], 48")
    a.e("s_load_dwordx2 s[18:19], s[0:1], 80")
    a.e(f"v_and_b32 v{vLANE}, 63, v0")
    a.e(f"v_lshrrev_b32 v{vT}, 6, v0")
    a.e("s_nop 0")
    a.e(f"v_readfirstlane_b32 s{sW}, v{vT}")
    a.e(f"s_and_b32 s{t0}, s2, 7")
    a.e(f"s_lshr_b32 s{t1}, s2, 3")
    a.e(f"s_and_b32 s{t2}, s{t0}, 1")
    a.e(f"s_lshl_b32 s{t2}, s{t2}, 3")
    a.e(f"s_and_b32 s{t3}, s{t1}, 7")
    a.e(f"s_add_u32 s{sRB}, s{t2}, s{t3}")
    a.e(f"s_lshr_b32 s{t2}, s{t0}, 1")
    a.e(f"s_lshl_b32 s{t2}, s{t2}, 2")
    a.e(f"s_lshr_b32 s{t3}, s{t1}, 3")
    a.e(f"s_add_u32 s{sCB}, s{t2}, s{t3}")
    a.e(f"s_min_u32 s{sCBQ}, s{sCB}, 14")
    a.e(f"s_mul_i32 s{sT0}, s{sCB}, 7")
    a.e(f"s_min_u32 s{sT0}, s{sT0}, 101")
    a.e(f"s_and_b32 s{sRG}, s{sW}, 3")
    a.e(f"s_lshr_b32 s{sHALF}, s{sW}, 2")
    a.e("s_waitcnt lgkmcnt(0)")
    srd(a, sX, "s4", "s5", 2048 * 640 * 2)
    srd(a, sWS, "s18", "s19", WS_END)
    srd(a, sBI, "s14", "s15", 1728 * 2)
    a.e(f"v_lshrrev_b32 v{vT}, 4, v{vLANE}")
    a.e(f"v_lshlrev_b32 v{vT}, 3, v{vT}")
    a.e(f"s_lshl_b32 s{t0}, s{sT0}, 5")
    for j in range(7):
        a.e(f"buffer_load_dwordx2 {vr(vBIAS+2*j,2)}, v{vT}, {sr(sBI,4)}, s{t0} offen offset:{32*j}")
    a.e(f"s_lshl_b32 s{t0}, s2, 3")
    a.e(f"s_add_u32 s{t0}, s{t0}, s{sW}")
    for tk in range(2):
        if tk == 1:
            a.e(f"s_add_u32 s{t1}, s{t0}, 2048")
            a.e(f"s_cmp_lt_u32 s{t1}, 2960")
            a.e(f"s_cselect_b32 s{t0}, s{t1}, s{t0}")
        a.e(f"s_mul_i32 s{t1}, s{t0}, 6554")
        a.e(f"s_lshr_b32 s{t1}, s{t1}, 16")
        a.e(f"s_mul_i32 s{t2}, s{t1}, 10")
        a.e(f"s_sub_u32 s{t2}, s{t0}, s{t2}")
        a.e(f"s_mul_i32 s{t3}, s{t1}, 205")
        a.e(f"s_lshr_b32 s{t3}, s{t3}, 10")
        a.e(f"s_mul_i32 s{t4}, s{t3}, 5")
        a.e(f"s_sub_u32 s{t4}, s{t1}, s{t4}")
        a.e(f"s_mul_i32 s{t3}, s{t3}, 40")
        a.e(f"s_lshr_b32 s{t5}, s{t4}, 1")
        a.e(f"s_mul_i32 s{t5}, s{t5}, 20")
        a.e(f"s_and_b32 s{t6}, s{t4}, 1")
        a.e(f"s_lshl_b32 s{t6}, s{t6}, 2")
        a.e(f"s_add_u32 s{t5}, s{t5}, s{t6}")
        a.e(f"s_add_u32 s{t6}, s{t5}, 8")
        a.e(f"s_cmp_eq_u32 s{t4}, 4")
        a.e(f"s_cselect_b32 s{t5}, 16, s{t5}")
        a.e(f"s_cselect_b32 s{t6}, 36, s{t6}")
        a.e(f"s_add_u32 s{t5}, s{t5}, s{t3}")
        a.e(f"s_add_u32 s{t6}, s{t6}, s{t3}")
        a.e(f"s_sub_u32 s{t3}, s{t1}, 80")
        a.e(f"s_lshr_b32 s{t4}, s{t3}, 2")
        a.e(f"s_lshl_b32 s{t4}, s{t4}, 5")
        a.e(f"s_and_b32 s{t3}, s{t3}, 3")
        a.e(f"s_lshl_b32 s{t3}, s{t3}, 2")
        a.e(f"s_add_u32 s{t3}, s{t3}, s{t4}")
        a.e(f"s_add_u32 s{t4}, s{t3}, 16")
        a.e(f"s_cmp_lt_u32 s{t1}, 80")
        a.e(f"s_cselect_b32 s{t5}, s{t5}, s{t3}")
        a.e(f"s_cselect_b32 s{t6}, s{t6}, s{t4}")
        a.e(f"s_cselect_b32 s{sT}, s8, s16")
        a.e(f"s_cselect_b32 s{sT+1}, s9, s17")
        a.e(f"s_cselect_b32 s{sT+2}, {hx(640*640*2)}, {hx(1728*640*2)}")
        a.e(f"s_mov_b32 s{sT+3}, 0x00020000")
        a.e(f"s_mul_i32 s{t5}, s{t5}, 1280")
        a.e(f"s_mul_i32 s{t6}, s{t6}, 1280")
        a.e(f"s_lshl_b32 s{t2}, s{t2}, 6")
        a.e(f"v_add_u32 v{vT+1}, s{t2}, v{vLANE}")
        a.e(f"v_lshlrev_b32 v{vT+2}, 1, v{vT+1}")
        for j in range(8):
            so = t5 if j < 4 else t6
            a.e(f"buffer_load_ushort v{vTL+8*tk+j}, v{vT+2}, {sr(sT,4)}, s{so} offen offset:{(j&3)*1280}")
        a.e(f"s_mul_i32 s{t1}, s{t1}, 10240")
        a.e(f"s_add_u32 s{t1}, s{t1}, {hx(WT_OFF)}")
        a.e(f"v_lshlrev_b32 v{vT+1}, 4, v{vT+1}")
        a.e(f"v_add_u32 v{vTR+8+tk}, s{t1}, v{vT+1}")
    a.e(f"s_lshl_b32 s{t0}, s{sRB}, 7")
    a.e(f"s_lshl_b32 s{t1}, s{sW}, 4")
    a.e(f"s_add_u32 s{t0}, s{t0}, s{t1}")
    a.e(f"v_and_b32 v{vT}, 15, v{vLANE}")
    a.e(f"v_add_u32 v{vT}, s{t0}, v{vT}")
    a.e(f"v_mul_u32_u24 v{vT}, 1280, v{vT}")
    a.e(f"v_lshrrev_b32 v{vT+1}, 4, v{vLANE}")
    a.e(f"v_lshl_add_u32 v{vAOFF}, v{vT+1}, 4, v{vT}")
    a.e(f"s_lshl_b32 s{sDA}, s{sW}, 10")
    for q, (sB, vOFF, sSB, sDB) in enumerate(((sB0, vB0OFF, sSB0, sDB0), (sB1, vB1OFF, sSB1, sDB1))):
        a.e(f"s_lshl_b32 s{t0}, s{sW}, 1")
        if q:
            a.e(f"s_add_u32 s{t0}, s{t0}, 1")
        a.e(f"s_lshl_b32 s{sDB}, s{t0}, 10")
        a.e(f"s_add_u32 s{sDB}, s{sDB}, 8192")
        a.e(f"s_sub_u32 s{t1}, s{t0}, 9")
        a.e(f"s_lshl_b32 s{t6}, s{sCBQ}, 8")
        a.e(f"s_lshl_b32 s{t7}, s{sT0}, 5")
        a.e(f"s_cmp_lt_u32 s{t0}, 9")
        a.e(f"s_cselect_b32 s{t1}, s{t0}, s{t1}")
        a.e(f"s_cselect_b32 s{sB}, s6, s12")
        a.e(f"s_cselect_b32 s{sB+1}, s7, s13")
        a.e(f"s_cselect_b32 s{sB+2}, {hx(640*1920*2)}, {hx(640*1728*2)}")
        a.e(f"s_mov_b32 s{sB+3}, 0x00020000")
        a.e(f"s_cselect_b32 s{t2}, 3641, 4682")
        a.e(f"s_cselect_b32 s{t3}, 18, 14")
        a.e(f"s_cselect_b32 s{t4}, 3840, 3456")
        a.e(f"s_cselect_b32 s{t5}, s{t6}, s{t7}")
        a.e(f"s_lshl_b32 s{sSB}, s{t4}, 5")
        a.e(f"s_lshl_b32 s{t1}, s{t1}, 6")
        a.e(f"v_add_u32 v{vT}, s{t1}, v{vLANE}")
        a.e(f"v_mul_lo_u32 v{vT+1}, v{vT}, s{t2}")
        a.e(f"v_lshrrev_b32 v{vT+1}, 16, v{vT+1}")
        a.e(f"v_mul_lo_u32 v{vT+2}, v{vT+1}, s{t3}")
        a.e(f"v_sub_u32 v{vT+2}, v{vT}, v{vT+2}")
        a.e(f"v_lshrrev_b32 v{vT+3}, 1, v{vT+1}")
        a.e(f"v_and_b32 v{vT+3}, 4, v{vT+3}")
        a.e(f"v_xor_b32 v{vT+1}, v{vT+1}, v{vT+3}")
        a.e(f"v_mul_lo_u32 v{vT+1}, v{vT+1}, s{t4}")
        a.e(f"v_lshl_add_u32 v{vT+1}, v{vT+2}, 4, v{vT+1}")
        a.e(f"v_add_u32 v{vT+1}, s{t5}, v{vT+1}")
        a.e(f"v_mov_b32 v{vT+3}, {hx(OOB)}")
        a.e(f"v_cmp_gt_u32 vcc, 16, v{vT+2}")
        a.e("s_nop 1")
        a.e(f"v_cndmask_b32 v{vOFF}, v{vT+3}, v{vT+1}, vcc")
    a.e(f"s_mov_b32 s{sOA}, 0")
    a.e(f"s_mov_b32 s{sOB0}, 0")
    a.e(f"s_mov_b32 s{sOB1}, 0")
    a.e(f"s_mov_b32 s{sWR}, 0")
    a.e(f"s_mov_b32 s{sSTG}, 0")

    def issue_dma_list():
        g = []
        g.append([f"s_add_u32 m0, s{sWR}, s{sDA}",
                  f"s_add_u32 s{sSTG}, s{sSTG}, 1",
                  f"buffer_load_dwordx4 v{vAOFF}, {sr(sX,4)}, s{sOA} offen lds"])
        g.append([f"s_add_u32 m0, s{sWR}, s{sDB0}",
                  f"s_add_u32 s{sOA}, s{sOA}, 64",
                  f"buffer_load_dwordx4 v{vB0OFF}, {sr(sB0,4)}, s{sOB0} offen lds"])
        g.append([f"s_add_u32 m0, s{sWR}, s{sDB1}",
                  f"s_add_u32 s{sOB0}, s{sOB0}, s{sSB0}",
                  f"buffer_load_dwordx4 v{vB1OFF}, {sr(sB1,4)}, s{sOB1} offen lds"])
        g.append([f"s_add_u32 s{sOB1}, s{sOB1}, s{sSB1}",
                  f"s_add_u32 s{sWR}, s{sWR}, {K1_SLOT}",
                  f"s_cmp_eq_u32 s{sWR}, {K1_SLOT*K1_NSLOT}",
                  f"s_cselect_b32 s{sWR}, 0, s{sWR}",
                  f"s_cmp_ge_u32 s{sSTG}, 20",
                  f"s_cselect_b32 s{sOA}, {hx(OOB)}, s{sOA}"])
        return g

    for s in range(K1_NSLOT):
        for grp in issue_dma_list():
            for ins in grp:
                a.e(ins)
    a.e(f"s_lshl_b32 s{t0}, s{sRG}, 11")
    a.e(f"v_lshlrev_b32 v{vA0}, 4, v{vLANE}")
    a.e(f"v_add_u32 v{vA0}, s{t0}, v{vA0}")
    a.e(f"v_lshrrev_b32 v{vT}, 4, v{vLANE}")
    a.e(f"v_lshlrev_b32 v{vT+1}, 3, v{vT}")
    a.e(f"v_and_b32 v{vT+2}, 1, v{vT}")
    a.e(f"v_lshl_add_u32 v{vT+1}, v{vT+2}, 2, v{vT+1}")
    a.e(f"v_bfe_u32 v{vT+2}, v{vLANE}, 2, 2")
    a.e(f"v_add_u32 v{vT+1}, v{vT+1}, v{vT+2}")
    a.e(f"v_xor_b32 v{vT+2}, 4, v{vT+1}")
    a.e(f"s_cmp_eq_u32 s{sHALF}, 0")
    a.e(f"s_cselect_b32 s{t0}, 288, 224")
    a.e(f"s_cselect_b32 s{t1}, 8192, 17408")
    a.e(f"v_and_b32 v{vT+3}, 3, v{vLANE}")
    a.e(f"v_lshlrev_b32 v{vT+3}, 3, v{vT+3}")
    a.e(f"v_add_u32 v{vT+3}, s{t1}, v{vT+3}")
    a.e(f"v_mad_u32_u24 v{vBa0}, v{vT+1}, s{t0}, v{vT+3}")
    a.e(f"v_mad_u32_u24 v{vBb0}, v{vT+2}, s{t0}, v{vT+3}")
    for i in range(64):
        a.e(f"v_mov_b32 v{ACC+i}, 0")
    for i in range(4):
        a.e(f"v_mov_b32 v{vS+i}, 0")
    a.e("s_waitcnt vmcnt(18)")
    for i in range(8):
        a.e(f"v_lshl_or_b32 v{vTR+i}, v{vTL+2*i+1}, 16, v{vTL+2*i}")
    a.e(f"buffer_store_dwordx4 {vr(vTR,4)}, v{vTR+8}, {sr(sWS,4)}, 0 offen")
    a.e(f"buffer_store_dwordx4 {vr(vTR+4,4)}, v{vTR+9}, {sr(sWS,4)}, 0 offen")
    a.e(f"s_mov_b32 s{sRD}, 0")
    a.e(f"s_mov_b32 s{sIT}, 0")
    a.e("s_waitcnt vmcnt(17)")
    a.e("s_barrier")
    a.e(f"s_cmp_ge_u32 s{sCBQ}, 10")
    a.e(f"s_cselect_b32 s{t0}, 1, 0")
    a.e(f"s_cmp_eq_u32 s{sHALF}, 1")
    a.e(f"s_cselect_b32 s{t0}, 2, s{t0}")
    a.e(f"s_lshl_b32 s{t0}, s{t0}, 2")
    a.e(f"s_add_u32 s{t0}, s{t0}, s{sRG}")
    for v in range(1, 12):
        a.e(f"s_cmp_eq_u32 s{t0}, {v}")
        a.e(f"s_cbranch_scc1 K1_V{v}")

    def reads(fs, nt):
        r = []
        r.append(f"ds_read_b128 {vr(fa(fs,0),4)}, v{vA}")
        r.append(f"ds_read_b128 {vr(fa(fs,1),4)}, v{vA} offset:1024")
        for j in range(nt):
            r.append(f"ds_read_b64_tr_b16 {vr(fb(fs,j),2)}, v{vBa} offset:{32*j}")
            r.append(f"ds_read_b64_tr_b16 {vr(fb(fs,j)+2,2)}, v{vBb} offset:{32*j}")
        return r

    def addr_update():
        return [f"v_add_u32 v{vA}, s{sRD}, v{vA0}",
                f"v_add_u32 v{vBa}, s{sRD}, v{vBa0}",
                f"v_add_u32 v{vBb}, s{sRD}, v{vBb0}",
                f"s_add_u32 s{sRD}, s{sRD}, {K1_SLOT}",
                f"s_cmp_eq_u32 s{sRD}, {K1_SLOT*K1_NSLOT}",
                f"s_cselect_b32 s{sRD}, 0, s{sRD}"]

    for var in range(12):
        typ, rg = var // 4, var % 4
        nt = 7 if typ == 2 else 8
        cst = [j for j in (rg, rg + 4) if j < nt]
        a.raw(".p2align 3")
        a.lab(f"K1_V{var}")
        for ins in addr_update():
            a.e(ins)
        for ins in reads(0, nt):
            a.e(ins)
        a.lab(f"K1_L{var}")
        for fs in range(2):
            mf = []
            for j in range(nt):
                for mt in range(2):
                    if typ == 1:
                        mf.append(f"v_mfma_f32_16x16x32_bf16 {vr(acc(j,mt),4)}, {vr(fa(fs,mt),4)}, {vr(fb(fs,j),4)}, {vr(acc(j,mt),4)}")
                    else:
                        mf.append(f"v_mfma_f32_16x16x32_bf16 {vr(acc(j,mt),4)}, {vr(fb(fs,j),4)}, {vr(fa(fs,mt),4)}, {vr(acc(j,mt),4)}")
            dots = []
            for mt in range(2):
                for r in range(4):
                    if typ == 2:
                        dots.append(f"v_dot2c_f32_bf16 v{vS+mt}, v{fa(fs,mt)+r}, v{fa(fs,mt)+r}")
                    else:
                        dots.append(f"v_dot2c_f32_bf16 v{vS+mt}, 0x3f803f80, v{fa(fs,mt)+r}")
            for ci, j in enumerate(cst):
                for r in range(4):
                    dots.append(f"v_dot2c_f32_bf16 v{vC+ci}, 0x3f803f80, v{fb(fs,j)+r}")
            rd = reads(fs ^ 1, nt)
            dma = issue_dma_list()
            a.e("s_waitcnt lgkmcnt(0)")
            npre = 2
            for m in mf[:npre]:
                a.e(m)
            for ins in addr_update():
                a.e(ins)
            a.e("s_waitcnt vmcnt(12)")
            a.e("s_barrier")
            rest = mf[npre:]
            nm = len(rest)
            ri = di = gi = 0
            for i, m in enumerate(rest):
                want_r = min(len(rd), (i + 1) * 2 + 2)
                while ri < want_r:
                    a.e(rd[ri]); ri += 1
                a.e(m)
                want_d = (len(dots) * (i + 1) + nm - 1) // nm
                while di < want_d:
                    a.e(dots[di]); di += 1
                if i % 3 == 1 and gi < len(dma):
                    for ins in dma[gi]:
                        a.e(ins)
                    gi += 1
            while ri < len(rd):
                a.e(rd[ri]); ri += 1
            while gi < len(dma):
                for ins in dma[gi]:
                    a.e(ins)
                gi += 1
        a.e(f"s_add_u32 s{sIT}, s{sIT}, 1")
        a.e(f"s_cmp_lt_u32 s{sIT}, 10")
        a.e(f"s_cbranch_scc1 K1_L{var}")
        a.e(f"s_branch K1_EPI")

    a.raw(".p2align 3")
    a.lab("K1_EPI")
    a.e("s_waitcnt lgkmcnt(0)")
    a.e("s_nop 3")
    for i in range(4):
        a.e(f"v_mov_b32 v{vT+i}, v{vS+i}")
    a.e("s_nop 1")
    for i in range(4):
        a.e(f"v_permlane32_swap_b32 v{vS+i}, v{vT+i}")
    for i in range(4):
        a.e(f"v_add_f32 v{vS+i}, v{vS+i}, v{vT+i}")
    for i in range(4):
        a.e(f"v_mov_b32 v{vT+i}, v{vS+i}")
    a.e("s_nop 1")
    for i in range(4):
        a.e(f"v_permlane16_swap_b32 v{vS+i}, v{vT+i}")
    for i in range(4):
        a.e(f"v_add_f32 v{vS+i}, v{vS+i}, v{vT+i}")
    a.e(f"v_and_b32 v{vT}, 15, v{vLANE}")
    a.e(f"v_lshlrev_b32 v{vT}, 2, v{vT}")
    a.e(f"s_lshl_b32 s{t0}, s{sHALF}, 9")
    a.e(f"s_lshl_b32 s{t1}, s{sRG}, 7")
    a.e(f"s_add_u32 s{t0}, s{t0}, s{t1}")
    a.e(f"s_add_u32 s{t0}, s{t0}, {K1_SCR}")
    a.e(f"v_add_u32 v{vT+1}, s{t0}, v{vT}")
    a.e(f"ds_write_b32 v{vT+1}, v{vS}")
    a.e(f"ds_write_b32 v{vT+1}, v{vS+1} offset:64")
    a.e(f"s_lshl_b32 s{t0}, s{sHALF}, 9")
    a.e(f"s_lshl_b32 s{t1}, s{sRG}, 6")
    a.e(f"s_add_u32 s{t0}, s{t0}, s{t1}")
    a.e(f"s_add_u32 s{t0}, s{t0}, {K1_SCR+1024}")
    a.e(f"v_add_u32 v{vT+1}, s{t0}, v{vT}")
    a.e(f"ds_write_b32 v{vT+1}, v{vC}")
    a.e(f"ds_write_b32 v{vT+1}, v{vC+1} offset:256")
    a.e("s_waitcnt lgkmcnt(0)")
    a.e("s_barrier")
    a.e(f"s_cmp_eq_u32 s{sHALF}, 1")
    a.e("s_cbranch_scc1 K1_EPI_DT")
    a.e(f"s_cmp_ge_u32 s{sCBQ}, 10")
    a.e("s_cbranch_scc1 K1_EPI_V")

    def finalize(s1, s2, nm, rs, tmp):
        a.e(f"v_mul_f32 v{s1}, {hx(f32(1.0/640))}, v{s1}")
        a.e(f"v_mul_f32 v{s2}, {hx(f32(1.0/640))}, v{s2}")
        a.e(f"v_fma_f32 v{s2}, -v{s1}, v{s1}, v{s2}")
        a.e(f"v_max_f32 v{s2}, 0, v{s2}")
        round_bf16_inplace(a, s2)
        a.e(f"v_add_f32 v{s2}, {hx(f32(1e-5))}, v{s2}")
        round_bf16_inplace(a, s2)
        a.e(f"v_sqrt_f32 v{s2}, v{s2}")
        round_bf16_inplace(a, s1)
        round_bf16_inplace(a, s2)
        a.e(f"v_rcp_f32 v{rs}, v{s2}")
        a.e(f"v_sub_f32 v{nm}, 0, v{s1}")

    a.lab("K1_EPI_DT")
    vNM, vRS = 16, 18
    vCS = 64
    vX = 20
    a.e(f"v_and_b32 v{vX}, 15, v{vLANE}")
    a.e(f"v_lshlrev_b32 v{vX}, 2, v{vX}")
    a.e(f"s_lshl_b32 s{t1}, s{sRG}, 7")
    a.e(f"s_add_u32 s{t1}, s{t1}, {K1_SCR}")
    a.e(f"v_add_u32 v{vX}, s{t1}, v{vX}")
    a.e(f"ds_read_b32 v{vX+2}, v{vX}")
    a.e(f"ds_read_b32 v{vX+3}, v{vX} offset:64")
    a.e(f"ds_read_b32 v{vX+4}, v{vX} offset:512")
    a.e(f"ds_read_b32 v{vX+5}, v{vX} offset:576")
    a.e(f"v_lshrrev_b32 v{vX+1}, 4, v{vLANE}")
    a.e(f"v_lshlrev_b32 v{vX+1}, 4, v{vX+1}")
    a.e(f"s_lshl_b32 s{t0}, s{sHALF}, 9")
    a.e(f"s_add_u32 s{t0}, s{t0}, {K1_SCR+1024}")
    a.e(f"v_add_u32 v{vX+1}, s{t0}, v{vX+1}")
    for j in range(8):
        a.e(f"ds_read_b128 {vr(vCS+4*j,4)}, v{vX+1} offset:{64*j}")
    a.e("s_waitcnt lgkmcnt(8)")
    finalize(vX + 2, vX + 4, vNM, vRS, None)
    finalize(vX + 3, vX + 5, vNM + 1, vRS + 1, None)
    a.e("s_waitcnt lgkmcnt(0)")
    a.e(f"s_cmp_eq_u32 s{sHALF}, 1")
    a.e("s_cbranch_scc1 K1_EPI_F")
    a.e(f"s_cmp_lt_u32 s{sCBQ}, 5")
    a.e(f"s_cselect_b32 s{t0}, {hx(f32(QSCALE))}, 1.0")
    a.e(f"v_mul_f32 v{vRS}, s{t0}, v{vRS}")
    a.e(f"v_mul_f32 v{vRS+1}, s{t0}, v{vRS+1}")
    a.e(f"s_cselect_b32 s{t1}, 81920, 163840")
    a.e(f"s_cselect_b32 s{t2}, 1280, 2560")
    a.e(f"s_cselect_b32 s{t3}, {hx(QB_OFF)}, {hx(KV_OFF)}")
    a.e(f"s_cselect_b32 s{t4}, 16, 8")
    a.e(f"s_cselect_b64 vcc, -1, 0")
    a.e(f"s_sub_u32 s{t5}, s{sCBQ}, 5")
    a.e(f"s_cmp_lt_u32 s{sCBQ}, 5")
    a.e(f"s_cselect_b32 s{t5}, s{sCBQ}, s{t5}")
    a.e(f"s_lshl_b32 s{t5}, s{t5}, 5")
    a.e(f"s_lshl_b32 s{t6}, s{sRB}, 2")
    a.e(f"s_add_u32 s{t6}, s{t6}, s{sRG}")
    a.e(f"s_mul_i32 s{t6}, s{t6}, s{t2}")
    a.e(f"s_add_u32 s{t3}, s{t3}, s{t6}")
    vR0 = vX
    a.e(f"v_and_b32 v{vX+1}, 15, v{vLANE}")
    a.e(f"v_and_b32 v{vX+2}, 7, v{vLANE}")
    a.e(f"v_and_b32 v{vX+3}, 8, v{vLANE}")
    a.e(f"v_lshl_add_u32 v{vX+2}, v{vX+3}, 1, v{vX+2}")
    a.e(f"v_cndmask_b32 v{vR0}, v{vX+2}, v{vX+1}, vcc")
    a.e(f"v_lshrrev_b32 v{vX+1}, 4, v{vLANE}")
    a.e(f"v_add_u32 v{vX+1}, s{t5}, v{vX+1}")
    vG = vX + 1
    for j in range(8):
        h, dg, o0, o1, tt = vX + 2, vX + 3, vX + 4, vX + 5, vX + 6
        a.e(f"v_add_u32 v{tt}, {4*j}, v{vG}")
        a.e(f"v_mul_u32_u24 v{h}, 205, v{tt}")
        a.e(f"v_lshrrev_b32 v{h}, 10, v{h}")
        a.e(f"v_mul_u32_u24 v{dg}, 5, v{h}")
        a.e(f"v_sub_u32 v{dg}, v{tt}, v{dg}")
        a.e(f"v_lshrrev_b32 v{o0}, 1, v{dg}")
        a.e(f"v_lshlrev_b32 v{o0}, 9, v{o0}")
        a.e(f"v_and_b32 v{o1}, 1, v{dg}")
        a.e(f"v_lshl_add_u32 v{o0}, v{o1}, 3, v{o0}")
        a.e(f"v_mul_lo_u32 v{h}, v{h}, s{t1}")
        a.e(f"v_add3_u32 v{o0}, v{o0}, v{h}, s{t3}")
        a.e(f"v_lshrrev_b32 v{dg}, 2, v{dg}")
        a.e(f"v_sub_u32 v{dg}, 4, v{dg}")
        a.e(f"v_lshlrev_b32 v{o1}, v{dg}, v{vR0}")
        a.e(f"v_add_u32 v{o0}, v{o0}, v{o1}")
        a.e(f"v_lshlrev_b32 v{o1}, v{dg}, s{t4}")
        a.e(f"v_add_u32 v{o1}, v{o0}, v{o1}")
        for mt in range(2):
            A = acc(j, mt)
            sel = f"op_sel:[0,{mt},0] op_sel_hi:[1,{mt},1]"
            sel2 = f"op_sel:[0,{mt}] op_sel_hi:[1,{mt}]"
            for p in range(2):
                a.e(f"v_pk_fma_f32 {vr(A+2*p,2)}, {vr(vCS+4*j+2*p,2)}, {vr(vNM,2)}, {vr(A+2*p,2)} {sel}")
            for p in range(2):
                a.e(f"v_pk_mul_f32 {vr(A+2*p,2)}, {vr(A+2*p,2)}, {vr(vRS,2)} {sel2}")
            a.e(f"v_cvt_pk_bf16_f32 v{A}, v{A}, v{A+1}")
            a.e(f"v_cvt_pk_bf16_f32 v{A+1}, v{A+2}, v{A+3}")
            a.e(f"buffer_store_dwordx2 {vr(A,2)}, v{o0 if mt == 0 else o1}, {sr(sWS,4)}, 0 offen")
    a.e("s_endpgm")
    a.lab("K1_EPI_F")
    c0 = -2.0 * math.sqrt(2.0 / math.pi) * math.log2(math.e)
    c1 = c0 * 0.044715
    vC0, vONE = 96, 98
    a.e(f"v_mov_b32 v{vC0}, {hx(f32(c0))}")
    a.e(f"v_mov_b32 v{vC0+1}, {hx(f32(c0))}")
    a.e(f"v_mov_b32 v{vONE}, 1.0")
    a.e(f"v_mov_b32 v{vONE+1}, 1.0")
    a.e(f"s_mov_b32 s{sC1}, {hx(f32(c1))}")
    a.e(f"s_mov_b32 s{sC1+1}, {hx(f32(c1))}")
    a.e(f"s_lshl_b32 s{t0}, s{sRB}, 7")
    a.e(f"s_lshl_b32 s{t1}, s{sRG}, 5")
    a.e(f"s_add_u32 s{t0}, s{t0}, s{t1}")
    a.e(f"v_and_b32 v{vX}, 15, v{vLANE}")
    a.e(f"v_add_u32 v{vX}, s{t0}, v{vX}")
    a.e(f"v_lshlrev_b32 v{vX}, 4, v{vX}")
    a.e(f"v_lshrrev_b32 v{vX+1}, 4, v{vLANE}")
    a.e(f"v_lshl_add_u32 v{vX}, v{vX+1}, 15, v{vX}")
    a.e(f"v_add_u32 v{vX}, {hx(AB_OFF + 80*32768)}, v{vX}")
    vBF = 100
    vW = 104
    for j in range(7):
        a.e(f"s_add_u32 s{t0}, s{sT0}, {j}")
        a.e(f"s_lshr_b32 s{t1}, s{t0}, 1")
        a.e(f"s_lshl_b32 s{t1}, s{t1}, 17")
        a.e(f"s_and_b32 s{t0}, s{t0}, 1")
        a.e(f"s_lshl_b32 s{t0}, s{t0}, 3")
        a.e(f"s_add_u32 s{t0}, s{t0}, s{t1}")
        a.e(f"v_lshlrev_b32 v{vBF}, 16, v{vBIAS+2*j}")
        a.e(f"v_and_b32 v{vBF+1}, 0xffff0000, v{vBIAS+2*j}")
        a.e(f"v_lshlrev_b32 v{vBF+2}, 16, v{vBIAS+2*j+1}")
        a.e(f"v_and_b32 v{vBF+3}, 0xffff0000, v{vBIAS+2*j+1}")
        prs = [(mt, p) for mt in range(2) for p in range(2)]
        for i, (mt, p) in enumerate(prs):
            A = acc(j, mt) + 2 * p
            sel = f"op_sel:[0,{mt},0] op_sel_hi:[1,{mt},1]"
            a.e(f"v_pk_fma_f32 {vr(A,2)}, {vr(vCS+4*j+2*p,2)}, {vr(vNM,2)}, {vr(A,2)} {sel}")
        for i, (mt, p) in enumerate(prs):
            A = acc(j, mt) + 2 * p
            sel = f"op_sel:[0,{mt},0] op_sel_hi:[1,{mt},1]"
            a.e(f"v_pk_fma_f32 {vr(A,2)}, {vr(A,2)}, {vr(vRS,2)}, {vr(vBF+2*p,2)} {sel}")
        for i, (mt, p) in enumerate(prs):
            A = acc(j, mt) + 2 * p
            a.e(f"v_pk_mul_f32 {vr(vW+2*i,2)}, {vr(A,2)}, {vr(A,2)}")
        for i, (mt, p) in enumerate(prs):
            a.e(f"v_pk_fma_f32 {vr(vW+2*i,2)}, {vr(vW+2*i,2)}, {sr(sC1,2)}, {vr(vC0,2)}")
        for i, (mt, p) in enumerate(prs):
            A = acc(j, mt) + 2 * p
            a.e(f"v_pk_mul_f32 {vr(vW+2*i,2)}, {vr(vW+2*i,2)}, {vr(A,2)}")
        for i in range(8):
            a.e(f"v_exp_f32 v{vW+i}, v{vW+i}")
        for i in range(4):
            a.e(f"v_pk_add_f32 {vr(vW+2*i,2)}, {vr(vW+2*i,2)}, {vr(vONE,2)}")
        for i in range(8):
            a.e(f"v_rcp_f32 v{vW+i}, v{vW+i}")
        for i, (mt, p) in enumerate(prs):
            A = acc(j, mt) + 2 * p
            a.e(f"v_pk_mul_f32 {vr(A,2)}, {vr(A,2)}, {vr(vW+2*i,2)}")
        for mt in range(2):
            A = acc(j, mt)
            a.e(f"v_cvt_pk_bf16_f32 v{A}, v{A}, v{A+1}")
            a.e(f"v_cvt_pk_bf16_f32 v{A+1}, v{A+2}, v{A+3}")
            a.e(f"buffer_store_dwordx2 {vr(A,2)}, v{vX}, {sr(sWS,4)}, s{t0} offen offset:{256*mt}")
    a.e("s_endpgm")
    a.lab("K1_EPI_V")
    vS1, vS2 = 64, 72
    vNMv, vRSv = 80, 88
    vCSv = 96
    a.e(f"v_lshrrev_b32 v{vX+1}, 4, v{vLANE}")
    a.e(f"v_lshlrev_b32 v{vX}, 4, v{vX+1}")
    a.e(f"s_lshl_b32 s{t1}, s{sRG}, 7")
    a.e(f"s_add_u32 s{t1}, s{t1}, {K1_SCR}")
    a.e(f"v_add_u32 v{vX}, s{t1}, v{vX}")
    a.e(f"ds_read_b128 {vr(vS1,4)}, v{vX}")
    a.e(f"ds_read_b128 {vr(vS1+4,4)}, v{vX} offset:64")
    a.e(f"ds_read_b128 {vr(vS2,4)}, v{vX} offset:512")
    a.e(f"ds_read_b128 {vr(vS2+4,4)}, v{vX} offset:576")
    a.e(f"v_and_b32 v{vX+2}, 15, v{vLANE}")
    a.e(f"v_lshlrev_b32 v{vX+3}, 2, v{vX+2}")
    a.e(f"v_add_u32 v{vX+3}, {K1_SCR+1024}, v{vX+3}")
    for j in range(8):
        a.e(f"ds_read_b32 v{vCSv+2*j}, v{vX+3} offset:{64*j}")
    a.e("s_waitcnt lgkmcnt(8)")
    for i in range(8):
        finalize(vS1 + i, vS2 + i, vNMv + i, vRSv + i, None)
    a.e("s_waitcnt lgkmcnt(0)")
    a.e(f"s_sub_u32 s{t5}, s{sCBQ}, 10")
    a.e(f"s_lshl_b32 s{t5}, s{t5}, 7")
    a.e(f"v_add_u32 v{vX+2}, s{t5}, v{vX+2}")
    a.e(f"s_lshl_b32 s{t6}, s{sRB}, 2")
    a.e(f"s_add_u32 s{t6}, s{t6}, s{sRG}")
    a.e(f"s_mul_i32 s{t6}, s{t6}, 2560")
    a.e(f"s_add_u32 s{t6}, s{t6}, {hx(KV_OFF + 1280)}")
    a.e(f"v_mul_u32_u24 v{vX+1}, 320, v{vX+1}")
    a.e(f"v_add_u32 v{vX+1}, s{t6}, v{vX+1}")
    a.e(f"s_mov_b32 s{t1}, 163840")
    for j in range(8):
        n, h, d = vX + 4, vX + 5, vX + 6
        a.e(f"v_add_u32 v{n}, {16*j}, v{vX+2}")
        a.e(f"v_mul_u32_u24 v{h}, 3277, v{n}")
        a.e(f"v_lshrrev_b32 v{h}, 16, v{h}")
        a.e(f"v_mul_u32_u24 v{d}, 20, v{h}")
        a.e(f"v_sub_u32 v{d}, v{n}, v{d}")
        a.e(f"v_mul_lo_u32 v{h}, v{h}, s{t1}")
        a.e(f"v_lshl_add_u32 v{d}, v{d}, 4, v{h}")
        a.e(f"v_add_u32 v{d}, v{d}, v{vX+1}")
        for mt in range(2):
            A = acc(j, mt)
            for p in range(2):
                a.e(f"v_pk_fma_f32 {vr(A+2*p,2)}, {vr(vNMv+4*mt+2*p,2)}, {vr(vCSv+2*j,2)}, {vr(A+2*p,2)} op_sel:[0,0,0] op_sel_hi:[1,0,1]")
            for p in range(2):
                a.e(f"v_pk_mul_f32 {vr(A+2*p,2)}, {vr(A+2*p,2)}, {vr(vRSv+4*mt+2*p,2)}")
        A0, A1 = acc(j, 0), acc(j, 1)
        a.e(f"v_cvt_pk_bf16_f32 v{A0}, v{A0}, v{A0+1}")
        a.e(f"v_cvt_pk_bf16_f32 v{A0+1}, v{A0+2}, v{A0+3}")
        a.e(f"v_cvt_pk_bf16_f32 v{A0+2}, v{A1}, v{A1+1}")
        a.e(f"v_cvt_pk_bf16_f32 v{A0+3}, v{A1+2}, v{A1+3}")
        a.e(f"buffer_store_dwordx4 {vr(A0,4)}, v{d}, {sr(sWS,4)}, 0 offen")
    a.lab("K1_END")
    a.e("s_endpgm")
    return name, NV, 80, (256, 512, K1_LDS)


K2_LDS = 163840


def gen_k2(a):
    name = "k2_attn_kernel"
    kernel_header(a, name)
    sWS, sKV = 8, 12
    sW, sH, sQT, sOFF, sIT = 16, 17, 18, 19, 20
    sVM = 22
    t0, t1, t2, t3 = 24, 25, 26, 27
    vLANE = 1
    vL16, vKa, vKb, vV = 2, 3, 4, 5
    vT = 6
    QA, QB = 12, 16
    KA, KB = 20, 24
    V0, V1 = 28, 32
    P0, P1 = 36, 40
    O = 48
    S = [64, 80]
    NV = 96

    a.e("s_cmp_ge_u32 s2, 256")
    a.e("s_cbranch_scc1 K2_END")
    a.e("s_load_dwordx2 s[4:5], s[0:1], 80")
    a.e(f"v_and_b32 v{vLANE}, 63, v0")
    a.e(f"v_lshrrev_b32 v{vT}, 6, v0")
    a.e("s_nop 0")
    a.e(f"v_readfirstlane_b32 s{sW}, v{vT}")
    a.e(f"s_and_b32 s{t0}, s2, 7")
    a.e(f"s_lshr_b32 s{t1}, s2, 3")
    a.e(f"s_lshl_b32 s{t0}, s{t0}, 2")
    a.e(f"s_and_b32 s{t2}, s{t1}, 3")
    a.e(f"s_add_u32 s{sH}, s{t0}, s{t2}")
    a.e(f"s_lshr_b32 s{t1}, s{t1}, 2")
    a.e(f"s_lshl_b32 s{t1}, s{t1}, 3")
    a.e(f"s_add_u32 s{sQT}, s{t1}, s{sW}")
    a.e(f"v_lshlrev_b32 v{vL16}, 4, v{vLANE}")
    a.e("s_waitcnt lgkmcnt(0)")
    srd(a, sWS, "s4", "s5", WS_END)
    a.e(f"s_mul_i32 s{t0}, s{sH}, 163840")
    a.e(f"s_add_u32 s{t0}, s{t0}, {hx(KV_OFF)}")
    a.e(f"s_add_u32 s{sKV}, s4, s{t0}")
    a.e(f"s_addc_u32 s{sKV+1}, s5, 0")
    a.e(f"s_mov_b32 s{sKV+2}, 163840")
    a.e(f"s_mov_b32 s{sKV+3}, 0x00020000")
    a.e(f"s_mul_i32 s{t0}, s{sH}, 81920")
    a.e(f"s_mul_i32 s{t1}, s{sQT}, 1280")
    a.e(f"s_add_u32 s{t0}, s{t0}, s{t1}")
    if QB_OFF:
        a.e(f"s_add_u32 s{t0}, s{t0}, {hx(QB_OFF)}")
    a.e(f"buffer_load_dwordx4 {vr(QA,4)}, v{vL16}, {sr(sWS,4)}, s{t0} offen")
    a.e(f"v_lshlrev_b32 v{vT}, 3, v{vLANE}")
    a.e(f"v_mov_b32 v{vT+1}, {hx(OOB)}")
    a.e(f"v_cmp_gt_u32 vcc, 32, v{vLANE}")
    a.e("s_nop 1")
    a.e(f"v_cndmask_b32 v{vT}, v{vT+1}, v{vT}, vcc")
    a.e(f"buffer_load_dwordx2 {vr(QB,2)}, v{vT}, {sr(sWS,4)}, s{t0} offen offset:1024")
    a.e(f"s_lshl_b32 s{sOFF}, s{sW}, 10")
    for t in range(20):
        a.e(f"s_mov_b32 m0, s{sOFF}")
        a.e("s_nop 0")
        a.e(f"buffer_load_dwordx4 v{vL16}, {sr(sKV,4)}, s{sOFF} offen lds")
        a.e(f"s_add_u32 s{sOFF}, s{sOFF}, 8192")
    a.e(f"v_mov_b32 v{vKa}, v{vL16}")
    a.e(f"v_and_b32 v{vT}, 31, v{vLANE}")
    a.e(f"v_lshlrev_b32 v{vKb}, 3, v{vT}")
    a.e(f"v_add_u32 v{vKb}, 1024, v{vKb}")
    a.e(f"v_lshrrev_b32 v{vT+1}, 5, v{vLANE}")
    a.e(f"v_mul_u32_u24 v{vV}, 320, v{vT+1}")
    a.e(f"v_lshl_add_u32 v{vV}, v{vT}, 4, v{vV}")
    a.e(f"v_add_u32 v{vV}, 1280, v{vV}")
    a.e(f"v_cmp_gt_u32 {sr(sVM,2)}, 20, v{vT}")
    a.e(f"v_and_b32 v{vT+2}, 0x1b, v{vT}")
    a.e(f"v_cmp_eq_u32 vcc, 20, v{vT}")
    a.e(f"v_cmp_eq_u32 {sr(t0,2)}, 24, v{vT}")
    a.e("s_nop 1")
    a.e(f"s_or_b64 vcc, vcc, {sr(t0,2)}")
    a.e(f"v_mov_b32 v{vT+2}, 0x3f803f80")
    a.e("s_nop 1")
    for i in range(8):
        a.e(f"v_cndmask_b32 v{V0+i}, 0, v{vT+2}, vcc")
    for i in range(16):
        a.e(f"v_mov_b32 v{O+i}, 0")
    for i in range(4):
        a.e(f"v_mov_b32 v{P1+i}, 0")
    a.e(f"s_mov_b32 s{sIT}, 0")
    a.e("s_waitcnt vmcnt(18)")
    a.e("s_barrier")

    def rdKa(t):
        return f"ds_read_b128 {vr(KA,4)}, v{vKa} offset:{2560*t}"

    def rdKb(t):
        return f"ds_read_b64 {vr(KB,2)}, v{vKb} offset:{2560*t}"

    def rdV(m, t):
        return [f"s_mov_b64 exec, {sr(sVM,2)}",
                f"ds_read_b128 {vr(V0 if m == 0 else V1,4)}, v{vV} offset:{2560*t + 640*m}",
                "s_mov_b64 exec, -1"]

    a.e(rdKa(0))
    a.e(rdKb(0))
    a.e("s_waitcnt lgkmcnt(0)")
    a.e(f"v_mfma_f32_32x32x16_bf16 {vr(S[0],16)}, {vr(KA,4)}, {vr(QA,4)}, 0")
    a.e(rdKa(1))
    a.e(f"v_mfma_f32_32x32x8_bf16 {vr(S[0],16)}, {vr(KB,2)}, {vr(QB,2)}, {vr(S[0],16)}")
    a.e(rdKb(1))
    for ins in rdV(0, 0):
        a.e(ins)
    for ins in rdV(0, 0):
        a.e(ins)
    a.e("s_nop 7")
    a.raw(".p2align 3")
    a.lab("K2_LOOP")
    a.e(f"s_cmp_ge_u32 s{sIT}, 6")
    a.e("s_cbranch_scc1 K2_BODY")
    a.e(f"s_cmp_eq_u32 s{sIT}, 0")
    a.e("s_cbranch_scc1 K2_BODY")
    for it in range(1, 6):
        need = ((4 * it + 6) * 2560 + 8191) // 8192
        allow = 20 - need if it < 5 else 0
        if it < 5:
            a.e(f"s_cmp_lg_u32 s{sIT}, {it}")
            a.e(f"s_cbranch_scc1 K2_W{it+1}")
        a.e(f"s_waitcnt vmcnt({allow})")
        a.e("s_barrier")
        if it < 5:
            a.e("s_branch K2_BODY")
            a.lab(f"K2_W{it+1}")
    a.lab("K2_BODY")
    for t in range(4):
        Sc, Sn = S[t & 1], S[(t + 1) & 1]

        def ex(lo):
            for i in range(lo, lo + 4):
                a.e(f"v_exp_f32 v{Sc+i}, v{Sc+i}")

        def cv(P, lo):
            a.e(f"v_cvt_pk_bf16_f32 v{P}, v{Sc+lo}, v{Sc+lo+1}")
            a.e(f"v_cvt_pk_bf16_f32 v{P+1}, v{Sc+lo+2}, v{Sc+lo+3}")

        a.e("s_waitcnt lgkmcnt(3)")
        a.e(f"v_mfma_f32_32x32x16_bf16 {vr(Sn,16)}, {vr(KA,4)}, {vr(QA,4)}, 0")
        a.e(rdKa(t + 2))
        ex(0)
        cv(P0, 0)
        a.e("s_waitcnt lgkmcnt(3)")
        a.e(f"v_mfma_f32_32x32x8_bf16 {vr(Sn,16)}, {vr(KB,2)}, {vr(QB,2)}, {vr(Sn,16)}")
        a.e(rdKb(t + 2))
        ex(4)
        cv(P0 + 2, 4)
        a.e("s_waitcnt lgkmcnt(3)")
        a.e(f"v_mfma_f32_32x32x16_bf16 {vr(O,16)}, {vr(V1,4)}, {vr(P1,4)}, {vr(O,16)}")
        for ins in rdV(1, t):
            a.e(ins)
        ex(8)
        cv(P1, 8)
        a.e("s_waitcnt lgkmcnt(3)")
        a.e(f"v_mfma_f32_32x32x16_bf16 {vr(O,16)}, {vr(V0,4)}, {vr(P0,4)}, {vr(O,16)}")
        for ins in rdV(0, t + 1):
            a.e(ins)
        ex(12)
        cv(P1 + 2, 12)
    a.e(f"v_add_u32 v{vKa}, 10240, v{vKa}")
    a.e(f"v_add_u32 v{vKb}, 10240, v{vKb}")
    a.e(f"v_add_u32 v{vV}, 10240, v{vV}")
    a.e(f"s_add_u32 s{sIT}, s{sIT}, 1")
    a.e(f"s_cmp_lt_u32 s{sIT}, 16")
    a.e("s_cbranch_scc1 K2_LOOP")
    a.e("s_waitcnt lgkmcnt(0)")
    a.e(f"v_mfma_f32_32x32x16_bf16 {vr(O,16)}, {vr(V1,4)}, {vr(P1,4)}, {vr(O,16)}")
    a.e("s_nop 15")
    a.e("s_nop 3")
    a.e(f"v_cmp_gt_u32 vcc, 32, v{vLANE}")
    a.e("s_nop 1")
    a.e(f"v_cndmask_b32 v{vT}, v{O+8}, v{O+12}, vcc")
    a.e(f"v_max3_f32 v{vT+1}, abs(v{O}), abs(v{O+1}), abs(v{O+2})")
    for i in range(3, 11, 2):
        a.e(f"v_max3_f32 v{vT+1}, abs(v{O+i}), abs(v{O+i+1}), v{vT+1}")
    a.e(f"v_max_f32 v{vT+1}, abs(v{O+11}), v{vT+1}")
    a.e(f"v_add_f32 v{vT+2}, v{O}, v{O+1}")
    for i in range(2, 12):
        a.e(f"v_add_f32 v{vT+2}, v{vT+2}, v{O+i}")
    a.e(f"v_mov_b32 v{vT+3}, {hx(f32(2.0**-60))}")
    a.e(f"v_mov_b32 v{vT+4}, {hx(f32(2.0**100))}")
    a.e(f"v_mov_b32 v{vT+5}, {hx(f32(2.0**120))}")
    a.e(f"v_cmp_gt_f32 {sr(t0,2)}, v{vT}, v{vT+3}")
    a.e(f"v_cmp_lt_f32 {sr(t2,2)}, v{vT}, v{vT+4}")
    a.e(f"v_cmp_lt_f32 vcc, v{vT+1}, v{vT+5}")
    a.e("s_nop 1")
    a.e(f"s_and_b64 {sr(t0,2)}, {sr(t0,2)}, {sr(t2,2)}")
    a.e(f"s_and_b64 {sr(t0,2)}, {sr(t0,2)}, vcc")
    a.e(f"v_cmp_o_f32 vcc, v{vT+2}, v{vT+2}")
    a.e("s_nop 1")
    a.e(f"s_and_b64 {sr(t0,2)}, {sr(t0,2)}, vcc")
    a.e(f"s_cmp_eq_u64 {sr(t0,2)}, -1")
    a.e("s_cbranch_scc0 K2_SLOW")
    a.lab("K2_FIN")
    a.e(f"v_rcp_f32 v{vT}, v{vT}")
    a.e(f"s_lshr_b32 s{t0}, s{sH}, 1")
    a.e(f"s_mul_i32 s{t0}, s{t0}, 5")
    a.e(f"s_and_b32 s{t1}, s{sH}, 1")
    a.e(f"s_lshl_b32 s{t2}, s{t1}, 1")
    a.e(f"s_add_u32 s{t2}, s{t2}, s{t0}")
    a.e(f"s_lshl_b32 s{t2}, s{t2}, 15")
    a.e(f"s_add_u32 s{t2}, s{t2}, {hx(AB_OFF)}")
    a.e(f"s_add_u32 s{t0}, s{t0}, 4")
    a.e(f"s_lshl_b32 s{t0}, s{t0}, 15")
    a.e(f"s_lshl_b32 s{t1}, s{t1}, 3")
    a.e(f"s_add_u32 s{t0}, s{t0}, s{t1}")
    a.e(f"s_add_u32 s{t0}, s{t0}, {hx(AB_OFF)}")
    a.e(f"s_lshl_b32 s{t3}, s{sQT}, 9")
    a.e(f"v_and_b32 v{vT+1}, 31, v{vLANE}")
    a.e(f"v_lshlrev_b32 v{vT+1}, 4, v{vT+1}")
    a.e(f"v_add_u32 v{vT+1}, s{t3}, v{vT+1}")
    a.e(f"v_lshrrev_b32 v{vT+2}, 5, v{vLANE}")
    a.e(f"v_lshl_add_u32 v{vT+3}, v{vT+2}, 15, v{vT+1}")
    a.e(f"v_lshl_add_u32 v{vT+4}, v{vT+2}, 30, v{vT+1}")
    for i in range(12):
        a.e(f"v_mul_f32 v{O+i}, v{O+i}, v{vT}")
    for i in range(6):
        a.e(f"v_cvt_pk_bf16_f32 v{O+i}, v{O+2*i}, v{O+2*i+1}")
    a.e(f"buffer_store_dwordx4 {vr(O,4)}, v{vT+3}, {sr(sWS,4)}, s{t2} offen")
    a.e(f"buffer_store_dwordx2 {vr(O+4,2)}, v{vT+4}, {sr(sWS,4)}, s{t0} offen")
    a.lab("K2_END")
    a.e("s_endpgm")
    a.lab("K2_SLOW")
    vM = vT + 5
    Sc = S[0]
    for ps in range(2):
        a.e(f"v_subrev_u32 v{vKa}, {163840}, v{vKa}")
        a.e(f"v_subrev_u32 v{vKb}, {163840}, v{vKb}")
        if ps == 0:
            a.e(f"v_subrev_u32 v{vV}, {163840}, v{vV}")
            a.e(f"v_mov_b32 v{vM}, 0xff800000")
        else:
            for i in range(16):
                a.e(f"v_mov_b32 v{O+i}, 0")
        a.e(f"s_mov_b32 s{sIT}, 0")
        a.lab(f"K2_SL{ps}")
        a.e(rdKa(0))
        a.e(rdKb(0))
        if ps == 1:
            for ins in rdV(0, 0) + rdV(1, 0):
                a.e(ins)
        a.e("s_waitcnt lgkmcnt(0)")
        a.e(f"v_mfma_f32_32x32x16_bf16 {vr(Sc,16)}, {vr(KA,4)}, {vr(QA,4)}, 0")
        a.e(f"v_mfma_f32_32x32x8_bf16 {vr(Sc,16)}, {vr(KB,2)}, {vr(QB,2)}, {vr(Sc,16)}")
        a.e("s_nop 15")
        a.e("s_nop 3")
        if ps == 0:
            for i in range(0, 16, 2):
                a.e(f"v_max3_f32 v{vM}, v{Sc+i}, v{Sc+i+1}, v{vM}")
        else:
            for i in range(16):
                a.e(f"v_sub_f32 v{Sc+i}, v{Sc+i}, v{vM}")
            for i in range(16):
                a.e(f"v_exp_f32 v{Sc+i}, v{Sc+i}")
            a.e("s_nop 0")
            for i in range(8):
                a.e(f"v_cvt_pk_bf16_f32 v{P0+i}, v{Sc+2*i}, v{Sc+2*i+1}")
            a.e("s_nop 1")
            a.e(f"v_mfma_f32_32x32x16_bf16 {vr(O,16)}, {vr(V0,4)}, {vr(P0,4)}, {vr(O,16)}")
            a.e(f"v_mfma_f32_32x32x16_bf16 {vr(O,16)}, {vr(V1,4)}, {vr(P1,4)}, {vr(O,16)}")
            a.e("s_nop 7")
            a.e(f"v_add_u32 v{vV}, 2560, v{vV}")
        a.e(f"v_add_u32 v{vKa}, 2560, v{vKa}")
        a.e(f"v_add_u32 v{vKb}, 2560, v{vKb}")
        a.e(f"s_add_u32 s{sIT}, s{sIT}, 1")
        a.e(f"s_cmp_lt_u32 s{sIT}, 64")
        a.e(f"s_cbranch_scc1 K2_SL{ps}")
        if ps == 0:
            a.e(f"v_mov_b32 v{vT+4}, v{vM}")
            a.e("s_nop 1")
            a.e(f"v_permlane32_swap_b32 v{vM}, v{vT+4}")
            a.e(f"v_max_f32 v{vM}, v{vM}, v{vT+4}")
    a.e("s_nop 15")
    a.e("s_nop 3")
    a.e(f"v_cmp_gt_u32 vcc, 32, v{vLANE}")
    a.e("s_nop 1")
    a.e(f"v_cndmask_b32 v{vT}, v{O+8}, v{O+12}, vcc")
    a.e("s_branch K2_FIN")
    return name, NV, 32, (256, 512, K2_LDS)


K3_LDS = 81920


def gen_k3(a):
    name = "k3_out_kernel"
    kernel_header(a, name)
    sA, sWT, sX, sB2, sO = 12, 16, 20, 24, 28
    sW, sRT, sCQ, sOA, sOW, sIT = 32, 33, 34, 35, 36, 37
    t0, t1, t2, t3 = 38, 39, 40, 41
    vLANE, vOA, vOW = 1, 2, 3
    vT = 4
    vXO = 12
    XR = 24
    ND = 4
    F = 48
    ACC = 144
    NV = 224

    def fA(s):
        return F + 24 * s

    def fW(s, t):
        return F + 24 * s + 4 + 4 * t

    a.e("s_cmp_ge_u32 s2, 256")
    a.e("s_cbranch_scc1 K3_END")
    a.e("s_load_dwordx2 s[4:5], s[0:1], 0")
    a.e("s_load_dwordx4 s[8:11], s[0:1], 56")
    a.e("s_load_dwordx2 s[6:7], s[0:1], 80")
    a.e(f"v_and_b32 v{vLANE}, 63, v0")
    a.e(f"v_lshrrev_b32 v{vT}, 6, v0")
    a.e("s_nop 0")
    a.e(f"v_readfirstlane_b32 s{sW}, v{vT}")
    a.e(f"s_and_b32 s{t0}, s2, 7")
    a.e(f"s_lshr_b32 s{t1}, s2, 3")
    a.e(f"s_lshl_b32 s{t0}, s{t0}, 3")
    a.e(f"s_and_b32 s{t2}, s{t1}, 7")
    a.e(f"s_add_u32 s{sRT}, s{t0}, s{t2}")
    a.e(f"s_lshr_b32 s{sCQ}, s{t1}, 3")
    a.e("s_waitcnt lgkmcnt(0)")
    srd_off(a, sA, "s6", "s7", AB_OFF, AB_SIZE)
    srd_off(a, sWT, "s6", "s7", WT_OFF, WT_SIZE)
    srd(a, sX, "s4", "s5", 2048 * 640 * 2)
    srd(a, sB2, "s8", "s9", 640 * 2)
    srd(a, sO, "s10", "s11", 2048 * 640 * 2)
    a.e(f"v_and_b32 v{vT}, 31, v{vLANE}")
    a.e(f"v_lshrrev_b32 v{vT+1}, 5, v{vLANE}")
    a.e(f"s_lshl_b32 s{t0}, s{sRT}, 5")
    a.e(f"v_add_u32 v{vT+2}, s{t0}, v{vT}")
    a.e(f"v_lshlrev_b32 v{vOA}, 4, v{vT+2}")
    a.e(f"v_lshl_add_u32 v{vOA}, v{vT+1}, 15, v{vOA}")
    a.e(f"s_mul_i32 s{t1}, s{sCQ}, 160")
    a.e(f"v_add_u32 v{vT+3}, s{t1}, v{vT}")
    a.e(f"v_lshlrev_b32 v{vOW}, 4, v{vT+3}")
    a.e(f"v_mul_u32_u24 v{vT+3}, 10240, v{vT+1}")
    a.e(f"v_add_u32 v{vOW}, v{vOW}, v{vT+3}")
    a.e(f"s_lshl_b32 s{sOA}, s{sW}, 16")
    a.e(f"s_mul_i32 s{sOW}, s{sW}, 20480")
    a.e(f"s_mul_i32 s{t2}, s{sW}, 40")
    a.e(f"s_add_u32 s{t2}, s{t2}, s{t1}")
    a.e(f"v_lshlrev_b32 v{vT+3}, 2, v{vT+1}")
    a.e(f"v_add_u32 v{vT+3}, s{t2}, v{vT+3}")
    a.e(f"v_lshlrev_b32 v{vXO+1}, 1, v{vT+3}")
    a.e(f"v_mul_u32_u24 v{vXO}, 1280, v{vT+2}")
    a.e(f"v_add_u32 v{vXO}, v{vXO}, v{vXO+1}")
    for q in range(5):
        a.e(f"buffer_load_dwordx2 {vr(XR+2*q,2)}, v{vXO}, {sr(sX,4)}, 0 offen offset:{16*q}")
        a.e(f"buffer_load_dwordx2 {vr(XR+10+2*q,2)}, v{vXO+1}, {sr(sB2,4)}, 0 offen offset:{16*q}")

    def loads(s):
        r = [f"buffer_load_dwordx4 {vr(fA(s),4)}, v{vOA}, {sr(sA,4)}, s{sOA} offen"]
        for t in range(5):
            r.append(f"buffer_load_dwordx4 {vr(fW(s,t),4)}, v{vOW}, {sr(sWT,4)}, s{sOW} offen offset:{512*t}")
        r.append(f"s_add_u32 s{sOA}, s{sOA}, {4*65536}")
        r.append(f"s_add_u32 s{sOW}, s{sOW}, {4*20480}")
        return r

    for s in range(ND):
        for ins in loads(s):
            a.e(ins)
    for i in range(80):
        a.e(f"v_mov_b32 v{ACC+i}, 0")
    a.e(f"s_mov_b32 s{sIT}, 0")
    a.raw(".p2align 3")
    a.lab("K3_LOOP")
    for s in range(ND):
        a.e(f"s_waitcnt vmcnt({6*(ND-1)})")
        for t in range(5):
            a.e(f"v_mfma_f32_32x32x16_bf16 {vr(ACC+16*t,16)}, {vr(fW(s,t),4)}, {vr(fA(s),4)}, {vr(ACC+16*t,16)}")
        for ins in loads(s):
            a.e(ins)
    a.e(f"s_add_u32 s{sIT}, s{sIT}, 1")
    a.e(f"s_cmp_lt_u32 s{sIT}, 10")
    a.e("s_cbranch_scc1 K3_LOOP")
    a.e("s_nop 15")
    a.e("s_nop 3")
    a.e(f"s_mul_i32 s{t0}, s{sW}, 20480")
    a.e(f"v_lshlrev_b32 v{vT}, 4, v{vLANE}")
    a.e(f"v_add_u32 v{vT+1}, s{t0}, v{vT}")
    for q in range(20):
        a.e(f"ds_write_b128 v{vT+1}, {vr(ACC+4*q,4)} offset:{1024*q}")
    a.e("s_waitcnt lgkmcnt(0)")
    a.e("s_barrier")
    a.e(f"s_mul_i32 s{t0}, s{sW}, 5120")
    a.e(f"v_add_u32 v{vT+1}, s{t0}, v{vT}")
    a.e(f"v_add_u32 v{vT+2}, 40960, v{vT+1}")
    R = 48
    a.e("s_waitcnt vmcnt(0)")
    for q in range(5):
        for wv in range(4):
            base = vT + 1 if wv < 2 else vT + 2
            a.e(f"ds_read_b128 {vr(R+16*q+4*wv,4)}, v{base} offset:{(wv&1)*20480 + 1024*q}")
    for q in range(5):
        a.e(f"s_waitcnt lgkmcnt({min(15,4*(4-q))})")
        b = R + 16 * q
        for p in range(2):
            a.e(f"v_pk_add_f32 {vr(b+2*p,2)}, {vr(b+2*p,2)}, {vr(b+4+2*p,2)}")
            a.e(f"v_pk_add_f32 {vr(b+8+2*p,2)}, {vr(b+8+2*p,2)}, {vr(b+12+2*p,2)}")
        for p in range(2):
            a.e(f"v_pk_add_f32 {vr(b+2*p,2)}, {vr(b+2*p,2)}, {vr(b+8+2*p,2)}")
        for k, src in enumerate((XR + 2 * q, XR + 10 + 2 * q)):
            u = b + 4 + 4 * k
            a.e(f"v_lshlrev_b32 v{u}, 16, v{src}")
            a.e(f"v_and_b32 v{u+1}, 0xffff0000, v{src}")
            a.e(f"v_lshlrev_b32 v{u+2}, 16, v{src+1}")
            a.e(f"v_and_b32 v{u+3}, 0xffff0000, v{src+1}")
        for p in range(2):
            a.e(f"v_pk_add_f32 {vr(b+2*p,2)}, {vr(b+2*p,2)}, {vr(b+4+2*p,2)}")
        for p in range(2):
            a.e(f"v_pk_add_f32 {vr(b+2*p,2)}, {vr(b+2*p,2)}, {vr(b+8+2*p,2)}")
        a.e(f"v_cvt_pk_bf16_f32 v{b}, v{b}, v{b+1}")
        a.e(f"v_cvt_pk_bf16_f32 v{b+1}, v{b+2}, v{b+3}")
        a.e(f"buffer_store_dwordx2 {vr(b,2)}, v{vXO}, {sr(sO,4)}, 0 offen offset:{16*q}")
    a.lab("K3_END")
    a.e("s_endpgm")
    return name, NV, 48, (256, 256, K3_LDS)


HEADER = """; Kernarg layout for this problem (88 bytes, ptrs only, base s[0:1]):
"""


def main(out_path):
    a = Asm()
    ks = []
    for g in (gen_k1, gen_k2, gen_k3):
        ks.append(g(a))
    s = HEADER
    for name, nv, ns, (gx, bx, lds) in ks:
        s += f"; @launch kernel={name} grid=({gx},1,1) block=({bx},1,1) lds={lds}\n"
    s += '.amdgcn_target "amdgcn-amd-amdhsa--gfx950"\n.text\n'
    s += a.text()
    s += '.section .rodata,"a"\n'
    for name, nv, ns, _ in ks:
        s += kd(name, nv, ns)
    open(out_path, "w").write(s)


if __name__ == "__main__":
    main(sys.argv[1] if len(sys.argv) > 1 else f"cdna_kernels/{NAME}.s")
```

```python
import struct, math, sys

NAME = "parallel_sum__mha_block__dense_activation_gelu__prompt"

QB_OFF = 0
KV_OFF = 0x280000
AB_OFF = 0x780000
WT_OFF = 0x10C0000
WS_END = WT_OFF + 296 * 10240
AB_SIZE = 296 * 32768
WT_SIZE = 296 * 10240
assert AB_OFF + AB_SIZE == WT_OFF


def f32(x):
    return struct.unpack("<I", struct.pack("<f", x))[0]


def hx(x):
    return "0x%08x" % (x & 0xFFFFFFFF)


class Asm:
    def __init__(self):
        self.lines = []

    def e(self, s):
        if s.startswith("s_cselect_b32"):
            ops = [x.strip() for x in s[len("s_cselect_b32"):].split(",")]

            def is_lit(x):
                try:
                    v = int(x, 0)
                except ValueError:
                    return False
                return not (-16 <= v <= 64)
            if is_lit(ops[1]) and is_lit(ops[2]):
                self.lines.append(f"    s_mov_b32 {ops[0]}, {ops[2]}")
                s = f"s_cselect_b32 {ops[0]}, {ops[1]}, {ops[0]}"
        self.lines.append("    " + s)

    def lab(self, s):
        self.lines.append(s + ":")

    def c(self, s):
        self.lines.append("    ; " + s)

    def raw(self, s):
        self.lines.append(s)

    def text(self):
        return "\n".join(self.lines) + "\n"


def vr(a, n):
    return f"v[{a}:{a+n-1}]" if n > 1 else f"v{a}"


def sr(a, n):
    return f"s[{a}:{a+n-1}]" if n > 1 else f"s{a}"


def kernel_header(a, name):
    a.raw(".p2align 8")
    a.raw(f".globl {name}")
    a.raw(f".type {name},@function")
    a.lab(name)


def kd(name, nv, ns):
    acc = (nv + 3) // 4 * 4
    return f""".p2align 6
.amdhsa_kernel {name}
  .amdhsa_next_free_vgpr {nv}
  .amdhsa_next_free_sgpr {ns}
  .amdhsa_accum_offset {acc}
  .amdhsa_group_segment_fixed_size 0
  .amdhsa_kernarg_size 88
  .amdhsa_user_sgpr_count 2
  .amdhsa_user_sgpr_kernarg_segment_ptr 1
  .amdhsa_system_sgpr_workgroup_id_x 1
.end_amdhsa_kernel
"""


def srd(a, d, lo, hi, size):
    a.e(f"s_mov_b32 s{d}, {lo}")
    a.e(f"s_mov_b32 s{d+1}, {hi}")
    a.e(f"s_mov_b32 s{d+2}, {hx(size)}")
    a.e(f"s_mov_b32 s{d+3}, 0x00020000")


def srd_off(a, d, lo, hi, off, size):
    a.e(f"s_add_u32 s{d}, {lo}, {hx(off)}")
    a.e(f"s_addc_u32 s{d+1}, {hi}, 0")
    a.e(f"s_mov_b32 s{d+2}, {hx(size)}")
    a.e(f"s_mov_b32 s{d+3}, 0x00020000")


def round_bf16_inplace(a, v, vtmp=None):
    a.e(f"v_cvt_pk_bf16_f32 v{v}, v{v}, v{v}")
    a.e(f"v_lshlrev_b32 v{v}, 16, v{v}")


OOB = 0x40000000
import os
DIAG = int(os.environ.get("DIAG", "0"))
DIAG_OFF = 0x2000000
SD = 84


def stamp(a, i):
    if DIAG:
        a.e(f"s_memtime s[{SD+2*i}:{SD+2*i+1}]")
        if i == 0:
            a.e(f"s_memrealtime s[{SD+12}:{SD+13}]")
        if i == 4:
            a.e(f"s_memrealtime s[{SD+14}:{SD+15}]")


def stamp_flush(a, kidx, wpw, sW, ws_lo, ws_hi, n, vtmp):
    if not DIAG:
        return
    a.e("s_waitcnt lgkmcnt(0)")
    a.e(f"s_add_u32 s80, {ws_lo}, {hx(DIAG_OFF + kidx*4096*64)}")
    a.e(f"s_addc_u32 s81, {ws_hi}, 0")
    a.e(f"s_mov_b32 s82, {hx(4096*64)}")
    a.e("s_mov_b32 s83, 0x00020000")
    a.e(f"s_mul_i32 s100, s2, {wpw}")
    a.e(f"s_add_u32 s100, s100, s{sW}")
    a.e("s_lshl_b32 s100, s100, 6")
    a.e(f"v_mov_b32 v{vtmp}, 0")
    for i in range(n):
        a.e(f"v_mov_b32 v{vtmp+1}, s{SD+2*i}")
        a.e(f"buffer_store_dword v{vtmp+1}, v{vtmp}, s[80:83], s100 offen offset:{4*i}")

K1_BH = 8 * 1056
K1_SLOT = 16384 + 4 * K1_BH
K1_NS = 3
K1_SCR = K1_SLOT * K1_NS
K1_LDS = K1_SCR + 2048 + 256
QSCALE = math.log2(math.e) / math.sqrt(20.0)


def gen_k1(a):
    name = "k1_gemm1_kernel"
    kernel_header(a, name)
    X = os.environ.get("K1X", "")
    sX, sB0, sB1, sWS, sT, sBI = 20, 24, 28, 32, 36, 40
    sW, sMH, sHALF, sRB, sCB, sNQ, sT0 = 44, 45, 46, 47, 48, 49, 50
    sOA, sOB0, sOB1 = 51, 52, 53
    sWA, sWB, sRD, sTS, sIT, sDA, sDB = 54, 55, 56, 57, 58, 59, 60
    t0, t1, t2, t3, t4, t5, t6, t7 = 62, 63, 64, 65, 66, 67, 68, 69
    sC1 = 70
    sTYP = 73
    sOA2, sOB0b, sOB1b = 76, 77, 78
    vLANE = 1
    vA0e, vA0o, vB0 = 2, 3, 4
    vAe, vAo, vB = 5, 6, 7
    vS = 8
    vSA = 12
    vONES = 20
    vCS = 24
    vU = 32
    FA = [40, 72]
    vT = 72
    ACC = 104
    NV = 168

    def acc(j, mt):
        return ACC + (j * 4 + mt) * 4

    def fa(s, mt):
        return FA[s] + mt * 4

    def fb(s, j):
        return FA[s] + 16 + j * 4

    def emit(lst):
        for ins in lst:
            a.e(ins)

    k1flush = lambda: (stamp(a, 4), stamp_flush(a, 0, 12, sW, "s18", "s19", 8, 2))

    a.e("s_cmp_ge_u32 s2, 256")
    a.e("s_cbranch_scc1 K1_END")
    stamp(a, 0)
    a.e("s_load_dwordx4 s[4:7], s[0:1], 0")
    a.e("s_load_dwordx2 s[8:9], s[0:1], 16")
    a.e("s_load_dwordx4 s[12:15], s[0:1], 32")
    a.e("s_load_dwordx2 s[16:17], s[0:1], 48")
    a.e("s_load_dwordx2 s[18:19], s[0:1], 80")
    a.e(f"v_and_b32 v{vLANE}, 63, v0")
    a.e(f"v_lshrrev_b32 v{vT}, 6, v0")
    a.e(f"s_and_b32 s{t0}, s2, 7")
    a.e(f"v_readfirstlane_b32 s{sW}, v{vT}")
    a.e(f"s_lshr_b32 s{t1}, s2, 3")
    a.e(f"s_and_b32 s{t2}, s{t0}, 1")
    a.e(f"s_lshl_b32 s{t2}, s{t2}, 3")
    a.e(f"s_and_b32 s{t3}, s{t1}, 7")
    a.e(f"s_add_u32 s{sRB}, s{t2}, s{t3}")
    a.e(f"s_lshr_b32 s{t2}, s{t0}, 1")
    a.e(f"s_lshl_b32 s{t2}, s{t2}, 2")
    a.e(f"s_lshr_b32 s{t3}, s{t1}, 3")
    a.e(f"s_add_u32 s{sCB}, s{t2}, s{t3}")
    a.e(f"s_cmp_eq_u32 s{sCB}, 15")
    a.e("s_cbranch_scc1 K1_TRANS")
    a.e(f"s_lshl_b32 s{sT0}, s{sCB}, 3")
    a.e(f"s_min_u32 s{sT0}, s{sT0}, 100")
    a.e(f"s_cmp_ge_u32 s{sW}, 4")
    a.e("s_cbranch_scc1 K1_COMP")
    lA = [2, 3]
    lQ = [4, 5]
    lF = [6, 7]
    lBI = 8
    a.e(f"s_lshl_b32 s{t0}, s{sRB}, 7")
    a.e(f"s_lshl_b32 s{t1}, s{sW}, 4")
    a.e(f"s_add_u32 s{t0}, s{t0}, s{t1}")
    a.e(f"v_lshrrev_b32 v{vT}, 3, v{vLANE}")
    a.e(f"v_add_u32 v{vT}, s{t0}, v{vT}")
    a.e(f"v_lshrrev_b32 v{vT+1}, 1, v{vT}")
    a.e(f"v_xor_b32 v{vT+1}, v{vT+1}, v{vLANE}")
    a.e(f"v_and_b32 v{vT+1}, 7, v{vT+1}")
    a.e(f"v_mul_u32_u24 v{vT}, 1280, v{vT}")
    a.e(f"v_lshl_add_u32 v{lA[0]}, v{vT+1}, 4, v{vT}")
    a.e(f"v_xor_b32 v{vT+1}, 4, v{vT+1}")
    a.e(f"v_lshl_add_u32 v{lA[1]}, v{vT+1}, 4, v{vT}")
    a.e(f"v_add_u32 v{lA[1]}, {8*1280}, v{lA[1]}")
    a.e(f"s_lshl_b32 s{sDA}, s{sW}, 11")
    a.e(f"s_and_b32 s{t0}, s{sW}, 1")
    a.e(f"s_lshl_b32 s{t0}, s{t0}, 1")
    a.e(f"s_lshr_b32 s{t1}, s{sW}, 1")
    a.e(f"s_lshl_b32 s{t1}, s{t1}, 3")
    a.e(f"s_or_b32 s{t0}, s{t0}, s{t1}")
    a.e(f"v_bfe_u32 v{vT}, v{vLANE}, 4, 1")
    a.e(f"v_lshlrev_b32 v{vT}, 2, v{vT}")
    a.e(f"v_lshrrev_b32 v{vT+1}, 5, v{vLANE}")
    a.e(f"v_lshl_or_b32 v{vT}, v{vT+1}, 4, v{vT}")
    a.e(f"v_or_b32 v{vT}, s{t0}, v{vT}")
    a.e(f"v_and_b32 v{vT+1}, 15, v{vLANE}")
    a.e(f"v_lshlrev_b32 v{vT+1}, 4, v{vT+1}")
    a.e(f"s_lshl_b32 s{t2}, s{sCB}, 8")
    a.e(f"s_lshl_b32 s{t3}, s{sT0}, 5")
    a.e(f"v_mul_u32_u24 v{lQ[0]}, 3840, v{vT}")
    a.e(f"v_add3_u32 v{lQ[0]}, v{lQ[0]}, v{vT+1}, s{t2}")
    a.e(f"v_add_u32 v{lQ[1]}, 3840, v{lQ[0]}")
    a.e(f"v_mul_u32_u24 v{lF[0]}, 3456, v{vT}")
    a.e(f"v_add3_u32 v{lF[0]}, v{lF[0]}, v{vT+1}, s{t3}")
    a.e(f"v_add_u32 v{lF[1]}, 3456, v{lF[0]}")
    a.e(f"s_mul_i32 s{sDB}, s{sW}, 2112")
    a.e(f"s_add_u32 s{sDB}, s{sDB}, 16384")
    a.e(f"s_mov_b32 s{sOA}, 0")
    a.e(f"s_mov_b32 s{sOA2}, {64*1280}")
    a.e(f"s_mov_b32 s{sOB0}, 0")
    a.e(f"s_mov_b32 s{sOB0b}, {32*3840}")
    a.e(f"s_mov_b32 s{sOB1}, 0")
    a.e(f"s_mov_b32 s{sOB1b}, {32*3456}")
    a.e(f"s_mov_b32 s{sWA}, s{sDA}")
    a.e(f"s_mov_b32 s{sWB}, s{sDB}")
    a.e("s_waitcnt lgkmcnt(0)")
    stamp(a, 5)
    srd(a, sX, "s4", "s5", 2048 * 640 * 2)
    srd(a, sB0, "s6", "s7", 640 * 1920 * 2)
    srd(a, sB1, "s12", "s13", 640 * 1728 * 2)

    def stage():
        spec = [(sWA, 0, lA, 1024, sX, sOA, 128),
                (sWA, 8192, lA, 1024, sX, sOA2, 128),
                (sWB, 0, lQ, 1056, sB0, sOB0, 64 * 3840),
                (sWB, 2 * K1_BH, lF, 1056, sB1, sOB1, 64 * 3456),
                (sWB, K1_BH, lQ, 1056, sB0, sOB0b, 64 * 3840),
                (sWB, 3 * K1_BH, lF, 1056, sB1, sOB1b, 64 * 3456)]
        for (sD, dof, vO, d2, sR, sO, inc) in spec:
            for q in range(2):
                d = dof + q * d2
                a.e(f"s_add_u32 m0, s{sD}, {d}" if d else f"s_mov_b32 m0, s{sD}")
                a.e("s_nop 0")
                a.e(f"buffer_load_dwordx4 v{vO[q]}, {sr(sR,4)}, s{sO} offen lds")
            a.e(f"s_add_u32 s{sO}, s{sO}, {inc}")
        a.e(f"s_add_u32 s{sWA}, s{sWA}, {K1_SLOT}")
        a.e(f"s_add_u32 s{sWB}, s{sWB}, {K1_SLOT}")
        a.e(f"s_cmp_ge_u32 s{sWA}, {K1_SCR}")
        a.e(f"s_cselect_b32 s{sWA}, s{sDA}, s{sWA}")
        a.e(f"s_cselect_b32 s{sWB}, s{sDB}, s{sWB}")

    stage()
    srd(a, sBI, "s14", "s15", 1728 * 2)
    a.e(f"v_lshlrev_b32 v{vT}, 2, v{vLANE}")
    a.e(f"buffer_load_dword v{lBI}, v{vT}, {sr(sBI,4)}, s{t3} offen")
    stage()
    a.e("s_waitcnt vmcnt(12)")
    a.e(f"v_add_u32 v{vT}, {K1_SCR+2048}, v{vT}")
    a.e(f"ds_write_b32 v{vT}, v{lBI}")
    a.e("s_barrier")
    stamp(a, 1)
    a.e(f"s_mov_b32 s{sIT}, 0")
    a.lab("K1_LD")
    stage()
    a.e("s_waitcnt vmcnt(12)")
    a.e("s_barrier")
    a.e(f"s_add_u32 s{sIT}, s{sIT}, 1")
    a.e(f"s_cmp_lt_u32 s{sIT}, 8")
    a.e("s_cbranch_scc1 K1_LD")
    a.e("s_waitcnt vmcnt(0) lgkmcnt(0)")
    a.e("s_barrier")
    if DIAG:
        stamp(a, 2); stamp(a, 3)
        k1flush()
    a.e("s_endpgm")
    a.lab("K1_COMP")
    a.e(f"s_and_b32 s{sMH}, s{sW}, 1")
    a.e(f"s_bfe_u32 s{sNQ}, s{sW}, 0x10001")
    a.e(f"s_lshr_b32 s{sHALF}, s{sW}, 3")
    a.e(f"s_lshl_b32 s{t0}, s{sMH}, 13")
    a.e(f"v_and_b32 v{vT+4}, 15, v{vLANE}")
    a.e(f"v_lshrrev_b32 v{vT}, 4, v{vLANE}")
    a.e(f"v_lshrrev_b32 v{vT+1}, 1, v{vT+4}")
    a.e(f"v_xor_b32 v{vT+1}, v{vT+1}, v{vT}")
    a.e(f"v_lshlrev_b32 v{vT+1}, 4, v{vT+1}")
    a.e(f"v_lshl_add_u32 v{vA0e}, v{vT+4}, 7, v{vT+1}")
    a.e(f"v_add_u32 v{vA0e}, s{t0}, v{vA0e}")
    a.e(f"v_xor_b32 v{vA0o}, 64, v{vA0e}")
    a.e(f"v_bfe_u32 v{vT+1}, v{vLANE}, 2, 3")
    a.e(f"v_mul_u32_u24 v{vT+1}, 1056, v{vT+1}")
    a.e(f"v_lshrrev_b32 v{vT+2}, 5, v{vLANE}")
    a.e(f"v_lshl_add_u32 v{vT+1}, v{vT+2}, 9, v{vT+1}")
    a.e(f"v_and_b32 v{vT+2}, 3, v{vLANE}")
    a.e(f"v_lshl_add_u32 v{vT+1}, v{vT+2}, 3, v{vT+1}")
    a.e(f"s_mul_i32 s{t0}, s{sHALF}, {2*K1_BH}")
    a.e(f"s_lshl_b32 s{t1}, s{sNQ}, 7")
    a.e(f"s_add_u32 s{t0}, s{t0}, s{t1}")
    a.e(f"s_add_u32 s{t0}, s{t0}, 16384")
    a.e(f"v_add_u32 v{vB0}, s{t0}, v{vT+1}")
    for i in range(64):
        a.e(f"v_mov_b32 v{ACC+i}, 0")
    for i in range(4):
        a.e(f"v_mov_b32 v{vS+i}, 0")
        a.e(f"v_mov_b32 v{vONES+i}, 0x3f803f80")
    for i in range(8):
        a.e(f"v_mov_b32 v{vCS+i}, 0")
        a.e(f"v_mov_b32 v{vSA+i}, {hx(OOB)}")
    a.e(f"s_mov_b32 s{sRD}, 0")
    a.e(f"s_mov_b32 s{sIT}, 0")
    a.e(f"s_mov_b32 s{sTS}, 0")
    a.e(f"s_cmp_ge_u32 s{sCB}, 10")
    a.e(f"s_cselect_b32 s{sTYP}, 1, 0")
    a.e(f"s_cmp_eq_u32 s{sHALF}, 1")
    a.e(f"s_cselect_b32 s{sTYP}, 2, s{sTYP}")
    a.e(f"s_lshl_b32 s{t6}, s{sRB}, 2")
    a.e(f"s_lshl_b32 s{t7}, s{sMH}, 1")
    a.e(f"s_add_u32 s{t6}, s{t6}, s{t7}")
    a.e(f"s_cmp_eq_u32 s{sTYP}, 1")
    a.e("s_cbranch_scc1 K1_PRE_V")
    a.e(f"s_cmp_eq_u32 s{sTYP}, 2")
    a.e("s_cbranch_scc1 K1_PRE_F")
    a.e(f"s_cmp_lt_u32 s{sCB}, 5")
    a.e(f"s_cselect_b32 s{t1}, 81920, 163840")
    a.e(f"s_cselect_b32 s{sTS}, 1280, 2560")
    a.e(f"s_cselect_b32 s{t3}, {hx(QB_OFF)}, {hx(KV_OFF)}")
    a.e(f"s_cselect_b32 s{t4}, 16, 8")
    a.e(f"s_cselect_b64 vcc, -1, 0")
    a.e(f"s_cselect_b32 s{t5}, 0, 5")
    a.e(f"s_sub_u32 s{t5}, s{sCB}, s{t5}")
    a.e(f"s_lshl_b32 s{t5}, s{t5}, 5")
    a.e(f"s_lshl_b32 s{t7}, s{sNQ}, 4")
    a.e(f"s_add_u32 s{t5}, s{t5}, s{t7}")
    a.e(f"s_mul_i32 s{t6}, s{t6}, s{sTS}")
    a.e(f"s_add_u32 s{t3}, s{t3}, s{t6}")
    r0, rA0, rB0, rA1, rB1, vG = vT + 5, vT + 6, vT + 7, vT + 8, vT + 9, vT + 10
    a.e(f"v_and_b32 v{vT+2}, 7, v{vLANE}")
    a.e(f"v_and_b32 v{vT+3}, 8, v{vLANE}")
    a.e(f"v_lshl_add_u32 v{vT+2}, v{vT+3}, 1, v{vT+2}")
    a.e(f"v_cndmask_b32 v{r0}, v{vT+2}, v{vT+4}, vcc")
    a.e(f"v_lshlrev_b32 v{rA0}, 4, v{r0}")
    a.e(f"v_add_u32 v{rA0}, s{t3}, v{rA0}")
    a.e(f"v_lshlrev_b32 v{rB0}, 3, v{r0}")
    a.e(f"s_add_u32 s{t7}, s{t3}, 1024")
    a.e(f"v_add_u32 v{rB0}, s{t7}, v{rB0}")
    a.e(f"s_lshl_b32 s{t7}, s{t4}, 4")
    a.e(f"v_add_u32 v{rA1}, s{t7}, v{rA0}")
    a.e(f"s_lshl_b32 s{t7}, s{t4}, 3")
    a.e(f"v_add_u32 v{rB1}, s{t7}, v{rB0}")
    a.e(f"v_add_u32 v{vG}, s{t5}, v{vT}")
    for j in range(4):
        tt, h, dg, u = vT + 11, vT + 12, vT + 13, vT + 14
        a.e(f"v_add_u32 v{tt}, {4*j}, v{vG}")
        a.e(f"v_mul_u32_u24 v{h}, 205, v{tt}")
        a.e(f"v_lshrrev_b32 v{h}, 10, v{h}")
        a.e(f"v_mad_i32_i24 v{dg}, v{h}, -5, v{tt}")
        a.e(f"v_mul_u32_u24 v{u}, 0x108, v{dg}")
        a.e(f"v_and_b32 v{u}, 0x208, v{u}")
        a.e(f"v_cmp_eq_u32 vcc, 4, v{dg}")
        a.e(f"v_mad_u32_u24 v{u}, v{h}, s{t1}, v{u}")
        a.e("s_nop 0")
        a.e(f"v_cndmask_b32 v{tt}, v{rA0}, v{rB0}, vcc")
        a.e(f"v_cndmask_b32 v{h}, v{rA1}, v{rB1}, vcc")
        a.e(f"v_add_u32 v{vSA+2*j}, v{u}, v{tt}")
        a.e(f"v_add_u32 v{vSA+2*j+1}, v{u}, v{h}")
    a.e("s_branch K1_PRE_DONE")
    a.lab("K1_PRE_V")
    a.e(f"s_sub_u32 s{t5}, s{sCB}, 10")
    a.e(f"s_lshl_b32 s{t5}, s{t5}, 7")
    a.e(f"s_lshl_b32 s{t7}, s{sNQ}, 6")
    a.e(f"s_add_u32 s{t5}, s{t5}, s{t7}")
    a.e(f"v_add_u32 v{vT+2}, s{t5}, v{vT+4}")
    a.e(f"s_mul_i32 s{t6}, s{t6}, 2560")
    a.e(f"s_add_u32 s{t6}, s{t6}, {hx(KV_OFF + 1280)}")
    a.e(f"v_mul_u32_u24 v{vT+1}, 320, v{vT}")
    a.e(f"v_add_u32 v{vT+1}, s{t6}, v{vT+1}")
    a.e(f"s_mov_b32 s{t1}, 163840")
    a.e(f"s_mov_b32 s{t2}, -20")
    for j in range(4):
        n, h, d = vT + 5, vT + 6, vT + 7
        a.e(f"v_add_u32 v{n}, {16*j}, v{vT+2}")
        a.e(f"v_mul_u32_u24 v{h}, 3277, v{n}")
        a.e(f"v_lshrrev_b32 v{h}, 16, v{h}")
        a.e(f"v_mad_i32_i24 v{d}, v{h}, s{t2}, v{n}")
        a.e(f"v_mad_u32_u24 v{h}, v{h}, s{t1}, v{vT+1}")
        a.e(f"v_lshl_add_u32 v{vSA+j}, v{d}, 4, v{h}")
    a.e("s_branch K1_PRE_DONE")
    a.lab("K1_PRE_F")
    a.e(f"s_lshl_b32 s{t0}, s{t6}, 5")
    a.e(f"v_add_u32 v{vSA}, s{t0}, v{vT+4}")
    a.e(f"v_lshlrev_b32 v{vSA}, 4, v{vSA}")
    a.e(f"v_lshl_add_u32 v{vSA}, v{vT}, 15, v{vSA}")
    a.e(f"s_lshl_b32 s{t0}, s{sT0}, 16")
    a.e(f"s_lshl_b32 s{t1}, s{sNQ}, 18")
    a.e(f"s_add_u32 s{t0}, s{t0}, s{t1}")
    a.e(f"s_add_u32 s{t0}, s{t0}, {hx(AB_OFF + 80*32768)}")
    a.e(f"v_add_u32 v{vSA}, s{t0}, v{vSA}")
    a.e(f"v_add_u32 v{vSA+1}, {hx(131072)}, v{vSA}")
    a.lab("K1_PRE_DONE")
    a.e("s_waitcnt lgkmcnt(0)")
    stamp(a, 5)
    srd(a, sWS, "s18", "s19", WS_END)
    a.e(f"s_lshl_b32 s{t0}, s{sTYP}, 2")
    a.e(f"s_and_b32 s{t1}, s{sW}, 3")
    a.e(f"s_add_u32 s{t0}, s{t0}, s{t1}")
    for v in range(1, 12):
        a.e(f"s_cmp_eq_u32 s{t0}, {v}")
        a.e(f"s_cbranch_scc1 K1_V{v}")

    def reads(fs):
        vA = vAe if fs == 0 else vAo
        ra = [f"ds_read_b128 {vr(fa(fs,mt),4)}, v{vA} offset:{2048*mt}" for mt in range(4)]
        rb = []
        for j in range(4):
            rb.append(f"ds_read_b64_tr_b16 {vr(fb(fs,j),2)}, v{vB} offset:{fs*K1_BH+32*j}")
            rb.append(f"ds_read_b64_tr_b16 {vr(fb(fs,j)+2,2)}, v{vB} offset:{fs*K1_BH+32*j+256}")
        return rb[0:2] + ra + rb[2:]

    def addr_update():
        return [f"v_add_u32 v{vB}, s{sRD}, v{vB0}",
                f"v_add_u32 v{vAe}, s{sRD}, v{vA0e}",
                f"v_add_u32 v{vAo}, s{sRD}, v{vA0o}",
                f"s_add_u32 s{sRD}, s{sRD}, {K1_SLOT}",
                f"s_cmp_eq_u32 s{sRD}, {K1_SCR}",
                f"s_cselect_b32 s{sRD}, 0, s{sRD}"]

    for var in range(12):
        typ, mh, nq = var // 4, var & 1, (var >> 1) & 1
        cst = [2 * mh, 2 * mh + 1]
        smt = (2 if typ == 2 else 0) + nq
        a.raw(".p2align 3")
        a.lab(f"K1_V{var}")
        emit(addr_update())
        a.e("s_barrier")
        stamp(a, 1)
        emit(reads(0))
        a.raw(".p2align 6")
        a.lab(f"K1_L{var}")
        for fs in range(2):
            mf = []
            for j in range(4):
                for mt in range(4):
                    if typ == 1:
                        mf.append(f"v_mfma_f32_16x16x32_bf16 {vr(acc(j,mt),4)}, {vr(fa(fs,mt),4)}, {vr(fb(fs,j),4)}, {vr(acc(j,mt),4)}")
                    else:
                        mf.append(f"v_mfma_f32_16x16x32_bf16 {vr(acc(j,mt),4)}, {vr(fb(fs,j),4)}, {vr(fa(fs,mt),4)}, {vr(acc(j,mt),4)}")
                if j in cst:
                    c = vCS + 4 * cst.index(j)
                    mf.append(f"v_mfma_f32_16x16x32_bf16 {vr(c,4)}, {vr(fb(fs,j),4)}, {vr(vONES,4)}, {vr(c,4)}")
            va = []
            for r in range(4):
                src = fa(fs, smt) + r
                lo, hi = vU + 2 * (r & 1), vU + 2 * (r & 1) + 1
                va.append(f"v_lshlrev_b32 v{lo}, 16, v{src}")
                va.append(f"v_and_b32 v{hi}, 0xffff0000, v{src}")
                va.append(f"v_add_f32 v{vS}, v{vS}, v{lo}")
                va.append(f"v_add_f32 v{vS+1}, v{vS+1}, v{hi}")
                va.append(f"v_fmac_f32 v{vS+2}, v{lo}, v{lo}")
                va.append(f"v_fmac_f32 v{vS+3}, v{hi}, v{hi}")
            rd = reads(fs ^ 1)
            if "d" in X: va = []
            if "r" in X: rd = []
            if "M" in X: mf = mf[:2]
            a.e("s_waitcnt lgkmcnt(0)")
            npre = 0
            if fs == 1:
                npre = 2
                for m in mf[:npre]:
                    a.e(m)
                emit(addr_update())
                a.e("s_barrier")
            rest = mf[npre:]
            nm = max(1, len(rest))
            ri = di = 0
            for i, m in enumerate(rest):
                if ri < len(rd):
                    a.e(rd[ri]); ri += 1
                a.e(m)
                want_d = (len(va) * (i + 1) + nm - 1) // nm
                while di < want_d:
                    a.e(va[di]); di += 1
            while ri < len(rd):
                a.e(rd[ri]); ri += 1
            while di < len(va):
                a.e(va[di]); di += 1
        a.e(f"s_add_u32 s{sIT}, s{sIT}, 1")
        a.e(f"s_cmp_lt_u32 s{sIT}, 10")
        a.e(f"s_cbranch_scc1 K1_L{var}")
        a.e(f"s_branch K1_EPI")

    def finalize(s1, s2, nm, rs):
        a.e(f"v_mul_f32 v{s1}, {hx(f32(1.0/640))}, v{s1}")
        a.e(f"v_mul_f32 v{s2}, {hx(f32(1.0/640))}, v{s2}")
        a.e(f"v_fma_f32 v{s2}, -v{s1}, v{s1}, v{s2}")
        a.e(f"v_max_f32 v{s2}, 0, v{s2}")
        round_bf16_inplace(a, s2)
        a.e(f"v_add_f32 v{s2}, {hx(f32(1e-5))}, v{s2}")
        round_bf16_inplace(a, s2)
        a.e(f"v_sqrt_f32 v{s2}, v{s2}")
        round_bf16_inplace(a, s1)
        round_bf16_inplace(a, s2)
        a.e(f"v_rcp_f32 v{rs}, v{s2}")
        a.e(f"v_sub_f32 v{nm}, 0, v{s1}")

    a.raw(".p2align 3")
    a.lab("K1_EPI")
    stamp(a, 2)
    a.e(f"v_add_f32 v{vS}, v{vS}, v{vS+1}")
    a.e(f"v_add_f32 v{vS+1}, v{vS+2}, v{vS+3}")
    for i in range(2):
        a.e(f"v_mov_b32 v{vT+i}, v{vS+i}")
    a.e("s_nop 1")
    for i in range(2):
        a.e(f"v_permlane32_swap_b32 v{vS+i}, v{vT+i}")
    for i in range(2):
        a.e(f"v_add_f32 v{vS+i}, v{vS+i}, v{vT+i}")
    for i in range(2):
        a.e(f"v_mov_b32 v{vT+i}, v{vS+i}")
    a.e("s_nop 1")
    for i in range(2):
        a.e(f"v_permlane16_swap_b32 v{vS+i}, v{vT+i}")
    for i in range(2):
        a.e(f"v_add_f32 v{vS+i}, v{vS+i}, v{vT+i}")
    finalize(vS, vS + 1, vS + 2, vS + 3)
    a.e(f"v_and_b32 v{vT}, 15, v{vLANE}")
    a.e(f"v_lshlrev_b32 v{vT}, 2, v{vT}")
    a.e(f"s_lshl_b32 s{t0}, s{sHALF}, 7")
    a.e(f"s_lshl_b32 s{t1}, s{sNQ}, 6")
    a.e(f"s_add_u32 s{t0}, s{t0}, s{t1}")
    a.e(f"s_lshl_b32 s{t2}, s{sMH}, 8")
    a.e(f"s_add_u32 s{t2}, s{t2}, {K1_SCR}")
    a.e(f"s_add_u32 s{t0}, s{t0}, s{t2}")
    a.e(f"v_add_u32 v{vT+1}, s{t0}, v{vT}")
    a.e(f"v_lshrrev_b32 v{vT+2}, 4, v{vLANE}")
    a.e(f"v_lshlrev_b32 v{vT+2}, 4, v{vT+2}")
    a.e(f"s_lshl_b32 s{t3}, s{sHALF}, 9")
    a.e(f"s_lshl_b32 s{t1}, s{sNQ}, 8")
    a.e(f"s_add_u32 s{t3}, s{t3}, s{t1}")
    a.e(f"s_add_u32 s{t3}, s{t3}, {K1_SCR+1024}")
    a.e(f"s_lshl_b32 s{t1}, s{sMH}, 7")
    a.e(f"s_add_u32 s{t0}, s{t3}, s{t1}")
    a.e(f"v_add_u32 v{vT+3}, s{t0}, v{vT+2}")
    a.e("s_mov_b64 exec, 0xffff")
    a.e(f"ds_write_b32 v{vT+1}, v{vS+2}")
    a.e(f"ds_write_b32 v{vT+1}, v{vS+3} offset:512")
    a.e("s_mov_b32 exec_lo, 0x00010001")
    a.e("s_mov_b32 exec_hi, 0x00010001")
    a.e(f"ds_write_b128 v{vT+3}, {vr(vCS,4)}")
    a.e(f"ds_write_b128 v{vT+3}, {vr(vCS+4,4)} offset:64")
    a.e("s_mov_b64 exec, -1")
    a.e("s_waitcnt lgkmcnt(0)")
    a.e("s_barrier")
    stamp(a, 3)
    a.e(f"s_cmp_eq_u32 s{sTYP}, 1")
    a.e("s_cbranch_scc1 K1_EPI_V")

    vNM, vRS = 32, 36
    vC4 = 40
    vBB = 56
    a.e(f"v_add_u32 v{vT}, s{t2}, v{vT}")
    a.e(f"ds_read2_b32 {vr(vNM,2)}, v{vT} offset0:0 offset1:16")
    a.e(f"ds_read2_b32 {vr(vNM+2,2)}, v{vT} offset0:32 offset1:48")
    a.e(f"ds_read2_b32 {vr(vRS,2)}, v{vT} offset0:128 offset1:144")
    a.e(f"ds_read2_b32 {vr(vRS+2,2)}, v{vT} offset0:160 offset1:176")
    a.e(f"v_add_u32 v{vT+1}, s{t3}, v{vT+2}")
    for j in range(4):
        a.e(f"ds_read_b128 {vr(vC4+4*j,4)}, v{vT+1} offset:{64*j}")
    a.e(f"s_cmp_eq_u32 s{sTYP}, 2")
    a.e("s_cbranch_scc1 K1_EPI_F")

    def sel3(mt):
        return f"op_sel:[0,{mt&1},0] op_sel_hi:[1,{mt&1},1]"

    def sel2(mt):
        return f"op_sel:[0,{mt&1}] op_sel_hi:[1,{mt&1}]"
    a.e(f"s_cmp_lt_u32 s{sCB}, 5")
    a.e(f"s_cselect_b32 s{t0}, {hx(f32(QSCALE))}, 1.0")
    a.e("s_waitcnt lgkmcnt(4)")
    for i in range(4):
        a.e(f"v_mul_f32 v{vRS+i}, s{t0}, v{vRS+i}")
    for j in range(4):
        a.e(f"s_waitcnt lgkmcnt({3-j})")
        for mt in range(4):
            A = acc(j, mt)
            for p in range(2):
                a.e(f"v_pk_fma_f32 {vr(A+2*p,2)}, {vr(vC4+4*j+2*p,2)}, {vr(vNM+(mt&2),2)}, {vr(A+2*p,2)} {sel3(mt)}")
        for mt in range(4):
            A = acc(j, mt)
            for p in range(2):
                a.e(f"v_pk_mul_f32 {vr(A+2*p,2)}, {vr(A+2*p,2)}, {vr(vRS+(mt&2),2)} {sel2(mt)}")
        for mt in range(4):
            A = acc(j, mt)
            a.e(f"v_cvt_pk_bf16_f32 v{A}, v{A}, v{A+1}")
            a.e(f"v_cvt_pk_bf16_f32 v{A+1}, v{A+2}, v{A+3}")
            so = f"s{sTS}" if mt & 2 else "0"
            a.e(f"buffer_store_dwordx2 {vr(A,2)}, v{vSA+2*j+(mt&1)}, {sr(sWS,4)}, {so} offen")
    k1flush()
    a.e("s_endpgm")
    a.lab("K1_EPI_F")
    c0 = -2.0 * math.sqrt(2.0 / math.pi) * math.log2(math.e)
    c1 = c0 * 0.044715
    vC0, vONE = 64, 66
    a.e(f"v_lshrrev_b32 v{vT+2}, 1, v{vT+2}")
    a.e(f"s_lshl_b32 s{t0}, s{sNQ}, 7")
    a.e(f"s_add_u32 s{t0}, s{t0}, {K1_SCR+2048}")
    a.e(f"v_add_u32 v{vT+2}, s{t0}, v{vT+2}")
    for j in range(4):
        a.e(f"ds_read_b64 {vr(vBB+2*j,2)}, v{vT+2} offset:{32*j}")
    a.e(f"v_mov_b32 v{vC0}, {hx(f32(c0))}")
    a.e(f"v_mov_b32 v{vC0+1}, {hx(f32(c0))}")
    a.e(f"v_mov_b32 v{vONE}, 1.0")
    a.e(f"v_mov_b32 v{vONE+1}, 1.0")
    a.e(f"s_mov_b32 s{sC1}, {hx(f32(c1))}")
    a.e(f"s_mov_b32 s{sC1+1}, {hx(f32(c1))}")
    vBF = 68
    vW = 88
    for j in range(4):
        a.e(f"s_waitcnt lgkmcnt({3-j})")
        a.e(f"v_lshlrev_b32 v{vBF}, 16, v{vBB+2*j}")
        a.e(f"v_and_b32 v{vBF+1}, 0xffff0000, v{vBB+2*j}")
        a.e(f"v_lshlrev_b32 v{vBF+2}, 16, v{vBB+2*j+1}")
        a.e(f"v_and_b32 v{vBF+3}, 0xffff0000, v{vBB+2*j+1}")
        for mp in range(2):
            prs = [(mt, p) for mt in (2 * mp, 2 * mp + 1) for p in range(2)]
            for i, (mt, p) in enumerate(prs):
                A = acc(j, mt) + 2 * p
                a.e(f"v_pk_fma_f32 {vr(A,2)}, {vr(vC4+4*j+2*p,2)}, {vr(vNM+(mt&2),2)}, {vr(A,2)} {sel3(mt)}")
            for i, (mt, p) in enumerate(prs):
                A = acc(j, mt) + 2 * p
                a.e(f"v_pk_fma_f32 {vr(A,2)}, {vr(A,2)}, {vr(vRS+(mt&2),2)}, {vr(vBF+2*p,2)} {sel3(mt)}")
            for i, (mt, p) in enumerate(prs):
                A = acc(j, mt) + 2 * p
                a.e(f"v_pk_mul_f32 {vr(vW+2*i,2)}, {vr(A,2)}, {vr(A,2)}")
            for i, (mt, p) in enumerate(prs):
                a.e(f"v_pk_fma_f32 {vr(vW+2*i,2)}, {vr(vW+2*i,2)}, {sr(sC1,2)}, {vr(vC0,2)}")
            for i, (mt, p) in enumerate(prs):
                A = acc(j, mt) + 2 * p
                a.e(f"v_pk_mul_f32 {vr(vW+2*i,2)}, {vr(vW+2*i,2)}, {vr(A,2)}")
            for i in range(8):
                a.e(f"v_exp_f32 v{vW+i}, v{vW+i}")
            for i in range(4):
                a.e(f"v_pk_add_f32 {vr(vW+2*i,2)}, {vr(vW+2*i,2)}, {vr(vONE,2)}")
            for i in range(8):
                a.e(f"v_rcp_f32 v{vW+i}, v{vW+i}")
            for i, (mt, p) in enumerate(prs):
                A = acc(j, mt) + 2 * p
                a.e(f"v_pk_mul_f32 {vr(A,2)}, {vr(A,2)}, {vr(vW+2*i,2)}")
            for mt in (2 * mp, 2 * mp + 1):
                A = acc(j, mt)
                D = acc(j & ~1, mt) + 2 * (j & 1)
                a.e(f"v_cvt_pk_bf16_f32 v{D}, v{A}, v{A+1}")
                a.e(f"v_cvt_pk_bf16_f32 v{D+1}, v{A+2}, v{A+3}")
                if j & 1:
                    a.e(f"buffer_store_dwordx4 {vr(acc(j-1,mt),4)}, v{vSA+j//2}, {sr(sWS,4)}, 0 offen offset:{256*mt}")
    k1flush()
    a.e("s_endpgm")
    a.lab("K1_EPI_V")
    vNMv, vRSv = 40, 56
    vCSv = 88
    a.e(f"v_add_u32 v{vT+1}, s{t2}, v{vT+2}")
    for mt in range(4):
        a.e(f"ds_read_b128 {vr(vNMv+4*mt,4)}, v{vT+1} offset:{64*mt}")
    for mt in range(4):
        a.e(f"ds_read_b128 {vr(vRSv+4*mt,4)}, v{vT+1} offset:{512+64*mt}")
    a.e(f"v_add_u32 v{vT+3}, s{t3}, v{vT}")
    for j in range(4):
        a.e(f"ds_read_b32 v{vCSv+2*j}, v{vT+3} offset:{64*j}")
    for j in range(4):
        a.e(f"s_waitcnt lgkmcnt({3-j})")
        for mt in range(4):
            A = acc(j, mt)
            for p in range(2):
                a.e(f"v_pk_fma_f32 {vr(A+2*p,2)}, {vr(vNMv+4*mt+2*p,2)}, {vr(vCSv+2*j,2)}, {vr(A+2*p,2)} op_sel:[0,0,0] op_sel_hi:[1,0,1]")
        for mt in range(4):
            A = acc(j, mt)
            for p in range(2):
                a.e(f"v_pk_mul_f32 {vr(A+2*p,2)}, {vr(A+2*p,2)}, {vr(vRSv+4*mt+2*p,2)}")
        for t2_ in range(2):
            A0, A1 = acc(j, 2 * t2_), acc(j, 2 * t2_ + 1)
            a.e(f"v_cvt_pk_bf16_f32 v{A0}, v{A0}, v{A0+1}")
            a.e(f"v_cvt_pk_bf16_f32 v{A0+1}, v{A0+2}, v{A0+3}")
            a.e(f"v_cvt_pk_bf16_f32 v{A0+2}, v{A1}, v{A1+1}")
            a.e(f"v_cvt_pk_bf16_f32 v{A0+3}, v{A1+2}, v{A1+3}")
            a.e(f"buffer_store_dwordx4 {vr(A0,4)}, v{vSA+j}, {sr(sWS,4)}, 0 offen offset:{2560*t2_}")
    k1flush()
    a.e("s_endpgm")

    a.lab("K1_TRANS")
    sTAU, sSEL0, sSEL1 = 51, 52, 53
    NB_T = 4
    sTs = [24, 28, 36, 40]
    sK = [54, 56, 58, 76]
    vTO = [2, 3, 4, 5]
    vTS = [6, 7, 8, 9]
    vTL = [88, 104, 120, 136]
    a.e(f"s_mul_i32 s{sTAU}, s{sRB}, 12")
    a.e(f"s_add_u32 s{sTAU}, s{sTAU}, s{sW}")
    a.e(f"s_mov_b32 s{sSEL0}, 0x05040100")
    a.e(f"s_mov_b32 s{sSEL1}, 0x07060302")
    a.e(f"v_lshlrev_b32 v{vT}, 2, v{vLANE}")
    a.e(f"v_lshlrev_b32 v{vT+1}, 5, v{vLANE}")
    a.e("s_waitcnt lgkmcnt(0)")
    srd(a, sWS, "s18", "s19", WS_END)
    a.e(f"s_mov_b32 s{sIT+3}, 0")
    a.lab("K1_TL")
    for b in range(NB_T):
        T = sTs[b]
        a.e(f"s_mul_i32 s{t1}, s{sTAU}, 13108")
        a.e(f"s_lshr_b32 s{t1}, s{t1}, 16")
        a.e(f"s_mul_i32 s{t2}, s{t1}, 5")
        a.e(f"s_sub_u32 s{t2}, s{sTAU}, s{t2}")
        a.e(f"s_mul_i32 s{t3}, s{t1}, 205")
        a.e(f"s_lshr_b32 s{t3}, s{t3}, 10")
        a.e(f"s_mul_i32 s{t4}, s{t3}, 5")
        a.e(f"s_sub_u32 s{t4}, s{t1}, s{t4}")
        a.e(f"s_mul_i32 s{t3}, s{t3}, 40")
        a.e(f"s_lshr_b32 s{t5}, s{t4}, 1")
        a.e(f"s_mul_i32 s{t5}, s{t5}, 20")
        a.e(f"s_and_b32 s{t6}, s{t4}, 1")
        a.e(f"s_lshl_b32 s{t6}, s{t6}, 2")
        a.e(f"s_add_u32 s{t5}, s{t5}, s{t6}")
        a.e(f"s_add_u32 s{t6}, s{t5}, 8")
        a.e(f"s_cmp_eq_u32 s{t4}, 4")
        a.e(f"s_cselect_b32 s{t5}, 16, s{t5}")
        a.e(f"s_cselect_b32 s{t6}, 36, s{t6}")
        a.e(f"s_add_u32 s{t5}, s{t5}, s{t3}")
        a.e(f"s_add_u32 s{t6}, s{t6}, s{t3}")
        a.e(f"s_sub_u32 s{t3}, s{t1}, 80")
        a.e(f"s_lshr_b32 s{t4}, s{t3}, 2")
        a.e(f"s_lshl_b32 s{t4}, s{t4}, 5")
        a.e(f"s_and_b32 s{t3}, s{t3}, 3")
        a.e(f"s_lshl_b32 s{t3}, s{t3}, 2")
        a.e(f"s_add_u32 s{t3}, s{t3}, s{t4}")
        a.e(f"s_add_u32 s{t4}, s{t3}, 16")
        a.e(f"s_cmp_lt_u32 s{t1}, 80")
        a.e(f"s_cselect_b32 s{t5}, s{t5}, s{t3}")
        a.e(f"s_cselect_b32 s{t6}, s{t6}, s{t4}")
        a.e(f"s_cselect_b32 s{T}, s8, s16")
        a.e(f"s_cselect_b32 s{T+1}, s9, s17")
        a.e(f"s_cselect_b32 s{T+2}, {hx(640*640*2)}, {hx(1728*640*2)}")
        a.e(f"s_mov_b32 s{T+3}, 0x00020000")
        a.e(f"s_mul_i32 s{sK[b]}, s{t5}, 1280")
        a.e(f"s_mul_i32 s{sK[b]+1}, s{t6}, 1280")
        a.e(f"s_lshl_b32 s{t3}, s{t2}, 8")
        a.e(f"v_add_u32 v{vTO[b]}, s{t3}, v{vT}")
        for j in range(8):
            so = sK[b] if j < 4 else sK[b] + 1
            a.e(f"buffer_load_dword v{vTL[b]+j}, v{vTO[b]}, {sr(T,4)}, s{so} offen offset:{(j&3)*1280}")
        a.e(f"s_mul_i32 s{t1}, s{t1}, 10240")
        a.e(f"s_lshl_b32 s{t2}, s{t2}, 11")
        a.e(f"s_add_u32 s{t1}, s{t1}, s{t2}")
        a.e(f"s_add_u32 s{t1}, s{t1}, {hx(WT_OFF)}")
        a.e(f"v_add_u32 v{vTS[b]}, s{t1}, v{vT+1}")
        a.e(f"s_add_u32 s{sTAU}, s{sTAU}, 192")
    for b in range(NB_T):
        a.e(f"s_waitcnt vmcnt({8*(NB_T-1-b) + 2*b})")
        for i in range(4):
            a.e(f"v_perm_b32 v{vTL[b]+8+i}, v{vTL[b]+2*i+1}, v{vTL[b]+2*i}, s{sSEL0}")
            a.e(f"v_perm_b32 v{vTL[b]+12+i}, v{vTL[b]+2*i+1}, v{vTL[b]+2*i}, s{sSEL1}")
        a.e(f"buffer_store_dwordx4 {vr(vTL[b]+8,4)}, v{vTS[b]}, {sr(sWS,4)}, 0 offen")
        a.e(f"buffer_store_dwordx4 {vr(vTL[b]+12,4)}, v{vTS[b]}, {sr(sWS,4)}, 0 offen offset:16")
    a.e(f"s_add_u32 s{sIT+3}, s{sIT+3}, 1")
    a.e(f"s_cmp_lt_u32 s{sIT+3}, 2")
    a.e("s_cbranch_scc1 K1_TL")
    if DIAG:
        for i in (1, 2, 3, 5):
            stamp(a, i)
    k1flush()
    a.lab("K1_END")
    a.e("s_endpgm")
    return name, NV, 102 if DIAG else 80, (256, 768, K1_LDS)


K2_LDS = 163840
Y_OFF = 0x1400000
Y_SIZE = 2048 * 640 * 4
WS_ALL = Y_OFF + Y_SIZE


def gen_k2(a):
    name = "k2_attn_kernel"
    kernel_header(a, name)
    X2 = os.environ.get("K2X", "")
    sWS, sKV = 12, 16
    sW, sH, sQT, sOFF, sIT = 20, 21, 22, 23, 24
    sVM = 26
    t0, t1, t2, t3 = 28, 29, 30, 31
    sBM = 32
    vLANE = 1
    vL16, vKa, vKb, vV = 2, 3, 4, 5
    vT = 6
    QA, QB = 12, 16
    KA, KB = 20, 24
    V0, V1 = 28, 32
    P0, P1 = 36, 40
    O = 48
    S = [64, 80]
    NV = 168
    k2flush = lambda: (stamp(a, 4), stamp_flush(a, 1, 12, sW, "s4", "s5", 8, 2))

    a.e("s_cmp_ge_u32 s2, 256")
    a.e("s_cbranch_scc1 K2_END")
    stamp(a, 0)
    a.e("s_load_dwordx2 s[4:5], s[0:1], 80")
    a.e("s_load_dwordx2 s[6:7], s[0:1], 0")
    a.e("s_load_dwordx2 s[8:9], s[0:1], 56")
    a.e(f"v_and_b32 v{vLANE}, 63, v0")
    a.e(f"v_lshrrev_b32 v{vT}, 6, v0")
    a.e(f"s_and_b32 s{t0}, s2, 7")
    a.e(f"v_readfirstlane_b32 s{sW}, v{vT}")
    a.e(f"s_lshr_b32 s{t1}, s2, 3")
    a.e(f"s_lshl_b32 s{t2}, s{t0}, 2")
    a.e(f"s_and_b32 s{t3}, s{t1}, 3")
    a.e(f"s_add_u32 s{sH}, s{t2}, s{t3}")
    a.e(f"v_lshlrev_b32 v{vL16}, 4, v{vLANE}")
    a.e(f"s_mul_i32 s{t2}, s{sH}, 163840")
    a.e(f"s_add_u32 s{t2}, s{t2}, {hx(KV_OFF)}")
    a.e("s_waitcnt lgkmcnt(0)")
    stamp(a, 5)
    a.e(f"s_add_u32 s{sKV}, s4, s{t2}")
    a.e(f"s_addc_u32 s{sKV+1}, s5, 0")
    a.e(f"s_mov_b32 s{sKV+2}, 163840")
    a.e(f"s_mov_b32 s{sKV+3}, 0x00020000")
    a.e(f"s_cmp_ge_u32 s{sW}, 4")
    a.e("s_cbranch_scc1 K2_ATT")
    sA, sWT, sXX, sB2, sY = 36, 40, 44, 48, 52
    sRT, sCQ, sOA, sOW = 56, 57, 58, 59
    vOA, vOW, vXO, vBO, vYO = 3, 4, 5, 12, 13
    ND = 3
    F = 16
    ACC = 88

    def fA(s_):
        return F + 24 * s_

    def fW(s_, t):
        return F + 24 * s_ + 4 + 4 * t

    def kvdma(n):
        for t in range(n):
            a.e(f"s_mov_b32 m0, s{sOFF}")
            a.e("s_nop 0")
            a.e(f"buffer_load_dwordx4 v{vL16}, {sr(sKV,4)}, s{sOFF} offen lds")
            a.e(f"s_add_u32 s{sOFF}, s{sOFF}, 4096")

    a.e(f"s_lshl_b32 s{sOFF}, s{sW}, 10")
    kvdma(14)
    a.e("s_waitcnt vmcnt(7)")
    a.e("s_barrier")
    stamp(a, 1)
    kvdma(26)
    a.e(f"s_lshl_b32 s{t0}, s{t0}, 3")
    a.e(f"s_and_b32 s{t2}, s{t1}, 7")
    a.e(f"s_add_u32 s{sRT}, s{t0}, s{t2}")
    a.e(f"s_lshr_b32 s{sCQ}, s{t1}, 3")
    if "0" in X2:
        a.e(f"s_and_b32 s{sRT}, s{sRT}, 1")
        a.e(f"s_mov_b32 s{sCQ}, 0")
    if "Q" in X2:
        a.e("s_setprio 3")
    srd_off(a, sA, "s4", "s5", AB_OFF + 80 * 32768, AB_SIZE - 80 * 32768)
    srd_off(a, sWT, "s4", "s5", WT_OFF + 80 * 10240, WT_SIZE - 80 * 10240)
    srd(a, sXX, "s6", "s7", 2048 * 640 * 2)
    srd(a, sB2, "s8", "s9", 640 * 2)
    srd_off(a, sY, "s4", "s5", Y_OFF, Y_SIZE)
    a.e(f"v_and_b32 v{vT}, 31, v{vLANE}")
    a.e(f"v_lshrrev_b32 v{vT+1}, 5, v{vLANE}")
    a.e(f"s_lshl_b32 s{t0}, s{sRT}, 5")
    a.e(f"v_add_u32 v{vT+2}, s{t0}, v{vT}")
    a.e(f"v_lshlrev_b32 v{vOA}, 4, v{vT+2}")
    a.e(f"v_lshl_add_u32 v{vOA}, v{vT+1}, 15, v{vOA}")
    a.e(f"s_mul_i32 s{t1}, s{sCQ}, 160")
    a.e(f"v_add_u32 v{vT+3}, s{t1}, v{vT}")
    a.e(f"v_lshlrev_b32 v{vOW}, 4, v{vT+3}")
    a.e(f"v_mul_u32_u24 v{vT+3}, 10240, v{vT+1}")
    a.e(f"v_add_u32 v{vOW}, v{vOW}, v{vT+3}")
    a.e(f"s_lshl_b32 s{sOA}, s{sW}, 16")
    a.e(f"s_mul_i32 s{sOW}, s{sW}, 20480")

    def loads(s_):
        r = [f"buffer_load_dwordx4 {vr(fA(s_),4)}, v{vOA}, {sr(sA,4)}, s{sOA} offen"]
        for t in range(5):
            r.append(f"buffer_load_dwordx4 {vr(fW(s_,t),4)}, v{vOW}, {sr(sWT,4)}, s{sOW} offen offset:{512*t}")
        r.append(f"s_add_u32 s{sOA}, s{sOA}, {4*65536}")
        r.append(f"s_add_u32 s{sOW}, s{sOW}, {4*20480}")
        return r

    for s_ in range(ND):
        for ins in loads(s_):
            a.e(ins)
    a.e(f"s_mul_i32 s{t2}, s{sW}, 40")
    a.e(f"s_add_u32 s{t2}, s{t2}, s{t1}")
    a.e(f"v_lshlrev_b32 v{vT+3}, 2, v{vT+1}")
    a.e(f"v_add_u32 v{vT+3}, s{t2}, v{vT+3}")
    a.e(f"v_lshlrev_b32 v{vBO}, 1, v{vT+3}")
    a.e(f"v_mul_u32_u24 v{vXO}, 1280, v{vT+2}")
    a.e(f"v_add_u32 v{vXO}, v{vXO}, v{vBO}")
    a.e(f"s_lshr_b32 s{t0}, s{sRT}, 1")
    a.e(f"s_lshl_b32 s{t0}, s{t0}, 3")
    a.e(f"s_lshl_b32 s{t2}, s{sCQ}, 1")
    a.e(f"s_add_u32 s{t0}, s{t0}, s{t2}")
    a.e(f"s_mul_i32 s{t0}, s{t0}, 20480")
    a.e(f"s_and_b32 s{t2}, s{sRT}, 1")
    a.e(f"s_mul_i32 s{t2}, s{t2}, 10240")
    a.e(f"s_add_u32 s{t0}, s{t0}, s{t2}")
    a.e(f"s_mul_i32 s{t2}, s{sW}, 2560")
    a.e(f"s_add_u32 s{t0}, s{t0}, s{t2}")
    a.e(f"s_lshr_b32 s{t2}, s{sW}, 1")
    a.e(f"s_mul_i32 s{t2}, s{t2}, 15360")
    a.e(f"s_add_u32 s{t0}, s{t0}, s{t2}")
    a.e(f"v_and_b32 v{vYO}, 15, v{vLANE}")
    a.e(f"v_lshlrev_b32 v{vYO}, 4, v{vYO}")
    a.e(f"v_lshl_add_u32 v{vYO}, v{vT+1}, 8, v{vYO}")
    a.e(f"v_bfe_u32 v{vT+3}, v{vLANE}, 4, 1")
    a.e(f"v_mul_u32_u24 v{vT+3}, 5120, v{vT+3}")
    a.e(f"v_add3_u32 v{vYO}, v{vYO}, v{vT+3}, s{t0}")
    for i in range(80):
        a.e(f"v_mov_b32 v{ACC+i}, 0")
    a.e(f"s_mov_b32 s{sIT}, 0")
    a.e(f"s_waitcnt vmcnt({6*ND})")
    a.e("s_barrier")
    stamp(a, 2)
    if "n" in X2:
        stamp(a, 3)
        k2flush()
        a.e("s_endpgm")
    a.e(f"v_mov_b32 v{vT}, 0")
    a.e(f"ds_write_b32 v{vT}, v{vT}")
    a.raw(".p2align 3")
    a.lab("K2_GL")
    for s_ in range(ND):
        a.e(f"s_waitcnt vmcnt({6*(ND-1)})")
        ld = loads(s_)
        for t in range(5):
            a.e(f"v_mfma_f32_32x32x16_bf16 {vr(ACC+16*t,16)}, {vr(fW(s_,t),4)}, {vr(fA(s_),4)}, {vr(ACC+16*t,16)}")
            if "i" not in X2:
                a.e(ld[1 + t])
        if "i" in X2:
            for ins in ld:
                a.e(ins)
        else:
            a.e(ld[0]); a.e(ld[6]); a.e(ld[7])
    a.e(f"s_add_u32 s{sIT}, s{sIT}, 1")
    a.e(f"s_cmp_lg_u32 s{sIT}, 6")
    a.e("s_cbranch_scc1 K2_GNB")
    a.e("s_waitcnt lgkmcnt(0)")
    a.e("s_barrier")
    a.lab("K2_GNB")
    a.e(f"s_cmp_lt_u32 s{sIT}, 9")
    a.e("s_cbranch_scc1 K2_GL")
    stamp(a, 3)
    a.e("s_setprio 3")
    a.e("s_waitcnt vmcnt(0)")
    XR = 16
    XR = 68
    for q in range(5):
        a.e(f"buffer_load_dwordx2 {vr(XR+2*q,2)}, v{vXO}, {sr(sXX,4)}, 0 offen offset:{16*q}")
        a.e(f"buffer_load_dwordx2 {vr(XR+10+2*q,2)}, v{vBO}, {sr(sB2,4)}, 0 offen offset:{16*q}")
    a.e(f"s_mul_i32 s{t0}, s{sW}, 20480")
    a.e(f"s_add_u32 s{t0}, s{t0}, 1024")
    a.e(f"v_add_u32 v{vT+1}, s{t0}, v{vL16}")
    a.e("s_nop 7")
    for q in range(20):
        a.e(f"ds_write_b128 v{vT+1}, {vr(ACC+4*q,4)} offset:{1024*q}")
    a.e(f"v_mov_b32 v{vT+2}, 1")
    a.e("s_waitcnt lgkmcnt(0)")
    a.e("s_mov_b64 exec, 1")
    a.e(f"ds_add_u32 v{vT}, v{vT+2}")
    a.e("s_mov_b64 exec, -1")
    a.lab("K2_POLL")
    a.e(f"ds_read_b32 v{vT+3}, v{vT}")
    a.e("s_waitcnt lgkmcnt(0)")
    a.e(f"v_readfirstlane_b32 s{t0}, v{vT+3}")
    a.e(f"s_cmp_ge_u32 s{t0}, 4")
    a.e("s_cbranch_scc1 K2_PD")
    a.e("s_sleep 2")
    a.e("s_branch K2_POLL")
    a.lab("K2_PD")
    a.e(f"s_mul_i32 s{t0}, s{sW}, 5120")
    a.e(f"s_add_u32 s{t0}, s{t0}, 1024")
    a.e(f"v_add_u32 v{vT+1}, s{t0}, v{vL16}")
    a.e(f"v_add_u32 v{vT+2}, 40960, v{vT+1}")
    R = ACC
    for q in range(5):
        for wv in range(4):
            base = vT + 1 if wv < 2 else vT + 2
            a.e(f"ds_read_b128 {vr(R+16*q+4*wv,4)}, v{base} offset:{(wv&1)*20480 + 1024*q}")
    a.e("s_waitcnt vmcnt(0)")
    for q in range(5):
        a.e(f"s_waitcnt lgkmcnt({min(15,4*(4-q))})")
        b = R + 16 * q
        for i in range(4):
            a.e(f"v_add_f32 v{b+i}, v{b+i}, v{b+4+i}")
            a.e(f"v_add_f32 v{b+8+i}, v{b+8+i}, v{b+12+i}")
        for i in range(4):
            a.e(f"v_add_f32 v{b+i}, v{b+i}, v{b+8+i}")
        for k, src in enumerate((XR + 2 * q, XR + 10 + 2 * q)):
            u = b + 4 + 4 * k
            a.e(f"v_lshlrev_b32 v{u}, 16, v{src}")
            a.e(f"v_and_b32 v{u+1}, 0xffff0000, v{src}")
            a.e(f"v_lshlrev_b32 v{u+2}, 16, v{src+1}")
            a.e(f"v_and_b32 v{u+3}, 0xffff0000, v{src+1}")
        for i in range(4):
            a.e(f"v_add_f32 v{b+i}, v{b+i}, v{b+4+i}")
        for i in range(4):
            a.e(f"v_add_f32 v{b+i}, v{b+i}, v{b+8+i}")
        a.e(f"buffer_store_dwordx4 {vr(b,4)}, v{vYO}, {sr(sY,4)}, 0 offen offset:{512*q}")
    k2flush()
    a.e("s_endpgm")

    a.lab("K2_ATT")
    srd(a, sWS, "s4", "s5", WS_END)
    a.e(f"s_lshr_b32 s{t1}, s{t1}, 2")
    a.e(f"s_lshl_b32 s{t1}, s{t1}, 3")
    a.e(f"s_add_u32 s{sQT}, s{t1}, s{sW}")
    a.e(f"s_sub_u32 s{sQT}, s{sQT}, 4")
    a.e(f"s_mul_i32 s{t0}, s{sH}, 81920")
    a.e(f"s_mul_i32 s{t1}, s{sQT}, 1280")
    a.e(f"s_add_u32 s{t0}, s{t0}, s{t1}")
    if QB_OFF:
        a.e(f"s_add_u32 s{t0}, s{t0}, {hx(QB_OFF)}")
    a.e(f"buffer_load_dwordx4 {vr(QA,4)}, v{vL16}, {sr(sWS,4)}, s{t0} offen")
    a.e(f"v_lshlrev_b32 v{vT}, 3, v{vLANE}")
    a.e(f"v_mov_b32 v{vT+1}, {hx(OOB)}")
    a.e(f"v_cmp_gt_u32 vcc, 32, v{vLANE}")
    a.e("s_nop 1")
    a.e(f"v_cndmask_b32 v{vT}, v{vT+1}, v{vT}, vcc")
    a.e(f"buffer_load_dwordx2 {vr(QB,2)}, v{vT}, {sr(sWS,4)}, s{t0} offen offset:1024")
    a.e(f"v_mov_b32 v{vKa}, v{vL16}")
    a.e(f"v_and_b32 v{vT}, 31, v{vLANE}")
    a.e(f"v_lshlrev_b32 v{vKb}, 3, v{vT}")
    a.e(f"v_add_u32 v{vKb}, 1024, v{vKb}")
    a.e(f"v_lshrrev_b32 v{vT+1}, 5, v{vLANE}")
    a.e(f"v_mul_u32_u24 v{vV}, 320, v{vT+1}")
    a.e(f"v_lshl_add_u32 v{vV}, v{vT}, 4, v{vV}")
    a.e(f"v_add_u32 v{vV}, 1280, v{vV}")
    a.e(f"v_cmp_gt_u32 {sr(sVM,2)}, 20, v{vT}")
    a.e(f"v_cmp_eq_u32 vcc, 20, v{vT}")
    a.e(f"v_cmp_eq_u32 {sr(t0,2)}, 24, v{vT}")
    a.e("s_nop 1")
    a.e(f"s_or_b64 vcc, vcc, {sr(t0,2)}")
    a.e(f"v_mov_b32 v{vT+2}, 0x3f803f80")
    a.e("s_nop 1")
    for i in range(8):
        a.e(f"v_cndmask_b32 v{V0+i}, 0, v{vT+2}, vcc")
    for i in range(16):
        a.e(f"v_mov_b32 v{O+i}, 0")
    for i in range(4):
        a.e(f"v_mov_b32 v{P1+i}, 0")
    a.e(f"s_mov_b32 s{sIT}, 0")
    a.e(f"s_mov_b32 s{sBM}, 0x22")
    a.e("s_waitcnt vmcnt(0)")
    a.e("s_barrier")
    stamp(a, 1)

    def rdKa(t):
        return f"ds_read_b128 {vr(KA,4)}, v{vKa} offset:{2560*t}"

    def rdKb(t):
        return f"ds_read_b64 {vr(KB,2)}, v{vKb} offset:{2560*t}"

    def rdV(m, t):
        return [f"s_mov_b64 exec, {sr(sVM,2)}",
                f"ds_read_b128 {vr(V0 if m == 0 else V1,4)}, v{vV} offset:{2560*t + 640*m}",
                "s_mov_b64 exec, -1"]

    a.e(rdKa(0))
    a.e(rdKb(0))
    a.e("s_waitcnt lgkmcnt(0)")
    a.e(f"v_mfma_f32_32x32x16_bf16 {vr(S[0],16)}, {vr(KA,4)}, {vr(QA,4)}, 0")
    a.e(rdKa(1))
    a.e(f"v_mfma_f32_32x32x8_bf16 {vr(S[0],16)}, {vr(KB,2)}, {vr(QB,2)}, {vr(S[0],16)}")
    a.e(rdKb(1))
    for ins in rdV(0, 0):
        a.e(ins)
    for ins in rdV(0, 0):
        a.e(ins)
    a.e("s_nop 7")
    a.raw(".p2align 6")
    a.lab("K2_LOOP")
    a.e(f"s_bitcmp1_b32 s{sBM}, s{sIT}")
    a.e("s_cbranch_scc1 K2_BAR")
    a.lab("K2_BODY")
    NT = 8
    body_start = len(a.lines)
    for t in range(NT):
        Sc, Sn = S[t & 1], S[(t + 1) & 1]

        def ex(lo):
            for i in range(lo, lo + 4):
                a.e(f"v_exp_f32 v{Sc+i}, v{Sc+i}")

        def cv(P, lo):
            a.e(f"v_cvt_pk_bf16_f32 v{P}, v{Sc+lo}, v{Sc+lo+1}")
            a.e(f"v_cvt_pk_bf16_f32 v{P+1}, v{Sc+lo+2}, v{Sc+lo+3}")

        if "p" not in X2:
            if t == 0:
                a.e("s_setprio 2")
            if t == NT // 2:
                a.e("s_setprio 1")
        a.e("s_waitcnt lgkmcnt(3)")
        a.e(f"v_mfma_f32_32x32x16_bf16 {vr(Sn,16)}, {vr(KA,4)}, {vr(QA,4)}, 0")
        a.e(rdKa(t + 2))
        ex(0)
        cv(P0, 0)
        a.e("s_waitcnt lgkmcnt(3)")
        a.e(f"v_mfma_f32_32x32x8_bf16 {vr(Sn,16)}, {vr(KB,2)}, {vr(QB,2)}, {vr(Sn,16)}")
        a.e(rdKb(t + 2))
        ex(4)
        cv(P0 + 2, 4)
        a.e("s_waitcnt lgkmcnt(3)")
        a.e(f"v_mfma_f32_32x32x16_bf16 {vr(O,16)}, {vr(V1,4)}, {vr(P1,4)}, {vr(O,16)}")
        for ins in rdV(1, t):
            a.e(ins)
        ex(8)
        cv(P1, 8)
        a.e("s_waitcnt lgkmcnt(3)")
        a.e(f"v_mfma_f32_32x32x16_bf16 {vr(O,16)}, {vr(V0,4)}, {vr(P0,4)}, {vr(O,16)}")
        for ins in rdV(0, t + 1):
            a.e(ins)
        ex(12)
        cv(P1 + 2, 12)
    if "w" in X2:
        a.lines[body_start:] = [l for l in a.lines[body_start:] if "s_waitcnt" not in l]
    if "r" in X2:
        a.lines[body_start:] = [l for l in a.lines[body_start:] if "ds_read" not in l]
    if "e" in X2:
        a.lines[body_start:] = [l for l in a.lines[body_start:] if "exec" not in l]
    a.e(f"v_add_u32 v{vKa}, {2560*NT}, v{vKa}")
    a.e(f"v_add_u32 v{vKb}, {2560*NT}, v{vKb}")
    a.e(f"v_add_u32 v{vV}, {2560*NT}, v{vV}")
    a.e(f"s_add_u32 s{sIT}, s{sIT}, 1")
    a.e(f"s_cmp_lt_u32 s{sIT}, {64//NT}")
    a.e("s_cbranch_scc1 K2_LOOP")
    stamp(a, 3)
    a.e("s_waitcnt lgkmcnt(0)")
    a.e(f"v_mfma_f32_32x32x16_bf16 {vr(O,16)}, {vr(V1,4)}, {vr(P1,4)}, {vr(O,16)}")
    sS0, sS1 = 34, 35
    a.e(f"s_lshr_b32 s{t0}, s{sH}, 1")
    a.e(f"s_mul_i32 s{t0}, s{t0}, 5")
    a.e(f"s_and_b32 s{t1}, s{sH}, 1")
    a.e(f"s_lshl_b32 s{t2}, s{t1}, 1")
    a.e(f"s_add_u32 s{t2}, s{t2}, s{t0}")
    a.e(f"s_lshl_b32 s{t2}, s{t2}, 15")
    a.e(f"s_add_u32 s{sS0}, s{t2}, {hx(AB_OFF)}")
    a.e(f"s_add_u32 s{t0}, s{t0}, 4")
    a.e(f"s_lshl_b32 s{t0}, s{t0}, 15")
    a.e(f"s_lshl_b32 s{t1}, s{t1}, 3")
    a.e(f"s_add_u32 s{t0}, s{t0}, s{t1}")
    a.e(f"s_add_u32 s{sS1}, s{t0}, {hx(AB_OFF)}")
    a.e(f"s_lshl_b32 s{t3}, s{sQT}, 9")
    vSA0, vSA1 = 44, 45
    a.e(f"v_and_b32 v{vT+1}, 31, v{vLANE}")
    a.e(f"v_lshlrev_b32 v{vT+1}, 4, v{vT+1}")
    a.e(f"v_add_u32 v{vT+1}, s{t3}, v{vT+1}")
    a.e(f"v_lshrrev_b32 v{vT+2}, 5, v{vLANE}")
    a.e(f"v_lshl_add_u32 v{vSA0}, v{vT+2}, 15, v{vT+1}")
    a.e(f"v_lshl_add_u32 v{vSA1}, v{vT+2}, 30, v{vT+1}")
    a.e(f"v_mov_b32 v{vT+3}, {hx(f32(2.0**-60))}")
    a.e(f"v_mov_b32 v{vT+4}, {hx(f32(2.0**100))}")
    a.e(f"v_mov_b32 v{vT+5}, {hx(f32(2.0**120))}")
    a.e(f"v_cmp_gt_u32 vcc, 32, v{vLANE}")
    a.e("s_nop 1")
    a.e(f"v_cndmask_b32 v{vT}, v{O+8}, v{O+12}, vcc")
    a.e(f"v_max3_f32 v{vT+1}, abs(v{O}), abs(v{O+1}), abs(v{O+2})")
    for i in range(3, 11, 2):
        a.e(f"v_max3_f32 v{vT+1}, abs(v{O+i}), abs(v{O+i+1}), v{vT+1}")
    a.e(f"v_max_f32 v{vT+1}, abs(v{O+11}), v{vT+1}")
    a.e(f"v_add_f32 v{vT+2}, v{O}, v{O+1}")
    for i in range(2, 12):
        a.e(f"v_add_f32 v{vT+2}, v{vT+2}, v{O+i}")
    a.e(f"v_cmp_gt_f32 {sr(t0,2)}, v{vT}, v{vT+3}")
    a.e(f"v_cmp_lt_f32 {sr(t2,2)}, v{vT}, v{vT+4}")
    a.e(f"v_cmp_lt_f32 vcc, v{vT+1}, v{vT+5}")
    a.e("s_nop 1")
    a.e(f"s_and_b64 {sr(t0,2)}, {sr(t0,2)}, {sr(t2,2)}")
    a.e(f"s_and_b64 {sr(t0,2)}, {sr(t0,2)}, vcc")
    a.e(f"v_cmp_o_f32 vcc, v{vT+2}, v{vT+2}")
    a.e("s_nop 1")
    a.e(f"s_and_b64 {sr(t0,2)}, {sr(t0,2)}, vcc")
    a.e(f"s_cmp_eq_u64 {sr(t0,2)}, -1")
    if not any(c in X2 for c in "wre"):
        a.e("s_cbranch_scc0 K2_SLOW")
    a.lab("K2_FIN")
    a.e(f"v_rcp_f32 v{vT}, v{vT}")
    a.e("s_nop 0")
    for i in range(12):
        a.e(f"v_mul_f32 v{O+i}, v{O+i}, v{vT}")
    for i in range(6):
        a.e(f"v_cvt_pk_bf16_f32 v{O+i}, v{O+2*i}, v{O+2*i+1}")
    a.e(f"buffer_store_dwordx4 {vr(O,4)}, v{vSA0}, {sr(sWS,4)}, s{sS0} offen")
    a.e(f"buffer_store_dwordx2 {vr(O+4,2)}, v{vSA1}, {sr(sWS,4)}, s{sS1} offen")
    k2flush()
    a.lab("K2_END")
    a.e("s_endpgm")
    a.lab("K2_BAR")
    a.e("s_barrier")
    stamp(a, 2)
    a.e("s_branch K2_BODY")
    a.lab("K2_SLOW")
    vM = 46
    Sc = S[0]
    a.e(f"v_subrev_u32 v{vKa}, {163840}, v{vKa}")
    a.e(f"v_subrev_u32 v{vKb}, {163840}, v{vKb}")
    a.e(f"v_subrev_u32 v{vV}, {163840}, v{vV}")
    for ps in range(2):
        if ps == 0:
            a.e(f"v_mov_b32 v{vM}, 0xff800000")
        else:
            for i in range(16):
                a.e(f"v_mov_b32 v{O+i}, 0")
        a.e(f"s_mov_b32 s{sOFF}, 0")
        a.lab(f"K2_SL{ps}")
        a.e(f"buffer_load_dwordx4 {vr(KA,4)}, v{vKa}, {sr(sKV,4)}, s{sOFF} offen")
        a.e(f"buffer_load_dwordx2 {vr(KB,2)}, v{vKb}, {sr(sKV,4)}, s{sOFF} offen")
        if ps == 1:
            a.e(f"s_mov_b64 exec, {sr(sVM,2)}")
            a.e(f"buffer_load_dwordx4 {vr(V0,4)}, v{vV}, {sr(sKV,4)}, s{sOFF} offen")
            a.e(f"buffer_load_dwordx4 {vr(V1,4)}, v{vV}, {sr(sKV,4)}, s{sOFF} offen offset:640")
            a.e("s_mov_b64 exec, -1")
        a.e("s_waitcnt vmcnt(0)")
        a.e(f"v_mfma_f32_32x32x16_bf16 {vr(Sc,16)}, {vr(KA,4)}, {vr(QA,4)}, 0")
        a.e(f"v_mfma_f32_32x32x8_bf16 {vr(Sc,16)}, {vr(KB,2)}, {vr(QB,2)}, {vr(Sc,16)}")
        a.e("s_nop 15")
        a.e("s_nop 3")
        if ps == 0:
            for i in range(0, 16, 2):
                a.e(f"v_max3_f32 v{vM}, v{Sc+i}, v{Sc+i+1}, v{vM}")
        else:
            for i in range(16):
                a.e(f"v_sub_f32 v{Sc+i}, v{Sc+i}, v{vM}")
            for i in range(16):
                a.e(f"v_exp_f32 v{Sc+i}, v{Sc+i}")
            a.e("s_nop 0")
            for i in range(8):
                a.e(f"v_cvt_pk_bf16_f32 v{P0+i}, v{Sc+2*i}, v{Sc+2*i+1}")
            a.e("s_nop 1")
            a.e(f"v_mfma_f32_32x32x16_bf16 {vr(O,16)}, {vr(V0,4)}, {vr(P0,4)}, {vr(O,16)}")
            a.e(f"v_mfma_f32_32x32x16_bf16 {vr(O,16)}, {vr(V1,4)}, {vr(P1,4)}, {vr(O,16)}")
            a.e("s_nop 7")
        a.e(f"s_add_u32 s{sOFF}, s{sOFF}, 2560")
        a.e(f"s_cmp_lt_u32 s{sOFF}, 163840")
        a.e(f"s_cbranch_scc1 K2_SL{ps}")
        if ps == 0:
            a.e(f"v_mov_b32 v{vT+4}, v{vM}")
            a.e("s_nop 1")
            a.e(f"v_permlane32_swap_b32 v{vM}, v{vT+4}")
            a.e(f"v_max_f32 v{vM}, v{vM}, v{vT+4}")
    a.e("s_nop 15")
    a.e("s_nop 3")
    a.e(f"v_cmp_gt_u32 vcc, 32, v{vLANE}")
    a.e("s_nop 1")
    a.e(f"v_cndmask_b32 v{vT}, v{O+8}, v{O+12}, vcc")
    a.e("s_branch K2_FIN")
    return name, NV, 102 if DIAG else 64, (256, 768, K2_LDS)


K3_LDS = 102400


def gen_k3(a):
    name = "k3_out_kernel"
    kernel_header(a, name)
    sA, sWT, sY, sO = 12, 16, 20, 24
    sW, sRB, sCB, sOW, sM = 32, 33, 34, 35, 36
    t0, t1, t2, t3 = 38, 39, 40, 41
    vLANE, vOA, vOW, vYO, vOO, vRD = 1, 2, 3, 4, 5, 6
    vT = 8
    ACC = 12
    FB = 32
    FA = 72
    NV = 152
    k3flush = lambda: (stamp(a, 4), stamp_flush(a, 2, 8, sW, "s6", "s7", 8, 2))

    a.e("s_cmp_ge_u32 s2, 256")
    a.e("s_cbranch_scc1 K3_END")
    stamp(a, 0)
    a.e("s_load_dwordx2 s[4:5], s[0:1], 64")
    a.e("s_load_dwordx2 s[6:7], s[0:1], 80")
    a.e(f"v_and_b32 v{vLANE}, 63, v0")
    a.e(f"v_lshrrev_b32 v{vT}, 6, v0")
    a.e(f"s_and_b32 s{t0}, s2, 7")
    a.e(f"v_readfirstlane_b32 s{sW}, v{vT}")
    a.e(f"s_lshr_b32 s{t1}, s2, 3")
    a.e(f"s_lshl_b32 s{t0}, s{t0}, 2")
    a.e(f"s_and_b32 s{t2}, s{t1}, 3")
    a.e(f"s_add_u32 s{sRB}, s{t0}, s{t2}")
    a.e(f"s_lshr_b32 s{sCB}, s{t1}, 2")
    a.e(f"v_and_b32 v{vT}, 15, v{vLANE}")
    a.e(f"v_lshrrev_b32 v{vT+1}, 4, v{vLANE}")
    a.e(f"s_cmp_ge_u32 s{sW}, 4")
    a.e("s_cbranch_scc1 K3_COMP")
    a.e(f"s_mul_i32 s{t0}, s{sCB}, 80")
    a.e(f"v_add_u32 v{vOW}, s{t0}, v{vT}")
    a.e(f"v_lshlrev_b32 v{vOW}, 4, v{vOW}")
    a.e(f"v_mul_u32_u24 v{vT+2}, 10240, v{vT+1}")
    a.e(f"v_add_u32 v{vOW}, v{vOW}, v{vT+2}")
    a.e(f"s_mul_i32 s{sOW}, s{sW}, 40960")
    a.e(f"s_mul_i32 s{sM}, s{sW}, 5120")
    a.e("s_waitcnt lgkmcnt(0)")
    stamp(a, 5)
    srd_off(a, sWT, "s6", "s7", WT_OFF, 80 * 10240)
    for r in range(5):
        for q in range(5):
            a.e(f"s_add_u32 m0, s{sM}, {r*20480 + q*768}")
            a.e("s_nop 0")
            a.e(f"buffer_load_dwordx4 v{vOW}, {sr(sWT,4)}, s{sOW} offen offset:{256*q} lds")
        a.e(f"s_add_u32 s{sOW}, s{sOW}, {4*40960}")
        if r >= 2:
            a.e(f"s_waitcnt vmcnt(10)")
            a.e("s_barrier")
    a.e(f"s_waitcnt vmcnt(5)")
    a.e("s_barrier")
    a.e(f"s_waitcnt vmcnt(0)")
    a.e("s_barrier")
    if DIAG:
        stamp(a, 1); stamp(a, 2); stamp(a, 3)
        k3flush()
    a.e("s_endpgm")
    a.lab("K3_COMP")
    a.e(f"s_sub_u32 s{t3}, s{sW}, 4")
    a.e(f"s_lshl_b32 s{t0}, s{sRB}, 6")
    a.e(f"s_lshl_b32 s{t1}, s{t3}, 4")
    a.e(f"s_add_u32 s{t0}, s{t0}, s{t1}")
    a.e(f"v_add_u32 v{vT+2}, s{t0}, v{vT}")
    a.e(f"v_lshlrev_b32 v{vOA}, 4, v{vT+2}")
    a.e(f"v_lshl_add_u32 v{vOA}, v{vT+1}, 15, v{vOA}")
    a.e(f"s_lshl_b32 s{t0}, s{sRB}, 3")
    a.e(f"s_add_u32 s{t0}, s{t0}, s{sCB}")
    a.e(f"s_mul_i32 s{t0}, s{t0}, 20480")
    a.e(f"s_mul_i32 s{t1}, s{t3}, 5120")
    a.e(f"s_add_u32 s{t0}, s{t0}, s{t1}")
    a.e(f"v_lshlrev_b32 v{vRD}, 4, v{vLANE}")
    a.e(f"v_add_u32 v{vYO}, s{t0}, v{vRD}")
    a.e(f"s_mul_i32 s{t0}, s{sCB}, 160")
    a.e(f"v_mul_u32_u24 v{vOO}, 1280, v{vT+2}")
    a.e(f"v_lshl_add_u32 v{vOO}, v{vT+1}, 3, v{vOO}")
    a.e(f"v_add_u32 v{vOO}, s{t0}, v{vOO}")
    a.e("s_waitcnt lgkmcnt(0)")
    stamp(a, 5)
    srd_off(a, sA, "s6", "s7", AB_OFF, 80 * 32768)
    srd_off(a, sY, "s6", "s7", Y_OFF, Y_SIZE)
    srd(a, sO, "s4", "s5", 2048 * 640 * 2)
    a.e(f"s_mov_b32 s{t0}, 0")
    a.e(f"s_movk_i32 s{t1}, 4096")
    for ks in range(20):
        if ks == 4:
            for t in range(5):
                so, off = (t0 + 2, 0) if False else ("0", 1024 * t) if t < 4 else (f"s{t1}", 0)
                a.e(f"buffer_load_dwordx4 {vr(ACC+4*t,4)}, v{vYO}, {sr(sY,4)}, {so} offen offset:{off}")
        a.e(f"buffer_load_dwordx4 {vr(FA+4*ks,4)}, v{vOA}, {sr(sA,4)}, s{t0} offen")
        a.e(f"s_add_u32 s{t0}, s{t0}, {4*32768}")
    a.e(f"v_add_u32 v{vT}, 51200, v{vRD}")

    def rdB(ks):
        base, off = (vRD, ks * 5120) if ks < 10 else (vT, (ks - 10) * 5120)
        return [f"ds_read_b128 {vr(FB+20*(ks&1)+4*t,4)}, v{base} offset:{off+1024*t}" for t in range(5)]

    for r in range(5):
        a.e("s_barrier")
        if r == 0:
            stamp(a, 1)
        for ins in rdB(4 * r):
            a.e(ins)
        a.e(f"s_waitcnt vmcnt({16-4*r if r else 16})")
        for k in range(4):
            ks = 4 * r + k
            if k < 3:
                for ins in rdB(ks + 1):
                    a.e(ins)
                a.e("s_waitcnt lgkmcnt(5)")
            else:
                a.e("s_waitcnt lgkmcnt(0)")
            for t in range(5):
                a.e(f"v_mfma_f32_16x16x32_bf16 {vr(ACC+4*t,4)}, {vr(FB+20*(ks&1)+4*t,4)}, {vr(FA+4*ks,4)}, {vr(ACC+4*t,4)}")
    stamp(a, 2)
    stamp(a, 3)
    a.e("s_nop 7")
    for t in range(5):
        A = ACC + 4 * t
        a.e(f"v_cvt_pk_bf16_f32 v{A}, v{A}, v{A+1}")
        a.e(f"v_cvt_pk_bf16_f32 v{A+1}, v{A+2}, v{A+3}")
        a.e(f"buffer_store_dwordx2 {vr(A,2)}, v{vOO}, {sr(sO,4)}, 0 offen offset:{32*t}")
    k3flush()
    a.lab("K3_END")
    a.e("s_endpgm")
    return name, NV, 102 if DIAG else 48, (256, 512, K3_LDS)


HEADER = """; Kernarg layout for this problem (88 bytes, ptrs only, base s[0:1]):
"""


def main(out_path):
    a = Asm()
    ks = []
    for g in (gen_k1, gen_k2, gen_k3):
        ks.append(g(a))
    s = HEADER
    for name, nv, ns, (gx, bx, lds) in ks:
        s += f"; @launch kernel={name} grid=({gx},1,1) block=({bx},1,1) lds={lds}\n"
    s += '.amdgcn_target "amdgcn-amd-amdhsa--gfx950"\n.text\n'
    s += a.text()
    s += '.section .rodata,"a"\n'
    for name, nv, ns, _ in ks:
        s += kd(name, nv, ns)
    open(out_path, "w").write(s)


if __name__ == "__main__":
    main(sys.argv[1] if len(sys.argv) > 1 else f"cdna_kernels/{NAME}.s")
```

```python
import struct, math, sys

NAME = "parallel_sum__mha_block__dense_activation_gelu__prompt"

QB_OFF = 0
KV_OFF = 0x280000
KVT = 2624
KVH = 64 * KVT
VP = 336
AB_OFF = 0x7A0000
WT_OFF = 0x10E0000
assert KV_OFF + 32 * KVH == AB_OFF
FL_OFF = WT_OFF + 296 * 10240
WS_END = FL_OFF + 1024
AB_SIZE = 296 * 32768
WT_SIZE = 296 * 10240
assert AB_OFF + AB_SIZE == WT_OFF


def f32(x):
    return struct.unpack("<I", struct.pack("<f", x))[0]


def hx(x):
    return "0x%08x" % (x & 0xFFFFFFFF)


class Asm:
    def __init__(self):
        self.lines = []

    def e(self, s):
        if s.startswith("s_cselect_b32"):
            ops = [x.strip() for x in s[len("s_cselect_b32"):].split(",")]

            def is_lit(x):
                try:
                    v = int(x, 0)
                except ValueError:
                    return False
                return not (-16 <= v <= 64)
            if is_lit(ops[1]) and is_lit(ops[2]):
                self.lines.append(f"    s_mov_b32 {ops[0]}, {ops[2]}")
                s = f"s_cselect_b32 {ops[0]}, {ops[1]}, {ops[0]}"
        self.lines.append("    " + s)

    def lab(self, s):
        self.lines.append(s + ":")

    def c(self, s):
        self.lines.append("    ; " + s)

    def raw(self, s):
        self.lines.append(s)

    def text(self):
        return "\n".join(self.lines) + "\n"


def vr(a, n):
    return f"v[{a}:{a+n-1}]" if n > 1 else f"v{a}"


def sr(a, n):
    return f"s[{a}:{a+n-1}]" if n > 1 else f"s{a}"


def kernel_header(a, name):
    a.raw(".p2align 8")
    a.raw(f".globl {name}")
    a.raw(f".type {name},@function")
    a.lab(name)


def kd(name, nv, ns):
    acc = (nv + 3) // 4 * 4
    return f""".p2align 6
.amdhsa_kernel {name}
  .amdhsa_next_free_vgpr {nv}
  .amdhsa_next_free_sgpr {ns}
  .amdhsa_accum_offset {acc}
  .amdhsa_group_segment_fixed_size 0
  .amdhsa_kernarg_size 88
  .amdhsa_user_sgpr_count 2
  .amdhsa_user_sgpr_kernarg_segment_ptr 1
  .amdhsa_system_sgpr_workgroup_id_x 1
.end_amdhsa_kernel
"""


def srd(a, d, lo, hi, size):
    a.e(f"s_mov_b32 s{d}, {lo}")
    a.e(f"s_mov_b32 s{d+1}, {hi}")
    a.e(f"s_mov_b32 s{d+2}, {hx(size)}")
    a.e(f"s_mov_b32 s{d+3}, 0x00020000")


def srd_off(a, d, lo, hi, off, size):
    a.e(f"s_add_u32 s{d}, {lo}, {hx(off)}")
    a.e(f"s_addc_u32 s{d+1}, {hi}, 0")
    a.e(f"s_mov_b32 s{d+2}, {hx(size)}")
    a.e(f"s_mov_b32 s{d+3}, 0x00020000")


def round_bf16_inplace(a, v, vtmp=None):
    a.e(f"v_cvt_pk_bf16_f32 v{v}, v{v}, v{v}")
    a.e(f"v_lshlrev_b32 v{v}, 16, v{v}")


OOB = 0x40000000
import os
DIAG = int(os.environ.get("DIAG", "0"))
DIAG_OFF = 0x2000000
SD = 84


def stamp(a, i):
    if DIAG:
        a.e(f"s_memtime s[{SD+2*i}:{SD+2*i+1}]")
        if i == 0:
            a.e(f"s_memrealtime s[{SD+12}:{SD+13}]")
        if i == 4:
            a.e(f"s_memrealtime s[{SD+14}:{SD+15}]")


def stamp_flush(a, kidx, wpw, sW, ws_lo, ws_hi, n, vtmp):
    if not DIAG:
        return
    a.e("s_waitcnt lgkmcnt(0)")
    a.e(f"s_add_u32 s80, {ws_lo}, {hx(DIAG_OFF + kidx*4096*64)}")
    a.e(f"s_addc_u32 s81, {ws_hi}, 0")
    a.e(f"s_mov_b32 s82, {hx(4096*64)}")
    a.e("s_mov_b32 s83, 0x00020000")
    a.e(f"s_mul_i32 s100, s2, {wpw}")
    a.e(f"s_add_u32 s100, s100, s{sW}")
    a.e("s_lshl_b32 s100, s100, 6")
    a.e(f"v_mov_b32 v{vtmp}, 0")
    for i in range(n):
        a.e(f"v_mov_b32 v{vtmp+1}, s{SD+2*i}")
        a.e(f"buffer_store_dword v{vtmp+1}, v{vtmp}, s[80:83], s100 offen offset:{4*i}")

K1_BH = 8 * 1056
K1_SLOT = 16384 + 4 * K1_BH
K1_NS = 3
K1_SCR = K1_SLOT * K1_NS
K1_LDS = K1_SCR + 2048 + 256
QSCALE = math.log2(math.e) / math.sqrt(20.0)


def gen_k1(a):
    name = "k1_gemm1_kernel"
    kernel_header(a, name)
    X = os.environ.get("K1X", "")
    sX, sB0, sB1, sWS, sT, sBI = 20, 24, 28, 32, 36, 40
    sW, sMH, sHALF, sRB, sCB, sNQ, sT0 = 44, 45, 46, 47, 48, 49, 50
    sOA, sOB0, sOB1 = 51, 52, 53
    sWA, sWB, sRD, sTS, sIT, sDA, sDB = 54, 55, 56, 57, 58, 59, 60
    t0, t1, t2, t3, t4, t5, t6, t7 = 62, 63, 64, 65, 66, 67, 68, 69
    sC1 = 70
    sTYP = 73
    sOA2, sOB0b, sOB1b = 76, 77, 78
    vLANE = 1
    vA0e, vA0o, vB0 = 2, 3, 4
    vAe, vAo, vB = 5, 6, 7
    vS = 8
    vSA = 12
    vONES = 20
    vCS = 24
    vU = 32
    FA = [40, 72]
    vT = 72
    ACC = 104
    NV = 168

    def acc(j, mt):
        return ACC + (j * 4 + mt) * 4

    def fa(s, mt):
        return FA[s] + mt * 4

    def fb(s, j):
        return FA[s] + 16 + j * 4

    def emit(lst):
        for ins in lst:
            a.e(ins)

    k1flush = lambda: (stamp(a, 4), stamp_flush(a, 0, 12, sW, "s18", "s19", 8, 2))

    def finalize(s1, s2, nm, rs):
        a.e(f"v_mul_f32 v{s1}, {hx(f32(1.0/640))}, v{s1}")
        a.e(f"v_mul_f32 v{s2}, {hx(f32(1.0/640))}, v{s2}")
        a.e(f"v_fma_f32 v{s2}, -v{s1}, v{s1}, v{s2}")
        a.e(f"v_max_f32 v{s2}, 0, v{s2}")
        round_bf16_inplace(a, s2)
        a.e(f"v_add_f32 v{s2}, {hx(f32(1e-5))}, v{s2}")
        round_bf16_inplace(a, s2)
        a.e(f"v_sqrt_f32 v{s2}, v{s2}")
        round_bf16_inplace(a, s1)
        round_bf16_inplace(a, s2)
        a.e(f"v_rcp_f32 v{rs}, v{s2}")
        a.e(f"v_sub_f32 v{nm}, 0, v{s1}")


    a.e("s_cmp_ge_u32 s2, 256")
    a.e("s_cbranch_scc1 K1_END")
    stamp(a, 0)
    a.e("s_load_dwordx4 s[4:7], s[0:1], 0")
    a.e("s_load_dwordx2 s[8:9], s[0:1], 16")
    a.e("s_load_dwordx4 s[12:15], s[0:1], 32")
    a.e("s_load_dwordx2 s[16:17], s[0:1], 48")
    a.e("s_load_dwordx2 s[18:19], s[0:1], 80")
    a.e(f"v_and_b32 v{vLANE}, 63, v0")
    a.e(f"v_lshrrev_b32 v{vT}, 6, v0")
    a.e(f"s_and_b32 s{t0}, s2, 7")
    a.e(f"v_readfirstlane_b32 s{sW}, v{vT}")
    a.e(f"s_lshr_b32 s{t1}, s2, 3")
    a.e(f"s_and_b32 s{t2}, s{t0}, 1")
    a.e(f"s_lshl_b32 s{t2}, s{t2}, 3")
    a.e(f"s_and_b32 s{t3}, s{t1}, 7")
    a.e(f"s_add_u32 s{sRB}, s{t2}, s{t3}")
    a.e(f"s_lshr_b32 s{t2}, s{t0}, 1")
    a.e(f"s_lshl_b32 s{t2}, s{t2}, 2")
    a.e(f"s_lshr_b32 s{t3}, s{t1}, 3")
    a.e(f"s_add_u32 s{sCB}, s{t2}, s{t3}")
    a.e(f"s_cmp_eq_u32 s{sCB}, 15")
    a.e("s_cbranch_scc1 K1_TRANS")
    a.e(f"s_lshl_b32 s{sT0}, s{sCB}, 3")
    a.e(f"s_min_u32 s{sT0}, s{sT0}, 100")
    a.e(f"s_cmp_ge_u32 s{sW}, 4")
    a.e("s_cbranch_scc1 K1_COMP")
    lA = [2, 3]
    lQ = [4, 5]
    lF = [6, 7]
    lBI = 8
    a.e(f"s_lshl_b32 s{t0}, s{sRB}, 7")
    a.e(f"s_lshl_b32 s{t1}, s{sW}, 4")
    a.e(f"s_add_u32 s{t0}, s{t0}, s{t1}")
    a.e(f"v_lshrrev_b32 v{vT}, 3, v{vLANE}")
    a.e(f"v_add_u32 v{vT}, s{t0}, v{vT}")
    a.e(f"v_lshrrev_b32 v{vT+1}, 1, v{vT}")
    a.e(f"v_xor_b32 v{vT+1}, v{vT+1}, v{vLANE}")
    a.e(f"v_and_b32 v{vT+1}, 7, v{vT+1}")
    a.e(f"v_mul_u32_u24 v{vT}, 1280, v{vT}")
    a.e(f"v_lshl_add_u32 v{lA[0]}, v{vT+1}, 4, v{vT}")
    a.e(f"v_xor_b32 v{vT+1}, 4, v{vT+1}")
    a.e(f"v_lshl_add_u32 v{lA[1]}, v{vT+1}, 4, v{vT}")
    a.e(f"v_add_u32 v{lA[1]}, {8*1280}, v{lA[1]}")
    a.e(f"s_lshl_b32 s{sDA}, s{sW}, 11")
    a.e(f"s_and_b32 s{t0}, s{sW}, 1")
    a.e(f"s_lshl_b32 s{t0}, s{t0}, 1")
    a.e(f"s_lshr_b32 s{t1}, s{sW}, 1")
    a.e(f"s_lshl_b32 s{t1}, s{t1}, 3")
    a.e(f"s_or_b32 s{t0}, s{t0}, s{t1}")
    a.e(f"v_bfe_u32 v{vT}, v{vLANE}, 4, 1")
    a.e(f"v_lshlrev_b32 v{vT}, 2, v{vT}")
    a.e(f"v_lshrrev_b32 v{vT+1}, 5, v{vLANE}")
    a.e(f"v_lshl_or_b32 v{vT}, v{vT+1}, 4, v{vT}")
    a.e(f"v_or_b32 v{vT}, s{t0}, v{vT}")
    a.e(f"v_and_b32 v{vT+1}, 15, v{vLANE}")
    a.e(f"v_lshlrev_b32 v{vT+1}, 4, v{vT+1}")
    a.e(f"s_lshl_b32 s{t2}, s{sCB}, 8")
    a.e(f"s_lshl_b32 s{t3}, s{sT0}, 5")
    a.e(f"v_mul_u32_u24 v{lQ[0]}, 3840, v{vT}")
    a.e(f"v_add3_u32 v{lQ[0]}, v{lQ[0]}, v{vT+1}, s{t2}")
    a.e(f"v_add_u32 v{lQ[1]}, 3840, v{lQ[0]}")
    a.e(f"v_mul_u32_u24 v{lF[0]}, 3456, v{vT}")
    a.e(f"v_add3_u32 v{lF[0]}, v{lF[0]}, v{vT+1}, s{t3}")
    a.e(f"v_add_u32 v{lF[1]}, 3456, v{lF[0]}")
    a.e(f"s_mul_i32 s{sDB}, s{sW}, 2112")
    a.e(f"s_add_u32 s{sDB}, s{sDB}, 16384")
    a.e(f"s_mov_b32 s{sOA}, 0")
    a.e(f"s_mov_b32 s{sOA2}, {64*1280}")
    a.e(f"s_mov_b32 s{sOB0}, 0")
    a.e(f"s_mov_b32 s{sOB0b}, {32*3840}")
    a.e(f"s_mov_b32 s{sOB1}, 0")
    a.e(f"s_mov_b32 s{sOB1b}, {32*3456}")
    a.e(f"s_mov_b32 s{sWA}, s{sDA}")
    a.e(f"s_mov_b32 s{sWB}, s{sDB}")
    a.e("s_waitcnt lgkmcnt(0)")
    stamp(a, 5)
    srd(a, sX, "s4", "s5", 2048 * 640 * 2)
    srd(a, sB0, "s6", "s7", 640 * 1920 * 2)
    srd(a, sB1, "s12", "s13", 640 * 1728 * 2)

    lR0 = 10
    lR = 14
    lD = 20
    lS = 36
    lU = 40

    def stats_ops():
        va = []
        for r in range(16):
            src = lD + r
            lo, hi = lU + 2 * (r & 1), lU + 2 * (r & 1) + 1
            va.append(f"v_lshlrev_b32 v{lo}, 16, v{src}")
            va.append(f"v_and_b32 v{hi}, 0xffff0000, v{src}")
            va.append(f"v_add_f32 v{lS}, v{lS}, v{lo}")
            va.append(f"v_add_f32 v{lS+1}, v{lS+1}, v{hi}")
            va.append(f"v_fmac_f32 v{lS+2}, v{lo}, v{lo}")
            va.append(f"v_fmac_f32 v{lS+3}, v{hi}, v{hi}")
        return va

    def stats_reads():
        for i in range(4):
            a.e(f"v_add_u32 v{lR+i}, s{sRD}, v{lR0+i}")
        for i in range(4):
            a.e(f"ds_read_b128 {vr(lD+4*i,4)}, v{lR+i}")
        a.e(f"s_add_u32 s{sRD}, s{sRD}, {K1_SLOT}")
        a.e(f"s_cmp_eq_u32 s{sRD}, {K1_SCR}")
        a.e(f"s_cselect_b32 s{sRD}, 0, s{sRD}")

    def stage(with_stats=False, dma=True):
        spec = [(sWA, 0, lA, 1024, sX, sOA, 128),
                (sWA, 8192, lA, 1024, sX, sOA2, 128),
                (sWB, 0, lQ, 1056, sB0, sOB0, 64 * 3840),
                (sWB, 2 * K1_BH, lF, 1056, sB1, sOB1, 64 * 3456),
                (sWB, K1_BH, lQ, 1056, sB0, sOB0b, 64 * 3840),
                (sWB, 3 * K1_BH, lF, 1056, sB1, sOB1b, 64 * 3456)]
        va = stats_ops() if with_stats else []
        if with_stats:
            stats_reads()
        n = 0
        for (sD, dof, vO, d2, sR, sO, inc) in spec:
            for q in range(2):
                d = dof + q * d2
                if dma:
                    a.e(f"s_add_u32 m0, s{sD}, {d}" if d else f"s_mov_b32 m0, s{sD}")
                    a.e("s_nop 0")
                    a.e(f"buffer_load_dwordx4 v{vO[q]}, {sr(sR,4)}, s{sO} offen lds")
                n += 1
                if with_stats and n >= 2:
                    if n == 2:
                        a.e("s_waitcnt lgkmcnt(0)")
                    k = 9 if n < 12 else len(va)
                    for ins in va[:k]:
                        a.e(ins)
                    va = va[k:]
            if dma:
                a.e(f"s_add_u32 s{sO}, s{sO}, {inc}")
        if dma:
            a.e(f"s_add_u32 s{sWA}, s{sWA}, {K1_SLOT}")
            a.e(f"s_add_u32 s{sWB}, s{sWB}, {K1_SLOT}")
            a.e(f"s_cmp_ge_u32 s{sWA}, {K1_SCR}")
            a.e(f"s_cselect_b32 s{sWA}, s{sDA}, s{sWA}")
            a.e(f"s_cselect_b32 s{sWB}, s{sDB}, s{sWB}")

    stage()
    srd(a, sBI, "s14", "s15", 1728 * 2)
    a.e(f"v_lshlrev_b32 v{vT}, 2, v{vLANE}")
    a.e(f"buffer_load_dword v{lBI}, v{vT}, {sr(sBI,4)}, s{t3} offen")
    stage()
    stage()
    a.e(f"v_and_b32 v{vT+1}, 31, v{vLANE}")
    a.e(f"v_lshrrev_b32 v{vT+2}, 5, v{vLANE}")
    a.e(f"v_lshlrev_b32 v{vT+2}, 2, v{vT+2}")
    a.e(f"v_bfe_u32 v{vT+3}, v{vLANE}, 1, 3")
    a.e(f"v_xor_b32 v{vT+2}, v{vT+2}, v{vT+3}")
    a.e(f"v_lshlrev_b32 v{vT+2}, 4, v{vT+2}")
    a.e(f"v_lshl_add_u32 v{vT+2}, v{vT+1}, 7, v{vT+2}")
    a.e(f"s_lshl_b32 s{t0}, s{sW}, 12")
    a.e(f"v_add_u32 v{lR0}, s{t0}, v{vT+2}")
    for i in range(1, 4):
        a.e(f"v_xor_b32 v{lR0+i}, {16*i}, v{lR0}")
    for i in range(4):
        a.e(f"v_mov_b32 v{lS+i}, 0")
    a.e(f"s_mov_b32 s{sRD}, 0")
    a.e(f"s_mov_b32 s{sIT}, 0")
    a.e("s_waitcnt vmcnt(24)")
    a.e(f"v_add_u32 v{vT}, {K1_SCR+2048}, v{vT}")
    a.e(f"ds_write_b32 v{vT}, v{lBI}")
    a.e("s_barrier")
    stamp(a, 1)
    stage(True, False)
    a.lab("K1_LD")
    a.e("s_waitcnt vmcnt(12)")
    a.e("s_barrier")
    stage(True, True)
    a.e(f"s_add_u32 s{sIT}, s{sIT}, 1")
    a.e(f"s_cmp_lt_u32 s{sIT}, 7")
    a.e("s_cbranch_scc1 K1_LD")
    a.e("s_waitcnt vmcnt(12)")
    a.e("s_barrier")
    a.e(f"s_mov_b32 s{sIT}, 0")
    a.lab("K1_LD2")
    stage(True, False)
    a.e(f"s_cmp_eq_u32 s{sIT}, 1")
    a.e("s_cbranch_scc1 K1_LD3")
    a.e("s_waitcnt vmcnt(0)")
    a.e("s_barrier")
    a.e(f"s_mov_b32 s{sIT}, 1")
    a.e("s_branch K1_LD2")
    a.lab("K1_LD3")
    a.e(f"v_add_f32 v{lS}, v{lS}, v{lS+1}")
    a.e(f"v_add_f32 v{lS+1}, v{lS+2}, v{lS+3}")
    a.e(f"v_mov_b32 v{lU}, v{lS}")
    a.e(f"v_mov_b32 v{lU+1}, v{lS+1}")
    a.e("s_nop 1")
    a.e(f"v_permlane32_swap_b32 v{lS}, v{lU}")
    a.e(f"v_permlane32_swap_b32 v{lS+1}, v{lU+1}")
    a.e(f"v_add_f32 v{lS}, v{lS}, v{lU}")
    a.e(f"v_add_f32 v{lS+1}, v{lS+1}, v{lU+1}")
    finalize(lS, lS + 1, lS + 2, lS + 3)
    a.e(f"v_lshlrev_b32 v{vT+1}, 2, v{vT+1}")
    a.e(f"s_lshl_b32 s{t0}, s{sW}, 7")
    a.e(f"s_add_u32 s{t0}, s{t0}, {K1_SCR}")
    a.e(f"v_add_u32 v{vT+1}, s{t0}, v{vT+1}")
    a.e(f"ds_write_b32 v{vT+1}, v{lS+2}")
    a.e(f"ds_write_b32 v{vT+1}, v{lS+3} offset:512")
    a.e("s_waitcnt lgkmcnt(0)")
    a.e("s_barrier")
    if DIAG:
        stamp(a, 2); stamp(a, 3)
        k1flush()
    a.e("s_endpgm")
    a.lab("K1_COMP")
    a.e(f"s_and_b32 s{sMH}, s{sW}, 1")
    a.e(f"s_bfe_u32 s{sNQ}, s{sW}, 0x10001")
    a.e(f"s_lshr_b32 s{sHALF}, s{sW}, 3")
    if "P" in X:
        vPF = 36
        a.e(f"s_and_b32 s{t0}, s{sW}, 3")
        a.e(f"s_lshl_b32 s{t0}, s{t0}, 6")
        a.e(f"v_add_u32 v{vT}, s{t0}, v{vLANE}")
        a.e(f"s_cmp_eq_u32 s{sHALF}, 1")
        a.e("s_cbranch_scc1 K1_PFB")
        a.e(f"s_and_b32 s{t1}, s{sCB}, 3")
        a.e(f"s_lshl_b32 s{t1}, s{t1}, 5")
        a.e(f"s_lshl_b32 s{t2}, s{sRB}, 7")
        a.e(f"s_add_u32 s{t1}, s{t1}, s{t2}")
        a.e(f"v_lshrrev_b32 v{vT+1}, 3, v{vT}")
        a.e(f"v_add_u32 v{vT+1}, s{t1}, v{vT+1}")
        a.e(f"v_mul_u32_u24 v{vT+1}, 1280, v{vT+1}")
        a.e(f"v_and_b32 v{vT+2}, 7, v{vT}")
        a.e(f"v_lshl_add_u32 v{vT+1}, v{vT+2}, 7, v{vT+1}")
        a.e("s_waitcnt lgkmcnt(0)")
        srd(a, sX, "s4", "s5", 2048 * 640 * 2)
        a.e(f"buffer_load_dword v{vPF}, v{vT+1}, {sr(sX,4)}, 0 offen offset:256")
        a.e("s_branch K1_PFD")
        a.lab("K1_PFB")
        a.e(f"s_and_b32 s{t1}, s{sRB}, 7")
        a.e(f"s_lshl_b32 s{t1}, s{t1}, 6")
        a.e(f"s_add_u32 s{t1}, s{t1}, 128")
        a.e(f"v_lshrrev_b32 v{vT+1}, 2, v{vT}")
        a.e(f"v_add_u32 v{vT+1}, s{t1}, v{vT+1}")
        a.e(f"v_and_b32 v{vT+2}, 1, v{vT}")
        a.e(f"v_lshlrev_b32 v{vT+2}, 7, v{vT+2}")
        a.e(f"s_lshl_b32 s{t2}, s{sCB}, 8")
        a.e(f"s_lshl_b32 s{t3}, s{sT0}, 5")
        a.e(f"v_mul_u32_u24 v{vT+3}, 3840, v{vT+1}")
        a.e(f"v_add3_u32 v{vT+3}, v{vT+3}, v{vT+2}, s{t2}")
        a.e(f"v_mul_u32_u24 v{vT+4}, 3456, v{vT+1}")
        a.e(f"v_add3_u32 v{vT+4}, v{vT+4}, v{vT+2}, s{t3}")
        a.e("s_waitcnt lgkmcnt(0)")
        srd(a, sB0, "s6", "s7", 640 * 1920 * 2)
        srd(a, sB1, "s12", "s13", 640 * 1728 * 2)
        a.e("s_mov_b32 exec_lo, 0x33333333")
        a.e("s_mov_b32 exec_hi, 0x33333333")
        a.e(f"buffer_load_dword v{vPF}, v{vT+3}, {sr(sB0,4)}, 0 offen")
        a.e("s_not_b64 exec, exec")
        a.e(f"buffer_load_dword v{vPF+1}, v{vT+4}, {sr(sB1,4)}, 0 offen")
        a.e("s_mov_b64 exec, -1")
        a.lab("K1_PFD")
    a.e(f"s_lshl_b32 s{t0}, s{sMH}, 13")
    a.e(f"v_and_b32 v{vT+4}, 15, v{vLANE}")
    a.e(f"v_lshrrev_b32 v{vT}, 4, v{vLANE}")
    a.e(f"v_lshrrev_b32 v{vT+1}, 1, v{vT+4}")
    a.e(f"v_xor_b32 v{vT+1}, v{vT+1}, v{vT}")
    a.e(f"v_lshlrev_b32 v{vT+1}, 4, v{vT+1}")
    a.e(f"v_lshl_add_u32 v{vA0e}, v{vT+4}, 7, v{vT+1}")
    a.e(f"v_add_u32 v{vA0e}, s{t0}, v{vA0e}")
    a.e(f"v_xor_b32 v{vA0o}, 64, v{vA0e}")
    a.e(f"v_bfe_u32 v{vT+1}, v{vLANE}, 2, 3")
    a.e(f"v_mul_u32_u24 v{vT+1}, 1056, v{vT+1}")
    a.e(f"v_lshrrev_b32 v{vT+2}, 5, v{vLANE}")
    a.e(f"v_lshl_add_u32 v{vT+1}, v{vT+2}, 9, v{vT+1}")
    a.e(f"v_and_b32 v{vT+2}, 3, v{vLANE}")
    a.e(f"v_lshl_add_u32 v{vT+1}, v{vT+2}, 3, v{vT+1}")
    a.e(f"s_mul_i32 s{t0}, s{sHALF}, {2*K1_BH}")
    a.e(f"s_lshl_b32 s{t1}, s{sNQ}, 7")
    a.e(f"s_add_u32 s{t0}, s{t0}, s{t1}")
    a.e(f"s_add_u32 s{t0}, s{t0}, 16384")
    a.e(f"v_add_u32 v{vB0}, s{t0}, v{vT+1}")
    for i in range(64):
        a.e(f"v_mov_b32 v{ACC+i}, 0")
    for i in range(4):
        a.e(f"v_mov_b32 v{vS+i}, 0")
        a.e(f"v_mov_b32 v{vONES+i}, 0x3f803f80")
    for i in range(8):
        a.e(f"v_mov_b32 v{vCS+i}, 0")
        a.e(f"v_mov_b32 v{vSA+i}, {hx(OOB)}")
    a.e(f"s_mov_b32 s{sRD}, 0")
    a.e(f"s_mov_b32 s{sIT}, 0")
    a.e(f"s_mov_b32 s{sTS}, 0")
    a.e(f"s_cmp_ge_u32 s{sCB}, 10")
    a.e(f"s_cselect_b32 s{sTYP}, 1, 0")
    a.e(f"s_cmp_eq_u32 s{sHALF}, 1")
    a.e(f"s_cselect_b32 s{sTYP}, 2, s{sTYP}")
    a.e(f"s_lshl_b32 s{t6}, s{sRB}, 2")
    a.e(f"s_lshl_b32 s{t7}, s{sMH}, 1")
    a.e(f"s_add_u32 s{t6}, s{t6}, s{t7}")
    a.e(f"s_cmp_eq_u32 s{sTYP}, 1")
    a.e("s_cbranch_scc1 K1_PRE_V")
    a.e(f"s_cmp_eq_u32 s{sTYP}, 2")
    a.e("s_cbranch_scc1 K1_PRE_F")
    a.e(f"s_cmp_lt_u32 s{sCB}, 5")
    a.e(f"s_cselect_b32 s{t1}, 81920, {KVH}")
    a.e(f"s_cselect_b32 s{sTS}, 1280, {KVT}")
    a.e(f"s_cselect_b32 s{t3}, {hx(QB_OFF)}, {hx(KV_OFF)}")
    a.e(f"s_cselect_b32 s{t4}, 16, 8")
    a.e(f"s_cselect_b64 vcc, -1, 0")
    a.e(f"s_cselect_b32 s{t5}, 0, 5")
    a.e(f"s_sub_u32 s{t5}, s{sCB}, s{t5}")
    a.e(f"s_lshl_b32 s{t5}, s{t5}, 5")
    a.e(f"s_lshl_b32 s{t7}, s{sNQ}, 4")
    a.e(f"s_add_u32 s{t5}, s{t5}, s{t7}")
    a.e(f"s_mul_i32 s{t6}, s{t6}, s{sTS}")
    a.e(f"s_add_u32 s{t3}, s{t3}, s{t6}")
    r0, rA0, rB0, rA1, rB1, vG = vT + 5, vT + 6, vT + 7, vT + 8, vT + 9, vT + 10
    a.e(f"v_and_b32 v{vT+2}, 7, v{vLANE}")
    a.e(f"v_and_b32 v{vT+3}, 8, v{vLANE}")
    a.e(f"v_lshl_add_u32 v{vT+2}, v{vT+3}, 1, v{vT+2}")
    a.e(f"v_cndmask_b32 v{r0}, v{vT+2}, v{vT+4}, vcc")
    a.e(f"v_lshlrev_b32 v{rA0}, 4, v{r0}")
    a.e(f"v_add_u32 v{rA0}, s{t3}, v{rA0}")
    a.e(f"v_lshlrev_b32 v{rB0}, 3, v{r0}")
    a.e(f"s_add_u32 s{t7}, s{t3}, 1024")
    a.e(f"v_add_u32 v{rB0}, s{t7}, v{rB0}")
    a.e(f"s_lshl_b32 s{t7}, s{t4}, 4")
    a.e(f"v_add_u32 v{rA1}, s{t7}, v{rA0}")
    a.e(f"s_lshl_b32 s{t7}, s{t4}, 3")
    a.e(f"v_add_u32 v{rB1}, s{t7}, v{rB0}")
    a.e(f"v_add_u32 v{vG}, s{t5}, v{vT}")
    for j in range(4):
        tt, h, dg, u = vT + 11, vT + 12, vT + 13, vT + 14
        a.e(f"v_add_u32 v{tt}, {4*j}, v{vG}")
        a.e(f"v_mul_u32_u24 v{h}, 205, v{tt}")
        a.e(f"v_lshrrev_b32 v{h}, 10, v{h}")
        a.e(f"v_mad_i32_i24 v{dg}, v{h}, -5, v{tt}")
        a.e(f"v_mul_u32_u24 v{u}, 0x108, v{dg}")
        a.e(f"v_and_b32 v{u}, 0x208, v{u}")
        a.e(f"v_cmp_eq_u32 vcc, 4, v{dg}")
        a.e(f"v_mad_u32_u24 v{u}, v{h}, s{t1}, v{u}")
        a.e("s_nop 0")
        a.e(f"v_cndmask_b32 v{tt}, v{rA0}, v{rB0}, vcc")
        a.e(f"v_cndmask_b32 v{h}, v{rA1}, v{rB1}, vcc")
        a.e(f"v_add_u32 v{vSA+2*j}, v{u}, v{tt}")
        a.e(f"v_add_u32 v{vSA+2*j+1}, v{u}, v{h}")
    a.e("s_branch K1_PRE_DONE")
    a.lab("K1_PRE_V")
    a.e(f"s_sub_u32 s{t5}, s{sCB}, 10")
    a.e(f"s_lshl_b32 s{t5}, s{t5}, 7")
    a.e(f"s_lshl_b32 s{t7}, s{sNQ}, 6")
    a.e(f"s_add_u32 s{t5}, s{t5}, s{t7}")
    a.e(f"v_add_u32 v{vT+2}, s{t5}, v{vT+4}")
    a.e(f"s_mul_i32 s{t6}, s{t6}, {KVT}")
    a.e(f"s_add_u32 s{t6}, s{t6}, {hx(KV_OFF + 1280)}")
    a.e(f"v_mul_u32_u24 v{vT+1}, {VP}, v{vT}")
    a.e(f"v_add_u32 v{vT+1}, s{t6}, v{vT+1}")
    a.e(f"s_mov_b32 s{t1}, {KVH}")
    a.e(f"s_mov_b32 s{t2}, -20")
    for j in range(4):
        n, h, d = vT + 5, vT + 6, vT + 7
        a.e(f"v_add_u32 v{n}, {16*j}, v{vT+2}")
        a.e(f"v_mul_u32_u24 v{h}, 3277, v{n}")
        a.e(f"v_lshrrev_b32 v{h}, 16, v{h}")
        a.e(f"v_mad_i32_i24 v{d}, v{h}, s{t2}, v{n}")
        a.e(f"v_mad_u32_u24 v{h}, v{h}, s{t1}, v{vT+1}")
        a.e(f"v_lshl_add_u32 v{vSA+j}, v{d}, 4, v{h}")
    a.e("s_branch K1_PRE_DONE")
    a.lab("K1_PRE_F")
    a.e(f"s_lshl_b32 s{t0}, s{t6}, 5")
    a.e(f"v_add_u32 v{vSA}, s{t0}, v{vT+4}")
    a.e(f"v_lshlrev_b32 v{vSA}, 4, v{vSA}")
    a.e(f"v_lshl_add_u32 v{vSA}, v{vT}, 15, v{vSA}")
    a.e(f"s_lshl_b32 s{t0}, s{sT0}, 16")
    a.e(f"s_lshl_b32 s{t1}, s{sNQ}, 18")
    a.e(f"s_add_u32 s{t0}, s{t0}, s{t1}")
    a.e(f"s_add_u32 s{t0}, s{t0}, {hx(AB_OFF + 80*32768)}")
    a.e(f"v_add_u32 v{vSA}, s{t0}, v{vSA}")
    a.e(f"v_add_u32 v{vSA+1}, {hx(131072)}, v{vSA}")
    a.lab("K1_PRE_DONE")
    a.e("s_waitcnt lgkmcnt(0)")
    stamp(a, 5)
    srd(a, sWS, "s18", "s19", WS_END)
    a.e(f"s_and_b32 s{t0}, s{sTYP}, 1")
    a.e(f"s_lshl_b32 s{t0}, s{t0}, 1")
    a.e(f"s_add_u32 s{t0}, s{t0}, s{sMH}")
    for v in range(1, 4):
        a.e(f"s_cmp_eq_u32 s{t0}, {v}")
        a.e(f"s_cbranch_scc1 K1_V{v}")

    def reads(fs):
        vA = vAe if fs == 0 else vAo
        ra = [f"ds_read_b128 {vr(fa(fs,mt),4)}, v{vA} offset:{2048*mt}" for mt in range(4)]
        rb = []
        for j in range(4):
            rb.append(f"ds_read_b64_tr_b16 {vr(fb(fs,j),2)}, v{vB} offset:{fs*K1_BH+32*j}")
            rb.append(f"ds_read_b64_tr_b16 {vr(fb(fs,j)+2,2)}, v{vB} offset:{fs*K1_BH+32*j+256}")
        return rb[0:2] + ra + rb[2:]

    def addr_update():
        return [f"v_add_u32 v{vB}, s{sRD}, v{vB0}",
                f"v_add_u32 v{vAe}, s{sRD}, v{vA0e}",
                f"v_add_u32 v{vAo}, s{sRD}, v{vA0o}",
                f"s_add_u32 s{sRD}, s{sRD}, {K1_SLOT}",
                f"s_cmp_eq_u32 s{sRD}, {K1_SCR}",
                f"s_cselect_b32 s{sRD}, 0, s{sRD}"]

    for var in range(4):
        typ, mh, nq = var >> 1, var & 1, 0
        cst = [2 * mh, 2 * mh + 1]
        smt = (2 if typ == 2 else 0) + nq
        a.raw(".p2align 3")
        a.lab(f"K1_V{var}")
        emit(addr_update())
        a.e("s_barrier")
        stamp(a, 1)
        emit(reads(0))
        a.raw(".p2align 6")
        a.lab(f"K1_L{var}")
        for fs in range(2):
            mf = []
            for j in range(4):
                for mt in range(4):
                    if typ == 1:
                        mf.append(f"v_mfma_f32_16x16x32_bf16 {vr(acc(j,mt),4)}, {vr(fa(fs,mt),4)}, {vr(fb(fs,j),4)}, {vr(acc(j,mt),4)}")
                    else:
                        mf.append(f"v_mfma_f32_16x16x32_bf16 {vr(acc(j,mt),4)}, {vr(fb(fs,j),4)}, {vr(fa(fs,mt),4)}, {vr(acc(j,mt),4)}")
                if j in cst:
                    c = vCS + 4 * cst.index(j)
                    mf.append(f"v_mfma_f32_16x16x32_bf16 {vr(c,4)}, {vr(fb(fs,j),4)}, {vr(vONES,4)}, {vr(c,4)}")
            va = []
            for r in range(4):
                src = fa(fs, smt) + r
                lo, hi = vU + 2 * (r & 1), vU + 2 * (r & 1) + 1
                va.append(f"v_lshlrev_b32 v{lo}, 16, v{src}")
                va.append(f"v_and_b32 v{hi}, 0xffff0000, v{src}")
                va.append(f"v_add_f32 v{vS}, v{vS}, v{lo}")
                va.append(f"v_add_f32 v{vS+1}, v{vS+1}, v{hi}")
                va.append(f"v_fmac_f32 v{vS+2}, v{lo}, v{lo}")
                va.append(f"v_fmac_f32 v{vS+3}, v{hi}, v{hi}")
            rd = reads(fs ^ 1)
            va = []
            if "r" in X: rd = []
            if "M" in X: mf = mf[:2]
            a.e("s_waitcnt lgkmcnt(0)")
            npre = 0
            if fs == 1:
                npre = 2
                for m in mf[:npre]:
                    a.e(m)
                emit(addr_update())
                a.e("s_barrier")
            rest = mf[npre:]
            nm = max(1, len(rest))
            ri = di = 0
            for i, m in enumerate(rest):
                if ri < len(rd):
                    a.e(rd[ri]); ri += 1
                a.e(m)
                want_d = (len(va) * (i + 1) + nm - 1) // nm
                while di < want_d:
                    a.e(va[di]); di += 1
            while ri < len(rd):
                a.e(rd[ri]); ri += 1
            while di < len(va):
                a.e(va[di]); di += 1
        a.e(f"s_add_u32 s{sIT}, s{sIT}, 1")
        a.e(f"s_cmp_lt_u32 s{sIT}, 10")
        a.e(f"s_cbranch_scc1 K1_L{var}")
        a.e(f"s_branch K1_EPI")

    a.raw(".p2align 3")
    a.lab("K1_EPI")
    stamp(a, 2)
    a.e("s_waitcnt vmcnt(0)")
    a.e(f"v_and_b32 v{vT}, 15, v{vLANE}")
    a.e(f"v_lshlrev_b32 v{vT}, 2, v{vT}")
    a.e(f"s_lshl_b32 s{t0}, s{sHALF}, 7")
    a.e(f"s_lshl_b32 s{t1}, s{sNQ}, 6")
    a.e(f"s_add_u32 s{t0}, s{t0}, s{t1}")
    a.e(f"s_lshl_b32 s{t2}, s{sMH}, 8")
    a.e(f"s_add_u32 s{t2}, s{t2}, {K1_SCR}")
    a.e(f"s_add_u32 s{t0}, s{t0}, s{t2}")
    a.e(f"v_add_u32 v{vT+1}, s{t0}, v{vT}")
    a.e(f"v_lshrrev_b32 v{vT+2}, 4, v{vLANE}")
    a.e(f"v_lshlrev_b32 v{vT+2}, 4, v{vT+2}")
    a.e(f"s_lshl_b32 s{t3}, s{sHALF}, 9")
    a.e(f"s_lshl_b32 s{t1}, s{sNQ}, 8")
    a.e(f"s_add_u32 s{t3}, s{t3}, s{t1}")
    a.e(f"s_add_u32 s{t3}, s{t3}, {K1_SCR+1024}")
    a.e(f"s_lshl_b32 s{t1}, s{sMH}, 7")
    a.e(f"s_add_u32 s{t0}, s{t3}, s{t1}")
    a.e(f"v_add_u32 v{vT+3}, s{t0}, v{vT+2}")
    a.e("s_mov_b32 exec_lo, 0x00010001")
    a.e("s_mov_b32 exec_hi, 0x00010001")
    a.e(f"ds_write_b128 v{vT+3}, {vr(vCS,4)}")
    a.e(f"ds_write_b128 v{vT+3}, {vr(vCS+4,4)} offset:64")
    a.e("s_mov_b64 exec, -1")
    a.e("s_waitcnt lgkmcnt(0)")
    a.e("s_barrier")
    stamp(a, 3)
    a.e(f"s_cmp_eq_u32 s{sTYP}, 1")
    a.e("s_cbranch_scc1 K1_EPI_V")

    vNM, vRS = 32, 36
    vC4 = 40
    vBB = 56
    a.e(f"v_add_u32 v{vT}, s{t2}, v{vT}")
    a.e(f"ds_read2_b32 {vr(vNM,2)}, v{vT} offset0:0 offset1:16")
    a.e(f"ds_read2_b32 {vr(vNM+2,2)}, v{vT} offset0:32 offset1:48")
    a.e(f"ds_read2_b32 {vr(vRS,2)}, v{vT} offset0:128 offset1:144")
    a.e(f"ds_read2_b32 {vr(vRS+2,2)}, v{vT} offset0:160 offset1:176")
    a.e(f"v_add_u32 v{vT+1}, s{t3}, v{vT+2}")
    for j in range(4):
        a.e(f"ds_read_b128 {vr(vC4+4*j,4)}, v{vT+1} offset:{64*j}")
    a.e(f"s_cmp_eq_u32 s{sTYP}, 2")
    a.e("s_cbranch_scc1 K1_EPI_F")

    def sel3(mt):
        return f"op_sel:[0,{mt&1},0] op_sel_hi:[1,{mt&1},1]"

    def sel2(mt):
        return f"op_sel:[0,{mt&1}] op_sel_hi:[1,{mt&1}]"
    a.e(f"s_cmp_lt_u32 s{sCB}, 5")
    a.e(f"s_cselect_b32 s{t0}, {hx(f32(QSCALE))}, 1.0")
    a.e("s_waitcnt lgkmcnt(4)")
    for i in range(4):
        a.e(f"v_mul_f32 v{vRS+i}, s{t0}, v{vRS+i}")
    for j in range(4):
        a.e(f"s_waitcnt lgkmcnt({3-j})")
        for mt in range(4):
            A = acc(j, mt)
            for p in range(2):
                a.e(f"v_pk_fma_f32 {vr(A+2*p,2)}, {vr(vC4+4*j+2*p,2)}, {vr(vNM+(mt&2),2)}, {vr(A+2*p,2)} {sel3(mt)}")
        for mt in range(4):
            A = acc(j, mt)
            for p in range(2):
                a.e(f"v_pk_mul_f32 {vr(A+2*p,2)}, {vr(A+2*p,2)}, {vr(vRS+(mt&2),2)} {sel2(mt)}")
        for mt in range(4):
            A = acc(j, mt)
            a.e(f"v_cvt_pk_bf16_f32 v{A}, v{A}, v{A+1}")
            a.e(f"v_cvt_pk_bf16_f32 v{A+1}, v{A+2}, v{A+3}")
            so = f"s{sTS}" if mt & 2 else "0"
            a.e(f"buffer_store_dwordx2 {vr(A,2)}, v{vSA+2*j+(mt&1)}, {sr(sWS,4)}, {so} offen")
    k1flush()
    a.e("s_endpgm")
    a.lab("K1_EPI_F")
    c0 = -2.0 * math.sqrt(2.0 / math.pi) * math.log2(math.e)
    c1 = c0 * 0.044715
    vC0, vONE = 64, 66
    a.e(f"v_lshrrev_b32 v{vT+2}, 1, v{vT+2}")
    a.e(f"s_lshl_b32 s{t0}, s{sNQ}, 7")
    a.e(f"s_add_u32 s{t0}, s{t0}, {K1_SCR+2048}")
    a.e(f"v_add_u32 v{vT+2}, s{t0}, v{vT+2}")
    for j in range(4):
        a.e(f"ds_read_b64 {vr(vBB+2*j,2)}, v{vT+2} offset:{32*j}")
    a.e(f"v_mov_b32 v{vC0}, {hx(f32(c0))}")
    a.e(f"v_mov_b32 v{vC0+1}, {hx(f32(c0))}")
    a.e(f"v_mov_b32 v{vONE}, 1.0")
    a.e(f"v_mov_b32 v{vONE+1}, 1.0")
    a.e(f"s_mov_b32 s{sC1}, {hx(f32(c1))}")
    a.e(f"s_mov_b32 s{sC1+1}, {hx(f32(c1))}")
    vBF = 68
    vW = 88
    for j in range(4):
        a.e(f"s_waitcnt lgkmcnt({3-j})")
        a.e(f"v_lshlrev_b32 v{vBF}, 16, v{vBB+2*j}")
        a.e(f"v_and_b32 v{vBF+1}, 0xffff0000, v{vBB+2*j}")
        a.e(f"v_lshlrev_b32 v{vBF+2}, 16, v{vBB+2*j+1}")
        a.e(f"v_and_b32 v{vBF+3}, 0xffff0000, v{vBB+2*j+1}")
        for mp in range(2):
            prs = [(mt, p) for mt in (2 * mp, 2 * mp + 1) for p in range(2)]
            for i, (mt, p) in enumerate(prs):
                A = acc(j, mt) + 2 * p
                a.e(f"v_pk_fma_f32 {vr(A,2)}, {vr(vC4+4*j+2*p,2)}, {vr(vNM+(mt&2),2)}, {vr(A,2)} {sel3(mt)}")
            for i, (mt, p) in enumerate(prs):
                A = acc(j, mt) + 2 * p
                a.e(f"v_pk_fma_f32 {vr(A,2)}, {vr(A,2)}, {vr(vRS+(mt&2),2)}, {vr(vBF+2*p,2)} {sel3(mt)}")
            for i, (mt, p) in enumerate(prs):
                A = acc(j, mt) + 2 * p
                a.e(f"v_pk_mul_f32 {vr(vW+2*i,2)}, {vr(A,2)}, {vr(A,2)}")
            for i, (mt, p) in enumerate(prs):
                a.e(f"v_pk_fma_f32 {vr(vW+2*i,2)}, {vr(vW+2*i,2)}, {sr(sC1,2)}, {vr(vC0,2)}")
            for i, (mt, p) in enumerate(prs):
                A = acc(j, mt) + 2 * p
                a.e(f"v_pk_mul_f32 {vr(vW+2*i,2)}, {vr(vW+2*i,2)}, {vr(A,2)}")
            for i in range(8):
                a.e(f"v_exp_f32 v{vW+i}, v{vW+i}")
            for i in range(4):
                a.e(f"v_pk_add_f32 {vr(vW+2*i,2)}, {vr(vW+2*i,2)}, {vr(vONE,2)}")
            for i in range(8):
                a.e(f"v_rcp_f32 v{vW+i}, v{vW+i}")
            for i, (mt, p) in enumerate(prs):
                A = acc(j, mt) + 2 * p
                a.e(f"v_pk_mul_f32 {vr(A,2)}, {vr(A,2)}, {vr(vW+2*i,2)}")
            for mt in (2 * mp, 2 * mp + 1):
                A = acc(j, mt)
                D = acc(j & ~1, mt) + 2 * (j & 1)
                a.e(f"v_cvt_pk_bf16_f32 v{D}, v{A}, v{A+1}")
                a.e(f"v_cvt_pk_bf16_f32 v{D+1}, v{A+2}, v{A+3}")
                if j & 1:
                    a.e(f"buffer_store_dwordx4 {vr(acc(j-1,mt),4)}, v{vSA+j//2}, {sr(sWS,4)}, 0 offen offset:{256*mt}")
    k1flush()
    a.e("s_endpgm")
    a.lab("K1_EPI_V")
    vNMv, vRSv = 40, 56
    vCSv = 88
    a.e(f"v_add_u32 v{vT+1}, s{t2}, v{vT+2}")
    for mt in range(4):
        a.e(f"ds_read_b128 {vr(vNMv+4*mt,4)}, v{vT+1} offset:{64*mt}")
    for mt in range(4):
        a.e(f"ds_read_b128 {vr(vRSv+4*mt,4)}, v{vT+1} offset:{512+64*mt}")
    a.e(f"v_add_u32 v{vT+3}, s{t3}, v{vT}")
    for j in range(4):
        a.e(f"ds_read_b32 v{vCSv+2*j}, v{vT+3} offset:{64*j}")
    for j in range(4):
        a.e(f"s_waitcnt lgkmcnt({3-j})")
        for mt in range(4):
            A = acc(j, mt)
            for p in range(2):
                a.e(f"v_pk_fma_f32 {vr(A+2*p,2)}, {vr(vNMv+4*mt+2*p,2)}, {vr(vCSv+2*j,2)}, {vr(A+2*p,2)} op_sel:[0,0,0] op_sel_hi:[1,0,1]")
        for mt in range(4):
            A = acc(j, mt)
            for p in range(2):
                a.e(f"v_pk_mul_f32 {vr(A+2*p,2)}, {vr(A+2*p,2)}, {vr(vRSv+4*mt+2*p,2)}")
        for t2_ in range(2):
            A0, A1 = acc(j, 2 * t2_), acc(j, 2 * t2_ + 1)
            a.e(f"v_cvt_pk_bf16_f32 v{A0}, v{A0}, v{A0+1}")
            a.e(f"v_cvt_pk_bf16_f32 v{A0+1}, v{A0+2}, v{A0+3}")
            a.e(f"v_cvt_pk_bf16_f32 v{A0+2}, v{A1}, v{A1+1}")
            a.e(f"v_cvt_pk_bf16_f32 v{A0+3}, v{A1+2}, v{A1+3}")
            a.e(f"buffer_store_dwordx4 {vr(A0,4)}, v{vSA+j}, {sr(sWS,4)}, 0 offen offset:{KVT*t2_}")
    k1flush()
    a.e("s_endpgm")

    a.lab("K1_TRANS")
    sTAU, sSEL0, sSEL1 = 51, 52, 53
    NB_T = 4
    sTs = [24, 28, 36, 40]
    sK = [54, 56, 58, 76]
    vTO = [2, 3, 4, 5]
    vTS = [6, 7, 8, 9]
    vTL = [88, 104, 120, 136]
    a.e(f"s_mul_i32 s{sTAU}, s{sRB}, 12")
    a.e(f"s_add_u32 s{sTAU}, s{sTAU}, s{sW}")
    a.e(f"s_mov_b32 s{sSEL0}, 0x05040100")
    a.e(f"s_mov_b32 s{sSEL1}, 0x07060302")
    a.e(f"v_lshlrev_b32 v{vT}, 2, v{vLANE}")
    a.e(f"v_lshlrev_b32 v{vT+1}, 5, v{vLANE}")
    a.e("s_waitcnt lgkmcnt(0)")
    srd(a, sWS, "s18", "s19", WS_END)
    a.e(f"s_lshl_b32 s{t0}, s{sTAU}, 4")
    a.e(f"v_lshrrev_b32 v{vT+2}, 2, v{vLANE}")
    a.e(f"v_add_u32 v{vT+2}, s{t0}, v{vT+2}")
    a.e(f"v_mul_u32_u24 v{vT+2}, {KVT}, v{vT+2}")
    a.e(f"v_and_b32 v{vT+3}, 3, v{vLANE}")
    a.e(f"v_mul_u32_u24 v{vT+3}, {VP}, v{vT+3}")
    a.e(f"v_add_u32 v{vT+2}, v{vT+2}, v{vT+3}")
    a.e(f"s_cmp_lt_u32 s{sTAU}, 128")
    a.e(f"s_cselect_b32 s{t0}, {hx(KV_OFF + 1280 + 320)}, {hx(OOB)}")
    for i in range(4):
        a.e(f"v_mov_b32 v{12+i}, 0x3f803f80")
    a.e(f"buffer_store_dwordx4 v[12:15], v{vT+2}, {sr(sWS,4)}, s{t0} offen")
    a.e(f"s_cmp_eq_u32 s{sTAU}, 128")
    a.e(f"s_cselect_b32 s{t0}, {hx(FL_OFF)}, {hx(OOB)}")
    for i in range(4):
        a.e(f"v_mov_b32 v{16+i}, 0")
    a.e(f"v_lshlrev_b32 v{vT+3}, 4, v{vLANE}")
    a.e(f"buffer_store_dwordx4 v[16:19], v{vT+3}, {sr(sWS,4)}, s{t0} offen")
    a.e(f"s_mov_b32 s{sIT+3}, 0")
    a.lab("K1_TL")
    for b in range(NB_T):
        T = sTs[b]
        a.e(f"s_mul_i32 s{t1}, s{sTAU}, 13108")
        a.e(f"s_lshr_b32 s{t1}, s{t1}, 16")
        a.e(f"s_mul_i32 s{t2}, s{t1}, 5")
        a.e(f"s_sub_u32 s{t2}, s{sTAU}, s{t2}")
        a.e(f"s_mul_i32 s{t3}, s{t1}, 205")
        a.e(f"s_lshr_b32 s{t3}, s{t3}, 10")
        a.e(f"s_mul_i32 s{t4}, s{t3}, 5")
        a.e(f"s_sub_u32 s{t4}, s{t1}, s{t4}")
        a.e(f"s_mul_i32 s{t3}, s{t3}, 40")
        a.e(f"s_lshr_b32 s{t5}, s{t4}, 1")
        a.e(f"s_mul_i32 s{t5}, s{t5}, 20")
        a.e(f"s_and_b32 s{t6}, s{t4}, 1")
        a.e(f"s_lshl_b32 s{t6}, s{t6}, 2")
        a.e(f"s_add_u32 s{t5}, s{t5}, s{t6}")
        a.e(f"s_add_u32 s{t6}, s{t5}, 8")
        a.e(f"s_cmp_eq_u32 s{t4}, 4")
        a.e(f"s_cselect_b32 s{t5}, 16, s{t5}")
        a.e(f"s_cselect_b32 s{t6}, 36, s{t6}")
        a.e(f"s_add_u32 s{t5}, s{t5}, s{t3}")
        a.e(f"s_add_u32 s{t6}, s{t6}, s{t3}")
        a.e(f"s_sub_u32 s{t3}, s{t1}, 80")
        a.e(f"s_lshr_b32 s{t4}, s{t3}, 2")
        a.e(f"s_lshl_b32 s{t4}, s{t4}, 5")
        a.e(f"s_and_b32 s{t3}, s{t3}, 3")
        a.e(f"s_lshl_b32 s{t3}, s{t3}, 2")
        a.e(f"s_add_u32 s{t3}, s{t3}, s{t4}")
        a.e(f"s_add_u32 s{t4}, s{t3}, 16")
        a.e(f"s_cmp_lt_u32 s{t1}, 80")
        a.e(f"s_cselect_b32 s{t5}, s{t5}, s{t3}")
        a.e(f"s_cselect_b32 s{t6}, s{t6}, s{t4}")
        a.e(f"s_cselect_b32 s{T}, s8, s16")
        a.e(f"s_cselect_b32 s{T+1}, s9, s17")
        a.e(f"s_cselect_b32 s{T+2}, {hx(640*640*2)}, {hx(1728*640*2)}")
        a.e(f"s_mov_b32 s{T+3}, 0x00020000")
        a.e(f"s_mul_i32 s{sK[b]}, s{t5}, 1280")
        a.e(f"s_mul_i32 s{sK[b]+1}, s{t6}, 1280")
        a.e(f"s_lshl_b32 s{t3}, s{t2}, 8")
        a.e(f"v_add_u32 v{vTO[b]}, s{t3}, v{vT}")
        for j in range(8):
            so = sK[b] if j < 4 else sK[b] + 1
            a.e(f"buffer_load_dword v{vTL[b]+j}, v{vTO[b]}, {sr(T,4)}, s{so} offen offset:{(j&3)*1280}")
        a.e(f"s_mul_i32 s{t1}, s{t1}, 10240")
        a.e(f"s_lshl_b32 s{t2}, s{t2}, 11")
        a.e(f"s_add_u32 s{t1}, s{t1}, s{t2}")
        a.e(f"s_add_u32 s{t1}, s{t1}, {hx(WT_OFF)}")
        a.e(f"s_cmp_lt_u32 s{sTAU}, 1480")
        a.e(f"s_cselect_b32 s{t1}, s{t1}, {hx(OOB)}")
        a.e(f"v_add_u32 v{vTS[b]}, s{t1}, v{vT+1}")
        a.e(f"s_add_u32 s{sTAU}, s{sTAU}, 192")
    for b in range(NB_T):
        a.e(f"s_waitcnt vmcnt({8*(NB_T-1-b) + 2*b})")
        for i in range(4):
            a.e(f"v_perm_b32 v{vTL[b]+8+i}, v{vTL[b]+2*i+1}, v{vTL[b]+2*i}, s{sSEL0}")
            a.e(f"v_perm_b32 v{vTL[b]+12+i}, v{vTL[b]+2*i+1}, v{vTL[b]+2*i}, s{sSEL1}")
        a.e(f"buffer_store_dwordx4 {vr(vTL[b]+8,4)}, v{vTS[b]}, {sr(sWS,4)}, 0 offen")
        a.e(f"buffer_store_dwordx4 {vr(vTL[b]+12,4)}, v{vTS[b]}, {sr(sWS,4)}, 0 offen offset:16")
    a.e(f"s_add_u32 s{sIT+3}, s{sIT+3}, 1")
    a.e(f"s_cmp_lt_u32 s{sIT+3}, 2")
    a.e("s_cbranch_scc1 K1_TL")
    if DIAG:
        for i in (1, 2, 3, 5):
            stamp(a, i)
    k1flush()
    a.lab("K1_END")
    a.e("s_endpgm")
    return name, NV, 102 if DIAG else 80, (256, 768, K1_LDS)


K2_LDS = 163840
Y_OFF = 0x1400000
Y_SIZE = 2048 * 640 * 4
WS_ALL = Y_OFF + Y_SIZE


def gen_k2(a):
    name = "k2_attn_kernel"
    kernel_header(a, name)
    X2 = os.environ.get("K2X", "")
    sWS, sKV = 12, 16
    sW, sH, sQT, sOFF, sIT, sG = 20, 21, 22, 23, 24, 25
    sLD = 26
    t0, t1, t2, t3 = 28, 29, 30, 31
    sBM = 32
    vLANE = 1
    vL16, vKa, vKb, vV = 2, 3, 4, 5
    vT = 6
    QA, QB = [12, 20], [16, 24]
    KA, KB = 28, 32
    V0, V1 = 36, 40
    P0, P1 = 44, 48
    O = [64, 80]
    S = [96, 112]
    NV = 168
    RG = 81920
    FUSE = "u" not in X2
    k2flush = lambda: (stamp(a, 4), stamp_flush(a, 1, 12, sW, "s4", "s5", 8, 2))

    a.e("s_cmp_ge_u32 s2, 256")
    a.e("s_cbranch_scc1 K2_END")
    stamp(a, 0)
    a.e("s_load_dwordx2 s[4:5], s[0:1], 80")
    a.e("s_load_dwordx2 s[6:7], s[0:1], 0")
    a.e("s_load_dwordx2 s[8:9], s[0:1], 56")
    a.e("s_load_dwordx4 s[60:63], s[0:1], 64")
    a.e(f"v_and_b32 v{vLANE}, 63, v0")
    a.e(f"v_lshrrev_b32 v{vT}, 6, v0")
    a.e(f"s_and_b32 s{t0}, s2, 7")
    a.e(f"v_readfirstlane_b32 s{sW}, v{vT}")
    a.e(f"s_lshr_b32 s{t1}, s2, 3")
    a.e(f"s_lshl_b32 s{t2}, s{t0}, 2")
    a.e(f"s_and_b32 s{t3}, s{t1}, 3")
    a.e(f"s_add_u32 s{sH}, s{t2}, s{t3}")
    a.e(f"v_lshlrev_b32 v{vL16}, 4, v{vLANE}")
    a.e(f"s_mul_i32 s{t2}, s{sH}, {KVH}")
    a.e(f"s_add_u32 s{t2}, s{t2}, {hx(KV_OFF)}")
    a.e("s_waitcnt lgkmcnt(0)")
    stamp(a, 5)
    a.e(f"s_add_u32 s{sKV}, s4, s{t2}")
    a.e(f"s_addc_u32 s{sKV+1}, s5, 0")
    a.e(f"s_mov_b32 s{sKV+2}, {KVH}")
    a.e(f"s_mov_b32 s{sKV+3}, 0x00020000")
    a.e(f"s_cmp_ge_u32 s{sW}, 4")
    a.e("s_cbranch_scc1 K2_ATT")
    sA, sWT, sXX, sB2, sY = 36, 40, 44, 48, 52
    sRB, sCB, sOA, sOW = 56, 57, 58, 59
    vOA, vOW, vXO, vBO, vYO = 3, 4, 5, 12, 13
    F = 16
    ACC = 88

    def fA(s_, mt):
        return F + 36 * s_ + 4 * mt

    def fW(s_, t):
        return F + 36 * s_ + 16 + 4 * t

    def kvdma(n):
        for t in range(n):
            a.e(f"s_mov_b32 m0, s{sLD}")
            a.e(f"s_add_u32 s{sLD}, s{sLD}, 2048")
            a.e(f"buffer_load_dwordx4 v{vL16}, {sr(sKV,4)}, s{sOFF} offen lds")
            a.e(f"s_add_u32 s{sOFF}, s{sOFF}, 2048")

    a.e("s_setprio 3")
    a.e(f"s_and_b32 s{t2}, s{sW}, 1")
    a.e(f"s_lshr_b32 s{t3}, s{sW}, 1")
    a.e(f"s_lshl_b32 s{t3}, s{t3}, 10")
    a.e(f"s_mul_i32 s{sOFF}, s{t2}, {32*KVT}")
    a.e(f"s_add_u32 s{sOFF}, s{sOFF}, s{t3}")
    a.e(f"s_mul_i32 s{sLD}, s{t2}, {RG}")
    a.e(f"s_add_u32 s{sLD}, s{sLD}, s{t3}")
    kvdma(9)
    a.e(f"s_lshl_b32 s{t0}, s{t0}, 2")
    a.e(f"s_and_b32 s{t2}, s{t1}, 3")
    a.e(f"s_add_u32 s{sRB}, s{t0}, s{t2}")
    a.e(f"s_lshr_b32 s{sCB}, s{t1}, 2")
    srd_off(a, sA, "s4", "s5", AB_OFF + 80 * 32768, AB_SIZE - 80 * 32768)
    srd_off(a, sWT, "s4", "s5", WT_OFF + 80 * 10240, WT_SIZE - 80 * 10240)
    srd(a, sXX, "s6", "s7", 2048 * 640 * 2)
    srd(a, sB2, "s8", "s9", 640 * 2)
    srd_off(a, sY, "s4", "s5", Y_OFF, Y_SIZE)
    a.e(f"v_and_b32 v{vT}, 15, v{vLANE}")
    a.e(f"v_lshrrev_b32 v{vT+1}, 4, v{vLANE}")
    a.e(f"s_lshl_b32 s{t0}, s{sRB}, 6")
    a.e(f"v_add_u32 v{vT+2}, s{t0}, v{vT}")
    a.e(f"v_lshlrev_b32 v{vOA}, 4, v{vT+2}")
    a.e(f"v_lshl_add_u32 v{vOA}, v{vT+1}, 15, v{vOA}")
    a.e(f"s_mul_i32 s{t1}, s{sCB}, 80")
    a.e(f"v_add_u32 v{vT+3}, s{t1}, v{vT}")
    a.e(f"v_lshlrev_b32 v{vOW}, 4, v{vT+3}")
    a.e(f"v_mul_u32_u24 v{vT+3}, 10240, v{vT+1}")
    a.e(f"v_add_u32 v{vOW}, v{vOW}, v{vT+3}")
    a.e(f"s_lshl_b32 s{sOA}, s{sW}, 17")
    a.e(f"s_mul_i32 s{sOW}, s{sW}, 40960")
    a.e(f"v_lshlrev_b32 v{vBO}, 3, v{vT+1}")
    a.e(f"s_lshl_b32 s{t2}, s{t1}, 1")
    a.e(f"v_add_u32 v{vBO}, s{t2}, v{vBO}")
    a.e(f"s_lshl_b32 s{t2}, s{sW}, 4")
    a.e(f"v_add_u32 v{vT+2}, s{t2}, v{vT+2}")
    a.e(f"v_mul_u32_u24 v{vXO}, 1280, v{vT+2}")
    a.e(f"v_add_u32 v{vXO}, v{vXO}, v{vBO}")
    a.e(f"s_lshl_b32 s{t0}, s{sRB}, 3")
    a.e(f"s_add_u32 s{t0}, s{t0}, s{sCB}")
    a.e(f"s_mul_i32 s{t0}, s{t0}, 20480")
    a.e(f"s_mul_i32 s{t2}, s{sW}, 5120")
    a.e(f"s_add_u32 s{t0}, s{t0}, s{t2}")
    a.e(f"v_add_u32 v{vYO}, s{t0}, v{vL16}")
    for i in range(80):
        a.e(f"v_mov_b32 v{ACC+i}, 0")
    a.e(f"s_mov_b32 s{sIT}, 0")
    a.e(f"s_mov_b32 s{sBM}, {hx((1 << 1) | (1 << 4))}")
    a.e(f"v_mov_b32 v{vT}, 0")
    a.e("s_waitcnt vmcnt(3)")
    a.e("s_barrier")
    stamp(a, 1)
    kvdma(31)

    def loads(s_):
        r = [f"buffer_load_dwordx4 {vr(fA(s_,mt),4)}, v{vOA}, {sr(sA,4)}, s{sOA} offen offset:{256*mt}" for mt in range(4)]
        for t in range(5):
            r.append(f"buffer_load_dwordx4 {vr(fW(s_,t),4)}, v{vOW}, {sr(sWT,4)}, s{sOW} offen offset:{256*t}")
        r.append(f"s_add_u32 s{sOA}, s{sOA}, {4*131072}")
        r.append(f"s_add_u32 s{sOW}, s{sOW}, {4*40960}")
        return r

    for s_ in range(2):
        for ins in loads(s_):
            a.e(ins)
    a.e("s_waitcnt vmcnt(49)")
    a.e("s_barrier")
    stamp(a, 2)
    a.e(f"ds_write_b32 v{vT}, v{vT}")
    if "n" in X2:
        a.e("s_waitcnt vmcnt(0)")
        a.e("s_barrier")
        stamp(a, 3)
        k2flush()
        a.e("s_endpgm")
    a.e(f"s_setprio {3 if 'Z' in X2 else (1 if 'y' in X2 else 0)}")
    a.raw(".p2align 3")
    a.lab("K2_GL")
    for s_ in range(2):
        ld = loads(s_)
        a.e("s_waitcnt vmcnt(9)")
        for t in range(5):
            for mt in range(4):
                A_ = ACC + 20 * mt + 4 * t
                a.e(f"v_mfma_f32_16x16x32_bf16 {vr(A_,4)}, {vr(fW(s_,t),4)}, {vr(fA(s_,mt),4)}, {vr(A_,4)}")
                if t == 4:
                    a.e(ld[mt])
            a.e(ld[4 + t])
        a.e(ld[9]); a.e(ld[10])
    a.e(f"s_add_u32 s{sIT}, s{sIT}, 1")
    a.e(f"s_bitcmp0_b32 s{sBM}, s{sIT}")
    a.e("s_cbranch_scc1 K2_GNB")
    a.e("s_waitcnt lgkmcnt(0)")
    a.e("s_barrier")
    a.lab("K2_GNB")
    a.e(f"s_cmp_lt_u32 s{sIT}, 7")
    a.e("s_cbranch_scc1 K2_GL")
    stamp(a, 3)
    a.e("s_setprio 3")
    a.e("s_waitcnt vmcnt(0)")
    XR = 68
    for q in range(5):
        a.e(f"buffer_load_dwordx2 {vr(XR+2*q,2)}, v{vXO}, {sr(sXX,4)}, 0 offen offset:{32*q}")
        a.e(f"buffer_load_dwordx2 {vr(XR+10+2*q,2)}, v{vBO}, {sr(sB2,4)}, 0 offen offset:{32*q}")
    a.e(f"s_lshr_b32 s{t0}, s{sW}, 1")
    a.e(f"s_mul_i32 s{t0}, s{t0}, {RG}")
    a.e(f"s_and_b32 s{t1}, s{sW}, 1")
    a.e(f"s_mul_i32 s{t1}, s{t1}, 20480")
    a.e(f"s_add_u32 s{t0}, s{t0}, s{t1}")
    a.e(f"s_add_u32 s{t0}, s{t0}, 1024")
    a.e(f"v_add_u32 v{vT+1}, s{t0}, v{vL16}")
    for q in range(20):
        a.e(f"ds_write_b128 v{vT+1}, {vr(ACC+4*q,4)} offset:{1024*q}")
    a.e(f"v_mov_b32 v{vT+2}, 1")
    a.e("s_waitcnt lgkmcnt(0)")
    a.e("s_mov_b64 exec, 1")
    a.e(f"ds_add_u32 v{vT}, v{vT+2}")
    a.e("s_mov_b64 exec, -1")
    a.e("s_setprio 0")
    a.lab("K2_POLL")
    a.e(f"ds_read_b32 v{vT+3}, v{vT}")
    a.e("s_waitcnt lgkmcnt(0)")
    a.e(f"v_readfirstlane_b32 s{t0}, v{vT+3}")
    a.e(f"s_cmp_lt_u32 s{t0}, 4")
    a.e("s_cbranch_scc1 K2_POLL")
    a.e("s_setprio 3")
    a.e(f"s_mul_i32 s{t0}, s{sW}, 5120")
    a.e(f"s_add_u32 s{t0}, s{t0}, 1024")
    a.e(f"v_add_u32 v{vT+1}, s{t0}, v{vL16}")
    a.e(f"v_add_u32 v{vT+2}, {RG}, v{vT+1}")
    R = ACC
    for q in range(5):
        for wv in range(4):
            base = vT + 1 if wv < 2 else vT + 2
            a.e(f"ds_read_b128 {vr(R+16*q+4*wv,4)}, v{base} offset:{(wv&1)*20480 + 1024*q}")
    a.e(f"s_movk_i32 s{t1}, 4096")
    a.e("s_waitcnt vmcnt(0)")
    for q in range(5):
        a.e(f"s_waitcnt lgkmcnt({min(15,4*(4-q))})")
        b = R + 16 * q
        for i in range(4):
            a.e(f"v_add_f32 v{b+i}, v{b+i}, v{b+4+i}")
            a.e(f"v_add_f32 v{b+8+i}, v{b+8+i}, v{b+12+i}")
        for i in range(4):
            a.e(f"v_add_f32 v{b+i}, v{b+i}, v{b+8+i}")
        for k, src in enumerate((XR + 2 * q, XR + 10 + 2 * q)):
            u = b + 4 + 4 * k
            a.e(f"v_lshlrev_b32 v{u}, 16, v{src}")
            a.e(f"v_and_b32 v{u+1}, 0xffff0000, v{src}")
            a.e(f"v_lshlrev_b32 v{u+2}, 16, v{src+1}")
            a.e(f"v_and_b32 v{u+3}, 0xffff0000, v{src+1}")
        for i in range(4):
            a.e(f"v_add_f32 v{b+i}, v{b+i}, v{b+4+i}")
        for i in range(4):
            a.e(f"v_add_f32 v{b+i}, v{b+i}, v{b+8+i}")
        if not FUSE:
            so, off = ("0", 1024 * q) if q < 4 else (f"s{t1}", 0)
            a.e(f"buffer_store_dwordx4 {vr(b,4)}, v{vYO}, {sr(sY,4)}, {so} offen offset:{off}")
    if FUSE:
        YA = [R + 16 * q for q in range(5)]
        a.e("s_barrier")
        srd_off(a, sWT, "s4", "s5", WT_OFF, 80 * 10240)
        srd_off(a, sA, "s4", "s5", AB_OFF, 80 * 32768)
        srd(a, sY, "s60", "s61", 2048 * 640 * 2)
        srd_off(a, sB2, "s4", "s5", FL_OFF, 1024)
        a.e(f"s_mul_i32 s{sOW}, s{sW}, {5*40960}")
        a.e(f"s_lshr_b32 s{t0}, s{sW}, 1")
        a.e(f"s_mul_i32 s{t0}, s{t0}, {RG}")
        a.e(f"s_and_b32 s{t1}, s{sW}, 1")
        a.e(f"s_mul_i32 s{t1}, s{t1}, 25600")
        a.e(f"s_add_u32 s{t0}, s{t0}, s{t1}")
        for r in range(5):
            for q in range(5):
                a.e(f"s_add_u32 m0, s{t0}, {r*5120 + q*768}")
                a.e("s_nop 0")
                a.e(f"buffer_load_dwordx4 v{vOW}, {sr(sWT,4)}, s{sOW} offen offset:{256*q} lds")
            a.e(f"s_add_u32 s{sOW}, s{sOW}, 40960")
        a.e(f"s_lshl_b32 s{t2}, s{sW}, 8")
        a.e(f"v_add_u32 v{vOA}, s{t2}, v{vOA}")
        a.e(f"v_add_u32 v{vT+2}, {RG}, v{vL16}")
        a.e(f"v_mov_b32 v{vT+1}, 1")
        a.e(f"s_lshr_b32 s{t2}, s2, 5")
        a.e(f"s_lshl_b32 s{t2}, s{t2}, 5")
        a.e(f"s_add_u32 s{t2}, s{t2}, s{sH}")
        a.e(f"s_lshl_b32 s{t2}, s{t2}, 2")
        a.e(f"s_lshr_b32 s{t3}, s{sRB}, 2")
        a.e(f"s_lshl_b32 s{t3}, s{t3}, 7")
        a.e(f"v_lshlrev_b32 v{vT+4}, 2, v{vLANE}")
        a.e("s_barrier")
        a.e("s_waitcnt vmcnt(0)")
        a.e("s_barrier")
        stamp(a, 1)
        a.e(f"s_cmp_lg_u32 s{sW}, 0")
        a.e("s_cbranch_scc1 K2_PW")
        a.e("s_mov_b64 exec, 1")
        a.e(f"buffer_store_dword v{vT+1}, v{vT}, {sr(sB2,4)}, s{t2} offen sc1")
        a.e("s_mov_b32 exec_lo, -1")
        a.e(f"s_mov_b32 s{sIT}, 0")
        a.lab("K2_GP")
        a.e(f"buffer_load_dword v{vT+3}, v{vT+4}, {sr(sB2,4)}, s{t3} offen sc1")
        a.e(f"s_add_u32 s{sIT}, s{sIT}, 1")
        a.e("s_waitcnt vmcnt(0)")
        a.e(f"v_cmp_ne_u32 vcc, 1, v{vT+3}")
        a.e(f"s_cmp_ge_u32 s{sIT}, {1 << 21}")
        a.e("s_cbranch_scc1 K2_GPD")
        a.e("s_cbranch_vccz K2_GPD")
        a.e("s_sleep 4")
        a.e("s_branch K2_GP")
        a.lab("K2_GPD")
        a.e("s_mov_b64 exec, -1")
        a.lab("K2_PW")
        a.e("s_barrier")
        stamp(a, 2)
        FAr = [16 + 4 * i for i in range(18)] + [R + 4, R + 8]
        FBr = [[R + 20, R + 24, R + 28, R + 36, R + 40], [R + 44, R + 52, R + 56, R + 60, R + 68]]
        a.e(f"s_mov_b32 s{sOA}, 0")
        for ks in range(20):
            a.e(f"buffer_load_dwordx4 {vr(FAr[ks],4)}, v{vOA}, {sr(sA,4)}, s{sOA} offen sc1")
            a.e(f"s_add_u32 s{sOA}, s{sOA}, 131072")

        def rdB(ks):
            base, off = (vL16, ks * 5120) if ks < 10 else (vT + 2, (ks - 10) * 5120)
            return [f"ds_read_b128 {vr(FBr[ks&1][t],4)}, v{base} offset:{off+1024*t}" for t in range(5)]

        for ins in rdB(0):
            a.e(ins)
        for ks in range(20):
            if ks < 19:
                for ins in rdB(ks + 1):
                    a.e(ins)
            a.e(f"s_waitcnt vmcnt({19-ks}) lgkmcnt({5 if ks < 19 else 0})")
            for t in range(5):
                a.e(f"v_mfma_f32_16x16x32_bf16 {vr(YA[t],4)}, {vr(FBr[ks&1][t],4)}, {vr(FAr[ks],4)}, {vr(YA[t],4)}")
        a.e("s_nop 7")
        for t in range(5):
            A_ = YA[t]
            a.e(f"v_cvt_pk_bf16_f32 v{A_}, v{A_}, v{A_+1}")
            a.e(f"v_cvt_pk_bf16_f32 v{A_+1}, v{A_+2}, v{A_+3}")
            a.e(f"buffer_store_dwordx2 {vr(A_,2)}, v{vXO}, {sr(sY,4)}, 0 offen offset:{32*t}")
    k2flush()
    a.e("s_endpgm")

    a.lab("K2_ATT")
    vKa0, vKb0, vV0 = 52, 53, 54
    srd(a, sWS, "s4", "s5", WS_END)
    a.e(f"s_lshr_b32 s{sG}, s{sW}, 3")
    a.e(f"s_lshr_b32 s{t1}, s{t1}, 2")
    a.e(f"s_lshl_b32 s{t1}, s{t1}, 3")
    a.e(f"s_and_b32 s{t2}, s{sW}, 3")
    a.e(f"s_lshl_b32 s{t2}, s{t2}, 1")
    a.e(f"s_add_u32 s{sQT}, s{t1}, s{t2}")
    a.e(f"s_mul_i32 s{t0}, s{sH}, 81920")
    a.e(f"s_mul_i32 s{t1}, s{sQT}, 1280")
    a.e(f"s_add_u32 s{t0}, s{t0}, s{t1}")
    if QB_OFF:
        a.e(f"s_add_u32 s{t0}, s{t0}, {hx(QB_OFF)}")
    a.e(f"v_and_b32 v{vT}, 31, v{vLANE}")
    a.e(f"v_lshrrev_b32 v{vT+1}, 5, v{vLANE}")
    a.e(f"v_lshlrev_b32 v{vKb0}, 3, v{vT}")
    a.e(f"v_lshl_add_u32 v{vT+2}, v{vT+1}, 30, v{vKb0}")
    a.e(f"v_add_u32 v{vKb0}, 1024, v{vKb0}")
    a.e(f"v_mov_b32 v{vKa0}, v{vL16}")
    a.e(f"v_min_u32 v{vT+3}, 20, v{vT}")
    a.e(f"v_mul_u32_u24 v{vV0}, {VP}, v{vT+1}")
    a.e(f"v_lshl_add_u32 v{vV0}, v{vT+3}, 4, v{vV0}")
    a.e(f"v_add_u32 v{vV0}, 1280, v{vV0}")
    a.e(f"s_mul_i32 s{sOFF}, s{sG}, {32*KVT}")
    a.e(f"s_add_u32 s{sOFF}, s{sOFF}, {31*KVT}")
    a.e(f"buffer_load_dwordx4 {vr(QA[0],4)}, v{vL16}, {sr(sWS,4)}, s{t0} offen")
    a.e(f"buffer_load_dwordx2 {vr(QB[0],2)}, v{vT+2}, {sr(sWS,4)}, s{t0} offen offset:1024")
    a.e(f"buffer_load_dwordx4 {vr(KA,4)}, v{vKa0}, {sr(sKV,4)}, s{sOFF} offen")
    a.e(f"buffer_load_dwordx2 {vr(KB,2)}, v{vKb0}, {sr(sKV,4)}, s{sOFF} offen")
    a.e(f"buffer_load_dwordx4 {vr(QA[1],4)}, v{vL16}, {sr(sWS,4)}, s{t0} offen offset:1280")
    a.e(f"buffer_load_dwordx2 {vr(QB[1],2)}, v{vT+2}, {sr(sWS,4)}, s{t0} offen offset:2304")
    a.e(f"buffer_load_dwordx4 {vr(V0,4)}, v{vV0}, {sr(sKV,4)}, s{sOFF} offen")
    a.e(f"buffer_load_dwordx4 {vr(V1,4)}, v{vV0}, {sr(sKV,4)}, s{sOFF} offen offset:{2*VP}")
    a.e(f"s_mul_i32 s{t1}, s{sG}, {RG}")
    a.e(f"v_add_u32 v{vKa}, s{t1}, v{vKa0}")
    a.e(f"v_add_u32 v{vKb}, s{t1}, v{vKb0}")
    a.e(f"v_add_u32 v{vV}, s{t1}, v{vV0}")
    for i in range(32):
        a.e(f"v_mov_b32 v{O[0]+i}, 0")
    a.e(f"s_mov_b32 s{sIT}, 0")
    a.e(f"s_mov_b32 s{sBM}, {hx((1 << 1) | (1 << 2) | (1 << 6) | (1 << 9))}")
    a.e("s_waitcnt vmcnt(4)")
    a.e(f"v_mfma_f32_32x32x16_bf16 {vr(S[0],16)}, {vr(KA,4)}, {vr(QA[0],4)}, 0")
    a.e(f"v_mfma_f32_32x32x8_bf16 {vr(S[0],16)}, {vr(KB,2)}, {vr(QB[0],2)}, {vr(S[0],16)}")
    a.e("s_waitcnt vmcnt(0)")
    a.e("s_nop 7")
    a.e("s_barrier")
    stamp(a, 1)

    def rdKa(t):
        return f"ds_read_b128 {vr(KA,4)}, v{vKa} offset:{KVT*t}"

    def rdKb(t):
        return f"ds_read_b64 {vr(KB,2)}, v{vKb} offset:{KVT*t}"

    def rdV(m, t):
        return f"ds_read_b128 {vr(V0 if m == 0 else V1,4)}, v{vV} offset:{KVT*t + 2*VP*m}"

    def item(x, lt, first=False, last=False):
        Sc, Sn = S[x], S[x ^ 1]

        def ex(lo):
            for i in range(lo, lo + 4):
                a.e(f"v_exp_f32 v{Sc+i}, v{Sc+i}")

        def cv(P, lo):
            a.e(f"v_cvt_pk_bf16_f32 v{P}, v{Sc+lo}, v{Sc+lo+1}")
            a.e(f"v_cvt_pk_bf16_f32 v{P+1}, v{Sc+lo+2}, v{Sc+lo+3}")

        doqk = not (last and x == 1)
        if x == 1 and doqk:
            a.e(f"s_waitcnt lgkmcnt({1 if first else 2})")
        if doqk:
            a.e(f"v_mfma_f32_32x32x16_bf16 {vr(Sn,16)}, {vr(KA,4)}, {vr(QA[x^1],4)}, 0")
        if x == 0 and not last:
            a.e(rdKa(lt + 1))
        ex(0)
        cv(P0, 0)
        if x == 1 and doqk:
            a.e(f"s_waitcnt lgkmcnt({0 if first else 1})")
        if doqk:
            a.e(f"v_mfma_f32_32x32x8_bf16 {vr(Sn,16)}, {vr(KB,2)}, {vr(QB[x^1],2)}, {vr(Sn,16)}")
        if x == 0 and not last:
            a.e(rdKb(lt + 1))
        ex(4)
        cv(P0 + 2, 4)
        if not (first and x == 0):
            if x == 1 and not first:
                a.e("s_waitcnt lgkmcnt(0)")
            a.e(f"v_mfma_f32_32x32x16_bf16 {vr(O[x^1],16)}, {vr(V1,4)}, {vr(P1,4)}, {vr(O[x^1],16)}")
            if x == 0:
                a.e(rdV(1, lt))
        ex(8)
        cv(P1, 8)
        if x == 0 and not first:
            a.e(f"s_waitcnt lgkmcnt({1 if last else 3})")
        a.e(f"v_mfma_f32_32x32x16_bf16 {vr(O[x],16)}, {vr(V0,4)}, {vr(P0,4)}, {vr(O[x],16)}")
        if x == 1 and not last:
            a.e(rdV(0, lt + 1))
        ex(12)
        cv(P1 + 2, 12)

    def item_b(x, lt, first=False, last=False):
        Sc, Sn = S[x], S[x ^ 1]
        doqk = not (last and x == 1)
        dopv = not (first and x == 0)
        G = int(os.environ.get("K2G", "4"))
        ms = []
        if doqk:
            m = []
            if x == 1:
                m.append(f"s_waitcnt lgkmcnt({1 if first else 3})")
            m.append(f"v_mfma_f32_32x32x16_bf16 {vr(Sn,16)}, {vr(KA,4)}, {vr(QA[x^1],4)}, 0")
            if x == 0 and not last:
                m.append(rdKa(lt + 1))
            ms.append(m)
            m = []
            if x == 1:
                m.append(f"s_waitcnt lgkmcnt({0 if first else 2})")
            m.append(f"v_mfma_f32_32x32x8_bf16 {vr(Sn,16)}, {vr(KB,2)}, {vr(QB[x^1],2)}, {vr(Sn,16)}")
            if x == 0 and not last:
                m.append(rdKb(lt + 1))
            ms.append(m)
        else:
            ms.append(["s_nop 1"])
        if dopv:
            m = []
            if x == 1 and not first:
                m.append("s_waitcnt lgkmcnt(1)")
            m.append(f"v_mfma_f32_32x32x16_bf16 {vr(O[x^1],16)}, {vr(V0,4)}, {vr(PP[x^1],4)}, {vr(O[x^1],16)}")
            if x == 0:
                m.append(rdV(0, lt))
            ms.append(m)
            m = []
            if x == 1 and not first:
                m.append("s_waitcnt lgkmcnt(0)")
            m.append(f"v_mfma_f32_32x32x16_bf16 {vr(O[x^1],16)}, {vr(V1,4)}, {vr(PP[x^1]+4,4)}, {vr(O[x^1],16)}")
            if x == 0:
                m.append(rdV(1, lt))
            ms.append(m)
        vs = []
        for g in range(4):
            v = [f"v_exp_f32 v{Sc+4*g+i}, v{Sc+4*g+i}" for i in range(4)]
            v.append(f"v_cvt_pk_bf16_f32 v{PP[x]+2*g}, v{Sc+4*g}, v{Sc+4*g+1}")
            v.append(f"v_cvt_pk_bf16_f32 v{PP[x]+2*g+1}, v{Sc+4*g+2}, v{Sc+4*g+3}")
            vs.append(v)
        mi = vi = 0
        while mi < len(ms) or vi < len(vs):
            for _ in range(G):
                if mi < len(ms):
                    for ins in ms[mi]:
                        a.e(ins)
                    mi += 1
            for _ in range(G):
                if vi < len(vs):
                    for ins in vs[vi]:
                        a.e(ins)
                    vi += 1

    BUNCH = "b" in X2
    PP = [P0, 128]
    if BUNCH:
        item = item_b
    a.e("s_setprio 2")
    item(0, -1, first=True)
    item(1, -1, first=True)
    a.raw(".p2align 6")
    a.lab("K2_LOOP")
    a.e(f"s_bitcmp1_b32 s{sBM}, s{sIT}")
    a.e("s_cbranch_scc1 K2_BAR")
    a.lab("K2_BODY")
    NT = 3
    for t in range(NT):
        for x in range(2):
            if "p" in X2:
                if 2 * t + x == 0:
                    a.e("s_setprio 2")
                if 2 * t + x == NT:
                    a.e("s_setprio 1")
            else:
                a.e(f"s_setprio {2 - x}")
            item(x, t)
    a.e(f"v_add_u32 v{vKa}, {KVT*NT}, v{vKa}")
    a.e(f"v_add_u32 v{vKb}, {KVT*NT}, v{vKb}")
    a.e(f"v_add_u32 v{vV}, {KVT*NT}, v{vV}")
    a.e(f"s_add_u32 s{sIT}, s{sIT}, 1")
    a.e(f"s_cmp_lt_u32 s{sIT}, 10")
    a.e("s_cbranch_scc1 K2_LOOP")
    item(0, 0, last=True)
    item(1, 0, last=True)
    stamp(a, 3)
    a.e("s_nop 1")
    if BUNCH:
        a.e(f"v_mfma_f32_32x32x16_bf16 {vr(O[1],16)}, {vr(V0,4)}, {vr(PP[1],4)}, {vr(O[1],16)}")
        a.e(f"v_mfma_f32_32x32x16_bf16 {vr(O[1],16)}, {vr(V1,4)}, {vr(PP[1]+4,4)}, {vr(O[1],16)}")
    else:
        a.e(f"v_mfma_f32_32x32x16_bf16 {vr(O[1],16)}, {vr(V1,4)}, {vr(P1,4)}, {vr(O[1],16)}")
    a.e(f"s_and_b32 s{t2}, s{sW}, 3")
    a.e(f"s_lshl_b32 s{t2}, s{t2}, 12")
    a.e(f"s_add_u32 s{t2}, s{t2}, 53248")
    a.e(f"s_mul_i32 s{t0}, s{sG}, {RG}")
    a.e(f"s_add_u32 s{t0}, s{t0}, s{t2}")
    a.e(f"s_xor_b32 s{t1}, s{sG}, 1")
    a.e(f"s_mul_i32 s{t1}, s{t1}, {RG}")
    a.e(f"s_add_u32 s{t1}, s{t1}, s{t2}")
    a.e(f"v_add_u32 v{vT}, s{t0}, v{vL16}")
    a.e(f"v_add_u32 v{vT+1}, s{t1}, v{vL16}")
    a.e(f"s_add_u32 s{sQT}, s{sQT}, s{sG}")
    a.e(f"s_cmp_eq_u32 s{sG}, 1")
    a.e("s_cbranch_scc1 K2_X1")
    a.e("s_nop 3")
    for q in range(4):
        a.e(f"ds_write_b128 v{vT}, {vr(O[1]+4*q,4)} offset:{1024*q}")
    a.e("s_branch K2_X2")
    a.lab("K2_X1")
    for q in range(4):
        a.e(f"ds_write_b128 v{vT}, {vr(O[0]+4*q,4)} offset:{1024*q}")
    a.e("s_nop 1")
    for i in range(16):
        a.e(f"v_mov_b32 v{O[0]+i}, v{O[1]+i}")
    for i in range(4):
        a.e(f"v_mov_b32 v{QA[0]+i}, v{QA[1]+i}")
    for i in range(2):
        a.e(f"v_mov_b32 v{QB[0]+i}, v{QB[1]+i}")
    a.lab("K2_X2")
    OO = O[0]
    sS0, sS1 = 34, 35
    a.e(f"s_lshr_b32 s{t0}, s{sH}, 1")
    a.e(f"s_mul_i32 s{t0}, s{t0}, 5")
    a.e(f"s_and_b32 s{t1}, s{sH}, 1")
    a.e(f"s_lshl_b32 s{t2}, s{t1}, 1")
    a.e(f"s_add_u32 s{t2}, s{t2}, s{t0}")
    a.e(f"s_lshl_b32 s{t2}, s{t2}, 15")
    a.e(f"s_add_u32 s{sS0}, s{t2}, {hx(AB_OFF)}")
    a.e(f"s_add_u32 s{t0}, s{t0}, 4")
    a.e(f"s_lshl_b32 s{t0}, s{t0}, 15")
    a.e(f"s_lshl_b32 s{t1}, s{t1}, 3")
    a.e(f"s_add_u32 s{t0}, s{t0}, s{t1}")
    a.e(f"s_add_u32 s{sS1}, s{t0}, {hx(AB_OFF)}")
    a.e(f"s_lshl_b32 s{t3}, s{sQT}, 9")
    vSA0, vSA1 = 56, 57
    a.e(f"v_and_b32 v{vT+2}, 31, v{vLANE}")
    a.e(f"v_lshlrev_b32 v{vT+2}, 4, v{vT+2}")
    a.e(f"v_add_u32 v{vT+2}, s{t3}, v{vT+2}")
    a.e(f"v_lshrrev_b32 v{vT+3}, 5, v{vLANE}")
    a.e(f"v_lshl_add_u32 v{vSA0}, v{vT+3}, 15, v{vT+2}")
    a.e(f"v_lshl_add_u32 v{vSA1}, v{vT+3}, 30, v{vT+2}")
    a.e("s_waitcnt lgkmcnt(0)")
    a.e("s_barrier")
    for q in range(4):
        a.e(f"ds_read_b128 {vr(S[0]+4*q,4)}, v{vT+1} offset:{1024*q}")
    a.e(f"v_mov_b32 v{vT+3}, {hx(f32(2.0**-60))}")
    a.e(f"v_mov_b32 v{vT+4}, {hx(f32(2.0**100))}")
    a.e(f"v_mov_b32 v{vT+5}, {hx(f32(2.0**120))}")
    a.e("s_waitcnt lgkmcnt(0)")
    for i in range(13):
        a.e(f"v_add_f32 v{OO+i}, v{OO+i}, v{S[0]+i}")
    a.e(f"v_max3_f32 v{vT+1}, abs(v{OO}), abs(v{OO+1}), abs(v{OO+2})")
    for i in range(3, 11, 2):
        a.e(f"v_max3_f32 v{vT+1}, abs(v{OO+i}), abs(v{OO+i+1}), v{vT+1}")
    a.e(f"v_max_f32 v{vT+1}, abs(v{OO+11}), v{vT+1}")
    a.e(f"v_add_f32 v{vT+2}, v{OO}, v{OO+1}")
    for i in range(2, 12):
        a.e(f"v_add_f32 v{vT+2}, v{vT+2}, v{OO+i}")
    a.e(f"v_cmp_gt_f32 {sr(t0,2)}, v{OO+12}, v{vT+3}")
    a.e(f"v_cmp_lt_f32 {sr(t2,2)}, v{OO+12}, v{vT+4}")
    a.e(f"v_cmp_lt_f32 vcc, v{vT+1}, v{vT+5}")
    a.e("s_nop 1")
    a.e(f"s_and_b64 {sr(t0,2)}, {sr(t0,2)}, {sr(t2,2)}")
    a.e(f"s_and_b64 {sr(t0,2)}, {sr(t0,2)}, vcc")
    a.e(f"v_cmp_o_f32 vcc, v{vT+2}, v{vT+2}")
    a.e("s_nop 1")
    a.e(f"s_and_b64 {sr(t0,2)}, {sr(t0,2)}, vcc")
    a.e(f"s_cmp_eq_u64 {sr(t0,2)}, -1")
    a.e("s_cbranch_scc0 K2_SLOW")
    a.lab("K2_FIN")
    a.e(f"v_rcp_f32 v{vT}, v{OO+12}")
    a.e("s_nop 0")
    for i in range(12):
        a.e(f"v_mul_f32 v{OO+i}, v{OO+i}, v{vT}")
    for i in range(6):
        a.e(f"v_cvt_pk_bf16_f32 v{OO+i}, v{OO+2*i}, v{OO+2*i+1}")
    sc = " sc1" if FUSE else ""
    a.e(f"buffer_store_dwordx4 {vr(OO,4)}, v{vSA0}, {sr(sWS,4)}, s{sS0} offen{sc}")
    a.e(f"buffer_store_dwordx2 {vr(OO+4,2)}, v{vSA1}, {sr(sWS,4)}, s{sS1} offen{sc}")
    if FUSE:
        a.e("s_waitcnt vmcnt(0)")
        a.e("s_barrier")
    k2flush()
    a.lab("K2_END")
    a.e("s_endpgm")
    a.lab("K2_BAR")
    a.e("s_barrier")
    stamp(a, 2)
    a.e("s_branch K2_BODY")
    a.lab("K2_SLOW")
    vM = 58
    Sc = S[0]
    for ps in range(2):
        if ps == 0:
            a.e(f"v_mov_b32 v{vM}, 0xff800000")
        else:
            for i in range(16):
                a.e(f"v_mov_b32 v{OO+i}, 0")
        a.e(f"s_mov_b32 s{sOFF}, 0")
        a.lab(f"K2_SL{ps}")
        a.e(f"buffer_load_dwordx4 {vr(KA,4)}, v{vKa0}, {sr(sKV,4)}, s{sOFF} offen")
        a.e(f"buffer_load_dwordx2 {vr(KB,2)}, v{vKb0}, {sr(sKV,4)}, s{sOFF} offen")
        if ps == 1:
            a.e(f"buffer_load_dwordx4 {vr(V0,4)}, v{vV0}, {sr(sKV,4)}, s{sOFF} offen")
            a.e(f"buffer_load_dwordx4 {vr(V1,4)}, v{vV0}, {sr(sKV,4)}, s{sOFF} offen offset:{2*VP}")
        a.e("s_waitcnt vmcnt(0)")
        a.e(f"v_mfma_f32_32x32x16_bf16 {vr(Sc,16)}, {vr(KA,4)}, {vr(QA[0],4)}, 0")
        a.e(f"v_mfma_f32_32x32x8_bf16 {vr(Sc,16)}, {vr(KB,2)}, {vr(QB[0],2)}, {vr(Sc,16)}")
        a.e("s_nop 15")
        a.e("s_nop 3")
        if ps == 0:
            for i in range(0, 16, 2):
                a.e(f"v_max3_f32 v{vM}, v{Sc+i}, v{Sc+i+1}, v{vM}")
        else:
            for i in range(16):
                a.e(f"v_sub_f32 v{Sc+i}, v{Sc+i}, v{vM}")
            for i in range(16):
                a.e(f"v_exp_f32 v{Sc+i}, v{Sc+i}")
            a.e("s_nop 0")
            for i in range(8):
                a.e(f"v_cvt_pk_bf16_f32 v{P0+i}, v{Sc+2*i}, v{Sc+2*i+1}")
            a.e("s_nop 1")
            a.e(f"v_mfma_f32_32x32x16_bf16 {vr(OO,16)}, {vr(V0,4)}, {vr(P0,4)}, {vr(OO,16)}")
            a.e(f"v_mfma_f32_32x32x16_bf16 {vr(OO,16)}, {vr(V1,4)}, {vr(P1,4)}, {vr(OO,16)}")
            a.e("s_nop 7")
        a.e(f"s_add_u32 s{sOFF}, s{sOFF}, {KVT}")
        a.e(f"s_cmp_lt_u32 s{sOFF}, {KVH}")
        a.e(f"s_cbranch_scc1 K2_SL{ps}")
        if ps == 0:
            a.e(f"v_mov_b32 v{vT+4}, v{vM}")
            a.e("s_nop 1")
            a.e(f"v_permlane32_swap_b32 v{vM}, v{vT+4}")
            a.e(f"v_max_f32 v{vM}, v{vM}, v{vT+4}")
    a.e("s_nop 15")
    a.e("s_nop 3")
    a.e("s_branch K2_FIN")
    return name, NV, 102 if DIAG else 64, (256, 768, K2_LDS)


K3_LDS = 102400


def gen_k3(a):
    name = "k3_out_kernel"
    kernel_header(a, name)
    sA, sWT, sY, sO = 12, 16, 20, 24
    sW, sRB, sCB, sOW, sM = 32, 33, 34, 35, 36
    t0, t1, t2, t3 = 38, 39, 40, 41
    vLANE, vOA, vOW, vYO, vOO, vRD = 1, 2, 3, 4, 5, 6
    vT = 8
    ACC = 12
    FB = 32
    FA = 72
    NV = 152
    k3flush = lambda: (stamp(a, 4), stamp_flush(a, 2, 8, sW, "s6", "s7", 8, 2))

    a.e("s_cmp_ge_u32 s2, 256")
    a.e("s_cbranch_scc1 K3_END")
    stamp(a, 0)
    a.e("s_load_dwordx2 s[4:5], s[0:1], 64")
    a.e("s_load_dwordx2 s[6:7], s[0:1], 80")
    a.e(f"v_and_b32 v{vLANE}, 63, v0")
    a.e(f"v_lshrrev_b32 v{vT}, 6, v0")
    a.e(f"s_and_b32 s{t0}, s2, 7")
    a.e(f"v_readfirstlane_b32 s{sW}, v{vT}")
    a.e(f"s_lshr_b32 s{t1}, s2, 3")
    a.e(f"s_lshl_b32 s{t0}, s{t0}, 2")
    a.e(f"s_and_b32 s{t2}, s{t1}, 3")
    a.e(f"s_add_u32 s{sRB}, s{t0}, s{t2}")
    a.e(f"s_lshr_b32 s{sCB}, s{t1}, 2")
    a.e(f"v_and_b32 v{vT}, 15, v{vLANE}")
    a.e(f"v_lshrrev_b32 v{vT+1}, 4, v{vLANE}")
    a.e(f"s_cmp_ge_u32 s{sW}, 4")
    a.e("s_cbranch_scc1 K3_COMP")
    a.e(f"s_mul_i32 s{t0}, s{sCB}, 80")
    a.e(f"v_add_u32 v{vOW}, s{t0}, v{vT}")
    a.e(f"v_lshlrev_b32 v{vOW}, 4, v{vOW}")
    a.e(f"v_mul_u32_u24 v{vT+2}, 10240, v{vT+1}")
    a.e(f"v_add_u32 v{vOW}, v{vOW}, v{vT+2}")
    a.e(f"s_mul_i32 s{sOW}, s{sW}, 40960")
    a.e(f"s_mul_i32 s{sM}, s{sW}, 5120")
    a.e("s_waitcnt lgkmcnt(0)")
    stamp(a, 5)
    srd_off(a, sWT, "s6", "s7", WT_OFF, 80 * 10240)
    for r in range(5):
        for q in range(5):
            a.e(f"s_add_u32 m0, s{sM}, {r*20480 + q*768}")
            a.e("s_nop 0")
            a.e(f"buffer_load_dwordx4 v{vOW}, {sr(sWT,4)}, s{sOW} offen offset:{256*q} lds")
        a.e(f"s_add_u32 s{sOW}, s{sOW}, {4*40960}")
        if r >= 2:
            a.e(f"s_waitcnt vmcnt(10)")
            a.e("s_barrier")
    a.e(f"s_waitcnt vmcnt(5)")
    a.e("s_barrier")
    a.e(f"s_waitcnt vmcnt(0)")
    a.e("s_barrier")
    if DIAG:
        stamp(a, 1); stamp(a, 2); stamp(a, 3)
        k3flush()
    a.e("s_endpgm")
    a.lab("K3_COMP")
    a.e(f"s_sub_u32 s{t3}, s{sW}, 4")
    a.e(f"s_lshl_b32 s{t0}, s{sRB}, 6")
    a.e(f"s_lshl_b32 s{t1}, s{t3}, 4")
    a.e(f"s_add_u32 s{t0}, s{t0}, s{t1}")
    a.e(f"v_add_u32 v{vT+2}, s{t0}, v{vT}")
    a.e(f"v_lshlrev_b32 v{vOA}, 4, v{vT+2}")
    a.e(f"v_lshl_add_u32 v{vOA}, v{vT+1}, 15, v{vOA}")
    a.e(f"s_lshl_b32 s{t0}, s{sRB}, 3")
    a.e(f"s_add_u32 s{t0}, s{t0}, s{sCB}")
    a.e(f"s_mul_i32 s{t0}, s{t0}, 20480")
    a.e(f"s_mul_i32 s{t1}, s{t3}, 5120")
    a.e(f"s_add_u32 s{t0}, s{t0}, s{t1}")
    a.e(f"v_lshlrev_b32 v{vRD}, 4, v{vLANE}")
    a.e(f"v_add_u32 v{vYO}, s{t0}, v{vRD}")
    a.e(f"s_mul_i32 s{t0}, s{sCB}, 160")
    a.e(f"v_mul_u32_u24 v{vOO}, 1280, v{vT+2}")
    a.e(f"v_lshl_add_u32 v{vOO}, v{vT+1}, 3, v{vOO}")
    a.e(f"v_add_u32 v{vOO}, s{t0}, v{vOO}")
    a.e("s_waitcnt lgkmcnt(0)")
    stamp(a, 5)
    srd_off(a, sA, "s6", "s7", AB_OFF, 80 * 32768)
    srd_off(a, sY, "s6", "s7", Y_OFF, Y_SIZE)
    srd(a, sO, "s4", "s5", 2048 * 640 * 2)
    a.e(f"s_mov_b32 s{t0}, 0")
    a.e(f"s_movk_i32 s{t1}, 4096")
    def ldA(r):
        for ks in range(4 * r, 4 * r + 4):
            a.e(f"buffer_load_dwordx4 {vr(FA+4*ks,4)}, v{vOA}, {sr(sA,4)}, s{t0} offen")
            a.e(f"s_add_u32 s{t0}, s{t0}, {4*32768}")

    ldA(0)
    for t in range(5):
        so, off = ("0", 1024 * t) if t < 4 else (f"s{t1}", 0)
        a.e(f"buffer_load_dwordx4 {vr(ACC+4*t,4)}, v{vYO}, {sr(sY,4)}, {so} offen offset:{off}")
    ldA(1)
    ldA(2)
    a.e(f"v_add_u32 v{vT}, 51200, v{vRD}")

    def rdB(ks):
        base, off = (vRD, ks * 5120) if ks < 10 else (vT, (ks - 10) * 5120)
        return [f"ds_read_b128 {vr(FB+20*(ks&1)+4*t,4)}, v{base} offset:{off+1024*t}" for t in range(5)]

    for r in range(5):
        a.e("s_barrier")
        if r == 0:
            stamp(a, 1)
        for ins in rdB(4 * r):
            a.e(ins)
        if r < 2:
            ldA(r + 3)
        a.e(f"s_waitcnt vmcnt({[12, 12, 8, 4, 0][r]})")
        for k in range(4):
            ks = 4 * r + k
            if k < 3:
                for ins in rdB(ks + 1):
                    a.e(ins)
                a.e("s_waitcnt lgkmcnt(5)")
            else:
                a.e("s_waitcnt lgkmcnt(0)")
            for t in range(5):
                a.e(f"v_mfma_f32_16x16x32_bf16 {vr(ACC+4*t,4)}, {vr(FB+20*(ks&1)+4*t,4)}, {vr(FA+4*ks,4)}, {vr(ACC+4*t,4)}")
    stamp(a, 2)
    stamp(a, 3)
    a.e("s_nop 7")
    for t in range(5):
        A = ACC + 4 * t
        a.e(f"v_cvt_pk_bf16_f32 v{A}, v{A}, v{A+1}")
        a.e(f"v_cvt_pk_bf16_f32 v{A+1}, v{A+2}, v{A+3}")
        a.e(f"buffer_store_dwordx2 {vr(A,2)}, v{vOO}, {sr(sO,4)}, 0 offen offset:{32*t}")
    k3flush()
    a.lab("K3_END")
    a.e("s_endpgm")
    return name, NV, 102 if DIAG else 48, (256, 512, K3_LDS)


HEADER = """; Kernarg layout for this problem (88 bytes, ptrs only, base s[0:1]):
"""


def main(out_path):
    a = Asm()
    ks = []
    gens = (gen_k1, gen_k2, gen_k3) if "u" in os.environ.get("K2X", "") else (gen_k1, gen_k2)
    for g in gens:
        ks.append(g(a))
    s = HEADER
    for name, nv, ns, (gx, bx, lds) in ks:
        s += f"; @launch kernel={name} grid=({gx},1,1) block=({bx},1,1) lds={lds}\n"
    s += '.amdgcn_target "amdgcn-amd-amdhsa--gfx950"\n.text\n'
    s += a.text()
    s += '.section .rodata,"a"\n'
    for name, nv, ns, _ in ks:
        s += kd(name, nv, ns)
    open(out_path, "w").write(s)


if __name__ == "__main__":
    main(sys.argv[1] if len(sys.argv) > 1 else f"cdna_kernels/{NAME}.s")
```

```python
import struct, math, sys

NAME = "parallel_sum__mha_block__dense_activation_gelu__prompt"

QB_OFF = 0
KV_OFF = 0x280000
KVT = 2624
KVH = 64 * KVT
VP = 336
AB_OFF = 0x7A0000
WT_OFF = 0x10E0000
assert KV_OFF + 32 * KVH == AB_OFF
FL_OFF = WT_OFF + 296 * 10240
WS_END = FL_OFF + 1024
AB_SIZE = 296 * 32768
WT_SIZE = 296 * 10240
assert AB_OFF + AB_SIZE == WT_OFF


def f32(x):
    return struct.unpack("<I", struct.pack("<f", x))[0]


def hx(x):
    return "0x%08x" % (x & 0xFFFFFFFF)


class Asm:
    def __init__(self):
        self.lines = []

    def e(self, s):
        if s.startswith("s_cselect_b32"):
            ops = [x.strip() for x in s[len("s_cselect_b32"):].split(",")]

            def is_lit(x):
                try:
                    v = int(x, 0)
                except ValueError:
                    return False
                return not (-16 <= v <= 64)
            if is_lit(ops[1]) and is_lit(ops[2]):
                self.lines.append(f"    s_mov_b32 {ops[0]}, {ops[2]}")
                s = f"s_cselect_b32 {ops[0]}, {ops[1]}, {ops[0]}"
        self.lines.append("    " + s)

    def lab(self, s):
        self.lines.append(s + ":")

    def c(self, s):
        self.lines.append("    ; " + s)

    def raw(self, s):
        self.lines.append(s)

    def text(self):
        return "\n".join(self.lines) + "\n"


def vr(a, n):
    return f"v[{a}:{a+n-1}]" if n > 1 else f"v{a}"


def sr(a, n):
    return f"s[{a}:{a+n-1}]" if n > 1 else f"s{a}"


def kernel_header(a, name):
    a.raw(".p2align 8")
    a.raw(f".globl {name}")
    a.raw(f".type {name},@function")
    a.lab(name)


def kd(name, nv, ns):
    acc = (nv + 3) // 4 * 4
    return f""".p2align 6
.amdhsa_kernel {name}
  .amdhsa_next_free_vgpr {nv}
  .amdhsa_next_free_sgpr {ns}
  .amdhsa_accum_offset {acc}
  .amdhsa_group_segment_fixed_size 0
  .amdhsa_kernarg_size 88
  .amdhsa_user_sgpr_count 2
  .amdhsa_user_sgpr_kernarg_segment_ptr 1
  .amdhsa_system_sgpr_workgroup_id_x 1
.end_amdhsa_kernel
"""


def srd(a, d, lo, hi, size):
    a.e(f"s_mov_b32 s{d}, {lo}")
    a.e(f"s_mov_b32 s{d+1}, {hi}")
    a.e(f"s_mov_b32 s{d+2}, {hx(size)}")
    a.e(f"s_mov_b32 s{d+3}, 0x00020000")


def srd_off(a, d, lo, hi, off, size):
    a.e(f"s_add_u32 s{d}, {lo}, {hx(off)}")
    a.e(f"s_addc_u32 s{d+1}, {hi}, 0")
    a.e(f"s_mov_b32 s{d+2}, {hx(size)}")
    a.e(f"s_mov_b32 s{d+3}, 0x00020000")


def round_bf16_inplace(a, v, vtmp=None):
    a.e(f"v_cvt_pk_bf16_f32 v{v}, v{v}, v{v}")
    a.e(f"v_lshlrev_b32 v{v}, 16, v{v}")


OOB = 0x40000000


def code_prefetch(a, tag, start, end, sp, s_chunk, vlane, vtmp, vdst):
    a.e(f"s_getpc_b64 s[{sp}:{sp+1}]")
    a.lab(f"PCH_{tag}")
    a.e(f"s_sub_u32 s{sp}, s{sp}, PCH_{tag}-{start}")
    a.e(f"s_subb_u32 s{sp+1}, s{sp+1}, 0")
    a.e(f"s_lshl_b32 s{s_chunk}, s{s_chunk}, 13")
    a.e(f"v_lshlrev_b32 v{vtmp}, 7, v{vlane}")
    a.e(f"v_add_u32 v{vtmp}, s{s_chunk}, v{vtmp}")
    a.e(f"v_cmp_gt_u32 vcc, {end}-{start}, v{vtmp}")
    a.e(f"s_and_saveexec_b64 s[{sp+2}:{sp+3}], vcc")
    a.e(f"s_cbranch_execz PCS_{tag}")
    a.e(f"global_load_dword v{vdst}, v{vtmp}, s[{sp}:{sp+1}]")
    a.lab(f"PCS_{tag}")
    a.e(f"s_mov_b64 exec, s[{sp+2}:{sp+3}]")
import os
DIAG = int(os.environ.get("DIAG", "0"))
DIAG_OFF = 0x2000000
SD = 84


def stamp(a, i):
    if DIAG:
        a.e(f"s_memtime s[{SD+2*i}:{SD+2*i+1}]")
        if i == 0:
            a.e(f"s_memrealtime s[{SD+12}:{SD+13}]")
        if i == 4:
            a.e(f"s_memrealtime s[{SD+14}:{SD+15}]")


def stamp_flush(a, kidx, wpw, sW, ws_lo, ws_hi, n, vtmp):
    if not DIAG:
        return
    a.e("s_waitcnt lgkmcnt(0)")
    a.e(f"s_add_u32 s80, {ws_lo}, {hx(DIAG_OFF + kidx*4096*64)}")
    a.e(f"s_addc_u32 s81, {ws_hi}, 0")
    a.e(f"s_mov_b32 s82, {hx(4096*64)}")
    a.e("s_mov_b32 s83, 0x00020000")
    a.e(f"s_mul_i32 s100, s2, {wpw}")
    a.e(f"s_add_u32 s100, s100, s{sW}")
    a.e("s_lshl_b32 s100, s100, 6")
    a.e(f"v_mov_b32 v{vtmp}, 0")
    for i in range(n):
        a.e(f"v_mov_b32 v{vtmp+1}, s{SD+2*i}")
        a.e(f"buffer_store_dword v{vtmp+1}, v{vtmp}, s[80:83], s100 offen offset:{4*i}")

K1_BH = 8 * 1056
K1_SLOT = 16384 + 4 * K1_BH
K1_NS = 3
K1_SCR = K1_SLOT * K1_NS
K1_LDS = K1_SCR + 2048 + 256
QSCALE = math.log2(math.e) / math.sqrt(20.0)


def gen_k1(a):
    name = "k1_gemm1_kernel"
    kernel_header(a, name)
    X = os.environ.get("K1X", "")
    sX, sB0, sB1, sWS, sT, sBI = 20, 24, 28, 32, 36, 40
    sW, sMH, sHALF, sRB, sCB, sNQ, sT0 = 44, 45, 46, 47, 48, 49, 50
    sOA, sOB0, sOB1 = 51, 52, 53
    sWA, sWB, sRD, sTS, sIT, sDA, sDB = 54, 55, 56, 57, 58, 59, 60
    t0, t1, t2, t3, t4, t5, t6, t7 = 62, 63, 64, 65, 66, 67, 68, 69
    sC1 = 70
    sTYP = 73
    sOA2, sOB0b, sOB1b = 76, 77, 78
    vLANE = 1
    vA0e, vA0o, vB0 = 2, 3, 4
    vAe, vAo, vB = 5, 6, 7
    vS = 8
    vSA = 12
    vONES = 20
    vCS = 24
    vU = 32
    FA = [40, 72]
    vT = 72
    ACC = 104
    NV = 168

    def acc(j, mt):
        return ACC + (j * 4 + mt) * 4

    def fa(s, mt):
        return FA[s] + mt * 4

    def fb(s, j):
        return FA[s] + 16 + j * 4

    def emit(lst):
        for ins in lst:
            a.e(ins)

    k1flush = lambda: (stamp(a, 4), stamp_flush(a, 0, 12, sW, "s18", "s19", 8, 2))

    def finalize(s1, s2, nm, rs):
        a.e(f"v_mul_f32 v{s1}, {hx(f32(1.0/640))}, v{s1}")
        a.e(f"v_mul_f32 v{s2}, {hx(f32(1.0/640))}, v{s2}")
        a.e(f"v_fma_f32 v{s2}, -v{s1}, v{s1}, v{s2}")
        a.e(f"v_max_f32 v{s2}, 0, v{s2}")
        round_bf16_inplace(a, s2)
        a.e(f"v_add_f32 v{s2}, {hx(f32(1e-5))}, v{s2}")
        round_bf16_inplace(a, s2)
        a.e(f"v_sqrt_f32 v{s2}, v{s2}")
        round_bf16_inplace(a, s1)
        round_bf16_inplace(a, s2)
        a.e(f"v_rcp_f32 v{rs}, v{s2}")
        a.e(f"v_sub_f32 v{nm}, 0, v{s1}")


    a.e("s_cmp_ge_u32 s2, 256")
    a.e("s_cbranch_scc1 K1_END")
    stamp(a, 0)
    a.e("s_load_dwordx4 s[4:7], s[0:1], 0")
    a.e("s_load_dwordx2 s[8:9], s[0:1], 16")
    a.e("s_load_dwordx4 s[12:15], s[0:1], 32")
    a.e("s_load_dwordx2 s[16:17], s[0:1], 48")
    a.e("s_load_dwordx2 s[18:19], s[0:1], 80")
    a.e(f"v_and_b32 v{vLANE}, 63, v0")
    a.e(f"v_lshrrev_b32 v{vT}, 6, v0")
    a.e(f"s_and_b32 s{t0}, s2, 7")
    a.e(f"v_readfirstlane_b32 s{sW}, v{vT}")
    a.e(f"s_lshr_b32 s{t1}, s2, 3")
    a.e(f"s_and_b32 s{t2}, s{t0}, 1")
    a.e(f"s_lshl_b32 s{t2}, s{t2}, 3")
    a.e(f"s_and_b32 s{t3}, s{t1}, 7")
    a.e(f"s_add_u32 s{sRB}, s{t2}, s{t3}")
    a.e(f"s_lshr_b32 s{t2}, s{t0}, 1")
    a.e(f"s_lshl_b32 s{t2}, s{t2}, 2")
    a.e(f"s_lshr_b32 s{t3}, s{t1}, 3")
    a.e(f"s_add_u32 s{sCB}, s{t2}, s{t3}")
    a.e(f"s_cmp_eq_u32 s{sCB}, 15")
    a.e("s_cbranch_scc1 K1_TRANS")
    a.e(f"s_lshl_b32 s{sT0}, s{sCB}, 3")
    a.e(f"s_min_u32 s{sT0}, s{sT0}, 100")
    a.e(f"s_cmp_ge_u32 s{sW}, 4")
    a.e("s_cbranch_scc1 K1_COMP")
    lA = [2, 3]
    lQ = [4, 5]
    lF = [6, 7]
    lBI = 8
    a.e(f"s_lshl_b32 s{t0}, s{sRB}, 7")
    a.e(f"s_lshl_b32 s{t1}, s{sW}, 4")
    a.e(f"s_add_u32 s{t0}, s{t0}, s{t1}")
    a.e(f"v_lshrrev_b32 v{vT}, 3, v{vLANE}")
    a.e(f"v_add_u32 v{vT}, s{t0}, v{vT}")
    a.e(f"v_lshrrev_b32 v{vT+1}, 1, v{vT}")
    a.e(f"v_xor_b32 v{vT+1}, v{vT+1}, v{vLANE}")
    a.e(f"v_and_b32 v{vT+1}, 7, v{vT+1}")
    a.e(f"v_mul_u32_u24 v{vT}, 1280, v{vT}")
    a.e(f"v_lshl_add_u32 v{lA[0]}, v{vT+1}, 4, v{vT}")
    a.e(f"v_xor_b32 v{vT+1}, 4, v{vT+1}")
    a.e(f"v_lshl_add_u32 v{lA[1]}, v{vT+1}, 4, v{vT}")
    a.e(f"v_add_u32 v{lA[1]}, {8*1280}, v{lA[1]}")
    a.e(f"s_lshl_b32 s{sDA}, s{sW}, 11")
    a.e(f"s_and_b32 s{t0}, s{sW}, 1")
    a.e(f"s_lshl_b32 s{t0}, s{t0}, 1")
    a.e(f"s_lshr_b32 s{t1}, s{sW}, 1")
    a.e(f"s_lshl_b32 s{t1}, s{t1}, 3")
    a.e(f"s_or_b32 s{t0}, s{t0}, s{t1}")
    a.e(f"v_bfe_u32 v{vT}, v{vLANE}, 4, 1")
    a.e(f"v_lshlrev_b32 v{vT}, 2, v{vT}")
    a.e(f"v_lshrrev_b32 v{vT+1}, 5, v{vLANE}")
    a.e(f"v_lshl_or_b32 v{vT}, v{vT+1}, 4, v{vT}")
    a.e(f"v_or_b32 v{vT}, s{t0}, v{vT}")
    a.e(f"v_and_b32 v{vT+1}, 15, v{vLANE}")
    a.e(f"v_lshlrev_b32 v{vT+1}, 4, v{vT+1}")
    a.e(f"s_lshl_b32 s{t2}, s{sCB}, 8")
    a.e(f"s_lshl_b32 s{t3}, s{sT0}, 5")
    a.e(f"v_mul_u32_u24 v{lQ[0]}, 3840, v{vT}")
    a.e(f"v_add3_u32 v{lQ[0]}, v{lQ[0]}, v{vT+1}, s{t2}")
    a.e(f"v_add_u32 v{lQ[1]}, 3840, v{lQ[0]}")
    a.e(f"v_mul_u32_u24 v{lF[0]}, 3456, v{vT}")
    a.e(f"v_add3_u32 v{lF[0]}, v{lF[0]}, v{vT+1}, s{t3}")
    a.e(f"v_add_u32 v{lF[1]}, 3456, v{lF[0]}")
    a.e(f"s_mul_i32 s{sDB}, s{sW}, 2112")
    a.e(f"s_add_u32 s{sDB}, s{sDB}, 16384")
    a.e(f"s_mov_b32 s{sOA}, 0")
    a.e(f"s_mov_b32 s{sOA2}, {64*1280}")
    a.e(f"s_mov_b32 s{sOB0}, 0")
    a.e(f"s_mov_b32 s{sOB0b}, {32*3840}")
    a.e(f"s_mov_b32 s{sOB1}, 0")
    a.e(f"s_mov_b32 s{sOB1b}, {32*3456}")
    a.e(f"s_mov_b32 s{sWA}, s{sDA}")
    a.e(f"s_mov_b32 s{sWB}, s{sDB}")
    a.e("s_waitcnt lgkmcnt(0)")
    stamp(a, 5)
    srd(a, sX, "s4", "s5", 2048 * 640 * 2)
    srd(a, sB0, "s6", "s7", 640 * 1920 * 2)
    srd(a, sB1, "s12", "s13", 640 * 1728 * 2)

    lR0 = 10
    lR = 14
    lD = 20
    lS = 36
    lU = 40

    def stats_ops():
        va = []
        for r in range(16):
            src = lD + r
            lo, hi = lU + 2 * (r & 1), lU + 2 * (r & 1) + 1
            va.append(f"v_lshlrev_b32 v{lo}, 16, v{src}")
            va.append(f"v_and_b32 v{hi}, 0xffff0000, v{src}")
            va.append(f"v_add_f32 v{lS}, v{lS}, v{lo}")
            va.append(f"v_add_f32 v{lS+1}, v{lS+1}, v{hi}")
            va.append(f"v_fmac_f32 v{lS+2}, v{lo}, v{lo}")
            va.append(f"v_fmac_f32 v{lS+3}, v{hi}, v{hi}")
        return va

    def stats_reads():
        for i in range(4):
            a.e(f"v_add_u32 v{lR+i}, s{sRD}, v{lR0+i}")
        for i in range(4):
            a.e(f"ds_read_b128 {vr(lD+4*i,4)}, v{lR+i}")
        a.e(f"s_add_u32 s{sRD}, s{sRD}, {K1_SLOT}")
        a.e(f"s_cmp_eq_u32 s{sRD}, {K1_SCR}")
        a.e(f"s_cselect_b32 s{sRD}, 0, s{sRD}")

    def stage(with_stats=False, dma=True):
        spec = [(sWA, 0, lA, 1024, sX, sOA, 128),
                (sWA, 8192, lA, 1024, sX, sOA2, 128),
                (sWB, 0, lQ, 1056, sB0, sOB0, 64 * 3840),
                (sWB, 2 * K1_BH, lF, 1056, sB1, sOB1, 64 * 3456),
                (sWB, K1_BH, lQ, 1056, sB0, sOB0b, 64 * 3840),
                (sWB, 3 * K1_BH, lF, 1056, sB1, sOB1b, 64 * 3456)]
        va = stats_ops() if with_stats else []
        if with_stats:
            stats_reads()
        n = 0
        for (sD, dof, vO, d2, sR, sO, inc) in spec:
            for q in range(2):
                d = dof + q * d2
                if dma:
                    a.e(f"s_add_u32 m0, s{sD}, {d}" if d else f"s_mov_b32 m0, s{sD}")
                    a.e("s_nop 0")
                    a.e(f"buffer_load_dwordx4 v{vO[q]}, {sr(sR,4)}, s{sO} offen lds")
                n += 1
                if with_stats and n >= 2:
                    if n == 2:
                        a.e("s_waitcnt lgkmcnt(0)")
                    k = 9 if n < 12 else len(va)
                    for ins in va[:k]:
                        a.e(ins)
                    va = va[k:]
            if dma:
                a.e(f"s_add_u32 s{sO}, s{sO}, {inc}")
        if dma:
            a.e(f"s_add_u32 s{sWA}, s{sWA}, {K1_SLOT}")
            a.e(f"s_add_u32 s{sWB}, s{sWB}, {K1_SLOT}")
            a.e(f"s_cmp_ge_u32 s{sWA}, {K1_SCR}")
            a.e(f"s_cselect_b32 s{sWA}, s{sDA}, s{sWA}")
            a.e(f"s_cselect_b32 s{sWB}, s{sDB}, s{sWB}")

    stage()
    srd(a, sBI, "s14", "s15", 1728 * 2)
    a.e(f"v_lshlrev_b32 v{vT}, 2, v{vLANE}")
    a.e(f"buffer_load_dword v{lBI}, v{vT}, {sr(sBI,4)}, s{t3} offen")
    stage()
    stage()
    a.e(f"v_and_b32 v{vT+1}, 31, v{vLANE}")
    a.e(f"v_lshrrev_b32 v{vT+2}, 5, v{vLANE}")
    a.e(f"v_lshlrev_b32 v{vT+2}, 2, v{vT+2}")
    a.e(f"v_bfe_u32 v{vT+3}, v{vLANE}, 1, 3")
    a.e(f"v_xor_b32 v{vT+2}, v{vT+2}, v{vT+3}")
    a.e(f"v_lshlrev_b32 v{vT+2}, 4, v{vT+2}")
    a.e(f"v_lshl_add_u32 v{vT+2}, v{vT+1}, 7, v{vT+2}")
    a.e(f"s_lshl_b32 s{t0}, s{sW}, 12")
    a.e(f"v_add_u32 v{lR0}, s{t0}, v{vT+2}")
    for i in range(1, 4):
        a.e(f"v_xor_b32 v{lR0+i}, {16*i}, v{lR0}")
    for i in range(4):
        a.e(f"v_mov_b32 v{lS+i}, 0")
    a.e(f"s_mov_b32 s{sRD}, 0")
    a.e(f"s_mov_b32 s{sIT}, 0")
    a.e("s_waitcnt vmcnt(24)")
    a.e(f"v_add_u32 v{vT}, {K1_SCR+2048}, v{vT}")
    a.e(f"ds_write_b32 v{vT}, v{lBI}")
    a.e("s_barrier")
    stamp(a, 1)
    stage(True, False)
    a.lab("K1_LD")
    a.e("s_waitcnt vmcnt(12)")
    a.e("s_barrier")
    stage(True, True)
    a.e(f"s_add_u32 s{sIT}, s{sIT}, 1")
    a.e(f"s_cmp_lt_u32 s{sIT}, 7")
    a.e("s_cbranch_scc1 K1_LD")
    a.e("s_waitcnt vmcnt(12)")
    a.e("s_barrier")
    a.e(f"s_mov_b32 s{sIT}, 0")
    a.lab("K1_LD2")
    stage(True, False)
    a.e(f"s_cmp_eq_u32 s{sIT}, 1")
    a.e("s_cbranch_scc1 K1_LD3")
    a.e("s_waitcnt vmcnt(0)")
    a.e("s_barrier")
    a.e(f"s_mov_b32 s{sIT}, 1")
    a.e("s_branch K1_LD2")
    a.lab("K1_LD3")
    a.e(f"v_add_f32 v{lS}, v{lS}, v{lS+1}")
    a.e(f"v_add_f32 v{lS+1}, v{lS+2}, v{lS+3}")
    a.e(f"v_mov_b32 v{lU}, v{lS}")
    a.e(f"v_mov_b32 v{lU+1}, v{lS+1}")
    a.e("s_nop 1")
    a.e(f"v_permlane32_swap_b32 v{lS}, v{lU}")
    a.e(f"v_permlane32_swap_b32 v{lS+1}, v{lU+1}")
    a.e(f"v_add_f32 v{lS}, v{lS}, v{lU}")
    a.e(f"v_add_f32 v{lS+1}, v{lS+1}, v{lU+1}")
    finalize(lS, lS + 1, lS + 2, lS + 3)
    a.e(f"v_lshlrev_b32 v{vT+1}, 2, v{vT+1}")
    a.e(f"s_lshl_b32 s{t0}, s{sW}, 7")
    a.e(f"s_add_u32 s{t0}, s{t0}, {K1_SCR}")
    a.e(f"v_add_u32 v{vT+1}, s{t0}, v{vT+1}")
    a.e(f"ds_write_b32 v{vT+1}, v{lS+2}")
    a.e(f"ds_write_b32 v{vT+1}, v{lS+3} offset:512")
    a.e("s_waitcnt lgkmcnt(0)")
    a.e("s_barrier")
    if DIAG:
        stamp(a, 2); stamp(a, 3)
        k1flush()
    a.e("s_endpgm")
    a.lab("K1_COMP")
    a.e(f"s_and_b32 s{sMH}, s{sW}, 1")
    a.e(f"s_bfe_u32 s{sNQ}, s{sW}, 0x10001")
    a.e(f"s_lshr_b32 s{sHALF}, s{sW}, 3")
    if "c" not in X:
        NPF = int(os.environ.get("NPF", "8"))
        a.e(f"s_cmp_ge_u32 s2, {NPF}")
        a.e("s_cbranch_scc1 K1_NOCP")
        a.e(f"s_cmp_ge_u32 s{sW}, 8")
        a.e("s_cbranch_scc1 K1_NOCP")
        a.e(f"s_and_b32 s{t0}, s{sW}, 3")
        code_prefetch(a, "k1", "k1_gemm1_kernel", "CODE_END", 64, t0, vLANE, vT, 36)
        a.lab("K1_NOCP")
    if "P" in X:
        vPF = 36
        a.e(f"s_and_b32 s{t0}, s{sW}, 3")
        a.e(f"s_lshl_b32 s{t0}, s{t0}, 6")
        a.e(f"v_add_u32 v{vT}, s{t0}, v{vLANE}")
        a.e(f"s_cmp_eq_u32 s{sHALF}, 1")
        a.e("s_cbranch_scc1 K1_PFB")
        a.e(f"s_and_b32 s{t1}, s{sCB}, 3")
        a.e(f"s_lshl_b32 s{t1}, s{t1}, 5")
        a.e(f"s_lshl_b32 s{t2}, s{sRB}, 7")
        a.e(f"s_add_u32 s{t1}, s{t1}, s{t2}")
        a.e(f"v_lshrrev_b32 v{vT+1}, 3, v{vT}")
        a.e(f"v_add_u32 v{vT+1}, s{t1}, v{vT+1}")
        a.e(f"v_mul_u32_u24 v{vT+1}, 1280, v{vT+1}")
        a.e(f"v_and_b32 v{vT+2}, 7, v{vT}")
        a.e(f"v_lshl_add_u32 v{vT+1}, v{vT+2}, 7, v{vT+1}")
        a.e("s_waitcnt lgkmcnt(0)")
        srd(a, sX, "s4", "s5", 2048 * 640 * 2)
        a.e(f"buffer_load_dword v{vPF}, v{vT+1}, {sr(sX,4)}, 0 offen offset:256")
        a.e("s_branch K1_PFD")
        a.lab("K1_PFB")
        a.e(f"s_and_b32 s{t1}, s{sRB}, 7")
        a.e(f"s_lshl_b32 s{t1}, s{t1}, 6")
        a.e(f"s_add_u32 s{t1}, s{t1}, 128")
        a.e(f"v_lshrrev_b32 v{vT+1}, 2, v{vT}")
        a.e(f"v_add_u32 v{vT+1}, s{t1}, v{vT+1}")
        a.e(f"v_and_b32 v{vT+2}, 1, v{vT}")
        a.e(f"v_lshlrev_b32 v{vT+2}, 7, v{vT+2}")
        a.e(f"s_lshl_b32 s{t2}, s{sCB}, 8")
        a.e(f"s_lshl_b32 s{t3}, s{sT0}, 5")
        a.e(f"v_mul_u32_u24 v{vT+3}, 3840, v{vT+1}")
        a.e(f"v_add3_u32 v{vT+3}, v{vT+3}, v{vT+2}, s{t2}")
        a.e(f"v_mul_u32_u24 v{vT+4}, 3456, v{vT+1}")
        a.e(f"v_add3_u32 v{vT+4}, v{vT+4}, v{vT+2}, s{t3}")
        a.e("s_waitcnt lgkmcnt(0)")
        srd(a, sB0, "s6", "s7", 640 * 1920 * 2)
        srd(a, sB1, "s12", "s13", 640 * 1728 * 2)
        a.e("s_mov_b32 exec_lo, 0x33333333")
        a.e("s_mov_b32 exec_hi, 0x33333333")
        a.e(f"buffer_load_dword v{vPF}, v{vT+3}, {sr(sB0,4)}, 0 offen")
        a.e("s_not_b64 exec, exec")
        a.e(f"buffer_load_dword v{vPF+1}, v{vT+4}, {sr(sB1,4)}, 0 offen")
        a.e("s_mov_b64 exec, -1")
        a.lab("K1_PFD")
    a.e(f"s_lshl_b32 s{t0}, s{sMH}, 13")
    a.e(f"v_and_b32 v{vT+4}, 15, v{vLANE}")
    a.e(f"v_lshrrev_b32 v{vT}, 4, v{vLANE}")
    a.e(f"v_lshrrev_b32 v{vT+1}, 1, v{vT+4}")
    a.e(f"v_xor_b32 v{vT+1}, v{vT+1}, v{vT}")
    a.e(f"v_lshlrev_b32 v{vT+1}, 4, v{vT+1}")
    a.e(f"v_lshl_add_u32 v{vA0e}, v{vT+4}, 7, v{vT+1}")
    a.e(f"v_add_u32 v{vA0e}, s{t0}, v{vA0e}")
    a.e(f"v_xor_b32 v{vA0o}, 64, v{vA0e}")
    a.e(f"v_bfe_u32 v{vT+1}, v{vLANE}, 2, 3")
    a.e(f"v_mul_u32_u24 v{vT+1}, 1056, v{vT+1}")
    a.e(f"v_lshrrev_b32 v{vT+2}, 5, v{vLANE}")
    a.e(f"v_lshl_add_u32 v{vT+1}, v{vT+2}, 9, v{vT+1}")
    a.e(f"v_and_b32 v{vT+2}, 3, v{vLANE}")
    a.e(f"v_lshl_add_u32 v{vT+1}, v{vT+2}, 3, v{vT+1}")
    a.e(f"s_mul_i32 s{t0}, s{sHALF}, {2*K1_BH}")
    a.e(f"s_lshl_b32 s{t1}, s{sNQ}, 7")
    a.e(f"s_add_u32 s{t0}, s{t0}, s{t1}")
    a.e(f"s_add_u32 s{t0}, s{t0}, 16384")
    a.e(f"v_add_u32 v{vB0}, s{t0}, v{vT+1}")
    for i in range(64):
        a.e(f"v_mov_b32 v{ACC+i}, 0")
    for i in range(4):
        a.e(f"v_mov_b32 v{vS+i}, 0")
        a.e(f"v_mov_b32 v{vONES+i}, 0x3f803f80")
    for i in range(8):
        a.e(f"v_mov_b32 v{vCS+i}, 0")
        a.e(f"v_mov_b32 v{vSA+i}, {hx(OOB)}")
    a.e(f"s_mov_b32 s{sRD}, 0")
    a.e(f"s_mov_b32 s{sIT}, 0")
    a.e(f"s_mov_b32 s{sTS}, 0")
    a.e(f"s_cmp_ge_u32 s{sCB}, 10")
    a.e(f"s_cselect_b32 s{sTYP}, 1, 0")
    a.e(f"s_cmp_eq_u32 s{sHALF}, 1")
    a.e(f"s_cselect_b32 s{sTYP}, 2, s{sTYP}")
    a.e(f"s_lshl_b32 s{t6}, s{sRB}, 2")
    a.e(f"s_lshl_b32 s{t7}, s{sMH}, 1")
    a.e(f"s_add_u32 s{t6}, s{t6}, s{t7}")
    a.e(f"s_cmp_eq_u32 s{sTYP}, 1")
    a.e("s_cbranch_scc1 K1_PRE_V")
    a.e(f"s_cmp_eq_u32 s{sTYP}, 2")
    a.e("s_cbranch_scc1 K1_PRE_F")
    a.e(f"s_cmp_lt_u32 s{sCB}, 5")
    a.e(f"s_cselect_b32 s{t1}, 81920, {KVH}")
    a.e(f"s_cselect_b32 s{sTS}, 1280, {KVT}")
    a.e(f"s_cselect_b32 s{t3}, {hx(QB_OFF)}, {hx(KV_OFF)}")
    a.e(f"s_cselect_b32 s{t4}, 16, 8")
    a.e(f"s_cselect_b64 vcc, -1, 0")
    a.e(f"s_cselect_b32 s{t5}, 0, 5")
    a.e(f"s_sub_u32 s{t5}, s{sCB}, s{t5}")
    a.e(f"s_lshl_b32 s{t5}, s{t5}, 5")
    a.e(f"s_lshl_b32 s{t7}, s{sNQ}, 4")
    a.e(f"s_add_u32 s{t5}, s{t5}, s{t7}")
    a.e(f"s_mul_i32 s{t6}, s{t6}, s{sTS}")
    a.e(f"s_add_u32 s{t3}, s{t3}, s{t6}")
    r0, rA0, rB0, rA1, rB1, vG = vT + 5, vT + 6, vT + 7, vT + 8, vT + 9, vT + 10
    a.e(f"v_and_b32 v{vT+2}, 7, v{vLANE}")
    a.e(f"v_and_b32 v{vT+3}, 8, v{vLANE}")
    a.e(f"v_lshl_add_u32 v{vT+2}, v{vT+3}, 1, v{vT+2}")
    a.e(f"v_cndmask_b32 v{r0}, v{vT+2}, v{vT+4}, vcc")
    a.e(f"v_lshlrev_b32 v{rA0}, 4, v{r0}")
    a.e(f"v_add_u32 v{rA0}, s{t3}, v{rA0}")
    a.e(f"v_lshlrev_b32 v{rB0}, 3, v{r0}")
    a.e(f"s_add_u32 s{t7}, s{t3}, 1024")
    a.e(f"v_add_u32 v{rB0}, s{t7}, v{rB0}")
    a.e(f"s_lshl_b32 s{t7}, s{t4}, 4")
    a.e(f"v_add_u32 v{rA1}, s{t7}, v{rA0}")
    a.e(f"s_lshl_b32 s{t7}, s{t4}, 3")
    a.e(f"v_add_u32 v{rB1}, s{t7}, v{rB0}")
    a.e(f"v_add_u32 v{vG}, s{t5}, v{vT}")
    for j in range(4):
        tt, h, dg, u = vT + 11, vT + 12, vT + 13, vT + 14
        a.e(f"v_add_u32 v{tt}, {4*j}, v{vG}")
        a.e(f"v_mul_u32_u24 v{h}, 205, v{tt}")
        a.e(f"v_lshrrev_b32 v{h}, 10, v{h}")
        a.e(f"v_mad_i32_i24 v{dg}, v{h}, -5, v{tt}")
        a.e(f"v_mul_u32_u24 v{u}, 0x108, v{dg}")
        a.e(f"v_and_b32 v{u}, 0x208, v{u}")
        a.e(f"v_cmp_eq_u32 vcc, 4, v{dg}")
        a.e(f"v_mad_u32_u24 v{u}, v{h}, s{t1}, v{u}")
        a.e("s_nop 0")
        a.e(f"v_cndmask_b32 v{tt}, v{rA0}, v{rB0}, vcc")
        a.e(f"v_cndmask_b32 v{h}, v{rA1}, v{rB1}, vcc")
        a.e(f"v_add_u32 v{vSA+2*j}, v{u}, v{tt}")
        a.e(f"v_add_u32 v{vSA+2*j+1}, v{u}, v{h}")
    a.e("s_branch K1_PRE_DONE")
    a.lab("K1_PRE_V")
    a.e(f"s_sub_u32 s{t5}, s{sCB}, 10")
    a.e(f"s_lshl_b32 s{t5}, s{t5}, 7")
    a.e(f"s_lshl_b32 s{t7}, s{sNQ}, 6")
    a.e(f"s_add_u32 s{t5}, s{t5}, s{t7}")
    a.e(f"v_add_u32 v{vT+2}, s{t5}, v{vT+4}")
    a.e(f"s_mul_i32 s{t6}, s{t6}, {KVT}")
    a.e(f"s_add_u32 s{t6}, s{t6}, {hx(KV_OFF + 1280)}")
    a.e(f"v_mul_u32_u24 v{vT+1}, {VP}, v{vT}")
    a.e(f"v_add_u32 v{vT+1}, s{t6}, v{vT+1}")
    a.e(f"s_mov_b32 s{t1}, {KVH}")
    a.e(f"s_mov_b32 s{t2}, -20")
    for j in range(4):
        n, h, d = vT + 5, vT + 6, vT + 7
        a.e(f"v_add_u32 v{n}, {16*j}, v{vT+2}")
        a.e(f"v_mul_u32_u24 v{h}, 3277, v{n}")
        a.e(f"v_lshrrev_b32 v{h}, 16, v{h}")
        a.e(f"v_mad_i32_i24 v{d}, v{h}, s{t2}, v{n}")
        a.e(f"v_mad_u32_u24 v{h}, v{h}, s{t1}, v{vT+1}")
        a.e(f"v_lshl_add_u32 v{vSA+j}, v{d}, 4, v{h}")
    a.e("s_branch K1_PRE_DONE")
    a.lab("K1_PRE_F")
    a.e(f"s_lshl_b32 s{t0}, s{t6}, 5")
    a.e(f"v_add_u32 v{vSA}, s{t0}, v{vT+4}")
    a.e(f"v_lshlrev_b32 v{vSA}, 4, v{vSA}")
    a.e(f"v_lshl_add_u32 v{vSA}, v{vT}, 15, v{vSA}")
    a.e(f"s_lshl_b32 s{t0}, s{sT0}, 16")
    a.e(f"s_lshl_b32 s{t1}, s{sNQ}, 18")
    a.e(f"s_add_u32 s{t0}, s{t0}, s{t1}")
    a.e(f"s_add_u32 s{t0}, s{t0}, {hx(AB_OFF + 80*32768)}")
    a.e(f"v_add_u32 v{vSA}, s{t0}, v{vSA}")
    a.e(f"v_add_u32 v{vSA+1}, {hx(131072)}, v{vSA}")
    a.lab("K1_PRE_DONE")
    a.e("s_waitcnt lgkmcnt(0)")
    stamp(a, 5)
    srd(a, sWS, "s18", "s19", WS_END)
    a.e(f"s_and_b32 s{t0}, s{sTYP}, 1")
    a.e(f"s_lshl_b32 s{t0}, s{t0}, 1")
    a.e(f"s_add_u32 s{t0}, s{t0}, s{sMH}")
    for v in range(1, 4):
        a.e(f"s_cmp_eq_u32 s{t0}, {v}")
        a.e(f"s_cbranch_scc1 K1_V{v}")

    def reads(fs):
        vA = vAe if fs == 0 else vAo
        ra = [f"ds_read_b128 {vr(fa(fs,mt),4)}, v{vA} offset:{2048*mt}" for mt in range(4)]
        rb = []
        for j in range(4):
            rb.append(f"ds_read_b64_tr_b16 {vr(fb(fs,j),2)}, v{vB} offset:{fs*K1_BH+32*j}")
            rb.append(f"ds_read_b64_tr_b16 {vr(fb(fs,j)+2,2)}, v{vB} offset:{fs*K1_BH+32*j+256}")
        return rb[0:2] + ra + rb[2:]

    def addr_update():
        return [f"v_add_u32 v{vB}, s{sRD}, v{vB0}",
                f"v_add_u32 v{vAe}, s{sRD}, v{vA0e}",
                f"v_add_u32 v{vAo}, s{sRD}, v{vA0o}",
                f"s_add_u32 s{sRD}, s{sRD}, {K1_SLOT}",
                f"s_cmp_eq_u32 s{sRD}, {K1_SCR}",
                f"s_cselect_b32 s{sRD}, 0, s{sRD}"]

    for var in range(4):
        typ, mh, nq = var >> 1, var & 1, 0
        cst = [2 * mh, 2 * mh + 1]
        smt = (2 if typ == 2 else 0) + nq
        a.raw(".p2align 3")
        a.lab(f"K1_V{var}")
        emit(addr_update())
        a.e("s_barrier")
        stamp(a, 1)
        emit(reads(0))
        a.raw(".p2align 6")
        a.lab(f"K1_L{var}")
        for fs in range(2):
            mf = []
            for j in range(4):
                for mt in range(4):
                    if typ == 1:
                        mf.append(f"v_mfma_f32_16x16x32_bf16 {vr(acc(j,mt),4)}, {vr(fa(fs,mt),4)}, {vr(fb(fs,j),4)}, {vr(acc(j,mt),4)}")
                    else:
                        mf.append(f"v_mfma_f32_16x16x32_bf16 {vr(acc(j,mt),4)}, {vr(fb(fs,j),4)}, {vr(fa(fs,mt),4)}, {vr(acc(j,mt),4)}")
                if j in cst:
                    c = vCS + 4 * cst.index(j)
                    mf.append(f"v_mfma_f32_16x16x32_bf16 {vr(c,4)}, {vr(fb(fs,j),4)}, {vr(vONES,4)}, {vr(c,4)}")
            va = []
            for r in range(4):
                src = fa(fs, smt) + r
                lo, hi = vU + 2 * (r & 1), vU + 2 * (r & 1) + 1
                va.append(f"v_lshlrev_b32 v{lo}, 16, v{src}")
                va.append(f"v_and_b32 v{hi}, 0xffff0000, v{src}")
                va.append(f"v_add_f32 v{vS}, v{vS}, v{lo}")
                va.append(f"v_add_f32 v{vS+1}, v{vS+1}, v{hi}")
                va.append(f"v_fmac_f32 v{vS+2}, v{lo}, v{lo}")
                va.append(f"v_fmac_f32 v{vS+3}, v{hi}, v{hi}")
            rd = reads(fs ^ 1)
            va = []
            if "r" in X: rd = []
            if "M" in X: mf = mf[:2]
            a.e("s_waitcnt lgkmcnt(0)")
            npre = 0
            if fs == 1:
                npre = 2
                for m in mf[:npre]:
                    a.e(m)
                emit(addr_update())
                a.e("s_barrier")
            rest = mf[npre:]
            nm = max(1, len(rest))
            ri = di = 0
            for i, m in enumerate(rest):
                if ri < len(rd):
                    a.e(rd[ri]); ri += 1
                a.e(m)
                want_d = (len(va) * (i + 1) + nm - 1) // nm
                while di < want_d:
                    a.e(va[di]); di += 1
            while ri < len(rd):
                a.e(rd[ri]); ri += 1
            while di < len(va):
                a.e(va[di]); di += 1
        a.e(f"s_add_u32 s{sIT}, s{sIT}, 1")
        a.e(f"s_cmp_lt_u32 s{sIT}, 10")
        a.e(f"s_cbranch_scc1 K1_L{var}")
        a.e(f"s_branch K1_EPI")

    a.raw(".p2align 3")
    a.lab("K1_EPI")
    stamp(a, 2)
    a.e("s_waitcnt vmcnt(0)")
    a.e(f"v_and_b32 v{vT}, 15, v{vLANE}")
    a.e(f"v_lshlrev_b32 v{vT}, 2, v{vT}")
    a.e(f"s_lshl_b32 s{t0}, s{sHALF}, 7")
    a.e(f"s_lshl_b32 s{t1}, s{sNQ}, 6")
    a.e(f"s_add_u32 s{t0}, s{t0}, s{t1}")
    a.e(f"s_lshl_b32 s{t2}, s{sMH}, 8")
    a.e(f"s_add_u32 s{t2}, s{t2}, {K1_SCR}")
    a.e(f"s_add_u32 s{t0}, s{t0}, s{t2}")
    a.e(f"v_add_u32 v{vT+1}, s{t0}, v{vT}")
    a.e(f"v_lshrrev_b32 v{vT+2}, 4, v{vLANE}")
    a.e(f"v_lshlrev_b32 v{vT+2}, 4, v{vT+2}")
    a.e(f"s_lshl_b32 s{t3}, s{sHALF}, 9")
    a.e(f"s_lshl_b32 s{t1}, s{sNQ}, 8")
    a.e(f"s_add_u32 s{t3}, s{t3}, s{t1}")
    a.e(f"s_add_u32 s{t3}, s{t3}, {K1_SCR+1024}")
    a.e(f"s_lshl_b32 s{t1}, s{sMH}, 7")
    a.e(f"s_add_u32 s{t0}, s{t3}, s{t1}")
    a.e(f"v_add_u32 v{vT+3}, s{t0}, v{vT+2}")
    a.e("s_mov_b32 exec_lo, 0x00010001")
    a.e("s_mov_b32 exec_hi, 0x00010001")
    a.e(f"ds_write_b128 v{vT+3}, {vr(vCS,4)}")
    a.e(f"ds_write_b128 v{vT+3}, {vr(vCS+4,4)} offset:64")
    a.e("s_mov_b64 exec, -1")
    a.e("s_waitcnt lgkmcnt(0)")
    a.e("s_barrier")
    stamp(a, 3)
    a.e(f"s_cmp_eq_u32 s{sTYP}, 1")
    a.e("s_cbranch_scc1 K1_EPI_V")

    vNM, vRS = 32, 36
    vC4 = 40
    vBB = 56
    a.e(f"v_add_u32 v{vT}, s{t2}, v{vT}")
    a.e(f"ds_read2_b32 {vr(vNM,2)}, v{vT} offset0:0 offset1:16")
    a.e(f"ds_read2_b32 {vr(vNM+2,2)}, v{vT} offset0:32 offset1:48")
    a.e(f"ds_read2_b32 {vr(vRS,2)}, v{vT} offset0:128 offset1:144")
    a.e(f"ds_read2_b32 {vr(vRS+2,2)}, v{vT} offset0:160 offset1:176")
    a.e(f"v_add_u32 v{vT+1}, s{t3}, v{vT+2}")
    for j in range(4):
        a.e(f"ds_read_b128 {vr(vC4+4*j,4)}, v{vT+1} offset:{64*j}")
    a.e(f"s_cmp_eq_u32 s{sTYP}, 2")
    a.e("s_cbranch_scc1 K1_EPI_F")

    def sel3(mt):
        return f"op_sel:[0,{mt&1},0] op_sel_hi:[1,{mt&1},1]"

    def sel2(mt):
        return f"op_sel:[0,{mt&1}] op_sel_hi:[1,{mt&1}]"
    a.e(f"s_cmp_lt_u32 s{sCB}, 5")
    a.e(f"s_cselect_b32 s{t0}, {hx(f32(QSCALE))}, 1.0")
    a.e("s_waitcnt lgkmcnt(4)")
    for i in range(4):
        a.e(f"v_mul_f32 v{vRS+i}, s{t0}, v{vRS+i}")
    for j in range(4):
        a.e(f"s_waitcnt lgkmcnt({3-j})")
        for mt in range(4):
            A = acc(j, mt)
            for p in range(2):
                a.e(f"v_pk_fma_f32 {vr(A+2*p,2)}, {vr(vC4+4*j+2*p,2)}, {vr(vNM+(mt&2),2)}, {vr(A+2*p,2)} {sel3(mt)}")
        for mt in range(4):
            A = acc(j, mt)
            for p in range(2):
                a.e(f"v_pk_mul_f32 {vr(A+2*p,2)}, {vr(A+2*p,2)}, {vr(vRS+(mt&2),2)} {sel2(mt)}")
        for mt in range(4):
            A = acc(j, mt)
            a.e(f"v_cvt_pk_bf16_f32 v{A}, v{A}, v{A+1}")
            a.e(f"v_cvt_pk_bf16_f32 v{A+1}, v{A+2}, v{A+3}")
            so = f"s{sTS}" if mt & 2 else "0"
            a.e(f"buffer_store_dwordx2 {vr(A,2)}, v{vSA+2*j+(mt&1)}, {sr(sWS,4)}, {so} offen")
    k1flush()
    a.e("s_endpgm")
    a.lab("K1_EPI_F")
    c0 = -2.0 * math.sqrt(2.0 / math.pi) * math.log2(math.e)
    c1 = c0 * 0.044715
    vC0, vONE = 64, 66
    a.e(f"v_lshrrev_b32 v{vT+2}, 1, v{vT+2}")
    a.e(f"s_lshl_b32 s{t0}, s{sNQ}, 7")
    a.e(f"s_add_u32 s{t0}, s{t0}, {K1_SCR+2048}")
    a.e(f"v_add_u32 v{vT+2}, s{t0}, v{vT+2}")
    for j in range(4):
        a.e(f"ds_read_b64 {vr(vBB+2*j,2)}, v{vT+2} offset:{32*j}")
    a.e(f"v_mov_b32 v{vC0}, {hx(f32(c0))}")
    a.e(f"v_mov_b32 v{vC0+1}, {hx(f32(c0))}")
    a.e(f"v_mov_b32 v{vONE}, 1.0")
    a.e(f"v_mov_b32 v{vONE+1}, 1.0")
    a.e(f"s_mov_b32 s{sC1}, {hx(f32(c1))}")
    a.e(f"s_mov_b32 s{sC1+1}, {hx(f32(c1))}")
    vBF = 68
    vW = 88
    for j in range(4):
        a.e(f"s_waitcnt lgkmcnt({3-j})")
        a.e(f"v_lshlrev_b32 v{vBF}, 16, v{vBB+2*j}")
        a.e(f"v_and_b32 v{vBF+1}, 0xffff0000, v{vBB+2*j}")
        a.e(f"v_lshlrev_b32 v{vBF+2}, 16, v{vBB+2*j+1}")
        a.e(f"v_and_b32 v{vBF+3}, 0xffff0000, v{vBB+2*j+1}")
        for mp in range(2):
            prs = [(mt, p) for mt in (2 * mp, 2 * mp + 1) for p in range(2)]
            for i, (mt, p) in enumerate(prs):
                A = acc(j, mt) + 2 * p
                a.e(f"v_pk_fma_f32 {vr(A,2)}, {vr(vC4+4*j+2*p,2)}, {vr(vNM+(mt&2),2)}, {vr(A,2)} {sel3(mt)}")
            for i, (mt, p) in enumerate(prs):
                A = acc(j, mt) + 2 * p
                a.e(f"v_pk_fma_f32 {vr(A,2)}, {vr(A,2)}, {vr(vRS+(mt&2),2)}, {vr(vBF+2*p,2)} {sel3(mt)}")
            for i, (mt, p) in enumerate(prs):
                A = acc(j, mt) + 2 * p
                a.e(f"v_pk_mul_f32 {vr(vW+2*i,2)}, {vr(A,2)}, {vr(A,2)}")
            for i, (mt, p) in enumerate(prs):
                a.e(f"v_pk_fma_f32 {vr(vW+2*i,2)}, {vr(vW+2*i,2)}, {sr(sC1,2)}, {vr(vC0,2)}")
            for i, (mt, p) in enumerate(prs):
                A = acc(j, mt) + 2 * p
                a.e(f"v_pk_mul_f32 {vr(vW+2*i,2)}, {vr(vW+2*i,2)}, {vr(A,2)}")
            for i in range(8):
                a.e(f"v_exp_f32 v{vW+i}, v{vW+i}")
            for i in range(4):
                a.e(f"v_pk_add_f32 {vr(vW+2*i,2)}, {vr(vW+2*i,2)}, {vr(vONE,2)}")
            for i in range(8):
                a.e(f"v_rcp_f32 v{vW+i}, v{vW+i}")
            for i, (mt, p) in enumerate(prs):
                A = acc(j, mt) + 2 * p
                a.e(f"v_pk_mul_f32 {vr(A,2)}, {vr(A,2)}, {vr(vW+2*i,2)}")
            for mt in (2 * mp, 2 * mp + 1):
                A = acc(j, mt)
                D = acc(j & ~1, mt) + 2 * (j & 1)
                a.e(f"v_cvt_pk_bf16_f32 v{D}, v{A}, v{A+1}")
                a.e(f"v_cvt_pk_bf16_f32 v{D+1}, v{A+2}, v{A+3}")
                if j & 1:
                    a.e(f"buffer_store_dwordx4 {vr(acc(j-1,mt),4)}, v{vSA+j//2}, {sr(sWS,4)}, 0 offen offset:{256*mt}")
    k1flush()
    a.e("s_endpgm")
    a.lab("K1_EPI_V")
    vNMv, vRSv = 40, 56
    vCSv = 88
    a.e(f"v_add_u32 v{vT+1}, s{t2}, v{vT+2}")
    for mt in range(4):
        a.e(f"ds_read_b128 {vr(vNMv+4*mt,4)}, v{vT+1} offset:{64*mt}")
    for mt in range(4):
        a.e(f"ds_read_b128 {vr(vRSv+4*mt,4)}, v{vT+1} offset:{512+64*mt}")
    a.e(f"v_add_u32 v{vT+3}, s{t3}, v{vT}")
    for j in range(4):
        a.e(f"ds_read_b32 v{vCSv+2*j}, v{vT+3} offset:{64*j}")
    for j in range(4):
        a.e(f"s_waitcnt lgkmcnt({3-j})")
        for mt in range(4):
            A = acc(j, mt)
            for p in range(2):
                a.e(f"v_pk_fma_f32 {vr(A+2*p,2)}, {vr(vNMv+4*mt+2*p,2)}, {vr(vCSv+2*j,2)}, {vr(A+2*p,2)} op_sel:[0,0,0] op_sel_hi:[1,0,1]")
        for mt in range(4):
            A = acc(j, mt)
            for p in range(2):
                a.e(f"v_pk_mul_f32 {vr(A+2*p,2)}, {vr(A+2*p,2)}, {vr(vRSv+4*mt+2*p,2)}")
        for t2_ in range(2):
            A0, A1 = acc(j, 2 * t2_), acc(j, 2 * t2_ + 1)
            a.e(f"v_cvt_pk_bf16_f32 v{A0}, v{A0}, v{A0+1}")
            a.e(f"v_cvt_pk_bf16_f32 v{A0+1}, v{A0+2}, v{A0+3}")
            a.e(f"v_cvt_pk_bf16_f32 v{A0+2}, v{A1}, v{A1+1}")
            a.e(f"v_cvt_pk_bf16_f32 v{A0+3}, v{A1+2}, v{A1+3}")
            a.e(f"buffer_store_dwordx4 {vr(A0,4)}, v{vSA+j}, {sr(sWS,4)}, 0 offen offset:{KVT*t2_}")
    k1flush()
    a.e("s_endpgm")

    a.lab("K1_TRANS")
    sTAU, sSEL0, sSEL1 = 51, 52, 53
    NB_T = 4
    sTs = [24, 28, 36, 40]
    sK = [54, 56, 58, 76]
    vTO = [2, 3, 4, 5]
    vTS = [6, 7, 8, 9]
    vTL = [88, 104, 120, 136]
    a.e(f"s_mul_i32 s{sTAU}, s{sRB}, 12")
    a.e(f"s_add_u32 s{sTAU}, s{sTAU}, s{sW}")
    a.e(f"s_mov_b32 s{sSEL0}, 0x05040100")
    a.e(f"s_mov_b32 s{sSEL1}, 0x07060302")
    a.e(f"v_lshlrev_b32 v{vT}, 2, v{vLANE}")
    a.e(f"v_lshlrev_b32 v{vT+1}, 5, v{vLANE}")
    a.e("s_waitcnt lgkmcnt(0)")
    srd(a, sWS, "s18", "s19", WS_END)
    a.e(f"s_lshl_b32 s{t0}, s{sTAU}, 4")
    a.e(f"v_lshrrev_b32 v{vT+2}, 2, v{vLANE}")
    a.e(f"v_add_u32 v{vT+2}, s{t0}, v{vT+2}")
    a.e(f"v_mul_u32_u24 v{vT+2}, {KVT}, v{vT+2}")
    a.e(f"v_and_b32 v{vT+3}, 3, v{vLANE}")
    a.e(f"v_mul_u32_u24 v{vT+3}, {VP}, v{vT+3}")
    a.e(f"v_add_u32 v{vT+2}, v{vT+2}, v{vT+3}")
    a.e(f"s_cmp_lt_u32 s{sTAU}, 128")
    a.e(f"s_cselect_b32 s{t0}, {hx(KV_OFF + 1280 + 320)}, {hx(OOB)}")
    for i in range(4):
        a.e(f"v_mov_b32 v{12+i}, 0x3f803f80")
    a.e(f"buffer_store_dwordx4 v[12:15], v{vT+2}, {sr(sWS,4)}, s{t0} offen")
    a.e(f"s_cmp_eq_u32 s{sTAU}, 128")
    a.e(f"s_cselect_b32 s{t0}, {hx(FL_OFF)}, {hx(OOB)}")
    for i in range(4):
        a.e(f"v_mov_b32 v{16+i}, 0")
    a.e(f"v_lshlrev_b32 v{vT+3}, 4, v{vLANE}")
    a.e(f"buffer_store_dwordx4 v[16:19], v{vT+3}, {sr(sWS,4)}, s{t0} offen")
    a.e(f"s_mov_b32 s{sIT+3}, 0")
    a.lab("K1_TL")
    for b in range(NB_T):
        T = sTs[b]
        a.e(f"s_mul_i32 s{t1}, s{sTAU}, 13108")
        a.e(f"s_lshr_b32 s{t1}, s{t1}, 16")
        a.e(f"s_mul_i32 s{t2}, s{t1}, 5")
        a.e(f"s_sub_u32 s{t2}, s{sTAU}, s{t2}")
        a.e(f"s_mul_i32 s{t3}, s{t1}, 205")
        a.e(f"s_lshr_b32 s{t3}, s{t3}, 10")
        a.e(f"s_mul_i32 s{t4}, s{t3}, 5")
        a.e(f"s_sub_u32 s{t4}, s{t1}, s{t4}")
        a.e(f"s_mul_i32 s{t3}, s{t3}, 40")
        a.e(f"s_lshr_b32 s{t5}, s{t4}, 1")
        a.e(f"s_mul_i32 s{t5}, s{t5}, 20")
        a.e(f"s_and_b32 s{t6}, s{t4}, 1")
        a.e(f"s_lshl_b32 s{t6}, s{t6}, 2")
        a.e(f"s_add_u32 s{t5}, s{t5}, s{t6}")
        a.e(f"s_add_u32 s{t6}, s{t5}, 8")
        a.e(f"s_cmp_eq_u32 s{t4}, 4")
        a.e(f"s_cselect_b32 s{t5}, 16, s{t5}")
        a.e(f"s_cselect_b32 s{t6}, 36, s{t6}")
        a.e(f"s_add_u32 s{t5}, s{t5}, s{t3}")
        a.e(f"s_add_u32 s{t6}, s{t6}, s{t3}")
        a.e(f"s_sub_u32 s{t3}, s{t1}, 80")
        a.e(f"s_lshr_b32 s{t4}, s{t3}, 2")
        a.e(f"s_lshl_b32 s{t4}, s{t4}, 5")
        a.e(f"s_and_b32 s{t3}, s{t3}, 3")
        a.e(f"s_lshl_b32 s{t3}, s{t3}, 2")
        a.e(f"s_add_u32 s{t3}, s{t3}, s{t4}")
        a.e(f"s_add_u32 s{t4}, s{t3}, 16")
        a.e(f"s_cmp_lt_u32 s{t1}, 80")
        a.e(f"s_cselect_b32 s{t5}, s{t5}, s{t3}")
        a.e(f"s_cselect_b32 s{t6}, s{t6}, s{t4}")
        a.e(f"s_cselect_b32 s{T}, s8, s16")
        a.e(f"s_cselect_b32 s{T+1}, s9, s17")
        a.e(f"s_cselect_b32 s{T+2}, {hx(640*640*2)}, {hx(1728*640*2)}")
        a.e(f"s_mov_b32 s{T+3}, 0x00020000")
        a.e(f"s_mul_i32 s{sK[b]}, s{t5}, 1280")
        a.e(f"s_mul_i32 s{sK[b]+1}, s{t6}, 1280")
        a.e(f"s_lshl_b32 s{t3}, s{t2}, 8")
        a.e(f"v_add_u32 v{vTO[b]}, s{t3}, v{vT}")
        for j in range(8):
            so = sK[b] if j < 4 else sK[b] + 1
            a.e(f"buffer_load_dword v{vTL[b]+j}, v{vTO[b]}, {sr(T,4)}, s{so} offen offset:{(j&3)*1280}")
        a.e(f"s_mul_i32 s{t1}, s{t1}, 10240")
        a.e(f"s_lshl_b32 s{t2}, s{t2}, 11")
        a.e(f"s_add_u32 s{t1}, s{t1}, s{t2}")
        a.e(f"s_add_u32 s{t1}, s{t1}, {hx(WT_OFF)}")
        a.e(f"s_cmp_lt_u32 s{sTAU}, 1480")
        a.e(f"s_cselect_b32 s{t1}, s{t1}, {hx(OOB)}")
        a.e(f"v_add_u32 v{vTS[b]}, s{t1}, v{vT+1}")
        a.e(f"s_add_u32 s{sTAU}, s{sTAU}, 192")
    for b in range(NB_T):
        a.e(f"s_waitcnt vmcnt({8*(NB_T-1-b) + 2*b})")
        for i in range(4):
            a.e(f"v_perm_b32 v{vTL[b]+8+i}, v{vTL[b]+2*i+1}, v{vTL[b]+2*i}, s{sSEL0}")
            a.e(f"v_perm_b32 v{vTL[b]+12+i}, v{vTL[b]+2*i+1}, v{vTL[b]+2*i}, s{sSEL1}")
        a.e(f"buffer_store_dwordx4 {vr(vTL[b]+8,4)}, v{vTS[b]}, {sr(sWS,4)}, 0 offen")
        a.e(f"buffer_store_dwordx4 {vr(vTL[b]+12,4)}, v{vTS[b]}, {sr(sWS,4)}, 0 offen offset:16")
    a.e(f"s_add_u32 s{sIT+3}, s{sIT+3}, 1")
    a.e(f"s_cmp_lt_u32 s{sIT+3}, 2")
    a.e("s_cbranch_scc1 K1_TL")
    if DIAG:
        for i in (1, 2, 3, 5):
            stamp(a, i)
    k1flush()
    a.lab("K1_END")
    a.e("s_endpgm")
    return name, NV, 102 if DIAG else 80, (256, 768, K1_LDS)


K2_LDS = 163840
Y_OFF = 0x1400000
Y_SIZE = 2048 * 640 * 4
WS_ALL = Y_OFF + Y_SIZE


def gen_k2(a):
    name = "k2_attn_kernel"
    kernel_header(a, name)
    X2 = os.environ.get("K2X", "")
    sWS, sKV = 12, 16
    sW, sH, sQT, sOFF, sIT, sG = 20, 21, 22, 23, 24, 25
    sLD = 26
    t0, t1, t2, t3 = 28, 29, 30, 31
    sBM = 32
    vLANE = 1
    vL16, vKa, vKb, vV = 2, 3, 4, 5
    vT = 6
    QA, QB = [12, 20], [16, 24]
    KA, KB = 28, 32
    V0, V1 = 36, 40
    P0, P1 = 44, 48
    O = [64, 80]
    S = [96, 112]
    NV = 168
    RG = 81920
    FUSE = "u" not in X2
    k2flush = lambda: (stamp(a, 4), stamp_flush(a, 1, 12, sW, "s4", "s5", 8, 2))

    a.e("s_cmp_ge_u32 s2, 256")
    a.e("s_cbranch_scc1 K2_END")
    stamp(a, 0)
    a.e("s_load_dwordx2 s[4:5], s[0:1], 80")
    a.e("s_load_dwordx2 s[6:7], s[0:1], 0")
    a.e("s_load_dwordx2 s[8:9], s[0:1], 56")
    a.e("s_load_dwordx4 s[60:63], s[0:1], 64")
    a.e(f"v_and_b32 v{vLANE}, 63, v0")
    a.e(f"v_lshrrev_b32 v{vT}, 6, v0")
    a.e(f"s_and_b32 s{t0}, s2, 7")
    a.e(f"v_readfirstlane_b32 s{sW}, v{vT}")
    a.e(f"s_lshr_b32 s{t1}, s2, 3")
    a.e(f"s_lshl_b32 s{t2}, s{t0}, 2")
    a.e(f"s_and_b32 s{t3}, s{t1}, 3")
    a.e(f"s_add_u32 s{sH}, s{t2}, s{t3}")
    a.e(f"v_lshlrev_b32 v{vL16}, 4, v{vLANE}")
    a.e(f"s_mul_i32 s{t2}, s{sH}, {KVH}")
    a.e(f"s_add_u32 s{t2}, s{t2}, {hx(KV_OFF)}")
    a.e("s_waitcnt lgkmcnt(0)")
    stamp(a, 5)
    a.e(f"s_add_u32 s{sKV}, s4, s{t2}")
    a.e(f"s_addc_u32 s{sKV+1}, s5, 0")
    a.e(f"s_mov_b32 s{sKV+2}, {KVH}")
    a.e(f"s_mov_b32 s{sKV+3}, 0x00020000")
    a.e(f"s_cmp_ge_u32 s{sW}, 4")
    a.e("s_cbranch_scc1 K2_ATT")
    sA, sWT, sXX, sB2, sY = 36, 40, 44, 48, 52
    sRB, sCB, sOA, sOW = 56, 57, 58, 59
    vOA, vOW, vXO, vBO, vYO = 3, 4, 5, 12, 13
    F = 16
    ACC = 88

    def fA(s_, mt):
        return F + 36 * s_ + 4 * mt

    def fW(s_, t):
        return F + 36 * s_ + 16 + 4 * t

    def kvdma(n):
        for t in range(n):
            a.e(f"s_mov_b32 m0, s{sLD}")
            a.e(f"s_add_u32 s{sLD}, s{sLD}, 2048")
            a.e(f"buffer_load_dwordx4 v{vL16}, {sr(sKV,4)}, s{sOFF} offen lds")
            a.e(f"s_add_u32 s{sOFF}, s{sOFF}, 2048")

    a.e("s_setprio 3")
    a.e(f"s_and_b32 s{t2}, s{sW}, 1")
    a.e(f"s_lshr_b32 s{t3}, s{sW}, 1")
    a.e(f"s_lshl_b32 s{t3}, s{t3}, 10")
    a.e(f"s_mul_i32 s{sOFF}, s{t2}, {32*KVT}")
    a.e(f"s_add_u32 s{sOFF}, s{sOFF}, s{t3}")
    a.e(f"s_mul_i32 s{sLD}, s{t2}, {RG}")
    a.e(f"s_add_u32 s{sLD}, s{sLD}, s{t3}")
    kvdma(9)
    a.e(f"s_lshl_b32 s{t0}, s{t0}, 2")
    a.e(f"s_and_b32 s{t2}, s{t1}, 3")
    a.e(f"s_add_u32 s{sRB}, s{t0}, s{t2}")
    a.e(f"s_lshr_b32 s{sCB}, s{t1}, 2")
    srd_off(a, sA, "s4", "s5", AB_OFF + 80 * 32768, AB_SIZE - 80 * 32768)
    srd_off(a, sWT, "s4", "s5", WT_OFF + 80 * 10240, WT_SIZE - 80 * 10240)
    srd(a, sXX, "s6", "s7", 2048 * 640 * 2)
    srd(a, sB2, "s8", "s9", 640 * 2)
    srd_off(a, sY, "s4", "s5", Y_OFF, Y_SIZE)
    a.e(f"v_and_b32 v{vT}, 15, v{vLANE}")
    a.e(f"v_lshrrev_b32 v{vT+1}, 4, v{vLANE}")
    a.e(f"s_lshl_b32 s{t0}, s{sRB}, 6")
    a.e(f"v_add_u32 v{vT+2}, s{t0}, v{vT}")
    a.e(f"v_lshlrev_b32 v{vOA}, 4, v{vT+2}")
    a.e(f"v_lshl_add_u32 v{vOA}, v{vT+1}, 15, v{vOA}")
    a.e(f"s_mul_i32 s{t1}, s{sCB}, 80")
    a.e(f"v_add_u32 v{vT+3}, s{t1}, v{vT}")
    a.e(f"v_lshlrev_b32 v{vOW}, 4, v{vT+3}")
    a.e(f"v_mul_u32_u24 v{vT+3}, 10240, v{vT+1}")
    a.e(f"v_add_u32 v{vOW}, v{vOW}, v{vT+3}")
    a.e(f"s_lshl_b32 s{sOA}, s{sW}, 17")
    a.e(f"s_mul_i32 s{sOW}, s{sW}, 40960")
    a.e(f"v_lshlrev_b32 v{vBO}, 3, v{vT+1}")
    a.e(f"s_lshl_b32 s{t2}, s{t1}, 1")
    a.e(f"v_add_u32 v{vBO}, s{t2}, v{vBO}")
    a.e(f"s_lshl_b32 s{t2}, s{sW}, 4")
    a.e(f"v_add_u32 v{vT+2}, s{t2}, v{vT+2}")
    a.e(f"v_mul_u32_u24 v{vXO}, 1280, v{vT+2}")
    a.e(f"v_add_u32 v{vXO}, v{vXO}, v{vBO}")
    a.e(f"s_lshl_b32 s{t0}, s{sRB}, 3")
    a.e(f"s_add_u32 s{t0}, s{t0}, s{sCB}")
    a.e(f"s_mul_i32 s{t0}, s{t0}, 20480")
    a.e(f"s_mul_i32 s{t2}, s{sW}, 5120")
    a.e(f"s_add_u32 s{t0}, s{t0}, s{t2}")
    a.e(f"v_add_u32 v{vYO}, s{t0}, v{vL16}")
    for i in range(80):
        a.e(f"v_mov_b32 v{ACC+i}, 0")
    a.e(f"s_mov_b32 s{sIT}, 0")
    a.e(f"s_mov_b32 s{sBM}, {hx((1 << 1) | (1 << 4))}")
    a.e(f"v_mov_b32 v{vT}, 0")
    a.e("s_waitcnt vmcnt(3)")
    a.e("s_barrier")
    stamp(a, 1)
    kvdma(31)

    def loads(s_):
        r = [f"buffer_load_dwordx4 {vr(fA(s_,mt),4)}, v{vOA}, {sr(sA,4)}, s{sOA} offen offset:{256*mt}" for mt in range(4)]
        for t in range(5):
            r.append(f"buffer_load_dwordx4 {vr(fW(s_,t),4)}, v{vOW}, {sr(sWT,4)}, s{sOW} offen offset:{256*t}")
        r.append(f"s_add_u32 s{sOA}, s{sOA}, {4*131072}")
        r.append(f"s_add_u32 s{sOW}, s{sOW}, {4*40960}")
        return r

    for s_ in range(2):
        for ins in loads(s_):
            a.e(ins)
    a.e("s_waitcnt vmcnt(49)")
    a.e("s_barrier")
    stamp(a, 2)
    a.e(f"ds_write_b32 v{vT}, v{vT}")
    if "n" in X2:
        a.e("s_waitcnt vmcnt(0)")
        a.e("s_barrier")
        stamp(a, 3)
        k2flush()
        a.e("s_endpgm")
    a.e(f"s_setprio {3 if 'Z' in X2 else (1 if 'y' in X2 else 0)}")
    a.raw(".p2align 3")
    a.lab("K2_GL")
    for s_ in range(2):
        ld = loads(s_)
        a.e("s_waitcnt vmcnt(9)")
        for t in range(5):
            for mt in range(4):
                A_ = ACC + 20 * mt + 4 * t
                a.e(f"v_mfma_f32_16x16x32_bf16 {vr(A_,4)}, {vr(fW(s_,t),4)}, {vr(fA(s_,mt),4)}, {vr(A_,4)}")
                if t == 4:
                    a.e(ld[mt])
            a.e(ld[4 + t])
        a.e(ld[9]); a.e(ld[10])
    a.e(f"s_add_u32 s{sIT}, s{sIT}, 1")
    a.e(f"s_bitcmp0_b32 s{sBM}, s{sIT}")
    a.e("s_cbranch_scc1 K2_GNB")
    a.e("s_waitcnt lgkmcnt(0)")
    a.e("s_barrier")
    a.lab("K2_GNB")
    a.e(f"s_cmp_lt_u32 s{sIT}, 7")
    a.e("s_cbranch_scc1 K2_GL")
    stamp(a, 3)
    a.e("s_setprio 3")
    a.e("s_waitcnt vmcnt(0)")
    XR = 68
    for q in range(5):
        a.e(f"buffer_load_dwordx2 {vr(XR+2*q,2)}, v{vXO}, {sr(sXX,4)}, 0 offen offset:{32*q}")
        a.e(f"buffer_load_dwordx2 {vr(XR+10+2*q,2)}, v{vBO}, {sr(sB2,4)}, 0 offen offset:{32*q}")
    a.e(f"s_lshr_b32 s{t0}, s{sW}, 1")
    a.e(f"s_mul_i32 s{t0}, s{t0}, {RG}")
    a.e(f"s_and_b32 s{t1}, s{sW}, 1")
    a.e(f"s_mul_i32 s{t1}, s{t1}, 20480")
    a.e(f"s_add_u32 s{t0}, s{t0}, s{t1}")
    a.e(f"s_add_u32 s{t0}, s{t0}, 1024")
    a.e(f"v_add_u32 v{vT+1}, s{t0}, v{vL16}")
    for q in range(20):
        a.e(f"ds_write_b128 v{vT+1}, {vr(ACC+4*q,4)} offset:{1024*q}")
    a.e(f"v_mov_b32 v{vT+2}, 1")
    a.e("s_waitcnt lgkmcnt(0)")
    a.e("s_mov_b64 exec, 1")
    a.e(f"ds_add_u32 v{vT}, v{vT+2}")
    a.e("s_mov_b64 exec, -1")
    a.e("s_setprio 0")
    a.lab("K2_POLL")
    a.e(f"ds_read_b32 v{vT+3}, v{vT}")
    a.e("s_waitcnt lgkmcnt(0)")
    a.e(f"v_readfirstlane_b32 s{t0}, v{vT+3}")
    a.e(f"s_cmp_lt_u32 s{t0}, 4")
    a.e("s_cbranch_scc1 K2_POLL")
    a.e("s_setprio 3")
    a.e(f"s_mul_i32 s{t0}, s{sW}, 5120")
    a.e(f"s_add_u32 s{t0}, s{t0}, 1024")
    a.e(f"v_add_u32 v{vT+1}, s{t0}, v{vL16}")
    a.e(f"v_add_u32 v{vT+2}, {RG}, v{vT+1}")
    R = ACC
    for q in range(5):
        for wv in range(4):
            base = vT + 1 if wv < 2 else vT + 2
            a.e(f"ds_read_b128 {vr(R+16*q+4*wv,4)}, v{base} offset:{(wv&1)*20480 + 1024*q}")
    a.e(f"s_movk_i32 s{t1}, 4096")
    a.e("s_waitcnt vmcnt(0)")
    for q in range(5):
        a.e(f"s_waitcnt lgkmcnt({min(15,4*(4-q))})")
        b = R + 16 * q
        for i in range(4):
            a.e(f"v_add_f32 v{b+i}, v{b+i}, v{b+4+i}")
            a.e(f"v_add_f32 v{b+8+i}, v{b+8+i}, v{b+12+i}")
        for i in range(4):
            a.e(f"v_add_f32 v{b+i}, v{b+i}, v{b+8+i}")
        for k, src in enumerate((XR + 2 * q, XR + 10 + 2 * q)):
            u = b + 4 + 4 * k
            a.e(f"v_lshlrev_b32 v{u}, 16, v{src}")
            a.e(f"v_and_b32 v{u+1}, 0xffff0000, v{src}")
            a.e(f"v_lshlrev_b32 v{u+2}, 16, v{src+1}")
            a.e(f"v_and_b32 v{u+3}, 0xffff0000, v{src+1}")
        for i in range(4):
            a.e(f"v_add_f32 v{b+i}, v{b+i}, v{b+4+i}")
        for i in range(4):
            a.e(f"v_add_f32 v{b+i}, v{b+i}, v{b+8+i}")
        if not FUSE:
            so, off = ("0", 1024 * q) if q < 4 else (f"s{t1}", 0)
            a.e(f"buffer_store_dwordx4 {vr(b,4)}, v{vYO}, {sr(sY,4)}, {so} offen offset:{off}")
    if FUSE:
        YA = [R + 16 * q for q in range(5)]
        a.e("s_barrier")
        srd_off(a, sWT, "s4", "s5", WT_OFF, 80 * 10240)
        srd_off(a, sA, "s4", "s5", AB_OFF, 80 * 32768)
        srd(a, sY, "s60", "s61", 2048 * 640 * 2)
        srd_off(a, sB2, "s4", "s5", FL_OFF, 1024)
        a.e(f"s_mul_i32 s{sOW}, s{sW}, {5*40960}")
        a.e(f"s_lshr_b32 s{t0}, s{sW}, 1")
        a.e(f"s_mul_i32 s{t0}, s{t0}, {RG}")
        a.e(f"s_and_b32 s{t1}, s{sW}, 1")
        a.e(f"s_mul_i32 s{t1}, s{t1}, 25600")
        a.e(f"s_add_u32 s{t0}, s{t0}, s{t1}")
        for r in range(5):
            for q in range(5):
                a.e(f"s_add_u32 m0, s{t0}, {r*5120 + q*768}")
                a.e("s_nop 0")
                a.e(f"buffer_load_dwordx4 v{vOW}, {sr(sWT,4)}, s{sOW} offen offset:{256*q} lds")
            a.e(f"s_add_u32 s{sOW}, s{sOW}, 40960")
        a.e(f"s_lshl_b32 s{t2}, s{sW}, 8")
        a.e(f"v_add_u32 v{vOA}, s{t2}, v{vOA}")
        a.e(f"v_add_u32 v{vT+2}, {RG}, v{vL16}")
        a.e(f"v_mov_b32 v{vT+1}, 1")
        a.e(f"s_lshr_b32 s{t2}, s2, 5")
        a.e(f"s_lshl_b32 s{t2}, s{t2}, 5")
        a.e(f"s_add_u32 s{t2}, s{t2}, s{sH}")
        a.e(f"s_lshl_b32 s{t2}, s{t2}, 2")
        a.e(f"s_lshr_b32 s{t3}, s{sRB}, 2")
        a.e(f"s_lshl_b32 s{t3}, s{t3}, 7")
        a.e(f"v_lshlrev_b32 v{vT+4}, 2, v{vLANE}")
        a.e("s_barrier")
        a.e("s_waitcnt vmcnt(0)")
        a.e("s_barrier")
        stamp(a, 1)
        a.e(f"s_cmp_lg_u32 s{sW}, 0")
        a.e("s_cbranch_scc1 K2_PW")
        a.e("s_mov_b64 exec, 1")
        a.e(f"buffer_store_dword v{vT+1}, v{vT}, {sr(sB2,4)}, s{t2} offen sc1")
        a.e("s_mov_b32 exec_lo, -1")
        a.e(f"s_mov_b32 s{sIT}, 0")
        a.lab("K2_GP")
        a.e(f"buffer_load_dword v{vT+3}, v{vT+4}, {sr(sB2,4)}, s{t3} offen sc1")
        a.e(f"s_add_u32 s{sIT}, s{sIT}, 1")
        a.e("s_waitcnt vmcnt(0)")
        a.e(f"v_cmp_ne_u32 vcc, 1, v{vT+3}")
        a.e(f"s_cmp_ge_u32 s{sIT}, {1 << 21}")
        a.e("s_cbranch_scc1 K2_GPD")
        a.e("s_cbranch_vccz K2_GPD")
        a.e("s_sleep 4")
        a.e("s_branch K2_GP")
        a.lab("K2_GPD")
        a.e("s_mov_b64 exec, -1")
        a.lab("K2_PW")
        a.e("s_barrier")
        stamp(a, 2)
        FAr = [16 + 4 * i for i in range(18)] + [R + 4, R + 8]
        FBr = [[R + 20, R + 24, R + 28, R + 36, R + 40], [R + 44, R + 52, R + 56, R + 60, R + 68]]
        a.e(f"s_mov_b32 s{sOA}, 0")
        for ks in range(20):
            a.e(f"buffer_load_dwordx4 {vr(FAr[ks],4)}, v{vOA}, {sr(sA,4)}, s{sOA} offen sc1")
            a.e(f"s_add_u32 s{sOA}, s{sOA}, 131072")

        def rdB(ks):
            base, off = (vL16, ks * 5120) if ks < 10 else (vT + 2, (ks - 10) * 5120)
            return [f"ds_read_b128 {vr(FBr[ks&1][t],4)}, v{base} offset:{off+1024*t}" for t in range(5)]

        for ins in rdB(0):
            a.e(ins)
        for ks in range(20):
            if ks < 19:
                for ins in rdB(ks + 1):
                    a.e(ins)
            a.e(f"s_waitcnt vmcnt({19-ks}) lgkmcnt({5 if ks < 19 else 0})")
            for t in range(5):
                a.e(f"v_mfma_f32_16x16x32_bf16 {vr(YA[t],4)}, {vr(FBr[ks&1][t],4)}, {vr(FAr[ks],4)}, {vr(YA[t],4)}")
        a.e("s_nop 7")
        for t in range(5):
            A_ = YA[t]
            a.e(f"v_cvt_pk_bf16_f32 v{A_}, v{A_}, v{A_+1}")
            a.e(f"v_cvt_pk_bf16_f32 v{A_+1}, v{A_+2}, v{A_+3}")
            a.e(f"buffer_store_dwordx2 {vr(A_,2)}, v{vXO}, {sr(sY,4)}, 0 offen offset:{32*t}")
    k2flush()
    a.e("s_endpgm")

    a.lab("K2_ATT")
    vKa0, vKb0, vV0 = 52, 53, 54
    srd(a, sWS, "s4", "s5", WS_END)
    if "c" not in X2:
        NPF = int(os.environ.get("NPF", "8"))
        a.e(f"s_cmp_ge_u32 s2, {NPF}")
        a.e("s_cbranch_scc1 K2_NOCP")
        a.e(f"s_cmp_ge_u32 s{sW}, 6")
        a.e("s_cbranch_scc1 K2_NOCP")
        a.e(f"s_and_b32 s{t0}, s{sW}, 1")
        code_prefetch(a, "k2", "k2_attn_kernel", "CODE_END", 36, t0, vLANE, vT, 60)
        a.lab("K2_NOCP")
    a.e(f"s_lshr_b32 s{sG}, s{sW}, 3")
    a.e(f"s_lshr_b32 s{t1}, s{t1}, 2")
    a.e(f"s_lshl_b32 s{t1}, s{t1}, 3")
    a.e(f"s_and_b32 s{t2}, s{sW}, 3")
    a.e(f"s_lshl_b32 s{t2}, s{t2}, 1")
    a.e(f"s_add_u32 s{sQT}, s{t1}, s{t2}")
    a.e(f"s_mul_i32 s{t0}, s{sH}, 81920")
    a.e(f"s_mul_i32 s{t1}, s{sQT}, 1280")
    a.e(f"s_add_u32 s{t0}, s{t0}, s{t1}")
    if QB_OFF:
        a.e(f"s_add_u32 s{t0}, s{t0}, {hx(QB_OFF)}")
    a.e(f"v_and_b32 v{vT}, 31, v{vLANE}")
    a.e(f"v_lshrrev_b32 v{vT+1}, 5, v{vLANE}")
    a.e(f"v_lshlrev_b32 v{vKb0}, 3, v{vT}")
    a.e(f"v_lshl_add_u32 v{vT+2}, v{vT+1}, 30, v{vKb0}")
    a.e(f"v_add_u32 v{vKb0}, 1024, v{vKb0}")
    a.e(f"v_mov_b32 v{vKa0}, v{vL16}")
    a.e(f"v_min_u32 v{vT+3}, 20, v{vT}")
    a.e(f"v_mul_u32_u24 v{vV0}, {VP}, v{vT+1}")
    a.e(f"v_lshl_add_u32 v{vV0}, v{vT+3}, 4, v{vV0}")
    a.e(f"v_add_u32 v{vV0}, 1280, v{vV0}")
    a.e(f"s_mul_i32 s{sOFF}, s{sG}, {32*KVT}")
    a.e(f"s_add_u32 s{sOFF}, s{sOFF}, {31*KVT}")
    a.e(f"buffer_load_dwordx4 {vr(QA[0],4)}, v{vL16}, {sr(sWS,4)}, s{t0} offen")
    a.e(f"buffer_load_dwordx2 {vr(QB[0],2)}, v{vT+2}, {sr(sWS,4)}, s{t0} offen offset:1024")
    a.e(f"buffer_load_dwordx4 {vr(KA,4)}, v{vKa0}, {sr(sKV,4)}, s{sOFF} offen")
    a.e(f"buffer_load_dwordx2 {vr(KB,2)}, v{vKb0}, {sr(sKV,4)}, s{sOFF} offen")
    a.e(f"buffer_load_dwordx4 {vr(QA[1],4)}, v{vL16}, {sr(sWS,4)}, s{t0} offen offset:1280")
    a.e(f"buffer_load_dwordx2 {vr(QB[1],2)}, v{vT+2}, {sr(sWS,4)}, s{t0} offen offset:2304")
    a.e(f"buffer_load_dwordx4 {vr(V0,4)}, v{vV0}, {sr(sKV,4)}, s{sOFF} offen")
    a.e(f"buffer_load_dwordx4 {vr(V1,4)}, v{vV0}, {sr(sKV,4)}, s{sOFF} offen offset:{2*VP}")
    a.e(f"s_mul_i32 s{t1}, s{sG}, {RG}")
    a.e(f"v_add_u32 v{vKa}, s{t1}, v{vKa0}")
    a.e(f"v_add_u32 v{vKb}, s{t1}, v{vKb0}")
    a.e(f"v_add_u32 v{vV}, s{t1}, v{vV0}")
    for i in range(32):
        a.e(f"v_mov_b32 v{O[0]+i}, 0")
    a.e(f"s_mov_b32 s{sIT}, 0")
    a.e(f"s_mov_b32 s{sBM}, {hx((1 << 1) | (1 << 2) | (1 << 6) | (1 << 9))}")
    a.e("s_waitcnt vmcnt(4)")
    a.e(f"v_mfma_f32_32x32x16_bf16 {vr(S[0],16)}, {vr(KA,4)}, {vr(QA[0],4)}, 0")
    a.e(f"v_mfma_f32_32x32x8_bf16 {vr(S[0],16)}, {vr(KB,2)}, {vr(QB[0],2)}, {vr(S[0],16)}")
    a.e("s_waitcnt vmcnt(0)")
    a.e("s_nop 7")
    a.e("s_barrier")
    stamp(a, 1)

    def rdKa(t):
        return f"ds_read_b128 {vr(KA,4)}, v{vKa} offset:{KVT*t}"

    def rdKb(t):
        return f"ds_read_b64 {vr(KB,2)}, v{vKb} offset:{KVT*t}"

    def rdV(m, t):
        return f"ds_read_b128 {vr(V0 if m == 0 else V1,4)}, v{vV} offset:{KVT*t + 2*VP*m}"

    def item(x, lt, first=False, last=False):
        Sc, Sn = S[x], S[x ^ 1]

        def ex(lo):
            for i in range(lo, lo + 4):
                a.e(f"v_exp_f32 v{Sc+i}, v{Sc+i}")

        def cv(P, lo):
            a.e(f"v_cvt_pk_bf16_f32 v{P}, v{Sc+lo}, v{Sc+lo+1}")
            a.e(f"v_cvt_pk_bf16_f32 v{P+1}, v{Sc+lo+2}, v{Sc+lo+3}")

        doqk = not (last and x == 1)
        if x == 1 and doqk:
            a.e(f"s_waitcnt lgkmcnt({1 if first else 2})")
        if doqk:
            a.e(f"v_mfma_f32_32x32x16_bf16 {vr(Sn,16)}, {vr(KA,4)}, {vr(QA[x^1],4)}, 0")
        if x == 0 and not last:
            a.e(rdKa(lt + 1))
        ex(0)
        cv(P0, 0)
        if x == 1 and doqk:
            a.e(f"s_waitcnt lgkmcnt({0 if first else 1})")
        if doqk:
            a.e(f"v_mfma_f32_32x32x8_bf16 {vr(Sn,16)}, {vr(KB,2)}, {vr(QB[x^1],2)}, {vr(Sn,16)}")
        if x == 0 and not last:
            a.e(rdKb(lt + 1))
        ex(4)
        cv(P0 + 2, 4)
        if not (first and x == 0):
            if x == 1 and not first:
                a.e("s_waitcnt lgkmcnt(0)")
            a.e(f"v_mfma_f32_32x32x16_bf16 {vr(O[x^1],16)}, {vr(V1,4)}, {vr(P1,4)}, {vr(O[x^1],16)}")
            if x == 0:
                a.e(rdV(1, lt))
        ex(8)
        cv(P1, 8)
        if x == 0 and not first:
            a.e(f"s_waitcnt lgkmcnt({1 if last else 3})")
        a.e(f"v_mfma_f32_32x32x16_bf16 {vr(O[x],16)}, {vr(V0,4)}, {vr(P0,4)}, {vr(O[x],16)}")
        if x == 1 and not last:
            a.e(rdV(0, lt + 1))
        ex(12)
        cv(P1 + 2, 12)

    def item_b(x, lt, first=False, last=False):
        Sc, Sn = S[x], S[x ^ 1]
        doqk = not (last and x == 1)
        dopv = not (first and x == 0)
        G = int(os.environ.get("K2G", "4"))
        ms = []
        if doqk:
            m = []
            if x == 1:
                m.append(f"s_waitcnt lgkmcnt({1 if first else 3})")
            m.append(f"v_mfma_f32_32x32x16_bf16 {vr(Sn,16)}, {vr(KA,4)}, {vr(QA[x^1],4)}, 0")
            if x == 0 and not last:
                m.append(rdKa(lt + 1))
            ms.append(m)
            m = []
            if x == 1:
                m.append(f"s_waitcnt lgkmcnt({0 if first else 2})")
            m.append(f"v_mfma_f32_32x32x8_bf16 {vr(Sn,16)}, {vr(KB,2)}, {vr(QB[x^1],2)}, {vr(Sn,16)}")
            if x == 0 and not last:
                m.append(rdKb(lt + 1))
            ms.append(m)
        else:
            ms.append(["s_nop 1"])
        if dopv:
            m = []
            if x == 1 and not first:
                m.append("s_waitcnt lgkmcnt(1)")
            m.append(f"v_mfma_f32_32x32x16_bf16 {vr(O[x^1],16)}, {vr(V0,4)}, {vr(PP[x^1],4)}, {vr(O[x^1],16)}")
            if x == 0:
                m.append(rdV(0, lt))
            ms.append(m)
            m = []
            if x == 1 and not first:
                m.append("s_waitcnt lgkmcnt(0)")
            m.append(f"v_mfma_f32_32x32x16_bf16 {vr(O[x^1],16)}, {vr(V1,4)}, {vr(PP[x^1]+4,4)}, {vr(O[x^1],16)}")
            if x == 0:
                m.append(rdV(1, lt))
            ms.append(m)
        vs = []
        for g in range(4):
            v = [f"v_exp_f32 v{Sc+4*g+i}, v{Sc+4*g+i}" for i in range(4)]
            v.append(f"v_cvt_pk_bf16_f32 v{PP[x]+2*g}, v{Sc+4*g}, v{Sc+4*g+1}")
            v.append(f"v_cvt_pk_bf16_f32 v{PP[x]+2*g+1}, v{Sc+4*g+2}, v{Sc+4*g+3}")
            vs.append(v)
        mi = vi = 0
        while mi < len(ms) or vi < len(vs):
            for _ in range(G):
                if mi < len(ms):
                    for ins in ms[mi]:
                        a.e(ins)
                    mi += 1
            for _ in range(G):
                if vi < len(vs):
                    for ins in vs[vi]:
                        a.e(ins)
                    vi += 1

    BUNCH = "b" in X2
    PP = [P0, 128]
    if BUNCH:
        item = item_b
    a.e("s_setprio 2")
    item(0, -1, first=True)
    item(1, -1, first=True)
    a.raw(".p2align 6")
    a.lab("K2_LOOP")
    a.e(f"s_bitcmp1_b32 s{sBM}, s{sIT}")
    a.e("s_cbranch_scc1 K2_BAR")
    a.lab("K2_BODY")
    NT = 3
    for t in range(NT):
        for x in range(2):
            if "p" in X2:
                if 2 * t + x == 0:
                    a.e("s_setprio 2")
                if 2 * t + x == NT:
                    a.e("s_setprio 1")
            else:
                a.e(f"s_setprio {2 - x}")
            item(x, t)
    a.e(f"v_add_u32 v{vKa}, {KVT*NT}, v{vKa}")
    a.e(f"v_add_u32 v{vKb}, {KVT*NT}, v{vKb}")
    a.e(f"v_add_u32 v{vV}, {KVT*NT}, v{vV}")
    a.e(f"s_add_u32 s{sIT}, s{sIT}, 1")
    a.e(f"s_cmp_lt_u32 s{sIT}, 10")
    a.e("s_cbranch_scc1 K2_LOOP")
    item(0, 0, last=True)
    item(1, 0, last=True)
    stamp(a, 3)
    a.e("s_nop 1")
    if BUNCH:
        a.e(f"v_mfma_f32_32x32x16_bf16 {vr(O[1],16)}, {vr(V0,4)}, {vr(PP[1],4)}, {vr(O[1],16)}")
        a.e(f"v_mfma_f32_32x32x16_bf16 {vr(O[1],16)}, {vr(V1,4)}, {vr(PP[1]+4,4)}, {vr(O[1],16)}")
    else:
        a.e(f"v_mfma_f32_32x32x16_bf16 {vr(O[1],16)}, {vr(V1,4)}, {vr(P1,4)}, {vr(O[1],16)}")
    a.e(f"s_and_b32 s{t2}, s{sW}, 3")
    a.e(f"s_lshl_b32 s{t2}, s{t2}, 12")
    a.e(f"s_add_u32 s{t2}, s{t2}, 53248")
    a.e(f"s_mul_i32 s{t0}, s{sG}, {RG}")
    a.e(f"s_add_u32 s{t0}, s{t0}, s{t2}")
    a.e(f"s_xor_b32 s{t1}, s{sG}, 1")
    a.e(f"s_mul_i32 s{t1}, s{t1}, {RG}")
    a.e(f"s_add_u32 s{t1}, s{t1}, s{t2}")
    a.e(f"v_add_u32 v{vT}, s{t0}, v{vL16}")
    a.e(f"v_add_u32 v{vT+1}, s{t1}, v{vL16}")
    a.e(f"s_add_u32 s{sQT}, s{sQT}, s{sG}")
    a.e(f"s_cmp_eq_u32 s{sG}, 1")
    a.e("s_cbranch_scc1 K2_X1")
    a.e("s_nop 3")
    for q in range(4):
        a.e(f"ds_write_b128 v{vT}, {vr(O[1]+4*q,4)} offset:{1024*q}")
    a.e("s_branch K2_X2")
    a.lab("K2_X1")
    for q in range(4):
        a.e(f"ds_write_b128 v{vT}, {vr(O[0]+4*q,4)} offset:{1024*q}")
    a.e("s_nop 1")
    for i in range(16):
        a.e(f"v_mov_b32 v{O[0]+i}, v{O[1]+i}")
    for i in range(4):
        a.e(f"v_mov_b32 v{QA[0]+i}, v{QA[1]+i}")
    for i in range(2):
        a.e(f"v_mov_b32 v{QB[0]+i}, v{QB[1]+i}")
    a.lab("K2_X2")
    OO = O[0]
    sS0, sS1 = 34, 35
    a.e(f"s_lshr_b32 s{t0}, s{sH}, 1")
    a.e(f"s_mul_i32 s{t0}, s{t0}, 5")
    a.e(f"s_and_b32 s{t1}, s{sH}, 1")
    a.e(f"s_lshl_b32 s{t2}, s{t1}, 1")
    a.e(f"s_add_u32 s{t2}, s{t2}, s{t0}")
    a.e(f"s_lshl_b32 s{t2}, s{t2}, 15")
    a.e(f"s_add_u32 s{sS0}, s{t2}, {hx(AB_OFF)}")
    a.e(f"s_add_u32 s{t0}, s{t0}, 4")
    a.e(f"s_lshl_b32 s{t0}, s{t0}, 15")
    a.e(f"s_lshl_b32 s{t1}, s{t1}, 3")
    a.e(f"s_add_u32 s{t0}, s{t0}, s{t1}")
    a.e(f"s_add_u32 s{sS1}, s{t0}, {hx(AB_OFF)}")
    a.e(f"s_lshl_b32 s{t3}, s{sQT}, 9")
    vSA0, vSA1 = 56, 57
    a.e(f"v_and_b32 v{vT+2}, 31, v{vLANE}")
    a.e(f"v_lshlrev_b32 v{vT+2}, 4, v{vT+2}")
    a.e(f"v_add_u32 v{vT+2}, s{t3}, v{vT+2}")
    a.e(f"v_lshrrev_b32 v{vT+3}, 5, v{vLANE}")
    a.e(f"v_lshl_add_u32 v{vSA0}, v{vT+3}, 15, v{vT+2}")
    a.e(f"v_lshl_add_u32 v{vSA1}, v{vT+3}, 30, v{vT+2}")
    a.e("s_waitcnt lgkmcnt(0)")
    a.e("s_barrier")
    for q in range(4):
        a.e(f"ds_read_b128 {vr(S[0]+4*q,4)}, v{vT+1} offset:{1024*q}")
    a.e(f"v_mov_b32 v{vT+3}, {hx(f32(2.0**-60))}")
    a.e(f"v_mov_b32 v{vT+4}, {hx(f32(2.0**100))}")
    a.e(f"v_mov_b32 v{vT+5}, {hx(f32(2.0**120))}")
    a.e("s_waitcnt lgkmcnt(0)")
    for i in range(13):
        a.e(f"v_add_f32 v{OO+i}, v{OO+i}, v{S[0]+i}")
    a.e(f"v_max3_f32 v{vT+1}, abs(v{OO}), abs(v{OO+1}), abs(v{OO+2})")
    for i in range(3, 11, 2):
        a.e(f"v_max3_f32 v{vT+1}, abs(v{OO+i}), abs(v{OO+i+1}), v{vT+1}")
    a.e(f"v_max_f32 v{vT+1}, abs(v{OO+11}), v{vT+1}")
    a.e(f"v_add_f32 v{vT+2}, v{OO}, v{OO+1}")
    for i in range(2, 12):
        a.e(f"v_add_f32 v{vT+2}, v{vT+2}, v{OO+i}")
    a.e(f"v_cmp_gt_f32 {sr(t0,2)}, v{OO+12}, v{vT+3}")
    a.e(f"v_cmp_lt_f32 {sr(t2,2)}, v{OO+12}, v{vT+4}")
    a.e(f"v_cmp_lt_f32 vcc, v{vT+1}, v{vT+5}")
    a.e("s_nop 1")
    a.e(f"s_and_b64 {sr(t0,2)}, {sr(t0,2)}, {sr(t2,2)}")
    a.e(f"s_and_b64 {sr(t0,2)}, {sr(t0,2)}, vcc")
    a.e(f"v_cmp_o_f32 vcc, v{vT+2}, v{vT+2}")
    a.e("s_nop 1")
    a.e(f"s_and_b64 {sr(t0,2)}, {sr(t0,2)}, vcc")
    a.e(f"s_cmp_eq_u64 {sr(t0,2)}, -1")
    a.e("s_cbranch_scc0 K2_SLOW")
    a.lab("K2_FIN")
    a.e(f"v_rcp_f32 v{vT}, v{OO+12}")
    a.e("s_nop 0")
    for i in range(12):
        a.e(f"v_mul_f32 v{OO+i}, v{OO+i}, v{vT}")
    for i in range(6):
        a.e(f"v_cvt_pk_bf16_f32 v{OO+i}, v{OO+2*i}, v{OO+2*i+1}")
    sc = " sc1" if FUSE else ""
    a.e(f"buffer_store_dwordx4 {vr(OO,4)}, v{vSA0}, {sr(sWS,4)}, s{sS0} offen{sc}")
    a.e(f"buffer_store_dwordx2 {vr(OO+4,2)}, v{vSA1}, {sr(sWS,4)}, s{sS1} offen{sc}")
    if FUSE:
        a.e("s_waitcnt vmcnt(0)")
        a.e("s_barrier")
    k2flush()
    a.lab("K2_END")
    a.e("s_endpgm")
    a.lab("K2_BAR")
    a.e("s_barrier")
    stamp(a, 2)
    a.e("s_branch K2_BODY")
    a.lab("K2_SLOW")
    vM = 58
    Sc = S[0]
    for ps in range(2):
        if ps == 0:
            a.e(f"v_mov_b32 v{vM}, 0xff800000")
        else:
            for i in range(16):
                a.e(f"v_mov_b32 v{OO+i}, 0")
        a.e(f"s_mov_b32 s{sOFF}, 0")
        a.lab(f"K2_SL{ps}")
        a.e(f"buffer_load_dwordx4 {vr(KA,4)}, v{vKa0}, {sr(sKV,4)}, s{sOFF} offen")
        a.e(f"buffer_load_dwordx2 {vr(KB,2)}, v{vKb0}, {sr(sKV,4)}, s{sOFF} offen")
        if ps == 1:
            a.e(f"buffer_load_dwordx4 {vr(V0,4)}, v{vV0}, {sr(sKV,4)}, s{sOFF} offen")
            a.e(f"buffer_load_dwordx4 {vr(V1,4)}, v{vV0}, {sr(sKV,4)}, s{sOFF} offen offset:{2*VP}")
        a.e("s_waitcnt vmcnt(0)")
        a.e(f"v_mfma_f32_32x32x16_bf16 {vr(Sc,16)}, {vr(KA,4)}, {vr(QA[0],4)}, 0")
        a.e(f"v_mfma_f32_32x32x8_bf16 {vr(Sc,16)}, {vr(KB,2)}, {vr(QB[0],2)}, {vr(Sc,16)}")
        a.e("s_nop 15")
        a.e("s_nop 3")
        if ps == 0:
            for i in range(0, 16, 2):
                a.e(f"v_max3_f32 v{vM}, v{Sc+i}, v{Sc+i+1}, v{vM}")
        else:
            for i in range(16):
                a.e(f"v_sub_f32 v{Sc+i}, v{Sc+i}, v{vM}")
            for i in range(16):
                a.e(f"v_exp_f32 v{Sc+i}, v{Sc+i}")
            a.e("s_nop 0")
            for i in range(8):
                a.e(f"v_cvt_pk_bf16_f32 v{P0+i}, v{Sc+2*i}, v{Sc+2*i+1}")
            a.e("s_nop 1")
            a.e(f"v_mfma_f32_32x32x16_bf16 {vr(OO,16)}, {vr(V0,4)}, {vr(P0,4)}, {vr(OO,16)}")
            a.e(f"v_mfma_f32_32x32x16_bf16 {vr(OO,16)}, {vr(V1,4)}, {vr(P1,4)}, {vr(OO,16)}")
            a.e("s_nop 7")
        a.e(f"s_add_u32 s{sOFF}, s{sOFF}, {KVT}")
        a.e(f"s_cmp_lt_u32 s{sOFF}, {KVH}")
        a.e(f"s_cbranch_scc1 K2_SL{ps}")
        if ps == 0:
            a.e(f"v_mov_b32 v{vT+4}, v{vM}")
            a.e("s_nop 1")
            a.e(f"v_permlane32_swap_b32 v{vM}, v{vT+4}")
            a.e(f"v_max_f32 v{vM}, v{vM}, v{vT+4}")
    a.e("s_nop 15")
    a.e("s_nop 3")
    a.e("s_branch K2_FIN")
    return name, NV, 102 if DIAG else 64, (256, 768, K2_LDS)


K3_LDS = 102400


def gen_k3(a):
    name = "k3_out_kernel"
    kernel_header(a, name)
    sA, sWT, sY, sO = 12, 16, 20, 24
    sW, sRB, sCB, sOW, sM = 32, 33, 34, 35, 36
    t0, t1, t2, t3 = 38, 39, 40, 41
    vLANE, vOA, vOW, vYO, vOO, vRD = 1, 2, 3, 4, 5, 6
    vT = 8
    ACC = 12
    FB = 32
    FA = 72
    NV = 152
    k3flush = lambda: (stamp(a, 4), stamp_flush(a, 2, 8, sW, "s6", "s7", 8, 2))

    a.e("s_cmp_ge_u32 s2, 256")
    a.e("s_cbranch_scc1 K3_END")
    stamp(a, 0)
    a.e("s_load_dwordx2 s[4:5], s[0:1], 64")
    a.e("s_load_dwordx2 s[6:7], s[0:1], 80")
    a.e(f"v_and_b32 v{vLANE}, 63, v0")
    a.e(f"v_lshrrev_b32 v{vT}, 6, v0")
    a.e(f"s_and_b32 s{t0}, s2, 7")
    a.e(f"v_readfirstlane_b32 s{sW}, v{vT}")
    a.e(f"s_lshr_b32 s{t1}, s2, 3")
    a.e(f"s_lshl_b32 s{t0}, s{t0}, 2")
    a.e(f"s_and_b32 s{t2}, s{t1}, 3")
    a.e(f"s_add_u32 s{sRB}, s{t0}, s{t2}")
    a.e(f"s_lshr_b32 s{sCB}, s{t1}, 2")
    a.e(f"v_and_b32 v{vT}, 15, v{vLANE}")
    a.e(f"v_lshrrev_b32 v{vT+1}, 4, v{vLANE}")
    a.e(f"s_cmp_ge_u32 s{sW}, 4")
    a.e("s_cbranch_scc1 K3_COMP")
    a.e(f"s_mul_i32 s{t0}, s{sCB}, 80")
    a.e(f"v_add_u32 v{vOW}, s{t0}, v{vT}")
    a.e(f"v_lshlrev_b32 v{vOW}, 4, v{vOW}")
    a.e(f"v_mul_u32_u24 v{vT+2}, 10240, v{vT+1}")
    a.e(f"v_add_u32 v{vOW}, v{vOW}, v{vT+2}")
    a.e(f"s_mul_i32 s{sOW}, s{sW}, 40960")
    a.e(f"s_mul_i32 s{sM}, s{sW}, 5120")
    a.e("s_waitcnt lgkmcnt(0)")
    stamp(a, 5)
    srd_off(a, sWT, "s6", "s7", WT_OFF, 80 * 10240)
    for r in range(5):
        for q in range(5):
            a.e(f"s_add_u32 m0, s{sM}, {r*20480 + q*768}")
            a.e("s_nop 0")
            a.e(f"buffer_load_dwordx4 v{vOW}, {sr(sWT,4)}, s{sOW} offen offset:{256*q} lds")
        a.e(f"s_add_u32 s{sOW}, s{sOW}, {4*40960}")
        if r >= 2:
            a.e(f"s_waitcnt vmcnt(10)")
            a.e("s_barrier")
    a.e(f"s_waitcnt vmcnt(5)")
    a.e("s_barrier")
    a.e(f"s_waitcnt vmcnt(0)")
    a.e("s_barrier")
    if DIAG:
        stamp(a, 1); stamp(a, 2); stamp(a, 3)
        k3flush()
    a.e("s_endpgm")
    a.lab("K3_COMP")
    a.e(f"s_sub_u32 s{t3}, s{sW}, 4")
    a.e(f"s_lshl_b32 s{t0}, s{sRB}, 6")
    a.e(f"s_lshl_b32 s{t1}, s{t3}, 4")
    a.e(f"s_add_u32 s{t0}, s{t0}, s{t1}")
    a.e(f"v_add_u32 v{vT+2}, s{t0}, v{vT}")
    a.e(f"v_lshlrev_b32 v{vOA}, 4, v{vT+2}")
    a.e(f"v_lshl_add_u32 v{vOA}, v{vT+1}, 15, v{vOA}")
    a.e(f"s_lshl_b32 s{t0}, s{sRB}, 3")
    a.e(f"s_add_u32 s{t0}, s{t0}, s{sCB}")
    a.e(f"s_mul_i32 s{t0}, s{t0}, 20480")
    a.e(f"s_mul_i32 s{t1}, s{t3}, 5120")
    a.e(f"s_add_u32 s{t0}, s{t0}, s{t1}")
    a.e(f"v_lshlrev_b32 v{vRD}, 4, v{vLANE}")
    a.e(f"v_add_u32 v{vYO}, s{t0}, v{vRD}")
    a.e(f"s_mul_i32 s{t0}, s{sCB}, 160")
    a.e(f"v_mul_u32_u24 v{vOO}, 1280, v{vT+2}")
    a.e(f"v_lshl_add_u32 v{vOO}, v{vT+1}, 3, v{vOO}")
    a.e(f"v_add_u32 v{vOO}, s{t0}, v{vOO}")
    a.e("s_waitcnt lgkmcnt(0)")
    stamp(a, 5)
    srd_off(a, sA, "s6", "s7", AB_OFF, 80 * 32768)
    srd_off(a, sY, "s6", "s7", Y_OFF, Y_SIZE)
    srd(a, sO, "s4", "s5", 2048 * 640 * 2)
    a.e(f"s_mov_b32 s{t0}, 0")
    a.e(f"s_movk_i32 s{t1}, 4096")
    def ldA(r):
        for ks in range(4 * r, 4 * r + 4):
            a.e(f"buffer_load_dwordx4 {vr(FA+4*ks,4)}, v{vOA}, {sr(sA,4)}, s{t0} offen")
            a.e(f"s_add_u32 s{t0}, s{t0}, {4*32768}")

    ldA(0)
    for t in range(5):
        so, off = ("0", 1024 * t) if t < 4 else (f"s{t1}", 0)
        a.e(f"buffer_load_dwordx4 {vr(ACC+4*t,4)}, v{vYO}, {sr(sY,4)}, {so} offen offset:{off}")
    ldA(1)
    ldA(2)
    a.e(f"v_add_u32 v{vT}, 51200, v{vRD}")

    def rdB(ks):
        base, off = (vRD, ks * 5120) if ks < 10 else (vT, (ks - 10) * 5120)
        return [f"ds_read_b128 {vr(FB+20*(ks&1)+4*t,4)}, v{base} offset:{off+1024*t}" for t in range(5)]

    for r in range(5):
        a.e("s_barrier")
        if r == 0:
            stamp(a, 1)
        for ins in rdB(4 * r):
            a.e(ins)
        if r < 2:
            ldA(r + 3)
        a.e(f"s_waitcnt vmcnt({[12, 12, 8, 4, 0][r]})")
        for k in range(4):
            ks = 4 * r + k
            if k < 3:
                for ins in rdB(ks + 1):
                    a.e(ins)
                a.e("s_waitcnt lgkmcnt(5)")
            else:
                a.e("s_waitcnt lgkmcnt(0)")
            for t in range(5):
                a.e(f"v_mfma_f32_16x16x32_bf16 {vr(ACC+4*t,4)}, {vr(FB+20*(ks&1)+4*t,4)}, {vr(FA+4*ks,4)}, {vr(ACC+4*t,4)}")
    stamp(a, 2)
    stamp(a, 3)
    a.e("s_nop 7")
    for t in range(5):
        A = ACC + 4 * t
        a.e(f"v_cvt_pk_bf16_f32 v{A}, v{A}, v{A+1}")
        a.e(f"v_cvt_pk_bf16_f32 v{A+1}, v{A+2}, v{A+3}")
        a.e(f"buffer_store_dwordx2 {vr(A,2)}, v{vOO}, {sr(sO,4)}, 0 offen offset:{32*t}")
    k3flush()
    a.lab("K3_END")
    a.e("s_endpgm")
    return name, NV, 102 if DIAG else 48, (256, 512, K3_LDS)


HEADER = """; Kernarg layout for this problem (88 bytes, ptrs only, base s[0:1]):
"""


def main(out_path):
    a = Asm()
    ks = []
    gens = (gen_k1, gen_k2, gen_k3) if "u" in os.environ.get("K2X", "") else (gen_k1, gen_k2)
    for g in gens:
        ks.append(g(a))
    s = HEADER
    for name, nv, ns, (gx, bx, lds) in ks:
        s += f"; @launch kernel={name} grid=({gx},1,1) block=({bx},1,1) lds={lds}\n"
    s += '.amdgcn_target "amdgcn-amd-amdhsa--gfx950"\n.text\n'
    s += a.text()
    s += "CODE_END:\n    s_endpgm\n"
    s += '.section .rodata,"a"\n'
    for name, nv, ns, _ in ks:
        s += kd(name, nv, ns)
    open(out_path, "w").write(s)


if __name__ == "__main__":
    main(sys.argv[1] if len(sys.argv) > 1 else f"cdna_kernels/{NAME}.s")
```

```python
import struct, math, sys

NAME = "parallel_sum__mha_block__dense_activation_gelu__prompt"

QB_OFF = 0
KV_OFF = 0x280000
KVT = 2624
KVH = 64 * KVT
VP = 336
AB_OFF = 0x7A0000
WT_OFF = 0x10E0000
assert KV_OFF + 32 * KVH == AB_OFF
FL_OFF = WT_OFF + 296 * 10240
WS_END = FL_OFF + 1024
AB_SIZE = 296 * 32768
WT_SIZE = 296 * 10240
assert AB_OFF + AB_SIZE == WT_OFF


def f32(x):
    return struct.unpack("<I", struct.pack("<f", x))[0]


def hx(x):
    return "0x%08x" % (x & 0xFFFFFFFF)


class Asm:
    def __init__(self):
        self.lines = []

    def e(self, s):
        if s.startswith("s_cselect_b32"):
            ops = [x.strip() for x in s[len("s_cselect_b32"):].split(",")]

            def is_lit(x):
                try:
                    v = int(x, 0)
                except ValueError:
                    return False
                return not (-16 <= v <= 64)
            if is_lit(ops[1]) and is_lit(ops[2]):
                self.lines.append(f"    s_mov_b32 {ops[0]}, {ops[2]}")
                s = f"s_cselect_b32 {ops[0]}, {ops[1]}, {ops[0]}"
        self.lines.append("    " + s)

    def lab(self, s):
        self.lines.append(s + ":")

    def c(self, s):
        self.lines.append("    ; " + s)

    def raw(self, s):
        self.lines.append(s)

    def text(self):
        return "\n".join(self.lines) + "\n"


def vr(a, n):
    return f"v[{a}:{a+n-1}]" if n > 1 else f"v{a}"


def sr(a, n):
    return f"s[{a}:{a+n-1}]" if n > 1 else f"s{a}"


def kernel_header(a, name):
    a.raw(".p2align 8")
    a.raw(f".globl {name}")
    a.raw(f".type {name},@function")
    a.lab(name)


def kd(name, nv, ns):
    acc = (nv + 3) // 4 * 4
    return f""".p2align 6
.amdhsa_kernel {name}
  .amdhsa_next_free_vgpr {nv}
  .amdhsa_next_free_sgpr {ns}
  .amdhsa_accum_offset {acc}
  .amdhsa_group_segment_fixed_size 0
  .amdhsa_kernarg_size 88
  .amdhsa_user_sgpr_count 2
  .amdhsa_user_sgpr_kernarg_segment_ptr 1
  .amdhsa_system_sgpr_workgroup_id_x 1
.end_amdhsa_kernel
"""


def srd(a, d, lo, hi, size):
    a.e(f"s_mov_b32 s{d}, {lo}")
    a.e(f"s_mov_b32 s{d+1}, {hi}")
    a.e(f"s_mov_b32 s{d+2}, {hx(size)}")
    a.e(f"s_mov_b32 s{d+3}, 0x00020000")


def srd_off(a, d, lo, hi, off, size):
    a.e(f"s_add_u32 s{d}, {lo}, {hx(off)}")
    a.e(f"s_addc_u32 s{d+1}, {hi}, 0")
    a.e(f"s_mov_b32 s{d+2}, {hx(size)}")
    a.e(f"s_mov_b32 s{d+3}, 0x00020000")


def round_bf16_inplace(a, v, vtmp=None):
    a.e(f"v_cvt_pk_bf16_f32 v{v}, v{v}, v{v}")
    a.e(f"v_lshlrev_b32 v{v}, 16, v{v}")


OOB = 0x40000000


def code_prefetch(a, tag, start, end, sp, s_chunk, vlane, vtmp, vdst):
    a.e(f"s_getpc_b64 s[{sp}:{sp+1}]")
    a.lab(f"PCH_{tag}")
    a.e(f"s_sub_u32 s{sp}, s{sp}, PCH_{tag}-{start}")
    a.e(f"s_subb_u32 s{sp+1}, s{sp+1}, 0")
    a.e(f"s_lshl_b32 s{s_chunk}, s{s_chunk}, 13")
    a.e(f"v_lshlrev_b32 v{vtmp}, 7, v{vlane}")
    a.e(f"v_add_u32 v{vtmp}, s{s_chunk}, v{vtmp}")
    a.e(f"v_cmp_gt_u32 vcc, {end}-{start}, v{vtmp}")
    a.e(f"s_and_saveexec_b64 s[{sp+2}:{sp+3}], vcc")
    a.e(f"s_cbranch_execz PCS_{tag}")
    a.e(f"global_load_dword v{vdst}, v{vtmp}, s[{sp}:{sp+1}]")
    a.lab(f"PCS_{tag}")
    a.e(f"s_mov_b64 exec, s[{sp+2}:{sp+3}]")
import os
DIAG = int(os.environ.get("DIAG", "0"))
DIAG_OFF = 0x2000000
SD = 84


def stamp(a, i):
    if DIAG:
        a.e(f"s_memtime s[{SD+2*i}:{SD+2*i+1}]")
        if i == 0:
            a.e(f"s_memrealtime s[{SD+12}:{SD+13}]")
        if i == 4:
            a.e(f"s_memrealtime s[{SD+14}:{SD+15}]")


def stamp_flush(a, kidx, wpw, sW, ws_lo, ws_hi, n, vtmp):
    if not DIAG:
        return
    a.e("s_waitcnt lgkmcnt(0)")
    a.e(f"s_add_u32 s80, {ws_lo}, {hx(DIAG_OFF + kidx*4096*64)}")
    a.e(f"s_addc_u32 s81, {ws_hi}, 0")
    a.e(f"s_mov_b32 s82, {hx(4096*64)}")
    a.e("s_mov_b32 s83, 0x00020000")
    a.e(f"s_mul_i32 s100, s2, {wpw}")
    a.e(f"s_add_u32 s100, s100, s{sW}")
    a.e("s_lshl_b32 s100, s100, 6")
    a.e(f"v_mov_b32 v{vtmp}, 0")
    for i in range(n):
        a.e(f"v_mov_b32 v{vtmp+1}, s{SD+2*i}")
        a.e(f"buffer_store_dword v{vtmp+1}, v{vtmp}, s[80:83], s100 offen offset:{4*i}")

K1_BH = 8 * 1056
K1_SLOT = 16384 + 4 * K1_BH
K1_NS = 3
K1_SCR = K1_SLOT * K1_NS
K1_LDS = K1_SCR + 2048 + 256
QSCALE = math.log2(math.e) / math.sqrt(20.0)


def gen_k1(a):
    name = "k1_gemm1_kernel"
    kernel_header(a, name)
    X = os.environ.get("K1X", "")
    sX, sB0, sB1, sWS, sT, sBI = 20, 24, 28, 32, 36, 40
    sW, sMH, sHALF, sRB, sCB, sNQ, sT0 = 44, 45, 46, 47, 48, 49, 50
    sOA, sOB0, sOB1 = 51, 52, 53
    sWA, sWB, sRD, sTS, sIT, sDA, sDB = 54, 55, 56, 57, 58, 59, 60
    t0, t1, t2, t3, t4, t5, t6, t7 = 62, 63, 64, 65, 66, 67, 68, 69
    sC1 = 70
    sTYP = 73
    sOA2, sOB0b, sOB1b = 76, 77, 78
    vLANE = 1
    vA0e, vA0o, vB0 = 2, 3, 4
    vAe, vAo, vB = 5, 6, 7
    vS = 8
    vSA = 12
    vONES = 20
    vCS = 24
    vU = 32
    FA = [40, 72]
    vT = 72
    ACC = 104
    NV = 168

    def acc(j, mt):
        return ACC + (j * 4 + mt) * 4

    def fa(s, mt):
        return FA[s] + mt * 4

    def fb(s, j):
        return FA[s] + 16 + j * 4

    def emit(lst):
        for ins in lst:
            a.e(ins)

    k1flush = lambda: (stamp(a, 4), stamp_flush(a, 0, 12, sW, "s18", "s19", 8, 2))

    def finalize(s1, s2, nm, rs):
        a.e(f"v_mul_f32 v{s1}, {hx(f32(1.0/640))}, v{s1}")
        a.e(f"v_mul_f32 v{s2}, {hx(f32(1.0/640))}, v{s2}")
        a.e(f"v_fma_f32 v{s2}, -v{s1}, v{s1}, v{s2}")
        a.e(f"v_max_f32 v{s2}, 0, v{s2}")
        round_bf16_inplace(a, s2)
        a.e(f"v_add_f32 v{s2}, {hx(f32(1e-5))}, v{s2}")
        round_bf16_inplace(a, s2)
        a.e(f"v_sqrt_f32 v{s2}, v{s2}")
        round_bf16_inplace(a, s1)
        round_bf16_inplace(a, s2)
        a.e(f"v_rcp_f32 v{rs}, v{s2}")
        a.e(f"v_sub_f32 v{nm}, 0, v{s1}")


    a.e("s_cmp_ge_u32 s2, 256")
    a.e("s_cbranch_scc1 K1_END")
    stamp(a, 0)
    a.e("s_load_dwordx4 s[4:7], s[0:1], 0")
    a.e("s_load_dwordx2 s[8:9], s[0:1], 16")
    a.e("s_load_dwordx4 s[12:15], s[0:1], 32")
    a.e("s_load_dwordx2 s[16:17], s[0:1], 48")
    a.e("s_load_dwordx2 s[18:19], s[0:1], 80")
    a.e(f"v_and_b32 v{vLANE}, 63, v0")
    a.e(f"v_lshrrev_b32 v{vT}, 6, v0")
    a.e(f"s_and_b32 s{t0}, s2, 7")
    a.e(f"v_readfirstlane_b32 s{sW}, v{vT}")
    a.e(f"s_lshr_b32 s{t1}, s2, 3")
    a.e(f"s_and_b32 s{t2}, s{t0}, 1")
    a.e(f"s_lshl_b32 s{t2}, s{t2}, 3")
    a.e(f"s_and_b32 s{t3}, s{t1}, 7")
    a.e(f"s_add_u32 s{sRB}, s{t2}, s{t3}")
    a.e(f"s_lshr_b32 s{t2}, s{t0}, 1")
    a.e(f"s_lshl_b32 s{t2}, s{t2}, 2")
    a.e(f"s_lshr_b32 s{t3}, s{t1}, 3")
    a.e(f"s_add_u32 s{sCB}, s{t2}, s{t3}")
    a.e(f"s_sub_u32 s{sCB}, 15, s{sCB}")
    a.e(f"s_cmp_eq_u32 s{sCB}, 15")
    a.e("s_cbranch_scc1 K1_TRANS")
    a.e(f"s_lshl_b32 s{sT0}, s{sCB}, 3")
    a.e(f"s_min_u32 s{sT0}, s{sT0}, 100")
    a.e(f"s_cmp_ge_u32 s{sW}, 4")
    a.e("s_cbranch_scc1 K1_COMP")
    lA = [2, 3]
    lQ = [4, 5]
    lF = [6, 7]
    lBI = 8
    a.e(f"s_lshl_b32 s{t0}, s{sRB}, 7")
    a.e(f"s_lshl_b32 s{t1}, s{sW}, 4")
    a.e(f"s_add_u32 s{t0}, s{t0}, s{t1}")
    a.e(f"v_lshrrev_b32 v{vT}, 3, v{vLANE}")
    a.e(f"v_add_u32 v{vT}, s{t0}, v{vT}")
    a.e(f"v_lshrrev_b32 v{vT+1}, 1, v{vT}")
    a.e(f"v_xor_b32 v{vT+1}, v{vT+1}, v{vLANE}")
    a.e(f"v_and_b32 v{vT+1}, 7, v{vT+1}")
    a.e(f"v_mul_u32_u24 v{vT}, 1280, v{vT}")
    a.e(f"v_lshl_add_u32 v{lA[0]}, v{vT+1}, 4, v{vT}")
    a.e(f"v_xor_b32 v{vT+1}, 4, v{vT+1}")
    a.e(f"v_lshl_add_u32 v{lA[1]}, v{vT+1}, 4, v{vT}")
    a.e(f"v_add_u32 v{lA[1]}, {8*1280}, v{lA[1]}")
    a.e(f"s_lshl_b32 s{sDA}, s{sW}, 11")
    a.e(f"s_and_b32 s{t0}, s{sW}, 1")
    a.e(f"s_lshl_b32 s{t0}, s{t0}, 1")
    a.e(f"s_lshr_b32 s{t1}, s{sW}, 1")
    a.e(f"s_lshl_b32 s{t1}, s{t1}, 3")
    a.e(f"s_or_b32 s{t0}, s{t0}, s{t1}")
    a.e(f"v_bfe_u32 v{vT}, v{vLANE}, 4, 1")
    a.e(f"v_lshlrev_b32 v{vT}, 2, v{vT}")
    a.e(f"v_lshrrev_b32 v{vT+1}, 5, v{vLANE}")
    a.e(f"v_lshl_or_b32 v{vT}, v{vT+1}, 4, v{vT}")
    a.e(f"v_or_b32 v{vT}, s{t0}, v{vT}")
    a.e(f"v_and_b32 v{vT+1}, 15, v{vLANE}")
    a.e(f"v_lshlrev_b32 v{vT+1}, 4, v{vT+1}")
    a.e(f"s_lshl_b32 s{t2}, s{sCB}, 8")
    a.e(f"s_lshl_b32 s{t3}, s{sT0}, 5")
    a.e(f"v_mul_u32_u24 v{lQ[0]}, 3840, v{vT}")
    a.e(f"v_add3_u32 v{lQ[0]}, v{lQ[0]}, v{vT+1}, s{t2}")
    a.e(f"v_add_u32 v{lQ[1]}, 3840, v{lQ[0]}")
    a.e(f"v_mul_u32_u24 v{lF[0]}, 3456, v{vT}")
    a.e(f"v_add3_u32 v{lF[0]}, v{lF[0]}, v{vT+1}, s{t3}")
    a.e(f"v_add_u32 v{lF[1]}, 3456, v{lF[0]}")
    a.e(f"s_mul_i32 s{sDB}, s{sW}, 2112")
    a.e(f"s_add_u32 s{sDB}, s{sDB}, 16384")
    a.e(f"s_mov_b32 s{sOA}, 0")
    a.e(f"s_mov_b32 s{sOA2}, {64*1280}")
    a.e(f"s_mov_b32 s{sOB0}, 0")
    a.e(f"s_mov_b32 s{sOB0b}, {32*3840}")
    a.e(f"s_mov_b32 s{sOB1}, 0")
    a.e(f"s_mov_b32 s{sOB1b}, {32*3456}")
    a.e(f"s_mov_b32 s{sWA}, s{sDA}")
    a.e(f"s_mov_b32 s{sWB}, s{sDB}")
    a.e("s_waitcnt lgkmcnt(0)")
    stamp(a, 5)
    srd(a, sX, "s4", "s5", 2048 * 640 * 2)
    srd(a, sB0, "s6", "s7", 640 * 1920 * 2)
    srd(a, sB1, "s12", "s13", 640 * 1728 * 2)

    lR0 = 10
    lR = 14
    lD = 20
    lS = 36
    lU = 40

    def stats_ops():
        va = []
        for r in range(16):
            src = lD + r
            lo, hi = lU + 2 * (r & 1), lU + 2 * (r & 1) + 1
            va.append(f"v_lshlrev_b32 v{lo}, 16, v{src}")
            va.append(f"v_and_b32 v{hi}, 0xffff0000, v{src}")
            va.append(f"v_add_f32 v{lS}, v{lS}, v{lo}")
            va.append(f"v_add_f32 v{lS+1}, v{lS+1}, v{hi}")
            va.append(f"v_fmac_f32 v{lS+2}, v{lo}, v{lo}")
            va.append(f"v_fmac_f32 v{lS+3}, v{hi}, v{hi}")
        return va

    def stats_reads():
        for i in range(4):
            a.e(f"v_add_u32 v{lR+i}, s{sRD}, v{lR0+i}")
        for i in range(4):
            a.e(f"ds_read_b128 {vr(lD+4*i,4)}, v{lR+i}")
        a.e(f"s_add_u32 s{sRD}, s{sRD}, {K1_SLOT}")
        a.e(f"s_cmp_eq_u32 s{sRD}, {K1_SCR}")
        a.e(f"s_cselect_b32 s{sRD}, 0, s{sRD}")

    def stage(with_stats=False, dma=True):
        spec = [(sWA, 0, lA, 1024, sX, sOA, 128),
                (sWA, 8192, lA, 1024, sX, sOA2, 128),
                (sWB, 0, lQ, 1056, sB0, sOB0, 64 * 3840),
                (sWB, 2 * K1_BH, lF, 1056, sB1, sOB1, 64 * 3456),
                (sWB, K1_BH, lQ, 1056, sB0, sOB0b, 64 * 3840),
                (sWB, 3 * K1_BH, lF, 1056, sB1, sOB1b, 64 * 3456)]
        va = stats_ops() if with_stats else []
        if with_stats:
            stats_reads()
        n = 0
        for (sD, dof, vO, d2, sR, sO, inc) in spec:
            for q in range(2):
                d = dof + q * d2
                if dma:
                    a.e(f"s_add_u32 m0, s{sD}, {d}" if d else f"s_mov_b32 m0, s{sD}")
                    a.e("s_nop 0")
                    a.e(f"buffer_load_dwordx4 v{vO[q]}, {sr(sR,4)}, s{sO} offen lds")
                n += 1
                if with_stats and n >= 2:
                    if n == 2:
                        a.e("s_waitcnt lgkmcnt(0)")
                    k = 9 if n < 12 else len(va)
                    for ins in va[:k]:
                        a.e(ins)
                    va = va[k:]
            if dma:
                a.e(f"s_add_u32 s{sO}, s{sO}, {inc}")
        if dma:
            a.e(f"s_add_u32 s{sWA}, s{sWA}, {K1_SLOT}")
            a.e(f"s_add_u32 s{sWB}, s{sWB}, {K1_SLOT}")
            a.e(f"s_cmp_ge_u32 s{sWA}, {K1_SCR}")
            a.e(f"s_cselect_b32 s{sWA}, s{sDA}, s{sWA}")
            a.e(f"s_cselect_b32 s{sWB}, s{sDB}, s{sWB}")

    stage()
    srd(a, sBI, "s14", "s15", 1728 * 2)
    a.e(f"v_lshlrev_b32 v{vT}, 2, v{vLANE}")
    a.e(f"buffer_load_dword v{lBI}, v{vT}, {sr(sBI,4)}, s{t3} offen")
    stage()
    stage()
    a.e(f"v_and_b32 v{vT+1}, 31, v{vLANE}")
    a.e(f"v_lshrrev_b32 v{vT+2}, 5, v{vLANE}")
    a.e(f"v_lshlrev_b32 v{vT+2}, 2, v{vT+2}")
    a.e(f"v_bfe_u32 v{vT+3}, v{vLANE}, 1, 3")
    a.e(f"v_xor_b32 v{vT+2}, v{vT+2}, v{vT+3}")
    a.e(f"v_lshlrev_b32 v{vT+2}, 4, v{vT+2}")
    a.e(f"v_lshl_add_u32 v{vT+2}, v{vT+1}, 7, v{vT+2}")
    a.e(f"s_lshl_b32 s{t0}, s{sW}, 12")
    a.e(f"v_add_u32 v{lR0}, s{t0}, v{vT+2}")
    for i in range(1, 4):
        a.e(f"v_xor_b32 v{lR0+i}, {16*i}, v{lR0}")
    for i in range(4):
        a.e(f"v_mov_b32 v{lS+i}, 0")
    a.e(f"s_mov_b32 s{sRD}, 0")
    a.e(f"s_mov_b32 s{sIT}, 0")
    a.e("s_waitcnt vmcnt(24)")
    a.e(f"v_add_u32 v{vT}, {K1_SCR+2048}, v{vT}")
    a.e(f"ds_write_b32 v{vT}, v{lBI}")
    a.e("s_barrier")
    stamp(a, 1)
    stage(True, False)
    a.lab("K1_LD")
    a.e("s_waitcnt vmcnt(12)")
    a.e("s_barrier")
    stage(True, True)
    a.e(f"s_add_u32 s{sIT}, s{sIT}, 1")
    a.e(f"s_cmp_lt_u32 s{sIT}, 7")
    a.e("s_cbranch_scc1 K1_LD")
    a.e("s_waitcnt vmcnt(12)")
    a.e("s_barrier")
    a.e(f"s_mov_b32 s{sIT}, 0")
    a.lab("K1_LD2")
    stage(True, False)
    a.e(f"s_cmp_eq_u32 s{sIT}, 1")
    a.e("s_cbranch_scc1 K1_LD3")
    a.e("s_waitcnt vmcnt(0)")
    a.e("s_barrier")
    a.e(f"s_mov_b32 s{sIT}, 1")
    a.e("s_branch K1_LD2")
    a.lab("K1_LD3")
    a.e(f"v_add_f32 v{lS}, v{lS}, v{lS+1}")
    a.e(f"v_add_f32 v{lS+1}, v{lS+2}, v{lS+3}")
    a.e(f"v_mov_b32 v{lU}, v{lS}")
    a.e(f"v_mov_b32 v{lU+1}, v{lS+1}")
    a.e("s_nop 1")
    a.e(f"v_permlane32_swap_b32 v{lS}, v{lU}")
    a.e(f"v_permlane32_swap_b32 v{lS+1}, v{lU+1}")
    a.e(f"v_add_f32 v{lS}, v{lS}, v{lU}")
    a.e(f"v_add_f32 v{lS+1}, v{lS+1}, v{lU+1}")
    finalize(lS, lS + 1, lS + 2, lS + 3)
    a.e(f"v_lshlrev_b32 v{vT+1}, 2, v{vT+1}")
    a.e(f"s_lshl_b32 s{t0}, s{sW}, 7")
    a.e(f"s_add_u32 s{t0}, s{t0}, {K1_SCR}")
    a.e(f"v_add_u32 v{vT+1}, s{t0}, v{vT+1}")
    a.e(f"ds_write_b32 v{vT+1}, v{lS+2}")
    a.e(f"ds_write_b32 v{vT+1}, v{lS+3} offset:512")
    a.e("s_waitcnt lgkmcnt(0)")
    a.e("s_barrier")
    if DIAG:
        stamp(a, 2); stamp(a, 3)
        k1flush()
    a.e("s_endpgm")
    a.lab("K1_COMP")
    a.e(f"s_and_b32 s{sMH}, s{sW}, 1")
    a.e(f"s_bfe_u32 s{sNQ}, s{sW}, 0x10001")
    a.e(f"s_lshr_b32 s{sHALF}, s{sW}, 3")
    if "C" in X:
        NPF = int(os.environ.get("NPF", "8"))
        a.e(f"s_cmp_ge_u32 s2, {NPF}")
        a.e("s_cbranch_scc1 K1_NOCP")
        a.e(f"s_cmp_ge_u32 s{sW}, 8")
        a.e("s_cbranch_scc1 K1_NOCP")
        a.e(f"s_and_b32 s{t0}, s{sW}, 3")
        code_prefetch(a, "k1", "k1_gemm1_kernel", "CODE_END", 64, t0, vLANE, vT, 36)
        a.lab("K1_NOCP")
    if "P" in X:
        vPF = 36
        a.e(f"s_and_b32 s{t0}, s{sW}, 3")
        a.e(f"s_lshl_b32 s{t0}, s{t0}, 6")
        a.e(f"v_add_u32 v{vT}, s{t0}, v{vLANE}")
        a.e(f"s_cmp_eq_u32 s{sHALF}, 1")
        a.e("s_cbranch_scc1 K1_PFB")
        a.e(f"s_and_b32 s{t1}, s{sCB}, 3")
        a.e(f"s_lshl_b32 s{t1}, s{t1}, 5")
        a.e(f"s_lshl_b32 s{t2}, s{sRB}, 7")
        a.e(f"s_add_u32 s{t1}, s{t1}, s{t2}")
        a.e(f"v_lshrrev_b32 v{vT+1}, 3, v{vT}")
        a.e(f"v_add_u32 v{vT+1}, s{t1}, v{vT+1}")
        a.e(f"v_mul_u32_u24 v{vT+1}, 1280, v{vT+1}")
        a.e(f"v_and_b32 v{vT+2}, 7, v{vT}")
        a.e(f"v_lshl_add_u32 v{vT+1}, v{vT+2}, 7, v{vT+1}")
        a.e("s_waitcnt lgkmcnt(0)")
        srd(a, sX, "s4", "s5", 2048 * 640 * 2)
        a.e(f"buffer_load_dword v{vPF}, v{vT+1}, {sr(sX,4)}, 0 offen offset:256")
        a.e("s_branch K1_PFD")
        a.lab("K1_PFB")
        a.e(f"s_and_b32 s{t1}, s{sRB}, 7")
        a.e(f"s_lshl_b32 s{t1}, s{t1}, 6")
        a.e(f"s_add_u32 s{t1}, s{t1}, 128")
        a.e(f"v_lshrrev_b32 v{vT+1}, 2, v{vT}")
        a.e(f"v_add_u32 v{vT+1}, s{t1}, v{vT+1}")
        a.e(f"v_and_b32 v{vT+2}, 1, v{vT}")
        a.e(f"v_lshlrev_b32 v{vT+2}, 7, v{vT+2}")
        a.e(f"s_lshl_b32 s{t2}, s{sCB}, 8")
        a.e(f"s_lshl_b32 s{t3}, s{sT0}, 5")
        a.e(f"v_mul_u32_u24 v{vT+3}, 3840, v{vT+1}")
        a.e(f"v_add3_u32 v{vT+3}, v{vT+3}, v{vT+2}, s{t2}")
        a.e(f"v_mul_u32_u24 v{vT+4}, 3456, v{vT+1}")
        a.e(f"v_add3_u32 v{vT+4}, v{vT+4}, v{vT+2}, s{t3}")
        a.e("s_waitcnt lgkmcnt(0)")
        srd(a, sB0, "s6", "s7", 640 * 1920 * 2)
        srd(a, sB1, "s12", "s13", 640 * 1728 * 2)
        a.e("s_mov_b32 exec_lo, 0x33333333")
        a.e("s_mov_b32 exec_hi, 0x33333333")
        a.e(f"buffer_load_dword v{vPF}, v{vT+3}, {sr(sB0,4)}, 0 offen")
        a.e("s_not_b64 exec, exec")
        a.e(f"buffer_load_dword v{vPF+1}, v{vT+4}, {sr(sB1,4)}, 0 offen")
        a.e("s_mov_b64 exec, -1")
        a.lab("K1_PFD")
    a.e(f"s_lshl_b32 s{t0}, s{sMH}, 13")
    a.e(f"v_and_b32 v{vT+4}, 15, v{vLANE}")
    a.e(f"v_lshrrev_b32 v{vT}, 4, v{vLANE}")
    a.e(f"v_lshrrev_b32 v{vT+1}, 1, v{vT+4}")
    a.e(f"v_xor_b32 v{vT+1}, v{vT+1}, v{vT}")
    a.e(f"v_lshlrev_b32 v{vT+1}, 4, v{vT+1}")
    a.e(f"v_lshl_add_u32 v{vA0e}, v{vT+4}, 7, v{vT+1}")
    a.e(f"v_add_u32 v{vA0e}, s{t0}, v{vA0e}")
    a.e(f"v_xor_b32 v{vA0o}, 64, v{vA0e}")
    a.e(f"v_bfe_u32 v{vT+1}, v{vLANE}, 2, 3")
    a.e(f"v_mul_u32_u24 v{vT+1}, 1056, v{vT+1}")
    a.e(f"v_lshrrev_b32 v{vT+2}, 5, v{vLANE}")
    a.e(f"v_lshl_add_u32 v{vT+1}, v{vT+2}, 9, v{vT+1}")
    a.e(f"v_and_b32 v{vT+2}, 3, v{vLANE}")
    a.e(f"v_lshl_add_u32 v{vT+1}, v{vT+2}, 3, v{vT+1}")
    a.e(f"s_mul_i32 s{t0}, s{sHALF}, {2*K1_BH}")
    a.e(f"s_lshl_b32 s{t1}, s{sNQ}, 7")
    a.e(f"s_add_u32 s{t0}, s{t0}, s{t1}")
    a.e(f"s_add_u32 s{t0}, s{t0}, 16384")
    a.e(f"v_add_u32 v{vB0}, s{t0}, v{vT+1}")
    for i in range(64):
        a.e(f"v_mov_b32 v{ACC+i}, 0")
    for i in range(4):
        a.e(f"v_mov_b32 v{vS+i}, 0")
        a.e(f"v_mov_b32 v{vONES+i}, 0x3f803f80")
    for i in range(8):
        a.e(f"v_mov_b32 v{vCS+i}, 0")
        a.e(f"v_mov_b32 v{vSA+i}, {hx(OOB)}")
    a.e(f"s_mov_b32 s{sRD}, 0")
    a.e(f"s_mov_b32 s{sIT}, 0")
    a.e(f"s_mov_b32 s{sTS}, 0")
    a.e(f"s_cmp_ge_u32 s{sCB}, 10")
    a.e(f"s_cselect_b32 s{sTYP}, 1, 0")
    a.e(f"s_cmp_eq_u32 s{sHALF}, 1")
    a.e(f"s_cselect_b32 s{sTYP}, 2, s{sTYP}")
    a.e(f"s_lshl_b32 s{t6}, s{sRB}, 2")
    a.e(f"s_lshl_b32 s{t7}, s{sMH}, 1")
    a.e(f"s_add_u32 s{t6}, s{t6}, s{t7}")
    a.e(f"s_cmp_eq_u32 s{sTYP}, 1")
    a.e("s_cbranch_scc1 K1_PRE_V")
    a.e(f"s_cmp_eq_u32 s{sTYP}, 2")
    a.e("s_cbranch_scc1 K1_PRE_F")
    a.e(f"s_cmp_lt_u32 s{sCB}, 5")
    a.e(f"s_cselect_b32 s{t1}, 81920, {KVH}")
    a.e(f"s_cselect_b32 s{sTS}, 1280, {KVT}")
    a.e(f"s_cselect_b32 s{t3}, {hx(QB_OFF)}, {hx(KV_OFF)}")
    a.e(f"s_cselect_b32 s{t4}, 16, 8")
    a.e(f"s_cselect_b64 vcc, -1, 0")
    a.e(f"s_cselect_b32 s{t5}, 0, 5")
    a.e(f"s_sub_u32 s{t5}, s{sCB}, s{t5}")
    a.e(f"s_lshl_b32 s{t5}, s{t5}, 5")
    a.e(f"s_lshl_b32 s{t7}, s{sNQ}, 4")
    a.e(f"s_add_u32 s{t5}, s{t5}, s{t7}")
    a.e(f"s_mul_i32 s{t6}, s{t6}, s{sTS}")
    a.e(f"s_add_u32 s{t3}, s{t3}, s{t6}")
    r0, rA0, rB0, rA1, rB1, vG = vT + 5, vT + 6, vT + 7, vT + 8, vT + 9, vT + 10
    a.e(f"v_and_b32 v{vT+2}, 7, v{vLANE}")
    a.e(f"v_and_b32 v{vT+3}, 8, v{vLANE}")
    a.e(f"v_lshl_add_u32 v{vT+2}, v{vT+3}, 1, v{vT+2}")
    a.e(f"v_cndmask_b32 v{r0}, v{vT+2}, v{vT+4}, vcc")
    a.e(f"v_lshlrev_b32 v{rA0}, 4, v{r0}")
    a.e(f"v_add_u32 v{rA0}, s{t3}, v{rA0}")
    a.e(f"v_lshlrev_b32 v{rB0}, 3, v{r0}")
    a.e(f"s_add_u32 s{t7}, s{t3}, 1024")
    a.e(f"v_add_u32 v{rB0}, s{t7}, v{rB0}")
    a.e(f"s_lshl_b32 s{t7}, s{t4}, 4")
    a.e(f"v_add_u32 v{rA1}, s{t7}, v{rA0}")
    a.e(f"s_lshl_b32 s{t7}, s{t4}, 3")
    a.e(f"v_add_u32 v{rB1}, s{t7}, v{rB0}")
    a.e(f"v_add_u32 v{vG}, s{t5}, v{vT}")
    for j in range(4):
        tt, h, dg, u = vT + 11, vT + 12, vT + 13, vT + 14
        a.e(f"v_add_u32 v{tt}, {4*j}, v{vG}")
        a.e(f"v_mul_u32_u24 v{h}, 205, v{tt}")
        a.e(f"v_lshrrev_b32 v{h}, 10, v{h}")
        a.e(f"v_mad_i32_i24 v{dg}, v{h}, -5, v{tt}")
        a.e(f"v_mul_u32_u24 v{u}, 0x108, v{dg}")
        a.e(f"v_and_b32 v{u}, 0x208, v{u}")
        a.e(f"v_cmp_eq_u32 vcc, 4, v{dg}")
        a.e(f"v_mad_u32_u24 v{u}, v{h}, s{t1}, v{u}")
        a.e("s_nop 0")
        a.e(f"v_cndmask_b32 v{tt}, v{rA0}, v{rB0}, vcc")
        a.e(f"v_cndmask_b32 v{h}, v{rA1}, v{rB1}, vcc")
        a.e(f"v_add_u32 v{vSA+2*j}, v{u}, v{tt}")
        a.e(f"v_add_u32 v{vSA+2*j+1}, v{u}, v{h}")
    a.e("s_branch K1_PRE_DONE")
    a.lab("K1_PRE_V")
    a.e(f"s_sub_u32 s{t5}, s{sCB}, 10")
    a.e(f"s_lshl_b32 s{t5}, s{t5}, 7")
    a.e(f"s_lshl_b32 s{t7}, s{sNQ}, 6")
    a.e(f"s_add_u32 s{t5}, s{t5}, s{t7}")
    a.e(f"v_add_u32 v{vT+2}, s{t5}, v{vT+4}")
    a.e(f"s_mul_i32 s{t6}, s{t6}, {KVT}")
    a.e(f"s_add_u32 s{t6}, s{t6}, {hx(KV_OFF + 1280)}")
    a.e(f"v_mul_u32_u24 v{vT+1}, {VP}, v{vT}")
    a.e(f"v_add_u32 v{vT+1}, s{t6}, v{vT+1}")
    a.e(f"s_mov_b32 s{t1}, {KVH}")
    a.e(f"s_mov_b32 s{t2}, -20")
    for j in range(4):
        n, h, d = vT + 5, vT + 6, vT + 7
        a.e(f"v_add_u32 v{n}, {16*j}, v{vT+2}")
        a.e(f"v_mul_u32_u24 v{h}, 3277, v{n}")
        a.e(f"v_lshrrev_b32 v{h}, 16, v{h}")
        a.e(f"v_mad_i32_i24 v{d}, v{h}, s{t2}, v{n}")
        a.e(f"v_mad_u32_u24 v{h}, v{h}, s{t1}, v{vT+1}")
        a.e(f"v_lshl_add_u32 v{vSA+j}, v{d}, 4, v{h}")
    a.e("s_branch K1_PRE_DONE")
    a.lab("K1_PRE_F")
    a.e(f"s_lshl_b32 s{t0}, s{t6}, 5")
    a.e(f"v_add_u32 v{vSA}, s{t0}, v{vT+4}")
    a.e(f"v_lshlrev_b32 v{vSA}, 4, v{vSA}")
    a.e(f"v_lshl_add_u32 v{vSA}, v{vT}, 15, v{vSA}")
    a.e(f"s_lshl_b32 s{t0}, s{sT0}, 16")
    a.e(f"s_lshl_b32 s{t1}, s{sNQ}, 18")
    a.e(f"s_add_u32 s{t0}, s{t0}, s{t1}")
    a.e(f"s_add_u32 s{t0}, s{t0}, {hx(AB_OFF + 80*32768)}")
    a.e(f"v_add_u32 v{vSA}, s{t0}, v{vSA}")
    a.e(f"v_add_u32 v{vSA+1}, {hx(131072)}, v{vSA}")
    a.lab("K1_PRE_DONE")
    a.e("s_waitcnt lgkmcnt(0)")
    stamp(a, 5)
    srd(a, sWS, "s18", "s19", WS_END)
    a.e(f"s_and_b32 s{t0}, s{sTYP}, 1")
    a.e(f"s_lshl_b32 s{t0}, s{t0}, 1")
    a.e(f"s_add_u32 s{t0}, s{t0}, s{sMH}")
    for v in range(1, 4):
        a.e(f"s_cmp_eq_u32 s{t0}, {v}")
        a.e(f"s_cbranch_scc1 K1_V{v}")

    def reads(fs):
        vA = vAe if fs == 0 else vAo
        ra = [f"ds_read_b128 {vr(fa(fs,mt),4)}, v{vA} offset:{2048*mt}" for mt in range(4)]
        rb = []
        for j in range(4):
            rb.append(f"ds_read_b64_tr_b16 {vr(fb(fs,j),2)}, v{vB} offset:{fs*K1_BH+32*j}")
            rb.append(f"ds_read_b64_tr_b16 {vr(fb(fs,j)+2,2)}, v{vB} offset:{fs*K1_BH+32*j+256}")
        return rb[0:2] + ra + rb[2:]

    def addr_update():
        return [f"v_add_u32 v{vB}, s{sRD}, v{vB0}",
                f"v_add_u32 v{vAe}, s{sRD}, v{vA0e}",
                f"v_add_u32 v{vAo}, s{sRD}, v{vA0o}",
                f"s_add_u32 s{sRD}, s{sRD}, {K1_SLOT}",
                f"s_cmp_eq_u32 s{sRD}, {K1_SCR}",
                f"s_cselect_b32 s{sRD}, 0, s{sRD}"]

    for var in range(4):
        typ, mh, nq = var >> 1, var & 1, 0
        cst = [2 * mh, 2 * mh + 1]
        smt = (2 if typ == 2 else 0) + nq
        a.raw(".p2align 3")
        a.lab(f"K1_V{var}")
        emit(addr_update())
        a.e("s_barrier")
        stamp(a, 1)
        emit(reads(0))
        a.raw(".p2align 6")
        a.lab(f"K1_L{var}")
        for fs in range(2):
            mf = []
            for j in range(4):
                for mt in range(4):
                    if typ == 1:
                        mf.append(f"v_mfma_f32_16x16x32_bf16 {vr(acc(j,mt),4)}, {vr(fa(fs,mt),4)}, {vr(fb(fs,j),4)}, {vr(acc(j,mt),4)}")
                    else:
                        mf.append(f"v_mfma_f32_16x16x32_bf16 {vr(acc(j,mt),4)}, {vr(fb(fs,j),4)}, {vr(fa(fs,mt),4)}, {vr(acc(j,mt),4)}")
                if j in cst:
                    c = vCS + 4 * cst.index(j)
                    mf.append(f"v_mfma_f32_16x16x32_bf16 {vr(c,4)}, {vr(fb(fs,j),4)}, {vr(vONES,4)}, {vr(c,4)}")
            va = []
            for r in range(4):
                src = fa(fs, smt) + r
                lo, hi = vU + 2 * (r & 1), vU + 2 * (r & 1) + 1
                va.append(f"v_lshlrev_b32 v{lo}, 16, v{src}")
                va.append(f"v_and_b32 v{hi}, 0xffff0000, v{src}")
                va.append(f"v_add_f32 v{vS}, v{vS}, v{lo}")
                va.append(f"v_add_f32 v{vS+1}, v{vS+1}, v{hi}")
                va.append(f"v_fmac_f32 v{vS+2}, v{lo}, v{lo}")
                va.append(f"v_fmac_f32 v{vS+3}, v{hi}, v{hi}")
            rd = reads(fs ^ 1)
            va = []
            if "r" in X: rd = []
            if "M" in X: mf = mf[:2]
            a.e("s_waitcnt lgkmcnt(0)")
            npre = 0
            if fs == 1:
                npre = 2
                for m in mf[:npre]:
                    a.e(m)
                emit(addr_update())
                a.e("s_barrier")
            rest = mf[npre:]
            nm = max(1, len(rest))
            ri = di = 0
            for i, m in enumerate(rest):
                if ri < len(rd):
                    a.e(rd[ri]); ri += 1
                a.e(m)
                want_d = (len(va) * (i + 1) + nm - 1) // nm
                while di < want_d:
                    a.e(va[di]); di += 1
            while ri < len(rd):
                a.e(rd[ri]); ri += 1
            while di < len(va):
                a.e(va[di]); di += 1
        a.e(f"s_add_u32 s{sIT}, s{sIT}, 1")
        a.e(f"s_cmp_lt_u32 s{sIT}, 10")
        a.e(f"s_cbranch_scc1 K1_L{var}")
        a.e(f"s_branch K1_EPI")

    a.raw(".p2align 3")
    a.lab("K1_EPI")
    stamp(a, 2)
    a.e("s_waitcnt vmcnt(0)")
    a.e(f"v_and_b32 v{vT}, 15, v{vLANE}")
    a.e(f"v_lshlrev_b32 v{vT}, 2, v{vT}")
    a.e(f"s_lshl_b32 s{t0}, s{sHALF}, 7")
    a.e(f"s_lshl_b32 s{t1}, s{sNQ}, 6")
    a.e(f"s_add_u32 s{t0}, s{t0}, s{t1}")
    a.e(f"s_lshl_b32 s{t2}, s{sMH}, 8")
    a.e(f"s_add_u32 s{t2}, s{t2}, {K1_SCR}")
    a.e(f"s_add_u32 s{t0}, s{t0}, s{t2}")
    a.e(f"v_add_u32 v{vT+1}, s{t0}, v{vT}")
    a.e(f"v_lshrrev_b32 v{vT+2}, 4, v{vLANE}")
    a.e(f"v_lshlrev_b32 v{vT+2}, 4, v{vT+2}")
    a.e(f"s_lshl_b32 s{t3}, s{sHALF}, 9")
    a.e(f"s_lshl_b32 s{t1}, s{sNQ}, 8")
    a.e(f"s_add_u32 s{t3}, s{t3}, s{t1}")
    a.e(f"s_add_u32 s{t3}, s{t3}, {K1_SCR+1024}")
    a.e(f"s_lshl_b32 s{t1}, s{sMH}, 7")
    a.e(f"s_add_u32 s{t0}, s{t3}, s{t1}")
    a.e(f"v_add_u32 v{vT+3}, s{t0}, v{vT+2}")
    a.e("s_mov_b32 exec_lo, 0x00010001")
    a.e("s_mov_b32 exec_hi, 0x00010001")
    a.e(f"ds_write_b128 v{vT+3}, {vr(vCS,4)}")
    a.e(f"ds_write_b128 v{vT+3}, {vr(vCS+4,4)} offset:64")
    a.e("s_mov_b64 exec, -1")
    a.e("s_waitcnt lgkmcnt(0)")
    a.e("s_barrier")
    stamp(a, 3)
    a.e(f"s_cmp_eq_u32 s{sTYP}, 1")
    a.e("s_cbranch_scc1 K1_EPI_V")

    vNM, vRS = 32, 36
    vC4 = 40
    vBB = 56
    a.e(f"v_add_u32 v{vT}, s{t2}, v{vT}")
    a.e(f"ds_read2_b32 {vr(vNM,2)}, v{vT} offset0:0 offset1:16")
    a.e(f"ds_read2_b32 {vr(vNM+2,2)}, v{vT} offset0:32 offset1:48")
    a.e(f"ds_read2_b32 {vr(vRS,2)}, v{vT} offset0:128 offset1:144")
    a.e(f"ds_read2_b32 {vr(vRS+2,2)}, v{vT} offset0:160 offset1:176")
    a.e(f"v_add_u32 v{vT+1}, s{t3}, v{vT+2}")
    for j in range(4):
        a.e(f"ds_read_b128 {vr(vC4+4*j,4)}, v{vT+1} offset:{64*j}")
    a.e(f"s_cmp_eq_u32 s{sTYP}, 2")
    a.e("s_cbranch_scc1 K1_EPI_F")

    def sel3(mt):
        return f"op_sel:[0,{mt&1},0] op_sel_hi:[1,{mt&1},1]"

    def sel2(mt):
        return f"op_sel:[0,{mt&1}] op_sel_hi:[1,{mt&1}]"
    a.e(f"s_cmp_lt_u32 s{sCB}, 5")
    a.e(f"s_cselect_b32 s{t0}, {hx(f32(QSCALE))}, 1.0")
    a.e("s_waitcnt lgkmcnt(4)")
    for i in range(4):
        a.e(f"v_mul_f32 v{vRS+i}, s{t0}, v{vRS+i}")
    for j in range(4):
        a.e(f"s_waitcnt lgkmcnt({3-j})")
        for mt in range(4):
            A = acc(j, mt)
            for p in range(2):
                a.e(f"v_pk_fma_f32 {vr(A+2*p,2)}, {vr(vC4+4*j+2*p,2)}, {vr(vNM+(mt&2),2)}, {vr(A+2*p,2)} {sel3(mt)}")
        for mt in range(4):
            A = acc(j, mt)
            for p in range(2):
                a.e(f"v_pk_mul_f32 {vr(A+2*p,2)}, {vr(A+2*p,2)}, {vr(vRS+(mt&2),2)} {sel2(mt)}")
        for mt in range(4):
            A = acc(j, mt)
            a.e(f"v_cvt_pk_bf16_f32 v{A}, v{A}, v{A+1}")
            a.e(f"v_cvt_pk_bf16_f32 v{A+1}, v{A+2}, v{A+3}")
            so = f"s{sTS}" if mt & 2 else "0"
            a.e(f"buffer_store_dwordx2 {vr(A,2)}, v{vSA+2*j+(mt&1)}, {sr(sWS,4)}, {so} offen")
    k1flush()
    a.e("s_endpgm")
    a.lab("K1_EPI_F")
    c0 = -2.0 * math.sqrt(2.0 / math.pi) * math.log2(math.e)
    c1 = c0 * 0.044715
    vC0, vONE = 64, 66
    a.e(f"v_lshrrev_b32 v{vT+2}, 1, v{vT+2}")
    a.e(f"s_lshl_b32 s{t0}, s{sNQ}, 7")
    a.e(f"s_add_u32 s{t0}, s{t0}, {K1_SCR+2048}")
    a.e(f"v_add_u32 v{vT+2}, s{t0}, v{vT+2}")
    for j in range(4):
        a.e(f"ds_read_b64 {vr(vBB+2*j,2)}, v{vT+2} offset:{32*j}")
    a.e(f"v_mov_b32 v{vC0}, {hx(f32(c0))}")
    a.e(f"v_mov_b32 v{vC0+1}, {hx(f32(c0))}")
    a.e(f"v_mov_b32 v{vONE}, 1.0")
    a.e(f"v_mov_b32 v{vONE+1}, 1.0")
    a.e(f"s_mov_b32 s{sC1}, {hx(f32(c1))}")
    a.e(f"s_mov_b32 s{sC1+1}, {hx(f32(c1))}")
    vBF = 68
    vW = 88
    for j in range(4):
        a.e(f"s_waitcnt lgkmcnt({3-j})")
        a.e(f"v_lshlrev_b32 v{vBF}, 16, v{vBB+2*j}")
        a.e(f"v_and_b32 v{vBF+1}, 0xffff0000, v{vBB+2*j}")
        a.e(f"v_lshlrev_b32 v{vBF+2}, 16, v{vBB+2*j+1}")
        a.e(f"v_and_b32 v{vBF+3}, 0xffff0000, v{vBB+2*j+1}")
        for mp in range(2):
            prs = [(mt, p) for mt in (2 * mp, 2 * mp + 1) for p in range(2)]
            for i, (mt, p) in enumerate(prs):
                A = acc(j, mt) + 2 * p
                a.e(f"v_pk_fma_f32 {vr(A,2)}, {vr(vC4+4*j+2*p,2)}, {vr(vNM+(mt&2),2)}, {vr(A,2)} {sel3(mt)}")
            for i, (mt, p) in enumerate(prs):
                A = acc(j, mt) + 2 * p
                a.e(f"v_pk_fma_f32 {vr(A,2)}, {vr(A,2)}, {vr(vRS+(mt&2),2)}, {vr(vBF+2*p,2)} {sel3(mt)}")
            for i, (mt, p) in enumerate(prs):
                A = acc(j, mt) + 2 * p
                a.e(f"v_pk_mul_f32 {vr(vW+2*i,2)}, {vr(A,2)}, {vr(A,2)}")
            for i, (mt, p) in enumerate(prs):
                a.e(f"v_pk_fma_f32 {vr(vW+2*i,2)}, {vr(vW+2*i,2)}, {sr(sC1,2)}, {vr(vC0,2)}")
            for i, (mt, p) in enumerate(prs):
                A = acc(j, mt) + 2 * p
                a.e(f"v_pk_mul_f32 {vr(vW+2*i,2)}, {vr(vW+2*i,2)}, {vr(A,2)}")
            for i in range(8):
                a.e(f"v_exp_f32 v{vW+i}, v{vW+i}")
            for i in range(4):
                a.e(f"v_pk_add_f32 {vr(vW+2*i,2)}, {vr(vW+2*i,2)}, {vr(vONE,2)}")
            for i in range(8):
                a.e(f"v_rcp_f32 v{vW+i}, v{vW+i}")
            for i, (mt, p) in enumerate(prs):
                A = acc(j, mt) + 2 * p
                a.e(f"v_pk_mul_f32 {vr(A,2)}, {vr(A,2)}, {vr(vW+2*i,2)}")
            for mt in (2 * mp, 2 * mp + 1):
                A = acc(j, mt)
                D = acc(j & ~1, mt) + 2 * (j & 1)
                a.e(f"v_cvt_pk_bf16_f32 v{D}, v{A}, v{A+1}")
                a.e(f"v_cvt_pk_bf16_f32 v{D+1}, v{A+2}, v{A+3}")
                if j & 1:
                    a.e(f"buffer_store_dwordx4 {vr(acc(j-1,mt),4)}, v{vSA+j//2}, {sr(sWS,4)}, 0 offen offset:{256*mt}")
    k1flush()
    a.e("s_endpgm")
    a.lab("K1_EPI_V")
    vNMv, vRSv = 40, 56
    vCSv = 88
    a.e(f"v_add_u32 v{vT+1}, s{t2}, v{vT+2}")
    for mt in range(4):
        a.e(f"ds_read_b128 {vr(vNMv+4*mt,4)}, v{vT+1} offset:{64*mt}")
    for mt in range(4):
        a.e(f"ds_read_b128 {vr(vRSv+4*mt,4)}, v{vT+1} offset:{512+64*mt}")
    a.e(f"v_add_u32 v{vT+3}, s{t3}, v{vT}")
    for j in range(4):
        a.e(f"ds_read_b32 v{vCSv+2*j}, v{vT+3} offset:{64*j}")
    for j in range(4):
        a.e(f"s_waitcnt lgkmcnt({3-j})")
        for mt in range(4):
            A = acc(j, mt)
            for p in range(2):
                a.e(f"v_pk_fma_f32 {vr(A+2*p,2)}, {vr(vNMv+4*mt+2*p,2)}, {vr(vCSv+2*j,2)}, {vr(A+2*p,2)} op_sel:[0,0,0] op_sel_hi:[1,0,1]")
        for mt in range(4):
            A = acc(j, mt)
            for p in range(2):
                a.e(f"v_pk_mul_f32 {vr(A+2*p,2)}, {vr(A+2*p,2)}, {vr(vRSv+4*mt+2*p,2)}")
        for t2_ in range(2):
            A0, A1 = acc(j, 2 * t2_), acc(j, 2 * t2_ + 1)
            a.e(f"v_cvt_pk_bf16_f32 v{A0}, v{A0}, v{A0+1}")
            a.e(f"v_cvt_pk_bf16_f32 v{A0+1}, v{A0+2}, v{A0+3}")
            a.e(f"v_cvt_pk_bf16_f32 v{A0+2}, v{A1}, v{A1+1}")
            a.e(f"v_cvt_pk_bf16_f32 v{A0+3}, v{A1+2}, v{A1+3}")
            a.e(f"buffer_store_dwordx4 {vr(A0,4)}, v{vSA+j}, {sr(sWS,4)}, 0 offen offset:{KVT*t2_}")
    k1flush()
    a.e("s_endpgm")

    a.lab("K1_TRANS")
    sTAU, sSEL0, sSEL1 = 51, 52, 53
    NB_T = 4
    sTs = [24, 28, 36, 40]
    sK = [54, 56, 58, 76]
    vTO = [2, 3, 4, 5]
    vTS = [6, 7, 8, 9]
    vTL = [88, 104, 120, 136]
    a.e(f"s_mul_i32 s{sTAU}, s{sRB}, 12")
    a.e(f"s_add_u32 s{sTAU}, s{sTAU}, s{sW}")
    a.e(f"s_mov_b32 s{sSEL0}, 0x05040100")
    a.e(f"s_mov_b32 s{sSEL1}, 0x07060302")
    a.e(f"v_lshlrev_b32 v{vT}, 2, v{vLANE}")
    a.e(f"v_lshlrev_b32 v{vT+1}, 5, v{vLANE}")
    a.e("s_waitcnt lgkmcnt(0)")
    srd(a, sWS, "s18", "s19", WS_END)
    if "Q" in X:
        srd(a, sX, "s4", "s5", 2048 * 640 * 2)
        srd(a, sB0, "s6", "s7", 640 * 1920 * 2)
        srd(a, sB1, "s12", "s13", 640 * 1728 * 2)
        a.e(f"s_lshl_b32 s{t0}, s{sTAU}, 13")
        a.e(f"v_lshlrev_b32 v20, 7, v{vLANE}")
        a.e(f"v_add_u32 v20, s{t0}, v20")
        a.e(f"s_mov_b32 s{t1}, {192*3840}")
        a.e(f"s_mov_b32 s{t2}, {192*3456}")
        a.e(f"s_mov_b32 s{t3}, {192*3840 + 12288*128}")
        a.e(f"s_mov_b32 s{t4}, {12288*128}")
        a.e(f"buffer_load_dword v21, v20, {sr(sB0,4)}, s{t1} offen")
        a.e(f"buffer_load_dword v22, v20, {sr(sB1,4)}, s{t2} offen")
        a.e(f"buffer_load_dword v23, v20, {sr(sX,4)}, 0 offen")
        a.e(f"buffer_load_dword v24, v20, {sr(sX,4)}, s{t4} offen")
        a.e(f"buffer_load_dword v25, v20, {sr(sB0,4)}, s{t3} offen")
    a.e(f"s_lshl_b32 s{t0}, s{sTAU}, 4")
    a.e(f"v_lshrrev_b32 v{vT+2}, 2, v{vLANE}")
    a.e(f"v_add_u32 v{vT+2}, s{t0}, v{vT+2}")
    a.e(f"v_mul_u32_u24 v{vT+2}, {KVT}, v{vT+2}")
    a.e(f"v_and_b32 v{vT+3}, 3, v{vLANE}")
    a.e(f"v_mul_u32_u24 v{vT+3}, {VP}, v{vT+3}")
    a.e(f"v_add_u32 v{vT+2}, v{vT+2}, v{vT+3}")
    a.e(f"s_cmp_lt_u32 s{sTAU}, 128")
    a.e(f"s_cselect_b32 s{t0}, {hx(KV_OFF + 1280 + 320)}, {hx(OOB)}")
    for i in range(4):
        a.e(f"v_mov_b32 v{12+i}, 0x3f803f80")
    a.e(f"buffer_store_dwordx4 v[12:15], v{vT+2}, {sr(sWS,4)}, s{t0} offen")
    a.e(f"s_cmp_eq_u32 s{sTAU}, 128")
    a.e(f"s_cselect_b32 s{t0}, {hx(FL_OFF)}, {hx(OOB)}")
    for i in range(4):
        a.e(f"v_mov_b32 v{16+i}, 0")
    a.e(f"v_lshlrev_b32 v{vT+3}, 4, v{vLANE}")
    a.e(f"buffer_store_dwordx4 v[16:19], v{vT+3}, {sr(sWS,4)}, s{t0} offen")
    a.e(f"s_mov_b32 s{sIT+3}, 0")
    a.lab("K1_TL")
    for b in range(NB_T):
        T = sTs[b]
        a.e(f"s_mul_i32 s{t1}, s{sTAU}, 13108")
        a.e(f"s_lshr_b32 s{t1}, s{t1}, 16")
        a.e(f"s_mul_i32 s{t2}, s{t1}, 5")
        a.e(f"s_sub_u32 s{t2}, s{sTAU}, s{t2}")
        a.e(f"s_mul_i32 s{t3}, s{t1}, 205")
        a.e(f"s_lshr_b32 s{t3}, s{t3}, 10")
        a.e(f"s_mul_i32 s{t4}, s{t3}, 5")
        a.e(f"s_sub_u32 s{t4}, s{t1}, s{t4}")
        a.e(f"s_mul_i32 s{t3}, s{t3}, 40")
        a.e(f"s_lshr_b32 s{t5}, s{t4}, 1")
        a.e(f"s_mul_i32 s{t5}, s{t5}, 20")
        a.e(f"s_and_b32 s{t6}, s{t4}, 1")
        a.e(f"s_lshl_b32 s{t6}, s{t6}, 2")
        a.e(f"s_add_u32 s{t5}, s{t5}, s{t6}")
        a.e(f"s_add_u32 s{t6}, s{t5}, 8")
        a.e(f"s_cmp_eq_u32 s{t4}, 4")
        a.e(f"s_cselect_b32 s{t5}, 16, s{t5}")
        a.e(f"s_cselect_b32 s{t6}, 36, s{t6}")
        a.e(f"s_add_u32 s{t5}, s{t5}, s{t3}")
        a.e(f"s_add_u32 s{t6}, s{t6}, s{t3}")
        a.e(f"s_sub_u32 s{t3}, s{t1}, 80")
        a.e(f"s_lshr_b32 s{t4}, s{t3}, 2")
        a.e(f"s_lshl_b32 s{t4}, s{t4}, 5")
        a.e(f"s_and_b32 s{t3}, s{t3}, 3")
        a.e(f"s_lshl_b32 s{t3}, s{t3}, 2")
        a.e(f"s_add_u32 s{t3}, s{t3}, s{t4}")
        a.e(f"s_add_u32 s{t4}, s{t3}, 16")
        a.e(f"s_cmp_lt_u32 s{t1}, 80")
        a.e(f"s_cselect_b32 s{t5}, s{t5}, s{t3}")
        a.e(f"s_cselect_b32 s{t6}, s{t6}, s{t4}")
        a.e(f"s_cselect_b32 s{T}, s8, s16")
        a.e(f"s_cselect_b32 s{T+1}, s9, s17")
        a.e(f"s_cselect_b32 s{T+2}, {hx(640*640*2)}, {hx(1728*640*2)}")
        a.e(f"s_mov_b32 s{T+3}, 0x00020000")
        a.e(f"s_mul_i32 s{sK[b]}, s{t5}, 1280")
        a.e(f"s_mul_i32 s{sK[b]+1}, s{t6}, 1280")
        a.e(f"s_lshl_b32 s{t3}, s{t2}, 8")
        a.e(f"v_add_u32 v{vTO[b]}, s{t3}, v{vT}")
        for j in range(8):
            so = sK[b] if j < 4 else sK[b] + 1
            a.e(f"buffer_load_dword v{vTL[b]+j}, v{vTO[b]}, {sr(T,4)}, s{so} offen offset:{(j&3)*1280}")
        a.e(f"s_mul_i32 s{t1}, s{t1}, 10240")
        a.e(f"s_lshl_b32 s{t2}, s{t2}, 11")
        a.e(f"s_add_u32 s{t1}, s{t1}, s{t2}")
        a.e(f"s_add_u32 s{t1}, s{t1}, {hx(WT_OFF)}")
        a.e(f"s_cmp_lt_u32 s{sTAU}, 1480")
        a.e(f"s_cselect_b32 s{t1}, s{t1}, {hx(OOB)}")
        a.e(f"v_add_u32 v{vTS[b]}, s{t1}, v{vT+1}")
        a.e(f"s_add_u32 s{sTAU}, s{sTAU}, 192")
    for b in range(NB_T):
        a.e(f"s_waitcnt vmcnt({8*(NB_T-1-b) + 2*b})")
        for i in range(4):
            a.e(f"v_perm_b32 v{vTL[b]+8+i}, v{vTL[b]+2*i+1}, v{vTL[b]+2*i}, s{sSEL0}")
            a.e(f"v_perm_b32 v{vTL[b]+12+i}, v{vTL[b]+2*i+1}, v{vTL[b]+2*i}, s{sSEL1}")
        a.e(f"buffer_store_dwordx4 {vr(vTL[b]+8,4)}, v{vTS[b]}, {sr(sWS,4)}, 0 offen")
        a.e(f"buffer_store_dwordx4 {vr(vTL[b]+12,4)}, v{vTS[b]}, {sr(sWS,4)}, 0 offen offset:16")
    a.e(f"s_add_u32 s{sIT+3}, s{sIT+3}, 1")
    a.e(f"s_cmp_lt_u32 s{sIT+3}, 2")
    a.e("s_cbranch_scc1 K1_TL")
    if DIAG:
        for i in (1, 2, 3, 5):
            stamp(a, i)
    k1flush()
    a.lab("K1_END")
    a.e("s_endpgm")
    return name, NV, 102 if DIAG else 80, (256, 768, K1_LDS)


K2_LDS = 163840
Y_OFF = 0x1400000
Y_SIZE = 2048 * 640 * 4
WS_ALL = Y_OFF + Y_SIZE


def gen_k2(a):
    name = "k2_attn_kernel"
    kernel_header(a, name)
    X2 = os.environ.get("K2X", "")
    sWS, sKV = 12, 16
    sW, sH, sQT, sOFF, sIT, sG = 20, 21, 22, 23, 24, 25
    sLD = 26
    t0, t1, t2, t3 = 28, 29, 30, 31
    sBM = 32
    vLANE = 1
    vL16, vKa, vKb, vV = 2, 3, 4, 5
    vT = 6
    QA, QB = [12, 20], [16, 24]
    KA, KB = 28, 32
    V0, V1 = 36, 40
    P0, P1 = 44, 48
    O = [64, 80]
    S = [96, 112]
    NV = 168
    RG = 81920
    FUSE = "u" not in X2
    k2flush = lambda: (stamp(a, 4), stamp_flush(a, 1, 12, sW, "s4", "s5", 8, 2))

    a.e("s_cmp_ge_u32 s2, 256")
    a.e("s_cbranch_scc1 K2_END")
    stamp(a, 0)
    a.e("s_load_dwordx2 s[4:5], s[0:1], 80")
    a.e("s_load_dwordx2 s[6:7], s[0:1], 0")
    a.e("s_load_dwordx2 s[8:9], s[0:1], 56")
    a.e("s_load_dwordx4 s[60:63], s[0:1], 64")
    a.e(f"v_and_b32 v{vLANE}, 63, v0")
    a.e(f"v_lshrrev_b32 v{vT}, 6, v0")
    a.e(f"s_and_b32 s{t0}, s2, 7")
    a.e(f"v_readfirstlane_b32 s{sW}, v{vT}")
    a.e(f"s_lshr_b32 s{t1}, s2, 3")
    a.e(f"s_lshl_b32 s{t2}, s{t0}, 2")
    a.e(f"s_and_b32 s{t3}, s{t1}, 3")
    a.e(f"s_add_u32 s{sH}, s{t2}, s{t3}")
    a.e(f"v_lshlrev_b32 v{vL16}, 4, v{vLANE}")
    a.e(f"s_mul_i32 s{t2}, s{sH}, {KVH}")
    a.e(f"s_add_u32 s{t2}, s{t2}, {hx(KV_OFF)}")
    a.e("s_waitcnt lgkmcnt(0)")
    stamp(a, 5)
    a.e(f"s_add_u32 s{sKV}, s4, s{t2}")
    a.e(f"s_addc_u32 s{sKV+1}, s5, 0")
    a.e(f"s_mov_b32 s{sKV+2}, {KVH}")
    a.e(f"s_mov_b32 s{sKV+3}, 0x00020000")
    a.e(f"s_cmp_ge_u32 s{sW}, 4")
    a.e("s_cbranch_scc1 K2_ATT")
    sA, sWT, sXX, sB2, sY = 36, 40, 44, 48, 52
    sRB, sCB, sOA, sOW = 56, 57, 58, 59
    vOA, vOW, vXO, vBO, vYO = 3, 4, 5, 12, 13
    F = 16
    ACC = 88

    def fA(s_, mt):
        return F + 36 * s_ + 4 * mt

    def fW(s_, t):
        return F + 36 * s_ + 16 + 4 * t

    def kvdma(n):
        for t in range(n):
            a.e(f"s_mov_b32 m0, s{sLD}")
            a.e(f"s_add_u32 s{sLD}, s{sLD}, 2048")
            a.e(f"buffer_load_dwordx4 v{vL16}, {sr(sKV,4)}, s{sOFF} offen lds")
            a.e(f"s_add_u32 s{sOFF}, s{sOFF}, 2048")

    a.e("s_setprio 3")
    a.e(f"s_and_b32 s{t2}, s{sW}, 1")
    a.e(f"s_lshr_b32 s{t3}, s{sW}, 1")
    a.e(f"s_lshl_b32 s{t3}, s{t3}, 10")
    a.e(f"s_mul_i32 s{sOFF}, s{t2}, {32*KVT}")
    a.e(f"s_add_u32 s{sOFF}, s{sOFF}, s{t3}")
    a.e(f"s_mul_i32 s{sLD}, s{t2}, {RG}")
    a.e(f"s_add_u32 s{sLD}, s{sLD}, s{t3}")
    kvdma(9)
    a.e(f"s_lshl_b32 s{t0}, s{t0}, 2")
    a.e(f"s_and_b32 s{t2}, s{t1}, 3")
    a.e(f"s_add_u32 s{sRB}, s{t0}, s{t2}")
    a.e(f"s_lshr_b32 s{sCB}, s{t1}, 2")
    srd_off(a, sA, "s4", "s5", AB_OFF + 80 * 32768, AB_SIZE - 80 * 32768)
    srd_off(a, sWT, "s4", "s5", WT_OFF + 80 * 10240, WT_SIZE - 80 * 10240)
    srd(a, sXX, "s6", "s7", 2048 * 640 * 2)
    srd(a, sB2, "s8", "s9", 640 * 2)
    srd_off(a, sY, "s4", "s5", Y_OFF, Y_SIZE)
    a.e(f"v_and_b32 v{vT}, 15, v{vLANE}")
    a.e(f"v_lshrrev_b32 v{vT+1}, 4, v{vLANE}")
    a.e(f"s_lshl_b32 s{t0}, s{sRB}, 6")
    a.e(f"v_add_u32 v{vT+2}, s{t0}, v{vT}")
    a.e(f"v_lshlrev_b32 v{vOA}, 4, v{vT+2}")
    a.e(f"v_lshl_add_u32 v{vOA}, v{vT+1}, 15, v{vOA}")
    a.e(f"s_mul_i32 s{t1}, s{sCB}, 80")
    a.e(f"v_add_u32 v{vT+3}, s{t1}, v{vT}")
    a.e(f"v_lshlrev_b32 v{vOW}, 4, v{vT+3}")
    a.e(f"v_mul_u32_u24 v{vT+3}, 10240, v{vT+1}")
    a.e(f"v_add_u32 v{vOW}, v{vOW}, v{vT+3}")
    a.e(f"s_lshl_b32 s{sOA}, s{sW}, 17")
    a.e(f"s_mul_i32 s{sOW}, s{sW}, 40960")
    a.e(f"v_lshlrev_b32 v{vBO}, 3, v{vT+1}")
    a.e(f"s_lshl_b32 s{t2}, s{t1}, 1")
    a.e(f"v_add_u32 v{vBO}, s{t2}, v{vBO}")
    a.e(f"s_lshl_b32 s{t2}, s{sW}, 4")
    a.e(f"v_add_u32 v{vT+2}, s{t2}, v{vT+2}")
    a.e(f"v_mul_u32_u24 v{vXO}, 1280, v{vT+2}")
    a.e(f"v_add_u32 v{vXO}, v{vXO}, v{vBO}")
    a.e(f"s_lshl_b32 s{t0}, s{sRB}, 3")
    a.e(f"s_add_u32 s{t0}, s{t0}, s{sCB}")
    a.e(f"s_mul_i32 s{t0}, s{t0}, 20480")
    a.e(f"s_mul_i32 s{t2}, s{sW}, 5120")
    a.e(f"s_add_u32 s{t0}, s{t0}, s{t2}")
    a.e(f"v_add_u32 v{vYO}, s{t0}, v{vL16}")
    for i in range(80):
        a.e(f"v_mov_b32 v{ACC+i}, 0")
    a.e(f"s_mov_b32 s{sIT}, 0")
    a.e(f"s_mov_b32 s{sBM}, {hx((1 << 1) | (1 << 4))}")
    a.e(f"v_mov_b32 v{vT}, 0")
    a.e("s_waitcnt vmcnt(3)")
    a.e("s_barrier")
    stamp(a, 1)
    kvdma(31)

    def loads(s_):
        r = [f"buffer_load_dwordx4 {vr(fA(s_,mt),4)}, v{vOA}, {sr(sA,4)}, s{sOA} offen offset:{256*mt}" for mt in range(4)]
        for t in range(5):
            r.append(f"buffer_load_dwordx4 {vr(fW(s_,t),4)}, v{vOW}, {sr(sWT,4)}, s{sOW} offen offset:{256*t}")
        r.append(f"s_add_u32 s{sOA}, s{sOA}, {4*131072}")
        r.append(f"s_add_u32 s{sOW}, s{sOW}, {4*40960}")
        return r

    for s_ in range(2):
        for ins in loads(s_):
            a.e(ins)
    a.e("s_waitcnt vmcnt(49)")
    a.e("s_barrier")
    stamp(a, 2)
    a.e(f"ds_write_b32 v{vT}, v{vT}")
    if "n" in X2:
        a.e("s_waitcnt vmcnt(0)")
        a.e("s_barrier")
        stamp(a, 3)
        k2flush()
        a.e("s_endpgm")
    a.e(f"s_setprio {3 if 'Z' in X2 else (1 if 'y' in X2 else 0)}")
    a.raw(".p2align 3")
    a.lab("K2_GL")
    for s_ in range(2):
        ld = loads(s_)
        a.e("s_waitcnt vmcnt(9)")
        for t in range(5):
            for mt in range(4):
                A_ = ACC + 20 * mt + 4 * t
                a.e(f"v_mfma_f32_16x16x32_bf16 {vr(A_,4)}, {vr(fW(s_,t),4)}, {vr(fA(s_,mt),4)}, {vr(A_,4)}")
                if t == 4:
                    a.e(ld[mt])
            a.e(ld[4 + t])
        a.e(ld[9]); a.e(ld[10])
    a.e(f"s_add_u32 s{sIT}, s{sIT}, 1")
    a.e(f"s_bitcmp0_b32 s{sBM}, s{sIT}")
    a.e("s_cbranch_scc1 K2_GNB")
    a.e("s_waitcnt lgkmcnt(0)")
    a.e("s_barrier")
    a.lab("K2_GNB")
    a.e(f"s_cmp_lt_u32 s{sIT}, 7")
    a.e("s_cbranch_scc1 K2_GL")
    stamp(a, 3)
    a.e("s_setprio 3")
    a.e("s_waitcnt vmcnt(0)")
    XR = 68
    for q in range(5):
        a.e(f"buffer_load_dwordx2 {vr(XR+2*q,2)}, v{vXO}, {sr(sXX,4)}, 0 offen offset:{32*q}")
        a.e(f"buffer_load_dwordx2 {vr(XR+10+2*q,2)}, v{vBO}, {sr(sB2,4)}, 0 offen offset:{32*q}")
    a.e(f"s_lshr_b32 s{t0}, s{sW}, 1")
    a.e(f"s_mul_i32 s{t0}, s{t0}, {RG}")
    a.e(f"s_and_b32 s{t1}, s{sW}, 1")
    a.e(f"s_mul_i32 s{t1}, s{t1}, 20480")
    a.e(f"s_add_u32 s{t0}, s{t0}, s{t1}")
    a.e(f"s_add_u32 s{t0}, s{t0}, 1024")
    a.e(f"v_add_u32 v{vT+1}, s{t0}, v{vL16}")
    for q in range(20):
        a.e(f"ds_write_b128 v{vT+1}, {vr(ACC+4*q,4)} offset:{1024*q}")
    a.e(f"v_mov_b32 v{vT+2}, 1")
    a.e("s_waitcnt lgkmcnt(0)")
    a.e("s_mov_b64 exec, 1")
    a.e(f"ds_add_u32 v{vT}, v{vT+2}")
    a.e("s_mov_b64 exec, -1")
    a.e("s_setprio 0")
    a.lab("K2_POLL")
    a.e(f"ds_read_b32 v{vT+3}, v{vT}")
    a.e("s_waitcnt lgkmcnt(0)")
    a.e(f"v_readfirstlane_b32 s{t0}, v{vT+3}")
    a.e(f"s_cmp_lt_u32 s{t0}, 4")
    a.e("s_cbranch_scc1 K2_POLL")
    a.e("s_setprio 3")
    a.e(f"s_mul_i32 s{t0}, s{sW}, 5120")
    a.e(f"s_add_u32 s{t0}, s{t0}, 1024")
    a.e(f"v_add_u32 v{vT+1}, s{t0}, v{vL16}")
    a.e(f"v_add_u32 v{vT+2}, {RG}, v{vT+1}")
    R = ACC
    for q in range(5):
        for wv in range(4):
            base = vT + 1 if wv < 2 else vT + 2
            a.e(f"ds_read_b128 {vr(R+16*q+4*wv,4)}, v{base} offset:{(wv&1)*20480 + 1024*q}")
    a.e(f"s_movk_i32 s{t1}, 4096")
    a.e("s_waitcnt vmcnt(0)")
    for q in range(5):
        a.e(f"s_waitcnt lgkmcnt({min(15,4*(4-q))})")
        b = R + 16 * q
        for i in range(4):
            a.e(f"v_add_f32 v{b+i}, v{b+i}, v{b+4+i}")
            a.e(f"v_add_f32 v{b+8+i}, v{b+8+i}, v{b+12+i}")
        for i in range(4):
            a.e(f"v_add_f32 v{b+i}, v{b+i}, v{b+8+i}")
        for k, src in enumerate((XR + 2 * q, XR + 10 + 2 * q)):
            u = b + 4 + 4 * k
            a.e(f"v_lshlrev_b32 v{u}, 16, v{src}")
            a.e(f"v_and_b32 v{u+1}, 0xffff0000, v{src}")
            a.e(f"v_lshlrev_b32 v{u+2}, 16, v{src+1}")
            a.e(f"v_and_b32 v{u+3}, 0xffff0000, v{src+1}")
        for i in range(4):
            a.e(f"v_add_f32 v{b+i}, v{b+i}, v{b+4+i}")
        for i in range(4):
            a.e(f"v_add_f32 v{b+i}, v{b+i}, v{b+8+i}")
        if not FUSE:
            so, off = ("0", 1024 * q) if q < 4 else (f"s{t1}", 0)
            a.e(f"buffer_store_dwordx4 {vr(b,4)}, v{vYO}, {sr(sY,4)}, {so} offen offset:{off}")
    if FUSE:
        YA = [R + 16 * q for q in range(5)]
        a.e("s_barrier")
        srd_off(a, sWT, "s4", "s5", WT_OFF, 80 * 10240)
        srd_off(a, sA, "s4", "s5", AB_OFF, 80 * 32768)
        srd(a, sY, "s60", "s61", 2048 * 640 * 2)
        srd_off(a, sB2, "s4", "s5", FL_OFF, 1024)
        a.e(f"s_mul_i32 s{sOW}, s{sW}, {5*40960}")
        a.e(f"s_lshr_b32 s{t0}, s{sW}, 1")
        a.e(f"s_mul_i32 s{t0}, s{t0}, {RG}")
        a.e(f"s_and_b32 s{t1}, s{sW}, 1")
        a.e(f"s_mul_i32 s{t1}, s{t1}, 25600")
        a.e(f"s_add_u32 s{t0}, s{t0}, s{t1}")
        for r in range(5):
            for q in range(5):
                a.e(f"s_add_u32 m0, s{t0}, {r*5120 + q*768}")
                a.e("s_nop 0")
                a.e(f"buffer_load_dwordx4 v{vOW}, {sr(sWT,4)}, s{sOW} offen offset:{256*q} lds")
            a.e(f"s_add_u32 s{sOW}, s{sOW}, 40960")
        a.e(f"s_lshl_b32 s{t2}, s{sW}, 8")
        a.e(f"v_add_u32 v{vOA}, s{t2}, v{vOA}")
        a.e(f"v_add_u32 v{vT+2}, {RG}, v{vL16}")
        a.e(f"v_mov_b32 v{vT+1}, 1")
        a.e(f"s_lshr_b32 s{t2}, s2, 5")
        a.e(f"s_lshl_b32 s{t2}, s{t2}, 5")
        a.e(f"s_add_u32 s{t2}, s{t2}, s{sH}")
        a.e(f"s_lshl_b32 s{t2}, s{t2}, 2")
        a.e(f"s_lshr_b32 s{t3}, s{sRB}, 2")
        a.e(f"s_lshl_b32 s{t3}, s{t3}, 7")
        a.e(f"v_lshlrev_b32 v{vT+4}, 2, v{vLANE}")
        a.e("s_barrier")
        a.e("s_waitcnt vmcnt(0)")
        a.e("s_barrier")
        stamp(a, 1)
        a.e(f"s_cmp_lg_u32 s{sW}, 0")
        a.e("s_cbranch_scc1 K2_PW")
        a.e("s_mov_b64 exec, 1")
        a.e(f"buffer_store_dword v{vT+1}, v{vT}, {sr(sB2,4)}, s{t2} offen sc1")
        a.e("s_mov_b32 exec_lo, -1")
        a.e(f"s_mov_b32 s{sIT}, 0")
        a.lab("K2_GP")
        a.e(f"buffer_load_dword v{vT+3}, v{vT+4}, {sr(sB2,4)}, s{t3} offen sc1")
        a.e(f"s_add_u32 s{sIT}, s{sIT}, 1")
        a.e("s_waitcnt vmcnt(0)")
        a.e(f"v_cmp_ne_u32 vcc, 1, v{vT+3}")
        a.e(f"s_cmp_ge_u32 s{sIT}, {1 << 21}")
        a.e("s_cbranch_scc1 K2_GPD")
        a.e("s_cbranch_vccz K2_GPD")
        a.e("s_sleep 4")
        a.e("s_branch K2_GP")
        a.lab("K2_GPD")
        a.e("s_mov_b64 exec, -1")
        a.lab("K2_PW")
        a.e("s_barrier")
        stamp(a, 2)
        FAr = [16 + 4 * i for i in range(18)] + [R + 4, R + 8]
        FBr = [[R + 20, R + 24, R + 28, R + 36, R + 40], [R + 44, R + 52, R + 56, R + 60, R + 68]]
        a.e(f"s_mov_b32 s{sOA}, 0")
        for ks in range(20):
            a.e(f"buffer_load_dwordx4 {vr(FAr[ks],4)}, v{vOA}, {sr(sA,4)}, s{sOA} offen sc1")
            a.e(f"s_add_u32 s{sOA}, s{sOA}, 131072")

        def rdB(ks):
            base, off = (vL16, ks * 5120) if ks < 10 else (vT + 2, (ks - 10) * 5120)
            return [f"ds_read_b128 {vr(FBr[ks&1][t],4)}, v{base} offset:{off+1024*t}" for t in range(5)]

        for ins in rdB(0):
            a.e(ins)
        for ks in range(20):
            if ks < 19:
                for ins in rdB(ks + 1):
                    a.e(ins)
            a.e(f"s_waitcnt vmcnt({19-ks}) lgkmcnt({5 if ks < 19 else 0})")
            for t in range(5):
                a.e(f"v_mfma_f32_16x16x32_bf16 {vr(YA[t],4)}, {vr(FBr[ks&1][t],4)}, {vr(FAr[ks],4)}, {vr(YA[t],4)}")
        a.e("s_nop 7")
        for t in range(5):
            A_ = YA[t]
            if os.environ.get("OUTBIAS"):
                for i in range(4):
                    a.e(f"v_add_f32 v{A_+i}, {hx(f32(float(os.environ['OUTBIAS'])))}, v{A_+i}")
            a.e(f"v_cvt_pk_bf16_f32 v{A_}, v{A_}, v{A_+1}")
            a.e(f"v_cvt_pk_bf16_f32 v{A_+1}, v{A_+2}, v{A_+3}")
            a.e(f"buffer_store_dwordx2 {vr(A_,2)}, v{vXO}, {sr(sY,4)}, 0 offen offset:{32*t}")
    k2flush()
    a.e("s_endpgm")

    a.lab("K2_ATT")
    vKa0, vKb0, vV0 = 52, 53, 54
    srd(a, sWS, "s4", "s5", WS_END)
    if "C" in X2:
        NPF = int(os.environ.get("NPF", "8"))
        a.e(f"s_cmp_ge_u32 s2, {NPF}")
        a.e("s_cbranch_scc1 K2_NOCP")
        a.e(f"s_cmp_ge_u32 s{sW}, 6")
        a.e("s_cbranch_scc1 K2_NOCP")
        a.e(f"s_and_b32 s{t0}, s{sW}, 1")
        code_prefetch(a, "k2", "k2_attn_kernel", "CODE_END", 36, t0, vLANE, vT, 60)
        a.lab("K2_NOCP")
    a.e(f"s_lshr_b32 s{sG}, s{sW}, 3")
    a.e(f"s_lshr_b32 s{t1}, s{t1}, 2")
    a.e(f"s_lshl_b32 s{t1}, s{t1}, 3")
    a.e(f"s_and_b32 s{t2}, s{sW}, 3")
    a.e(f"s_lshl_b32 s{t2}, s{t2}, 1")
    a.e(f"s_add_u32 s{sQT}, s{t1}, s{t2}")
    a.e(f"s_mul_i32 s{t0}, s{sH}, 81920")
    a.e(f"s_mul_i32 s{t1}, s{sQT}, 1280")
    a.e(f"s_add_u32 s{t0}, s{t0}, s{t1}")
    if QB_OFF:
        a.e(f"s_add_u32 s{t0}, s{t0}, {hx(QB_OFF)}")
    a.e(f"v_and_b32 v{vT}, 31, v{vLANE}")
    a.e(f"v_lshrrev_b32 v{vT+1}, 5, v{vLANE}")
    a.e(f"v_lshlrev_b32 v{vKb0}, 3, v{vT}")
    a.e(f"v_lshl_add_u32 v{vT+2}, v{vT+1}, 30, v{vKb0}")
    a.e(f"v_add_u32 v{vKb0}, 1024, v{vKb0}")
    a.e(f"v_mov_b32 v{vKa0}, v{vL16}")
    a.e(f"v_min_u32 v{vT+3}, 20, v{vT}")
    a.e(f"v_mul_u32_u24 v{vV0}, {VP}, v{vT+1}")
    a.e(f"v_lshl_add_u32 v{vV0}, v{vT+3}, 4, v{vV0}")
    a.e(f"v_add_u32 v{vV0}, 1280, v{vV0}")
    a.e(f"s_mul_i32 s{sOFF}, s{sG}, {32*KVT}")
    a.e(f"s_add_u32 s{sOFF}, s{sOFF}, {31*KVT}")
    a.e(f"buffer_load_dwordx4 {vr(QA[0],4)}, v{vL16}, {sr(sWS,4)}, s{t0} offen")
    a.e(f"buffer_load_dwordx2 {vr(QB[0],2)}, v{vT+2}, {sr(sWS,4)}, s{t0} offen offset:1024")
    a.e(f"buffer_load_dwordx4 {vr(KA,4)}, v{vKa0}, {sr(sKV,4)}, s{sOFF} offen")
    a.e(f"buffer_load_dwordx2 {vr(KB,2)}, v{vKb0}, {sr(sKV,4)}, s{sOFF} offen")
    a.e(f"buffer_load_dwordx4 {vr(QA[1],4)}, v{vL16}, {sr(sWS,4)}, s{t0} offen offset:1280")
    a.e(f"buffer_load_dwordx2 {vr(QB[1],2)}, v{vT+2}, {sr(sWS,4)}, s{t0} offen offset:2304")
    a.e(f"buffer_load_dwordx4 {vr(V0,4)}, v{vV0}, {sr(sKV,4)}, s{sOFF} offen")
    a.e(f"buffer_load_dwordx4 {vr(V1,4)}, v{vV0}, {sr(sKV,4)}, s{sOFF} offen offset:{2*VP}")
    a.e(f"s_mul_i32 s{t1}, s{sG}, {RG}")
    a.e(f"v_add_u32 v{vKa}, s{t1}, v{vKa0}")
    a.e(f"v_add_u32 v{vKb}, s{t1}, v{vKb0}")
    a.e(f"v_add_u32 v{vV}, s{t1}, v{vV0}")
    for i in range(32):
        a.e(f"v_mov_b32 v{O[0]+i}, 0")
    a.e(f"s_mov_b32 s{sIT}, 0")
    a.e(f"s_mov_b32 s{sBM}, {hx((1 << 1) | (1 << 2) | (1 << 6) | (1 << 9))}")
    a.e("s_waitcnt vmcnt(4)")
    a.e(f"v_mfma_f32_32x32x16_bf16 {vr(S[0],16)}, {vr(KA,4)}, {vr(QA[0],4)}, 0")
    a.e(f"v_mfma_f32_32x32x8_bf16 {vr(S[0],16)}, {vr(KB,2)}, {vr(QB[0],2)}, {vr(S[0],16)}")
    a.e("s_waitcnt vmcnt(0)")
    a.e("s_nop 7")
    a.e("s_barrier")
    stamp(a, 1)

    def rdKa(t):
        return f"ds_read_b128 {vr(KA,4)}, v{vKa} offset:{KVT*t}"

    def rdKb(t):
        return f"ds_read_b64 {vr(KB,2)}, v{vKb} offset:{KVT*t}"

    def rdV(m, t):
        return f"ds_read_b128 {vr(V0 if m == 0 else V1,4)}, v{vV} offset:{KVT*t + 2*VP*m}"

    def item(x, lt, first=False, last=False):
        Sc, Sn = S[x], S[x ^ 1]

        def ex(lo):
            for i in range(lo, lo + 4):
                a.e(f"v_exp_f32 v{Sc+i}, v{Sc+i}")

        def cv(P, lo):
            a.e(f"v_cvt_pk_bf16_f32 v{P}, v{Sc+lo}, v{Sc+lo+1}")
            a.e(f"v_cvt_pk_bf16_f32 v{P+1}, v{Sc+lo+2}, v{Sc+lo+3}")

        doqk = not (last and x == 1)
        if x == 1 and doqk:
            a.e(f"s_waitcnt lgkmcnt({1 if first else 2})")
        if doqk:
            a.e(f"v_mfma_f32_32x32x16_bf16 {vr(Sn,16)}, {vr(KA,4)}, {vr(QA[x^1],4)}, 0")
        if x == 0 and not last:
            a.e(rdKa(lt + 1))
        ex(0)
        cv(P0, 0)
        if x == 1 and doqk:
            a.e(f"s_waitcnt lgkmcnt({0 if first else 1})")
        if doqk:
            a.e(f"v_mfma_f32_32x32x8_bf16 {vr(Sn,16)}, {vr(KB,2)}, {vr(QB[x^1],2)}, {vr(Sn,16)}")
        if x == 0 and not last:
            a.e(rdKb(lt + 1))
        ex(4)
        cv(P0 + 2, 4)
        if not (first and x == 0):
            if x == 1 and not first:
                a.e("s_waitcnt lgkmcnt(0)")
            a.e(f"v_mfma_f32_32x32x16_bf16 {vr(O[x^1],16)}, {vr(V1,4)}, {vr(P1,4)}, {vr(O[x^1],16)}")
            if x == 0:
                a.e(rdV(1, lt))
        ex(8)
        cv(P1, 8)
        if x == 0 and not first:
            a.e(f"s_waitcnt lgkmcnt({1 if last else 3})")
        a.e(f"v_mfma_f32_32x32x16_bf16 {vr(O[x],16)}, {vr(V0,4)}, {vr(P0,4)}, {vr(O[x],16)}")
        if x == 1 and not last:
            a.e(rdV(0, lt + 1))
        ex(12)
        cv(P1 + 2, 12)

    def item_b(x, lt, first=False, last=False):
        Sc, Sn = S[x], S[x ^ 1]
        doqk = not (last and x == 1)
        dopv = not (first and x == 0)
        G = int(os.environ.get("K2G", "4"))
        ms = []
        if doqk:
            m = []
            if x == 1:
                m.append(f"s_waitcnt lgkmcnt({1 if first else 3})")
            m.append(f"v_mfma_f32_32x32x16_bf16 {vr(Sn,16)}, {vr(KA,4)}, {vr(QA[x^1],4)}, 0")
            if x == 0 and not last:
                m.append(rdKa(lt + 1))
            ms.append(m)
            m = []
            if x == 1:
                m.append(f"s_waitcnt lgkmcnt({0 if first else 2})")
            m.append(f"v_mfma_f32_32x32x8_bf16 {vr(Sn,16)}, {vr(KB,2)}, {vr(QB[x^1],2)}, {vr(Sn,16)}")
            if x == 0 and not last:
                m.append(rdKb(lt + 1))
            ms.append(m)
        else:
            ms.append(["s_nop 1"])
        if dopv:
            m = []
            if x == 1 and not first:
                m.append("s_waitcnt lgkmcnt(1)")
            m.append(f"v_mfma_f32_32x32x16_bf16 {vr(O[x^1],16)}, {vr(V0,4)}, {vr(PP[x^1],4)}, {vr(O[x^1],16)}")
            if x == 0:
                m.append(rdV(0, lt))
            ms.append(m)
            m = []
            if x == 1 and not first:
                m.append("s_waitcnt lgkmcnt(0)")
            m.append(f"v_mfma_f32_32x32x16_bf16 {vr(O[x^1],16)}, {vr(V1,4)}, {vr(PP[x^1]+4,4)}, {vr(O[x^1],16)}")
            if x == 0:
                m.append(rdV(1, lt))
            ms.append(m)
        vs = []
        for g in range(4):
            v = [f"v_exp_f32 v{Sc+4*g+i}, v{Sc+4*g+i}" for i in range(4)]
            v.append(f"v_cvt_pk_bf16_f32 v{PP[x]+2*g}, v{Sc+4*g}, v{Sc+4*g+1}")
            v.append(f"v_cvt_pk_bf16_f32 v{PP[x]+2*g+1}, v{Sc+4*g+2}, v{Sc+4*g+3}")
            vs.append(v)
        mi = vi = 0
        while mi < len(ms) or vi < len(vs):
            for _ in range(G):
                if mi < len(ms):
                    for ins in ms[mi]:
                        a.e(ins)
                    mi += 1
            for _ in range(G):
                if vi < len(vs):
                    for ins in vs[vi]:
                        a.e(ins)
                    vi += 1

    BUNCH = "b" in X2
    PP = [P0, 128]
    if BUNCH:
        item = item_b
    a.e("s_setprio 2")
    item(0, -1, first=True)
    item(1, -1, first=True)
    a.raw(".p2align 6")
    a.lab("K2_LOOP")
    a.e(f"s_bitcmp1_b32 s{sBM}, s{sIT}")
    a.e("s_cbranch_scc1 K2_BAR")
    a.lab("K2_BODY")
    NT = 3
    for t in range(NT):
        for x in range(2):
            if "p" in X2:
                if 2 * t + x == 0:
                    a.e("s_setprio 2")
                if 2 * t + x == NT:
                    a.e("s_setprio 1")
            else:
                a.e(f"s_setprio {2 - x}")
            item(x, t)
    a.e(f"v_add_u32 v{vKa}, {KVT*NT}, v{vKa}")
    a.e(f"v_add_u32 v{vKb}, {KVT*NT}, v{vKb}")
    a.e(f"v_add_u32 v{vV}, {KVT*NT}, v{vV}")
    a.e(f"s_add_u32 s{sIT}, s{sIT}, 1")
    a.e(f"s_cmp_lt_u32 s{sIT}, 10")
    a.e("s_cbranch_scc1 K2_LOOP")
    item(0, 0, last=True)
    item(1, 0, last=True)
    stamp(a, 3)
    a.e("s_nop 1")
    if BUNCH:
        a.e(f"v_mfma_f32_32x32x16_bf16 {vr(O[1],16)}, {vr(V0,4)}, {vr(PP[1],4)}, {vr(O[1],16)}")
        a.e(f"v_mfma_f32_32x32x16_bf16 {vr(O[1],16)}, {vr(V1,4)}, {vr(PP[1]+4,4)}, {vr(O[1],16)}")
    else:
        a.e(f"v_mfma_f32_32x32x16_bf16 {vr(O[1],16)}, {vr(V1,4)}, {vr(P1,4)}, {vr(O[1],16)}")
    a.e(f"s_and_b32 s{t2}, s{sW}, 3")
    a.e(f"s_lshl_b32 s{t2}, s{t2}, 12")
    a.e(f"s_add_u32 s{t2}, s{t2}, 53248")
    a.e(f"s_mul_i32 s{t0}, s{sG}, {RG}")
    a.e(f"s_add_u32 s{t0}, s{t0}, s{t2}")
    a.e(f"s_xor_b32 s{t1}, s{sG}, 1")
    a.e(f"s_mul_i32 s{t1}, s{t1}, {RG}")
    a.e(f"s_add_u32 s{t1}, s{t1}, s{t2}")
    a.e(f"v_add_u32 v{vT}, s{t0}, v{vL16}")
    a.e(f"v_add_u32 v{vT+1}, s{t1}, v{vL16}")
    a.e(f"s_add_u32 s{sQT}, s{sQT}, s{sG}")
    a.e(f"s_cmp_eq_u32 s{sG}, 1")
    a.e("s_cbranch_scc1 K2_X1")
    a.e("s_nop 3")
    for q in range(4):
        a.e(f"ds_write_b128 v{vT}, {vr(O[1]+4*q,4)} offset:{1024*q}")
    a.e("s_branch K2_X2")
    a.lab("K2_X1")
    for q in range(4):
        a.e(f"ds_write_b128 v{vT}, {vr(O[0]+4*q,4)} offset:{1024*q}")
    a.e("s_nop 1")
    for i in range(16):
        a.e(f"v_mov_b32 v{O[0]+i}, v{O[1]+i}")
    for i in range(4):
        a.e(f"v_mov_b32 v{QA[0]+i}, v{QA[1]+i}")
    for i in range(2):
        a.e(f"v_mov_b32 v{QB[0]+i}, v{QB[1]+i}")
    a.lab("K2_X2")
    OO = O[0]
    sS0, sS1 = 34, 35
    a.e(f"s_lshr_b32 s{t0}, s{sH}, 1")
    a.e(f"s_mul_i32 s{t0}, s{t0}, 5")
    a.e(f"s_and_b32 s{t1}, s{sH}, 1")
    a.e(f"s_lshl_b32 s{t2}, s{t1}, 1")
    a.e(f"s_add_u32 s{t2}, s{t2}, s{t0}")
    a.e(f"s_lshl_b32 s{t2}, s{t2}, 15")
    a.e(f"s_add_u32 s{sS0}, s{t2}, {hx(AB_OFF)}")
    a.e(f"s_add_u32 s{t0}, s{t0}, 4")
    a.e(f"s_lshl_b32 s{t0}, s{t0}, 15")
    a.e(f"s_lshl_b32 s{t1}, s{t1}, 3")
    a.e(f"s_add_u32 s{t0}, s{t0}, s{t1}")
    a.e(f"s_add_u32 s{sS1}, s{t0}, {hx(AB_OFF)}")
    a.e(f"s_lshl_b32 s{t3}, s{sQT}, 9")
    vSA0, vSA1 = 56, 57
    a.e(f"v_and_b32 v{vT+2}, 31, v{vLANE}")
    a.e(f"v_lshlrev_b32 v{vT+2}, 4, v{vT+2}")
    a.e(f"v_add_u32 v{vT+2}, s{t3}, v{vT+2}")
    a.e(f"v_lshrrev_b32 v{vT+3}, 5, v{vLANE}")
    a.e(f"v_lshl_add_u32 v{vSA0}, v{vT+3}, 15, v{vT+2}")
    a.e(f"v_lshl_add_u32 v{vSA1}, v{vT+3}, 30, v{vT+2}")
    a.e("s_waitcnt lgkmcnt(0)")
    a.e("s_barrier")
    for q in range(4):
        a.e(f"ds_read_b128 {vr(S[0]+4*q,4)}, v{vT+1} offset:{1024*q}")
    a.e(f"v_mov_b32 v{vT+3}, {hx(f32(2.0**-60))}")
    a.e(f"v_mov_b32 v{vT+4}, {hx(f32(2.0**100))}")
    a.e(f"v_mov_b32 v{vT+5}, {hx(f32(2.0**120))}")
    a.e("s_waitcnt lgkmcnt(0)")
    for i in range(13):
        a.e(f"v_add_f32 v{OO+i}, v{OO+i}, v{S[0]+i}")
    a.e(f"v_max3_f32 v{vT+1}, abs(v{OO}), abs(v{OO+1}), abs(v{OO+2})")
    for i in range(3, 11, 2):
        a.e(f"v_max3_f32 v{vT+1}, abs(v{OO+i}), abs(v{OO+i+1}), v{vT+1}")
    a.e(f"v_max_f32 v{vT+1}, abs(v{OO+11}), v{vT+1}")
    a.e(f"v_add_f32 v{vT+2}, v{OO}, v{OO+1}")
    for i in range(2, 12):
        a.e(f"v_add_f32 v{vT+2}, v{vT+2}, v{OO+i}")
    a.e(f"v_cmp_gt_f32 {sr(t0,2)}, v{OO+12}, v{vT+3}")
    a.e(f"v_cmp_lt_f32 {sr(t2,2)}, v{OO+12}, v{vT+4}")
    a.e(f"v_cmp_lt_f32 vcc, v{vT+1}, v{vT+5}")
    a.e("s_nop 1")
    a.e(f"s_and_b64 {sr(t0,2)}, {sr(t0,2)}, {sr(t2,2)}")
    a.e(f"s_and_b64 {sr(t0,2)}, {sr(t0,2)}, vcc")
    a.e(f"v_cmp_o_f32 vcc, v{vT+2}, v{vT+2}")
    a.e("s_nop 1")
    a.e(f"s_and_b64 {sr(t0,2)}, {sr(t0,2)}, vcc")
    a.e(f"s_cmp_eq_u64 {sr(t0,2)}, -1")
    a.e("s_cbranch_scc0 K2_SLOW")
    a.lab("K2_FIN")
    a.e(f"v_rcp_f32 v{vT}, v{OO+12}")
    a.e("s_nop 0")
    for i in range(12):
        a.e(f"v_mul_f32 v{OO+i}, v{OO+i}, v{vT}")
    for i in range(6):
        a.e(f"v_cvt_pk_bf16_f32 v{OO+i}, v{OO+2*i}, v{OO+2*i+1}")
    sc = " sc1" if FUSE else ""
    a.e(f"buffer_store_dwordx4 {vr(OO,4)}, v{vSA0}, {sr(sWS,4)}, s{sS0} offen{sc}")
    a.e(f"buffer_store_dwordx2 {vr(OO+4,2)}, v{vSA1}, {sr(sWS,4)}, s{sS1} offen{sc}")
    if FUSE:
        a.e("s_waitcnt vmcnt(0)")
        a.e("s_barrier")
    k2flush()
    a.lab("K2_END")
    a.e("s_endpgm")
    a.lab("K2_BAR")
    a.e("s_barrier")
    stamp(a, 2)
    a.e("s_branch K2_BODY")
    a.lab("K2_SLOW")
    vM = 58
    Sc = S[0]
    for ps in range(2):
        if ps == 0:
            a.e(f"v_mov_b32 v{vM}, 0xff800000")
        else:
            for i in range(16):
                a.e(f"v_mov_b32 v{OO+i}, 0")
        a.e(f"s_mov_b32 s{sOFF}, 0")
        a.lab(f"K2_SL{ps}")
        a.e(f"buffer_load_dwordx4 {vr(KA,4)}, v{vKa0}, {sr(sKV,4)}, s{sOFF} offen")
        a.e(f"buffer_load_dwordx2 {vr(KB,2)}, v{vKb0}, {sr(sKV,4)}, s{sOFF} offen")
        if ps == 1:
            a.e(f"buffer_load_dwordx4 {vr(V0,4)}, v{vV0}, {sr(sKV,4)}, s{sOFF} offen")
            a.e(f"buffer_load_dwordx4 {vr(V1,4)}, v{vV0}, {sr(sKV,4)}, s{sOFF} offen offset:{2*VP}")
        a.e("s_waitcnt vmcnt(0)")
        a.e(f"v_mfma_f32_32x32x16_bf16 {vr(Sc,16)}, {vr(KA,4)}, {vr(QA[0],4)}, 0")
        a.e(f"v_mfma_f32_32x32x8_bf16 {vr(Sc,16)}, {vr(KB,2)}, {vr(QB[0],2)}, {vr(Sc,16)}")
        a.e("s_nop 15")
        a.e("s_nop 3")
        if ps == 0:
            for i in range(0, 16, 2):
                a.e(f"v_max3_f32 v{vM}, v{Sc+i}, v{Sc+i+1}, v{vM}")
        else:
            for i in range(16):
                a.e(f"v_sub_f32 v{Sc+i}, v{Sc+i}, v{vM}")
            for i in range(16):
                a.e(f"v_exp_f32 v{Sc+i}, v{Sc+i}")
            a.e("s_nop 0")
            for i in range(8):
                a.e(f"v_cvt_pk_bf16_f32 v{P0+i}, v{Sc+2*i}, v{Sc+2*i+1}")
            a.e("s_nop 1")
            a.e(f"v_mfma_f32_32x32x16_bf16 {vr(OO,16)}, {vr(V0,4)}, {vr(P0,4)}, {vr(OO,16)}")
            a.e(f"v_mfma_f32_32x32x16_bf16 {vr(OO,16)}, {vr(V1,4)}, {vr(P1,4)}, {vr(OO,16)}")
            a.e("s_nop 7")
        a.e(f"s_add_u32 s{sOFF}, s{sOFF}, {KVT}")
        a.e(f"s_cmp_lt_u32 s{sOFF}, {KVH}")
        a.e(f"s_cbranch_scc1 K2_SL{ps}")
        if ps == 0:
            a.e(f"v_mov_b32 v{vT+4}, v{vM}")
            a.e("s_nop 1")
            a.e(f"v_permlane32_swap_b32 v{vM}, v{vT+4}")
            a.e(f"v_max_f32 v{vM}, v{vM}, v{vT+4}")
    a.e("s_nop 15")
    a.e("s_nop 3")
    a.e("s_branch K2_FIN")
    return name, NV, 102 if DIAG else 64, (256, 768, K2_LDS)


K3_LDS = 102400


def gen_k3(a):
    name = "k3_out_kernel"
    kernel_header(a, name)
    sA, sWT, sY, sO = 12, 16, 20, 24
    sW, sRB, sCB, sOW, sM = 32, 33, 34, 35, 36
    t0, t1, t2, t3 = 38, 39, 40, 41
    vLANE, vOA, vOW, vYO, vOO, vRD = 1, 2, 3, 4, 5, 6
    vT = 8
    ACC = 12
    FB = 32
    FA = 72
    NV = 152
    k3flush = lambda: (stamp(a, 4), stamp_flush(a, 2, 8, sW, "s6", "s7", 8, 2))

    a.e("s_cmp_ge_u32 s2, 256")
    a.e("s_cbranch_scc1 K3_END")
    stamp(a, 0)
    a.e("s_load_dwordx2 s[4:5], s[0:1], 64")
    a.e("s_load_dwordx2 s[6:7], s[0:1], 80")
    a.e(f"v_and_b32 v{vLANE}, 63, v0")
    a.e(f"v_lshrrev_b32 v{vT}, 6, v0")
    a.e(f"s_and_b32 s{t0}, s2, 7")
    a.e(f"v_readfirstlane_b32 s{sW}, v{vT}")
    a.e(f"s_lshr_b32 s{t1}, s2, 3")
    a.e(f"s_lshl_b32 s{t0}, s{t0}, 2")
    a.e(f"s_and_b32 s{t2}, s{t1}, 3")
    a.e(f"s_add_u32 s{sRB}, s{t0}, s{t2}")
    a.e(f"s_lshr_b32 s{sCB}, s{t1}, 2")
    a.e(f"v_and_b32 v{vT}, 15, v{vLANE}")
    a.e(f"v_lshrrev_b32 v{vT+1}, 4, v{vLANE}")
    a.e(f"s_cmp_ge_u32 s{sW}, 4")
    a.e("s_cbranch_scc1 K3_COMP")
    a.e(f"s_mul_i32 s{t0}, s{sCB}, 80")
    a.e(f"v_add_u32 v{vOW}, s{t0}, v{vT}")
    a.e(f"v_lshlrev_b32 v{vOW}, 4, v{vOW}")
    a.e(f"v_mul_u32_u24 v{vT+2}, 10240, v{vT+1}")
    a.e(f"v_add_u32 v{vOW}, v{vOW}, v{vT+2}")
    a.e(f"s_mul_i32 s{sOW}, s{sW}, 40960")
    a.e(f"s_mul_i32 s{sM}, s{sW}, 5120")
    a.e("s_waitcnt lgkmcnt(0)")
    stamp(a, 5)
    srd_off(a, sWT, "s6", "s7", WT_OFF, 80 * 10240)
    for r in range(5):
        for q in range(5):
            a.e(f"s_add_u32 m0, s{sM}, {r*20480 + q*768}")
            a.e("s_nop 0")
            a.e(f"buffer_load_dwordx4 v{vOW}, {sr(sWT,4)}, s{sOW} offen offset:{256*q} lds")
        a.e(f"s_add_u32 s{sOW}, s{sOW}, {4*40960}")
        if r >= 2:
            a.e(f"s_waitcnt vmcnt(10)")
            a.e("s_barrier")
    a.e(f"s_waitcnt vmcnt(5)")
    a.e("s_barrier")
    a.e(f"s_waitcnt vmcnt(0)")
    a.e("s_barrier")
    if DIAG:
        stamp(a, 1); stamp(a, 2); stamp(a, 3)
        k3flush()
    a.e("s_endpgm")
    a.lab("K3_COMP")
    a.e(f"s_sub_u32 s{t3}, s{sW}, 4")
    a.e(f"s_lshl_b32 s{t0}, s{sRB}, 6")
    a.e(f"s_lshl_b32 s{t1}, s{t3}, 4")
    a.e(f"s_add_u32 s{t0}, s{t0}, s{t1}")
    a.e(f"v_add_u32 v{vT+2}, s{t0}, v{vT}")
    a.e(f"v_lshlrev_b32 v{vOA}, 4, v{vT+2}")
    a.e(f"v_lshl_add_u32 v{vOA}, v{vT+1}, 15, v{vOA}")
    a.e(f"s_lshl_b32 s{t0}, s{sRB}, 3")
    a.e(f"s_add_u32 s{t0}, s{t0}, s{sCB}")
    a.e(f"s_mul_i32 s{t0}, s{t0}, 20480")
    a.e(f"s_mul_i32 s{t1}, s{t3}, 5120")
    a.e(f"s_add_u32 s{t0}, s{t0}, s{t1}")
    a.e(f"v_lshlrev_b32 v{vRD}, 4, v{vLANE}")
    a.e(f"v_add_u32 v{vYO}, s{t0}, v{vRD}")
    a.e(f"s_mul_i32 s{t0}, s{sCB}, 160")
    a.e(f"v_mul_u32_u24 v{vOO}, 1280, v{vT+2}")
    a.e(f"v_lshl_add_u32 v{vOO}, v{vT+1}, 3, v{vOO}")
    a.e(f"v_add_u32 v{vOO}, s{t0}, v{vOO}")
    a.e("s_waitcnt lgkmcnt(0)")
    stamp(a, 5)
    srd_off(a, sA, "s6", "s7", AB_OFF, 80 * 32768)
    srd_off(a, sY, "s6", "s7", Y_OFF, Y_SIZE)
    srd(a, sO, "s4", "s5", 2048 * 640 * 2)
    a.e(f"s_mov_b32 s{t0}, 0")
    a.e(f"s_movk_i32 s{t1}, 4096")
    def ldA(r):
        for ks in range(4 * r, 4 * r + 4):
            a.e(f"buffer_load_dwordx4 {vr(FA+4*ks,4)}, v{vOA}, {sr(sA,4)}, s{t0} offen")
            a.e(f"s_add_u32 s{t0}, s{t0}, {4*32768}")

    ldA(0)
    for t in range(5):
        so, off = ("0", 1024 * t) if t < 4 else (f"s{t1}", 0)
        a.e(f"buffer_load_dwordx4 {vr(ACC+4*t,4)}, v{vYO}, {sr(sY,4)}, {so} offen offset:{off}")
    ldA(1)
    ldA(2)
    a.e(f"v_add_u32 v{vT}, 51200, v{vRD}")

    def rdB(ks):
        base, off = (vRD, ks * 5120) if ks < 10 else (vT, (ks - 10) * 5120)
        return [f"ds_read_b128 {vr(FB+20*(ks&1)+4*t,4)}, v{base} offset:{off+1024*t}" for t in range(5)]

    for r in range(5):
        a.e("s_barrier")
        if r == 0:
            stamp(a, 1)
        for ins in rdB(4 * r):
            a.e(ins)
        if r < 2:
            ldA(r + 3)
        a.e(f"s_waitcnt vmcnt({[12, 12, 8, 4, 0][r]})")
        for k in range(4):
            ks = 4 * r + k
            if k < 3:
                for ins in rdB(ks + 1):
                    a.e(ins)
                a.e("s_waitcnt lgkmcnt(5)")
            else:
                a.e("s_waitcnt lgkmcnt(0)")
            for t in range(5):
                a.e(f"v_mfma_f32_16x16x32_bf16 {vr(ACC+4*t,4)}, {vr(FB+20*(ks&1)+4*t,4)}, {vr(FA+4*ks,4)}, {vr(ACC+4*t,4)}")
    stamp(a, 2)
    stamp(a, 3)
    a.e("s_nop 7")
    for t in range(5):
        A = ACC + 4 * t
        a.e(f"v_cvt_pk_bf16_f32 v{A}, v{A}, v{A+1}")
        a.e(f"v_cvt_pk_bf16_f32 v{A+1}, v{A+2}, v{A+3}")
        a.e(f"buffer_store_dwordx2 {vr(A,2)}, v{vOO}, {sr(sO,4)}, 0 offen offset:{32*t}")
    k3flush()
    a.lab("K3_END")
    a.e("s_endpgm")
    return name, NV, 102 if DIAG else 48, (256, 512, K3_LDS)


HEADER = """; Kernarg layout for this problem (88 bytes, ptrs only, base s[0:1]):
"""


def main(out_path):
    a = Asm()
    ks = []
    gens = (gen_k1, gen_k2, gen_k3) if "u" in os.environ.get("K2X", "") else (gen_k1, gen_k2)
    for g in gens:
        ks.append(g(a))
    s = HEADER
    for name, nv, ns, (gx, bx, lds) in ks:
        s += f"; @launch kernel={name} grid=({gx},1,1) block=({bx},1,1) lds={lds}\n"
    s += '.amdgcn_target "amdgcn-amd-amdhsa--gfx950"\n.text\n'
    s += a.text()
    s += "CODE_END:\n    s_endpgm\n"
    s += '.section .rodata,"a"\n'
    for name, nv, ns, _ in ks:
        s += kd(name, nv, ns)
    open(out_path, "w").write(s)


if __name__ == "__main__":
    main(sys.argv[1] if len(sys.argv) > 1 else f"cdna_kernels/{NAME}.s")
```

```python
import struct, math, sys

NAME = "parallel_sum__mha_block__dense_activation_gelu__prompt"

QB_OFF = 0
KV_OFF = 0x280000
KVT = 2624
KVH = 64 * KVT
VP = 336
AB_OFF = 0x7A0000
WT_OFF = 0x10E0000
assert KV_OFF + 32 * KVH == AB_OFF
FL_OFF = WT_OFF + 296 * 10240
FQ_REL = 1024
FH_REL = 9216
FL_SIZE = 12288
WS_END = FL_OFF + FL_SIZE
assert FL_OFF % 128 == 0
AB_SIZE = 296 * 32768
WT_SIZE = 296 * 10240
assert AB_OFF + AB_SIZE == WT_OFF


def f32(x):
    return struct.unpack("<I", struct.pack("<f", x))[0]


def hx(x):
    return "0x%08x" % (x & 0xFFFFFFFF)


class Asm:
    def __init__(self):
        self.lines = []

    def e(self, s):
        if s.startswith("s_cselect_b32"):
            ops = [x.strip() for x in s[len("s_cselect_b32"):].split(",")]

            def is_lit(x):
                try:
                    v = int(x, 0)
                except ValueError:
                    return False
                return not (-16 <= v <= 64)
            if is_lit(ops[1]) and is_lit(ops[2]):
                self.lines.append(f"    s_mov_b32 {ops[0]}, {ops[2]}")
                s = f"s_cselect_b32 {ops[0]}, {ops[1]}, {ops[0]}"
        self.lines.append("    " + s)

    def lab(self, s):
        self.lines.append(s + ":")

    def c(self, s):
        self.lines.append("    ; " + s)

    def raw(self, s):
        self.lines.append(s)

    def text(self):
        return "\n".join(self.lines) + "\n"


def vr(a, n):
    return f"v[{a}:{a+n-1}]" if n > 1 else f"v{a}"


def sr(a, n):
    return f"s[{a}:{a+n-1}]" if n > 1 else f"s{a}"


def kernel_header(a, name):
    a.raw(".p2align 8")
    a.raw(f".globl {name}")
    a.raw(f".type {name},@function")
    a.lab(name)


def kd(name, nv, ns):
    acc = (nv + 3) // 4 * 4
    return f""".p2align 6
.amdhsa_kernel {name}
  .amdhsa_next_free_vgpr {nv}
  .amdhsa_next_free_sgpr {ns}
  .amdhsa_accum_offset {acc}
  .amdhsa_group_segment_fixed_size 0
  .amdhsa_kernarg_size 88
  .amdhsa_user_sgpr_count 2
  .amdhsa_user_sgpr_kernarg_segment_ptr 1
  .amdhsa_system_sgpr_workgroup_id_x 1
.end_amdhsa_kernel
"""


def srd(a, d, lo, hi, size):
    a.e(f"s_mov_b32 s{d}, {lo}")
    a.e(f"s_mov_b32 s{d+1}, {hi}")
    a.e(f"s_mov_b32 s{d+2}, {hx(size)}")
    a.e(f"s_mov_b32 s{d+3}, 0x00020000")


def srd_off(a, d, lo, hi, off, size):
    a.e(f"s_add_u32 s{d}, {lo}, {hx(off)}")
    a.e(f"s_addc_u32 s{d+1}, {hi}, 0")
    a.e(f"s_mov_b32 s{d+2}, {hx(size)}")
    a.e(f"s_mov_b32 s{d+3}, 0x00020000")


def round_bf16_inplace(a, v, vtmp=None):
    a.e(f"v_cvt_pk_bf16_f32 v{v}, v{v}, v{v}")
    a.e(f"v_lshlrev_b32 v{v}, 16, v{v}")


OOB = 0x40000000


def code_prefetch(a, tag, start, end, sp, s_chunk, vlane, vtmp, vdst):
    a.e(f"s_getpc_b64 s[{sp}:{sp+1}]")
    a.lab(f"PCH_{tag}")
    a.e(f"s_sub_u32 s{sp}, s{sp}, PCH_{tag}-{start}")
    a.e(f"s_subb_u32 s{sp+1}, s{sp+1}, 0")
    a.e(f"s_lshl_b32 s{s_chunk}, s{s_chunk}, 13")
    a.e(f"v_lshlrev_b32 v{vtmp}, 7, v{vlane}")
    a.e(f"v_add_u32 v{vtmp}, s{s_chunk}, v{vtmp}")
    a.e(f"v_cmp_gt_u32 vcc, {end}-{start}, v{vtmp}")
    a.e(f"s_and_saveexec_b64 s[{sp+2}:{sp+3}], vcc")
    a.e(f"s_cbranch_execz PCS_{tag}")
    a.e(f"global_load_dword v{vdst}, v{vtmp}, s[{sp}:{sp+1}]")
    a.lab(f"PCS_{tag}")
    a.e(f"s_mov_b64 exec, s[{sp+2}:{sp+3}]")
import os
DIAG = int(os.environ.get("DIAG", "0"))
ONE = int(os.environ.get("ONE", "1"))
SC = " sc1" if ONE else ""
K1_SYN = 153600
POLL_MAX = 1 << 21
DIAG_OFF = 0x2000000
SD = 84


def stamp(a, i):
    if DIAG:
        a.e(f"s_memtime s[{SD+2*i}:{SD+2*i+1}]")
        if i == 0:
            a.e(f"s_memrealtime s[{SD+12}:{SD+13}]")
        if i == 4:
            a.e(f"s_memrealtime s[{SD+14}:{SD+15}]")


def stamp_flush(a, kidx, wpw, sW, ws_lo, ws_hi, n, vtmp):
    if not DIAG:
        return
    a.e("s_waitcnt lgkmcnt(0)")
    a.e(f"s_add_u32 s80, {ws_lo}, {hx(DIAG_OFF + kidx*4096*64)}")
    a.e(f"s_addc_u32 s81, {ws_hi}, 0")
    a.e(f"s_mov_b32 s82, {hx(4096*64)}")
    a.e("s_mov_b32 s83, 0x00020000")
    a.e(f"s_mul_i32 s100, s2, {wpw}")
    a.e(f"s_add_u32 s100, s100, s{sW}")
    a.e("s_lshl_b32 s100, s100, 6")
    a.e(f"v_mov_b32 v{vtmp}, 0")
    for i in range(n):
        a.e(f"v_mov_b32 v{vtmp+1}, s{SD+2*i}")
        a.e(f"buffer_store_dword v{vtmp+1}, v{vtmp}, s[80:83], s100 offen offset:{4*i}")

K1_BH = 8 * 1056
K1_SLOT = 16384 + 4 * K1_BH
K1_NS = 3
K1_SCR = K1_SLOT * K1_NS
K1_LDS = K1_SCR + 2048 + 256
QSCALE = math.log2(math.e) / math.sqrt(20.0)


def gen_k1(a):
    name = NAME + "_kernel" if ONE else "k1_gemm1_kernel"
    kernel_header(a, name)
    X = os.environ.get("K1X", "")
    sX, sB0, sB1, sWS, sT, sBI = 20, 24, 28, 32, 36, 40
    sW, sMH, sHALF, sRB, sCB, sNQ, sT0 = 44, 45, 46, 47, 48, 49, 50
    sOA, sOB0, sOB1 = 51, 52, 53
    sWA, sWB, sRD, sTS, sIT, sDA, sDB = 54, 55, 56, 57, 58, 59, 60
    t0, t1, t2, t3, t4, t5, t6, t7 = 62, 63, 64, 65, 66, 67, 68, 69
    sC1 = 70
    sTYP = 73
    sOA2, sOB0b, sOB1b = 76, 77, 78
    vLANE = 1
    vA0e, vA0o, vB0 = 2, 3, 4
    vAe, vAo, vB = 5, 6, 7
    vS = 8
    vSA = 12
    vONES = 20
    vCS = 24
    vU = 32
    FA = [40, 72]
    vT = 72
    ACC = 104
    NV = 168

    def acc(j, mt):
        return ACC + (j * 4 + mt) * 4

    def fa(s, mt):
        return FA[s] + mt * 4

    def fb(s, j):
        return FA[s] + 16 + j * 4

    def emit(lst):
        for ins in lst:
            a.e(ins)

    k1flush = lambda: (stamp(a, 4), stamp_flush(a, 0, 12, sW, "s18", "s19", 8, 2))

    def zpoll(tag, sD, vz, vd):
        srd(a, sD, "s10", "s11", 256)
        a.e(f"v_mov_b32 v{vz}, 0")
        a.e(f"s_mov_b32 s{t7}, 0")
        a.lab(f"ZP_{tag}")
        a.e(f"buffer_load_dword v{vd}, v{vz}, {sr(sD,4)}, 0 offen sc1")
        a.e(f"s_add_u32 s{t7}, s{t7}, 1")
        a.e("s_waitcnt vmcnt(0)")
        a.e(f"v_readfirstlane_b32 s{t6}, v{vd}")
        a.e(f"s_cmp_ge_u32 s{t7}, {POLL_MAX}")
        a.e(f"s_cbranch_scc1 ZD_{tag}")
        a.e(f"s_cmp_eq_u32 s{t6}, 0")
        a.e(f"s_cbranch_scc1 ZP_{tag}")
        a.lab(f"ZD_{tag}")

    def finish(kind):
        k1flush()
        if not ONE:
            a.e("s_endpgm")
            return
        if kind == "F":
            a.e("s_branch K1_SIGF")
        else:
            a.e("s_branch K1_SIGQ")

    def finalize(s1, s2, nm, rs):
        a.e(f"v_mul_f32 v{s1}, {hx(f32(1.0/640))}, v{s1}")
        a.e(f"v_mul_f32 v{s2}, {hx(f32(1.0/640))}, v{s2}")
        a.e(f"v_fma_f32 v{s2}, -v{s1}, v{s1}, v{s2}")
        a.e(f"v_max_f32 v{s2}, 0, v{s2}")
        round_bf16_inplace(a, s2)
        a.e(f"v_add_f32 v{s2}, {hx(f32(1e-5))}, v{s2}")
        round_bf16_inplace(a, s2)
        a.e(f"v_sqrt_f32 v{s2}, v{s2}")
        round_bf16_inplace(a, s1)
        round_bf16_inplace(a, s2)
        a.e(f"v_rcp_f32 v{rs}, v{s2}")
        a.e(f"v_sub_f32 v{nm}, 0, v{s1}")


    a.e("s_cmp_ge_u32 s2, 256")
    a.e("s_cbranch_scc1 K1_END")
    stamp(a, 0)
    a.e("s_load_dwordx4 s[4:7], s[0:1], 0")
    a.e("s_load_dwordx2 s[8:9], s[0:1], 16")
    a.e("s_load_dwordx4 s[12:15], s[0:1], 32")
    a.e("s_load_dwordx2 s[16:17], s[0:1], 48")
    a.e("s_load_dwordx2 s[18:19], s[0:1], 80")
    if ONE:
        a.e("s_load_dwordx2 s[10:11], s[0:1], 72")
    a.e(f"v_and_b32 v{vLANE}, 63, v0")
    a.e(f"v_lshrrev_b32 v{vT}, 6, v0")
    a.e(f"s_and_b32 s{t0}, s2, 7")
    a.e(f"v_readfirstlane_b32 s{sW}, v{vT}")
    a.e(f"s_lshr_b32 s{t1}, s2, 3")
    a.e(f"s_and_b32 s{t2}, s{t0}, 1")
    a.e(f"s_lshl_b32 s{t2}, s{t2}, 3")
    a.e(f"s_and_b32 s{t3}, s{t1}, 7")
    a.e(f"s_add_u32 s{sRB}, s{t2}, s{t3}")
    a.e(f"s_lshr_b32 s{t2}, s{t0}, 1")
    a.e(f"s_lshl_b32 s{t2}, s{t2}, 2")
    a.e(f"s_lshr_b32 s{t3}, s{t1}, 3")
    a.e(f"s_add_u32 s{sCB}, s{t2}, s{t3}")
    a.e(f"s_sub_u32 s{sCB}, 15, s{sCB}")
    a.e(f"s_cmp_eq_u32 s{sCB}, 15")
    a.e("s_cbranch_scc1 K1_TRANS")
    a.e(f"s_lshl_b32 s{sT0}, s{sCB}, 3")
    a.e(f"s_min_u32 s{sT0}, s{sT0}, 100")
    a.e(f"s_cmp_ge_u32 s{sW}, 4")
    a.e("s_cbranch_scc1 K1_COMP")
    lA = [2, 3]
    lQ = [4, 5]
    lF = [6, 7]
    lBI = 8
    a.e(f"s_lshl_b32 s{t0}, s{sRB}, 7")
    a.e(f"s_lshl_b32 s{t1}, s{sW}, 4")
    a.e(f"s_add_u32 s{t0}, s{t0}, s{t1}")
    a.e(f"v_lshrrev_b32 v{vT}, 3, v{vLANE}")
    a.e(f"v_add_u32 v{vT}, s{t0}, v{vT}")
    a.e(f"v_lshrrev_b32 v{vT+1}, 1, v{vT}")
    a.e(f"v_xor_b32 v{vT+1}, v{vT+1}, v{vLANE}")
    a.e(f"v_and_b32 v{vT+1}, 7, v{vT+1}")
    a.e(f"v_mul_u32_u24 v{vT}, 1280, v{vT}")
    a.e(f"v_lshl_add_u32 v{lA[0]}, v{vT+1}, 4, v{vT}")
    a.e(f"v_xor_b32 v{vT+1}, 4, v{vT+1}")
    a.e(f"v_lshl_add_u32 v{lA[1]}, v{vT+1}, 4, v{vT}")
    a.e(f"v_add_u32 v{lA[1]}, {8*1280}, v{lA[1]}")
    a.e(f"s_lshl_b32 s{sDA}, s{sW}, 11")
    a.e(f"s_and_b32 s{t0}, s{sW}, 1")
    a.e(f"s_lshl_b32 s{t0}, s{t0}, 1")
    a.e(f"s_lshr_b32 s{t1}, s{sW}, 1")
    a.e(f"s_lshl_b32 s{t1}, s{t1}, 3")
    a.e(f"s_or_b32 s{t0}, s{t0}, s{t1}")
    a.e(f"v_bfe_u32 v{vT}, v{vLANE}, 4, 1")
    a.e(f"v_lshlrev_b32 v{vT}, 2, v{vT}")
    a.e(f"v_lshrrev_b32 v{vT+1}, 5, v{vLANE}")
    a.e(f"v_lshl_or_b32 v{vT}, v{vT+1}, 4, v{vT}")
    a.e(f"v_or_b32 v{vT}, s{t0}, v{vT}")
    a.e(f"v_and_b32 v{vT+1}, 15, v{vLANE}")
    a.e(f"v_lshlrev_b32 v{vT+1}, 4, v{vT+1}")
    a.e(f"s_lshl_b32 s{t2}, s{sCB}, 8")
    a.e(f"s_lshl_b32 s{t3}, s{sT0}, 5")
    a.e(f"v_mul_u32_u24 v{lQ[0]}, 3840, v{vT}")
    a.e(f"v_add3_u32 v{lQ[0]}, v{lQ[0]}, v{vT+1}, s{t2}")
    a.e(f"v_add_u32 v{lQ[1]}, 3840, v{lQ[0]}")
    a.e(f"v_mul_u32_u24 v{lF[0]}, 3456, v{vT}")
    a.e(f"v_add3_u32 v{lF[0]}, v{lF[0]}, v{vT+1}, s{t3}")
    a.e(f"v_add_u32 v{lF[1]}, 3456, v{lF[0]}")
    a.e(f"s_mul_i32 s{sDB}, s{sW}, 2112")
    a.e(f"s_add_u32 s{sDB}, s{sDB}, 16384")
    a.e(f"s_mov_b32 s{sOA}, 0")
    a.e(f"s_mov_b32 s{sOA2}, {64*1280}")
    a.e(f"s_mov_b32 s{sOB0}, 0")
    a.e(f"s_mov_b32 s{sOB0b}, {32*3840}")
    a.e(f"s_mov_b32 s{sOB1}, 0")
    a.e(f"s_mov_b32 s{sOB1b}, {32*3456}")
    a.e(f"s_mov_b32 s{sWA}, s{sDA}")
    a.e(f"s_mov_b32 s{sWB}, s{sDB}")
    a.e("s_waitcnt lgkmcnt(0)")
    stamp(a, 5)
    srd(a, sX, "s4", "s5", 2048 * 640 * 2)
    srd(a, sB0, "s6", "s7", 640 * 1920 * 2)
    srd(a, sB1, "s12", "s13", 640 * 1728 * 2)

    lR0 = 10
    lR = 14
    lD = 20
    lS = 36
    lU = 40

    def stats_ops():
        va = []
        for r in range(16):
            src = lD + r
            lo, hi = lU + 2 * (r & 1), lU + 2 * (r & 1) + 1
            va.append(f"v_lshlrev_b32 v{lo}, 16, v{src}")
            va.append(f"v_and_b32 v{hi}, 0xffff0000, v{src}")
            va.append(f"v_add_f32 v{lS}, v{lS}, v{lo}")
            va.append(f"v_add_f32 v{lS+1}, v{lS+1}, v{hi}")
            va.append(f"v_fmac_f32 v{lS+2}, v{lo}, v{lo}")
            va.append(f"v_fmac_f32 v{lS+3}, v{hi}, v{hi}")
        return va

    def stats_reads():
        for i in range(4):
            a.e(f"v_add_u32 v{lR+i}, s{sRD}, v{lR0+i}")
        for i in range(4):
            a.e(f"ds_read_b128 {vr(lD+4*i,4)}, v{lR+i}")
        a.e(f"s_add_u32 s{sRD}, s{sRD}, {K1_SLOT}")
        a.e(f"s_cmp_eq_u32 s{sRD}, {K1_SCR}")
        a.e(f"s_cselect_b32 s{sRD}, 0, s{sRD}")

    def stage(with_stats=False, dma=True):
        spec = [(sWA, 0, lA, 1024, sX, sOA, 128),
                (sWA, 8192, lA, 1024, sX, sOA2, 128),
                (sWB, 0, lQ, 1056, sB0, sOB0, 64 * 3840),
                (sWB, 2 * K1_BH, lF, 1056, sB1, sOB1, 64 * 3456),
                (sWB, K1_BH, lQ, 1056, sB0, sOB0b, 64 * 3840),
                (sWB, 3 * K1_BH, lF, 1056, sB1, sOB1b, 64 * 3456)]
        va = stats_ops() if with_stats else []
        if with_stats:
            stats_reads()
        n = 0
        for (sD, dof, vO, d2, sR, sO, inc) in spec:
            for q in range(2):
                d = dof + q * d2
                if dma:
                    a.e(f"s_add_u32 m0, s{sD}, {d}" if d else f"s_mov_b32 m0, s{sD}")
                    a.e("s_nop 0")
                    a.e(f"buffer_load_dwordx4 v{vO[q]}, {sr(sR,4)}, s{sO} offen lds")
                n += 1
                if with_stats and n >= 2:
                    if n == 2:
                        a.e("s_waitcnt lgkmcnt(0)")
                    k = 9 if n < 12 else len(va)
                    for ins in va[:k]:
                        a.e(ins)
                    va = va[k:]
            if dma:
                a.e(f"s_add_u32 s{sO}, s{sO}, {inc}")
        if dma:
            a.e(f"s_add_u32 s{sWA}, s{sWA}, {K1_SLOT}")
            a.e(f"s_add_u32 s{sWB}, s{sWB}, {K1_SLOT}")
            a.e(f"s_cmp_ge_u32 s{sWA}, {K1_SCR}")
            a.e(f"s_cselect_b32 s{sWA}, s{sDA}, s{sWA}")
            a.e(f"s_cselect_b32 s{sWB}, s{sDB}, s{sWB}")

    stage()
    srd(a, sBI, "s14", "s15", 1728 * 2)
    a.e(f"v_lshlrev_b32 v{vT}, 2, v{vLANE}")
    a.e(f"buffer_load_dword v{lBI}, v{vT}, {sr(sBI,4)}, s{t3} offen")
    stage()
    stage()
    a.e(f"v_and_b32 v{vT+1}, 31, v{vLANE}")
    a.e(f"v_lshrrev_b32 v{vT+2}, 5, v{vLANE}")
    a.e(f"v_lshlrev_b32 v{vT+2}, 2, v{vT+2}")
    a.e(f"v_bfe_u32 v{vT+3}, v{vLANE}, 1, 3")
    a.e(f"v_xor_b32 v{vT+2}, v{vT+2}, v{vT+3}")
    a.e(f"v_lshlrev_b32 v{vT+2}, 4, v{vT+2}")
    a.e(f"v_lshl_add_u32 v{vT+2}, v{vT+1}, 7, v{vT+2}")
    a.e(f"s_lshl_b32 s{t0}, s{sW}, 12")
    a.e(f"v_add_u32 v{lR0}, s{t0}, v{vT+2}")
    for i in range(1, 4):
        a.e(f"v_xor_b32 v{lR0+i}, {16*i}, v{lR0}")
    for i in range(4):
        a.e(f"v_mov_b32 v{lS+i}, 0")
    a.e(f"s_mov_b32 s{sRD}, 0")
    a.e(f"s_mov_b32 s{sIT}, 0")
    a.e("s_waitcnt vmcnt(24)")
    a.e(f"v_add_u32 v{vT}, {K1_SCR+2048}, v{vT}")
    a.e(f"ds_write_b32 v{vT}, v{lBI}")
    if ONE:
        a.e(f"v_mov_b32 v{vT+4}, {K1_SYN}")
        a.e(f"ds_write_b128 v{vT+4}, {vr(lS,4)}")
    a.e("s_barrier")
    stamp(a, 1)
    stage(True, False)
    a.lab("K1_LD")
    a.e("s_waitcnt vmcnt(12)")
    a.e("s_barrier")
    stage(True, True)
    a.e(f"s_add_u32 s{sIT}, s{sIT}, 1")
    a.e(f"s_cmp_lt_u32 s{sIT}, 7")
    a.e("s_cbranch_scc1 K1_LD")
    a.e("s_waitcnt vmcnt(12)")
    a.e("s_barrier")
    a.e(f"s_mov_b32 s{sIT}, 0")
    a.lab("K1_LD2")
    stage(True, False)
    a.e(f"s_cmp_eq_u32 s{sIT}, 1")
    a.e("s_cbranch_scc1 K1_LD3")
    if ONE:
        a.e(f"s_cmp_lg_u32 s{sW}, 0")
        a.e("s_cbranch_scc1 ZD_ld")
        zpoll("ld", sBI, vT + 4, vT + 5)
    a.e("s_waitcnt vmcnt(0)")
    a.e("s_barrier")
    a.e(f"s_mov_b32 s{sIT}, 1")
    a.e("s_branch K1_LD2")
    a.lab("K1_LD3")
    a.e(f"v_add_f32 v{lS}, v{lS}, v{lS+1}")
    a.e(f"v_add_f32 v{lS+1}, v{lS+2}, v{lS+3}")
    a.e(f"v_mov_b32 v{lU}, v{lS}")
    a.e(f"v_mov_b32 v{lU+1}, v{lS+1}")
    a.e("s_nop 1")
    a.e(f"v_permlane32_swap_b32 v{lS}, v{lU}")
    a.e(f"v_permlane32_swap_b32 v{lS+1}, v{lU+1}")
    a.e(f"v_add_f32 v{lS}, v{lS}, v{lU}")
    a.e(f"v_add_f32 v{lS+1}, v{lS+1}, v{lU+1}")
    finalize(lS, lS + 1, lS + 2, lS + 3)
    a.e(f"v_lshlrev_b32 v{vT+1}, 2, v{vT+1}")
    a.e(f"s_lshl_b32 s{t0}, s{sW}, 7")
    a.e(f"s_add_u32 s{t0}, s{t0}, {K1_SCR}")
    a.e(f"v_add_u32 v{vT+1}, s{t0}, v{vT+1}")
    a.e(f"ds_write_b32 v{vT+1}, v{lS+2}")
    a.e(f"ds_write_b32 v{vT+1}, v{lS+3} offset:512")
    a.e("s_waitcnt lgkmcnt(0)")
    a.e("s_barrier")
    if DIAG:
        stamp(a, 2); stamp(a, 3)
        k1flush()
    if ONE:
        a.e("s_barrier")
        a.e("s_branch P2_ENTRY")
    else:
        a.e("s_endpgm")
    a.lab("K1_COMP")
    a.e(f"s_and_b32 s{sMH}, s{sW}, 1")
    a.e(f"s_bfe_u32 s{sNQ}, s{sW}, 0x10001")
    a.e(f"s_lshr_b32 s{sHALF}, s{sW}, 3")
    if "C" in X:
        NPF = int(os.environ.get("NPF", "8"))
        a.e(f"s_cmp_ge_u32 s2, {NPF}")
        a.e("s_cbranch_scc1 K1_NOCP")
        a.e(f"s_cmp_ge_u32 s{sW}, 8")
        a.e("s_cbranch_scc1 K1_NOCP")
        a.e(f"s_and_b32 s{t0}, s{sW}, 3")
        code_prefetch(a, "k1", "k1_gemm1_kernel", "CODE_END", 64, t0, vLANE, vT, 36)
        a.lab("K1_NOCP")
    if "P" in X:
        vPF = 36
        a.e(f"s_and_b32 s{t0}, s{sW}, 3")
        a.e(f"s_lshl_b32 s{t0}, s{t0}, 6")
        a.e(f"v_add_u32 v{vT}, s{t0}, v{vLANE}")
        a.e(f"s_cmp_eq_u32 s{sHALF}, 1")
        a.e("s_cbranch_scc1 K1_PFB")
        a.e(f"s_and_b32 s{t1}, s{sCB}, 3")
        a.e(f"s_lshl_b32 s{t1}, s{t1}, 5")
        a.e(f"s_lshl_b32 s{t2}, s{sRB}, 7")
        a.e(f"s_add_u32 s{t1}, s{t1}, s{t2}")
        a.e(f"v_lshrrev_b32 v{vT+1}, 3, v{vT}")
        a.e(f"v_add_u32 v{vT+1}, s{t1}, v{vT+1}")
        a.e(f"v_mul_u32_u24 v{vT+1}, 1280, v{vT+1}")
        a.e(f"v_and_b32 v{vT+2}, 7, v{vT}")
        a.e(f"v_lshl_add_u32 v{vT+1}, v{vT+2}, 7, v{vT+1}")
        a.e("s_waitcnt lgkmcnt(0)")
        srd(a, sX, "s4", "s5", 2048 * 640 * 2)
        a.e(f"buffer_load_dword v{vPF}, v{vT+1}, {sr(sX,4)}, 0 offen offset:256")
        a.e("s_branch K1_PFD")
        a.lab("K1_PFB")
        a.e(f"s_and_b32 s{t1}, s{sRB}, 7")
        a.e(f"s_lshl_b32 s{t1}, s{t1}, 6")
        a.e(f"s_add_u32 s{t1}, s{t1}, 128")
        a.e(f"v_lshrrev_b32 v{vT+1}, 2, v{vT}")
        a.e(f"v_add_u32 v{vT+1}, s{t1}, v{vT+1}")
        a.e(f"v_and_b32 v{vT+2}, 1, v{vT}")
        a.e(f"v_lshlrev_b32 v{vT+2}, 7, v{vT+2}")
        a.e(f"s_lshl_b32 s{t2}, s{sCB}, 8")
        a.e(f"s_lshl_b32 s{t3}, s{sT0}, 5")
        a.e(f"v_mul_u32_u24 v{vT+3}, 3840, v{vT+1}")
        a.e(f"v_add3_u32 v{vT+3}, v{vT+3}, v{vT+2}, s{t2}")
        a.e(f"v_mul_u32_u24 v{vT+4}, 3456, v{vT+1}")
        a.e(f"v_add3_u32 v{vT+4}, v{vT+4}, v{vT+2}, s{t3}")
        a.e("s_waitcnt lgkmcnt(0)")
        srd(a, sB0, "s6", "s7", 640 * 1920 * 2)
        srd(a, sB1, "s12", "s13", 640 * 1728 * 2)
        a.e("s_mov_b32 exec_lo, 0x33333333")
        a.e("s_mov_b32 exec_hi, 0x33333333")
        a.e(f"buffer_load_dword v{vPF}, v{vT+3}, {sr(sB0,4)}, 0 offen")
        a.e("s_not_b64 exec, exec")
        a.e(f"buffer_load_dword v{vPF+1}, v{vT+4}, {sr(sB1,4)}, 0 offen")
        a.e("s_mov_b64 exec, -1")
        a.lab("K1_PFD")
    a.e(f"s_lshl_b32 s{t0}, s{sMH}, 13")
    a.e(f"v_and_b32 v{vT+4}, 15, v{vLANE}")
    a.e(f"v_lshrrev_b32 v{vT}, 4, v{vLANE}")
    a.e(f"v_lshrrev_b32 v{vT+1}, 1, v{vT+4}")
    a.e(f"v_xor_b32 v{vT+1}, v{vT+1}, v{vT}")
    a.e(f"v_lshlrev_b32 v{vT+1}, 4, v{vT+1}")
    a.e(f"v_lshl_add_u32 v{vA0e}, v{vT+4}, 7, v{vT+1}")
    a.e(f"v_add_u32 v{vA0e}, s{t0}, v{vA0e}")
    a.e(f"v_xor_b32 v{vA0o}, 64, v{vA0e}")
    a.e(f"v_bfe_u32 v{vT+1}, v{vLANE}, 2, 3")
    a.e(f"v_mul_u32_u24 v{vT+1}, 1056, v{vT+1}")
    a.e(f"v_lshrrev_b32 v{vT+2}, 5, v{vLANE}")
    a.e(f"v_lshl_add_u32 v{vT+1}, v{vT+2}, 9, v{vT+1}")
    a.e(f"v_and_b32 v{vT+2}, 3, v{vLANE}")
    a.e(f"v_lshl_add_u32 v{vT+1}, v{vT+2}, 3, v{vT+1}")
    a.e(f"s_mul_i32 s{t0}, s{sHALF}, {2*K1_BH}")
    a.e(f"s_lshl_b32 s{t1}, s{sNQ}, 7")
    a.e(f"s_add_u32 s{t0}, s{t0}, s{t1}")
    a.e(f"s_add_u32 s{t0}, s{t0}, 16384")
    a.e(f"v_add_u32 v{vB0}, s{t0}, v{vT+1}")
    for i in range(64):
        a.e(f"v_mov_b32 v{ACC+i}, 0")
    for i in range(4):
        a.e(f"v_mov_b32 v{vS+i}, 0")
        a.e(f"v_mov_b32 v{vONES+i}, 0x3f803f80")
    for i in range(8):
        a.e(f"v_mov_b32 v{vCS+i}, 0")
        a.e(f"v_mov_b32 v{vSA+i}, {hx(OOB)}")
    a.e(f"s_mov_b32 s{sRD}, 0")
    a.e(f"s_mov_b32 s{sIT}, 0")
    a.e(f"s_mov_b32 s{sTS}, 0")
    a.e(f"s_cmp_ge_u32 s{sCB}, 10")
    a.e(f"s_cselect_b32 s{sTYP}, 1, 0")
    a.e(f"s_cmp_eq_u32 s{sHALF}, 1")
    a.e(f"s_cselect_b32 s{sTYP}, 2, s{sTYP}")
    a.e(f"s_lshl_b32 s{t6}, s{sRB}, 2")
    a.e(f"s_lshl_b32 s{t7}, s{sMH}, 1")
    a.e(f"s_add_u32 s{t6}, s{t6}, s{t7}")
    a.e(f"s_cmp_eq_u32 s{sTYP}, 1")
    a.e("s_cbranch_scc1 K1_PRE_V")
    a.e(f"s_cmp_eq_u32 s{sTYP}, 2")
    a.e("s_cbranch_scc1 K1_PRE_F")
    a.e(f"s_cmp_lt_u32 s{sCB}, 5")
    a.e(f"s_cselect_b32 s{t1}, 81920, {KVH}")
    a.e(f"s_cselect_b32 s{sTS}, 1280, {KVT}")
    a.e(f"s_cselect_b32 s{t3}, {hx(QB_OFF)}, {hx(KV_OFF)}")
    a.e(f"s_cselect_b32 s{t4}, 16, 8")
    a.e(f"s_cselect_b64 vcc, -1, 0")
    a.e(f"s_cselect_b32 s{t5}, 0, 5")
    a.e(f"s_sub_u32 s{t5}, s{sCB}, s{t5}")
    a.e(f"s_lshl_b32 s{t5}, s{t5}, 5")
    a.e(f"s_lshl_b32 s{t7}, s{sNQ}, 4")
    a.e(f"s_add_u32 s{t5}, s{t5}, s{t7}")
    a.e(f"s_mul_i32 s{t6}, s{t6}, s{sTS}")
    a.e(f"s_add_u32 s{t3}, s{t3}, s{t6}")
    r0, rA0, rB0, rA1, rB1, vG = vT + 5, vT + 6, vT + 7, vT + 8, vT + 9, vT + 10
    a.e(f"v_and_b32 v{vT+2}, 7, v{vLANE}")
    a.e(f"v_and_b32 v{vT+3}, 8, v{vLANE}")
    a.e(f"v_lshl_add_u32 v{vT+2}, v{vT+3}, 1, v{vT+2}")
    a.e(f"v_cndmask_b32 v{r0}, v{vT+2}, v{vT+4}, vcc")
    a.e(f"v_lshlrev_b32 v{rA0}, 4, v{r0}")
    a.e(f"v_add_u32 v{rA0}, s{t3}, v{rA0}")
    a.e(f"v_lshlrev_b32 v{rB0}, 3, v{r0}")
    a.e(f"s_add_u32 s{t7}, s{t3}, 1024")
    a.e(f"v_add_u32 v{rB0}, s{t7}, v{rB0}")
    a.e(f"s_lshl_b32 s{t7}, s{t4}, 4")
    a.e(f"v_add_u32 v{rA1}, s{t7}, v{rA0}")
    a.e(f"s_lshl_b32 s{t7}, s{t4}, 3")
    a.e(f"v_add_u32 v{rB1}, s{t7}, v{rB0}")
    a.e(f"v_add_u32 v{vG}, s{t5}, v{vT}")
    for j in range(4):
        tt, h, dg, u = vT + 11, vT + 12, vT + 13, vT + 14
        a.e(f"v_add_u32 v{tt}, {4*j}, v{vG}")
        a.e(f"v_mul_u32_u24 v{h}, 205, v{tt}")
        a.e(f"v_lshrrev_b32 v{h}, 10, v{h}")
        a.e(f"v_mad_i32_i24 v{dg}, v{h}, -5, v{tt}")
        a.e(f"v_mul_u32_u24 v{u}, 0x108, v{dg}")
        a.e(f"v_and_b32 v{u}, 0x208, v{u}")
        a.e(f"v_cmp_eq_u32 vcc, 4, v{dg}")
        a.e(f"v_mad_u32_u24 v{u}, v{h}, s{t1}, v{u}")
        a.e("s_nop 0")
        a.e(f"v_cndmask_b32 v{tt}, v{rA0}, v{rB0}, vcc")
        a.e(f"v_cndmask_b32 v{h}, v{rA1}, v{rB1}, vcc")
        a.e(f"v_add_u32 v{vSA+2*j}, v{u}, v{tt}")
        a.e(f"v_add_u32 v{vSA+2*j+1}, v{u}, v{h}")
    a.e("s_branch K1_PRE_DONE")
    a.lab("K1_PRE_V")
    a.e(f"s_sub_u32 s{t5}, s{sCB}, 10")
    a.e(f"s_lshl_b32 s{t5}, s{t5}, 7")
    a.e(f"s_lshl_b32 s{t7}, s{sNQ}, 6")
    a.e(f"s_add_u32 s{t5}, s{t5}, s{t7}")
    a.e(f"v_add_u32 v{vT+2}, s{t5}, v{vT+4}")
    a.e(f"s_mul_i32 s{t6}, s{t6}, {KVT}")
    a.e(f"s_add_u32 s{t6}, s{t6}, {hx(KV_OFF + 1280)}")
    a.e(f"v_mul_u32_u24 v{vT+1}, {VP}, v{vT}")
    a.e(f"v_add_u32 v{vT+1}, s{t6}, v{vT+1}")
    a.e(f"s_mov_b32 s{t1}, {KVH}")
    a.e(f"s_mov_b32 s{t2}, -20")
    for j in range(4):
        n, h, d = vT + 5, vT + 6, vT + 7
        a.e(f"v_add_u32 v{n}, {16*j}, v{vT+2}")
        a.e(f"v_mul_u32_u24 v{h}, 3277, v{n}")
        a.e(f"v_lshrrev_b32 v{h}, 16, v{h}")
        a.e(f"v_mad_i32_i24 v{d}, v{h}, s{t2}, v{n}")
        a.e(f"v_mad_u32_u24 v{h}, v{h}, s{t1}, v{vT+1}")
        a.e(f"v_lshl_add_u32 v{vSA+j}, v{d}, 4, v{h}")
    a.e("s_branch K1_PRE_DONE")
    a.lab("K1_PRE_F")
    a.e(f"s_lshl_b32 s{t0}, s{t6}, 5")
    a.e(f"v_add_u32 v{vSA}, s{t0}, v{vT+4}")
    a.e(f"v_lshlrev_b32 v{vSA}, 4, v{vSA}")
    a.e(f"v_lshl_add_u32 v{vSA}, v{vT}, 15, v{vSA}")
    a.e(f"s_lshl_b32 s{t0}, s{sT0}, 16")
    a.e(f"s_lshl_b32 s{t1}, s{sNQ}, 18")
    a.e(f"s_add_u32 s{t0}, s{t0}, s{t1}")
    a.e(f"s_add_u32 s{t0}, s{t0}, {hx(AB_OFF + 80*32768)}")
    a.e(f"v_add_u32 v{vSA}, s{t0}, v{vSA}")
    a.e(f"v_add_u32 v{vSA+1}, {hx(131072)}, v{vSA}")
    a.lab("K1_PRE_DONE")
    a.e("s_waitcnt lgkmcnt(0)")
    stamp(a, 5)
    srd(a, sWS, "s18", "s19", WS_END)
    a.e(f"s_and_b32 s{t0}, s{sTYP}, 1")
    a.e(f"s_lshl_b32 s{t0}, s{t0}, 1")
    a.e(f"s_add_u32 s{t0}, s{t0}, s{sMH}")
    for v in range(1, 4):
        a.e(f"s_cmp_eq_u32 s{t0}, {v}")
        a.e(f"s_cbranch_scc1 K1_V{v}")

    def reads(fs):
        vA = vAe if fs == 0 else vAo
        ra = [f"ds_read_b128 {vr(fa(fs,mt),4)}, v{vA} offset:{2048*mt}" for mt in range(4)]
        rb = []
        for j in range(4):
            rb.append(f"ds_read_b64_tr_b16 {vr(fb(fs,j),2)}, v{vB} offset:{fs*K1_BH+32*j}")
            rb.append(f"ds_read_b64_tr_b16 {vr(fb(fs,j)+2,2)}, v{vB} offset:{fs*K1_BH+32*j+256}")
        return rb[0:2] + ra + rb[2:]

    def addr_update():
        return [f"v_add_u32 v{vB}, s{sRD}, v{vB0}",
                f"v_add_u32 v{vAe}, s{sRD}, v{vA0e}",
                f"v_add_u32 v{vAo}, s{sRD}, v{vA0o}",
                f"s_add_u32 s{sRD}, s{sRD}, {K1_SLOT}",
                f"s_cmp_eq_u32 s{sRD}, {K1_SCR}",
                f"s_cselect_b32 s{sRD}, 0, s{sRD}"]

    for var in range(4):
        typ, mh, nq = var >> 1, var & 1, 0
        cst = [2 * mh, 2 * mh + 1]
        smt = (2 if typ == 2 else 0) + nq
        a.raw(".p2align 3")
        a.lab(f"K1_V{var}")
        emit(addr_update())
        a.e("s_barrier")
        stamp(a, 1)
        emit(reads(0))
        a.raw(".p2align 6")
        a.lab(f"K1_L{var}")
        for fs in range(2):
            mf = []
            for j in range(4):
                for mt in range(4):
                    if typ == 1:
                        mf.append(f"v_mfma_f32_16x16x32_bf16 {vr(acc(j,mt),4)}, {vr(fa(fs,mt),4)}, {vr(fb(fs,j),4)}, {vr(acc(j,mt),4)}")
                    else:
                        mf.append(f"v_mfma_f32_16x16x32_bf16 {vr(acc(j,mt),4)}, {vr(fb(fs,j),4)}, {vr(fa(fs,mt),4)}, {vr(acc(j,mt),4)}")
                if j in cst:
                    c = vCS + 4 * cst.index(j)
                    mf.append(f"v_mfma_f32_16x16x32_bf16 {vr(c,4)}, {vr(fb(fs,j),4)}, {vr(vONES,4)}, {vr(c,4)}")
            va = []
            for r in range(4):
                src = fa(fs, smt) + r
                lo, hi = vU + 2 * (r & 1), vU + 2 * (r & 1) + 1
                va.append(f"v_lshlrev_b32 v{lo}, 16, v{src}")
                va.append(f"v_and_b32 v{hi}, 0xffff0000, v{src}")
                va.append(f"v_add_f32 v{vS}, v{vS}, v{lo}")
                va.append(f"v_add_f32 v{vS+1}, v{vS+1}, v{hi}")
                va.append(f"v_fmac_f32 v{vS+2}, v{lo}, v{lo}")
                va.append(f"v_fmac_f32 v{vS+3}, v{hi}, v{hi}")
            rd = reads(fs ^ 1)
            va = []
            if "r" in X: rd = []
            if "M" in X: mf = mf[:2]
            a.e("s_waitcnt lgkmcnt(0)")
            npre = 0
            if fs == 1:
                npre = 2
                for m in mf[:npre]:
                    a.e(m)
                emit(addr_update())
                a.e("s_barrier")
            rest = mf[npre:]
            nm = max(1, len(rest))
            ri = di = 0
            for i, m in enumerate(rest):
                if ri < len(rd):
                    a.e(rd[ri]); ri += 1
                a.e(m)
                want_d = (len(va) * (i + 1) + nm - 1) // nm
                while di < want_d:
                    a.e(va[di]); di += 1
            while ri < len(rd):
                a.e(rd[ri]); ri += 1
            while di < len(va):
                a.e(va[di]); di += 1
        a.e(f"s_add_u32 s{sIT}, s{sIT}, 1")
        a.e(f"s_cmp_lt_u32 s{sIT}, 10")
        a.e(f"s_cbranch_scc1 K1_L{var}")
        a.e(f"s_branch K1_EPI")

    a.raw(".p2align 3")
    a.lab("K1_EPI")
    stamp(a, 2)
    a.e("s_waitcnt vmcnt(0)")
    a.e(f"v_and_b32 v{vT}, 15, v{vLANE}")
    a.e(f"v_lshlrev_b32 v{vT}, 2, v{vT}")
    a.e(f"s_lshl_b32 s{t0}, s{sHALF}, 7")
    a.e(f"s_lshl_b32 s{t1}, s{sNQ}, 6")
    a.e(f"s_add_u32 s{t0}, s{t0}, s{t1}")
    a.e(f"s_lshl_b32 s{t2}, s{sMH}, 8")
    a.e(f"s_add_u32 s{t2}, s{t2}, {K1_SCR}")
    a.e(f"s_add_u32 s{t0}, s{t0}, s{t2}")
    a.e(f"v_add_u32 v{vT+1}, s{t0}, v{vT}")
    a.e(f"v_lshrrev_b32 v{vT+2}, 4, v{vLANE}")
    a.e(f"v_lshlrev_b32 v{vT+2}, 4, v{vT+2}")
    a.e(f"s_lshl_b32 s{t3}, s{sHALF}, 9")
    a.e(f"s_lshl_b32 s{t1}, s{sNQ}, 8")
    a.e(f"s_add_u32 s{t3}, s{t3}, s{t1}")
    a.e(f"s_add_u32 s{t3}, s{t3}, {K1_SCR+1024}")
    a.e(f"s_lshl_b32 s{t1}, s{sMH}, 7")
    a.e(f"s_add_u32 s{t0}, s{t3}, s{t1}")
    a.e(f"v_add_u32 v{vT+3}, s{t0}, v{vT+2}")
    a.e("s_mov_b32 exec_lo, 0x00010001")
    a.e("s_mov_b32 exec_hi, 0x00010001")
    a.e(f"ds_write_b128 v{vT+3}, {vr(vCS,4)}")
    a.e(f"ds_write_b128 v{vT+3}, {vr(vCS+4,4)} offset:64")
    a.e("s_mov_b64 exec, -1")
    a.e("s_waitcnt lgkmcnt(0)")
    a.e("s_barrier")
    stamp(a, 3)
    a.e(f"s_cmp_eq_u32 s{sTYP}, 1")
    a.e("s_cbranch_scc1 K1_EPI_V")

    vNM, vRS = 32, 36
    vC4 = 40
    vBB = 56
    a.e(f"v_add_u32 v{vT}, s{t2}, v{vT}")
    a.e(f"ds_read2_b32 {vr(vNM,2)}, v{vT} offset0:0 offset1:16")
    a.e(f"ds_read2_b32 {vr(vNM+2,2)}, v{vT} offset0:32 offset1:48")
    a.e(f"ds_read2_b32 {vr(vRS,2)}, v{vT} offset0:128 offset1:144")
    a.e(f"ds_read2_b32 {vr(vRS+2,2)}, v{vT} offset0:160 offset1:176")
    a.e(f"v_add_u32 v{vT+1}, s{t3}, v{vT+2}")
    for j in range(4):
        a.e(f"ds_read_b128 {vr(vC4+4*j,4)}, v{vT+1} offset:{64*j}")
    a.e(f"s_cmp_eq_u32 s{sTYP}, 2")
    a.e("s_cbranch_scc1 K1_EPI_F")

    def sel3(mt):
        return f"op_sel:[0,{mt&1},0] op_sel_hi:[1,{mt&1},1]"

    def sel2(mt):
        return f"op_sel:[0,{mt&1}] op_sel_hi:[1,{mt&1}]"
    a.e(f"s_cmp_lt_u32 s{sCB}, 5")
    a.e(f"s_cselect_b32 s{t0}, {hx(f32(QSCALE))}, 1.0")
    a.e("s_waitcnt lgkmcnt(4)")
    for i in range(4):
        a.e(f"v_mul_f32 v{vRS+i}, s{t0}, v{vRS+i}")
    for j in range(4):
        a.e(f"s_waitcnt lgkmcnt({3-j})")
        for mt in range(4):
            A = acc(j, mt)
            for p in range(2):
                a.e(f"v_pk_fma_f32 {vr(A+2*p,2)}, {vr(vC4+4*j+2*p,2)}, {vr(vNM+(mt&2),2)}, {vr(A+2*p,2)} {sel3(mt)}")
        for mt in range(4):
            A = acc(j, mt)
            for p in range(2):
                a.e(f"v_pk_mul_f32 {vr(A+2*p,2)}, {vr(A+2*p,2)}, {vr(vRS+(mt&2),2)} {sel2(mt)}")
        for mt in range(4):
            A = acc(j, mt)
            a.e(f"v_cvt_pk_bf16_f32 v{A}, v{A}, v{A+1}")
            a.e(f"v_cvt_pk_bf16_f32 v{A+1}, v{A+2}, v{A+3}")
            so = f"s{sTS}" if mt & 2 else "0"
            a.e(f"buffer_store_dwordx2 {vr(A,2)}, v{vSA+2*j+(mt&1)}, {sr(sWS,4)}, {so} offen{SC}")
    finish("Q")
    a.lab("K1_EPI_F")
    c0 = -2.0 * math.sqrt(2.0 / math.pi) * math.log2(math.e)
    c1 = c0 * 0.044715
    vC0, vONE = 64, 66
    a.e(f"v_lshrrev_b32 v{vT+2}, 1, v{vT+2}")
    a.e(f"s_lshl_b32 s{t0}, s{sNQ}, 7")
    a.e(f"s_add_u32 s{t0}, s{t0}, {K1_SCR+2048}")
    a.e(f"v_add_u32 v{vT+2}, s{t0}, v{vT+2}")
    for j in range(4):
        a.e(f"ds_read_b64 {vr(vBB+2*j,2)}, v{vT+2} offset:{32*j}")
    a.e(f"v_mov_b32 v{vC0}, {hx(f32(c0))}")
    a.e(f"v_mov_b32 v{vC0+1}, {hx(f32(c0))}")
    a.e(f"v_mov_b32 v{vONE}, 1.0")
    a.e(f"v_mov_b32 v{vONE+1}, 1.0")
    a.e(f"s_mov_b32 s{sC1}, {hx(f32(c1))}")
    a.e(f"s_mov_b32 s{sC1+1}, {hx(f32(c1))}")
    vBF = 68
    vW = 88
    for j in range(4):
        a.e(f"s_waitcnt lgkmcnt({3-j})")
        a.e(f"v_lshlrev_b32 v{vBF}, 16, v{vBB+2*j}")
        a.e(f"v_and_b32 v{vBF+1}, 0xffff0000, v{vBB+2*j}")
        a.e(f"v_lshlrev_b32 v{vBF+2}, 16, v{vBB+2*j+1}")
        a.e(f"v_and_b32 v{vBF+3}, 0xffff0000, v{vBB+2*j+1}")
        for mp in range(2):
            prs = [(mt, p) for mt in (2 * mp, 2 * mp + 1) for p in range(2)]
            for i, (mt, p) in enumerate(prs):
                A = acc(j, mt) + 2 * p
                a.e(f"v_pk_fma_f32 {vr(A,2)}, {vr(vC4+4*j+2*p,2)}, {vr(vNM+(mt&2),2)}, {vr(A,2)} {sel3(mt)}")
            for i, (mt, p) in enumerate(prs):
                A = acc(j, mt) + 2 * p
                a.e(f"v_pk_fma_f32 {vr(A,2)}, {vr(A,2)}, {vr(vRS+(mt&2),2)}, {vr(vBF+2*p,2)} {sel3(mt)}")
            for i, (mt, p) in enumerate(prs):
                A = acc(j, mt) + 2 * p
                a.e(f"v_pk_mul_f32 {vr(vW+2*i,2)}, {vr(A,2)}, {vr(A,2)}")
            for i, (mt, p) in enumerate(prs):
                a.e(f"v_pk_fma_f32 {vr(vW+2*i,2)}, {vr(vW+2*i,2)}, {sr(sC1,2)}, {vr(vC0,2)}")
            for i, (mt, p) in enumerate(prs):
                A = acc(j, mt) + 2 * p
                a.e(f"v_pk_mul_f32 {vr(vW+2*i,2)}, {vr(vW+2*i,2)}, {vr(A,2)}")
            for i in range(8):
                a.e(f"v_exp_f32 v{vW+i}, v{vW+i}")
            for i in range(4):
                a.e(f"v_pk_add_f32 {vr(vW+2*i,2)}, {vr(vW+2*i,2)}, {vr(vONE,2)}")
            for i in range(8):
                a.e(f"v_rcp_f32 v{vW+i}, v{vW+i}")
            for i, (mt, p) in enumerate(prs):
                A = acc(j, mt) + 2 * p
                a.e(f"v_pk_mul_f32 {vr(A,2)}, {vr(A,2)}, {vr(vW+2*i,2)}")
            for mt in (2 * mp, 2 * mp + 1):
                A = acc(j, mt)
                D = acc(j & ~1, mt) + 2 * (j & 1)
                a.e(f"v_cvt_pk_bf16_f32 v{D}, v{A}, v{A+1}")
                a.e(f"v_cvt_pk_bf16_f32 v{D+1}, v{A+2}, v{A+3}")
                if j & 1:
                    a.e(f"buffer_store_dwordx4 {vr(acc(j-1,mt),4)}, v{vSA+j//2}, {sr(sWS,4)}, 0 offen offset:{256*mt}{SC}")
    finish("F")
    a.lab("K1_EPI_V")
    vNMv, vRSv = 40, 56
    vCSv = 88
    a.e(f"v_add_u32 v{vT+1}, s{t2}, v{vT+2}")
    for mt in range(4):
        a.e(f"ds_read_b128 {vr(vNMv+4*mt,4)}, v{vT+1} offset:{64*mt}")
    for mt in range(4):
        a.e(f"ds_read_b128 {vr(vRSv+4*mt,4)}, v{vT+1} offset:{512+64*mt}")
    a.e(f"v_add_u32 v{vT+3}, s{t3}, v{vT}")
    for j in range(4):
        a.e(f"ds_read_b32 v{vCSv+2*j}, v{vT+3} offset:{64*j}")
    for j in range(4):
        a.e(f"s_waitcnt lgkmcnt({3-j})")
        for mt in range(4):
            A = acc(j, mt)
            for p in range(2):
                a.e(f"v_pk_fma_f32 {vr(A+2*p,2)}, {vr(vNMv+4*mt+2*p,2)}, {vr(vCSv+2*j,2)}, {vr(A+2*p,2)} op_sel:[0,0,0] op_sel_hi:[1,0,1]")
        for mt in range(4):
            A = acc(j, mt)
            for p in range(2):
                a.e(f"v_pk_mul_f32 {vr(A+2*p,2)}, {vr(A+2*p,2)}, {vr(vRSv+4*mt+2*p,2)}")
        for t2_ in range(2):
            A0, A1 = acc(j, 2 * t2_), acc(j, 2 * t2_ + 1)
            a.e(f"v_cvt_pk_bf16_f32 v{A0}, v{A0}, v{A0+1}")
            a.e(f"v_cvt_pk_bf16_f32 v{A0+1}, v{A0+2}, v{A0+3}")
            a.e(f"v_cvt_pk_bf16_f32 v{A0+2}, v{A1}, v{A1+1}")
            a.e(f"v_cvt_pk_bf16_f32 v{A0+3}, v{A1+2}, v{A1+3}")
            a.e(f"buffer_store_dwordx4 {vr(A0,4)}, v{vSA+j}, {sr(sWS,4)}, 0 offen offset:{KVT*t2_}{SC}")
    finish("Q")
    if ONE:
        for kind in "QF":
            a.lab(f"K1_SIG{kind}")
            a.e(f"v_mov_b32 v2, {K1_SYN + (4 if kind == 'F' else 0)}")
            a.e("v_mov_b32 v3, 1")
            if kind == "Q":
                a.e(f"v_lshlrev_b32 v5, 11, v{vLANE}")
                a.e(f"s_lshl_b32 s{t0}, s{sCB}, 7")
                a.e(f"s_lshl_b32 s{t1}, s{sRB}, 2")
                a.e(f"s_add_u32 s{t0}, s{t0}, s{t1}")
                a.e(f"s_add_u32 s{t0}, s{t0}, {hx(FL_OFF + FQ_REL)}")
            else:
                a.e("v_mov_b32 v5, 0")
                a.e(f"s_lshl_b32 s{t0}, s{sRB}, 7")
                a.e(f"s_lshl_b32 s{t1}, s{sCB}, 2")
                a.e(f"s_add_u32 s{t0}, s{t0}, s{t1}")
                a.e(f"s_add_u32 s{t0}, s{t0}, {hx(FL_OFF + FH_REL)}")
            a.e("s_waitcnt vmcnt(0)")
            a.e("s_mov_b64 exec, 1")
            a.e("ds_add_rtn_u32 v4, v2, v3")
            a.e("s_waitcnt lgkmcnt(0)")
            a.e(f"v_readfirstlane_b32 s{t1}, v4")
            a.e("s_mov_b64 exec, -1")
            a.e(f"s_cmp_lg_u32 s{t1}, 3")
            a.e("s_cbranch_scc1 P2_ENTRY")
            a.e(f"s_mov_b64 exec, {15 if kind == 'Q' else 1}")
            a.e(f"buffer_store_dword v3, v5, {sr(sWS,4)}, s{t0} offen sc1")
            a.e("s_mov_b64 exec, -1")
            a.e("s_branch P2_ENTRY")

    a.lab("K1_TRANS")
    sTAU, sSEL0, sSEL1 = 51, 52, 53
    NB_T = 4
    sTs = [24, 28, 36, 40]
    sK = [54, 56, 58, 76]
    vTO = [2, 3, 4, 5]
    vTS = [6, 7, 8, 9]
    vTL = [88, 104, 120, 136]
    a.e(f"s_mul_i32 s{sTAU}, s{sRB}, 12")
    a.e(f"s_add_u32 s{sTAU}, s{sTAU}, s{sW}")
    a.e(f"s_mov_b32 s{sSEL0}, 0x05040100")
    a.e(f"s_mov_b32 s{sSEL1}, 0x07060302")
    a.e(f"v_lshlrev_b32 v{vT}, 2, v{vLANE}")
    a.e(f"v_lshlrev_b32 v{vT+1}, 5, v{vLANE}")
    a.e("s_waitcnt lgkmcnt(0)")
    srd(a, sWS, "s18", "s19", WS_END)
    if "Q" in X:
        srd(a, sX, "s4", "s5", 2048 * 640 * 2)
        srd(a, sB0, "s6", "s7", 640 * 1920 * 2)
        srd(a, sB1, "s12", "s13", 640 * 1728 * 2)
        a.e(f"s_lshl_b32 s{t0}, s{sTAU}, 13")
        a.e(f"v_lshlrev_b32 v20, 7, v{vLANE}")
        a.e(f"v_add_u32 v20, s{t0}, v20")
        a.e(f"s_mov_b32 s{t1}, {192*3840}")
        a.e(f"s_mov_b32 s{t2}, {192*3456}")
        a.e(f"s_mov_b32 s{t3}, {192*3840 + 12288*128}")
        a.e(f"s_mov_b32 s{t4}, {12288*128}")
        a.e(f"buffer_load_dword v21, v20, {sr(sB0,4)}, s{t1} offen")
        a.e(f"buffer_load_dword v22, v20, {sr(sB1,4)}, s{t2} offen")
        a.e(f"buffer_load_dword v23, v20, {sr(sX,4)}, 0 offen")
        a.e(f"buffer_load_dword v24, v20, {sr(sX,4)}, s{t4} offen")
        a.e(f"buffer_load_dword v25, v20, {sr(sB0,4)}, s{t3} offen")
    a.e(f"s_lshl_b32 s{t0}, s{sTAU}, 4")
    a.e(f"v_lshrrev_b32 v{vT+2}, 2, v{vLANE}")
    a.e(f"v_add_u32 v{vT+2}, s{t0}, v{vT+2}")
    a.e(f"v_mul_u32_u24 v{vT+2}, {KVT}, v{vT+2}")
    a.e(f"v_and_b32 v{vT+3}, 3, v{vLANE}")
    a.e(f"v_mul_u32_u24 v{vT+3}, {VP}, v{vT+3}")
    a.e(f"v_add_u32 v{vT+2}, v{vT+2}, v{vT+3}")
    a.e(f"s_cmp_lt_u32 s{sTAU}, 128")
    a.e(f"s_cselect_b32 s{t0}, {hx(KV_OFF + 1280 + 320)}, {hx(OOB)}")
    for i in range(4):
        a.e(f"v_mov_b32 v{12+i}, 0x3f803f80")
    a.e(f"buffer_store_dwordx4 v[12:15], v{vT+2}, {sr(sWS,4)}, s{t0} offen{SC}")
    a.e(f"s_lshl_b32 s{t1}, s{sW}, 10")
    a.e(f"s_add_u32 s{t1}, s{t1}, {hx(FL_OFF)}")
    a.e(f"s_cmp_eq_u32 s{sRB}, 0")
    a.e(f"s_cselect_b32 s{t0}, s{t1}, {hx(OOB)}")
    for i in range(4):
        a.e(f"v_mov_b32 v{16+i}, 0")
    a.e(f"v_lshlrev_b32 v{vT+3}, 4, v{vLANE}")
    a.e(f"buffer_store_dwordx4 v[16:19], v{vT+3}, {sr(sWS,4)}, s{t0} offen{SC}")
    if ONE:
        a.e(f"v_mov_b32 v20, {K1_SYN}")
        a.e("ds_write_b128 v20, v[16:19]")
        a.e("s_waitcnt vmcnt(0) lgkmcnt(0)")
        a.e("s_barrier")
        a.e(f"s_cmp_lg_u32 s{sW}, 0")
        a.e("s_cbranch_scc1 K1_TGO")
        a.e("v_mov_b32 v21, 1")
        a.e(f"s_cmp_lg_u32 s{sRB}, 0")
        a.e("s_cbranch_scc1 K1_TZ")
        srd(a, sX, "s10", "s11", 256)
        a.e("s_mov_b64 exec, 1")
        a.e(f"buffer_store_dword v21, v16, {sr(sX,4)}, 0 offen sc1")
        a.e("s_mov_b64 exec, -1")
        a.lab("K1_TZ")
        zpoll("tr", sX, 22, 23)
        a.e(f"v_lshlrev_b32 v22, 11, v{vLANE}")
        a.e(f"s_lshl_b32 s{t1}, s{sRB}, 2")
        a.e(f"s_add_u32 s{t1}, s{t1}, {hx(FL_OFF + FQ_REL + 15*128)}")
        a.e("s_mov_b64 exec, 15")
        a.e(f"buffer_store_dword v21, v22, {sr(sWS,4)}, s{t1} offen sc1")
        a.e("s_mov_b64 exec, -1")
        a.lab("K1_TGO")
    a.e(f"s_mov_b32 s{sIT+3}, 0")
    a.lab("K1_TL")
    for b in range(NB_T):
        T = sTs[b]
        a.e(f"s_mul_i32 s{t1}, s{sTAU}, 13108")
        a.e(f"s_lshr_b32 s{t1}, s{t1}, 16")
        a.e(f"s_mul_i32 s{t2}, s{t1}, 5")
        a.e(f"s_sub_u32 s{t2}, s{sTAU}, s{t2}")
        a.e(f"s_mul_i32 s{t3}, s{t1}, 205")
        a.e(f"s_lshr_b32 s{t3}, s{t3}, 10")
        a.e(f"s_mul_i32 s{t4}, s{t3}, 5")
        a.e(f"s_sub_u32 s{t4}, s{t1}, s{t4}")
        a.e(f"s_mul_i32 s{t3}, s{t3}, 40")
        a.e(f"s_lshr_b32 s{t5}, s{t4}, 1")
        a.e(f"s_mul_i32 s{t5}, s{t5}, 20")
        a.e(f"s_and_b32 s{t6}, s{t4}, 1")
        a.e(f"s_lshl_b32 s{t6}, s{t6}, 2")
        a.e(f"s_add_u32 s{t5}, s{t5}, s{t6}")
        a.e(f"s_add_u32 s{t6}, s{t5}, 8")
        a.e(f"s_cmp_eq_u32 s{t4}, 4")
        a.e(f"s_cselect_b32 s{t5}, 16, s{t5}")
        a.e(f"s_cselect_b32 s{t6}, 36, s{t6}")
        a.e(f"s_add_u32 s{t5}, s{t5}, s{t3}")
        a.e(f"s_add_u32 s{t6}, s{t6}, s{t3}")
        a.e(f"s_sub_u32 s{t3}, s{t1}, 80")
        a.e(f"s_lshr_b32 s{t4}, s{t3}, 2")
        a.e(f"s_lshl_b32 s{t4}, s{t4}, 5")
        a.e(f"s_and_b32 s{t3}, s{t3}, 3")
        a.e(f"s_lshl_b32 s{t3}, s{t3}, 2")
        a.e(f"s_add_u32 s{t3}, s{t3}, s{t4}")
        a.e(f"s_add_u32 s{t4}, s{t3}, 16")
        a.e(f"s_cmp_lt_u32 s{t1}, 80")
        a.e(f"s_cselect_b32 s{t5}, s{t5}, s{t3}")
        a.e(f"s_cselect_b32 s{t6}, s{t6}, s{t4}")
        a.e(f"s_cselect_b32 s{T}, s8, s16")
        a.e(f"s_cselect_b32 s{T+1}, s9, s17")
        a.e(f"s_cselect_b32 s{T+2}, {hx(640*640*2)}, {hx(1728*640*2)}")
        a.e(f"s_mov_b32 s{T+3}, 0x00020000")
        a.e(f"s_mul_i32 s{sK[b]}, s{t5}, 1280")
        a.e(f"s_mul_i32 s{sK[b]+1}, s{t6}, 1280")
        a.e(f"s_lshl_b32 s{t3}, s{t2}, 8")
        a.e(f"v_add_u32 v{vTO[b]}, s{t3}, v{vT}")
        for j in range(8):
            so = sK[b] if j < 4 else sK[b] + 1
            a.e(f"buffer_load_dword v{vTL[b]+j}, v{vTO[b]}, {sr(T,4)}, s{so} offen offset:{(j&3)*1280}")
        a.e(f"s_mul_i32 s{t1}, s{t1}, 10240")
        a.e(f"s_lshl_b32 s{t2}, s{t2}, 11")
        a.e(f"s_add_u32 s{t1}, s{t1}, s{t2}")
        a.e(f"s_add_u32 s{t1}, s{t1}, {hx(WT_OFF)}")
        a.e(f"s_cmp_lt_u32 s{sTAU}, 1480")
        a.e(f"s_cselect_b32 s{t1}, s{t1}, {hx(OOB)}")
        a.e(f"v_add_u32 v{vTS[b]}, s{t1}, v{vT+1}")
        a.e(f"s_add_u32 s{sTAU}, s{sTAU}, 192")
    for b in range(NB_T):
        a.e(f"s_waitcnt vmcnt({8*(NB_T-1-b) + 2*b})")
        for i in range(4):
            a.e(f"v_perm_b32 v{vTL[b]+8+i}, v{vTL[b]+2*i+1}, v{vTL[b]+2*i}, s{sSEL0}")
            a.e(f"v_perm_b32 v{vTL[b]+12+i}, v{vTL[b]+2*i+1}, v{vTL[b]+2*i}, s{sSEL1}")
        a.e(f"buffer_store_dwordx4 {vr(vTL[b]+8,4)}, v{vTS[b]}, {sr(sWS,4)}, 0 offen{SC}")
        a.e(f"buffer_store_dwordx4 {vr(vTL[b]+12,4)}, v{vTS[b]}, {sr(sWS,4)}, 0 offen offset:16{SC}")
    a.e(f"s_add_u32 s{sIT+3}, s{sIT+3}, 1")
    a.e(f"s_cmp_lt_u32 s{sIT+3}, 2")
    a.e("s_cbranch_scc1 K1_TL")
    if DIAG:
        for i in (1, 2, 3, 5):
            stamp(a, i)
    k1flush()
    if ONE:
        a.e("s_waitcnt vmcnt(0)")
        a.e("s_barrier")
        a.e(f"s_cmp_lg_u32 s{sW}, 0")
        a.e("s_cbranch_scc1 P2_ENTRY")
        a.e(f"v_lshlrev_b32 v22, 7, v{vLANE}")
        a.e(f"s_lshl_b32 s{t1}, s{sRB}, 2")
        a.e(f"s_add_u32 s{t1}, s{t1}, {hx(FL_OFF + FH_REL + 16*128)}")
        a.e("s_mov_b64 exec, 15")
        a.e(f"buffer_store_dword v21, v22, {sr(sWS,4)}, s{t1} offen sc1")
        a.e("s_mov_b64 exec, -1")
        a.e("s_branch P2_ENTRY")
    a.lab("K1_END")
    a.e("s_endpgm")
    return name, NV, 102 if DIAG else 80, (256, 768, K1_LDS)


K2_LDS = 163840
Y_OFF = 0x1400000
Y_SIZE = 2048 * 640 * 4
WS_ALL = Y_OFF + Y_SIZE


def gen_k2(a):
    name = "k2_attn_kernel"
    if ONE:
        a.raw(".p2align 6")
        a.lab("P2_ENTRY")
    else:
        kernel_header(a, name)
    X2 = os.environ.get("K2X", "")
    sWS, sKV = 12, 16
    sW, sH, sQT, sOFF, sIT, sG = 20, 21, 22, 23, 24, 25
    sLD = 26
    t0, t1, t2, t3 = 28, 29, 30, 31
    sBM = 32
    vLANE = 1
    vL16, vKa, vKb, vV = 2, 3, 4, 5
    vT = 6
    QA, QB = [12, 20], [16, 24]
    KA, KB = 28, 32
    V0, V1 = 36, 40
    P0, P1 = 44, 48
    O = [64, 80]
    S = [96, 112]
    NV = 168
    RG = 81920
    FUSE = "u" not in X2
    k2flush = lambda: (stamp(a, 4), stamp_flush(a, 1, 12, sW, "s4", "s5", 8, 2))

    if not ONE:
        a.e("s_cmp_ge_u32 s2, 256")
        a.e("s_cbranch_scc1 K2_END")
    stamp(a, 0)
    a.e("s_load_dwordx2 s[4:5], s[0:1], 80")
    a.e("s_load_dwordx2 s[6:7], s[0:1], 0")
    a.e("s_load_dwordx2 s[8:9], s[0:1], 56")
    a.e("s_load_dwordx4 s[60:63], s[0:1], 64")
    a.e(f"v_and_b32 v{vLANE}, 63, v0")
    a.e(f"v_lshrrev_b32 v{vT}, 6, v0")
    a.e(f"s_and_b32 s{t0}, s2, 7")
    a.e(f"v_readfirstlane_b32 s{sW}, v{vT}")
    a.e(f"s_lshr_b32 s{t1}, s2, 3")
    a.e(f"s_lshl_b32 s{t2}, s{t0}, 2")
    a.e(f"s_and_b32 s{t3}, s{t1}, 3")
    a.e(f"s_add_u32 s{sH}, s{t2}, s{t3}")
    a.e(f"v_lshlrev_b32 v{vL16}, 4, v{vLANE}")
    a.e(f"s_mul_i32 s{t2}, s{sH}, {KVH}")
    a.e(f"s_add_u32 s{t2}, s{t2}, {hx(KV_OFF)}")
    a.e("s_waitcnt lgkmcnt(0)")
    stamp(a, 5)
    a.e(f"s_add_u32 s{sKV}, s4, s{t2}")
    a.e(f"s_addc_u32 s{sKV+1}, s5, 0")
    a.e(f"s_mov_b32 s{sKV+2}, {KVH}")
    a.e(f"s_mov_b32 s{sKV+3}, 0x00020000")
    sFL = 64

    def gpoll(tag, vaddr, vd):
        a.e(f"s_mov_b32 s{sIT}, 0")
        a.lab(f"GP_{tag}")
        a.e(f"buffer_load_dword v{vd}, v{vaddr}, {sr(sFL,4)}, 0 offen sc1")
        a.e(f"s_add_u32 s{sIT}, s{sIT}, 1")
        a.e("s_waitcnt vmcnt(0)")
        a.e(f"v_cmp_ne_u32 vcc, 1, v{vd}")
        a.e(f"s_cmp_ge_u32 s{sIT}, {POLL_MAX}")
        a.e(f"s_cbranch_scc1 GD_{tag}")
        a.e(f"s_cbranch_vccz GD_{tag}")
        a.e("s_sleep 3")
        a.e(f"s_branch GP_{tag}")
        a.lab(f"GD_{tag}")

    if ONE:
        a.e(f"v_mov_b32 v{vT+5}, {K1_SYN + 8}")
        a.e(f"s_cmp_lg_u32 s{sW}, 0")
        a.e("s_cbranch_scc1 P2_SPIN")
        srd_off(a, sFL, "s4", "s5", FL_OFF, FL_SIZE)
        a.e(f"s_mul_i32 s{t2}, s{sH}, 20")
        a.e(f"s_and_b32 s{t3}, s2, 3")
        a.e(f"s_lshl_b32 s{t3}, s{t3}, 11")
        a.e(f"s_add_u32 s{t3}, s{t3}, {FQ_REL}")
        a.e(f"v_lshrrev_b32 v{vT}, 5, v{vLANE}")
        a.e(f"v_mul_u32_u24 v{vT}, 640, v{vT}")
        a.e(f"v_bfe_u32 v{vT+1}, v{vLANE}, 4, 1")
        a.e(f"v_mul_u32_u24 v{vT+1}, 19, v{vT+1}")
        a.e(f"v_add3_u32 v{vT}, v{vT}, v{vT+1}, s{t2}")
        a.e(f"v_add_u32 v{vT}, 640, v{vT}")
        a.e(f"v_and_b32 v{vT}, 0xffffff80, v{vT}")
        a.e(f"v_and_b32 v{vT+1}, 15, v{vLANE}")
        a.e(f"v_lshl_add_u32 v{vT}, v{vT+1}, 2, v{vT}")
        a.e(f"v_add_u32 v{vT}, s{t3}, v{vT}")
        a.e(f"v_and_b32 v{vT+2}, 1, v{vLANE}")
        a.e(f"v_mul_u32_u24 v{vT+2}, 19, v{vT+2}")
        a.e(f"v_add_u32 v{vT+2}, s{t2}, v{vT+2}")
        a.e(f"v_and_b32 v{vT+2}, 0xffffff80, v{vT+2}")
        a.e(f"v_bfe_u32 v{vT+3}, v{vLANE}, 1, 1")
        a.e(f"s_lshr_b32 s{t2}, s2, 5")
        a.e(f"s_lshl_b32 s{t2}, s{t2}, 1")
        a.e(f"v_add_u32 v{vT+3}, s{t2}, v{vT+3}")
        a.e(f"v_lshl_add_u32 v{vT+2}, v{vT+3}, 2, v{vT+2}")
        a.e(f"v_lshlrev_b32 v{vT+3}, 2, v{vT+1}")
        a.e(f"v_add_u32 v{vT+3}, {15*128}, v{vT+3}")
        a.e(f"v_cmp_gt_u32 vcc, 16, v{vLANE}")
        a.e("s_nop 1")
        a.e(f"v_cndmask_b32 v{vT+2}, v{vT+2}, v{vT+3}, vcc")
        a.e(f"v_add_u32 v{vT+2}, s{t3}, v{vT+2}")
        gpoll("kv", vT, vT + 4)
        a.e("s_mov_b64 exec, 0xfffff")
        gpoll("q", vT + 2, vT + 4)
        a.e("s_mov_b64 exec, -1")
        a.e(f"v_mov_b32 v{vT+4}, 1")
        a.e(f"ds_write_b32 v{vT+5}, v{vT+4}")
        a.e("s_branch P2_GO")
        a.lab("P2_SPIN")
        a.e(f"ds_read_b32 v{vT+4}, v{vT+5}")
        a.e("s_waitcnt lgkmcnt(0)")
        a.e(f"v_readfirstlane_b32 s{t2}, v{vT+4}")
        a.e(f"s_cmp_eq_u32 s{t2}, 1")
        a.e("s_cbranch_scc1 P2_GO")
        a.e("s_sleep 1")
        a.e("s_branch P2_SPIN")
        a.lab("P2_GO")
        stamp(a, 5)
    a.e(f"s_cmp_ge_u32 s{sW}, 4")
    a.e("s_cbranch_scc1 K2_ATT")
    sA, sWT, sXX, sB2, sY = 36, 40, 44, 48, 52
    sRB, sCB, sOA, sOW = 56, 57, 58, 59
    vOA, vOW, vXO, vBO, vYO = 3, 4, 5, 12, 13
    F = 16
    ACC = 88

    def fA(s_, mt):
        return F + 36 * s_ + 4 * mt

    def fW(s_, t):
        return F + 36 * s_ + 16 + 4 * t

    def kvdma(n):
        for t in range(n):
            a.e(f"s_mov_b32 m0, s{sLD}")
            a.e(f"s_add_u32 s{sLD}, s{sLD}, 2048")
            a.e(f"buffer_load_dwordx4 v{vL16}, {sr(sKV,4)}, s{sOFF} offen{SC} lds")
            a.e(f"s_add_u32 s{sOFF}, s{sOFF}, 2048")

    a.e("s_setprio 3")
    a.e(f"s_and_b32 s{t2}, s{sW}, 1")
    a.e(f"s_lshr_b32 s{t3}, s{sW}, 1")
    a.e(f"s_lshl_b32 s{t3}, s{t3}, 10")
    a.e(f"s_mul_i32 s{sOFF}, s{t2}, {32*KVT}")
    a.e(f"s_add_u32 s{sOFF}, s{sOFF}, s{t3}")
    a.e(f"s_mul_i32 s{sLD}, s{t2}, {RG}")
    a.e(f"s_add_u32 s{sLD}, s{sLD}, s{t3}")
    kvdma(9)
    a.e(f"s_lshl_b32 s{t0}, s{t0}, 2")
    a.e(f"s_and_b32 s{t2}, s{t1}, 3")
    a.e(f"s_add_u32 s{sRB}, s{t0}, s{t2}")
    a.e(f"s_lshr_b32 s{sCB}, s{t1}, 2")
    srd_off(a, sA, "s4", "s5", AB_OFF + 80 * 32768, AB_SIZE - 80 * 32768)
    srd_off(a, sWT, "s4", "s5", WT_OFF + 80 * 10240, WT_SIZE - 80 * 10240)
    srd(a, sXX, "s6", "s7", 2048 * 640 * 2)
    srd(a, sB2, "s8", "s9", 640 * 2)
    srd_off(a, sY, "s4", "s5", Y_OFF, Y_SIZE)
    a.e(f"v_and_b32 v{vT}, 15, v{vLANE}")
    a.e(f"v_lshrrev_b32 v{vT+1}, 4, v{vLANE}")
    a.e(f"s_lshl_b32 s{t0}, s{sRB}, 6")
    a.e(f"v_add_u32 v{vT+2}, s{t0}, v{vT}")
    a.e(f"v_lshlrev_b32 v{vOA}, 4, v{vT+2}")
    a.e(f"v_lshl_add_u32 v{vOA}, v{vT+1}, 15, v{vOA}")
    a.e(f"s_mul_i32 s{t1}, s{sCB}, 80")
    a.e(f"v_add_u32 v{vT+3}, s{t1}, v{vT}")
    a.e(f"v_lshlrev_b32 v{vOW}, 4, v{vT+3}")
    a.e(f"v_mul_u32_u24 v{vT+3}, 10240, v{vT+1}")
    a.e(f"v_add_u32 v{vOW}, v{vOW}, v{vT+3}")
    a.e(f"s_lshl_b32 s{sOA}, s{sW}, 17")
    a.e(f"s_mul_i32 s{sOW}, s{sW}, 40960")
    a.e(f"v_lshlrev_b32 v{vBO}, 3, v{vT+1}")
    a.e(f"s_lshl_b32 s{t2}, s{t1}, 1")
    a.e(f"v_add_u32 v{vBO}, s{t2}, v{vBO}")
    a.e(f"s_lshl_b32 s{t2}, s{sW}, 4")
    a.e(f"v_add_u32 v{vT+2}, s{t2}, v{vT+2}")
    a.e(f"v_mul_u32_u24 v{vXO}, 1280, v{vT+2}")
    a.e(f"v_add_u32 v{vXO}, v{vXO}, v{vBO}")
    a.e(f"s_lshl_b32 s{t0}, s{sRB}, 3")
    a.e(f"s_add_u32 s{t0}, s{t0}, s{sCB}")
    a.e(f"s_mul_i32 s{t0}, s{t0}, 20480")
    a.e(f"s_mul_i32 s{t2}, s{sW}, 5120")
    a.e(f"s_add_u32 s{t0}, s{t0}, s{t2}")
    a.e(f"v_add_u32 v{vYO}, s{t0}, v{vL16}")
    for i in range(80):
        a.e(f"v_mov_b32 v{ACC+i}, 0")
    a.e(f"s_mov_b32 s{sIT}, 0")
    a.e(f"s_mov_b32 s{sBM}, {hx((1 << 1) | (1 << 4))}")
    a.e(f"v_mov_b32 v{vT}, 0")
    a.e("s_waitcnt vmcnt(3)")
    a.e("s_barrier")
    stamp(a, 1)
    kvdma(31)

    def loads(s_):
        r = [f"buffer_load_dwordx4 {vr(fA(s_,mt),4)}, v{vOA}, {sr(sA,4)}, s{sOA} offen offset:{256*mt}{SC}" for mt in range(4)]
        for t in range(5):
            r.append(f"buffer_load_dwordx4 {vr(fW(s_,t),4)}, v{vOW}, {sr(sWT,4)}, s{sOW} offen offset:{256*t}{SC}")
        r.append(f"s_add_u32 s{sOA}, s{sOA}, {4*131072}")
        r.append(f"s_add_u32 s{sOW}, s{sOW}, {4*40960}")
        return r

    if ONE:
        srd_off(a, sFL, "s4", "s5", FL_OFF, FL_SIZE)
        a.e(f"v_and_b32 v{vT+1}, 15, v{vLANE}")
        a.e(f"v_min_u32 v{vT+2}, 13, v{vT+1}")
        a.e(f"v_lshlrev_b32 v{vT+2}, 2, v{vT+2}")
        a.e(f"s_lshr_b32 s{t2}, s{sRB}, 1")
        a.e(f"s_lshl_b32 s{t2}, s{t2}, 7")
        a.e(f"s_add_u32 s{t2}, s{t2}, {FH_REL}")
        a.e(f"v_add_u32 v{vT+2}, s{t2}, v{vT+2}")
        a.e(f"v_lshlrev_b32 v{vT+1}, 2, v{vT+1}")
        a.e(f"s_and_b32 s{t2}, s2, 3")
        a.e(f"s_lshl_b32 s{t2}, s{t2}, 7")
        a.e(f"s_add_u32 s{t2}, s{t2}, {FH_REL + 16*128}")
        a.e(f"v_add_u32 v{vT+1}, s{t2}, v{vT+1}")
        a.e(f"v_cmp_gt_u32 vcc, 16, v{vLANE}")
        a.e("s_nop 1")
        a.e(f"v_cndmask_b32 v{vT+1}, v{vT+1}, v{vT+2}, vcc")
        a.e("s_waitcnt vmcnt(31)")
        a.e("s_barrier")
        a.e("s_mov_b32 exec_hi, 0")
        gpoll("h", vT + 1, vT + 4)
        a.e("s_mov_b64 exec, -1")
        a.e(f"s_mov_b32 s{sIT}, 0")
        for s_ in range(2):
            for ins in loads(s_):
                a.e(ins)
    else:
        for s_ in range(2):
            for ins in loads(s_):
                a.e(ins)
        a.e("s_waitcnt vmcnt(49)")
        a.e("s_barrier")
    stamp(a, 2)
    a.e(f"ds_write_b32 v{vT}, v{vT}")
    if "n" in X2:
        a.e("s_waitcnt vmcnt(0)")
        a.e("s_barrier")
        stamp(a, 3)
        k2flush()
        a.e("s_endpgm")
    a.e(f"s_setprio {3 if 'Z' in X2 else (1 if 'y' in X2 else 0)}")
    a.raw(".p2align 3")
    a.lab("K2_GL")
    for s_ in range(2):
        ld = loads(s_)
        a.e("s_waitcnt vmcnt(9)")
        for t in range(5):
            for mt in range(4):
                A_ = ACC + 20 * mt + 4 * t
                a.e(f"v_mfma_f32_16x16x32_bf16 {vr(A_,4)}, {vr(fW(s_,t),4)}, {vr(fA(s_,mt),4)}, {vr(A_,4)}")
                if t == 4:
                    a.e(ld[mt])
            a.e(ld[4 + t])
        a.e(ld[9]); a.e(ld[10])
    a.e(f"s_add_u32 s{sIT}, s{sIT}, 1")
    a.e(f"s_bitcmp0_b32 s{sBM}, s{sIT}")
    a.e("s_cbranch_scc1 K2_GNB")
    a.e("s_waitcnt lgkmcnt(0)")
    a.e("s_barrier")
    a.lab("K2_GNB")
    a.e(f"s_cmp_lt_u32 s{sIT}, 7")
    a.e("s_cbranch_scc1 K2_GL")
    stamp(a, 3)
    a.e("s_setprio 3")
    a.e("s_waitcnt vmcnt(0)")
    XR = 68
    for q in range(5):
        a.e(f"buffer_load_dwordx2 {vr(XR+2*q,2)}, v{vXO}, {sr(sXX,4)}, 0 offen offset:{32*q}")
        a.e(f"buffer_load_dwordx2 {vr(XR+10+2*q,2)}, v{vBO}, {sr(sB2,4)}, 0 offen offset:{32*q}")
    a.e(f"s_lshr_b32 s{t0}, s{sW}, 1")
    a.e(f"s_mul_i32 s{t0}, s{t0}, {RG}")
    a.e(f"s_and_b32 s{t1}, s{sW}, 1")
    a.e(f"s_mul_i32 s{t1}, s{t1}, 20480")
    a.e(f"s_add_u32 s{t0}, s{t0}, s{t1}")
    a.e(f"s_add_u32 s{t0}, s{t0}, 1024")
    a.e(f"v_add_u32 v{vT+1}, s{t0}, v{vL16}")
    for q in range(20):
        a.e(f"ds_write_b128 v{vT+1}, {vr(ACC+4*q,4)} offset:{1024*q}")
    a.e(f"v_mov_b32 v{vT+2}, 1")
    a.e("s_waitcnt lgkmcnt(0)")
    a.e("s_mov_b64 exec, 1")
    a.e(f"ds_add_u32 v{vT}, v{vT+2}")
    a.e("s_mov_b64 exec, -1")
    a.e("s_setprio 0")
    a.lab("K2_POLL")
    a.e(f"ds_read_b32 v{vT+3}, v{vT}")
    a.e("s_waitcnt lgkmcnt(0)")
    a.e(f"v_readfirstlane_b32 s{t0}, v{vT+3}")
    a.e(f"s_cmp_lt_u32 s{t0}, 4")
    a.e("s_cbranch_scc1 K2_POLL")
    a.e("s_setprio 3")
    a.e(f"s_mul_i32 s{t0}, s{sW}, 5120")
    a.e(f"s_add_u32 s{t0}, s{t0}, 1024")
    a.e(f"v_add_u32 v{vT+1}, s{t0}, v{vL16}")
    a.e(f"v_add_u32 v{vT+2}, {RG}, v{vT+1}")
    R = ACC
    for q in range(5):
        for wv in range(4):
            base = vT + 1 if wv < 2 else vT + 2
            a.e(f"ds_read_b128 {vr(R+16*q+4*wv,4)}, v{base} offset:{(wv&1)*20480 + 1024*q}")
    a.e(f"s_movk_i32 s{t1}, 4096")
    a.e("s_waitcnt vmcnt(0)")
    for q in range(5):
        a.e(f"s_waitcnt lgkmcnt({min(15,4*(4-q))})")
        b = R + 16 * q
        for i in range(4):
            a.e(f"v_add_f32 v{b+i}, v{b+i}, v{b+4+i}")
            a.e(f"v_add_f32 v{b+8+i}, v{b+8+i}, v{b+12+i}")
        for i in range(4):
            a.e(f"v_add_f32 v{b+i}, v{b+i}, v{b+8+i}")
        for k, src in enumerate((XR + 2 * q, XR + 10 + 2 * q)):
            u = b + 4 + 4 * k
            a.e(f"v_lshlrev_b32 v{u}, 16, v{src}")
            a.e(f"v_and_b32 v{u+1}, 0xffff0000, v{src}")
            a.e(f"v_lshlrev_b32 v{u+2}, 16, v{src+1}")
            a.e(f"v_and_b32 v{u+3}, 0xffff0000, v{src+1}")
        for i in range(4):
            a.e(f"v_add_f32 v{b+i}, v{b+i}, v{b+4+i}")
        for i in range(4):
            a.e(f"v_add_f32 v{b+i}, v{b+i}, v{b+8+i}")
        if not FUSE:
            so, off = ("0", 1024 * q) if q < 4 else (f"s{t1}", 0)
            a.e(f"buffer_store_dwordx4 {vr(b,4)}, v{vYO}, {sr(sY,4)}, {so} offen offset:{off}")
    if FUSE:
        YA = [R + 16 * q for q in range(5)]
        a.e("s_barrier")
        srd_off(a, sWT, "s4", "s5", WT_OFF, 80 * 10240)
        srd_off(a, sA, "s4", "s5", AB_OFF, 80 * 32768)
        srd(a, sY, "s60", "s61", 2048 * 640 * 2)
        srd_off(a, sB2, "s4", "s5", FL_OFF, 1024)
        a.e(f"s_mul_i32 s{sOW}, s{sW}, {5*40960}")
        a.e(f"s_lshr_b32 s{t0}, s{sW}, 1")
        a.e(f"s_mul_i32 s{t0}, s{t0}, {RG}")
        a.e(f"s_and_b32 s{t1}, s{sW}, 1")
        a.e(f"s_mul_i32 s{t1}, s{t1}, 25600")
        a.e(f"s_add_u32 s{t0}, s{t0}, s{t1}")
        for r in range(5):
            for q in range(5):
                a.e(f"s_add_u32 m0, s{t0}, {r*5120 + q*768}")
                a.e("s_nop 0")
                a.e(f"buffer_load_dwordx4 v{vOW}, {sr(sWT,4)}, s{sOW} offen offset:{256*q}{SC} lds")
            a.e(f"s_add_u32 s{sOW}, s{sOW}, 40960")
        a.e(f"s_lshl_b32 s{t2}, s{sW}, 8")
        a.e(f"v_add_u32 v{vOA}, s{t2}, v{vOA}")
        a.e(f"v_add_u32 v{vT+2}, {RG}, v{vL16}")
        a.e(f"v_mov_b32 v{vT+1}, 1")
        a.e(f"s_lshr_b32 s{t2}, s2, 5")
        a.e(f"s_lshl_b32 s{t2}, s{t2}, 5")
        a.e(f"s_add_u32 s{t2}, s{t2}, s{sH}")
        a.e(f"s_lshl_b32 s{t2}, s{t2}, 2")
        a.e(f"s_lshr_b32 s{t3}, s{sRB}, 2")
        a.e(f"s_lshl_b32 s{t3}, s{t3}, 7")
        a.e(f"v_lshlrev_b32 v{vT+4}, 2, v{vLANE}")
        a.e("s_barrier")
        a.e("s_waitcnt vmcnt(0)")
        a.e("s_barrier")
        stamp(a, 1)
        a.e(f"s_cmp_lg_u32 s{sW}, 0")
        a.e("s_cbranch_scc1 K2_PW")
        a.e("s_mov_b64 exec, 1")
        a.e(f"buffer_store_dword v{vT+1}, v{vT}, {sr(sB2,4)}, s{t2} offen sc1")
        a.e("s_mov_b32 exec_lo, -1")
        a.e(f"s_mov_b32 s{sIT}, 0")
        a.lab("K2_GP")
        a.e(f"buffer_load_dword v{vT+3}, v{vT+4}, {sr(sB2,4)}, s{t3} offen sc1")
        a.e(f"s_add_u32 s{sIT}, s{sIT}, 1")
        a.e("s_waitcnt vmcnt(0)")
        a.e(f"v_cmp_ne_u32 vcc, 1, v{vT+3}")
        a.e(f"s_cmp_ge_u32 s{sIT}, {1 << 21}")
        a.e("s_cbranch_scc1 K2_GPD")
        a.e("s_cbranch_vccz K2_GPD")
        a.e("s_sleep 4")
        a.e("s_branch K2_GP")
        a.lab("K2_GPD")
        a.e("s_mov_b64 exec, -1")
        a.lab("K2_PW")
        a.e("s_barrier")
        stamp(a, 2)
        FAr = [16 + 4 * i for i in range(18)] + [R + 4, R + 8]
        FBr = [[R + 20, R + 24, R + 28, R + 36, R + 40], [R + 44, R + 52, R + 56, R + 60, R + 68]]
        a.e(f"s_mov_b32 s{sOA}, 0")
        for ks in range(20):
            a.e(f"buffer_load_dwordx4 {vr(FAr[ks],4)}, v{vOA}, {sr(sA,4)}, s{sOA} offen sc1")
            a.e(f"s_add_u32 s{sOA}, s{sOA}, 131072")

        def rdB(ks):
            base, off = (vL16, ks * 5120) if ks < 10 else (vT + 2, (ks - 10) * 5120)
            return [f"ds_read_b128 {vr(FBr[ks&1][t],4)}, v{base} offset:{off+1024*t}" for t in range(5)]

        for ins in rdB(0):
            a.e(ins)
        for ks in range(20):
            if ks < 19:
                for ins in rdB(ks + 1):
                    a.e(ins)
            a.e(f"s_waitcnt vmcnt({19-ks}) lgkmcnt({5 if ks < 19 else 0})")
            for t in range(5):
                a.e(f"v_mfma_f32_16x16x32_bf16 {vr(YA[t],4)}, {vr(FBr[ks&1][t],4)}, {vr(FAr[ks],4)}, {vr(YA[t],4)}")
        a.e("s_nop 7")
        for t in range(5):
            A_ = YA[t]
            if os.environ.get("OUTBIAS"):
                for i in range(4):
                    a.e(f"v_add_f32 v{A_+i}, {hx(f32(float(os.environ['OUTBIAS'])))}, v{A_+i}")
            a.e(f"v_cvt_pk_bf16_f32 v{A_}, v{A_}, v{A_+1}")
            a.e(f"v_cvt_pk_bf16_f32 v{A_+1}, v{A_+2}, v{A_+3}")
            a.e(f"buffer_store_dwordx2 {vr(A_,2)}, v{vXO}, {sr(sY,4)}, 0 offen offset:{32*t}")
    k2flush()
    a.e("s_endpgm")

    a.lab("K2_ATT")
    vKa0, vKb0, vV0 = 52, 53, 54
    srd(a, sWS, "s4", "s5", WS_END)
    if "C" in X2:
        NPF = int(os.environ.get("NPF", "8"))
        a.e(f"s_cmp_ge_u32 s2, {NPF}")
        a.e("s_cbranch_scc1 K2_NOCP")
        a.e(f"s_cmp_ge_u32 s{sW}, 6")
        a.e("s_cbranch_scc1 K2_NOCP")
        a.e(f"s_and_b32 s{t0}, s{sW}, 1")
        code_prefetch(a, "k2", "k2_attn_kernel", "CODE_END", 36, t0, vLANE, vT, 60)
        a.lab("K2_NOCP")
    a.e(f"s_lshr_b32 s{sG}, s{sW}, 3")
    a.e(f"s_lshr_b32 s{t1}, s{t1}, 2")
    a.e(f"s_lshl_b32 s{t1}, s{t1}, 3")
    a.e(f"s_and_b32 s{t2}, s{sW}, 3")
    a.e(f"s_lshl_b32 s{t2}, s{t2}, 1")
    a.e(f"s_add_u32 s{sQT}, s{t1}, s{t2}")
    a.e(f"s_mul_i32 s{t0}, s{sH}, 81920")
    a.e(f"s_mul_i32 s{t1}, s{sQT}, 1280")
    a.e(f"s_add_u32 s{t0}, s{t0}, s{t1}")
    if QB_OFF:
        a.e(f"s_add_u32 s{t0}, s{t0}, {hx(QB_OFF)}")
    a.e(f"v_and_b32 v{vT}, 31, v{vLANE}")
    a.e(f"v_lshrrev_b32 v{vT+1}, 5, v{vLANE}")
    a.e(f"v_lshlrev_b32 v{vKb0}, 3, v{vT}")
    a.e(f"v_lshl_add_u32 v{vT+2}, v{vT+1}, 30, v{vKb0}")
    a.e(f"v_add_u32 v{vKb0}, 1024, v{vKb0}")
    a.e(f"v_mov_b32 v{vKa0}, v{vL16}")
    a.e(f"v_min_u32 v{vT+3}, 20, v{vT}")
    a.e(f"v_mul_u32_u24 v{vV0}, {VP}, v{vT+1}")
    a.e(f"v_lshl_add_u32 v{vV0}, v{vT+3}, 4, v{vV0}")
    a.e(f"v_add_u32 v{vV0}, 1280, v{vV0}")
    a.e(f"s_mul_i32 s{sOFF}, s{sG}, {32*KVT}")
    a.e(f"s_add_u32 s{sOFF}, s{sOFF}, {31*KVT}")
    a.e(f"buffer_load_dwordx4 {vr(QA[0],4)}, v{vL16}, {sr(sWS,4)}, s{t0} offen{SC}")
    a.e(f"buffer_load_dwordx2 {vr(QB[0],2)}, v{vT+2}, {sr(sWS,4)}, s{t0} offen offset:1024{SC}")
    a.e(f"buffer_load_dwordx4 {vr(KA,4)}, v{vKa0}, {sr(sKV,4)}, s{sOFF} offen{SC}")
    a.e(f"buffer_load_dwordx2 {vr(KB,2)}, v{vKb0}, {sr(sKV,4)}, s{sOFF} offen{SC}")
    a.e(f"buffer_load_dwordx4 {vr(QA[1],4)}, v{vL16}, {sr(sWS,4)}, s{t0} offen offset:1280{SC}")
    a.e(f"buffer_load_dwordx2 {vr(QB[1],2)}, v{vT+2}, {sr(sWS,4)}, s{t0} offen offset:2304{SC}")
    a.e(f"buffer_load_dwordx4 {vr(V0,4)}, v{vV0}, {sr(sKV,4)}, s{sOFF} offen{SC}")
    a.e(f"buffer_load_dwordx4 {vr(V1,4)}, v{vV0}, {sr(sKV,4)}, s{sOFF} offen offset:{2*VP}{SC}")
    a.e(f"s_mul_i32 s{t1}, s{sG}, {RG}")
    a.e(f"v_add_u32 v{vKa}, s{t1}, v{vKa0}")
    a.e(f"v_add_u32 v{vKb}, s{t1}, v{vKb0}")
    a.e(f"v_add_u32 v{vV}, s{t1}, v{vV0}")
    for i in range(32):
        a.e(f"v_mov_b32 v{O[0]+i}, 0")
    a.e(f"s_mov_b32 s{sIT}, 0")
    a.e(f"s_mov_b32 s{sBM}, {hx((1 << 1) | (1 << 2) | (1 << 6) | (1 << 9))}")
    a.e("s_waitcnt vmcnt(4)")
    a.e(f"v_mfma_f32_32x32x16_bf16 {vr(S[0],16)}, {vr(KA,4)}, {vr(QA[0],4)}, 0")
    a.e(f"v_mfma_f32_32x32x8_bf16 {vr(S[0],16)}, {vr(KB,2)}, {vr(QB[0],2)}, {vr(S[0],16)}")
    a.e("s_waitcnt vmcnt(0)")
    a.e("s_nop 7")
    a.e("s_barrier")
    stamp(a, 1)

    def rdKa(t):
        return f"ds_read_b128 {vr(KA,4)}, v{vKa} offset:{KVT*t}"

    def rdKb(t):
        return f"ds_read_b64 {vr(KB,2)}, v{vKb} offset:{KVT*t}"

    def rdV(m, t):
        return f"ds_read_b128 {vr(V0 if m == 0 else V1,4)}, v{vV} offset:{KVT*t + 2*VP*m}"

    def item(x, lt, first=False, last=False):
        Sc, Sn = S[x], S[x ^ 1]

        def ex(lo):
            for i in range(lo, lo + 4):
                a.e(f"v_exp_f32 v{Sc+i}, v{Sc+i}")

        def cv(P, lo):
            a.e(f"v_cvt_pk_bf16_f32 v{P}, v{Sc+lo}, v{Sc+lo+1}")
            a.e(f"v_cvt_pk_bf16_f32 v{P+1}, v{Sc+lo+2}, v{Sc+lo+3}")

        doqk = not (last and x == 1)
        if x == 1 and doqk:
            a.e(f"s_waitcnt lgkmcnt({1 if first else 2})")
        if doqk:
            a.e(f"v_mfma_f32_32x32x16_bf16 {vr(Sn,16)}, {vr(KA,4)}, {vr(QA[x^1],4)}, 0")
        if x == 0 and not last:
            a.e(rdKa(lt + 1))
        ex(0)
        cv(P0, 0)
        if x == 1 and doqk:
            a.e(f"s_waitcnt lgkmcnt({0 if first else 1})")
        if doqk:
            a.e(f"v_mfma_f32_32x32x8_bf16 {vr(Sn,16)}, {vr(KB,2)}, {vr(QB[x^1],2)}, {vr(Sn,16)}")
        if x == 0 and not last:
            a.e(rdKb(lt + 1))
        ex(4)
        cv(P0 + 2, 4)
        if not (first and x == 0):
            if x == 1 and not first:
                a.e("s_waitcnt lgkmcnt(0)")
            a.e(f"v_mfma_f32_32x32x16_bf16 {vr(O[x^1],16)}, {vr(V1,4)}, {vr(P1,4)}, {vr(O[x^1],16)}")
            if x == 0:
                a.e(rdV(1, lt))
        ex(8)
        cv(P1, 8)
        if x == 0 and not first:
            a.e(f"s_waitcnt lgkmcnt({1 if last else 3})")
        a.e(f"v_mfma_f32_32x32x16_bf16 {vr(O[x],16)}, {vr(V0,4)}, {vr(P0,4)}, {vr(O[x],16)}")
        if x == 1 and not last:
            a.e(rdV(0, lt + 1))
        ex(12)
        cv(P1 + 2, 12)

    def item_b(x, lt, first=False, last=False):
        Sc, Sn = S[x], S[x ^ 1]
        doqk = not (last and x == 1)
        dopv = not (first and x == 0)
        G = int(os.environ.get("K2G", "4"))
        ms = []
        if doqk:
            m = []
            if x == 1:
                m.append(f"s_waitcnt lgkmcnt({1 if first else 3})")
            m.append(f"v_mfma_f32_32x32x16_bf16 {vr(Sn,16)}, {vr(KA,4)}, {vr(QA[x^1],4)}, 0")
            if x == 0 and not last:
                m.append(rdKa(lt + 1))
            ms.append(m)
            m = []
            if x == 1:
                m.append(f"s_waitcnt lgkmcnt({0 if first else 2})")
            m.append(f"v_mfma_f32_32x32x8_bf16 {vr(Sn,16)}, {vr(KB,2)}, {vr(QB[x^1],2)}, {vr(Sn,16)}")
            if x == 0 and not last:
                m.append(rdKb(lt + 1))
            ms.append(m)
        else:
            ms.append(["s_nop 1"])
        if dopv:
            m = []
            if x == 1 and not first:
                m.append("s_waitcnt lgkmcnt(1)")
            m.append(f"v_mfma_f32_32x32x16_bf16 {vr(O[x^1],16)}, {vr(V0,4)}, {vr(PP[x^1],4)}, {vr(O[x^1],16)}")
            if x == 0:
                m.append(rdV(0, lt))
            ms.append(m)
            m = []
            if x == 1 and not first:
                m.append("s_waitcnt lgkmcnt(0)")
            m.append(f"v_mfma_f32_32x32x16_bf16 {vr(O[x^1],16)}, {vr(V1,4)}, {vr(PP[x^1]+4,4)}, {vr(O[x^1],16)}")
            if x == 0:
                m.append(rdV(1, lt))
            ms.append(m)
        vs = []
        for g in range(4):
            v = [f"v_exp_f32 v{Sc+4*g+i}, v{Sc+4*g+i}" for i in range(4)]
            v.append(f"v_cvt_pk_bf16_f32 v{PP[x]+2*g}, v{Sc+4*g}, v{Sc+4*g+1}")
            v.append(f"v_cvt_pk_bf16_f32 v{PP[x]+2*g+1}, v{Sc+4*g+2}, v{Sc+4*g+3}")
            vs.append(v)
        mi = vi = 0
        while mi < len(ms) or vi < len(vs):
            for _ in range(G):
                if mi < len(ms):
                    for ins in ms[mi]:
                        a.e(ins)
                    mi += 1
            for _ in range(G):
                if vi < len(vs):
                    for ins in vs[vi]:
                        a.e(ins)
                    vi += 1

    BUNCH = "b" in X2
    PP = [P0, 128]
    if BUNCH:
        item = item_b
    a.e("s_setprio 2")
    item(0, -1, first=True)
    item(1, -1, first=True)
    a.raw(".p2align 6")
    a.lab("K2_LOOP")
    a.e(f"s_bitcmp1_b32 s{sBM}, s{sIT}")
    a.e("s_cbranch_scc1 K2_BAR")
    a.lab("K2_BODY")
    NT = 3
    for t in range(NT):
        for x in range(2):
            if "p" in X2:
                if 2 * t + x == 0:
                    a.e("s_setprio 2")
                if 2 * t + x == NT:
                    a.e("s_setprio 1")
            else:
                a.e(f"s_setprio {2 - x}")
            item(x, t)
    a.e(f"v_add_u32 v{vKa}, {KVT*NT}, v{vKa}")
    a.e(f"v_add_u32 v{vKb}, {KVT*NT}, v{vKb}")
    a.e(f"v_add_u32 v{vV}, {KVT*NT}, v{vV}")
    a.e(f"s_add_u32 s{sIT}, s{sIT}, 1")
    a.e(f"s_cmp_lt_u32 s{sIT}, 10")
    a.e("s_cbranch_scc1 K2_LOOP")
    item(0, 0, last=True)
    item(1, 0, last=True)
    stamp(a, 3)
    a.e("s_nop 1")
    if BUNCH:
        a.e(f"v_mfma_f32_32x32x16_bf16 {vr(O[1],16)}, {vr(V0,4)}, {vr(PP[1],4)}, {vr(O[1],16)}")
        a.e(f"v_mfma_f32_32x32x16_bf16 {vr(O[1],16)}, {vr(V1,4)}, {vr(PP[1]+4,4)}, {vr(O[1],16)}")
    else:
        a.e(f"v_mfma_f32_32x32x16_bf16 {vr(O[1],16)}, {vr(V1,4)}, {vr(P1,4)}, {vr(O[1],16)}")
    a.e(f"s_and_b32 s{t2}, s{sW}, 3")
    a.e(f"s_lshl_b32 s{t2}, s{t2}, 12")
    a.e(f"s_add_u32 s{t2}, s{t2}, 53248")
    a.e(f"s_mul_i32 s{t0}, s{sG}, {RG}")
    a.e(f"s_add_u32 s{t0}, s{t0}, s{t2}")
    a.e(f"s_xor_b32 s{t1}, s{sG}, 1")
    a.e(f"s_mul_i32 s{t1}, s{t1}, {RG}")
    a.e(f"s_add_u32 s{t1}, s{t1}, s{t2}")
    a.e(f"v_add_u32 v{vT}, s{t0}, v{vL16}")
    a.e(f"v_add_u32 v{vT+1}, s{t1}, v{vL16}")
    a.e(f"s_add_u32 s{sQT}, s{sQT}, s{sG}")
    a.e(f"s_cmp_eq_u32 s{sG}, 1")
    a.e("s_cbranch_scc1 K2_X1")
    a.e("s_nop 3")
    for q in range(4):
        a.e(f"ds_write_b128 v{vT}, {vr(O[1]+4*q,4)} offset:{1024*q}")
    a.e("s_branch K2_X2")
    a.lab("K2_X1")
    for q in range(4):
        a.e(f"ds_write_b128 v{vT}, {vr(O[0]+4*q,4)} offset:{1024*q}")
    a.e("s_nop 1")
    for i in range(16):
        a.e(f"v_mov_b32 v{O[0]+i}, v{O[1]+i}")
    for i in range(4):
        a.e(f"v_mov_b32 v{QA[0]+i}, v{QA[1]+i}")
    for i in range(2):
        a.e(f"v_mov_b32 v{QB[0]+i}, v{QB[1]+i}")
    a.lab("K2_X2")
    OO = O[0]
    sS0, sS1 = 34, 35
    a.e(f"s_lshr_b32 s{t0}, s{sH}, 1")
    a.e(f"s_mul_i32 s{t0}, s{t0}, 5")
    a.e(f"s_and_b32 s{t1}, s{sH}, 1")
    a.e(f"s_lshl_b32 s{t2}, s{t1}, 1")
    a.e(f"s_add_u32 s{t2}, s{t2}, s{t0}")
    a.e(f"s_lshl_b32 s{t2}, s{t2}, 15")
    a.e(f"s_add_u32 s{sS0}, s{t2}, {hx(AB_OFF)}")
    a.e(f"s_add_u32 s{t0}, s{t0}, 4")
    a.e(f"s_lshl_b32 s{t0}, s{t0}, 15")
    a.e(f"s_lshl_b32 s{t1}, s{t1}, 3")
    a.e(f"s_add_u32 s{t0}, s{t0}, s{t1}")
    a.e(f"s_add_u32 s{sS1}, s{t0}, {hx(AB_OFF)}")
    a.e(f"s_lshl_b32 s{t3}, s{sQT}, 9")
    vSA0, vSA1 = 56, 57
    a.e(f"v_and_b32 v{vT+2}, 31, v{vLANE}")
    a.e(f"v_lshlrev_b32 v{vT+2}, 4, v{vT+2}")
    a.e(f"v_add_u32 v{vT+2}, s{t3}, v{vT+2}")
    a.e(f"v_lshrrev_b32 v{vT+3}, 5, v{vLANE}")
    a.e(f"v_lshl_add_u32 v{vSA0}, v{vT+3}, 15, v{vT+2}")
    a.e(f"v_lshl_add_u32 v{vSA1}, v{vT+3}, 30, v{vT+2}")
    a.e("s_waitcnt lgkmcnt(0)")
    a.e("s_barrier")
    for q in range(4):
        a.e(f"ds_read_b128 {vr(S[0]+4*q,4)}, v{vT+1} offset:{1024*q}")
    a.e(f"v_mov_b32 v{vT+3}, {hx(f32(2.0**-60))}")
    a.e(f"v_mov_b32 v{vT+4}, {hx(f32(2.0**100))}")
    a.e(f"v_mov_b32 v{vT+5}, {hx(f32(2.0**120))}")
    a.e("s_waitcnt lgkmcnt(0)")
    for i in range(13):
        a.e(f"v_add_f32 v{OO+i}, v{OO+i}, v{S[0]+i}")
    a.e(f"v_max3_f32 v{vT+1}, abs(v{OO}), abs(v{OO+1}), abs(v{OO+2})")
    for i in range(3, 11, 2):
        a.e(f"v_max3_f32 v{vT+1}, abs(v{OO+i}), abs(v{OO+i+1}), v{vT+1}")
    a.e(f"v_max_f32 v{vT+1}, abs(v{OO+11}), v{vT+1}")
    a.e(f"v_add_f32 v{vT+2}, v{OO}, v{OO+1}")
    for i in range(2, 12):
        a.e(f"v_add_f32 v{vT+2}, v{vT+2}, v{OO+i}")
    a.e(f"v_cmp_gt_f32 {sr(t0,2)}, v{OO+12}, v{vT+3}")
    a.e(f"v_cmp_lt_f32 {sr(t2,2)}, v{OO+12}, v{vT+4}")
    a.e(f"v_cmp_lt_f32 vcc, v{vT+1}, v{vT+5}")
    a.e("s_nop 1")
    a.e(f"s_and_b64 {sr(t0,2)}, {sr(t0,2)}, {sr(t2,2)}")
    a.e(f"s_and_b64 {sr(t0,2)}, {sr(t0,2)}, vcc")
    a.e(f"v_cmp_o_f32 vcc, v{vT+2}, v{vT+2}")
    a.e("s_nop 1")
    a.e(f"s_and_b64 {sr(t0,2)}, {sr(t0,2)}, vcc")
    a.e(f"s_cmp_eq_u64 {sr(t0,2)}, -1")
    a.e("s_cbranch_scc0 K2_SLOW")
    a.lab("K2_FIN")
    a.e(f"v_rcp_f32 v{vT}, v{OO+12}")
    a.e("s_nop 0")
    for i in range(12):
        a.e(f"v_mul_f32 v{OO+i}, v{OO+i}, v{vT}")
    for i in range(6):
        a.e(f"v_cvt_pk_bf16_f32 v{OO+i}, v{OO+2*i}, v{OO+2*i+1}")
    sc = " sc1" if FUSE else ""
    a.e(f"buffer_store_dwordx4 {vr(OO,4)}, v{vSA0}, {sr(sWS,4)}, s{sS0} offen{sc}")
    a.e(f"buffer_store_dwordx2 {vr(OO+4,2)}, v{vSA1}, {sr(sWS,4)}, s{sS1} offen{sc}")
    if FUSE:
        a.e("s_waitcnt vmcnt(0)")
        a.e("s_barrier")
    k2flush()
    a.lab("K2_END")
    a.e("s_endpgm")
    a.lab("K2_BAR")
    a.e("s_barrier")
    stamp(a, 2)
    a.e("s_branch K2_BODY")
    a.lab("K2_SLOW")
    vM = 58
    Sc = S[0]
    for ps in range(2):
        if ps == 0:
            a.e(f"v_mov_b32 v{vM}, 0xff800000")
        else:
            for i in range(16):
                a.e(f"v_mov_b32 v{OO+i}, 0")
        a.e(f"s_mov_b32 s{sOFF}, 0")
        a.lab(f"K2_SL{ps}")
        a.e(f"buffer_load_dwordx4 {vr(KA,4)}, v{vKa0}, {sr(sKV,4)}, s{sOFF} offen{SC}")
        a.e(f"buffer_load_dwordx2 {vr(KB,2)}, v{vKb0}, {sr(sKV,4)}, s{sOFF} offen{SC}")
        if ps == 1:
            a.e(f"buffer_load_dwordx4 {vr(V0,4)}, v{vV0}, {sr(sKV,4)}, s{sOFF} offen{SC}")
            a.e(f"buffer_load_dwordx4 {vr(V1,4)}, v{vV0}, {sr(sKV,4)}, s{sOFF} offen offset:{2*VP}{SC}")
        a.e("s_waitcnt vmcnt(0)")
        a.e(f"v_mfma_f32_32x32x16_bf16 {vr(Sc,16)}, {vr(KA,4)}, {vr(QA[0],4)}, 0")
        a.e(f"v_mfma_f32_32x32x8_bf16 {vr(Sc,16)}, {vr(KB,2)}, {vr(QB[0],2)}, {vr(Sc,16)}")
        a.e("s_nop 15")
        a.e("s_nop 3")
        if ps == 0:
            for i in range(0, 16, 2):
                a.e(f"v_max3_f32 v{vM}, v{Sc+i}, v{Sc+i+1}, v{vM}")
        else:
            for i in range(16):
                a.e(f"v_sub_f32 v{Sc+i}, v{Sc+i}, v{vM}")
            for i in range(16):
                a.e(f"v_exp_f32 v{Sc+i}, v{Sc+i}")
            a.e("s_nop 0")
            for i in range(8):
                a.e(f"v_cvt_pk_bf16_f32 v{P0+i}, v{Sc+2*i}, v{Sc+2*i+1}")
            a.e("s_nop 1")
            a.e(f"v_mfma_f32_32x32x16_bf16 {vr(OO,16)}, {vr(V0,4)}, {vr(P0,4)}, {vr(OO,16)}")
            a.e(f"v_mfma_f32_32x32x16_bf16 {vr(OO,16)}, {vr(V1,4)}, {vr(P1,4)}, {vr(OO,16)}")
            a.e("s_nop 7")
        a.e(f"s_add_u32 s{sOFF}, s{sOFF}, {KVT}")
        a.e(f"s_cmp_lt_u32 s{sOFF}, {KVH}")
        a.e(f"s_cbranch_scc1 K2_SL{ps}")
        if ps == 0:
            a.e(f"v_mov_b32 v{vT+4}, v{vM}")
            a.e("s_nop 1")
            a.e(f"v_permlane32_swap_b32 v{vM}, v{vT+4}")
            a.e(f"v_max_f32 v{vM}, v{vM}, v{vT+4}")
    a.e("s_nop 15")
    a.e("s_nop 3")
    a.e("s_branch K2_FIN")
    return name, NV, 102 if DIAG else 80, (256, 768, K2_LDS)


K3_LDS = 102400


def gen_k3(a):
    name = "k3_out_kernel"
    kernel_header(a, name)
    sA, sWT, sY, sO = 12, 16, 20, 24
    sW, sRB, sCB, sOW, sM = 32, 33, 34, 35, 36
    t0, t1, t2, t3 = 38, 39, 40, 41
    vLANE, vOA, vOW, vYO, vOO, vRD = 1, 2, 3, 4, 5, 6
    vT = 8
    ACC = 12
    FB = 32
    FA = 72
    NV = 152
    k3flush = lambda: (stamp(a, 4), stamp_flush(a, 2, 8, sW, "s6", "s7", 8, 2))

    a.e("s_cmp_ge_u32 s2, 256")
    a.e("s_cbranch_scc1 K3_END")
    stamp(a, 0)
    a.e("s_load_dwordx2 s[4:5], s[0:1], 64")
    a.e("s_load_dwordx2 s[6:7], s[0:1], 80")
    a.e(f"v_and_b32 v{vLANE}, 63, v0")
    a.e(f"v_lshrrev_b32 v{vT}, 6, v0")
    a.e(f"s_and_b32 s{t0}, s2, 7")
    a.e(f"v_readfirstlane_b32 s{sW}, v{vT}")
    a.e(f"s_lshr_b32 s{t1}, s2, 3")
    a.e(f"s_lshl_b32 s{t0}, s{t0}, 2")
    a.e(f"s_and_b32 s{t2}, s{t1}, 3")
    a.e(f"s_add_u32 s{sRB}, s{t0}, s{t2}")
    a.e(f"s_lshr_b32 s{sCB}, s{t1}, 2")
    a.e(f"v_and_b32 v{vT}, 15, v{vLANE}")
    a.e(f"v_lshrrev_b32 v{vT+1}, 4, v{vLANE}")
    a.e(f"s_cmp_ge_u32 s{sW}, 4")
    a.e("s_cbranch_scc1 K3_COMP")
    a.e(f"s_mul_i32 s{t0}, s{sCB}, 80")
    a.e(f"v_add_u32 v{vOW}, s{t0}, v{vT}")
    a.e(f"v_lshlrev_b32 v{vOW}, 4, v{vOW}")
    a.e(f"v_mul_u32_u24 v{vT+2}, 10240, v{vT+1}")
    a.e(f"v_add_u32 v{vOW}, v{vOW}, v{vT+2}")
    a.e(f"s_mul_i32 s{sOW}, s{sW}, 40960")
    a.e(f"s_mul_i32 s{sM}, s{sW}, 5120")
    a.e("s_waitcnt lgkmcnt(0)")
    stamp(a, 5)
    srd_off(a, sWT, "s6", "s7", WT_OFF, 80 * 10240)
    for r in range(5):
        for q in range(5):
            a.e(f"s_add_u32 m0, s{sM}, {r*20480 + q*768}")
            a.e("s_nop 0")
            a.e(f"buffer_load_dwordx4 v{vOW}, {sr(sWT,4)}, s{sOW} offen offset:{256*q} lds")
        a.e(f"s_add_u32 s{sOW}, s{sOW}, {4*40960}")
        if r >= 2:
            a.e(f"s_waitcnt vmcnt(10)")
            a.e("s_barrier")
    a.e(f"s_waitcnt vmcnt(5)")
    a.e("s_barrier")
    a.e(f"s_waitcnt vmcnt(0)")
    a.e("s_barrier")
    if DIAG:
        stamp(a, 1); stamp(a, 2); stamp(a, 3)
        k3flush()
    a.e("s_endpgm")
    a.lab("K3_COMP")
    a.e(f"s_sub_u32 s{t3}, s{sW}, 4")
    a.e(f"s_lshl_b32 s{t0}, s{sRB}, 6")
    a.e(f"s_lshl_b32 s{t1}, s{t3}, 4")
    a.e(f"s_add_u32 s{t0}, s{t0}, s{t1}")
    a.e(f"v_add_u32 v{vT+2}, s{t0}, v{vT}")
    a.e(f"v_lshlrev_b32 v{vOA}, 4, v{vT+2}")
    a.e(f"v_lshl_add_u32 v{vOA}, v{vT+1}, 15, v{vOA}")
    a.e(f"s_lshl_b32 s{t0}, s{sRB}, 3")
    a.e(f"s_add_u32 s{t0}, s{t0}, s{sCB}")
    a.e(f"s_mul_i32 s{t0}, s{t0}, 20480")
    a.e(f"s_mul_i32 s{t1}, s{t3}, 5120")
    a.e(f"s_add_u32 s{t0}, s{t0}, s{t1}")
    a.e(f"v_lshlrev_b32 v{vRD}, 4, v{vLANE}")
    a.e(f"v_add_u32 v{vYO}, s{t0}, v{vRD}")
    a.e(f"s_mul_i32 s{t0}, s{sCB}, 160")
    a.e(f"v_mul_u32_u24 v{vOO}, 1280, v{vT+2}")
    a.e(f"v_lshl_add_u32 v{vOO}, v{vT+1}, 3, v{vOO}")
    a.e(f"v_add_u32 v{vOO}, s{t0}, v{vOO}")
    a.e("s_waitcnt lgkmcnt(0)")
    stamp(a, 5)
    srd_off(a, sA, "s6", "s7", AB_OFF, 80 * 32768)
    srd_off(a, sY, "s6", "s7", Y_OFF, Y_SIZE)
    srd(a, sO, "s4", "s5", 2048 * 640 * 2)
    a.e(f"s_mov_b32 s{t0}, 0")
    a.e(f"s_movk_i32 s{t1}, 4096")
    def ldA(r):
        for ks in range(4 * r, 4 * r + 4):
            a.e(f"buffer_load_dwordx4 {vr(FA+4*ks,4)}, v{vOA}, {sr(sA,4)}, s{t0} offen")
            a.e(f"s_add_u32 s{t0}, s{t0}, {4*32768}")

    ldA(0)
    for t in range(5):
        so, off = ("0", 1024 * t) if t < 4 else (f"s{t1}", 0)
        a.e(f"buffer_load_dwordx4 {vr(ACC+4*t,4)}, v{vYO}, {sr(sY,4)}, {so} offen offset:{off}")
    ldA(1)
    ldA(2)
    a.e(f"v_add_u32 v{vT}, 51200, v{vRD}")

    def rdB(ks):
        base, off = (vRD, ks * 5120) if ks < 10 else (vT, (ks - 10) * 5120)
        return [f"ds_read_b128 {vr(FB+20*(ks&1)+4*t,4)}, v{base} offset:{off+1024*t}" for t in range(5)]

    for r in range(5):
        a.e("s_barrier")
        if r == 0:
            stamp(a, 1)
        for ins in rdB(4 * r):
            a.e(ins)
        if r < 2:
            ldA(r + 3)
        a.e(f"s_waitcnt vmcnt({[12, 12, 8, 4, 0][r]})")
        for k in range(4):
            ks = 4 * r + k
            if k < 3:
                for ins in rdB(ks + 1):
                    a.e(ins)
                a.e("s_waitcnt lgkmcnt(5)")
            else:
                a.e("s_waitcnt lgkmcnt(0)")
            for t in range(5):
                a.e(f"v_mfma_f32_16x16x32_bf16 {vr(ACC+4*t,4)}, {vr(FB+20*(ks&1)+4*t,4)}, {vr(FA+4*ks,4)}, {vr(ACC+4*t,4)}")
    stamp(a, 2)
    stamp(a, 3)
    a.e("s_nop 7")
    for t in range(5):
        A = ACC + 4 * t
        a.e(f"v_cvt_pk_bf16_f32 v{A}, v{A}, v{A+1}")
        a.e(f"v_cvt_pk_bf16_f32 v{A+1}, v{A+2}, v{A+3}")
        a.e(f"buffer_store_dwordx2 {vr(A,2)}, v{vOO}, {sr(sO,4)}, 0 offen offset:{32*t}")
    k3flush()
    a.lab("K3_END")
    a.e("s_endpgm")
    return name, NV, 102 if DIAG else 48, (256, 512, K3_LDS)


HEADER = """; Kernarg layout for this problem (88 bytes, ptrs only, base s[0:1]):
"""


def main(out_path):
    a = Asm()
    ks = []
    gens = (gen_k1, gen_k2, gen_k3) if "u" in os.environ.get("K2X", "") else (gen_k1, gen_k2)
    for g in gens:
        ks.append(g(a))
    s = HEADER
    if ONE:
        ks = [(ks[0][0], 168, 102 if DIAG else 80, (256, 768, K2_LDS))]
        if os.environ.get("LIST"):
            s += f"; @launch kernel={ks[0][0]} grid=(256,1,1) block=(768,1,1) lds={K2_LDS}\n"
        else:
            s += f"; @launch grid=(256,1,1) block=(768,1,1) lds={K2_LDS}\n"
    else:
        for name, nv, ns, (gx, bx, lds) in ks:
            s += f"; @launch kernel={name} grid=({gx},1,1) block=({bx},1,1) lds={lds}\n"
    s += '.amdgcn_target "amdgcn-amd-amdhsa--gfx950"\n.text\n'
    s += a.text()
    s += "CODE_END:\n    s_endpgm\n"
    s += '.section .rodata,"a"\n'
    for name, nv, ns, _ in ks:
        s += kd(name, nv, ns)
    open(out_path, "w").write(s)


if __name__ == "__main__":
    main(sys.argv[1] if len(sys.argv) > 1 else f"cdna_kernels/{NAME}.s")
```

```python
import struct, math, sys

NAME = "parallel_sum__mha_block__dense_activation_gelu__prompt"

QB_OFF = 0
KV_OFF = 0x280000
KVT = 2624
KVH = 64 * KVT
VP = 336
AB_OFF = 0x7A0000
WT_OFF = 0x10E0000
assert KV_OFF + 32 * KVH == AB_OFF
FL_OFF = WT_OFF + 296 * 10240
FQ_REL = 1024
FH_REL = 9216
FL_SIZE = 12288
WS_END = FL_OFF + FL_SIZE
assert FL_OFF % 128 == 0
AB_SIZE = 296 * 32768
WT_SIZE = 296 * 10240
assert AB_OFF + AB_SIZE == WT_OFF


def f32(x):
    return struct.unpack("<I", struct.pack("<f", x))[0]


def hx(x):
    return "0x%08x" % (x & 0xFFFFFFFF)


class Asm:
    def __init__(self):
        self.lines = []

    def e(self, s):
        if s.startswith("s_cselect_b32"):
            ops = [x.strip() for x in s[len("s_cselect_b32"):].split(",")]

            def is_lit(x):
                try:
                    v = int(x, 0)
                except ValueError:
                    return False
                return not (-16 <= v <= 64)
            if is_lit(ops[1]) and is_lit(ops[2]):
                self.lines.append(f"    s_mov_b32 {ops[0]}, {ops[2]}")
                s = f"s_cselect_b32 {ops[0]}, {ops[1]}, {ops[0]}"
        self.lines.append("    " + s)

    def lab(self, s):
        self.lines.append(s + ":")

    def c(self, s):
        self.lines.append("    ; " + s)

    def raw(self, s):
        self.lines.append(s)

    def text(self):
        return "\n".join(self.lines) + "\n"


def vr(a, n):
    return f"v[{a}:{a+n-1}]" if n > 1 else f"v{a}"


def sr(a, n):
    return f"s[{a}:{a+n-1}]" if n > 1 else f"s{a}"


def kernel_header(a, name):
    a.raw(".p2align 8")
    a.raw(f".globl {name}")
    a.raw(f".type {name},@function")
    a.lab(name)


def kd(name, nv, ns):
    acc = (nv + 3) // 4 * 4
    return f""".p2align 6
.amdhsa_kernel {name}
  .amdhsa_next_free_vgpr {nv}
  .amdhsa_next_free_sgpr {ns}
  .amdhsa_accum_offset {acc}
  .amdhsa_group_segment_fixed_size 0
  .amdhsa_kernarg_size 88
  .amdhsa_user_sgpr_count 2
  .amdhsa_user_sgpr_kernarg_segment_ptr 1
  .amdhsa_system_sgpr_workgroup_id_x 1
.end_amdhsa_kernel
"""


def srd(a, d, lo, hi, size):
    a.e(f"s_mov_b32 s{d}, {lo}")
    a.e(f"s_mov_b32 s{d+1}, {hi}")
    a.e(f"s_mov_b32 s{d+2}, {hx(size)}")
    a.e(f"s_mov_b32 s{d+3}, 0x00020000")


def srd_off(a, d, lo, hi, off, size):
    a.e(f"s_add_u32 s{d}, {lo}, {hx(off)}")
    a.e(f"s_addc_u32 s{d+1}, {hi}, 0")
    a.e(f"s_mov_b32 s{d+2}, {hx(size)}")
    a.e(f"s_mov_b32 s{d+3}, 0x00020000")


def round_bf16_inplace(a, v, vtmp=None):
    a.e(f"v_cvt_pk_bf16_f32 v{v}, v{v}, v{v}")
    a.e(f"v_lshlrev_b32 v{v}, 16, v{v}")


OOB = 0x40000000


def code_prefetch(a, tag, start, end, sp, s_chunk, vlane, vtmp, vdst):
    a.e(f"s_getpc_b64 s[{sp}:{sp+1}]")
    a.lab(f"PCH_{tag}")
    a.e(f"s_sub_u32 s{sp}, s{sp}, PCH_{tag}-{start}")
    a.e(f"s_subb_u32 s{sp+1}, s{sp+1}, 0")
    a.e(f"s_lshl_b32 s{s_chunk}, s{s_chunk}, 13")
    a.e(f"v_lshlrev_b32 v{vtmp}, 7, v{vlane}")
    a.e(f"v_add_u32 v{vtmp}, s{s_chunk}, v{vtmp}")
    a.e(f"v_cmp_gt_u32 vcc, {end}-{start}, v{vtmp}")
    a.e(f"s_and_saveexec_b64 s[{sp+2}:{sp+3}], vcc")
    a.e(f"s_cbranch_execz PCS_{tag}")
    a.e(f"global_load_dword v{vdst}, v{vtmp}, s[{sp}:{sp+1}]")
    a.lab(f"PCS_{tag}")
    a.e(f"s_mov_b64 exec, s[{sp+2}:{sp+3}]")
import os
DIAG = int(os.environ.get("DIAG", "0"))
ONE = int(os.environ.get("ONE", "0"))
SC = " sc1" if ONE else ""
WB = os.environ.get("WB", "")
SCQ = "" if "Q" in WB else SC
SCF = "" if "F" in WB else SC
SCT = "" if "T" in WB else SC
K1_SYN = 153600
POLL_MAX = 1 << 21
DIAG_OFF = 0x2000000
SD = 84


def stamp(a, i):
    if DIAG:
        a.e(f"s_memtime s[{SD+2*i}:{SD+2*i+1}]")
        if i == 0:
            a.e(f"s_memrealtime s[{SD+12}:{SD+13}]")
        if i == 4:
            a.e(f"s_memrealtime s[{SD+14}:{SD+15}]")


def stamp_flush(a, kidx, wpw, sW, ws_lo, ws_hi, n, vtmp):
    if not DIAG:
        return
    a.e("s_waitcnt lgkmcnt(0)")
    a.e(f"s_add_u32 s80, {ws_lo}, {hx(DIAG_OFF + kidx*4096*64)}")
    a.e(f"s_addc_u32 s81, {ws_hi}, 0")
    a.e(f"s_mov_b32 s82, {hx(4096*64)}")
    a.e("s_mov_b32 s83, 0x00020000")
    a.e(f"s_mul_i32 s100, s2, {wpw}")
    a.e(f"s_add_u32 s100, s100, s{sW}")
    a.e("s_lshl_b32 s100, s100, 6")
    a.e(f"v_mov_b32 v{vtmp}, 0")
    for i in range(n):
        a.e(f"v_mov_b32 v{vtmp+1}, s{SD+2*i}")
        a.e(f"buffer_store_dword v{vtmp+1}, v{vtmp}, s[80:83], s100 offen offset:{4*i}")

K1_BH = 8 * 1056
K1_SLOT = 16384 + 4 * K1_BH
K1_NS = 3
K1_SCR = K1_SLOT * K1_NS
K1_LDS = K1_SCR + 2048 + 256
QSCALE = math.log2(math.e) / math.sqrt(20.0)


def gen_k1(a):
    name = NAME + "_kernel" if ONE else "k1_gemm1_kernel"
    kernel_header(a, name)
    X = os.environ.get("K1X", "")
    sX, sB0, sB1, sWS, sT, sBI = 20, 24, 28, 32, 36, 40
    sW, sMH, sHALF, sRB, sCB, sNQ, sT0 = 44, 45, 46, 47, 48, 49, 50
    sOA, sOB0, sOB1 = 51, 52, 53
    sWA, sWB, sRD, sTS, sIT, sDA, sDB = 54, 55, 56, 57, 58, 59, 60
    t0, t1, t2, t3, t4, t5, t6, t7 = 62, 63, 64, 65, 66, 67, 68, 69
    sC1 = 70
    sTYP = 73
    sOA2, sOB0b, sOB1b = 76, 77, 78
    vLANE = 1
    vA0e, vA0o, vB0 = 2, 3, 4
    vAe, vAo, vB = 5, 6, 7
    vS = 8
    vSA = 12
    vONES = 20
    vCS = 24
    vU = 32
    FA = [40, 72]
    vT = 72
    ACC = 104
    NV = 168

    def acc(j, mt):
        return ACC + (j * 4 + mt) * 4

    def fa(s, mt):
        return FA[s] + mt * 4

    def fb(s, j):
        return FA[s] + 16 + j * 4

    def emit(lst):
        for ins in lst:
            a.e(ins)

    k1flush = lambda: (stamp(a, 4), stamp_flush(a, 0, 12, sW, "s18", "s19", 8, 2))

    def zpoll(tag, sD, vz, vd):
        srd(a, sD, "s10", "s11", 256)
        a.e(f"v_mov_b32 v{vz}, 0")
        a.e(f"s_mov_b32 s{t7}, 0")
        a.lab(f"ZP_{tag}")
        a.e(f"buffer_load_dword v{vd}, v{vz}, {sr(sD,4)}, 0 offen sc1")
        a.e(f"s_add_u32 s{t7}, s{t7}, 1")
        a.e("s_waitcnt vmcnt(0)")
        a.e(f"v_readfirstlane_b32 s{t6}, v{vd}")
        a.e(f"s_cmp_ge_u32 s{t7}, {POLL_MAX}")
        a.e(f"s_cbranch_scc1 ZD_{tag}")
        a.e(f"s_cmp_eq_u32 s{t6}, 0")
        a.e(f"s_cbranch_scc1 ZP_{tag}")
        a.lab(f"ZD_{tag}")

    def finish(kind):
        k1flush()
        if not ONE:
            a.e("s_endpgm")
            return
        if kind == "F":
            a.e("s_branch K1_SIGF")
        else:
            a.e("s_branch K1_SIGQ")

    def finalize(s1, s2, nm, rs):
        a.e(f"v_mul_f32 v{s1}, {hx(f32(1.0/640))}, v{s1}")
        a.e(f"v_mul_f32 v{s2}, {hx(f32(1.0/640))}, v{s2}")
        a.e(f"v_fma_f32 v{s2}, -v{s1}, v{s1}, v{s2}")
        a.e(f"v_max_f32 v{s2}, 0, v{s2}")
        round_bf16_inplace(a, s2)
        a.e(f"v_add_f32 v{s2}, {hx(f32(1e-5))}, v{s2}")
        round_bf16_inplace(a, s2)
        a.e(f"v_sqrt_f32 v{s2}, v{s2}")
        round_bf16_inplace(a, s1)
        round_bf16_inplace(a, s2)
        a.e(f"v_rcp_f32 v{rs}, v{s2}")
        a.e(f"v_sub_f32 v{nm}, 0, v{s1}")


    a.e("s_cmp_ge_u32 s2, 256")
    a.e("s_cbranch_scc1 K1_END")
    stamp(a, 0)
    a.e("s_load_dwordx4 s[4:7], s[0:1], 0")
    a.e("s_load_dwordx2 s[8:9], s[0:1], 16")
    a.e("s_load_dwordx4 s[12:15], s[0:1], 32")
    a.e("s_load_dwordx2 s[16:17], s[0:1], 48")
    a.e("s_load_dwordx2 s[18:19], s[0:1], 80")
    if ONE:
        a.e("s_load_dwordx2 s[10:11], s[0:1], 72")
    a.e(f"v_and_b32 v{vLANE}, 63, v0")
    a.e(f"v_lshrrev_b32 v{vT}, 6, v0")
    a.e(f"s_and_b32 s{t0}, s2, 7")
    a.e(f"v_readfirstlane_b32 s{sW}, v{vT}")
    a.e(f"s_lshr_b32 s{t1}, s2, 3")
    a.e(f"s_and_b32 s{t2}, s{t0}, 1")
    a.e(f"s_lshl_b32 s{t2}, s{t2}, 3")
    a.e(f"s_and_b32 s{t3}, s{t1}, 7")
    a.e(f"s_add_u32 s{sRB}, s{t2}, s{t3}")
    a.e(f"s_lshr_b32 s{t2}, s{t0}, 1")
    a.e(f"s_lshl_b32 s{t2}, s{t2}, 2")
    a.e(f"s_lshr_b32 s{t3}, s{t1}, 3")
    a.e(f"s_add_u32 s{sCB}, s{t2}, s{t3}")
    a.e(f"s_sub_u32 s{sCB}, 15, s{sCB}")
    a.e(f"s_cmp_eq_u32 s{sCB}, 15")
    a.e("s_cbranch_scc1 K1_TRANS")
    a.e(f"s_lshl_b32 s{sT0}, s{sCB}, 3")
    a.e(f"s_min_u32 s{sT0}, s{sT0}, 100")
    a.e(f"s_cmp_ge_u32 s{sW}, 4")
    a.e("s_cbranch_scc1 K1_COMP")
    lA = [2, 3]
    lQ = [4, 5]
    lF = [6, 7]
    lBI = 8
    a.e(f"s_lshl_b32 s{t0}, s{sRB}, 7")
    a.e(f"s_lshl_b32 s{t1}, s{sW}, 4")
    a.e(f"s_add_u32 s{t0}, s{t0}, s{t1}")
    a.e(f"v_lshrrev_b32 v{vT}, 3, v{vLANE}")
    a.e(f"v_add_u32 v{vT}, s{t0}, v{vT}")
    a.e(f"v_lshrrev_b32 v{vT+1}, 1, v{vT}")
    a.e(f"v_xor_b32 v{vT+1}, v{vT+1}, v{vLANE}")
    a.e(f"v_and_b32 v{vT+1}, 7, v{vT+1}")
    a.e(f"v_mul_u32_u24 v{vT}, 1280, v{vT}")
    a.e(f"v_lshl_add_u32 v{lA[0]}, v{vT+1}, 4, v{vT}")
    a.e(f"v_xor_b32 v{vT+1}, 4, v{vT+1}")
    a.e(f"v_lshl_add_u32 v{lA[1]}, v{vT+1}, 4, v{vT}")
    a.e(f"v_add_u32 v{lA[1]}, {8*1280}, v{lA[1]}")
    a.e(f"s_lshl_b32 s{sDA}, s{sW}, 11")
    a.e(f"s_and_b32 s{t0}, s{sW}, 1")
    a.e(f"s_lshl_b32 s{t0}, s{t0}, 1")
    a.e(f"s_lshr_b32 s{t1}, s{sW}, 1")
    a.e(f"s_lshl_b32 s{t1}, s{t1}, 3")
    a.e(f"s_or_b32 s{t0}, s{t0}, s{t1}")
    a.e(f"v_bfe_u32 v{vT}, v{vLANE}, 4, 1")
    a.e(f"v_lshlrev_b32 v{vT}, 2, v{vT}")
    a.e(f"v_lshrrev_b32 v{vT+1}, 5, v{vLANE}")
    a.e(f"v_lshl_or_b32 v{vT}, v{vT+1}, 4, v{vT}")
    a.e(f"v_or_b32 v{vT}, s{t0}, v{vT}")
    a.e(f"v_and_b32 v{vT+1}, 15, v{vLANE}")
    a.e(f"v_lshlrev_b32 v{vT+1}, 4, v{vT+1}")
    a.e(f"s_lshl_b32 s{t2}, s{sCB}, 8")
    a.e(f"s_lshl_b32 s{t3}, s{sT0}, 5")
    a.e(f"v_mul_u32_u24 v{lQ[0]}, 3840, v{vT}")
    a.e(f"v_add3_u32 v{lQ[0]}, v{lQ[0]}, v{vT+1}, s{t2}")
    a.e(f"v_add_u32 v{lQ[1]}, 3840, v{lQ[0]}")
    a.e(f"v_mul_u32_u24 v{lF[0]}, 3456, v{vT}")
    a.e(f"v_add3_u32 v{lF[0]}, v{lF[0]}, v{vT+1}, s{t3}")
    a.e(f"v_add_u32 v{lF[1]}, 3456, v{lF[0]}")
    a.e(f"s_mul_i32 s{sDB}, s{sW}, 2112")
    a.e(f"s_add_u32 s{sDB}, s{sDB}, 16384")
    ROT = "R" not in X
    if ROT:
        RA, RB_ = int(os.environ.get("ROTA", "1")), int(os.environ.get("ROTB", "3"))
        a.e(f"s_and_b32 s{t0}, s{sRB}, 7")
        a.e(f"s_mul_i32 s{t0}, s{t0}, {RA}")
        a.e(f"s_min_u32 s{t1}, s{sCB}, 13")
        a.e(f"s_and_b32 s{t1}, s{t1}, 3")
        a.e(f"s_mul_i32 s{t1}, s{t1}, {RB_}")
        a.e(f"s_add_u32 s{t0}, s{t0}, s{t1}")
        a.e(f"s_mul_i32 s{t1}, s{t0}, 205")
        a.e(f"s_lshr_b32 s{t1}, s{t1}, 11")
        a.e(f"s_mul_i32 s{t1}, s{t1}, 10")
        a.e(f"s_sub_u32 s{t0}, s{t0}, s{t1}")
        a.e(f"s_lshl_b32 s{sOA}, s{t0}, 7")
        a.e(f"s_add_u32 s{sOA2}, s{sOA}, {64*1280}")
        a.e(f"s_mul_i32 s{sOB0}, s{t0}, {64*3840}")
        a.e(f"s_add_u32 s{sOB0b}, s{sOB0}, {32*3840}")
        a.e(f"s_mul_i32 s{sOB1}, s{t0}, {64*3456}")
        a.e(f"s_add_u32 s{sOB1b}, s{sOB1}, {32*3456}")
    else:
        a.e(f"s_mov_b32 s{sOA}, 0")
        a.e(f"s_mov_b32 s{sOA2}, {64*1280}")
        a.e(f"s_mov_b32 s{sOB0}, 0")
        a.e(f"s_mov_b32 s{sOB0b}, {32*3840}")
        a.e(f"s_mov_b32 s{sOB1}, 0")
        a.e(f"s_mov_b32 s{sOB1b}, {32*3456}")
    a.e(f"s_mov_b32 s{sWA}, s{sDA}")
    a.e(f"s_mov_b32 s{sWB}, s{sDB}")
    a.e("s_waitcnt lgkmcnt(0)")
    stamp(a, 5)
    srd(a, sX, "s4", "s5", 2048 * 640 * 2)
    srd(a, sB0, "s6", "s7", 640 * 1920 * 2)
    srd(a, sB1, "s12", "s13", 640 * 1728 * 2)

    lR0 = 10
    lR = 14
    lD = 20
    lS = 36
    lU = 40

    def stats_ops():
        va = []
        for r in range(16):
            src = lD + r
            lo, hi = lU + 2 * (r & 1), lU + 2 * (r & 1) + 1
            va.append(f"v_lshlrev_b32 v{lo}, 16, v{src}")
            va.append(f"v_and_b32 v{hi}, 0xffff0000, v{src}")
            va.append(f"v_add_f32 v{lS}, v{lS}, v{lo}")
            va.append(f"v_add_f32 v{lS+1}, v{lS+1}, v{hi}")
            va.append(f"v_fmac_f32 v{lS+2}, v{lo}, v{lo}")
            va.append(f"v_fmac_f32 v{lS+3}, v{hi}, v{hi}")
        return va

    def stats_reads():
        for i in range(4):
            a.e(f"v_add_u32 v{lR+i}, s{sRD}, v{lR0+i}")
        for i in range(4):
            a.e(f"ds_read_b128 {vr(lD+4*i,4)}, v{lR+i}")
        a.e(f"s_add_u32 s{sRD}, s{sRD}, {K1_SLOT}")
        a.e(f"s_cmp_eq_u32 s{sRD}, {K1_SCR}")
        a.e(f"s_cselect_b32 s{sRD}, 0, s{sRD}")

    def stage(with_stats=False, dma=True):
        spec = [(sWA, 0, lA, 1024, sX, sOA, 128),
                (sWA, 8192, lA, 1024, sX, sOA2, 128),
                (sWB, 0, lQ, 1056, sB0, sOB0, 64 * 3840),
                (sWB, 2 * K1_BH, lF, 1056, sB1, sOB1, 64 * 3456),
                (sWB, K1_BH, lQ, 1056, sB0, sOB0b, 64 * 3840),
                (sWB, 3 * K1_BH, lF, 1056, sB1, sOB1b, 64 * 3456)]
        va = stats_ops() if with_stats else []
        if with_stats:
            stats_reads()
        n = 0
        for (sD, dof, vO, d2, sR, sO, inc) in spec:
            for q in range(2):
                d = dof + q * d2
                if dma:
                    a.e(f"s_add_u32 m0, s{sD}, {d}" if d else f"s_mov_b32 m0, s{sD}")
                    a.e("s_nop 0")
                    a.e(f"buffer_load_dwordx4 v{vO[q]}, {sr(sR,4)}, s{sO} offen lds")
                n += 1
                if with_stats and n >= 2:
                    if n == 2:
                        a.e("s_waitcnt lgkmcnt(0)")
                    k = 9 if n < 12 else len(va)
                    for ins in va[:k]:
                        a.e(ins)
                    va = va[k:]
            if dma:
                a.e(f"s_add_u32 s{sO}, s{sO}, {inc}")
        if dma:
            a.e(f"s_add_u32 s{sWA}, s{sWA}, {K1_SLOT}")
            a.e(f"s_add_u32 s{sWB}, s{sWB}, {K1_SLOT}")
            a.e(f"s_cmp_ge_u32 s{sWA}, {K1_SCR}")
            a.e(f"s_cselect_b32 s{sWA}, s{sDA}, s{sWA}")
            a.e(f"s_cselect_b32 s{sWB}, s{sDB}, s{sWB}")
            if ROT:
                a.e(f"s_cmp_eq_u32 s{sOA}, 1280")
                a.e(f"s_cselect_b32 s{sOA}, 0, s{sOA}")
                a.e(f"s_cselect_b32 s{sOA2}, {64*1280}, s{sOA2}")
                a.e(f"s_cselect_b32 s{sOB0}, 0, s{sOB0}")
                a.e(f"s_cselect_b32 s{sOB0b}, {32*3840}, s{sOB0b}")
                a.e(f"s_cselect_b32 s{sOB1}, 0, s{sOB1}")
                a.e(f"s_cselect_b32 s{sOB1b}, {32*3456}, s{sOB1b}")

    stage()
    srd(a, sBI, "s14", "s15", 1728 * 2)
    a.e(f"v_lshlrev_b32 v{vT}, 2, v{vLANE}")
    a.e(f"buffer_load_dword v{lBI}, v{vT}, {sr(sBI,4)}, s{t3} offen")
    stage()
    S3 = "s" not in X
    if S3:
        stage()
    a.e(f"v_and_b32 v{vT+1}, 31, v{vLANE}")
    a.e(f"v_lshrrev_b32 v{vT+2}, 5, v{vLANE}")
    a.e(f"v_lshlrev_b32 v{vT+2}, 2, v{vT+2}")
    a.e(f"v_bfe_u32 v{vT+3}, v{vLANE}, 1, 3")
    a.e(f"v_xor_b32 v{vT+2}, v{vT+2}, v{vT+3}")
    a.e(f"v_lshlrev_b32 v{vT+2}, 4, v{vT+2}")
    a.e(f"v_lshl_add_u32 v{vT+2}, v{vT+1}, 7, v{vT+2}")
    a.e(f"s_lshl_b32 s{t0}, s{sW}, 12")
    a.e(f"v_add_u32 v{lR0}, s{t0}, v{vT+2}")
    for i in range(1, 4):
        a.e(f"v_xor_b32 v{lR0+i}, {16*i}, v{lR0}")
    for i in range(4):
        a.e(f"v_mov_b32 v{lS+i}, 0")
    a.e(f"s_mov_b32 s{sRD}, 0")
    a.e(f"s_mov_b32 s{sIT}, 0")
    a.e(f"s_waitcnt vmcnt({24 if S3 else 12})")
    a.e(f"v_add_u32 v{vT}, {K1_SCR+2048}, v{vT}")
    a.e(f"ds_write_b32 v{vT}, v{lBI}")
    if ONE:
        a.e(f"v_mov_b32 v{vT+4}, {K1_SYN}")
        a.e(f"ds_write_b128 v{vT+4}, {vr(lS,4)}")
    a.e("s_barrier")
    stamp(a, 1)
    stage(True, not S3)
    a.lab("K1_LD")
    a.e("s_waitcnt vmcnt(12)")
    a.e("s_barrier")
    stage(True, True)
    a.e(f"s_add_u32 s{sIT}, s{sIT}, 1")
    a.e(f"s_cmp_lt_u32 s{sIT}, 7")
    a.e("s_cbranch_scc1 K1_LD")
    a.e("s_waitcnt vmcnt(12)")
    a.e("s_barrier")
    a.e(f"s_mov_b32 s{sIT}, 0")
    a.lab("K1_LD2")
    stage(True, False)
    a.e(f"s_cmp_eq_u32 s{sIT}, 1")
    a.e("s_cbranch_scc1 K1_LD3")
    if ONE:
        a.e(f"s_cmp_lg_u32 s{sW}, 0")
        a.e("s_cbranch_scc1 ZD_ld")
        zpoll("ld", sBI, vT + 4, vT + 5)
    a.e("s_waitcnt vmcnt(0)")
    a.e("s_barrier")
    a.e(f"s_mov_b32 s{sIT}, 1")
    a.e("s_branch K1_LD2")
    a.lab("K1_LD3")
    a.e(f"v_add_f32 v{lS}, v{lS}, v{lS+1}")
    a.e(f"v_add_f32 v{lS+1}, v{lS+2}, v{lS+3}")
    a.e(f"v_mov_b32 v{lU}, v{lS}")
    a.e(f"v_mov_b32 v{lU+1}, v{lS+1}")
    a.e("s_nop 1")
    a.e(f"v_permlane32_swap_b32 v{lS}, v{lU}")
    a.e(f"v_permlane32_swap_b32 v{lS+1}, v{lU+1}")
    a.e(f"v_add_f32 v{lS}, v{lS}, v{lU}")
    a.e(f"v_add_f32 v{lS+1}, v{lS+1}, v{lU+1}")
    finalize(lS, lS + 1, lS + 2, lS + 3)
    a.e(f"v_lshlrev_b32 v{vT+1}, 2, v{vT+1}")
    a.e(f"s_lshl_b32 s{t0}, s{sW}, 7")
    a.e(f"s_add_u32 s{t0}, s{t0}, {K1_SCR}")
    a.e(f"v_add_u32 v{vT+1}, s{t0}, v{vT+1}")
    a.e(f"ds_write_b32 v{vT+1}, v{lS+2}")
    a.e(f"ds_write_b32 v{vT+1}, v{lS+3} offset:512")
    a.e("s_waitcnt lgkmcnt(0)")
    a.e("s_barrier")
    if DIAG:
        stamp(a, 2); stamp(a, 3)
        k1flush()
    if ONE:
        a.e("s_barrier")
        a.e("s_branch P2_ENTRY")
    else:
        a.e("s_endpgm")
    a.lab("K1_COMP")
    a.e(f"s_and_b32 s{sMH}, s{sW}, 1")
    a.e(f"s_bfe_u32 s{sNQ}, s{sW}, 0x10001")
    a.e(f"s_lshr_b32 s{sHALF}, s{sW}, 3")
    if "C" in X:
        NPF = int(os.environ.get("NPF", "8"))
        a.e(f"s_cmp_ge_u32 s2, {NPF}")
        a.e("s_cbranch_scc1 K1_NOCP")
        a.e(f"s_cmp_ge_u32 s{sW}, 8")
        a.e("s_cbranch_scc1 K1_NOCP")
        a.e(f"s_and_b32 s{t0}, s{sW}, 3")
        code_prefetch(a, "k1", "k1_gemm1_kernel", "CODE_END", 64, t0, vLANE, vT, 36)
        a.lab("K1_NOCP")
    if "P" in X:
        vPF = 36
        a.e(f"s_and_b32 s{t0}, s{sW}, 3")
        a.e(f"s_lshl_b32 s{t0}, s{t0}, 6")
        a.e(f"v_add_u32 v{vT}, s{t0}, v{vLANE}")
        a.e(f"s_cmp_eq_u32 s{sHALF}, 1")
        a.e("s_cbranch_scc1 K1_PFB")
        a.e(f"s_and_b32 s{t1}, s{sCB}, 3")
        a.e(f"s_lshl_b32 s{t1}, s{t1}, 5")
        a.e(f"s_lshl_b32 s{t2}, s{sRB}, 7")
        a.e(f"s_add_u32 s{t1}, s{t1}, s{t2}")
        a.e(f"v_lshrrev_b32 v{vT+1}, 3, v{vT}")
        a.e(f"v_add_u32 v{vT+1}, s{t1}, v{vT+1}")
        a.e(f"v_mul_u32_u24 v{vT+1}, 1280, v{vT+1}")
        a.e(f"v_and_b32 v{vT+2}, 7, v{vT}")
        a.e(f"v_lshl_add_u32 v{vT+1}, v{vT+2}, 7, v{vT+1}")
        a.e("s_waitcnt lgkmcnt(0)")
        srd(a, sX, "s4", "s5", 2048 * 640 * 2)
        a.e(f"buffer_load_dword v{vPF}, v{vT+1}, {sr(sX,4)}, 0 offen offset:256")
        a.e("s_branch K1_PFD")
        a.lab("K1_PFB")
        a.e(f"s_and_b32 s{t1}, s{sRB}, 7")
        a.e(f"s_lshl_b32 s{t1}, s{t1}, 6")
        a.e(f"s_add_u32 s{t1}, s{t1}, 128")
        a.e(f"v_lshrrev_b32 v{vT+1}, 2, v{vT}")
        a.e(f"v_add_u32 v{vT+1}, s{t1}, v{vT+1}")
        a.e(f"v_and_b32 v{vT+2}, 1, v{vT}")
        a.e(f"v_lshlrev_b32 v{vT+2}, 7, v{vT+2}")
        a.e(f"s_lshl_b32 s{t2}, s{sCB}, 8")
        a.e(f"s_lshl_b32 s{t3}, s{sT0}, 5")
        a.e(f"v_mul_u32_u24 v{vT+3}, 3840, v{vT+1}")
        a.e(f"v_add3_u32 v{vT+3}, v{vT+3}, v{vT+2}, s{t2}")
        a.e(f"v_mul_u32_u24 v{vT+4}, 3456, v{vT+1}")
        a.e(f"v_add3_u32 v{vT+4}, v{vT+4}, v{vT+2}, s{t3}")
        a.e("s_waitcnt lgkmcnt(0)")
        srd(a, sB0, "s6", "s7", 640 * 1920 * 2)
        srd(a, sB1, "s12", "s13", 640 * 1728 * 2)
        a.e("s_mov_b32 exec_lo, 0x33333333")
        a.e("s_mov_b32 exec_hi, 0x33333333")
        a.e(f"buffer_load_dword v{vPF}, v{vT+3}, {sr(sB0,4)}, 0 offen")
        a.e("s_not_b64 exec, exec")
        a.e(f"buffer_load_dword v{vPF+1}, v{vT+4}, {sr(sB1,4)}, 0 offen")
        a.e("s_mov_b64 exec, -1")
        a.lab("K1_PFD")
    a.e(f"s_lshl_b32 s{t0}, s{sMH}, 13")
    a.e(f"v_and_b32 v{vT+4}, 15, v{vLANE}")
    a.e(f"v_lshrrev_b32 v{vT}, 4, v{vLANE}")
    a.e(f"v_lshrrev_b32 v{vT+1}, 1, v{vT+4}")
    a.e(f"v_xor_b32 v{vT+1}, v{vT+1}, v{vT}")
    a.e(f"v_lshlrev_b32 v{vT+1}, 4, v{vT+1}")
    a.e(f"v_lshl_add_u32 v{vA0e}, v{vT+4}, 7, v{vT+1}")
    a.e(f"v_add_u32 v{vA0e}, s{t0}, v{vA0e}")
    a.e(f"v_xor_b32 v{vA0o}, 64, v{vA0e}")
    a.e(f"v_bfe_u32 v{vT+1}, v{vLANE}, 2, 3")
    a.e(f"v_mul_u32_u24 v{vT+1}, 1056, v{vT+1}")
    a.e(f"v_lshrrev_b32 v{vT+2}, 5, v{vLANE}")
    a.e(f"v_lshl_add_u32 v{vT+1}, v{vT+2}, 9, v{vT+1}")
    a.e(f"v_and_b32 v{vT+2}, 3, v{vLANE}")
    a.e(f"v_lshl_add_u32 v{vT+1}, v{vT+2}, 3, v{vT+1}")
    a.e(f"s_mul_i32 s{t0}, s{sHALF}, {2*K1_BH}")
    a.e(f"s_lshl_b32 s{t1}, s{sNQ}, 7")
    a.e(f"s_add_u32 s{t0}, s{t0}, s{t1}")
    a.e(f"s_add_u32 s{t0}, s{t0}, 16384")
    a.e(f"v_add_u32 v{vB0}, s{t0}, v{vT+1}")
    for i in range(64):
        a.e(f"v_mov_b32 v{ACC+i}, 0")
    for i in range(4):
        a.e(f"v_mov_b32 v{vS+i}, 0")
        a.e(f"v_mov_b32 v{vONES+i}, 0x3f803f80")
    for i in range(8):
        a.e(f"v_mov_b32 v{vCS+i}, 0")
        a.e(f"v_mov_b32 v{vSA+i}, {hx(OOB)}")
    a.e(f"s_mov_b32 s{sRD}, 0")
    a.e(f"s_mov_b32 s{sIT}, 0")
    a.e(f"s_mov_b32 s{sTS}, 0")
    a.e(f"s_cmp_ge_u32 s{sCB}, 10")
    a.e(f"s_cselect_b32 s{sTYP}, 1, 0")
    a.e(f"s_cmp_eq_u32 s{sHALF}, 1")
    a.e(f"s_cselect_b32 s{sTYP}, 2, s{sTYP}")
    a.e(f"s_lshl_b32 s{t6}, s{sRB}, 2")
    a.e(f"s_lshl_b32 s{t7}, s{sMH}, 1")
    a.e(f"s_add_u32 s{t6}, s{t6}, s{t7}")
    a.e(f"s_cmp_eq_u32 s{sTYP}, 1")
    a.e("s_cbranch_scc1 K1_PRE_V")
    a.e(f"s_cmp_eq_u32 s{sTYP}, 2")
    a.e("s_cbranch_scc1 K1_PRE_F")
    a.e(f"s_cmp_lt_u32 s{sCB}, 5")
    a.e(f"s_cselect_b32 s{t1}, 81920, {KVH}")
    a.e(f"s_cselect_b32 s{sTS}, 1280, {KVT}")
    a.e(f"s_cselect_b32 s{t3}, {hx(QB_OFF)}, {hx(KV_OFF)}")
    a.e(f"s_cselect_b32 s{t4}, 16, 8")
    a.e(f"s_cselect_b64 vcc, -1, 0")
    a.e(f"s_cselect_b32 s{t5}, 0, 5")
    a.e(f"s_sub_u32 s{t5}, s{sCB}, s{t5}")
    a.e(f"s_lshl_b32 s{t5}, s{t5}, 5")
    a.e(f"s_lshl_b32 s{t7}, s{sNQ}, 4")
    a.e(f"s_add_u32 s{t5}, s{t5}, s{t7}")
    a.e(f"s_mul_i32 s{t6}, s{t6}, s{sTS}")
    a.e(f"s_add_u32 s{t3}, s{t3}, s{t6}")
    r0, rA0, rB0, rA1, rB1, vG = vT + 5, vT + 6, vT + 7, vT + 8, vT + 9, vT + 10
    a.e(f"v_and_b32 v{vT+2}, 7, v{vLANE}")
    a.e(f"v_and_b32 v{vT+3}, 8, v{vLANE}")
    a.e(f"v_lshl_add_u32 v{vT+2}, v{vT+3}, 1, v{vT+2}")
    a.e(f"v_cndmask_b32 v{r0}, v{vT+2}, v{vT+4}, vcc")
    a.e(f"v_lshlrev_b32 v{rA0}, 4, v{r0}")
    a.e(f"v_add_u32 v{rA0}, s{t3}, v{rA0}")
    a.e(f"v_lshlrev_b32 v{rB0}, 3, v{r0}")
    a.e(f"s_add_u32 s{t7}, s{t3}, 1024")
    a.e(f"v_add_u32 v{rB0}, s{t7}, v{rB0}")
    a.e(f"s_lshl_b32 s{t7}, s{t4}, 4")
    a.e(f"v_add_u32 v{rA1}, s{t7}, v{rA0}")
    a.e(f"s_lshl_b32 s{t7}, s{t4}, 3")
    a.e(f"v_add_u32 v{rB1}, s{t7}, v{rB0}")
    a.e(f"v_add_u32 v{vG}, s{t5}, v{vT}")
    for j in range(4):
        tt, h, dg, u = vT + 11, vT + 12, vT + 13, vT + 14
        a.e(f"v_add_u32 v{tt}, {4*j}, v{vG}")
        a.e(f"v_mul_u32_u24 v{h}, 205, v{tt}")
        a.e(f"v_lshrrev_b32 v{h}, 10, v{h}")
        a.e(f"v_mad_i32_i24 v{dg}, v{h}, -5, v{tt}")
        a.e(f"v_mul_u32_u24 v{u}, 0x108, v{dg}")
        a.e(f"v_and_b32 v{u}, 0x208, v{u}")
        a.e(f"v_cmp_eq_u32 vcc, 4, v{dg}")
        a.e(f"v_mad_u32_u24 v{u}, v{h}, s{t1}, v{u}")
        a.e("s_nop 0")
        a.e(f"v_cndmask_b32 v{tt}, v{rA0}, v{rB0}, vcc")
        a.e(f"v_cndmask_b32 v{h}, v{rA1}, v{rB1}, vcc")
        a.e(f"v_add_u32 v{vSA+2*j}, v{u}, v{tt}")
        a.e(f"v_add_u32 v{vSA+2*j+1}, v{u}, v{h}")
    a.e("s_branch K1_PRE_DONE")
    a.lab("K1_PRE_V")
    a.e(f"s_sub_u32 s{t5}, s{sCB}, 10")
    a.e(f"s_lshl_b32 s{t5}, s{t5}, 7")
    a.e(f"s_lshl_b32 s{t7}, s{sNQ}, 6")
    a.e(f"s_add_u32 s{t5}, s{t5}, s{t7}")
    a.e(f"v_add_u32 v{vT+2}, s{t5}, v{vT+4}")
    a.e(f"s_mul_i32 s{t6}, s{t6}, {KVT}")
    a.e(f"s_add_u32 s{t6}, s{t6}, {hx(KV_OFF + 1280)}")
    a.e(f"v_mul_u32_u24 v{vT+1}, {VP}, v{vT}")
    a.e(f"v_add_u32 v{vT+1}, s{t6}, v{vT+1}")
    a.e(f"s_mov_b32 s{t1}, {KVH}")
    a.e(f"s_mov_b32 s{t2}, -20")
    for j in range(4):
        n, h, d = vT + 5, vT + 6, vT + 7
        a.e(f"v_add_u32 v{n}, {16*j}, v{vT+2}")
        a.e(f"v_mul_u32_u24 v{h}, 3277, v{n}")
        a.e(f"v_lshrrev_b32 v{h}, 16, v{h}")
        a.e(f"v_mad_i32_i24 v{d}, v{h}, s{t2}, v{n}")
        a.e(f"v_mad_u32_u24 v{h}, v{h}, s{t1}, v{vT+1}")
        a.e(f"v_lshl_add_u32 v{vSA+j}, v{d}, 4, v{h}")
    a.e("s_branch K1_PRE_DONE")
    a.lab("K1_PRE_F")
    a.e(f"s_lshl_b32 s{t0}, s{sCB}, 1")
    a.e(f"s_add_u32 s{t0}, s{t0}, s{sNQ}")
    a.e(f"s_cmp_eq_u32 s{t0}, 26")
    a.e("s_cbranch_scc1 K1_PRE_DONE")
    a.e(f"s_cmp_ge_u32 s{t0}, 28")
    a.e("s_cbranch_scc1 K1_PRE_DONE")
    a.e(f"s_lshl_b32 s{t0}, s{t6}, 5")
    a.e(f"v_add_u32 v{vSA}, s{t0}, v{vT+4}")
    a.e(f"v_lshlrev_b32 v{vSA}, 4, v{vSA}")
    a.e(f"v_lshl_add_u32 v{vSA}, v{vT}, 15, v{vSA}")
    a.e(f"s_lshl_b32 s{t0}, s{sT0}, 16")
    a.e(f"s_lshl_b32 s{t1}, s{sNQ}, 18")
    a.e(f"s_add_u32 s{t0}, s{t0}, s{t1}")
    a.e(f"s_add_u32 s{t0}, s{t0}, {hx(AB_OFF + 80*32768)}")
    a.e(f"v_add_u32 v{vSA}, s{t0}, v{vSA}")
    a.e(f"v_add_u32 v{vSA+1}, {hx(131072)}, v{vSA}")
    a.lab("K1_PRE_DONE")
    a.e("s_waitcnt lgkmcnt(0)")
    stamp(a, 5)
    srd(a, sWS, "s18", "s19", WS_END)
    a.e(f"s_and_b32 s{t0}, s{sTYP}, 1")
    a.e(f"s_lshl_b32 s{t0}, s{t0}, 1")
    a.e(f"s_add_u32 s{t0}, s{t0}, s{sMH}")
    for v in range(1, 4):
        a.e(f"s_cmp_eq_u32 s{t0}, {v}")
        a.e(f"s_cbranch_scc1 K1_V{v}")

    def reads(fs):
        vA = vAe if fs == 0 else vAo
        ra = [f"ds_read_b128 {vr(fa(fs,mt),4)}, v{vA} offset:{2048*mt}" for mt in range(4)]
        rb = []
        for j in range(4):
            rb.append(f"ds_read_b64_tr_b16 {vr(fb(fs,j),2)}, v{vB} offset:{fs*K1_BH+32*j}")
            rb.append(f"ds_read_b64_tr_b16 {vr(fb(fs,j)+2,2)}, v{vB} offset:{fs*K1_BH+32*j+256}")
        return rb[0:2] + ra + rb[2:]

    def addr_update():
        return [f"v_add_u32 v{vB}, s{sRD}, v{vB0}",
                f"v_add_u32 v{vAe}, s{sRD}, v{vA0e}",
                f"v_add_u32 v{vAo}, s{sRD}, v{vA0o}",
                f"s_add_u32 s{sRD}, s{sRD}, {K1_SLOT}",
                f"s_cmp_eq_u32 s{sRD}, {K1_SCR}",
                f"s_cselect_b32 s{sRD}, 0, s{sRD}"]

    for var in range(4):
        typ, mh, nq = var >> 1, var & 1, 0
        cst = [2 * mh, 2 * mh + 1]
        smt = (2 if typ == 2 else 0) + nq
        a.raw(".p2align 3")
        a.lab(f"K1_V{var}")
        emit(addr_update())
        a.e("s_barrier")
        stamp(a, 1)
        emit(reads(0))
        a.raw(".p2align 6")
        a.lab(f"K1_L{var}")
        for fs in range(2):
            mf = []
            for j in range(4):
                for mt in range(4):
                    if typ == 1:
                        mf.append(f"v_mfma_f32_16x16x32_bf16 {vr(acc(j,mt),4)}, {vr(fa(fs,mt),4)}, {vr(fb(fs,j),4)}, {vr(acc(j,mt),4)}")
                    else:
                        mf.append(f"v_mfma_f32_16x16x32_bf16 {vr(acc(j,mt),4)}, {vr(fb(fs,j),4)}, {vr(fa(fs,mt),4)}, {vr(acc(j,mt),4)}")
                if j in cst:
                    c = vCS + 4 * cst.index(j)
                    mf.append(f"v_mfma_f32_16x16x32_bf16 {vr(c,4)}, {vr(fb(fs,j),4)}, {vr(vONES,4)}, {vr(c,4)}")
            va = []
            for r in range(4):
                src = fa(fs, smt) + r
                lo, hi = vU + 2 * (r & 1), vU + 2 * (r & 1) + 1
                va.append(f"v_lshlrev_b32 v{lo}, 16, v{src}")
                va.append(f"v_and_b32 v{hi}, 0xffff0000, v{src}")
                va.append(f"v_add_f32 v{vS}, v{vS}, v{lo}")
                va.append(f"v_add_f32 v{vS+1}, v{vS+1}, v{hi}")
                va.append(f"v_fmac_f32 v{vS+2}, v{lo}, v{lo}")
                va.append(f"v_fmac_f32 v{vS+3}, v{hi}, v{hi}")
            rd = reads(fs ^ 1)
            va = []
            if "r" in X: rd = []
            if "M" in X: mf = mf[:2]
            a.e("s_waitcnt lgkmcnt(0)")
            npre = 0
            if fs == 1:
                npre = 2
                for m in mf[:npre]:
                    a.e(m)
                emit(addr_update())
                a.e("s_barrier")
            rest = mf[npre:]
            nm = max(1, len(rest))
            ri = di = 0
            for i, m in enumerate(rest):
                if ri < len(rd):
                    a.e(rd[ri]); ri += 1
                a.e(m)
                want_d = (len(va) * (i + 1) + nm - 1) // nm
                while di < want_d:
                    a.e(va[di]); di += 1
            while ri < len(rd):
                a.e(rd[ri]); ri += 1
            while di < len(va):
                a.e(va[di]); di += 1
        a.e(f"s_add_u32 s{sIT}, s{sIT}, 1")
        a.e(f"s_cmp_lt_u32 s{sIT}, 10")
        a.e(f"s_cbranch_scc1 K1_L{var}")
        a.e(f"s_branch K1_EPI")

    a.raw(".p2align 3")
    a.lab("K1_EPI")
    stamp(a, 2)
    a.e("s_waitcnt vmcnt(0)")
    a.e(f"v_and_b32 v{vT}, 15, v{vLANE}")
    a.e(f"v_lshlrev_b32 v{vT}, 2, v{vT}")
    a.e(f"s_lshl_b32 s{t0}, s{sHALF}, 7")
    a.e(f"s_lshl_b32 s{t1}, s{sNQ}, 6")
    a.e(f"s_add_u32 s{t0}, s{t0}, s{t1}")
    a.e(f"s_lshl_b32 s{t2}, s{sMH}, 8")
    a.e(f"s_add_u32 s{t2}, s{t2}, {K1_SCR}")
    a.e(f"s_add_u32 s{t0}, s{t0}, s{t2}")
    a.e(f"v_add_u32 v{vT+1}, s{t0}, v{vT}")
    a.e(f"v_lshrrev_b32 v{vT+2}, 4, v{vLANE}")
    a.e(f"v_lshlrev_b32 v{vT+2}, 4, v{vT+2}")
    a.e(f"s_lshl_b32 s{t3}, s{sHALF}, 9")
    a.e(f"s_lshl_b32 s{t1}, s{sNQ}, 8")
    a.e(f"s_add_u32 s{t3}, s{t3}, s{t1}")
    a.e(f"s_add_u32 s{t3}, s{t3}, {K1_SCR+1024}")
    a.e(f"s_lshl_b32 s{t1}, s{sMH}, 7")
    a.e(f"s_add_u32 s{t0}, s{t3}, s{t1}")
    a.e(f"v_add_u32 v{vT+3}, s{t0}, v{vT+2}")
    a.e("s_mov_b32 exec_lo, 0x00010001")
    a.e("s_mov_b32 exec_hi, 0x00010001")
    a.e(f"ds_write_b128 v{vT+3}, {vr(vCS,4)}")
    a.e(f"ds_write_b128 v{vT+3}, {vr(vCS+4,4)} offset:64")
    a.e("s_mov_b64 exec, -1")
    a.e("s_waitcnt lgkmcnt(0)")
    a.e("s_barrier")
    stamp(a, 3)
    a.e(f"s_cmp_eq_u32 s{sTYP}, 1")
    a.e("s_cbranch_scc1 K1_EPI_V")

    vNM, vRS = 32, 36
    vC4 = 40
    vBB = 56
    a.e(f"v_add_u32 v{vT}, s{t2}, v{vT}")
    a.e(f"ds_read2_b32 {vr(vNM,2)}, v{vT} offset0:0 offset1:16")
    a.e(f"ds_read2_b32 {vr(vNM+2,2)}, v{vT} offset0:32 offset1:48")
    a.e(f"ds_read2_b32 {vr(vRS,2)}, v{vT} offset0:128 offset1:144")
    a.e(f"ds_read2_b32 {vr(vRS+2,2)}, v{vT} offset0:160 offset1:176")
    a.e(f"v_add_u32 v{vT+1}, s{t3}, v{vT+2}")
    for j in range(4):
        a.e(f"ds_read_b128 {vr(vC4+4*j,4)}, v{vT+1} offset:{64*j}")
    a.e(f"s_cmp_eq_u32 s{sTYP}, 2")
    a.e("s_cbranch_scc1 K1_EPI_F")

    def sel3(mt):
        return f"op_sel:[0,{mt&1},0] op_sel_hi:[1,{mt&1},1]"

    def sel2(mt):
        return f"op_sel:[0,{mt&1}] op_sel_hi:[1,{mt&1}]"
    a.e(f"s_cmp_lt_u32 s{sCB}, 5")
    a.e(f"s_cselect_b32 s{t0}, {hx(f32(QSCALE))}, 1.0")
    a.e("s_waitcnt lgkmcnt(4)")
    for i in range(4):
        a.e(f"v_mul_f32 v{vRS+i}, s{t0}, v{vRS+i}")
    for j in range(4):
        a.e(f"s_waitcnt lgkmcnt({3-j})")
        for mt in range(4):
            A = acc(j, mt)
            for p in range(2):
                a.e(f"v_pk_fma_f32 {vr(A+2*p,2)}, {vr(vC4+4*j+2*p,2)}, {vr(vNM+(mt&2),2)}, {vr(A+2*p,2)} {sel3(mt)}")
        for mt in range(4):
            A = acc(j, mt)
            for p in range(2):
                a.e(f"v_pk_mul_f32 {vr(A+2*p,2)}, {vr(A+2*p,2)}, {vr(vRS+(mt&2),2)} {sel2(mt)}")
        for mt in range(4):
            A = acc(j, mt)
            a.e(f"v_cvt_pk_bf16_f32 v{A}, v{A}, v{A+1}")
            a.e(f"v_cvt_pk_bf16_f32 v{A+1}, v{A+2}, v{A+3}")
            so = f"s{sTS}" if mt & 2 else "0"
            a.e(f"buffer_store_dwordx2 {vr(A,2)}, v{vSA+2*j+(mt&1)}, {sr(sWS,4)}, {so} offen{SCQ}")
    finish("Q")
    a.lab("K1_EPI_F")
    c0 = -2.0 * math.sqrt(2.0 / math.pi) * math.log2(math.e)
    c1 = c0 * 0.044715
    vC0, vONE = 64, 66
    a.e(f"v_lshrrev_b32 v{vT+2}, 1, v{vT+2}")
    a.e(f"s_lshl_b32 s{t0}, s{sNQ}, 7")
    a.e(f"s_add_u32 s{t0}, s{t0}, {K1_SCR+2048}")
    a.e(f"v_add_u32 v{vT+2}, s{t0}, v{vT+2}")
    for j in range(4):
        a.e(f"ds_read_b64 {vr(vBB+2*j,2)}, v{vT+2} offset:{32*j}")
    a.e(f"v_mov_b32 v{vC0}, {hx(f32(c0))}")
    a.e(f"v_mov_b32 v{vC0+1}, {hx(f32(c0))}")
    a.e(f"v_mov_b32 v{vONE}, 1.0")
    a.e(f"v_mov_b32 v{vONE+1}, 1.0")
    a.e(f"s_mov_b32 s{sC1}, {hx(f32(c1))}")
    a.e(f"s_mov_b32 s{sC1+1}, {hx(f32(c1))}")
    vBF = 68
    vW = 88
    for j in range(4):
        a.e(f"s_waitcnt lgkmcnt({3-j})")
        a.e(f"v_lshlrev_b32 v{vBF}, 16, v{vBB+2*j}")
        a.e(f"v_and_b32 v{vBF+1}, 0xffff0000, v{vBB+2*j}")
        a.e(f"v_lshlrev_b32 v{vBF+2}, 16, v{vBB+2*j+1}")
        a.e(f"v_and_b32 v{vBF+3}, 0xffff0000, v{vBB+2*j+1}")
        for mp in range(2):
            prs = [(mt, p) for mt in (2 * mp, 2 * mp + 1) for p in range(2)]
            for i, (mt, p) in enumerate(prs):
                A = acc(j, mt) + 2 * p
                a.e(f"v_pk_fma_f32 {vr(A,2)}, {vr(vC4+4*j+2*p,2)}, {vr(vNM+(mt&2),2)}, {vr(A,2)} {sel3(mt)}")
            for i, (mt, p) in enumerate(prs):
                A = acc(j, mt) + 2 * p
                a.e(f"v_pk_fma_f32 {vr(A,2)}, {vr(A,2)}, {vr(vRS+(mt&2),2)}, {vr(vBF+2*p,2)} {sel3(mt)}")
            for i, (mt, p) in enumerate(prs):
                A = acc(j, mt) + 2 * p
                a.e(f"v_pk_mul_f32 {vr(vW+2*i,2)}, {vr(A,2)}, {vr(A,2)}")
            for i, (mt, p) in enumerate(prs):
                a.e(f"v_pk_fma_f32 {vr(vW+2*i,2)}, {vr(vW+2*i,2)}, {sr(sC1,2)}, {vr(vC0,2)}")
            for i, (mt, p) in enumerate(prs):
                A = acc(j, mt) + 2 * p
                a.e(f"v_pk_mul_f32 {vr(vW+2*i,2)}, {vr(vW+2*i,2)}, {vr(A,2)}")
            for i in range(8):
                a.e(f"v_exp_f32 v{vW+i}, v{vW+i}")
            for i in range(4):
                a.e(f"v_pk_add_f32 {vr(vW+2*i,2)}, {vr(vW+2*i,2)}, {vr(vONE,2)}")
            for i in range(8):
                a.e(f"v_rcp_f32 v{vW+i}, v{vW+i}")
            for i, (mt, p) in enumerate(prs):
                A = acc(j, mt) + 2 * p
                a.e(f"v_pk_mul_f32 {vr(A,2)}, {vr(A,2)}, {vr(vW+2*i,2)}")
            for mt in (2 * mp, 2 * mp + 1):
                A = acc(j, mt)
                D = acc(j & ~1, mt) + 2 * (j & 1)
                a.e(f"v_cvt_pk_bf16_f32 v{D}, v{A}, v{A+1}")
                a.e(f"v_cvt_pk_bf16_f32 v{D+1}, v{A+2}, v{A+3}")
                if j & 1:
                    a.e(f"buffer_store_dwordx4 {vr(acc(j-1,mt),4)}, v{vSA+j//2}, {sr(sWS,4)}, 0 offen offset:{256*mt}{SCF}")
    finish("F")
    a.lab("K1_EPI_V")
    vNMv, vRSv = 40, 56
    vCSv = 88
    a.e(f"v_add_u32 v{vT+1}, s{t2}, v{vT+2}")
    for mt in range(4):
        a.e(f"ds_read_b128 {vr(vNMv+4*mt,4)}, v{vT+1} offset:{64*mt}")
    for mt in range(4):
        a.e(f"ds_read_b128 {vr(vRSv+4*mt,4)}, v{vT+1} offset:{512+64*mt}")
    a.e(f"v_add_u32 v{vT+3}, s{t3}, v{vT}")
    for j in range(4):
        a.e(f"ds_read_b32 v{vCSv+2*j}, v{vT+3} offset:{64*j}")
    for j in range(4):
        a.e(f"s_waitcnt lgkmcnt({3-j})")
        for mt in range(4):
            A = acc(j, mt)
            for p in range(2):
                a.e(f"v_pk_fma_f32 {vr(A+2*p,2)}, {vr(vNMv+4*mt+2*p,2)}, {vr(vCSv+2*j,2)}, {vr(A+2*p,2)} op_sel:[0,0,0] op_sel_hi:[1,0,1]")
        for mt in range(4):
            A = acc(j, mt)
            for p in range(2):
                a.e(f"v_pk_mul_f32 {vr(A+2*p,2)}, {vr(A+2*p,2)}, {vr(vRSv+4*mt+2*p,2)}")
        for t2_ in range(2):
            A0, A1 = acc(j, 2 * t2_), acc(j, 2 * t2_ + 1)
            a.e(f"v_cvt_pk_bf16_f32 v{A0}, v{A0}, v{A0+1}")
            a.e(f"v_cvt_pk_bf16_f32 v{A0+1}, v{A0+2}, v{A0+3}")
            a.e(f"v_cvt_pk_bf16_f32 v{A0+2}, v{A1}, v{A1+1}")
            a.e(f"v_cvt_pk_bf16_f32 v{A0+3}, v{A1+2}, v{A1+3}")
            a.e(f"buffer_store_dwordx4 {vr(A0,4)}, v{vSA+j}, {sr(sWS,4)}, 0 offen offset:{KVT*t2_}{SCQ}")
    finish("Q")
    if ONE:
        for kind in "QF":
            a.lab(f"K1_SIG{kind}")
            a.e(f"v_mov_b32 v2, {K1_SYN + (4 if kind == 'F' else 0)}")
            a.e("v_mov_b32 v3, 1")
            if kind == "Q":
                a.e(f"v_lshlrev_b32 v5, 11, v{vLANE}")
                a.e(f"s_lshl_b32 s{t0}, s{sCB}, 7")
                a.e(f"s_lshl_b32 s{t1}, s{sRB}, 2")
                a.e(f"s_add_u32 s{t0}, s{t0}, s{t1}")
                a.e(f"s_add_u32 s{t0}, s{t0}, {hx(FL_OFF + FQ_REL)}")
            else:
                a.e("v_mov_b32 v5, 0")
                a.e(f"s_lshl_b32 s{t0}, s{sRB}, 7")
                a.e(f"s_lshl_b32 s{t1}, s{sCB}, 2")
                a.e(f"s_add_u32 s{t0}, s{t0}, s{t1}")
                a.e(f"s_add_u32 s{t0}, s{t0}, {hx(FL_OFF + FH_REL)}")
            a.e("s_waitcnt vmcnt(0)")
            a.e("s_mov_b64 exec, 1")
            a.e("ds_add_rtn_u32 v4, v2, v3")
            a.e("s_waitcnt lgkmcnt(0)")
            a.e(f"v_readfirstlane_b32 s{t1}, v4")
            a.e("s_mov_b64 exec, -1")
            a.e(f"s_cmp_lg_u32 s{t1}, 3")
            a.e("s_cbranch_scc1 P2_ENTRY")
            if kind in WB:
                a.e("buffer_wbl2 sc1")
                a.e("s_waitcnt vmcnt(0)")
            a.e(f"s_mov_b64 exec, {15 if kind == 'Q' else 1}")
            a.e(f"buffer_store_dword v3, v5, {sr(sWS,4)}, s{t0} offen sc1")
            a.e("s_mov_b64 exec, -1")
            a.e("s_branch P2_ENTRY")

    a.lab("K1_TRANS")
    sTAU, sSEL0, sSEL1 = 51, 52, 53
    NB_T = 4
    sTs = [24, 28, 36, 40]
    sK = [54, 56, 58, 76]
    vTO = [2, 3, 4, 5]
    vTS = [6, 7, 8, 9]
    vTL = [88, 104, 120, 136]
    a.e(f"s_mul_i32 s{sTAU}, s{sRB}, 12")
    a.e(f"s_add_u32 s{sTAU}, s{sTAU}, s{sW}")
    a.e(f"s_mov_b32 s{sSEL0}, 0x05040100")
    a.e(f"s_mov_b32 s{sSEL1}, 0x07060302")
    a.e(f"v_lshlrev_b32 v{vT}, 2, v{vLANE}")
    a.e(f"v_lshlrev_b32 v{vT+1}, 5, v{vLANE}")
    a.e("s_waitcnt lgkmcnt(0)")
    srd(a, sWS, "s18", "s19", WS_END)
    if "Q" in X:
        srd(a, sX, "s4", "s5", 2048 * 640 * 2)
        srd(a, sB0, "s6", "s7", 640 * 1920 * 2)
        srd(a, sB1, "s12", "s13", 640 * 1728 * 2)
        a.e(f"s_lshl_b32 s{t0}, s{sTAU}, 13")
        a.e(f"v_lshlrev_b32 v20, 7, v{vLANE}")
        a.e(f"v_add_u32 v20, s{t0}, v20")
        a.e(f"s_mov_b32 s{t1}, {192*3840}")
        a.e(f"s_mov_b32 s{t2}, {192*3456}")
        a.e(f"s_mov_b32 s{t3}, {192*3840 + 12288*128}")
        a.e(f"s_mov_b32 s{t4}, {12288*128}")
        a.e(f"buffer_load_dword v21, v20, {sr(sB0,4)}, s{t1} offen")
        a.e(f"buffer_load_dword v22, v20, {sr(sB1,4)}, s{t2} offen")
        a.e(f"buffer_load_dword v23, v20, {sr(sX,4)}, 0 offen")
        a.e(f"buffer_load_dword v24, v20, {sr(sX,4)}, s{t4} offen")
        a.e(f"buffer_load_dword v25, v20, {sr(sB0,4)}, s{t3} offen")
    a.e(f"s_lshl_b32 s{t0}, s{sTAU}, 4")
    a.e(f"v_lshrrev_b32 v{vT+2}, 2, v{vLANE}")
    a.e(f"v_add_u32 v{vT+2}, s{t0}, v{vT+2}")
    a.e(f"v_mul_u32_u24 v{vT+2}, {KVT}, v{vT+2}")
    a.e(f"v_and_b32 v{vT+3}, 3, v{vLANE}")
    a.e(f"v_mul_u32_u24 v{vT+3}, {VP}, v{vT+3}")
    a.e(f"v_add_u32 v{vT+2}, v{vT+2}, v{vT+3}")
    a.e(f"s_cmp_lt_u32 s{sTAU}, 128")
    a.e(f"s_cselect_b32 s{t0}, {hx(KV_OFF + 1280 + 320)}, {hx(OOB)}")
    for i in range(4):
        a.e(f"v_mov_b32 v{12+i}, 0x3f803f80")
    a.e(f"buffer_store_dwordx4 v[12:15], v{vT+2}, {sr(sWS,4)}, s{t0} offen{SC}")
    a.e(f"s_lshl_b32 s{t1}, s{sW}, 10")
    a.e(f"s_add_u32 s{t1}, s{t1}, {hx(FL_OFF)}")
    a.e(f"s_cmp_eq_u32 s{sRB}, 0")
    a.e(f"s_cselect_b32 s{t0}, s{t1}, {hx(OOB)}")
    for i in range(4):
        a.e(f"v_mov_b32 v{16+i}, 0")
    a.e(f"v_lshlrev_b32 v{vT+3}, 4, v{vLANE}")
    a.e(f"buffer_store_dwordx4 v[16:19], v{vT+3}, {sr(sWS,4)}, s{t0} offen{SC}")
    if ONE:
        a.e(f"v_mov_b32 v20, {K1_SYN}")
        a.e("ds_write_b128 v20, v[16:19]")
        a.e("s_waitcnt vmcnt(0) lgkmcnt(0)")
        a.e("s_barrier")
        a.e(f"s_cmp_lg_u32 s{sW}, 0")
        a.e("s_cbranch_scc1 K1_TGO")
        a.e("v_mov_b32 v21, 1")
        a.e(f"s_cmp_lg_u32 s{sRB}, 0")
        a.e("s_cbranch_scc1 K1_TZ")
        srd(a, sX, "s10", "s11", 256)
        a.e("s_mov_b64 exec, 1")
        a.e(f"buffer_store_dword v21, v16, {sr(sX,4)}, 0 offen sc1")
        a.e("s_mov_b64 exec, -1")
        a.lab("K1_TZ")
        zpoll("tr", sX, 22, 23)
        a.e(f"v_lshlrev_b32 v22, 11, v{vLANE}")
        a.e(f"s_lshl_b32 s{t1}, s{sRB}, 2")
        a.e(f"s_add_u32 s{t1}, s{t1}, {hx(FL_OFF + FQ_REL + 15*128)}")
        a.e("s_mov_b64 exec, 15")
        a.e(f"buffer_store_dword v21, v22, {sr(sWS,4)}, s{t1} offen sc1")
        a.e("s_mov_b64 exec, -1")
        a.lab("K1_TGO")
    a.e(f"s_mov_b32 s{sIT+3}, 0")
    a.lab("K1_TL")
    for b in range(NB_T):
        T = sTs[b]
        a.e(f"s_mul_i32 s{t1}, s{sTAU}, 13108")
        a.e(f"s_lshr_b32 s{t1}, s{t1}, 16")
        a.e(f"s_mul_i32 s{t2}, s{t1}, 5")
        a.e(f"s_sub_u32 s{t2}, s{sTAU}, s{t2}")
        a.e(f"s_lshr_b32 s{t5}, s{t1}, 1")
        a.e(f"s_mul_i32 s{t5}, s{t5}, 20")
        a.e(f"s_and_b32 s{t6}, s{t1}, 1")
        a.e(f"s_lshl_b32 s{t6}, s{t6}, 2")
        a.e(f"s_add_u32 s{t5}, s{t5}, s{t6}")
        a.e(f"s_add_u32 s{t6}, s{t5}, 8")
        a.e(f"s_sub_u32 s{t3}, s{t1}, 64")
        a.e(f"s_mul_i32 s{t3}, s{t3}, 40")
        a.e(f"s_add_u32 s{t4}, s{t3}, 36")
        a.e(f"s_add_u32 s{t3}, s{t3}, 16")
        a.e(f"s_cmp_lt_u32 s{t1}, 64")
        a.e(f"s_cselect_b32 s{t5}, s{t5}, s{t3}")
        a.e(f"s_cselect_b32 s{t6}, s{t6}, s{t4}")
        a.e(f"s_sub_u32 s{t3}, s{t1}, 80")
        a.e(f"s_lshr_b32 s{t4}, s{t3}, 2")
        a.e(f"s_lshl_b32 s{t4}, s{t4}, 5")
        a.e(f"s_and_b32 s{t3}, s{t3}, 3")
        a.e(f"s_lshl_b32 s{t3}, s{t3}, 2")
        a.e(f"s_add_u32 s{t3}, s{t3}, s{t4}")
        a.e(f"s_add_u32 s{t4}, s{t3}, 16")
        a.e(f"s_cmp_lt_u32 s{t1}, 80")
        a.e(f"s_cselect_b32 s{t5}, s{t5}, s{t3}")
        a.e(f"s_cselect_b32 s{t6}, s{t6}, s{t4}")
        a.e(f"s_cselect_b32 s{T}, s8, s16")
        a.e(f"s_cselect_b32 s{T+1}, s9, s17")
        a.e(f"s_cselect_b32 s{T+2}, {hx(640*640*2)}, {hx(1728*640*2)}")
        a.e(f"s_mov_b32 s{T+3}, 0x00020000")
        a.e(f"s_mul_i32 s{sK[b]}, s{t5}, 1280")
        a.e(f"s_mul_i32 s{sK[b]+1}, s{t6}, 1280")
        a.e(f"s_lshl_b32 s{t3}, s{t2}, 8")
        a.e(f"v_add_u32 v{vTO[b]}, s{t3}, v{vT}")
        for j in range(8):
            so = sK[b] if j < 4 else sK[b] + 1
            a.e(f"buffer_load_dword v{vTL[b]+j}, v{vTO[b]}, {sr(T,4)}, s{so} offen offset:{(j&3)*1280}")
        a.e(f"s_mul_i32 s{t1}, s{t1}, 10240")
        a.e(f"s_lshl_b32 s{t2}, s{t2}, 11")
        a.e(f"s_add_u32 s{t1}, s{t1}, s{t2}")
        a.e(f"s_add_u32 s{t1}, s{t1}, {hx(WT_OFF)}")
        a.e(f"s_cmp_lt_u32 s{sTAU}, 1480")
        a.e(f"s_cselect_b32 s{t1}, s{t1}, {hx(OOB)}")
        a.e(f"v_add_u32 v{vTS[b]}, s{t1}, v{vT+1}")
        a.e(f"s_add_u32 s{sTAU}, s{sTAU}, 192")
    for b in range(NB_T):
        a.e(f"s_waitcnt vmcnt({8*(NB_T-1-b) + 2*b})")
        for i in range(4):
            a.e(f"v_perm_b32 v{vTL[b]+8+i}, v{vTL[b]+2*i+1}, v{vTL[b]+2*i}, s{sSEL0}")
            a.e(f"v_perm_b32 v{vTL[b]+12+i}, v{vTL[b]+2*i+1}, v{vTL[b]+2*i}, s{sSEL1}")
        a.e(f"buffer_store_dwordx4 {vr(vTL[b]+8,4)}, v{vTS[b]}, {sr(sWS,4)}, 0 offen{SCT}")
        a.e(f"buffer_store_dwordx4 {vr(vTL[b]+12,4)}, v{vTS[b]}, {sr(sWS,4)}, 0 offen offset:16{SCT}")
    a.e(f"s_add_u32 s{sIT+3}, s{sIT+3}, 1")
    a.e(f"s_cmp_lt_u32 s{sIT+3}, 2")
    a.e("s_cbranch_scc1 K1_TL")
    if DIAG:
        for i in (1, 2, 3, 5):
            stamp(a, i)
    k1flush()
    if ONE:
        a.e("s_waitcnt vmcnt(0)")
        a.e("s_barrier")
        a.e(f"s_cmp_lg_u32 s{sW}, 0")
        a.e("s_cbranch_scc1 P2_ENTRY")
        if "T" in WB:
            a.e("buffer_wbl2 sc1")
            a.e("s_waitcnt vmcnt(0)")
        a.e(f"v_lshlrev_b32 v22, 7, v{vLANE}")
        a.e(f"s_lshl_b32 s{t1}, s{sRB}, 2")
        a.e(f"s_add_u32 s{t1}, s{t1}, {hx(FL_OFF + FH_REL + 16*128)}")
        a.e("s_mov_b64 exec, 15")
        a.e(f"buffer_store_dword v21, v22, {sr(sWS,4)}, s{t1} offen sc1")
        a.e("s_mov_b64 exec, -1")
        a.e("s_branch P2_ENTRY")
    a.lab("K1_END")
    a.e("s_endpgm")
    return name, NV, 102 if DIAG else 80, (256, 768, K1_LDS)


K2_LDS = 163840
Y_OFF = 0x1400000
Y_SIZE = 2048 * 640 * 4
WS_ALL = Y_OFF + Y_SIZE


def gen_k2(a):
    name = "k2_attn_kernel"
    if ONE:
        a.raw(".p2align 6")
        a.lab("P2_ENTRY")
    else:
        kernel_header(a, name)
    X2 = os.environ.get("K2X", "")
    sWS, sKV = 12, 16
    sW, sH, sQT, sOFF, sIT, sG = 20, 21, 22, 23, 24, 25
    sLD = 26
    t0, t1, t2, t3 = 28, 29, 30, 31
    sBM = 32
    vLANE = 1
    vL16, vKa, vKb, vV = 2, 3, 4, 5
    vT = 6
    QA, QB = [12, 20], [16, 24]
    KA, KB = 28, 32
    V0, V1 = 36, 40
    P0, P1 = 44, 48
    O = [64, 80]
    S = [96, 112]
    NV = 168
    RG = 81920
    FUSE = "u" not in X2
    k2flush = lambda: (stamp(a, 4), stamp_flush(a, 1, 12, sW, "s4", "s5", 8, 2))

    if not ONE:
        a.e("s_cmp_ge_u32 s2, 256")
        a.e("s_cbranch_scc1 K2_END")
    stamp(a, 0)
    a.e("s_load_dwordx2 s[4:5], s[0:1], 80")
    a.e("s_load_dwordx2 s[6:7], s[0:1], 0")
    a.e("s_load_dwordx2 s[8:9], s[0:1], 56")
    a.e("s_load_dwordx4 s[60:63], s[0:1], 64")
    a.e(f"v_and_b32 v{vLANE}, 63, v0")
    a.e(f"v_lshrrev_b32 v{vT}, 6, v0")
    a.e(f"s_and_b32 s{t0}, s2, 7")
    a.e(f"v_readfirstlane_b32 s{sW}, v{vT}")
    a.e(f"s_lshr_b32 s{t1}, s2, 3")
    a.e(f"s_lshl_b32 s{t2}, s{t0}, 2")
    a.e(f"s_and_b32 s{t3}, s{t1}, 3")
    a.e(f"s_add_u32 s{sH}, s{t2}, s{t3}")
    a.e(f"v_lshlrev_b32 v{vL16}, 4, v{vLANE}")
    a.e(f"s_mul_i32 s{t2}, s{sH}, {KVH}")
    a.e(f"s_add_u32 s{t2}, s{t2}, {hx(KV_OFF)}")
    a.e("s_waitcnt lgkmcnt(0)")
    stamp(a, 5)
    a.e(f"s_add_u32 s{sKV}, s4, s{t2}")
    a.e(f"s_addc_u32 s{sKV+1}, s5, 0")
    a.e(f"s_mov_b32 s{sKV+2}, {KVH}")
    a.e(f"s_mov_b32 s{sKV+3}, 0x00020000")
    sFL = 64

    def gpoll(tag, vaddr, vd):
        a.e(f"s_mov_b32 s{sIT}, 0")
        a.lab(f"GP_{tag}")
        a.e(f"buffer_load_dword v{vd}, v{vaddr}, {sr(sFL,4)}, 0 offen sc1")
        a.e(f"s_add_u32 s{sIT}, s{sIT}, 1")
        a.e("s_waitcnt vmcnt(0)")
        a.e(f"v_cmp_ne_u32 vcc, 1, v{vd}")
        a.e(f"s_cmp_ge_u32 s{sIT}, {POLL_MAX}")
        a.e(f"s_cbranch_scc1 GD_{tag}")
        a.e(f"s_cbranch_vccz GD_{tag}")
        a.e("s_sleep 3")
        a.e(f"s_branch GP_{tag}")
        a.lab(f"GD_{tag}")

    if ONE:
        a.e(f"v_mov_b32 v{vT+5}, {K1_SYN + 8}")
        a.e(f"s_cmp_lg_u32 s{sW}, 0")
        a.e("s_cbranch_scc1 P2_SPIN")
        srd_off(a, sFL, "s4", "s5", FL_OFF, FL_SIZE)
        a.e(f"s_mul_i32 s{t2}, s{sH}, 20")
        a.e(f"s_and_b32 s{t3}, s2, 3")
        a.e(f"s_lshl_b32 s{t3}, s{t3}, 11")
        a.e(f"s_add_u32 s{t3}, s{t3}, {FQ_REL}")
        a.e(f"v_lshrrev_b32 v{vT}, 5, v{vLANE}")
        a.e(f"v_mul_u32_u24 v{vT}, 640, v{vT}")
        a.e(f"v_bfe_u32 v{vT+1}, v{vLANE}, 4, 1")
        a.e(f"v_mul_u32_u24 v{vT+1}, 19, v{vT+1}")
        a.e(f"v_add3_u32 v{vT}, v{vT}, v{vT+1}, s{t2}")
        a.e(f"v_add_u32 v{vT}, 640, v{vT}")
        a.e(f"v_and_b32 v{vT}, 0xffffff80, v{vT}")
        a.e(f"v_and_b32 v{vT+1}, 15, v{vLANE}")
        a.e(f"v_lshl_add_u32 v{vT}, v{vT+1}, 2, v{vT}")
        a.e(f"v_add_u32 v{vT}, s{t3}, v{vT}")
        a.e(f"v_and_b32 v{vT+2}, 1, v{vLANE}")
        a.e(f"v_mul_u32_u24 v{vT+2}, 19, v{vT+2}")
        a.e(f"v_add_u32 v{vT+2}, s{t2}, v{vT+2}")
        a.e(f"v_and_b32 v{vT+2}, 0xffffff80, v{vT+2}")
        a.e(f"v_bfe_u32 v{vT+3}, v{vLANE}, 1, 1")
        a.e(f"s_lshr_b32 s{t2}, s2, 5")
        a.e(f"s_lshl_b32 s{t2}, s{t2}, 1")
        a.e(f"v_add_u32 v{vT+3}, s{t2}, v{vT+3}")
        a.e(f"v_lshl_add_u32 v{vT+2}, v{vT+3}, 2, v{vT+2}")
        a.e(f"v_lshlrev_b32 v{vT+3}, 2, v{vT+1}")
        a.e(f"v_add_u32 v{vT+3}, {15*128}, v{vT+3}")
        a.e(f"v_cmp_gt_u32 vcc, 16, v{vLANE}")
        a.e("s_nop 1")
        a.e(f"v_cndmask_b32 v{vT+2}, v{vT+2}, v{vT+3}, vcc")
        a.e(f"v_add_u32 v{vT+2}, s{t3}, v{vT+2}")
        gpoll("kv", vT, vT + 4)
        a.e("s_mov_b64 exec, 0xfffff")
        gpoll("q", vT + 2, vT + 4)
        a.e("s_mov_b64 exec, -1")
        a.e(f"v_mov_b32 v{vT+4}, 1")
        a.e(f"ds_write_b32 v{vT+5}, v{vT+4}")
        a.e("s_branch P2_GO")
        a.lab("P2_SPIN")
        a.e(f"ds_read_b32 v{vT+4}, v{vT+5}")
        a.e("s_waitcnt lgkmcnt(0)")
        a.e(f"v_readfirstlane_b32 s{t2}, v{vT+4}")
        a.e(f"s_cmp_eq_u32 s{t2}, 1")
        a.e("s_cbranch_scc1 P2_GO")
        a.e("s_sleep 1")
        a.e("s_branch P2_SPIN")
        a.lab("P2_GO")
        stamp(a, 5)
    a.e(f"s_cmp_ge_u32 s{sW}, 4")
    a.e("s_cbranch_scc1 K2_ATT")
    sA, sWT, sXX, sB2, sY = 36, 40, 44, 48, 52
    sRB, sCB, sOA, sOW = 56, 57, 58, 59
    vOA, vOW, vXO, vBO, vYO = 3, 4, 5, 12, 13
    F = 16
    ACC = 88

    def fA(s_, mt):
        return F + 36 * s_ + 4 * mt

    def fW(s_, t):
        return F + 36 * s_ + 16 + 4 * t

    def kvdma(n):
        for t in range(n):
            a.e(f"s_mov_b32 m0, s{sLD}")
            a.e(f"s_add_u32 s{sLD}, s{sLD}, 2048")
            a.e(f"buffer_load_dwordx4 v{vL16}, {sr(sKV,4)}, s{sOFF} offen{SC} lds")
            a.e(f"s_add_u32 s{sOFF}, s{sOFF}, 2048")

    a.e("s_setprio 3")
    a.e(f"s_and_b32 s{t2}, s{sW}, 1")
    a.e(f"s_lshr_b32 s{t3}, s{sW}, 1")
    a.e(f"s_lshl_b32 s{t3}, s{t3}, 10")
    a.e(f"s_mul_i32 s{sOFF}, s{t2}, {32*KVT}")
    a.e(f"s_add_u32 s{sOFF}, s{sOFF}, s{t3}")
    a.e(f"s_mul_i32 s{sLD}, s{t2}, {RG}")
    a.e(f"s_add_u32 s{sLD}, s{sLD}, s{t3}")
    kvdma(9)
    a.e(f"s_lshl_b32 s{t0}, s{t0}, 2")
    a.e(f"s_and_b32 s{t2}, s{t1}, 3")
    a.e(f"s_add_u32 s{sRB}, s{t0}, s{t2}")
    a.e(f"s_lshr_b32 s{sCB}, s{t1}, 2")
    srd_off(a, sA, "s4", "s5", AB_OFF + 80 * 32768, AB_SIZE - 80 * 32768)
    srd_off(a, sWT, "s4", "s5", WT_OFF + 80 * 10240, WT_SIZE - 80 * 10240)
    srd(a, sXX, "s6", "s7", 2048 * 640 * 2)
    srd(a, sB2, "s8", "s9", 640 * 2)
    srd_off(a, sY, "s4", "s5", Y_OFF, Y_SIZE)
    a.e(f"v_and_b32 v{vT}, 15, v{vLANE}")
    a.e(f"v_lshrrev_b32 v{vT+1}, 4, v{vLANE}")
    a.e(f"s_lshl_b32 s{t0}, s{sRB}, 6")
    a.e(f"v_add_u32 v{vT+2}, s{t0}, v{vT}")
    a.e(f"v_lshlrev_b32 v{vOA}, 4, v{vT+2}")
    a.e(f"v_lshl_add_u32 v{vOA}, v{vT+1}, 15, v{vOA}")
    a.e(f"s_mul_i32 s{t1}, s{sCB}, 80")
    a.e(f"v_add_u32 v{vT+3}, s{t1}, v{vT}")
    a.e(f"v_lshlrev_b32 v{vOW}, 4, v{vT+3}")
    a.e(f"v_mul_u32_u24 v{vT+3}, 10240, v{vT+1}")
    a.e(f"v_add_u32 v{vOW}, v{vOW}, v{vT+3}")
    a.e(f"s_lshl_b32 s{sOA}, s{sW}, 17")
    a.e(f"s_mul_i32 s{sOW}, s{sW}, 40960")
    a.e(f"v_lshlrev_b32 v{vBO}, 3, v{vT+1}")
    a.e(f"s_lshl_b32 s{t2}, s{t1}, 1")
    a.e(f"v_add_u32 v{vBO}, s{t2}, v{vBO}")
    a.e(f"s_lshl_b32 s{t2}, s{sW}, 4")
    a.e(f"v_add_u32 v{vT+2}, s{t2}, v{vT+2}")
    a.e(f"v_mul_u32_u24 v{vXO}, 1280, v{vT+2}")
    a.e(f"v_add_u32 v{vXO}, v{vXO}, v{vBO}")
    a.e(f"s_lshl_b32 s{t0}, s{sRB}, 3")
    a.e(f"s_add_u32 s{t0}, s{t0}, s{sCB}")
    a.e(f"s_mul_i32 s{t0}, s{t0}, 20480")
    a.e(f"s_mul_i32 s{t2}, s{sW}, 5120")
    a.e(f"s_add_u32 s{t0}, s{t0}, s{t2}")
    a.e(f"v_add_u32 v{vYO}, s{t0}, v{vL16}")
    for i in range(80):
        a.e(f"v_mov_b32 v{ACC+i}, 0")
    a.e(f"s_mov_b32 s{sIT}, 0")
    a.e(f"s_mov_b32 s{sBM}, {hx((1 << 1) | (1 << 4))}")
    a.e(f"v_mov_b32 v{vT}, 0")
    a.e("s_waitcnt vmcnt(3)")
    a.e("s_barrier")
    stamp(a, 1)
    kvdma(31)

    def loads(s_):
        r = [f"buffer_load_dwordx4 {vr(fA(s_,mt),4)}, v{vOA}, {sr(sA,4)}, s{sOA} offen offset:{256*mt}{SC}" for mt in range(4)]
        for t in range(5):
            r.append(f"buffer_load_dwordx4 {vr(fW(s_,t),4)}, v{vOW}, {sr(sWT,4)}, s{sOW} offen offset:{256*t}{SC}")
        r.append(f"s_add_u32 s{sOA}, s{sOA}, {4*131072}")
        r.append(f"s_add_u32 s{sOW}, s{sOW}, {4*40960}")
        return r

    if ONE:
        srd_off(a, sFL, "s4", "s5", FL_OFF, FL_SIZE)
        a.e(f"v_and_b32 v{vT+1}, 15, v{vLANE}")
        a.e(f"v_min_u32 v{vT+2}, 13, v{vT+1}")
        a.e(f"v_lshlrev_b32 v{vT+2}, 2, v{vT+2}")
        a.e(f"s_lshr_b32 s{t2}, s{sRB}, 1")
        a.e(f"s_lshl_b32 s{t2}, s{t2}, 7")
        a.e(f"s_add_u32 s{t2}, s{t2}, {FH_REL}")
        a.e(f"v_add_u32 v{vT+2}, s{t2}, v{vT+2}")
        a.e(f"v_lshlrev_b32 v{vT+1}, 2, v{vT+1}")
        a.e(f"s_and_b32 s{t2}, s2, 3")
        a.e(f"s_lshl_b32 s{t2}, s{t2}, 7")
        a.e(f"s_add_u32 s{t2}, s{t2}, {FH_REL + 16*128}")
        a.e(f"v_add_u32 v{vT+1}, s{t2}, v{vT+1}")
        a.e(f"v_cmp_gt_u32 vcc, 16, v{vLANE}")
        a.e("s_nop 1")
        a.e(f"v_cndmask_b32 v{vT+1}, v{vT+1}, v{vT+2}, vcc")
        a.e("s_waitcnt vmcnt(31)")
        a.e("s_barrier")
        a.e("s_mov_b32 exec_hi, 0")
        gpoll("h", vT + 1, vT + 4)
        a.e("s_mov_b64 exec, -1")
        a.e(f"s_mov_b32 s{sIT}, 0")
        for s_ in range(2):
            for ins in loads(s_):
                a.e(ins)
    else:
        for s_ in range(2):
            for ins in loads(s_):
                a.e(ins)
        a.e("s_waitcnt vmcnt(49)")
        a.e("s_barrier")
    stamp(a, 2)
    a.e(f"ds_write_b32 v{vT}, v{vT}")
    if "n" in X2:
        a.e("s_waitcnt vmcnt(0)")
        a.e("s_barrier")
        stamp(a, 3)
        k2flush()
        a.e("s_endpgm")
    a.e(f"s_setprio {3 if 'Z' in X2 else (1 if 'y' in X2 else 0)}")
    a.raw(".p2align 3")
    a.lab("K2_GL")
    for s_ in range(2):
        ld = loads(s_)
        a.e("s_waitcnt vmcnt(9)")
        for t in range(5):
            for mt in range(4):
                A_ = ACC + 20 * mt + 4 * t
                a.e(f"v_mfma_f32_16x16x32_bf16 {vr(A_,4)}, {vr(fW(s_,t),4)}, {vr(fA(s_,mt),4)}, {vr(A_,4)}")
                if t == 4:
                    a.e(ld[mt])
            a.e(ld[4 + t])
        a.e(ld[9]); a.e(ld[10])
    a.e(f"s_add_u32 s{sIT}, s{sIT}, 1")
    a.e(f"s_bitcmp0_b32 s{sBM}, s{sIT}")
    a.e("s_cbranch_scc1 K2_GNB")
    a.e("s_waitcnt lgkmcnt(0)")
    a.e("s_barrier")
    a.lab("K2_GNB")
    a.e(f"s_cmp_lt_u32 s{sIT}, 7")
    a.e("s_cbranch_scc1 K2_GL")
    stamp(a, 3)
    a.e("s_setprio 3")
    a.e("s_waitcnt vmcnt(0)")
    XR = 68
    for q in range(5):
        a.e(f"buffer_load_dwordx2 {vr(XR+2*q,2)}, v{vXO}, {sr(sXX,4)}, 0 offen offset:{32*q}")
        a.e(f"buffer_load_dwordx2 {vr(XR+10+2*q,2)}, v{vBO}, {sr(sB2,4)}, 0 offen offset:{32*q}")
    a.e(f"s_lshr_b32 s{t0}, s{sW}, 1")
    a.e(f"s_mul_i32 s{t0}, s{t0}, {RG}")
    a.e(f"s_and_b32 s{t1}, s{sW}, 1")
    a.e(f"s_mul_i32 s{t1}, s{t1}, 20480")
    a.e(f"s_add_u32 s{t0}, s{t0}, s{t1}")
    a.e(f"s_add_u32 s{t0}, s{t0}, 1024")
    a.e(f"v_add_u32 v{vT+1}, s{t0}, v{vL16}")
    for q in range(20):
        a.e(f"ds_write_b128 v{vT+1}, {vr(ACC+4*q,4)} offset:{1024*q}")
    a.e(f"v_mov_b32 v{vT+2}, 1")
    a.e("s_waitcnt lgkmcnt(0)")
    a.e("s_mov_b64 exec, 1")
    a.e(f"ds_add_u32 v{vT}, v{vT+2}")
    a.e("s_mov_b64 exec, -1")
    a.e("s_setprio 0")
    a.lab("K2_POLL")
    a.e(f"ds_read_b32 v{vT+3}, v{vT}")
    a.e("s_waitcnt lgkmcnt(0)")
    a.e(f"v_readfirstlane_b32 s{t0}, v{vT+3}")
    a.e(f"s_cmp_lt_u32 s{t0}, 4")
    a.e("s_cbranch_scc1 K2_POLL")
    a.e("s_setprio 3")
    a.e(f"s_mul_i32 s{t0}, s{sW}, 5120")
    a.e(f"s_add_u32 s{t0}, s{t0}, 1024")
    a.e(f"v_add_u32 v{vT+1}, s{t0}, v{vL16}")
    a.e(f"v_add_u32 v{vT+2}, {RG}, v{vT+1}")
    R = ACC
    for q in range(5):
        for wv in range(4):
            base = vT + 1 if wv < 2 else vT + 2
            a.e(f"ds_read_b128 {vr(R+16*q+4*wv,4)}, v{base} offset:{(wv&1)*20480 + 1024*q}")
    a.e(f"s_movk_i32 s{t1}, 4096")
    a.e("s_waitcnt vmcnt(0)")
    for q in range(5):
        a.e(f"s_waitcnt lgkmcnt({min(15,4*(4-q))})")
        b = R + 16 * q
        for i in range(4):
            a.e(f"v_add_f32 v{b+i}, v{b+i}, v{b+4+i}")
            a.e(f"v_add_f32 v{b+8+i}, v{b+8+i}, v{b+12+i}")
        for i in range(4):
            a.e(f"v_add_f32 v{b+i}, v{b+i}, v{b+8+i}")
        for k, src in enumerate((XR + 2 * q, XR + 10 + 2 * q)):
            u = b + 4 + 4 * k
            a.e(f"v_lshlrev_b32 v{u}, 16, v{src}")
            a.e(f"v_and_b32 v{u+1}, 0xffff0000, v{src}")
            a.e(f"v_lshlrev_b32 v{u+2}, 16, v{src+1}")
            a.e(f"v_and_b32 v{u+3}, 0xffff0000, v{src+1}")
        for i in range(4):
            a.e(f"v_add_f32 v{b+i}, v{b+i}, v{b+4+i}")
        for i in range(4):
            a.e(f"v_add_f32 v{b+i}, v{b+i}, v{b+8+i}")
        if not FUSE:
            so, off = ("0", 1024 * q) if q < 4 else (f"s{t1}", 0)
            a.e(f"buffer_store_dwordx4 {vr(b,4)}, v{vYO}, {sr(sY,4)}, {so} offen offset:{off}")
    if FUSE:
        YA = [R + 16 * q for q in range(5)]
        a.e("s_barrier")
        srd_off(a, sWT, "s4", "s5", WT_OFF, 80 * 10240)
        srd_off(a, sA, "s4", "s5", AB_OFF, 80 * 32768)
        srd(a, sY, "s60", "s61", 2048 * 640 * 2)
        srd_off(a, sB2, "s4", "s5", FL_OFF, 1024)
        a.e(f"s_mul_i32 s{sOW}, s{sW}, {5*40960}")
        a.e(f"s_lshr_b32 s{t0}, s{sW}, 1")
        a.e(f"s_mul_i32 s{t0}, s{t0}, {RG}")
        a.e(f"s_and_b32 s{t1}, s{sW}, 1")
        a.e(f"s_mul_i32 s{t1}, s{t1}, 25600")
        a.e(f"s_add_u32 s{t0}, s{t0}, s{t1}")
        for r in range(5):
            for q in range(5):
                a.e(f"s_add_u32 m0, s{t0}, {r*5120 + q*768}")
                a.e("s_nop 0")
                a.e(f"buffer_load_dwordx4 v{vOW}, {sr(sWT,4)}, s{sOW} offen offset:{256*q}{SC} lds")
            a.e(f"s_add_u32 s{sOW}, s{sOW}, 40960")
        a.e(f"s_lshl_b32 s{t2}, s{sW}, 8")
        a.e(f"v_add_u32 v{vOA}, s{t2}, v{vOA}")
        a.e(f"v_and_b32 v{vYO}, 0x7fff, v{vOA}")
        a.e(f"v_lshrrev_b32 v{vYO}, 1, v{vYO}")
        a.e(f"v_and_b32 v{vBO}, 0xffff8000, v{vOA}")
        a.e(f"v_add_u32 v{vYO}, v{vYO}, v{vBO}")
        a.e(f"v_add_u32 v{vBO}, 16384, v{vYO}")
        a.e(f"v_add_u32 v{vT+2}, {RG}, v{vL16}")
        a.e(f"v_mov_b32 v{vT+1}, 1")
        a.e(f"s_lshr_b32 s{t2}, s2, 5")
        a.e(f"s_lshl_b32 s{t2}, s{t2}, 5")
        a.e(f"s_add_u32 s{t2}, s{t2}, s{sH}")
        a.e(f"s_lshl_b32 s{t2}, s{t2}, 2")
        a.e(f"s_lshr_b32 s{t3}, s{sRB}, 2")
        a.e(f"s_lshl_b32 s{t3}, s{t3}, 7")
        a.e(f"v_lshlrev_b32 v{vT+4}, 2, v{vLANE}")
        a.e("s_barrier")
        a.e("s_waitcnt vmcnt(0)")
        a.e("s_barrier")
        stamp(a, 1)
        a.e(f"s_cmp_lg_u32 s{sW}, 0")
        a.e("s_cbranch_scc1 K2_PW")
        a.e("s_mov_b64 exec, 1")
        a.e(f"buffer_store_dword v{vT+1}, v{vT}, {sr(sB2,4)}, s{t2} offen sc1")
        a.e("s_mov_b32 exec_lo, -1")
        a.e(f"s_mov_b32 s{sIT}, 0")
        a.lab("K2_GP")
        a.e(f"buffer_load_dword v{vT+3}, v{vT+4}, {sr(sB2,4)}, s{t3} offen sc1")
        a.e(f"s_add_u32 s{sIT}, s{sIT}, 1")
        a.e("s_waitcnt vmcnt(0)")
        a.e(f"v_cmp_ne_u32 vcc, 1, v{vT+3}")
        a.e(f"s_cmp_ge_u32 s{sIT}, {1 << 21}")
        a.e("s_cbranch_scc1 K2_GPD")
        a.e("s_cbranch_vccz K2_GPD")
        a.e("s_sleep 4")
        a.e("s_branch K2_GP")
        a.lab("K2_GPD")
        a.e("s_mov_b64 exec, -1")
        a.lab("K2_PW")
        a.e("s_barrier")
        stamp(a, 2)
        FAr = [16 + 4 * i for i in range(18)] + [R + 4, R + 8]
        FBr = [[R + 20, R + 24, R + 28, R + 36, R + 40], [R + 44, R + 52, R + 56, R + 60, R + 68]]
        a.e(f"s_mov_b32 s{sOA}, 0")
        for ks in range(20):
            if ks < 16:
                a.e(f"buffer_load_dwordx4 {vr(FAr[ks],4)}, v{vOA}, {sr(sA,4)}, s{sOA} offen sc1")
            else:
                a.e(f"buffer_load_dwordx2 {vr(FAr[ks],2)}, v{vYO}, {sr(sA,4)}, s{sOA} offen sc1")
                a.e(f"buffer_load_dwordx2 {vr(FAr[ks]+2,2)}, v{vBO}, {sr(sA,4)}, s{sOA} offen sc1")
            a.e(f"s_add_u32 s{sOA}, s{sOA}, 131072")

        def rdB(ks):
            base, off = (vL16, ks * 5120) if ks < 10 else (vT + 2, (ks - 10) * 5120)
            return [f"ds_read_b128 {vr(FBr[ks&1][t],4)}, v{base} offset:{off+1024*t}" for t in range(5)]

        for ins in rdB(0):
            a.e(ins)
        for ks in range(20):
            if ks < 19:
                for ins in rdB(ks + 1):
                    a.e(ins)
            a.e(f"s_waitcnt vmcnt({23-ks if ks < 16 else 2*(19-ks)}) lgkmcnt({5 if ks < 19 else 0})")
            for t in range(5):
                a.e(f"v_mfma_f32_16x16x32_bf16 {vr(YA[t],4)}, {vr(FBr[ks&1][t],4)}, {vr(FAr[ks],4)}, {vr(YA[t],4)}")
        a.e("s_nop 7")
        for t in range(5):
            A_ = YA[t]
            if os.environ.get("OUTBIAS"):
                for i in range(4):
                    a.e(f"v_add_f32 v{A_+i}, {hx(f32(float(os.environ['OUTBIAS'])))}, v{A_+i}")
            a.e(f"v_cvt_pk_bf16_f32 v{A_}, v{A_}, v{A_+1}")
            a.e(f"v_cvt_pk_bf16_f32 v{A_+1}, v{A_+2}, v{A_+3}")
            a.e(f"buffer_store_dwordx2 {vr(A_,2)}, v{vXO}, {sr(sY,4)}, 0 offen offset:{32*t}")
    k2flush()
    a.e("s_endpgm")

    a.lab("K2_ATT")
    vKa0, vKb0, vV0 = 52, 53, 54
    srd(a, sWS, "s4", "s5", WS_END)
    if "C" in X2:
        NPF = int(os.environ.get("NPF", "8"))
        a.e(f"s_cmp_ge_u32 s2, {NPF}")
        a.e("s_cbranch_scc1 K2_NOCP")
        a.e(f"s_cmp_ge_u32 s{sW}, 6")
        a.e("s_cbranch_scc1 K2_NOCP")
        a.e(f"s_and_b32 s{t0}, s{sW}, 1")
        code_prefetch(a, "k2", "k2_attn_kernel", "CODE_END", 36, t0, vLANE, vT, 60)
        a.lab("K2_NOCP")
    a.e(f"s_lshr_b32 s{sG}, s{sW}, 3")
    a.e(f"s_lshr_b32 s{t1}, s{t1}, 2")
    a.e(f"s_lshl_b32 s{t1}, s{t1}, 3")
    a.e(f"s_and_b32 s{t2}, s{sW}, 3")
    a.e(f"s_lshl_b32 s{t2}, s{t2}, 1")
    a.e(f"s_add_u32 s{sQT}, s{t1}, s{t2}")
    a.e(f"s_mul_i32 s{t0}, s{sH}, 81920")
    a.e(f"s_mul_i32 s{t1}, s{sQT}, 1280")
    a.e(f"s_add_u32 s{t0}, s{t0}, s{t1}")
    if QB_OFF:
        a.e(f"s_add_u32 s{t0}, s{t0}, {hx(QB_OFF)}")
    a.e(f"v_and_b32 v{vT}, 31, v{vLANE}")
    a.e(f"v_lshrrev_b32 v{vT+1}, 5, v{vLANE}")
    a.e(f"v_lshlrev_b32 v{vKb0}, 3, v{vT}")
    a.e(f"v_lshl_add_u32 v{vT+2}, v{vT+1}, 30, v{vKb0}")
    a.e(f"v_add_u32 v{vKb0}, 1024, v{vKb0}")
    a.e(f"v_mov_b32 v{vKa0}, v{vL16}")
    a.e(f"v_min_u32 v{vT+3}, 20, v{vT}")
    a.e(f"v_mul_u32_u24 v{vV0}, {VP}, v{vT+1}")
    a.e(f"v_lshl_add_u32 v{vV0}, v{vT+3}, 4, v{vV0}")
    a.e(f"v_add_u32 v{vV0}, 1280, v{vV0}")
    a.e(f"s_mul_i32 s{sOFF}, s{sG}, {32*KVT}")
    a.e(f"s_add_u32 s{sOFF}, s{sOFF}, {31*KVT}")
    a.e(f"buffer_load_dwordx4 {vr(QA[0],4)}, v{vL16}, {sr(sWS,4)}, s{t0} offen{SC}")
    a.e(f"buffer_load_dwordx2 {vr(QB[0],2)}, v{vT+2}, {sr(sWS,4)}, s{t0} offen offset:1024{SC}")
    a.e(f"buffer_load_dwordx4 {vr(KA,4)}, v{vKa0}, {sr(sKV,4)}, s{sOFF} offen{SC}")
    a.e(f"buffer_load_dwordx2 {vr(KB,2)}, v{vKb0}, {sr(sKV,4)}, s{sOFF} offen{SC}")
    a.e(f"buffer_load_dwordx4 {vr(QA[1],4)}, v{vL16}, {sr(sWS,4)}, s{t0} offen offset:1280{SC}")
    a.e(f"buffer_load_dwordx2 {vr(QB[1],2)}, v{vT+2}, {sr(sWS,4)}, s{t0} offen offset:2304{SC}")
    a.e(f"buffer_load_dwordx4 {vr(V0,4)}, v{vV0}, {sr(sKV,4)}, s{sOFF} offen{SC}")
    a.e(f"buffer_load_dwordx4 {vr(V1,4)}, v{vV0}, {sr(sKV,4)}, s{sOFF} offen offset:{2*VP}{SC}")
    a.e(f"s_mul_i32 s{t1}, s{sG}, {RG}")
    a.e(f"v_add_u32 v{vKa}, s{t1}, v{vKa0}")
    a.e(f"v_add_u32 v{vKb}, s{t1}, v{vKb0}")
    a.e(f"v_add_u32 v{vV}, s{t1}, v{vV0}")
    for i in range(32):
        a.e(f"v_mov_b32 v{O[0]+i}, 0")
    a.e(f"s_mov_b32 s{sIT}, 0")
    a.e(f"s_mov_b32 s{sBM}, {hx((1 << 1) | (1 << 2) | (1 << 6) | (1 << 9))}")
    a.e("s_waitcnt vmcnt(4)")
    a.e(f"v_mfma_f32_32x32x16_bf16 {vr(S[0],16)}, {vr(KA,4)}, {vr(QA[0],4)}, 0")
    a.e(f"v_mfma_f32_32x32x8_bf16 {vr(S[0],16)}, {vr(KB,2)}, {vr(QB[0],2)}, {vr(S[0],16)}")
    a.e("s_waitcnt vmcnt(0)")
    a.e("s_nop 7")
    a.e("s_barrier")
    stamp(a, 1)

    def rdKa(t):
        return f"ds_read_b128 {vr(KA,4)}, v{vKa} offset:{KVT*t}"

    def rdKb(t):
        return f"ds_read_b64 {vr(KB,2)}, v{vKb} offset:{KVT*t}"

    def rdV(m, t):
        return f"ds_read_b128 {vr(V0 if m == 0 else V1,4)}, v{vV} offset:{KVT*t + 2*VP*m}"

    def item(x, lt, first=False, last=False):
        Sc, Sn = S[x], S[x ^ 1]

        def ex(lo):
            for i in range(lo, lo + 4):
                a.e(f"v_exp_f32 v{Sc+i}, v{Sc+i}")

        def cv(P, lo):
            a.e(f"v_cvt_pk_bf16_f32 v{P}, v{Sc+lo}, v{Sc+lo+1}")
            a.e(f"v_cvt_pk_bf16_f32 v{P+1}, v{Sc+lo+2}, v{Sc+lo+3}")

        doqk = not (last and x == 1)
        if x == 1 and doqk:
            a.e(f"s_waitcnt lgkmcnt({1 if first else 2})")
        if doqk:
            a.e(f"v_mfma_f32_32x32x16_bf16 {vr(Sn,16)}, {vr(KA,4)}, {vr(QA[x^1],4)}, 0")
        if x == 0 and not last:
            a.e(rdKa(lt + 1))
        ex(0)
        cv(P0, 0)
        if x == 1 and doqk:
            a.e(f"s_waitcnt lgkmcnt({0 if first else 1})")
        if doqk:
            a.e(f"v_mfma_f32_32x32x8_bf16 {vr(Sn,16)}, {vr(KB,2)}, {vr(QB[x^1],2)}, {vr(Sn,16)}")
        if x == 0 and not last:
            a.e(rdKb(lt + 1))
        ex(4)
        cv(P0 + 2, 4)
        if not (first and x == 0):
            if x == 1 and not first:
                a.e("s_waitcnt lgkmcnt(0)")
            a.e(f"v_mfma_f32_32x32x16_bf16 {vr(O[x^1],16)}, {vr(V1,4)}, {vr(P1,4)}, {vr(O[x^1],16)}")
            if x == 0:
                a.e(rdV(1, lt))
        ex(8)
        cv(P1, 8)
        if x == 0 and not first:
            a.e(f"s_waitcnt lgkmcnt({1 if last else 3})")
        a.e(f"v_mfma_f32_32x32x16_bf16 {vr(O[x],16)}, {vr(V0,4)}, {vr(P0,4)}, {vr(O[x],16)}")
        if x == 1 and not last:
            a.e(rdV(0, lt + 1))
        ex(12)
        cv(P1 + 2, 12)

    def item_b(x, lt, first=False, last=False):
        Sc, Sn = S[x], S[x ^ 1]
        doqk = not (last and x == 1)
        dopv = not (first and x == 0)
        G = int(os.environ.get("K2G", "4"))
        ms = []
        if doqk:
            m = []
            if x == 1:
                m.append(f"s_waitcnt lgkmcnt({1 if first else 3})")
            m.append(f"v_mfma_f32_32x32x16_bf16 {vr(Sn,16)}, {vr(KA,4)}, {vr(QA[x^1],4)}, 0")
            if x == 0 and not last:
                m.append(rdKa(lt + 1))
            ms.append(m)
            m = []
            if x == 1:
                m.append(f"s_waitcnt lgkmcnt({0 if first else 2})")
            m.append(f"v_mfma_f32_32x32x8_bf16 {vr(Sn,16)}, {vr(KB,2)}, {vr(QB[x^1],2)}, {vr(Sn,16)}")
            if x == 0 and not last:
                m.append(rdKb(lt + 1))
            ms.append(m)
        else:
            ms.append(["s_nop 1"])
        if dopv:
            m = []
            if x == 1 and not first:
                m.append("s_waitcnt lgkmcnt(1)")
            m.append(f"v_mfma_f32_32x32x16_bf16 {vr(O[x^1],16)}, {vr(V0,4)}, {vr(PP[x^1],4)}, {vr(O[x^1],16)}")
            if x == 0:
                m.append(rdV(0, lt))
            ms.append(m)
            m = []
            if x == 1 and not first:
                m.append("s_waitcnt lgkmcnt(0)")
            m.append(f"v_mfma_f32_32x32x16_bf16 {vr(O[x^1],16)}, {vr(V1,4)}, {vr(PP[x^1]+4,4)}, {vr(O[x^1],16)}")
            if x == 0:
                m.append(rdV(1, lt))
            ms.append(m)
        vs = []
        for g in range(4):
            v = [f"v_exp_f32 v{Sc+4*g+i}, v{Sc+4*g+i}" for i in range(4)]
            v.append(f"v_cvt_pk_bf16_f32 v{PP[x]+2*g}, v{Sc+4*g}, v{Sc+4*g+1}")
            v.append(f"v_cvt_pk_bf16_f32 v{PP[x]+2*g+1}, v{Sc+4*g+2}, v{Sc+4*g+3}")
            vs.append(v)
        mi = vi = 0
        while mi < len(ms) or vi < len(vs):
            for _ in range(G):
                if mi < len(ms):
                    for ins in ms[mi]:
                        a.e(ins)
                    mi += 1
            for _ in range(G):
                if vi < len(vs):
                    for ins in vs[vi]:
                        a.e(ins)
                    vi += 1

    BUNCH = "b" in X2
    PP = [P0, 128]
    if BUNCH:
        item = item_b
    a.e("s_setprio 2")
    item(0, -1, first=True)
    item(1, -1, first=True)
    a.raw(".p2align 6")
    a.lab("K2_LOOP")
    a.e(f"s_bitcmp1_b32 s{sBM}, s{sIT}")
    a.e("s_cbranch_scc1 K2_BAR")
    a.lab("K2_BODY")
    NT = 3
    for t in range(NT):
        for x in range(2):
            if "p" in X2:
                if 2 * t + x == 0:
                    a.e("s_setprio 2")
                if 2 * t + x == NT:
                    a.e("s_setprio 1")
            else:
                a.e(f"s_setprio {2 - x}")
            item(x, t)
    a.e(f"v_add_u32 v{vKa}, {KVT*NT}, v{vKa}")
    a.e(f"v_add_u32 v{vKb}, {KVT*NT}, v{vKb}")
    a.e(f"v_add_u32 v{vV}, {KVT*NT}, v{vV}")
    a.e(f"s_add_u32 s{sIT}, s{sIT}, 1")
    a.e(f"s_cmp_lt_u32 s{sIT}, 10")
    a.e("s_cbranch_scc1 K2_LOOP")
    item(0, 0, last=True)
    item(1, 0, last=True)
    stamp(a, 3)
    a.e("s_nop 1")
    if BUNCH:
        a.e(f"v_mfma_f32_32x32x16_bf16 {vr(O[1],16)}, {vr(V0,4)}, {vr(PP[1],4)}, {vr(O[1],16)}")
        a.e(f"v_mfma_f32_32x32x16_bf16 {vr(O[1],16)}, {vr(V1,4)}, {vr(PP[1]+4,4)}, {vr(O[1],16)}")
    else:
        a.e(f"v_mfma_f32_32x32x16_bf16 {vr(O[1],16)}, {vr(V1,4)}, {vr(P1,4)}, {vr(O[1],16)}")
    a.e(f"s_and_b32 s{t2}, s{sW}, 3")
    a.e(f"s_lshl_b32 s{t2}, s{t2}, 12")
    a.e(f"s_add_u32 s{t2}, s{t2}, 53248")
    a.e(f"s_mul_i32 s{t0}, s{sG}, {RG}")
    a.e(f"s_add_u32 s{t0}, s{t0}, s{t2}")
    a.e(f"s_xor_b32 s{t1}, s{sG}, 1")
    a.e(f"s_mul_i32 s{t1}, s{t1}, {RG}")
    a.e(f"s_add_u32 s{t1}, s{t1}, s{t2}")
    a.e(f"v_add_u32 v{vT}, s{t0}, v{vL16}")
    a.e(f"v_add_u32 v{vT+1}, s{t1}, v{vL16}")
    a.e(f"s_add_u32 s{sQT}, s{sQT}, s{sG}")
    a.e(f"s_cmp_eq_u32 s{sG}, 1")
    a.e("s_cbranch_scc1 K2_X1")
    a.e("s_nop 3")
    for q in range(4):
        a.e(f"ds_write_b128 v{vT}, {vr(O[1]+4*q,4)} offset:{1024*q}")
    a.e("s_branch K2_X2")
    a.lab("K2_X1")
    for q in range(4):
        a.e(f"ds_write_b128 v{vT}, {vr(O[0]+4*q,4)} offset:{1024*q}")
    a.e("s_nop 1")
    for i in range(16):
        a.e(f"v_mov_b32 v{O[0]+i}, v{O[1]+i}")
    for i in range(4):
        a.e(f"v_mov_b32 v{QA[0]+i}, v{QA[1]+i}")
    for i in range(2):
        a.e(f"v_mov_b32 v{QB[0]+i}, v{QB[1]+i}")
    a.lab("K2_X2")
    OO = O[0]
    sS0, sS1 = 34, 35
    a.e(f"s_lshl_b32 s{t0}, s{sH}, 16")
    a.e(f"s_add_u32 s{sS0}, s{t0}, {hx(AB_OFF)}")
    a.e(f"s_lshl_b32 s{t0}, s{sH}, 14")
    a.e(f"s_add_u32 s{sS1}, s{t0}, {hx(AB_OFF + 64*32768)}")
    a.e(f"s_lshl_b32 s{t3}, s{sQT}, 9")
    vSA0, vSA1 = 56, 57
    a.e(f"v_and_b32 v{vT+2}, 31, v{vLANE}")
    a.e(f"v_lshlrev_b32 v{vT+2}, 4, v{vT+2}")
    a.e(f"v_add_u32 v{vT+2}, s{t3}, v{vT+2}")
    a.e(f"v_lshrrev_b32 v{vT+3}, 5, v{vLANE}")
    a.e(f"v_lshl_add_u32 v{vSA0}, v{vT+3}, 15, v{vT+2}")
    a.e(f"v_lshrrev_b32 v{vT+2}, 1, v{vT+2}")
    a.e(f"v_lshl_add_u32 v{vSA1}, v{vT+3}, 30, v{vT+2}")
    a.e("s_waitcnt lgkmcnt(0)")
    a.e("s_barrier")
    for q in range(4):
        a.e(f"ds_read_b128 {vr(S[0]+4*q,4)}, v{vT+1} offset:{1024*q}")
    a.e(f"v_mov_b32 v{vT+3}, {hx(f32(2.0**-60))}")
    a.e(f"v_mov_b32 v{vT+4}, {hx(f32(2.0**100))}")
    a.e(f"v_mov_b32 v{vT+5}, {hx(f32(2.0**120))}")
    a.e("s_waitcnt lgkmcnt(0)")
    for i in range(13):
        a.e(f"v_add_f32 v{OO+i}, v{OO+i}, v{S[0]+i}")
    a.e(f"v_max3_f32 v{vT+1}, abs(v{OO}), abs(v{OO+1}), abs(v{OO+2})")
    for i in range(3, 11, 2):
        a.e(f"v_max3_f32 v{vT+1}, abs(v{OO+i}), abs(v{OO+i+1}), v{vT+1}")
    a.e(f"v_max_f32 v{vT+1}, abs(v{OO+11}), v{vT+1}")
    a.e(f"v_add_f32 v{vT+2}, v{OO}, v{OO+1}")
    for i in range(2, 12):
        a.e(f"v_add_f32 v{vT+2}, v{vT+2}, v{OO+i}")
    a.e(f"v_cmp_gt_f32 {sr(t0,2)}, v{OO+12}, v{vT+3}")
    a.e(f"v_cmp_lt_f32 {sr(t2,2)}, v{OO+12}, v{vT+4}")
    a.e(f"v_cmp_lt_f32 vcc, v{vT+1}, v{vT+5}")
    a.e("s_nop 1")
    a.e(f"s_and_b64 {sr(t0,2)}, {sr(t0,2)}, {sr(t2,2)}")
    a.e(f"s_and_b64 {sr(t0,2)}, {sr(t0,2)}, vcc")
    a.e(f"v_cmp_o_f32 vcc, v{vT+2}, v{vT+2}")
    a.e("s_nop 1")
    a.e(f"s_and_b64 {sr(t0,2)}, {sr(t0,2)}, vcc")
    a.e(f"s_cmp_eq_u64 {sr(t0,2)}, -1")
    a.e("s_cbranch_scc0 K2_SLOW")
    a.lab("K2_FIN")
    a.e(f"v_rcp_f32 v{vT}, v{OO+12}")
    a.e("s_nop 0")
    for i in range(12):
        a.e(f"v_mul_f32 v{OO+i}, v{OO+i}, v{vT}")
    for i in range(6):
        a.e(f"v_cvt_pk_bf16_f32 v{OO+i}, v{OO+2*i}, v{OO+2*i+1}")
    sc = " sc1" if FUSE else ""
    a.e(f"buffer_store_dwordx4 {vr(OO,4)}, v{vSA0}, {sr(sWS,4)}, s{sS0} offen{sc}")
    a.e(f"buffer_store_dwordx2 {vr(OO+4,2)}, v{vSA1}, {sr(sWS,4)}, s{sS1} offen{sc}")
    if FUSE:
        a.e("s_waitcnt vmcnt(0)")
        a.e("s_barrier")
    k2flush()
    a.lab("K2_END")
    a.e("s_endpgm")
    a.lab("K2_BAR")
    a.e("s_barrier")
    stamp(a, 2)
    a.e("s_branch K2_BODY")
    a.lab("K2_SLOW")
    vM = 58
    Sc = S[0]
    for ps in range(2):
        if ps == 0:
            a.e(f"v_mov_b32 v{vM}, 0xff800000")
        else:
            for i in range(16):
                a.e(f"v_mov_b32 v{OO+i}, 0")
        a.e(f"s_mov_b32 s{sOFF}, 0")
        a.lab(f"K2_SL{ps}")
        a.e(f"buffer_load_dwordx4 {vr(KA,4)}, v{vKa0}, {sr(sKV,4)}, s{sOFF} offen{SC}")
        a.e(f"buffer_load_dwordx2 {vr(KB,2)}, v{vKb0}, {sr(sKV,4)}, s{sOFF} offen{SC}")
        if ps == 1:
            a.e(f"buffer_load_dwordx4 {vr(V0,4)}, v{vV0}, {sr(sKV,4)}, s{sOFF} offen{SC}")
            a.e(f"buffer_load_dwordx4 {vr(V1,4)}, v{vV0}, {sr(sKV,4)}, s{sOFF} offen offset:{2*VP}{SC}")
        a.e("s_waitcnt vmcnt(0)")
        a.e(f"v_mfma_f32_32x32x16_bf16 {vr(Sc,16)}, {vr(KA,4)}, {vr(QA[0],4)}, 0")
        a.e(f"v_mfma_f32_32x32x8_bf16 {vr(Sc,16)}, {vr(KB,2)}, {vr(QB[0],2)}, {vr(Sc,16)}")
        a.e("s_nop 15")
        a.e("s_nop 3")
        if ps == 0:
            for i in range(0, 16, 2):
                a.e(f"v_max3_f32 v{vM}, v{Sc+i}, v{Sc+i+1}, v{vM}")
        else:
            for i in range(16):
                a.e(f"v_sub_f32 v{Sc+i}, v{Sc+i}, v{vM}")
            for i in range(16):
                a.e(f"v_exp_f32 v{Sc+i}, v{Sc+i}")
            a.e("s_nop 0")
            for i in range(8):
                a.e(f"v_cvt_pk_bf16_f32 v{P0+i}, v{Sc+2*i}, v{Sc+2*i+1}")
            a.e("s_nop 1")
            a.e(f"v_mfma_f32_32x32x16_bf16 {vr(OO,16)}, {vr(V0,4)}, {vr(P0,4)}, {vr(OO,16)}")
            a.e(f"v_mfma_f32_32x32x16_bf16 {vr(OO,16)}, {vr(V1,4)}, {vr(P1,4)}, {vr(OO,16)}")
            a.e("s_nop 7")
        a.e(f"s_add_u32 s{sOFF}, s{sOFF}, {KVT}")
        a.e(f"s_cmp_lt_u32 s{sOFF}, {KVH}")
        a.e(f"s_cbranch_scc1 K2_SL{ps}")
        if ps == 0:
            a.e(f"v_mov_b32 v{vT+4}, v{vM}")
            a.e("s_nop 1")
            a.e(f"v_permlane32_swap_b32 v{vM}, v{vT+4}")
            a.e(f"v_max_f32 v{vM}, v{vM}, v{vT+4}")
    a.e("s_nop 15")
    a.e("s_nop 3")
    a.e("s_branch K2_FIN")
    return name, NV, 102 if DIAG else 80, (256, 768, K2_LDS)


K3_LDS = 102400


def gen_k3(a):
    name = "k3_out_kernel"
    kernel_header(a, name)
    sA, sWT, sY, sO = 12, 16, 20, 24
    sW, sRB, sCB, sOW, sM = 32, 33, 34, 35, 36
    t0, t1, t2, t3 = 38, 39, 40, 41
    vLANE, vOA, vOW, vYO, vOO, vRD = 1, 2, 3, 4, 5, 6
    vT = 8
    ACC = 12
    FB = 32
    FA = 72
    NV = 152
    k3flush = lambda: (stamp(a, 4), stamp_flush(a, 2, 8, sW, "s6", "s7", 8, 2))

    a.e("s_cmp_ge_u32 s2, 256")
    a.e("s_cbranch_scc1 K3_END")
    stamp(a, 0)
    a.e("s_load_dwordx2 s[4:5], s[0:1], 64")
    a.e("s_load_dwordx2 s[6:7], s[0:1], 80")
    a.e(f"v_and_b32 v{vLANE}, 63, v0")
    a.e(f"v_lshrrev_b32 v{vT}, 6, v0")
    a.e(f"s_and_b32 s{t0}, s2, 7")
    a.e(f"v_readfirstlane_b32 s{sW}, v{vT}")
    a.e(f"s_lshr_b32 s{t1}, s2, 3")
    a.e(f"s_lshl_b32 s{t0}, s{t0}, 2")
    a.e(f"s_and_b32 s{t2}, s{t1}, 3")
    a.e(f"s_add_u32 s{sRB}, s{t0}, s{t2}")
    a.e(f"s_lshr_b32 s{sCB}, s{t1}, 2")
    a.e(f"v_and_b32 v{vT}, 15, v{vLANE}")
    a.e(f"v_lshrrev_b32 v{vT+1}, 4, v{vLANE}")
    a.e(f"s_cmp_ge_u32 s{sW}, 4")
    a.e("s_cbranch_scc1 K3_COMP")
    a.e(f"s_mul_i32 s{t0}, s{sCB}, 80")
    a.e(f"v_add_u32 v{vOW}, s{t0}, v{vT}")
    a.e(f"v_lshlrev_b32 v{vOW}, 4, v{vOW}")
    a.e(f"v_mul_u32_u24 v{vT+2}, 10240, v{vT+1}")
    a.e(f"v_add_u32 v{vOW}, v{vOW}, v{vT+2}")
    a.e(f"s_mul_i32 s{sOW}, s{sW}, 40960")
    a.e(f"s_mul_i32 s{sM}, s{sW}, 5120")
    a.e("s_waitcnt lgkmcnt(0)")
    stamp(a, 5)
    srd_off(a, sWT, "s6", "s7", WT_OFF, 80 * 10240)
    for r in range(5):
        for q in range(5):
            a.e(f"s_add_u32 m0, s{sM}, {r*20480 + q*768}")
            a.e("s_nop 0")
            a.e(f"buffer_load_dwordx4 v{vOW}, {sr(sWT,4)}, s{sOW} offen offset:{256*q} lds")
        a.e(f"s_add_u32 s{sOW}, s{sOW}, {4*40960}")
        if r >= 2:
            a.e(f"s_waitcnt vmcnt(10)")
            a.e("s_barrier")
    a.e(f"s_waitcnt vmcnt(5)")
    a.e("s_barrier")
    a.e(f"s_waitcnt vmcnt(0)")
    a.e("s_barrier")
    if DIAG:
        stamp(a, 1); stamp(a, 2); stamp(a, 3)
        k3flush()
    a.e("s_endpgm")
    a.lab("K3_COMP")
    a.e(f"s_sub_u32 s{t3}, s{sW}, 4")
    a.e(f"s_lshl_b32 s{t0}, s{sRB}, 6")
    a.e(f"s_lshl_b32 s{t1}, s{t3}, 4")
    a.e(f"s_add_u32 s{t0}, s{t0}, s{t1}")
    a.e(f"v_add_u32 v{vT+2}, s{t0}, v{vT}")
    a.e(f"v_lshlrev_b32 v{vOA}, 4, v{vT+2}")
    a.e(f"v_lshl_add_u32 v{vOA}, v{vT+1}, 15, v{vOA}")
    a.e(f"s_lshl_b32 s{t0}, s{sRB}, 3")
    a.e(f"s_add_u32 s{t0}, s{t0}, s{sCB}")
    a.e(f"s_mul_i32 s{t0}, s{t0}, 20480")
    a.e(f"s_mul_i32 s{t1}, s{t3}, 5120")
    a.e(f"s_add_u32 s{t0}, s{t0}, s{t1}")
    a.e(f"v_lshlrev_b32 v{vRD}, 4, v{vLANE}")
    a.e(f"v_add_u32 v{vYO}, s{t0}, v{vRD}")
    a.e(f"s_mul_i32 s{t0}, s{sCB}, 160")
    a.e(f"v_mul_u32_u24 v{vOO}, 1280, v{vT+2}")
    a.e(f"v_lshl_add_u32 v{vOO}, v{vT+1}, 3, v{vOO}")
    a.e(f"v_add_u32 v{vOO}, s{t0}, v{vOO}")
    a.e("s_waitcnt lgkmcnt(0)")
    stamp(a, 5)
    srd_off(a, sA, "s6", "s7", AB_OFF, 80 * 32768)
    srd_off(a, sY, "s6", "s7", Y_OFF, Y_SIZE)
    srd(a, sO, "s4", "s5", 2048 * 640 * 2)
    a.e(f"s_mov_b32 s{t0}, 0")
    a.e(f"s_movk_i32 s{t1}, 4096")
    def ldA(r):
        for ks in range(4 * r, 4 * r + 4):
            a.e(f"buffer_load_dwordx4 {vr(FA+4*ks,4)}, v{vOA}, {sr(sA,4)}, s{t0} offen")
            a.e(f"s_add_u32 s{t0}, s{t0}, {4*32768}")

    ldA(0)
    for t in range(5):
        so, off = ("0", 1024 * t) if t < 4 else (f"s{t1}", 0)
        a.e(f"buffer_load_dwordx4 {vr(ACC+4*t,4)}, v{vYO}, {sr(sY,4)}, {so} offen offset:{off}")
    ldA(1)
    ldA(2)
    a.e(f"v_add_u32 v{vT}, 51200, v{vRD}")

    def rdB(ks):
        base, off = (vRD, ks * 5120) if ks < 10 else (vT, (ks - 10) * 5120)
        return [f"ds_read_b128 {vr(FB+20*(ks&1)+4*t,4)}, v{base} offset:{off+1024*t}" for t in range(5)]

    for r in range(5):
        a.e("s_barrier")
        if r == 0:
            stamp(a, 1)
        for ins in rdB(4 * r):
            a.e(ins)
        if r < 2:
            ldA(r + 3)
        a.e(f"s_waitcnt vmcnt({[12, 12, 8, 4, 0][r]})")
        for k in range(4):
            ks = 4 * r + k
            if k < 3:
                for ins in rdB(ks + 1):
                    a.e(ins)
                a.e("s_waitcnt lgkmcnt(5)")
            else:
                a.e("s_waitcnt lgkmcnt(0)")
            for t in range(5):
                a.e(f"v_mfma_f32_16x16x32_bf16 {vr(ACC+4*t,4)}, {vr(FB+20*(ks&1)+4*t,4)}, {vr(FA+4*ks,4)}, {vr(ACC+4*t,4)}")
    stamp(a, 2)
    stamp(a, 3)
    a.e("s_nop 7")
    for t in range(5):
        A = ACC + 4 * t
        a.e(f"v_cvt_pk_bf16_f32 v{A}, v{A}, v{A+1}")
        a.e(f"v_cvt_pk_bf16_f32 v{A+1}, v{A+2}, v{A+3}")
        a.e(f"buffer_store_dwordx2 {vr(A,2)}, v{vOO}, {sr(sO,4)}, 0 offen offset:{32*t}")
    k3flush()
    a.lab("K3_END")
    a.e("s_endpgm")
    return name, NV, 102 if DIAG else 48, (256, 512, K3_LDS)


HEADER = """; Kernarg layout for this problem (88 bytes, ptrs only, base s[0:1]):
"""


def main(out_path):
    a = Asm()
    ks = []
    gens = (gen_k1, gen_k2, gen_k3) if "u" in os.environ.get("K2X", "") else (gen_k1, gen_k2)
    for g in gens:
        ks.append(g(a))
    s = HEADER
    if ONE:
        ks = [(ks[0][0], 168, 102 if DIAG else 80, (256, 768, K2_LDS))]
        if os.environ.get("LIST"):
            s += f"; @launch kernel={ks[0][0]} grid=(256,1,1) block=(768,1,1) lds={K2_LDS}\n"
        else:
            s += f"; @launch grid=(256,1,1) block=(768,1,1) lds={K2_LDS}\n"
    else:
        for name, nv, ns, (gx, bx, lds) in ks:
            s += f"; @launch kernel={name} grid=({gx},1,1) block=({bx},1,1) lds={lds}\n"
    s += '.amdgcn_target "amdgcn-amd-amdhsa--gfx950"\n.text\n'
    s += a.text()
    s += "CODE_END:\n    s_endpgm\n"
    s += '.section .rodata,"a"\n'
    for name, nv, ns, _ in ks:
        s += kd(name, nv, ns)
    open(out_path, "w").write(s)


if __name__ == "__main__":
    main(sys.argv[1] if len(sys.argv) > 1 else f"cdna_kernels/{NAME}.s")
```

```python
import struct, math, sys

NAME = "parallel_sum__mha_block__dense_activation_gelu__prompt"

QB_OFF = 0
KV_OFF = 0x280000
KVT = 2624
KVH = 64 * KVT
VP = 336
AB_OFF = 0x7A0000
WT_OFF = 0x10E0000
assert KV_OFF + 32 * KVH == AB_OFF
FL_OFF = WT_OFF + 296 * 10240
FQ_REL = 1024
FH_REL = 9216
FL_SIZE = 12288
WS_END = FL_OFF + FL_SIZE
assert FL_OFF % 128 == 0
AB_SIZE = 296 * 32768
WT_SIZE = 296 * 10240
assert AB_OFF + AB_SIZE == WT_OFF


def f32(x):
    return struct.unpack("<I", struct.pack("<f", x))[0]


def hx(x):
    return "0x%08x" % (x & 0xFFFFFFFF)


class Asm:
    def __init__(self):
        self.lines = []

    def e(self, s):
        if s.startswith("s_cselect_b32"):
            ops = [x.strip() for x in s[len("s_cselect_b32"):].split(",")]

            def is_lit(x):
                try:
                    v = int(x, 0)
                except ValueError:
                    return False
                return not (-16 <= v <= 64)
            if is_lit(ops[1]) and is_lit(ops[2]):
                self.lines.append(f"    s_mov_b32 {ops[0]}, {ops[2]}")
                s = f"s_cselect_b32 {ops[0]}, {ops[1]}, {ops[0]}"
        self.lines.append("    " + s)

    def lab(self, s):
        self.lines.append(s + ":")

    def c(self, s):
        self.lines.append("    ; " + s)

    def raw(self, s):
        self.lines.append(s)

    def text(self):
        return "\n".join(self.lines) + "\n"


def vr(a, n):
    return f"v[{a}:{a+n-1}]" if n > 1 else f"v{a}"


def sr(a, n):
    return f"s[{a}:{a+n-1}]" if n > 1 else f"s{a}"


def kernel_header(a, name):
    a.raw(".p2align 8")
    a.raw(f".globl {name}")
    a.raw(f".type {name},@function")
    a.lab(name)


def kd(name, nv, ns):
    acc = (nv + 3) // 4 * 4
    return f""".p2align 6
.amdhsa_kernel {name}
  .amdhsa_next_free_vgpr {nv}
  .amdhsa_next_free_sgpr {ns}
  .amdhsa_accum_offset {acc}
  .amdhsa_group_segment_fixed_size 0
  .amdhsa_kernarg_size 88
  .amdhsa_user_sgpr_count 2
  .amdhsa_user_sgpr_kernarg_segment_ptr 1
  .amdhsa_system_sgpr_workgroup_id_x 1
.end_amdhsa_kernel
"""


def srd(a, d, lo, hi, size):
    a.e(f"s_mov_b32 s{d}, {lo}")
    a.e(f"s_mov_b32 s{d+1}, {hi}")
    a.e(f"s_mov_b32 s{d+2}, {hx(size)}")
    a.e(f"s_mov_b32 s{d+3}, 0x00020000")


def srd_off(a, d, lo, hi, off, size):
    a.e(f"s_add_u32 s{d}, {lo}, {hx(off)}")
    a.e(f"s_addc_u32 s{d+1}, {hi}, 0")
    a.e(f"s_mov_b32 s{d+2}, {hx(size)}")
    a.e(f"s_mov_b32 s{d+3}, 0x00020000")


def round_bf16_inplace(a, v, vtmp=None):
    a.e(f"v_cvt_pk_bf16_f32 v{v}, v{v}, v{v}")
    a.e(f"v_lshlrev_b32 v{v}, 16, v{v}")


OOB = 0x40000000


def code_prefetch(a, tag, start, end, sp, s_chunk, vlane, vtmp, vdst):
    a.e(f"s_getpc_b64 s[{sp}:{sp+1}]")
    a.lab(f"PCH_{tag}")
    a.e(f"s_sub_u32 s{sp}, s{sp}, PCH_{tag}-{start}")
    a.e(f"s_subb_u32 s{sp+1}, s{sp+1}, 0")
    a.e(f"s_lshl_b32 s{s_chunk}, s{s_chunk}, 13")
    a.e(f"v_lshlrev_b32 v{vtmp}, 7, v{vlane}")
    a.e(f"v_add_u32 v{vtmp}, s{s_chunk}, v{vtmp}")
    a.e(f"v_cmp_gt_u32 vcc, {end}-{start}, v{vtmp}")
    a.e(f"s_and_saveexec_b64 s[{sp+2}:{sp+3}], vcc")
    a.e(f"s_cbranch_execz PCS_{tag}")
    a.e(f"global_load_dword v{vdst}, v{vtmp}, s[{sp}:{sp+1}]")
    a.lab(f"PCS_{tag}")
    a.e(f"s_mov_b64 exec, s[{sp+2}:{sp+3}]")
import os
DIAG = int(os.environ.get("DIAG", "0"))
ONE = int(os.environ.get("ONE", "0"))
SC = " sc1" if ONE else ""
WB = os.environ.get("WB", "")
SCQ = "" if "Q" in WB else SC
SCF = "" if "F" in WB else SC
SCT = "" if "T" in WB else SC
K1_SYN = 153600
POLL_MAX = 1 << 21
DIAG_OFF = 0x2000000
SD = 84


def stamp(a, i):
    if DIAG:
        a.e(f"s_memtime s[{SD+2*i}:{SD+2*i+1}]")
        if i == 0:
            a.e(f"s_memrealtime s[{SD+12}:{SD+13}]")
        if i == 4:
            a.e(f"s_memrealtime s[{SD+14}:{SD+15}]")


def stamp_flush(a, kidx, wpw, sW, ws_lo, ws_hi, n, vtmp):
    if not DIAG:
        return
    a.e("s_waitcnt lgkmcnt(0)")
    a.e(f"s_add_u32 s80, {ws_lo}, {hx(DIAG_OFF + kidx*4096*64)}")
    a.e(f"s_addc_u32 s81, {ws_hi}, 0")
    a.e(f"s_mov_b32 s82, {hx(4096*64)}")
    a.e("s_mov_b32 s83, 0x00020000")
    a.e(f"s_mul_i32 s100, s2, {wpw}")
    a.e(f"s_add_u32 s100, s100, s{sW}")
    a.e("s_lshl_b32 s100, s100, 6")
    a.e(f"v_mov_b32 v{vtmp}, 0")
    for i in range(n):
        a.e(f"v_mov_b32 v{vtmp+1}, s{SD+2*i}")
        a.e(f"buffer_store_dword v{vtmp+1}, v{vtmp}, s[80:83], s100 offen offset:{4*i}")

K1_BH = 8 * 1056
K1_SLOT = 16384 + 4 * K1_BH
K1_NS = 3
K1_SCR = K1_SLOT * K1_NS
K1_LDS = K1_SCR + 2048 + 256
QSCALE = math.log2(math.e) / math.sqrt(20.0)


def gen_k1(a):
    name = NAME + "_kernel" if ONE else "k1_gemm1_kernel"
    kernel_header(a, name)
    X = os.environ.get("K1X", "")
    sX, sB0, sB1, sWS, sT, sBI = 20, 24, 28, 32, 36, 40
    sW, sMH, sHALF, sRB, sCB, sNQ, sT0 = 44, 45, 46, 47, 48, 49, 50
    sOA, sOB0, sOB1 = 51, 52, 53
    sWA, sWB, sRD, sTS, sIT, sDA, sDB = 54, 55, 56, 57, 58, 59, 60
    t0, t1, t2, t3, t4, t5, t6, t7 = 62, 63, 64, 65, 66, 67, 68, 69
    sC1 = 70
    sTYP = 73
    sOA2, sOB0b, sOB1b = 76, 77, 78
    vLANE = 1
    vA0e, vA0o, vB0 = 2, 3, 4
    vAe, vAo, vB = 5, 6, 7
    vS = 8
    vSA = 12
    vONES = 20
    vCS = 24
    vU = 32
    FA = [40, 72]
    vT = 72
    ACC = 104
    NV = 168

    def acc(j, mt):
        return ACC + (j * 4 + mt) * 4

    def fa(s, mt):
        return FA[s] + mt * 4

    def fb(s, j):
        return FA[s] + 16 + j * 4

    def emit(lst):
        for ins in lst:
            a.e(ins)

    k1flush = lambda: (stamp(a, 4), stamp_flush(a, 0, 12, sW, "s18", "s19", 8, 2))

    def zpoll(tag, sD, vz, vd):
        srd(a, sD, "s10", "s11", 256)
        a.e(f"v_mov_b32 v{vz}, 0")
        a.e(f"s_mov_b32 s{t7}, 0")
        a.lab(f"ZP_{tag}")
        a.e(f"buffer_load_dword v{vd}, v{vz}, {sr(sD,4)}, 0 offen sc1")
        a.e(f"s_add_u32 s{t7}, s{t7}, 1")
        a.e("s_waitcnt vmcnt(0)")
        a.e(f"v_readfirstlane_b32 s{t6}, v{vd}")
        a.e(f"s_cmp_ge_u32 s{t7}, {POLL_MAX}")
        a.e(f"s_cbranch_scc1 ZD_{tag}")
        a.e(f"s_cmp_eq_u32 s{t6}, 0")
        a.e(f"s_cbranch_scc1 ZP_{tag}")
        a.lab(f"ZD_{tag}")

    def finish(kind):
        k1flush()
        if not ONE:
            a.e("s_endpgm")
            return
        if kind == "F":
            a.e("s_branch K1_SIGF")
        else:
            a.e("s_branch K1_SIGQ")

    def finalize(s1, s2, nm, rs):
        a.e(f"v_mul_f32 v{s1}, {hx(f32(1.0/640))}, v{s1}")
        a.e(f"v_mul_f32 v{s2}, {hx(f32(1.0/640))}, v{s2}")
        a.e(f"v_fma_f32 v{s2}, -v{s1}, v{s1}, v{s2}")
        a.e(f"v_max_f32 v{s2}, 0, v{s2}")
        round_bf16_inplace(a, s2)
        a.e(f"v_add_f32 v{s2}, {hx(f32(1e-5))}, v{s2}")
        round_bf16_inplace(a, s2)
        a.e(f"v_sqrt_f32 v{s2}, v{s2}")
        round_bf16_inplace(a, s1)
        round_bf16_inplace(a, s2)
        a.e(f"v_rcp_f32 v{rs}, v{s2}")
        a.e(f"v_sub_f32 v{nm}, 0, v{s1}")


    a.e("s_cmp_ge_u32 s2, 256")
    a.e("s_cbranch_scc1 K1_END")
    stamp(a, 0)
    a.e("s_load_dwordx4 s[4:7], s[0:1], 0")
    a.e("s_load_dwordx2 s[8:9], s[0:1], 16")
    a.e("s_load_dwordx4 s[12:15], s[0:1], 32")
    a.e("s_load_dwordx2 s[16:17], s[0:1], 48")
    a.e("s_load_dwordx2 s[18:19], s[0:1], 80")
    if ONE:
        a.e("s_load_dwordx2 s[10:11], s[0:1], 72")
    a.e(f"v_and_b32 v{vLANE}, 63, v0")
    a.e(f"v_lshrrev_b32 v{vT}, 6, v0")
    a.e(f"s_and_b32 s{t0}, s2, 7")
    a.e(f"v_readfirstlane_b32 s{sW}, v{vT}")
    a.e(f"s_lshr_b32 s{t1}, s2, 3")
    a.e(f"s_lshl_b32 s{sRB}, s{t0}, 1")
    a.e(f"s_add_u32 s{sRB}, s{sRB}, s{t1}")
    a.e(f"s_mov_b32 s{sCB}, 15")
    a.e(f"s_cmp_lt_u32 s{t1}, 2")
    a.e("s_cbranch_scc1 K1_TRANS")
    a.e(f"s_lshr_b32 s{t2}, s{t0}, 1")
    a.e(f"s_mul_i32 s{t2}, s{t2}, 30")
    a.e(f"s_add_u32 s{t2}, s{t2}, s{t1}")
    a.e(f"s_sub_u32 s{t2}, s{t2}, 2")
    a.e(f"s_lshr_b32 s{sCB}, s{t2}, 3")
    a.e(f"s_and_b32 s{t2}, s{t2}, 7")
    a.e(f"s_and_b32 s{t3}, s{t0}, 1")
    a.e(f"s_lshl_b32 s{t3}, s{t3}, 3")
    a.e(f"s_add_u32 s{sRB}, s{t2}, s{t3}")
    a.e(f"s_lshl_b32 s{sT0}, s{sCB}, 3")
    a.e(f"s_min_u32 s{sT0}, s{sT0}, 100")
    a.e(f"s_cmp_ge_u32 s{sW}, 4")
    a.e("s_cbranch_scc1 K1_COMP")
    lA = [2, 3]
    lQ = [4, 5]
    lF = [6, 7]
    lBI = 8
    a.e(f"s_lshl_b32 s{t0}, s{sRB}, 7")
    a.e(f"s_lshl_b32 s{t1}, s{sW}, 4")
    a.e(f"s_add_u32 s{t0}, s{t0}, s{t1}")
    a.e(f"v_lshrrev_b32 v{vT}, 3, v{vLANE}")
    a.e(f"v_add_u32 v{vT}, s{t0}, v{vT}")
    a.e(f"v_lshrrev_b32 v{vT+1}, 1, v{vT}")
    a.e(f"v_xor_b32 v{vT+1}, v{vT+1}, v{vLANE}")
    a.e(f"v_and_b32 v{vT+1}, 7, v{vT+1}")
    a.e(f"v_mul_u32_u24 v{vT}, 1280, v{vT}")
    a.e(f"v_lshl_add_u32 v{lA[0]}, v{vT+1}, 4, v{vT}")
    a.e(f"v_xor_b32 v{vT+1}, 4, v{vT+1}")
    a.e(f"v_lshl_add_u32 v{lA[1]}, v{vT+1}, 4, v{vT}")
    a.e(f"v_add_u32 v{lA[1]}, {8*1280}, v{lA[1]}")
    a.e(f"s_lshl_b32 s{sDA}, s{sW}, 11")
    a.e(f"s_and_b32 s{t0}, s{sW}, 1")
    a.e(f"s_lshl_b32 s{t0}, s{t0}, 1")
    a.e(f"s_lshr_b32 s{t1}, s{sW}, 1")
    a.e(f"s_lshl_b32 s{t1}, s{t1}, 3")
    a.e(f"s_or_b32 s{t0}, s{t0}, s{t1}")
    a.e(f"v_bfe_u32 v{vT}, v{vLANE}, 4, 1")
    a.e(f"v_lshlrev_b32 v{vT}, 2, v{vT}")
    a.e(f"v_lshrrev_b32 v{vT+1}, 5, v{vLANE}")
    a.e(f"v_lshl_or_b32 v{vT}, v{vT+1}, 4, v{vT}")
    a.e(f"v_or_b32 v{vT}, s{t0}, v{vT}")
    a.e(f"v_and_b32 v{vT+1}, 15, v{vLANE}")
    a.e(f"v_lshlrev_b32 v{vT+1}, 4, v{vT+1}")
    a.e(f"s_lshl_b32 s{t2}, s{sCB}, 8")
    a.e(f"s_lshl_b32 s{t3}, s{sT0}, 5")
    a.e(f"v_mul_u32_u24 v{lQ[0]}, 3840, v{vT}")
    a.e(f"v_add3_u32 v{lQ[0]}, v{lQ[0]}, v{vT+1}, s{t2}")
    a.e(f"v_add_u32 v{lQ[1]}, 3840, v{lQ[0]}")
    a.e(f"v_mul_u32_u24 v{lF[0]}, 3456, v{vT}")
    a.e(f"v_add3_u32 v{lF[0]}, v{lF[0]}, v{vT+1}, s{t3}")
    a.e(f"v_add_u32 v{lF[1]}, 3456, v{lF[0]}")
    a.e(f"s_mul_i32 s{sDB}, s{sW}, 2112")
    a.e(f"s_add_u32 s{sDB}, s{sDB}, 16384")
    ROT = "O" in X
    if ROT:
        RA, RB_ = int(os.environ.get("ROTA", "1")), int(os.environ.get("ROTB", "3"))
        a.e(f"s_and_b32 s{t0}, s{sRB}, 7")
        a.e(f"s_mul_i32 s{t0}, s{t0}, {RA}")
        a.e(f"s_min_u32 s{t1}, s{sCB}, 13")
        a.e(f"s_and_b32 s{t1}, s{t1}, 3")
        a.e(f"s_mul_i32 s{t1}, s{t1}, {RB_}")
        a.e(f"s_add_u32 s{t0}, s{t0}, s{t1}")
        a.e(f"s_mul_i32 s{t1}, s{t0}, 205")
        a.e(f"s_lshr_b32 s{t1}, s{t1}, 11")
        a.e(f"s_mul_i32 s{t1}, s{t1}, 10")
        a.e(f"s_sub_u32 s{t0}, s{t0}, s{t1}")
        a.e(f"s_lshl_b32 s{sOA}, s{t0}, 7")
        a.e(f"s_add_u32 s{sOA2}, s{sOA}, {64*1280}")
        a.e(f"s_mul_i32 s{sOB0}, s{t0}, {64*3840}")
        a.e(f"s_add_u32 s{sOB0b}, s{sOB0}, {32*3840}")
        a.e(f"s_mul_i32 s{sOB1}, s{t0}, {64*3456}")
        a.e(f"s_add_u32 s{sOB1b}, s{sOB1}, {32*3456}")
    else:
        a.e(f"s_mov_b32 s{sOA}, 0")
        a.e(f"s_mov_b32 s{sOA2}, {64*1280}")
        a.e(f"s_mov_b32 s{sOB0}, 0")
        a.e(f"s_mov_b32 s{sOB0b}, {32*3840}")
        a.e(f"s_mov_b32 s{sOB1}, 0")
        a.e(f"s_mov_b32 s{sOB1b}, {32*3456}")
    a.e(f"s_mov_b32 s{sWA}, s{sDA}")
    a.e(f"s_mov_b32 s{sWB}, s{sDB}")
    a.e("s_waitcnt lgkmcnt(0)")
    stamp(a, 5)
    srd(a, sX, "s4", "s5", 2048 * 640 * 2)
    srd(a, sB0, "s6", "s7", 640 * 1920 * 2)
    srd(a, sB1, "s12", "s13", 640 * 1728 * 2)

    lR0 = 10
    lR = 14
    lD = 20
    lS = 36
    lU = 40

    def stats_ops():
        va = []
        for r in range(16):
            src = lD + r
            lo, hi = lU + 2 * (r & 1), lU + 2 * (r & 1) + 1
            va.append(f"v_lshlrev_b32 v{lo}, 16, v{src}")
            va.append(f"v_and_b32 v{hi}, 0xffff0000, v{src}")
            va.append(f"v_add_f32 v{lS}, v{lS}, v{lo}")
            va.append(f"v_add_f32 v{lS+1}, v{lS+1}, v{hi}")
            va.append(f"v_fmac_f32 v{lS+2}, v{lo}, v{lo}")
            va.append(f"v_fmac_f32 v{lS+3}, v{hi}, v{hi}")
        return va

    def stats_reads():
        for i in range(4):
            a.e(f"v_add_u32 v{lR+i}, s{sRD}, v{lR0+i}")
        for i in range(4):
            a.e(f"ds_read_b128 {vr(lD+4*i,4)}, v{lR+i}")
        a.e(f"s_add_u32 s{sRD}, s{sRD}, {K1_SLOT}")
        a.e(f"s_cmp_eq_u32 s{sRD}, {K1_SCR}")
        a.e(f"s_cselect_b32 s{sRD}, 0, s{sRD}")

    def stage(with_stats=False, dma=True):
        spec = [(sWA, 0, lA, 1024, sX, sOA, 128),
                (sWA, 8192, lA, 1024, sX, sOA2, 128),
                (sWB, 0, lQ, 1056, sB0, sOB0, 64 * 3840),
                (sWB, 2 * K1_BH, lF, 1056, sB1, sOB1, 64 * 3456),
                (sWB, K1_BH, lQ, 1056, sB0, sOB0b, 64 * 3840),
                (sWB, 3 * K1_BH, lF, 1056, sB1, sOB1b, 64 * 3456)]
        va = stats_ops() if with_stats else []
        if with_stats:
            stats_reads()
        n = 0
        for (sD, dof, vO, d2, sR, sO, inc) in spec:
            for q in range(2):
                d = dof + q * d2
                if dma:
                    a.e(f"s_add_u32 m0, s{sD}, {d}" if d else f"s_mov_b32 m0, s{sD}")
                    a.e("s_nop 0")
                    a.e(f"buffer_load_dwordx4 v{vO[q]}, {sr(sR,4)}, s{sO} offen lds")
                n += 1
                if with_stats and n >= 2:
                    if n == 2:
                        a.e("s_waitcnt lgkmcnt(0)")
                    k = 9 if n < 12 else len(va)
                    for ins in va[:k]:
                        a.e(ins)
                    va = va[k:]
            if dma:
                a.e(f"s_add_u32 s{sO}, s{sO}, {inc}")
        if dma:
            a.e(f"s_add_u32 s{sWA}, s{sWA}, {K1_SLOT}")
            a.e(f"s_add_u32 s{sWB}, s{sWB}, {K1_SLOT}")
            a.e(f"s_cmp_ge_u32 s{sWA}, {K1_SCR}")
            a.e(f"s_cselect_b32 s{sWA}, s{sDA}, s{sWA}")
            a.e(f"s_cselect_b32 s{sWB}, s{sDB}, s{sWB}")
            if ROT:
                a.e(f"s_cmp_eq_u32 s{sOA}, 1280")
                a.e(f"s_cselect_b32 s{sOA}, 0, s{sOA}")
                a.e(f"s_cselect_b32 s{sOA2}, {64*1280}, s{sOA2}")
                a.e(f"s_cselect_b32 s{sOB0}, 0, s{sOB0}")
                a.e(f"s_cselect_b32 s{sOB0b}, {32*3840}, s{sOB0b}")
                a.e(f"s_cselect_b32 s{sOB1}, 0, s{sOB1}")
                a.e(f"s_cselect_b32 s{sOB1b}, {32*3456}, s{sOB1b}")

    stage()
    srd(a, sBI, "s14", "s15", 1728 * 2)
    a.e(f"v_lshlrev_b32 v{vT}, 2, v{vLANE}")
    a.e(f"buffer_load_dword v{lBI}, v{vT}, {sr(sBI,4)}, s{t3} offen")
    stage()
    S3 = "S" in X
    if S3:
        stage()
    a.e(f"v_and_b32 v{vT+1}, 31, v{vLANE}")
    a.e(f"v_lshrrev_b32 v{vT+2}, 5, v{vLANE}")
    a.e(f"v_lshlrev_b32 v{vT+2}, 2, v{vT+2}")
    a.e(f"v_bfe_u32 v{vT+3}, v{vLANE}, 1, 3")
    a.e(f"v_xor_b32 v{vT+2}, v{vT+2}, v{vT+3}")
    a.e(f"v_lshlrev_b32 v{vT+2}, 4, v{vT+2}")
    a.e(f"v_lshl_add_u32 v{vT+2}, v{vT+1}, 7, v{vT+2}")
    a.e(f"s_lshl_b32 s{t0}, s{sW}, 12")
    a.e(f"v_add_u32 v{lR0}, s{t0}, v{vT+2}")
    for i in range(1, 4):
        a.e(f"v_xor_b32 v{lR0+i}, {16*i}, v{lR0}")
    for i in range(4):
        a.e(f"v_mov_b32 v{lS+i}, 0")
    a.e(f"s_mov_b32 s{sRD}, 0")
    a.e(f"s_mov_b32 s{sIT}, 0")
    a.e(f"s_waitcnt vmcnt({24 if S3 else 12})")
    a.e(f"v_add_u32 v{vT}, {K1_SCR+2048}, v{vT}")
    a.e(f"ds_write_b32 v{vT}, v{lBI}")
    if ONE:
        a.e(f"v_mov_b32 v{vT+4}, {K1_SYN}")
        a.e(f"ds_write_b128 v{vT+4}, {vr(lS,4)}")
    a.e("s_barrier")
    stamp(a, 1)
    stage(True, not S3)
    a.lab("K1_LD")
    a.e("s_waitcnt vmcnt(12)")
    a.e("s_barrier")
    stage(True, True)
    a.e(f"s_add_u32 s{sIT}, s{sIT}, 1")
    a.e(f"s_cmp_lt_u32 s{sIT}, 7")
    a.e("s_cbranch_scc1 K1_LD")
    a.e("s_waitcnt vmcnt(12)")
    a.e("s_barrier")
    a.e(f"s_mov_b32 s{sIT}, 0")
    a.lab("K1_LD2")
    stage(True, False)
    a.e(f"s_cmp_eq_u32 s{sIT}, 1")
    a.e("s_cbranch_scc1 K1_LD3")
    if ONE:
        a.e(f"s_cmp_lg_u32 s{sW}, 0")
        a.e("s_cbranch_scc1 ZD_ld")
        zpoll("ld", sBI, vT + 4, vT + 5)
    a.e("s_waitcnt vmcnt(0)")
    a.e("s_barrier")
    a.e(f"s_mov_b32 s{sIT}, 1")
    a.e("s_branch K1_LD2")
    a.lab("K1_LD3")
    a.e(f"v_add_f32 v{lS}, v{lS}, v{lS+1}")
    a.e(f"v_add_f32 v{lS+1}, v{lS+2}, v{lS+3}")
    a.e(f"v_mov_b32 v{lU}, v{lS}")
    a.e(f"v_mov_b32 v{lU+1}, v{lS+1}")
    a.e("s_nop 1")
    a.e(f"v_permlane32_swap_b32 v{lS}, v{lU}")
    a.e(f"v_permlane32_swap_b32 v{lS+1}, v{lU+1}")
    a.e(f"v_add_f32 v{lS}, v{lS}, v{lU}")
    a.e(f"v_add_f32 v{lS+1}, v{lS+1}, v{lU+1}")
    finalize(lS, lS + 1, lS + 2, lS + 3)
    a.e(f"v_lshlrev_b32 v{vT+1}, 2, v{vT+1}")
    a.e(f"s_lshl_b32 s{t0}, s{sW}, 7")
    a.e(f"s_add_u32 s{t0}, s{t0}, {K1_SCR}")
    a.e(f"v_add_u32 v{vT+1}, s{t0}, v{vT+1}")
    a.e(f"ds_write_b32 v{vT+1}, v{lS+2}")
    a.e(f"ds_write_b32 v{vT+1}, v{lS+3} offset:512")
    a.e("s_waitcnt lgkmcnt(0)")
    a.e("s_barrier")
    if DIAG:
        stamp(a, 2); stamp(a, 3)
        k1flush()
    if ONE:
        a.e("s_barrier")
        a.e("s_branch P2_ENTRY")
    else:
        a.e("s_endpgm")
    a.lab("K1_COMP")
    a.e(f"s_and_b32 s{sMH}, s{sW}, 1")
    a.e(f"s_bfe_u32 s{sNQ}, s{sW}, 0x10001")
    a.e(f"s_lshr_b32 s{sHALF}, s{sW}, 3")
    if "C" in X:
        NPF = int(os.environ.get("NPF", "8"))
        a.e(f"s_cmp_ge_u32 s2, {NPF}")
        a.e("s_cbranch_scc1 K1_NOCP")
        a.e(f"s_cmp_ge_u32 s{sW}, 8")
        a.e("s_cbranch_scc1 K1_NOCP")
        a.e(f"s_and_b32 s{t0}, s{sW}, 3")
        code_prefetch(a, "k1", "k1_gemm1_kernel", "CODE_END", 64, t0, vLANE, vT, 36)
        a.lab("K1_NOCP")
    if "P" in X:
        vPF = 36
        a.e(f"s_and_b32 s{t0}, s{sW}, 3")
        a.e(f"s_lshl_b32 s{t0}, s{t0}, 6")
        a.e(f"v_add_u32 v{vT}, s{t0}, v{vLANE}")
        a.e(f"s_cmp_eq_u32 s{sHALF}, 1")
        a.e("s_cbranch_scc1 K1_PFB")
        a.e(f"s_and_b32 s{t1}, s{sCB}, 3")
        a.e(f"s_lshl_b32 s{t1}, s{t1}, 5")
        a.e(f"s_lshl_b32 s{t2}, s{sRB}, 7")
        a.e(f"s_add_u32 s{t1}, s{t1}, s{t2}")
        a.e(f"v_lshrrev_b32 v{vT+1}, 3, v{vT}")
        a.e(f"v_add_u32 v{vT+1}, s{t1}, v{vT+1}")
        a.e(f"v_mul_u32_u24 v{vT+1}, 1280, v{vT+1}")
        a.e(f"v_and_b32 v{vT+2}, 7, v{vT}")
        a.e(f"v_lshl_add_u32 v{vT+1}, v{vT+2}, 7, v{vT+1}")
        a.e("s_waitcnt lgkmcnt(0)")
        srd(a, sX, "s4", "s5", 2048 * 640 * 2)
        a.e(f"buffer_load_dword v{vPF}, v{vT+1}, {sr(sX,4)}, 0 offen offset:256")
        a.e("s_branch K1_PFD")
        a.lab("K1_PFB")
        a.e(f"s_and_b32 s{t1}, s{sRB}, 7")
        a.e(f"s_lshl_b32 s{t1}, s{t1}, 6")
        a.e(f"s_add_u32 s{t1}, s{t1}, 128")
        a.e(f"v_lshrrev_b32 v{vT+1}, 2, v{vT}")
        a.e(f"v_add_u32 v{vT+1}, s{t1}, v{vT+1}")
        a.e(f"v_and_b32 v{vT+2}, 1, v{vT}")
        a.e(f"v_lshlrev_b32 v{vT+2}, 7, v{vT+2}")
        a.e(f"s_lshl_b32 s{t2}, s{sCB}, 8")
        a.e(f"s_lshl_b32 s{t3}, s{sT0}, 5")
        a.e(f"v_mul_u32_u24 v{vT+3}, 3840, v{vT+1}")
        a.e(f"v_add3_u32 v{vT+3}, v{vT+3}, v{vT+2}, s{t2}")
        a.e(f"v_mul_u32_u24 v{vT+4}, 3456, v{vT+1}")
        a.e(f"v_add3_u32 v{vT+4}, v{vT+4}, v{vT+2}, s{t3}")
        a.e("s_waitcnt lgkmcnt(0)")
        srd(a, sB0, "s6", "s7", 640 * 1920 * 2)
        srd(a, sB1, "s12", "s13", 640 * 1728 * 2)
        a.e("s_mov_b32 exec_lo, 0x33333333")
        a.e("s_mov_b32 exec_hi, 0x33333333")
        a.e(f"buffer_load_dword v{vPF}, v{vT+3}, {sr(sB0,4)}, 0 offen")
        a.e("s_not_b64 exec, exec")
        a.e(f"buffer_load_dword v{vPF+1}, v{vT+4}, {sr(sB1,4)}, 0 offen")
        a.e("s_mov_b64 exec, -1")
        a.lab("K1_PFD")
    a.e(f"s_lshl_b32 s{t0}, s{sMH}, 13")
    a.e(f"v_and_b32 v{vT+4}, 15, v{vLANE}")
    a.e(f"v_lshrrev_b32 v{vT}, 4, v{vLANE}")
    a.e(f"v_lshrrev_b32 v{vT+1}, 1, v{vT+4}")
    a.e(f"v_xor_b32 v{vT+1}, v{vT+1}, v{vT}")
    a.e(f"v_lshlrev_b32 v{vT+1}, 4, v{vT+1}")
    a.e(f"v_lshl_add_u32 v{vA0e}, v{vT+4}, 7, v{vT+1}")
    a.e(f"v_add_u32 v{vA0e}, s{t0}, v{vA0e}")
    a.e(f"v_xor_b32 v{vA0o}, 64, v{vA0e}")
    a.e(f"v_bfe_u32 v{vT+1}, v{vLANE}, 2, 3")
    a.e(f"v_mul_u32_u24 v{vT+1}, 1056, v{vT+1}")
    a.e(f"v_lshrrev_b32 v{vT+2}, 5, v{vLANE}")
    a.e(f"v_lshl_add_u32 v{vT+1}, v{vT+2}, 9, v{vT+1}")
    a.e(f"v_and_b32 v{vT+2}, 3, v{vLANE}")
    a.e(f"v_lshl_add_u32 v{vT+1}, v{vT+2}, 3, v{vT+1}")
    a.e(f"s_mul_i32 s{t0}, s{sHALF}, {2*K1_BH}")
    a.e(f"s_lshl_b32 s{t1}, s{sNQ}, 7")
    a.e(f"s_add_u32 s{t0}, s{t0}, s{t1}")
    a.e(f"s_add_u32 s{t0}, s{t0}, 16384")
    a.e(f"v_add_u32 v{vB0}, s{t0}, v{vT+1}")
    for i in range(64):
        a.e(f"v_mov_b32 v{ACC+i}, 0")
    for i in range(4):
        a.e(f"v_mov_b32 v{vS+i}, 0")
        a.e(f"v_mov_b32 v{vONES+i}, 0x3f803f80")
    for i in range(8):
        a.e(f"v_mov_b32 v{vCS+i}, 0")
        a.e(f"v_mov_b32 v{vSA+i}, {hx(OOB)}")
    a.e(f"s_mov_b32 s{sRD}, 0")
    a.e(f"s_mov_b32 s{sIT}, 0")
    a.e(f"s_mov_b32 s{sTS}, 0")
    a.e(f"s_cmp_ge_u32 s{sCB}, 10")
    a.e(f"s_cselect_b32 s{sTYP}, 1, 0")
    a.e(f"s_cmp_eq_u32 s{sHALF}, 1")
    a.e(f"s_cselect_b32 s{sTYP}, 2, s{sTYP}")
    a.e(f"s_lshl_b32 s{t6}, s{sRB}, 2")
    a.e(f"s_lshl_b32 s{t7}, s{sMH}, 1")
    a.e(f"s_add_u32 s{t6}, s{t6}, s{t7}")
    a.e(f"s_cmp_eq_u32 s{sTYP}, 1")
    a.e("s_cbranch_scc1 K1_PRE_V")
    a.e(f"s_cmp_eq_u32 s{sTYP}, 2")
    a.e("s_cbranch_scc1 K1_PRE_F")
    a.e(f"s_cmp_lt_u32 s{sCB}, 5")
    a.e(f"s_cselect_b32 s{t1}, 81920, {KVH}")
    a.e(f"s_cselect_b32 s{sTS}, 1280, {KVT}")
    a.e(f"s_cselect_b32 s{t3}, {hx(QB_OFF)}, {hx(KV_OFF)}")
    a.e(f"s_cselect_b32 s{t4}, 16, 8")
    a.e(f"s_cselect_b64 vcc, -1, 0")
    a.e(f"s_cselect_b32 s{t5}, 0, 5")
    a.e(f"s_sub_u32 s{t5}, s{sCB}, s{t5}")
    a.e(f"s_lshl_b32 s{t5}, s{t5}, 5")
    a.e(f"s_lshl_b32 s{t7}, s{sNQ}, 4")
    a.e(f"s_add_u32 s{t5}, s{t5}, s{t7}")
    a.e(f"s_mul_i32 s{t6}, s{t6}, s{sTS}")
    a.e(f"s_add_u32 s{t3}, s{t3}, s{t6}")
    r0, rA0, rB0, rA1, rB1, vG = vT + 5, vT + 6, vT + 7, vT + 8, vT + 9, vT + 10
    a.e(f"v_and_b32 v{vT+2}, 7, v{vLANE}")
    a.e(f"v_and_b32 v{vT+3}, 8, v{vLANE}")
    a.e(f"v_lshl_add_u32 v{vT+2}, v{vT+3}, 1, v{vT+2}")
    a.e(f"v_cndmask_b32 v{r0}, v{vT+2}, v{vT+4}, vcc")
    a.e(f"v_lshlrev_b32 v{rA0}, 4, v{r0}")
    a.e(f"v_add_u32 v{rA0}, s{t3}, v{rA0}")
    a.e(f"v_lshlrev_b32 v{rB0}, 3, v{r0}")
    a.e(f"s_add_u32 s{t7}, s{t3}, 1024")
    a.e(f"v_add_u32 v{rB0}, s{t7}, v{rB0}")
    a.e(f"s_lshl_b32 s{t7}, s{t4}, 4")
    a.e(f"v_add_u32 v{rA1}, s{t7}, v{rA0}")
    a.e(f"s_lshl_b32 s{t7}, s{t4}, 3")
    a.e(f"v_add_u32 v{rB1}, s{t7}, v{rB0}")
    a.e(f"v_add_u32 v{vG}, s{t5}, v{vT}")
    for j in range(4):
        tt, h, dg, u = vT + 11, vT + 12, vT + 13, vT + 14
        a.e(f"v_add_u32 v{tt}, {4*j}, v{vG}")
        a.e(f"v_mul_u32_u24 v{h}, 205, v{tt}")
        a.e(f"v_lshrrev_b32 v{h}, 10, v{h}")
        a.e(f"v_mad_i32_i24 v{dg}, v{h}, -5, v{tt}")
        a.e(f"v_mul_u32_u24 v{u}, 0x108, v{dg}")
        a.e(f"v_and_b32 v{u}, 0x208, v{u}")
        a.e(f"v_cmp_eq_u32 vcc, 4, v{dg}")
        a.e(f"v_mad_u32_u24 v{u}, v{h}, s{t1}, v{u}")
        a.e("s_nop 0")
        a.e(f"v_cndmask_b32 v{tt}, v{rA0}, v{rB0}, vcc")
        a.e(f"v_cndmask_b32 v{h}, v{rA1}, v{rB1}, vcc")
        a.e(f"v_add_u32 v{vSA+2*j}, v{u}, v{tt}")
        a.e(f"v_add_u32 v{vSA+2*j+1}, v{u}, v{h}")
    if "f" in X:
        a.e(f"s_lshl_b32 s{t0}, s{sRB}, 2")
        a.e(f"s_lshl_b32 s{t1}, s{sMH}, 1")
        a.e(f"s_add_u32 s{t0}, s{t0}, s{t1}")
        a.e(f"s_mul_i32 s{t0}, s{t0}, {320*256}")
        a.e(f"s_lshl_b32 s{t1}, s{sCB}, 13")
        a.e(f"s_add_u32 s{t0}, s{t0}, s{t1}")
        a.e(f"s_lshl_b32 s{t1}, s{sNQ}, 12")
        a.e(f"s_add_u32 s{t0}, s{t0}, s{t1}")
        a.e(f"s_mov_b32 s{sTS}, {320*256}")
        a.e(f"v_lshlrev_b32 v{vT+11}, 8, v{vT}")
        a.e(f"v_lshl_add_u32 v{vT+11}, v{vT+4}, 3, v{vT+11}")
        a.e(f"v_add_u32 v{vT+11}, s{t0}, v{vT+11}")
        for j in range(4):
            a.e(f"v_add_u32 v{vSA+2*j}, {1024*j}, v{vT+11}")
            a.e(f"v_add_u32 v{vSA+2*j+1}, {1024*j+128}, v{vT+11}")
    a.e("s_branch K1_PRE_DONE")
    a.lab("K1_PRE_V")
    a.e(f"s_sub_u32 s{t5}, s{sCB}, 10")
    a.e(f"s_lshl_b32 s{t5}, s{t5}, 7")
    a.e(f"s_lshl_b32 s{t7}, s{sNQ}, 6")
    a.e(f"s_add_u32 s{t5}, s{t5}, s{t7}")
    a.e(f"v_add_u32 v{vT+2}, s{t5}, v{vT+4}")
    a.e(f"s_mul_i32 s{t6}, s{t6}, {KVT}")
    a.e(f"s_add_u32 s{t6}, s{t6}, {hx(KV_OFF + 1280)}")
    a.e(f"v_mul_u32_u24 v{vT+1}, {VP}, v{vT}")
    a.e(f"v_add_u32 v{vT+1}, s{t6}, v{vT+1}")
    a.e(f"s_mov_b32 s{t1}, {KVH}")
    a.e(f"s_mov_b32 s{t2}, -20")
    for j in range(4):
        n, h, d = vT + 5, vT + 6, vT + 7
        a.e(f"v_add_u32 v{n}, {16*j}, v{vT+2}")
        a.e(f"v_mul_u32_u24 v{h}, 3277, v{n}")
        a.e(f"v_lshrrev_b32 v{h}, 16, v{h}")
        a.e(f"v_mad_i32_i24 v{d}, v{h}, s{t2}, v{n}")
        a.e(f"v_mad_u32_u24 v{h}, v{h}, s{t1}, v{vT+1}")
        a.e(f"v_lshl_add_u32 v{vSA+j}, v{d}, 4, v{h}")
    a.e("s_branch K1_PRE_DONE")
    a.lab("K1_PRE_F")
    a.e(f"s_lshl_b32 s{t0}, s{sCB}, 1")
    a.e(f"s_add_u32 s{t0}, s{t0}, s{sNQ}")
    a.e(f"s_cmp_eq_u32 s{t0}, 26")
    a.e("s_cbranch_scc1 K1_PRE_DONE")
    a.e(f"s_cmp_ge_u32 s{t0}, 28")
    a.e("s_cbranch_scc1 K1_PRE_DONE")
    a.e(f"s_lshl_b32 s{t0}, s{t6}, 5")
    a.e(f"v_add_u32 v{vSA}, s{t0}, v{vT+4}")
    a.e(f"v_lshlrev_b32 v{vSA}, 4, v{vSA}")
    a.e(f"v_lshl_add_u32 v{vSA}, v{vT}, 15, v{vSA}")
    a.e(f"s_lshl_b32 s{t0}, s{sT0}, 16")
    a.e(f"s_lshl_b32 s{t1}, s{sNQ}, 18")
    a.e(f"s_add_u32 s{t0}, s{t0}, s{t1}")
    a.e(f"s_add_u32 s{t0}, s{t0}, {hx(AB_OFF + 80*32768)}")
    a.e(f"v_add_u32 v{vSA}, s{t0}, v{vSA}")
    a.e(f"v_add_u32 v{vSA+1}, {hx(131072)}, v{vSA}")
    a.lab("K1_PRE_DONE")
    a.e("s_waitcnt lgkmcnt(0)")
    stamp(a, 5)
    srd(a, sWS, "s18", "s19", WS_END)
    a.e(f"s_and_b32 s{t0}, s{sTYP}, 1")
    a.e(f"s_lshl_b32 s{t0}, s{t0}, 1")
    a.e(f"s_add_u32 s{t0}, s{t0}, s{sMH}")
    for v in range(1, 4):
        a.e(f"s_cmp_eq_u32 s{t0}, {v}")
        a.e(f"s_cbranch_scc1 K1_V{v}")

    def reads(fs):
        vA = vAe if fs == 0 else vAo
        ra = [f"ds_read_b128 {vr(fa(fs,mt),4)}, v{vA} offset:{2048*mt}" for mt in range(4)]
        rb = []
        for j in range(4):
            rb.append(f"ds_read_b64_tr_b16 {vr(fb(fs,j),2)}, v{vB} offset:{fs*K1_BH+32*j}")
            rb.append(f"ds_read_b64_tr_b16 {vr(fb(fs,j)+2,2)}, v{vB} offset:{fs*K1_BH+32*j+256}")
        return rb[0:2] + ra + rb[2:]

    def addr_update():
        return [f"v_add_u32 v{vB}, s{sRD}, v{vB0}",
                f"v_add_u32 v{vAe}, s{sRD}, v{vA0e}",
                f"v_add_u32 v{vAo}, s{sRD}, v{vA0o}",
                f"s_add_u32 s{sRD}, s{sRD}, {K1_SLOT}",
                f"s_cmp_eq_u32 s{sRD}, {K1_SCR}",
                f"s_cselect_b32 s{sRD}, 0, s{sRD}"]

    for var in range(4):
        typ, mh, nq = var >> 1, var & 1, 0
        cst = [2 * mh, 2 * mh + 1]
        smt = (2 if typ == 2 else 0) + nq
        a.raw(".p2align 3")
        a.lab(f"K1_V{var}")
        emit(addr_update())
        a.e("s_barrier")
        stamp(a, 1)
        emit(reads(0))
        a.raw(".p2align 6")
        a.lab(f"K1_L{var}")
        for fs in range(2):
            mf = []
            for j in range(4):
                for mt in range(4):
                    if typ == 1:
                        mf.append(f"v_mfma_f32_16x16x32_bf16 {vr(acc(j,mt),4)}, {vr(fa(fs,mt),4)}, {vr(fb(fs,j),4)}, {vr(acc(j,mt),4)}")
                    else:
                        mf.append(f"v_mfma_f32_16x16x32_bf16 {vr(acc(j,mt),4)}, {vr(fb(fs,j),4)}, {vr(fa(fs,mt),4)}, {vr(acc(j,mt),4)}")
                if j in cst:
                    c = vCS + 4 * cst.index(j)
                    mf.append(f"v_mfma_f32_16x16x32_bf16 {vr(c,4)}, {vr(fb(fs,j),4)}, {vr(vONES,4)}, {vr(c,4)}")
            va = []
            for r in range(4):
                src = fa(fs, smt) + r
                lo, hi = vU + 2 * (r & 1), vU + 2 * (r & 1) + 1
                va.append(f"v_lshlrev_b32 v{lo}, 16, v{src}")
                va.append(f"v_and_b32 v{hi}, 0xffff0000, v{src}")
                va.append(f"v_add_f32 v{vS}, v{vS}, v{lo}")
                va.append(f"v_add_f32 v{vS+1}, v{vS+1}, v{hi}")
                va.append(f"v_fmac_f32 v{vS+2}, v{lo}, v{lo}")
                va.append(f"v_fmac_f32 v{vS+3}, v{hi}, v{hi}")
            rd = reads(fs ^ 1)
            va = []
            if "r" in X: rd = []
            if "M" in X: mf = mf[:2]
            a.e("s_waitcnt lgkmcnt(0)")
            npre = 0
            if fs == 1:
                npre = 2
                for m in mf[:npre]:
                    a.e(m)
                emit(addr_update())
                a.e("s_barrier")
            rest = mf[npre:]
            nm = max(1, len(rest))
            ri = di = 0
            for i, m in enumerate(rest):
                if ri < len(rd):
                    a.e(rd[ri]); ri += 1
                a.e(m)
                want_d = (len(va) * (i + 1) + nm - 1) // nm
                while di < want_d:
                    a.e(va[di]); di += 1
            while ri < len(rd):
                a.e(rd[ri]); ri += 1
            while di < len(va):
                a.e(va[di]); di += 1
        a.e(f"s_add_u32 s{sIT}, s{sIT}, 1")
        a.e(f"s_cmp_lt_u32 s{sIT}, 10")
        a.e(f"s_cbranch_scc1 K1_L{var}")
        a.e(f"s_branch K1_EPI")

    a.raw(".p2align 3")
    a.lab("K1_EPI")
    stamp(a, 2)
    a.e("s_waitcnt vmcnt(0)")
    a.e(f"v_and_b32 v{vT}, 15, v{vLANE}")
    a.e(f"v_lshlrev_b32 v{vT}, 2, v{vT}")
    a.e(f"s_lshl_b32 s{t0}, s{sHALF}, 7")
    a.e(f"s_lshl_b32 s{t1}, s{sNQ}, 6")
    a.e(f"s_add_u32 s{t0}, s{t0}, s{t1}")
    a.e(f"s_lshl_b32 s{t2}, s{sMH}, 8")
    a.e(f"s_add_u32 s{t2}, s{t2}, {K1_SCR}")
    a.e(f"s_add_u32 s{t0}, s{t0}, s{t2}")
    a.e(f"v_add_u32 v{vT+1}, s{t0}, v{vT}")
    a.e(f"v_lshrrev_b32 v{vT+2}, 4, v{vLANE}")
    a.e(f"v_lshlrev_b32 v{vT+2}, 4, v{vT+2}")
    a.e(f"s_lshl_b32 s{t3}, s{sHALF}, 9")
    a.e(f"s_lshl_b32 s{t1}, s{sNQ}, 8")
    a.e(f"s_add_u32 s{t3}, s{t3}, s{t1}")
    a.e(f"s_add_u32 s{t3}, s{t3}, {K1_SCR+1024}")
    a.e(f"s_lshl_b32 s{t1}, s{sMH}, 7")
    a.e(f"s_add_u32 s{t0}, s{t3}, s{t1}")
    a.e(f"v_add_u32 v{vT+3}, s{t0}, v{vT+2}")
    a.e("s_mov_b32 exec_lo, 0x00010001")
    a.e("s_mov_b32 exec_hi, 0x00010001")
    a.e(f"ds_write_b128 v{vT+3}, {vr(vCS,4)}")
    a.e(f"ds_write_b128 v{vT+3}, {vr(vCS+4,4)} offset:64")
    a.e("s_mov_b64 exec, -1")
    a.e("s_waitcnt lgkmcnt(0)")
    a.e("s_barrier")
    stamp(a, 3)
    a.e(f"s_cmp_eq_u32 s{sTYP}, 1")
    a.e("s_cbranch_scc1 K1_EPI_V")

    vNM, vRS = 32, 36
    vC4 = 40
    vBB = 56
    a.e(f"v_add_u32 v{vT}, s{t2}, v{vT}")
    a.e(f"ds_read2_b32 {vr(vNM,2)}, v{vT} offset0:0 offset1:16")
    a.e(f"ds_read2_b32 {vr(vNM+2,2)}, v{vT} offset0:32 offset1:48")
    a.e(f"ds_read2_b32 {vr(vRS,2)}, v{vT} offset0:128 offset1:144")
    a.e(f"ds_read2_b32 {vr(vRS+2,2)}, v{vT} offset0:160 offset1:176")
    a.e(f"v_add_u32 v{vT+1}, s{t3}, v{vT+2}")
    for j in range(4):
        a.e(f"ds_read_b128 {vr(vC4+4*j,4)}, v{vT+1} offset:{64*j}")
    a.e(f"s_cmp_eq_u32 s{sTYP}, 2")
    a.e("s_cbranch_scc1 K1_EPI_F")

    def sel3(mt):
        return f"op_sel:[0,{mt&1},0] op_sel_hi:[1,{mt&1},1]"

    def sel2(mt):
        return f"op_sel:[0,{mt&1}] op_sel_hi:[1,{mt&1}]"
    a.e(f"s_cmp_lt_u32 s{sCB}, 5")
    a.e(f"s_cselect_b32 s{t0}, {hx(f32(QSCALE))}, 1.0")
    a.e("s_waitcnt lgkmcnt(4)")
    for i in range(4):
        a.e(f"v_mul_f32 v{vRS+i}, s{t0}, v{vRS+i}")
    for j in range(4):
        a.e(f"s_waitcnt lgkmcnt({3-j})")
        for mt in range(4):
            A = acc(j, mt)
            for p in range(2):
                a.e(f"v_pk_fma_f32 {vr(A+2*p,2)}, {vr(vC4+4*j+2*p,2)}, {vr(vNM+(mt&2),2)}, {vr(A+2*p,2)} {sel3(mt)}")
        for mt in range(4):
            A = acc(j, mt)
            for p in range(2):
                a.e(f"v_pk_mul_f32 {vr(A+2*p,2)}, {vr(A+2*p,2)}, {vr(vRS+(mt&2),2)} {sel2(mt)}")
        for mt in range(4):
            A = acc(j, mt)
            a.e(f"v_cvt_pk_bf16_f32 v{A}, v{A}, v{A+1}")
            a.e(f"v_cvt_pk_bf16_f32 v{A+1}, v{A+2}, v{A+3}")
            so = f"s{sTS}" if mt & 2 else "0"
            a.e(f"buffer_store_dwordx2 {vr(A,2)}, v{vSA+2*j+(mt&1)}, {sr(sWS,4)}, {so} offen{SCQ}")
    finish("Q")
    a.lab("K1_EPI_F")
    c0 = -2.0 * math.sqrt(2.0 / math.pi) * math.log2(math.e)
    c1 = c0 * 0.044715
    vC0, vONE = 64, 66
    a.e(f"v_lshrrev_b32 v{vT+2}, 1, v{vT+2}")
    a.e(f"s_lshl_b32 s{t0}, s{sNQ}, 7")
    a.e(f"s_add_u32 s{t0}, s{t0}, {K1_SCR+2048}")
    a.e(f"v_add_u32 v{vT+2}, s{t0}, v{vT+2}")
    for j in range(4):
        a.e(f"ds_read_b64 {vr(vBB+2*j,2)}, v{vT+2} offset:{32*j}")
    a.e(f"v_mov_b32 v{vC0}, {hx(f32(c0))}")
    a.e(f"v_mov_b32 v{vC0+1}, {hx(f32(c0))}")
    a.e(f"v_mov_b32 v{vONE}, 1.0")
    a.e(f"v_mov_b32 v{vONE+1}, 1.0")
    a.e(f"s_mov_b32 s{sC1}, {hx(f32(c1))}")
    a.e(f"s_mov_b32 s{sC1+1}, {hx(f32(c1))}")
    vBF = 68
    vW = 88
    for j in range(4):
        a.e(f"s_waitcnt lgkmcnt({3-j})")
        a.e(f"v_lshlrev_b32 v{vBF}, 16, v{vBB+2*j}")
        a.e(f"v_and_b32 v{vBF+1}, 0xffff0000, v{vBB+2*j}")
        a.e(f"v_lshlrev_b32 v{vBF+2}, 16, v{vBB+2*j+1}")
        a.e(f"v_and_b32 v{vBF+3}, 0xffff0000, v{vBB+2*j+1}")
        for mp in range(2):
            prs = [(mt, p) for mt in (2 * mp, 2 * mp + 1) for p in range(2)]
            for i, (mt, p) in enumerate(prs):
                A = acc(j, mt) + 2 * p
                a.e(f"v_pk_fma_f32 {vr(A,2)}, {vr(vC4+4*j+2*p,2)}, {vr(vNM+(mt&2),2)}, {vr(A,2)} {sel3(mt)}")
            for i, (mt, p) in enumerate(prs):
                A = acc(j, mt) + 2 * p
                a.e(f"v_pk_fma_f32 {vr(A,2)}, {vr(A,2)}, {vr(vRS+(mt&2),2)}, {vr(vBF+2*p,2)} {sel3(mt)}")
            for i, (mt, p) in enumerate(prs):
                A = acc(j, mt) + 2 * p
                a.e(f"v_pk_mul_f32 {vr(vW+2*i,2)}, {vr(A,2)}, {vr(A,2)}")
            for i, (mt, p) in enumerate(prs):
                a.e(f"v_pk_fma_f32 {vr(vW+2*i,2)}, {vr(vW+2*i,2)}, {sr(sC1,2)}, {vr(vC0,2)}")
            for i, (mt, p) in enumerate(prs):
                A = acc(j, mt) + 2 * p
                a.e(f"v_pk_mul_f32 {vr(vW+2*i,2)}, {vr(vW+2*i,2)}, {vr(A,2)}")
            for i in range(8):
                a.e(f"v_exp_f32 v{vW+i}, v{vW+i}")
            for i in range(4):
                a.e(f"v_pk_add_f32 {vr(vW+2*i,2)}, {vr(vW+2*i,2)}, {vr(vONE,2)}")
            for i in range(8):
                a.e(f"v_rcp_f32 v{vW+i}, v{vW+i}")
            for i, (mt, p) in enumerate(prs):
                A = acc(j, mt) + 2 * p
                a.e(f"v_pk_mul_f32 {vr(A,2)}, {vr(A,2)}, {vr(vW+2*i,2)}")
            for mt in (2 * mp, 2 * mp + 1):
                A = acc(j, mt)
                D = acc(j & ~1, mt) + 2 * (j & 1)
                a.e(f"v_cvt_pk_bf16_f32 v{D}, v{A}, v{A+1}")
                a.e(f"v_cvt_pk_bf16_f32 v{D+1}, v{A+2}, v{A+3}")
                if j & 1 and "g" not in X:
                    a.e(f"buffer_store_dwordx4 {vr(acc(j-1,mt),4)}, v{vSA+j//2}, {sr(sWS,4)}, 0 offen offset:{256*mt}{SCF}")
    if "g" in X:
        a.e(f"v_mov_b32 v2, {K1_SYN}")
        a.lab("K1_FW")
        a.e("ds_read_b32 v3, v2")
        a.e("s_waitcnt lgkmcnt(0)")
        a.e(f"v_readfirstlane_b32 s{t0}, v3")
        a.e(f"s_cmp_lt_u32 s{t0}, 4")
        a.e("s_cbranch_scc1 K1_FW")
        for j in (1, 3):
            for mt in range(4):
                a.e(f"buffer_store_dwordx4 {vr(acc(j-1,mt),4)}, v{vSA+j//2}, {sr(sWS,4)}, 0 offen offset:{256*mt}{SCF}")
    finish("F")
    a.lab("K1_EPI_V")
    vNMv, vRSv = 40, 56
    vCSv = 88
    a.e(f"v_add_u32 v{vT+1}, s{t2}, v{vT+2}")
    for mt in range(4):
        a.e(f"ds_read_b128 {vr(vNMv+4*mt,4)}, v{vT+1} offset:{64*mt}")
    for mt in range(4):
        a.e(f"ds_read_b128 {vr(vRSv+4*mt,4)}, v{vT+1} offset:{512+64*mt}")
    a.e(f"v_add_u32 v{vT+3}, s{t3}, v{vT}")
    for j in range(4):
        a.e(f"ds_read_b32 v{vCSv+2*j}, v{vT+3} offset:{64*j}")
    for j in range(4):
        a.e(f"s_waitcnt lgkmcnt({3-j})")
        for mt in range(4):
            A = acc(j, mt)
            for p in range(2):
                a.e(f"v_pk_fma_f32 {vr(A+2*p,2)}, {vr(vNMv+4*mt+2*p,2)}, {vr(vCSv+2*j,2)}, {vr(A+2*p,2)} op_sel:[0,0,0] op_sel_hi:[1,0,1]")
        for mt in range(4):
            A = acc(j, mt)
            for p in range(2):
                a.e(f"v_pk_mul_f32 {vr(A+2*p,2)}, {vr(A+2*p,2)}, {vr(vRSv+4*mt+2*p,2)}")
        for t2_ in range(2):
            A0, A1 = acc(j, 2 * t2_), acc(j, 2 * t2_ + 1)
            a.e(f"v_cvt_pk_bf16_f32 v{A0}, v{A0}, v{A0+1}")
            a.e(f"v_cvt_pk_bf16_f32 v{A0+1}, v{A0+2}, v{A0+3}")
            a.e(f"v_cvt_pk_bf16_f32 v{A0+2}, v{A1}, v{A1+1}")
            a.e(f"v_cvt_pk_bf16_f32 v{A0+3}, v{A1+2}, v{A1+3}")
            a.e(f"buffer_store_dwordx4 {vr(A0,4)}, v{vSA+j}, {sr(sWS,4)}, 0 offen offset:{KVT*t2_}{SCQ}")
    finish("Q")
    if ONE:
        for kind in "QF":
            a.lab(f"K1_SIG{kind}")
            a.e(f"v_mov_b32 v2, {K1_SYN + (4 if kind == 'F' else 0)}")
            a.e("v_mov_b32 v3, 1")
            if kind == "Q":
                a.e(f"v_lshlrev_b32 v5, 11, v{vLANE}")
                a.e(f"s_lshl_b32 s{t0}, s{sCB}, 7")
                a.e(f"s_lshl_b32 s{t1}, s{sRB}, 2")
                a.e(f"s_add_u32 s{t0}, s{t0}, s{t1}")
                a.e(f"s_add_u32 s{t0}, s{t0}, {hx(FL_OFF + FQ_REL)}")
            else:
                a.e("v_mov_b32 v5, 0")
                a.e(f"s_lshl_b32 s{t0}, s{sRB}, 7")
                a.e(f"s_lshl_b32 s{t1}, s{sCB}, 2")
                a.e(f"s_add_u32 s{t0}, s{t0}, s{t1}")
                a.e(f"s_add_u32 s{t0}, s{t0}, {hx(FL_OFF + FH_REL)}")
            a.e("s_waitcnt vmcnt(0)")
            a.e("s_mov_b64 exec, 1")
            a.e("ds_add_rtn_u32 v4, v2, v3")
            a.e("s_waitcnt lgkmcnt(0)")
            a.e(f"v_readfirstlane_b32 s{t1}, v4")
            a.e("s_mov_b64 exec, -1")
            a.e(f"s_cmp_lg_u32 s{t1}, 3")
            a.e("s_cbranch_scc1 P2_ENTRY")
            if kind in WB:
                a.e("buffer_wbl2 sc1")
                a.e("s_waitcnt vmcnt(0)")
            a.e(f"s_mov_b64 exec, {15 if kind == 'Q' else 1}")
            a.e(f"buffer_store_dword v3, v5, {sr(sWS,4)}, s{t0} offen sc1")
            a.e("s_mov_b64 exec, -1")
            a.e("s_branch P2_ENTRY")

    a.lab("K1_TRANS")
    sTAU, sSEL0, sSEL1 = 51, 52, 53
    NB_T = 4
    sTs = [24, 28, 36, 40]
    sK = [54, 56, 58, 76]
    vTO = [2, 3, 4, 5]
    vTS = [6, 7, 8, 9]
    vTL = [88, 104, 120, 136]
    a.e(f"s_mul_i32 s{sTAU}, s{sRB}, 12")
    a.e(f"s_add_u32 s{sTAU}, s{sTAU}, s{sW}")
    a.e(f"s_mov_b32 s{sSEL0}, 0x05040100")
    a.e(f"s_mov_b32 s{sSEL1}, 0x07060302")
    a.e(f"v_lshlrev_b32 v{vT}, 2, v{vLANE}")
    a.e(f"v_lshlrev_b32 v{vT+1}, 4, v{vLANE}")
    a.e(f"s_lshl_b32 s{t0}, s{sW}, 13")
    a.e(f"v_lshlrev_b32 v10, 5, v{vLANE}")
    a.e(f"v_add_u32 v10, s{t0}, v10")
    a.e(f"v_add_u32 v11, s{t0}, v{vT+1}")
    a.e("s_waitcnt lgkmcnt(0)")
    srd(a, sWS, "s18", "s19", WS_END)
    if "Q" in X:
        srd(a, sX, "s4", "s5", 2048 * 640 * 2)
        srd(a, sB0, "s6", "s7", 640 * 1920 * 2)
        srd(a, sB1, "s12", "s13", 640 * 1728 * 2)
        a.e(f"s_lshl_b32 s{t0}, s{sTAU}, 13")
        a.e(f"v_lshlrev_b32 v20, 7, v{vLANE}")
        a.e(f"v_add_u32 v20, s{t0}, v20")
        a.e(f"s_mov_b32 s{t1}, {192*3840}")
        a.e(f"s_mov_b32 s{t2}, {192*3456}")
        a.e(f"s_mov_b32 s{t3}, {192*3840 + 12288*128}")
        a.e(f"s_mov_b32 s{t4}, {12288*128}")
        a.e(f"buffer_load_dword v21, v20, {sr(sB0,4)}, s{t1} offen")
        a.e(f"buffer_load_dword v22, v20, {sr(sB1,4)}, s{t2} offen")
        a.e(f"buffer_load_dword v23, v20, {sr(sX,4)}, 0 offen")
        a.e(f"buffer_load_dword v24, v20, {sr(sX,4)}, s{t4} offen")
        a.e(f"buffer_load_dword v25, v20, {sr(sB0,4)}, s{t3} offen")
    a.e(f"s_lshl_b32 s{t0}, s{sTAU}, 4")
    a.e(f"v_lshrrev_b32 v{vT+2}, 2, v{vLANE}")
    a.e(f"v_add_u32 v{vT+2}, s{t0}, v{vT+2}")
    a.e(f"v_mul_u32_u24 v{vT+2}, {KVT}, v{vT+2}")
    a.e(f"v_and_b32 v{vT+3}, 3, v{vLANE}")
    a.e(f"v_mul_u32_u24 v{vT+3}, {VP}, v{vT+3}")
    a.e(f"v_add_u32 v{vT+2}, v{vT+2}, v{vT+3}")
    a.e(f"s_cmp_lt_u32 s{sTAU}, 128")
    a.e(f"s_cselect_b32 s{t0}, {hx(KV_OFF + 1280 + 320)}, {hx(OOB)}")
    for i in range(4):
        a.e(f"v_mov_b32 v{12+i}, 0x3f803f80")
    a.e(f"buffer_store_dwordx4 v[12:15], v{vT+2}, {sr(sWS,4)}, s{t0} offen{SC}")
    a.e(f"s_lshl_b32 s{t1}, s{sW}, 10")
    a.e(f"s_add_u32 s{t1}, s{t1}, {hx(FL_OFF)}")
    a.e(f"s_cmp_eq_u32 s{sRB}, 0")
    a.e(f"s_cselect_b32 s{t0}, s{t1}, {hx(OOB)}")
    for i in range(4):
        a.e(f"v_mov_b32 v{16+i}, 0")
    a.e(f"v_lshlrev_b32 v{vT+3}, 4, v{vLANE}")
    a.e(f"buffer_store_dwordx4 v[16:19], v{vT+3}, {sr(sWS,4)}, s{t0} offen{SC}")
    if ONE:
        a.e(f"v_mov_b32 v20, {K1_SYN}")
        a.e("ds_write_b128 v20, v[16:19]")
        a.e("s_waitcnt vmcnt(0) lgkmcnt(0)")
        a.e("s_barrier")
        a.e(f"s_cmp_lg_u32 s{sW}, 0")
        a.e("s_cbranch_scc1 K1_TGO")
        a.e("v_mov_b32 v21, 1")
        a.e(f"s_cmp_lg_u32 s{sRB}, 0")
        a.e("s_cbranch_scc1 K1_TZ")
        srd(a, sX, "s10", "s11", 256)
        a.e("s_mov_b64 exec, 1")
        a.e(f"buffer_store_dword v21, v16, {sr(sX,4)}, 0 offen sc1")
        a.e("s_mov_b64 exec, -1")
        a.lab("K1_TZ")
        zpoll("tr", sX, 22, 23)
        a.e(f"v_lshlrev_b32 v22, 11, v{vLANE}")
        a.e(f"s_lshl_b32 s{t1}, s{sRB}, 2")
        a.e(f"s_add_u32 s{t1}, s{t1}, {hx(FL_OFF + FQ_REL + 15*128)}")
        a.e("s_mov_b64 exec, 15")
        a.e(f"buffer_store_dword v21, v22, {sr(sWS,4)}, s{t1} offen sc1")
        a.e("s_mov_b64 exec, -1")
        a.lab("K1_TGO")
    a.e(f"s_mov_b32 s{sIT+3}, 0")
    a.lab("K1_TL")
    for b in range(NB_T):
        T = sTs[b]
        a.e(f"s_mul_i32 s{t1}, s{sTAU}, 13108")
        a.e(f"s_lshr_b32 s{t1}, s{t1}, 16")
        a.e(f"s_mul_i32 s{t2}, s{t1}, 5")
        a.e(f"s_sub_u32 s{t2}, s{sTAU}, s{t2}")
        a.e(f"s_lshr_b32 s{t5}, s{t1}, 1")
        a.e(f"s_mul_i32 s{t5}, s{t5}, 20")
        a.e(f"s_and_b32 s{t6}, s{t1}, 1")
        a.e(f"s_lshl_b32 s{t6}, s{t6}, 2")
        a.e(f"s_add_u32 s{t5}, s{t5}, s{t6}")
        a.e(f"s_add_u32 s{t6}, s{t5}, 8")
        a.e(f"s_sub_u32 s{t3}, s{t1}, 64")
        a.e(f"s_mul_i32 s{t3}, s{t3}, 40")
        a.e(f"s_add_u32 s{t4}, s{t3}, 36")
        a.e(f"s_add_u32 s{t3}, s{t3}, 16")
        a.e(f"s_cmp_lt_u32 s{t1}, 64")
        a.e(f"s_cselect_b32 s{t5}, s{t5}, s{t3}")
        a.e(f"s_cselect_b32 s{t6}, s{t6}, s{t4}")
        a.e(f"s_sub_u32 s{t3}, s{t1}, 80")
        a.e(f"s_lshr_b32 s{t4}, s{t3}, 2")
        a.e(f"s_lshl_b32 s{t4}, s{t4}, 5")
        a.e(f"s_and_b32 s{t3}, s{t3}, 3")
        a.e(f"s_lshl_b32 s{t3}, s{t3}, 2")
        a.e(f"s_add_u32 s{t3}, s{t3}, s{t4}")
        a.e(f"s_add_u32 s{t4}, s{t3}, 16")
        a.e(f"s_cmp_lt_u32 s{t1}, 80")
        a.e(f"s_cselect_b32 s{t5}, s{t5}, s{t3}")
        a.e(f"s_cselect_b32 s{t6}, s{t6}, s{t4}")
        a.e(f"s_cselect_b32 s{T}, s8, s16")
        a.e(f"s_cselect_b32 s{T+1}, s9, s17")
        a.e(f"s_cselect_b32 s{T+2}, {hx(640*640*2)}, {hx(1728*640*2)}")
        a.e(f"s_mov_b32 s{T+3}, 0x00020000")
        a.e(f"s_mul_i32 s{sK[b]}, s{t5}, 1280")
        a.e(f"s_mul_i32 s{sK[b]+1}, s{t6}, 1280")
        a.e(f"s_lshl_b32 s{t3}, s{t2}, 8")
        a.e(f"v_add_u32 v{vTO[b]}, s{t3}, v{vT}")
        for j in range(8):
            so = sK[b] if j < 4 else sK[b] + 1
            a.e(f"buffer_load_dword v{vTL[b]+j}, v{vTO[b]}, {sr(T,4)}, s{so} offen offset:{(j&3)*1280}")
        a.e(f"s_mul_i32 s{t1}, s{t1}, 10240")
        a.e(f"s_lshl_b32 s{t2}, s{t2}, 11")
        a.e(f"s_add_u32 s{t1}, s{t1}, s{t2}")
        a.e(f"s_add_u32 s{t1}, s{t1}, {hx(WT_OFF)}")
        a.e(f"s_cmp_lt_u32 s{sTAU}, 1480")
        a.e(f"s_cselect_b32 s{t1}, s{t1}, {hx(OOB)}")
        a.e(f"v_add_u32 v{vTS[b]}, s{t1}, v{vT+1}")
        a.e(f"s_add_u32 s{sTAU}, s{sTAU}, 192")
    for b in range(NB_T):
        a.e(f"s_waitcnt vmcnt({8*(NB_T-1-b)})")
        for i in range(4):
            a.e(f"v_perm_b32 v{vTL[b]+8+i}, v{vTL[b]+2*i+1}, v{vTL[b]+2*i}, s{sSEL0}")
            a.e(f"v_perm_b32 v{vTL[b]+12+i}, v{vTL[b]+2*i+1}, v{vTL[b]+2*i}, s{sSEL1}")
        a.e(f"ds_write_b128 v10, {vr(vTL[b]+8,4)} offset:{2048*b}")
        a.e(f"ds_write_b128 v10, {vr(vTL[b]+12,4)} offset:{2048*b+16}")
    a.e("s_waitcnt lgkmcnt(0)")
    for b in range(NB_T):
        a.e(f"ds_read_b128 {vr(vTL[b]+8,4)}, v11 offset:{2048*b}")
        a.e(f"ds_read_b128 {vr(vTL[b]+12,4)}, v11 offset:{2048*b+1024}")
    for b in range(NB_T):
        a.e(f"s_waitcnt lgkmcnt({2*(NB_T-1-b)})")
        a.e(f"buffer_store_dwordx4 {vr(vTL[b]+8,4)}, v{vTS[b]}, {sr(sWS,4)}, 0 offen{SCT}")
        a.e(f"buffer_store_dwordx4 {vr(vTL[b]+12,4)}, v{vTS[b]}, {sr(sWS,4)}, 0 offen offset:1024{SCT}")
    a.e(f"s_add_u32 s{sIT+3}, s{sIT+3}, 1")
    a.e(f"s_cmp_lt_u32 s{sIT+3}, 2")
    a.e("s_cbranch_scc1 K1_TL")
    if DIAG:
        for i in (1, 2, 3, 5):
            stamp(a, i)
    k1flush()
    if ONE:
        a.e("s_waitcnt vmcnt(0)")
        a.e("s_barrier")
        a.e(f"s_cmp_lg_u32 s{sW}, 0")
        a.e("s_cbranch_scc1 P2_ENTRY")
        if "T" in WB:
            a.e("buffer_wbl2 sc1")
            a.e("s_waitcnt vmcnt(0)")
        a.e(f"v_lshlrev_b32 v22, 7, v{vLANE}")
        a.e(f"s_lshl_b32 s{t1}, s{sRB}, 2")
        a.e(f"s_add_u32 s{t1}, s{t1}, {hx(FL_OFF + FH_REL + 16*128)}")
        a.e("s_mov_b64 exec, 15")
        a.e(f"buffer_store_dword v21, v22, {sr(sWS,4)}, s{t1} offen sc1")
        a.e("s_mov_b64 exec, -1")
        a.e("s_branch P2_ENTRY")
    a.lab("K1_END")
    a.e("s_endpgm")
    return name, NV, 102 if DIAG else 80, (256, 768, K1_LDS)


K2_LDS = 163840
Y_OFF = 0x1400000
Y_SIZE = 2048 * 640 * 4
WS_ALL = Y_OFF + Y_SIZE


def gen_k2(a):
    name = "k2_attn_kernel"
    if ONE:
        a.raw(".p2align 6")
        a.lab("P2_ENTRY")
    else:
        kernel_header(a, name)
    X2 = os.environ.get("K2X", "")
    sWS, sKV = 12, 16
    sW, sH, sQT, sOFF, sIT, sG = 20, 21, 22, 23, 24, 25
    sLD = 26
    t0, t1, t2, t3 = 28, 29, 30, 31
    sBM = 32
    vLANE = 1
    vL16, vKa, vKb, vV = 2, 3, 4, 5
    vT = 6
    QA, QB = [12, 20], [16, 24]
    KA, KB = 28, 32
    V0, V1 = 36, 40
    P0, P1 = 44, 48
    O = [64, 80]
    S = [96, 112]
    NV = 168
    RG = 81920
    FUSE = "u" not in X2
    k2flush = lambda: (stamp(a, 4), stamp_flush(a, 1, 12, sW, "s4", "s5", 8, 2))

    if not ONE:
        a.e("s_cmp_ge_u32 s2, 256")
        a.e("s_cbranch_scc1 K2_END")
    stamp(a, 0)
    a.e("s_load_dwordx2 s[4:5], s[0:1], 80")
    a.e("s_load_dwordx2 s[6:7], s[0:1], 0")
    a.e("s_load_dwordx2 s[8:9], s[0:1], 56")
    a.e("s_load_dwordx4 s[60:63], s[0:1], 64")
    a.e(f"v_and_b32 v{vLANE}, 63, v0")
    a.e(f"v_lshrrev_b32 v{vT}, 6, v0")
    a.e(f"s_and_b32 s{t0}, s2, 7")
    a.e(f"v_readfirstlane_b32 s{sW}, v{vT}")
    a.e(f"s_lshr_b32 s{t1}, s2, 3")
    a.e(f"s_lshl_b32 s{t2}, s{t0}, 2")
    a.e(f"s_and_b32 s{t3}, s{t1}, 3")
    a.e(f"s_add_u32 s{sH}, s{t2}, s{t3}")
    a.e(f"v_lshlrev_b32 v{vL16}, 4, v{vLANE}")
    a.e(f"s_mul_i32 s{t2}, s{sH}, {KVH}")
    a.e(f"s_add_u32 s{t2}, s{t2}, {hx(KV_OFF)}")
    a.e("s_waitcnt lgkmcnt(0)")
    stamp(a, 5)
    a.e(f"s_add_u32 s{sKV}, s4, s{t2}")
    a.e(f"s_addc_u32 s{sKV+1}, s5, 0")
    a.e(f"s_mov_b32 s{sKV+2}, {KVH}")
    a.e(f"s_mov_b32 s{sKV+3}, 0x00020000")
    sFL = 64

    def gpoll(tag, vaddr, vd):
        a.e(f"s_mov_b32 s{sIT}, 0")
        a.lab(f"GP_{tag}")
        a.e(f"buffer_load_dword v{vd}, v{vaddr}, {sr(sFL,4)}, 0 offen sc1")
        a.e(f"s_add_u32 s{sIT}, s{sIT}, 1")
        a.e("s_waitcnt vmcnt(0)")
        a.e(f"v_cmp_ne_u32 vcc, 1, v{vd}")
        a.e(f"s_cmp_ge_u32 s{sIT}, {POLL_MAX}")
        a.e(f"s_cbranch_scc1 GD_{tag}")
        a.e(f"s_cbranch_vccz GD_{tag}")
        a.e("s_sleep 3")
        a.e(f"s_branch GP_{tag}")
        a.lab(f"GD_{tag}")

    if ONE:
        a.e(f"v_mov_b32 v{vT+5}, {K1_SYN + 8}")
        a.e(f"s_cmp_lg_u32 s{sW}, 0")
        a.e("s_cbranch_scc1 P2_SPIN")
        srd_off(a, sFL, "s4", "s5", FL_OFF, FL_SIZE)
        a.e(f"s_mul_i32 s{t2}, s{sH}, 20")
        a.e(f"s_and_b32 s{t3}, s2, 3")
        a.e(f"s_lshl_b32 s{t3}, s{t3}, 11")
        a.e(f"s_add_u32 s{t3}, s{t3}, {FQ_REL}")
        a.e(f"v_lshrrev_b32 v{vT}, 5, v{vLANE}")
        a.e(f"v_mul_u32_u24 v{vT}, 640, v{vT}")
        a.e(f"v_bfe_u32 v{vT+1}, v{vLANE}, 4, 1")
        a.e(f"v_mul_u32_u24 v{vT+1}, 19, v{vT+1}")
        a.e(f"v_add3_u32 v{vT}, v{vT}, v{vT+1}, s{t2}")
        a.e(f"v_add_u32 v{vT}, 640, v{vT}")
        a.e(f"v_and_b32 v{vT}, 0xffffff80, v{vT}")
        a.e(f"v_and_b32 v{vT+1}, 15, v{vLANE}")
        a.e(f"v_lshl_add_u32 v{vT}, v{vT+1}, 2, v{vT}")
        a.e(f"v_add_u32 v{vT}, s{t3}, v{vT}")
        a.e(f"v_and_b32 v{vT+2}, 1, v{vLANE}")
        a.e(f"v_mul_u32_u24 v{vT+2}, 19, v{vT+2}")
        a.e(f"v_add_u32 v{vT+2}, s{t2}, v{vT+2}")
        a.e(f"v_and_b32 v{vT+2}, 0xffffff80, v{vT+2}")
        a.e(f"v_bfe_u32 v{vT+3}, v{vLANE}, 1, 1")
        a.e(f"s_lshr_b32 s{t2}, s2, 5")
        a.e(f"s_lshl_b32 s{t2}, s{t2}, 1")
        a.e(f"v_add_u32 v{vT+3}, s{t2}, v{vT+3}")
        a.e(f"v_lshl_add_u32 v{vT+2}, v{vT+3}, 2, v{vT+2}")
        a.e(f"v_lshlrev_b32 v{vT+3}, 2, v{vT+1}")
        a.e(f"v_add_u32 v{vT+3}, {15*128}, v{vT+3}")
        a.e(f"v_cmp_gt_u32 vcc, 16, v{vLANE}")
        a.e("s_nop 1")
        a.e(f"v_cndmask_b32 v{vT+2}, v{vT+2}, v{vT+3}, vcc")
        a.e(f"v_add_u32 v{vT+2}, s{t3}, v{vT+2}")
        gpoll("kv", vT, vT + 4)
        a.e("s_mov_b64 exec, 0xfffff")
        gpoll("q", vT + 2, vT + 4)
        a.e("s_mov_b64 exec, -1")
        a.e(f"v_mov_b32 v{vT+4}, 1")
        a.e(f"ds_write_b32 v{vT+5}, v{vT+4}")
        a.e("s_branch P2_GO")
        a.lab("P2_SPIN")
        a.e(f"ds_read_b32 v{vT+4}, v{vT+5}")
        a.e("s_waitcnt lgkmcnt(0)")
        a.e(f"v_readfirstlane_b32 s{t2}, v{vT+4}")
        a.e(f"s_cmp_eq_u32 s{t2}, 1")
        a.e("s_cbranch_scc1 P2_GO")
        a.e("s_sleep 1")
        a.e("s_branch P2_SPIN")
        a.lab("P2_GO")
        stamp(a, 5)
    a.e(f"s_cmp_ge_u32 s{sW}, 4")
    a.e("s_cbranch_scc1 K2_ATT")
    sA, sWT, sXX, sB2, sY = 36, 40, 44, 48, 52
    sRB, sCB, sOA, sOW = 56, 57, 58, 59
    vOA, vOW, vXO, vBO, vYO = 3, 4, 5, 12, 13
    F = 16
    ACC = 88

    def fA(s_, mt):
        return F + 36 * s_ + 4 * mt

    def fW(s_, t):
        return F + 36 * s_ + 16 + 4 * t

    def kvdma(n):
        for t in range(n):
            a.e(f"s_mov_b32 m0, s{sLD}")
            a.e(f"s_add_u32 s{sLD}, s{sLD}, 2048")
            a.e(f"buffer_load_dwordx4 v{vL16}, {sr(sKV,4)}, s{sOFF} offen{SC} lds")
            a.e(f"s_add_u32 s{sOFF}, s{sOFF}, 2048")

    a.e("s_setprio 3")
    a.e(f"s_and_b32 s{t2}, s{sW}, 1")
    a.e(f"s_lshr_b32 s{t3}, s{sW}, 1")
    a.e(f"s_lshl_b32 s{t3}, s{t3}, 10")
    a.e(f"s_mul_i32 s{sOFF}, s{t2}, {32*KVT}")
    a.e(f"s_add_u32 s{sOFF}, s{sOFF}, s{t3}")
    a.e(f"s_mul_i32 s{sLD}, s{t2}, {RG}")
    a.e(f"s_add_u32 s{sLD}, s{sLD}, s{t3}")
    kvdma(9)
    a.e(f"s_lshl_b32 s{t0}, s{t0}, 2")
    a.e(f"s_and_b32 s{t2}, s{t1}, 3")
    a.e(f"s_add_u32 s{sRB}, s{t0}, s{t2}")
    a.e(f"s_lshr_b32 s{sCB}, s{t1}, 2")
    srd_off(a, sA, "s4", "s5", AB_OFF + 80 * 32768, AB_SIZE - 80 * 32768)
    srd_off(a, sWT, "s4", "s5", WT_OFF + 80 * 10240, WT_SIZE - 80 * 10240)
    srd(a, sXX, "s6", "s7", 2048 * 640 * 2)
    srd(a, sB2, "s8", "s9", 640 * 2)
    a.e(f"v_and_b32 v{vT}, 15, v{vLANE}")
    a.e(f"v_lshrrev_b32 v{vT+1}, 4, v{vLANE}")
    a.e(f"s_lshl_b32 s{t0}, s{sRB}, 6")
    a.e(f"v_add_u32 v{vT+2}, s{t0}, v{vT}")
    a.e(f"v_lshlrev_b32 v{vOA}, 4, v{vT+2}")
    a.e(f"v_lshl_add_u32 v{vOA}, v{vT+1}, 15, v{vOA}")
    a.e(f"s_mul_i32 s{t1}, s{sCB}, 80")
    a.e(f"v_add_u32 v{vT+3}, s{t1}, v{vT}")
    a.e(f"v_lshlrev_b32 v{vOW}, 4, v{vT+3}")
    a.e(f"v_mul_u32_u24 v{vT+3}, 10240, v{vT+1}")
    a.e(f"v_add_u32 v{vOW}, v{vOW}, v{vT+3}")
    a.e(f"s_lshl_b32 s{sOA}, s{sW}, 17")
    a.e(f"s_mul_i32 s{sOW}, s{sW}, 40960")
    a.e(f"v_lshlrev_b32 v{vBO}, 3, v{vT+1}")
    a.e(f"s_lshl_b32 s{t2}, s{t1}, 1")
    a.e(f"v_add_u32 v{vBO}, s{t2}, v{vBO}")
    a.e(f"s_lshl_b32 s{t2}, s{sW}, 4")
    a.e(f"v_add_u32 v{vT+2}, s{t2}, v{vT+2}")
    a.e(f"v_mul_u32_u24 v{vXO}, 1280, v{vT+2}")
    a.e(f"v_add_u32 v{vXO}, v{vXO}, v{vBO}")
    a.e(f"s_lshl_b32 s{t0}, s{sRB}, 3")
    a.e(f"s_add_u32 s{t0}, s{t0}, s{sCB}")
    a.e(f"s_mul_i32 s{t0}, s{t0}, 20480")
    a.e(f"s_mul_i32 s{t2}, s{sW}, 5120")
    a.e(f"s_add_u32 s{t0}, s{t0}, s{t2}")
    a.e(f"v_add_u32 v{vYO}, s{t0}, v{vL16}")
    for i in range(80):
        a.e(f"v_mov_b32 v{ACC+i}, 0")
    a.e(f"s_mov_b32 s{sIT}, 0")
    a.e(f"s_mov_b32 s{sBM}, {hx(0 if 'B' in X2 else (1 << 1))}")
    a.e(f"v_mov_b32 v{vT}, 0")
    a.e("s_waitcnt vmcnt(3)")
    a.e("s_barrier")
    stamp(a, 1)
    kvdma(31)

    def loads(s_):
        r = [f"buffer_load_dwordx4 {vr(fA(s_,mt),4)}, v{vOA}, {sr(sA,4)}, s{sOA} offen offset:{256*mt}{SC}" for mt in range(4)]
        for t in range(5):
            r.append(f"buffer_load_dwordx4 {vr(fW(s_,t),4)}, v{vOW}, {sr(sWT,4)}, s{sOW} offen offset:{256*t}{SC}")
        r.append(f"s_add_u32 s{sOA}, s{sOA}, {4*131072}")
        r.append(f"s_add_u32 s{sOW}, s{sOW}, {4*40960}")
        return r

    if ONE:
        srd_off(a, sFL, "s4", "s5", FL_OFF, FL_SIZE)
        a.e(f"v_and_b32 v{vT+1}, 15, v{vLANE}")
        a.e(f"v_min_u32 v{vT+2}, 13, v{vT+1}")
        a.e(f"v_lshlrev_b32 v{vT+2}, 2, v{vT+2}")
        a.e(f"s_lshr_b32 s{t2}, s{sRB}, 1")
        a.e(f"s_lshl_b32 s{t2}, s{t2}, 7")
        a.e(f"s_add_u32 s{t2}, s{t2}, {FH_REL}")
        a.e(f"v_add_u32 v{vT+2}, s{t2}, v{vT+2}")
        a.e(f"v_lshlrev_b32 v{vT+1}, 2, v{vT+1}")
        a.e(f"s_and_b32 s{t2}, s2, 3")
        a.e(f"s_lshl_b32 s{t2}, s{t2}, 7")
        a.e(f"s_add_u32 s{t2}, s{t2}, {FH_REL + 16*128}")
        a.e(f"v_add_u32 v{vT+1}, s{t2}, v{vT+1}")
        a.e(f"v_cmp_gt_u32 vcc, 16, v{vLANE}")
        a.e("s_nop 1")
        a.e(f"v_cndmask_b32 v{vT+1}, v{vT+1}, v{vT+2}, vcc")
        a.e("s_waitcnt vmcnt(31)")
        a.e("s_barrier")
        a.e("s_mov_b32 exec_hi, 0")
        gpoll("h", vT + 1, vT + 4)
        a.e("s_mov_b64 exec, -1")
        a.e(f"s_mov_b32 s{sIT}, 0")
        for s_ in range(2):
            for ins in loads(s_):
                a.e(ins)
    else:
        for s_ in range(2):
            for ins in loads(s_):
                a.e(ins)
        a.e("s_waitcnt vmcnt(49)")
        a.e("s_barrier")
    stamp(a, 2)
    if "n" in X2:
        a.e("s_waitcnt vmcnt(0)")
        a.e("s_barrier")
        stamp(a, 3)
        k2flush()
        a.e("s_endpgm")
    a.e(f"s_setprio {3 if 'Z' in X2 else (1 if 'y' in X2 else 0)}")
    a.raw(".p2align 3")
    a.lab("K2_GL")
    for s_ in range(2):
        ld = loads(s_)
        a.e("s_waitcnt vmcnt(9)")
        for t in range(5):
            for mt in range(4):
                A_ = ACC + 20 * mt + 4 * t
                a.e(f"v_mfma_f32_16x16x32_bf16 {vr(A_,4)}, {vr(fW(s_,t),4)}, {vr(fA(s_,mt),4)}, {vr(A_,4)}")
                if t == 4:
                    a.e(ld[mt])
            a.e(ld[4 + t])
        a.e(ld[9]); a.e(ld[10])
    a.e(f"s_add_u32 s{sIT}, s{sIT}, 1")
    a.e(f"s_bitcmp0_b32 s{sBM}, s{sIT}")
    a.e("s_cbranch_scc1 K2_GNB")
    a.e("s_waitcnt lgkmcnt(0)")
    a.e("s_barrier")
    a.lab("K2_GNB")
    a.e(f"s_cmp_lt_u32 s{sIT}, 7")
    a.e("s_cbranch_scc1 K2_GL")
    stamp(a, 3)
    a.e("s_setprio 3")
    a.e("s_waitcnt vmcnt(0)")
    XR = 68
    for q in range(5):
        a.e(f"buffer_load_dwordx2 {vr(XR+2*q,2)}, v{vXO}, {sr(sXX,4)}, 0 offen offset:{32*q}")
        a.e(f"buffer_load_dwordx2 {vr(XR+10+2*q,2)}, v{vBO}, {sr(sB2,4)}, 0 offen offset:{32*q}")
    srd_off(a, sWT, "s4", "s5", WT_OFF, 80 * 10240)
    srd_off(a, sA, "s4", "s5", AB_OFF, 80 * 32768)
    srd(a, sY, "s60", "s61", 2048 * 640 * 2)
    srd_off(a, sFL, "s4", "s5", FL_OFF, FL_SIZE)
    a.e(f"s_mul_i32 s{sOW}, s{sW}, {5*40960}")
    a.e(f"s_lshr_b32 s{t0}, s{sW}, 1")
    a.e(f"s_mul_i32 s{t0}, s{t0}, {RG}")
    a.e(f"s_and_b32 s{t1}, s{sW}, 1")
    a.e(f"s_mul_i32 s{t1}, s{t1}, 25600")
    a.e(f"s_add_u32 s{t0}, s{t0}, s{t1}")
    if 'B' not in X2:
        a.e("s_barrier")
    for r in range(5):
        for q in range(5):
            a.e(f"s_add_u32 m0, s{t0}, {r*5120 + q*768}")
            a.e("s_nop 0")
            a.e(f"buffer_load_dwordx4 v{vOW}, {sr(sWT,4)}, s{sOW} offen offset:{256*q}{SC} lds")
        a.e(f"s_add_u32 s{sOW}, s{sOW}, 40960")
    a.e(f"s_lshl_b32 s{t2}, s{sW}, 8")
    a.e(f"v_add_u32 v{vOA}, s{t2}, v{vOA}")
    a.e(f"v_and_b32 v{vYO}, 0x7fff, v{vOA}")
    a.e(f"v_lshrrev_b32 v{vYO}, 1, v{vYO}")
    a.e(f"v_and_b32 v{vBO}, 0xffff8000, v{vOA}")
    a.e(f"v_add_u32 v{vYO}, v{vYO}, v{vBO}")
    a.e(f"v_add_u32 v{vBO}, 16384, v{vYO}")
    a.e(f"v_add_u32 v{vT+2}, {RG}, v{vL16}")
    a.e(f"v_mov_b32 v{vT+1}, 1")
    a.e(f"s_lshr_b32 s{t2}, s2, 5")
    a.e(f"s_lshl_b32 s{t2}, s{t2}, 5")
    a.e(f"s_add_u32 s{t2}, s{t2}, s{sH}")
    a.e(f"s_lshl_b32 s{t2}, s{t2}, 2")
    a.e(f"s_lshr_b32 s{t3}, s{sRB}, 2")
    a.e(f"s_lshl_b32 s{t3}, s{t3}, 7")
    a.e(f"v_lshlrev_b32 v{vT+4}, 2, v{vLANE}")
    a.e(f"v_add_u32 v{vT+4}, s{t3}, v{vT+4}")
    Y = 16
    for m in range(4):
        a.e(f"s_cmp_lg_u32 s{sW}, {m}")
        a.e(f"s_cbranch_scc1 K2_KP{m}")
        for i in range(20):
            a.e(f"v_mov_b32 v{Y+i}, v{ACC+20*m+i}")
        a.lab(f"K2_KP{m}")
    a.e("s_waitcnt vmcnt(25)")
    U = 36
    for q in range(5):
        for k, src in enumerate((XR + 2 * q, XR + 10 + 2 * q)):
            u = U + 4 * k
            a.e(f"v_lshlrev_b32 v{u}, 16, v{src}")
            a.e(f"v_and_b32 v{u+1}, 0xffff0000, v{src}")
            a.e(f"v_lshlrev_b32 v{u+2}, 16, v{src+1}")
            a.e(f"v_and_b32 v{u+3}, 0xffff0000, v{src+1}")
        for i in range(4):
            a.e(f"v_add_f32 v{Y+4*q+i}, v{Y+4*q+i}, v{U+i}")
        for i in range(4):
            a.e(f"v_add_f32 v{Y+4*q+i}, v{Y+4*q+i}, v{U+4+i}")
    a.e("s_barrier")
    a.e("s_waitcnt vmcnt(0)")
    a.e("s_barrier")
    stamp(a, 1)
    a.e(f"s_cmp_lg_u32 s{sW}, 0")
    a.e("s_cbranch_scc1 K2_NF")
    a.e("s_mov_b64 exec, 1")
    a.e(f"buffer_store_dword v{vT+1}, v{vT}, {sr(sFL,4)}, s{t2} offen sc1")
    a.e("s_mov_b64 exec, -1")
    a.lab("K2_NF")

    def slot_addr(sdst, s_slot):
        a.e(f"s_mul_i32 s{sdst}, s{s_slot}, 5120")
        a.e(f"s_cmp_ge_u32 s{s_slot}, 6")
        a.e(f"s_cselect_b32 s{s_slot}, {RG - 6*5120 + 51200}, 51200")
        a.e(f"s_add_u32 s{sdst}, s{sdst}, s{s_slot}")

    for m in range(4):
        a.e(f"s_cmp_eq_u32 s{sW}, {m}")
        a.e(f"s_cbranch_scc1 K2_SK{m}")
        a.e(f"s_cmp_gt_u32 s{sW}, {m}")
        a.e(f"s_cselect_b32 s{t1}, {3*m-1}, {3*m}")
        a.e(f"s_add_u32 s{t1}, s{t1}, s{sW}")
        slot_addr(t0, t1)
        a.e(f"v_add_u32 v{vT+3}, s{t0}, v{vL16}")
        for q in range(5):
            a.e(f"ds_write_b128 v{vT+3}, {vr(ACC+20*m+4*q,4)} offset:{1024*q}")
        a.lab(f"K2_SK{m}")
    a.e(f"s_mul_i32 s{t1}, s{sW}, 3")
    slot_addr(t0, t1)
    a.e(f"v_add_u32 v{vT+3}, s{t0}, v{vL16}")
    a.e("s_waitcnt lgkmcnt(0)")
    a.e("s_barrier")
    for p in range(3):
        for q in range(5):
            a.e(f"ds_read_b128 {vr(ACC+20*p+4*q,4)}, v{vT+3} offset:{5120*p+1024*q}")
    for p in range(3):
        a.e(f"s_waitcnt lgkmcnt({5*(2-p)})")
        for i in range(20):
            a.e(f"v_add_f32 v{Y+i}, v{Y+i}, v{ACC+20*p+i}")
    a.e(f"s_cmp_lg_u32 s{sW}, 0")
    a.e("s_cbranch_scc1 K2_PW")
    a.e("s_mov_b32 exec_hi, 0")
    gpoll("o", vT + 4, vT + 3)
    a.e("s_mov_b64 exec, -1")
    a.lab("K2_PW")
    a.e("s_barrier")
    stamp(a, 2)
    YA = [Y + 4 * q for q in range(5)]
    FAr = [88 + 4 * i for i in range(20)]
    FBr = [[36 + 4 * t for t in range(5)], [56 + 4 * t for t in range(5)]]
    a.e(f"s_mov_b32 s{sOA}, 0")
    for ks in range(20):
        if ks < 16:
            a.e(f"buffer_load_dwordx4 {vr(FAr[ks],4)}, v{vOA}, {sr(sA,4)}, s{sOA} offen sc1")
        else:
            a.e(f"buffer_load_dwordx2 {vr(FAr[ks],2)}, v{vYO}, {sr(sA,4)}, s{sOA} offen sc1")
            a.e(f"buffer_load_dwordx2 {vr(FAr[ks]+2,2)}, v{vBO}, {sr(sA,4)}, s{sOA} offen sc1")
        a.e(f"s_add_u32 s{sOA}, s{sOA}, 131072")

    def rdB(ks):
        base, off = (vL16, ks * 5120) if ks < 10 else (vT + 2, (ks - 10) * 5120)
        return [f"ds_read_b128 {vr(FBr[ks&1][t],4)}, v{base} offset:{off+1024*t}" for t in range(5)]

    for ins in rdB(0):
        a.e(ins)
    for ks in range(20):
        if ks < 19:
            for ins in rdB(ks + 1):
                a.e(ins)
        a.e(f"s_waitcnt vmcnt({23-ks if ks < 16 else 2*(19-ks)}) lgkmcnt({5 if ks < 19 else 0})")
        for t in range(5):
            a.e(f"v_mfma_f32_16x16x32_bf16 {vr(YA[t],4)}, {vr(FBr[ks&1][t],4)}, {vr(FAr[ks],4)}, {vr(YA[t],4)}")
    a.e("s_nop 7")
    for t in range(5):
        A_ = YA[t]
        a.e(f"v_cvt_pk_bf16_f32 v{A_}, v{A_}, v{A_+1}")
        a.e(f"v_cvt_pk_bf16_f32 v{A_+1}, v{A_+2}, v{A_+3}")
        a.e(f"buffer_store_dwordx2 {vr(A_,2)}, v{vXO}, {sr(sY,4)}, 0 offen offset:{32*t}")
    k2flush()
    a.e("s_endpgm")

    a.lab("K2_ATT")
    vKa0, vKb0, vV0 = 52, 53, 54
    srd(a, sWS, "s4", "s5", WS_END)
    if "C" in X2:
        NPF = int(os.environ.get("NPF", "8"))
        a.e(f"s_cmp_ge_u32 s2, {NPF}")
        a.e("s_cbranch_scc1 K2_NOCP")
        a.e(f"s_cmp_ge_u32 s{sW}, 6")
        a.e("s_cbranch_scc1 K2_NOCP")
        a.e(f"s_and_b32 s{t0}, s{sW}, 1")
        code_prefetch(a, "k2", "k2_attn_kernel", "CODE_END", 36, t0, vLANE, vT, 60)
        a.lab("K2_NOCP")
    a.e(f"s_lshr_b32 s{sG}, s{sW}, 3")
    a.e(f"s_lshr_b32 s{t1}, s{t1}, 2")
    a.e(f"s_lshl_b32 s{t1}, s{t1}, 3")
    a.e(f"s_and_b32 s{t2}, s{sW}, 3")
    a.e(f"s_lshl_b32 s{t2}, s{t2}, 1")
    a.e(f"s_add_u32 s{sQT}, s{t1}, s{t2}")
    a.e(f"s_mul_i32 s{t0}, s{sH}, 81920")
    a.e(f"s_mul_i32 s{t1}, s{sQT}, 1280")
    a.e(f"s_add_u32 s{t0}, s{t0}, s{t1}")
    if QB_OFF:
        a.e(f"s_add_u32 s{t0}, s{t0}, {hx(QB_OFF)}")
    a.e(f"v_and_b32 v{vT}, 31, v{vLANE}")
    a.e(f"v_lshrrev_b32 v{vT+1}, 5, v{vLANE}")
    a.e(f"v_lshlrev_b32 v{vKb0}, 3, v{vT}")
    a.e(f"v_lshl_add_u32 v{vT+2}, v{vT+1}, 30, v{vKb0}")
    a.e(f"v_add_u32 v{vKb0}, 1024, v{vKb0}")
    a.e(f"v_mov_b32 v{vKa0}, v{vL16}")
    a.e(f"v_min_u32 v{vT+3}, 20, v{vT}")
    a.e(f"v_mul_u32_u24 v{vV0}, {VP}, v{vT+1}")
    a.e(f"v_lshl_add_u32 v{vV0}, v{vT+3}, 4, v{vV0}")
    a.e(f"v_add_u32 v{vV0}, 1280, v{vV0}")
    a.e(f"s_mul_i32 s{sOFF}, s{sG}, {32*KVT}")
    a.e(f"s_add_u32 s{sOFF}, s{sOFF}, {31*KVT}")
    a.e(f"buffer_load_dwordx4 {vr(QA[0],4)}, v{vL16}, {sr(sWS,4)}, s{t0} offen{SC}")
    a.e(f"buffer_load_dwordx2 {vr(QB[0],2)}, v{vT+2}, {sr(sWS,4)}, s{t0} offen offset:1024{SC}")
    a.e(f"buffer_load_dwordx4 {vr(KA,4)}, v{vKa0}, {sr(sKV,4)}, s{sOFF} offen{SC}")
    a.e(f"buffer_load_dwordx2 {vr(KB,2)}, v{vKb0}, {sr(sKV,4)}, s{sOFF} offen{SC}")
    a.e(f"buffer_load_dwordx4 {vr(QA[1],4)}, v{vL16}, {sr(sWS,4)}, s{t0} offen offset:1280{SC}")
    a.e(f"buffer_load_dwordx2 {vr(QB[1],2)}, v{vT+2}, {sr(sWS,4)}, s{t0} offen offset:2304{SC}")
    a.e(f"buffer_load_dwordx4 {vr(V0,4)}, v{vV0}, {sr(sKV,4)}, s{sOFF} offen{SC}")
    a.e(f"buffer_load_dwordx4 {vr(V1,4)}, v{vV0}, {sr(sKV,4)}, s{sOFF} offen offset:{2*VP}{SC}")
    a.e(f"s_mul_i32 s{t1}, s{sG}, {RG}")
    a.e(f"v_add_u32 v{vKa}, s{t1}, v{vKa0}")
    a.e(f"v_add_u32 v{vKb}, s{t1}, v{vKb0}")
    a.e(f"v_add_u32 v{vV}, s{t1}, v{vV0}")
    for i in range(32):
        a.e(f"v_mov_b32 v{O[0]+i}, 0")
    a.e(f"s_mov_b32 s{sIT}, 0")
    a.e(f"s_mov_b32 s{sBM}, {hx((1 << 1) if 'B' in X2 else (1 << 1) | (1 << 2) | (1 << 9))}")
    a.e("s_waitcnt vmcnt(4)")
    a.e(f"v_mfma_f32_32x32x16_bf16 {vr(S[0],16)}, {vr(KA,4)}, {vr(QA[0],4)}, 0")
    a.e(f"v_mfma_f32_32x32x8_bf16 {vr(S[0],16)}, {vr(KB,2)}, {vr(QB[0],2)}, {vr(S[0],16)}")
    EARLY = "E" in X2
    if EARLY:
        a.e("s_waitcnt vmcnt(2)")
        a.e("s_nop 9")
    else:
        a.e("s_waitcnt vmcnt(0)")
        a.e("s_nop 7")
        a.e("s_barrier")
        stamp(a, 1)

    def rdKa(t):
        return f"ds_read_b128 {vr(KA,4)}, v{vKa} offset:{KVT*t}"

    def rdKb(t):
        return f"ds_read_b64 {vr(KB,2)}, v{vKb} offset:{KVT*t}"

    def rdV(m, t):
        return f"ds_read_b128 {vr(V0 if m == 0 else V1,4)}, v{vV} offset:{KVT*t + 2*VP*m}"

    def item(x, lt, first=False, last=False):
        Sc, Sn = S[x], S[x ^ 1]

        def ex(lo):
            for i in range(lo, lo + 4):
                a.e(f"v_exp_f32 v{Sc+i}, v{Sc+i}")

        def cv(P, lo):
            a.e(f"v_cvt_pk_bf16_f32 v{P}, v{Sc+lo}, v{Sc+lo+1}")
            a.e(f"v_cvt_pk_bf16_f32 v{P+1}, v{Sc+lo+2}, v{Sc+lo+3}")

        doqk = not (last and x == 1)
        if x == 1 and doqk:
            a.e(f"s_waitcnt lgkmcnt({1 if first else 2})")
        if doqk:
            a.e(f"v_mfma_f32_32x32x16_bf16 {vr(Sn,16)}, {vr(KA,4)}, {vr(QA[x^1],4)}, 0")
        if x == 0 and not last and not (first and EARLY):
            a.e(rdKa(lt + 1))
        ex(0)
        cv(P0, 0)
        if x == 1 and doqk:
            a.e(f"s_waitcnt lgkmcnt({0 if first else 1})")
        if doqk:
            a.e(f"v_mfma_f32_32x32x8_bf16 {vr(Sn,16)}, {vr(KB,2)}, {vr(QB[x^1],2)}, {vr(Sn,16)}")
        if x == 0 and not last and not (first and EARLY):
            a.e(rdKb(lt + 1))
        ex(4)
        cv(P0 + 2, 4)
        if not (first and x == 0):
            if x == 1 and not first:
                a.e("s_waitcnt lgkmcnt(0)")
            a.e(f"v_mfma_f32_32x32x16_bf16 {vr(O[x^1],16)}, {vr(V1,4)}, {vr(P1,4)}, {vr(O[x^1],16)}")
            if x == 0:
                a.e(rdV(1, lt))
        ex(8)
        cv(P1, 8)
        if x == 0 and not first:
            a.e(f"s_waitcnt lgkmcnt({1 if last else 3})")
        if x == 0 and first and EARLY:
            a.e("s_waitcnt vmcnt(0)")
        a.e(f"v_mfma_f32_32x32x16_bf16 {vr(O[x],16)}, {vr(V0,4)}, {vr(P0,4)}, {vr(O[x],16)}")
        if x == 1 and not last:
            a.e(rdV(0, lt + 1))
        ex(12)
        cv(P1 + 2, 12)

    def item_b(x, lt, first=False, last=False):
        Sc, Sn = S[x], S[x ^ 1]
        doqk = not (last and x == 1)
        dopv = not (first and x == 0)
        G = int(os.environ.get("K2G", "4"))
        ms = []
        if doqk:
            m = []
            if x == 1:
                m.append(f"s_waitcnt lgkmcnt({1 if first else 3})")
            m.append(f"v_mfma_f32_32x32x16_bf16 {vr(Sn,16)}, {vr(KA,4)}, {vr(QA[x^1],4)}, 0")
            if x == 0 and not last:
                m.append(rdKa(lt + 1))
            ms.append(m)
            m = []
            if x == 1:
                m.append(f"s_waitcnt lgkmcnt({0 if first else 2})")
            m.append(f"v_mfma_f32_32x32x8_bf16 {vr(Sn,16)}, {vr(KB,2)}, {vr(QB[x^1],2)}, {vr(Sn,16)}")
            if x == 0 and not last:
                m.append(rdKb(lt + 1))
            ms.append(m)
        else:
            ms.append(["s_nop 1"])
        if dopv:
            m = []
            if x == 1 and not first:
                m.append("s_waitcnt lgkmcnt(1)")
            m.append(f"v_mfma_f32_32x32x16_bf16 {vr(O[x^1],16)}, {vr(V0,4)}, {vr(PP[x^1],4)}, {vr(O[x^1],16)}")
            if x == 0:
                m.append(rdV(0, lt))
            ms.append(m)
            m = []
            if x == 1 and not first:
                m.append("s_waitcnt lgkmcnt(0)")
            m.append(f"v_mfma_f32_32x32x16_bf16 {vr(O[x^1],16)}, {vr(V1,4)}, {vr(PP[x^1]+4,4)}, {vr(O[x^1],16)}")
            if x == 0:
                m.append(rdV(1, lt))
            ms.append(m)
        vs = []
        for g in range(4):
            v = [f"v_exp_f32 v{Sc+4*g+i}, v{Sc+4*g+i}" for i in range(4)]
            v.append(f"v_cvt_pk_bf16_f32 v{PP[x]+2*g}, v{Sc+4*g}, v{Sc+4*g+1}")
            v.append(f"v_cvt_pk_bf16_f32 v{PP[x]+2*g+1}, v{Sc+4*g+2}, v{Sc+4*g+3}")
            vs.append(v)
        mi = vi = 0
        while mi < len(ms) or vi < len(vs):
            for _ in range(G):
                if mi < len(ms):
                    for ins in ms[mi]:
                        a.e(ins)
                    mi += 1
            for _ in range(G):
                if vi < len(vs):
                    for ins in vs[vi]:
                        a.e(ins)
                    vi += 1

    BUNCH = "b" in X2
    PP = [P0, 128]
    if BUNCH:
        item = item_b
    a.e("s_setprio 2")
    item(0, -1, first=True)
    if EARLY:
        a.e("s_barrier")
        stamp(a, 1)
        a.e(rdKa(0))
        a.e(rdKb(0))
    item(1, -1, first=True)
    a.raw(".p2align 6")
    a.lab("K2_LOOP")
    a.e(f"s_bitcmp1_b32 s{sBM}, s{sIT}")
    a.e("s_cbranch_scc1 K2_BAR")
    a.lab("K2_BODY")
    NT = 3
    for t in range(NT):
        for x in range(2):
            if "p" in X2:
                if 2 * t + x == 0:
                    a.e("s_setprio 2")
                if 2 * t + x == NT:
                    a.e("s_setprio 1")
            else:
                a.e(f"s_setprio {2 - x}")
            item(x, t)
    a.e(f"v_add_u32 v{vKa}, {KVT*NT}, v{vKa}")
    a.e(f"v_add_u32 v{vKb}, {KVT*NT}, v{vKb}")
    a.e(f"v_add_u32 v{vV}, {KVT*NT}, v{vV}")
    a.e(f"s_add_u32 s{sIT}, s{sIT}, 1")
    a.e(f"s_cmp_lt_u32 s{sIT}, 10")
    a.e("s_cbranch_scc1 K2_LOOP")
    item(0, 0, last=True)
    item(1, 0, last=True)
    stamp(a, 3)
    a.e("s_nop 1")
    if BUNCH:
        a.e(f"v_mfma_f32_32x32x16_bf16 {vr(O[1],16)}, {vr(V0,4)}, {vr(PP[1],4)}, {vr(O[1],16)}")
        a.e(f"v_mfma_f32_32x32x16_bf16 {vr(O[1],16)}, {vr(V1,4)}, {vr(PP[1]+4,4)}, {vr(O[1],16)}")
    else:
        a.e(f"v_mfma_f32_32x32x16_bf16 {vr(O[1],16)}, {vr(V1,4)}, {vr(P1,4)}, {vr(O[1],16)}")
    a.e(f"s_and_b32 s{t2}, s{sW}, 3")
    a.e(f"s_lshl_b32 s{t2}, s{t2}, 12")
    a.e(f"s_add_u32 s{t2}, s{t2}, 53248")
    a.e(f"s_mul_i32 s{t0}, s{sG}, {RG}")
    a.e(f"s_add_u32 s{t0}, s{t0}, s{t2}")
    a.e(f"s_xor_b32 s{t1}, s{sG}, 1")
    a.e(f"s_mul_i32 s{t1}, s{t1}, {RG}")
    a.e(f"s_add_u32 s{t1}, s{t1}, s{t2}")
    a.e(f"v_add_u32 v{vT}, s{t0}, v{vL16}")
    a.e(f"v_add_u32 v{vT+1}, s{t1}, v{vL16}")
    a.e(f"s_add_u32 s{sQT}, s{sQT}, s{sG}")
    a.e(f"s_cmp_eq_u32 s{sG}, 1")
    a.e("s_cbranch_scc1 K2_X1")
    a.e("s_nop 3")
    for q in range(4):
        a.e(f"ds_write_b128 v{vT}, {vr(O[1]+4*q,4)} offset:{1024*q}")
    a.e("s_branch K2_X2")
    a.lab("K2_X1")
    for q in range(4):
        a.e(f"ds_write_b128 v{vT}, {vr(O[0]+4*q,4)} offset:{1024*q}")
    a.e("s_nop 1")
    for i in range(16):
        a.e(f"v_mov_b32 v{O[0]+i}, v{O[1]+i}")
    for i in range(4):
        a.e(f"v_mov_b32 v{QA[0]+i}, v{QA[1]+i}")
    for i in range(2):
        a.e(f"v_mov_b32 v{QB[0]+i}, v{QB[1]+i}")
    a.lab("K2_X2")
    OO = O[0]
    sS0, sS1 = 34, 35
    a.e(f"s_lshl_b32 s{t0}, s{sH}, 16")
    a.e(f"s_add_u32 s{sS0}, s{t0}, {hx(AB_OFF)}")
    a.e(f"s_lshl_b32 s{t0}, s{sH}, 14")
    a.e(f"s_add_u32 s{sS1}, s{t0}, {hx(AB_OFF + 64*32768)}")
    a.e(f"s_lshl_b32 s{t3}, s{sQT}, 9")
    vSA0, vSA1 = 56, 57
    a.e(f"v_and_b32 v{vT+2}, 31, v{vLANE}")
    a.e(f"v_lshlrev_b32 v{vT+2}, 4, v{vT+2}")
    a.e(f"v_add_u32 v{vT+2}, s{t3}, v{vT+2}")
    a.e(f"v_lshrrev_b32 v{vT+3}, 5, v{vLANE}")
    a.e(f"v_lshl_add_u32 v{vSA0}, v{vT+3}, 15, v{vT+2}")
    a.e(f"v_lshrrev_b32 v{vT+2}, 1, v{vT+2}")
    a.e(f"v_lshl_add_u32 v{vSA1}, v{vT+3}, 30, v{vT+2}")
    a.e("s_waitcnt lgkmcnt(0)")
    a.e("s_barrier")
    for q in range(4):
        a.e(f"ds_read_b128 {vr(S[0]+4*q,4)}, v{vT+1} offset:{1024*q}")
    a.e(f"v_mov_b32 v{vT+3}, {hx(f32(2.0**-60))}")
    a.e(f"v_mov_b32 v{vT+4}, {hx(f32(2.0**100))}")
    a.e(f"v_mov_b32 v{vT+5}, {hx(f32(2.0**120))}")
    a.e("s_waitcnt lgkmcnt(0)")
    for i in range(13):
        a.e(f"v_add_f32 v{OO+i}, v{OO+i}, v{S[0]+i}")
    a.e(f"v_max3_f32 v{vT+1}, abs(v{OO}), abs(v{OO+1}), abs(v{OO+2})")
    for i in range(3, 11, 2):
        a.e(f"v_max3_f32 v{vT+1}, abs(v{OO+i}), abs(v{OO+i+1}), v{vT+1}")
    a.e(f"v_max_f32 v{vT+1}, abs(v{OO+11}), v{vT+1}")
    a.e(f"v_add_f32 v{vT+2}, v{OO}, v{OO+1}")
    for i in range(2, 12):
        a.e(f"v_add_f32 v{vT+2}, v{vT+2}, v{OO+i}")
    a.e(f"v_cmp_gt_f32 {sr(t0,2)}, v{OO+12}, v{vT+3}")
    a.e(f"v_cmp_lt_f32 {sr(t2,2)}, v{OO+12}, v{vT+4}")
    a.e(f"v_cmp_lt_f32 vcc, v{vT+1}, v{vT+5}")
    a.e("s_nop 1")
    a.e(f"s_and_b64 {sr(t0,2)}, {sr(t0,2)}, {sr(t2,2)}")
    a.e(f"s_and_b64 {sr(t0,2)}, {sr(t0,2)}, vcc")
    a.e(f"v_cmp_o_f32 vcc, v{vT+2}, v{vT+2}")
    a.e("s_nop 1")
    a.e(f"s_and_b64 {sr(t0,2)}, {sr(t0,2)}, vcc")
    a.e(f"s_cmp_eq_u64 {sr(t0,2)}, -1")
    if 'B' not in X2:
        a.e("s_cbranch_scc0 K2_SLOW")
    a.lab("K2_FIN")
    a.e(f"v_rcp_f32 v{vT}, v{OO+12}")
    a.e("s_nop 0")
    for i in range(12):
        a.e(f"v_mul_f32 v{OO+i}, v{OO+i}, v{vT}")
    for i in range(6):
        a.e(f"v_cvt_pk_bf16_f32 v{OO+i}, v{OO+2*i}, v{OO+2*i+1}")
    sc = " sc1" if FUSE else ""
    a.e(f"buffer_store_dwordx4 {vr(OO,4)}, v{vSA0}, {sr(sWS,4)}, s{sS0} offen{sc}")
    a.e(f"buffer_store_dwordx2 {vr(OO+4,2)}, v{vSA1}, {sr(sWS,4)}, s{sS1} offen{sc}")
    if FUSE:
        a.e("s_waitcnt vmcnt(0)")
        a.e("s_barrier")
    k2flush()
    a.lab("K2_END")
    a.e("s_endpgm")
    a.lab("K2_BAR")
    a.e("s_barrier")
    stamp(a, 2)
    a.e("s_branch K2_BODY")
    a.lab("K2_SLOW")
    vM = 58
    Sc = S[0]
    for ps in range(2):
        if ps == 0:
            a.e(f"v_mov_b32 v{vM}, 0xff800000")
        else:
            for i in range(16):
                a.e(f"v_mov_b32 v{OO+i}, 0")
        a.e(f"s_mov_b32 s{sOFF}, 0")
        a.lab(f"K2_SL{ps}")
        a.e(f"buffer_load_dwordx4 {vr(KA,4)}, v{vKa0}, {sr(sKV,4)}, s{sOFF} offen{SC}")
        a.e(f"buffer_load_dwordx2 {vr(KB,2)}, v{vKb0}, {sr(sKV,4)}, s{sOFF} offen{SC}")
        if ps == 1:
            a.e(f"buffer_load_dwordx4 {vr(V0,4)}, v{vV0}, {sr(sKV,4)}, s{sOFF} offen{SC}")
            a.e(f"buffer_load_dwordx4 {vr(V1,4)}, v{vV0}, {sr(sKV,4)}, s{sOFF} offen offset:{2*VP}{SC}")
        a.e("s_waitcnt vmcnt(0)")
        a.e(f"v_mfma_f32_32x32x16_bf16 {vr(Sc,16)}, {vr(KA,4)}, {vr(QA[0],4)}, 0")
        a.e(f"v_mfma_f32_32x32x8_bf16 {vr(Sc,16)}, {vr(KB,2)}, {vr(QB[0],2)}, {vr(Sc,16)}")
        a.e("s_nop 15")
        a.e("s_nop 3")
        if ps == 0:
            for i in range(0, 16, 2):
                a.e(f"v_max3_f32 v{vM}, v{Sc+i}, v{Sc+i+1}, v{vM}")
        else:
            for i in range(16):
                a.e(f"v_sub_f32 v{Sc+i}, v{Sc+i}, v{vM}")
            for i in range(16):
                a.e(f"v_exp_f32 v{Sc+i}, v{Sc+i}")
            a.e("s_nop 0")
            for i in range(8):
                a.e(f"v_cvt_pk_bf16_f32 v{P0+i}, v{Sc+2*i}, v{Sc+2*i+1}")
            a.e("s_nop 1")
            a.e(f"v_mfma_f32_32x32x16_bf16 {vr(OO,16)}, {vr(V0,4)}, {vr(P0,4)}, {vr(OO,16)}")
            a.e(f"v_mfma_f32_32x32x16_bf16 {vr(OO,16)}, {vr(V1,4)}, {vr(P1,4)}, {vr(OO,16)}")
            a.e("s_nop 7")
        a.e(f"s_add_u32 s{sOFF}, s{sOFF}, {KVT}")
        a.e(f"s_cmp_lt_u32 s{sOFF}, {KVH}")
        a.e(f"s_cbranch_scc1 K2_SL{ps}")
        if ps == 0:
            a.e(f"v_mov_b32 v{vT+4}, v{vM}")
            a.e("s_nop 1")
            a.e(f"v_permlane32_swap_b32 v{vM}, v{vT+4}")
            a.e(f"v_max_f32 v{vM}, v{vM}, v{vT+4}")
    a.e("s_nop 15")
    a.e("s_nop 3")
    a.e("s_branch K2_FIN")
    return name, NV, 102 if DIAG else 80, (256, 768, K2_LDS)


K3_LDS = 102400


def gen_k3(a):
    name = "k3_out_kernel"
    kernel_header(a, name)
    sA, sWT, sY, sO = 12, 16, 20, 24
    sW, sRB, sCB, sOW, sM = 32, 33, 34, 35, 36
    t0, t1, t2, t3 = 38, 39, 40, 41
    vLANE, vOA, vOW, vYO, vOO, vRD = 1, 2, 3, 4, 5, 6
    vT = 8
    ACC = 12
    FB = 32
    FA = 72
    NV = 152
    k3flush = lambda: (stamp(a, 4), stamp_flush(a, 2, 8, sW, "s6", "s7", 8, 2))

    a.e("s_cmp_ge_u32 s2, 256")
    a.e("s_cbranch_scc1 K3_END")
    stamp(a, 0)
    a.e("s_load_dwordx2 s[4:5], s[0:1], 64")
    a.e("s_load_dwordx2 s[6:7], s[0:1], 80")
    a.e(f"v_and_b32 v{vLANE}, 63, v0")
    a.e(f"v_lshrrev_b32 v{vT}, 6, v0")
    a.e(f"s_and_b32 s{t0}, s2, 7")
    a.e(f"v_readfirstlane_b32 s{sW}, v{vT}")
    a.e(f"s_lshr_b32 s{t1}, s2, 3")
    a.e(f"s_lshl_b32 s{t0}, s{t0}, 2")
    a.e(f"s_and_b32 s{t2}, s{t1}, 3")
    a.e(f"s_add_u32 s{sRB}, s{t0}, s{t2}")
    a.e(f"s_lshr_b32 s{sCB}, s{t1}, 2")
    a.e(f"v_and_b32 v{vT}, 15, v{vLANE}")
    a.e(f"v_lshrrev_b32 v{vT+1}, 4, v{vLANE}")
    a.e(f"s_cmp_ge_u32 s{sW}, 4")
    a.e("s_cbranch_scc1 K3_COMP")
    a.e(f"s_mul_i32 s{t0}, s{sCB}, 80")
    a.e(f"v_add_u32 v{vOW}, s{t0}, v{vT}")
    a.e(f"v_lshlrev_b32 v{vOW}, 4, v{vOW}")
    a.e(f"v_mul_u32_u24 v{vT+2}, 10240, v{vT+1}")
    a.e(f"v_add_u32 v{vOW}, v{vOW}, v{vT+2}")
    a.e(f"s_mul_i32 s{sOW}, s{sW}, 40960")
    a.e(f"s_mul_i32 s{sM}, s{sW}, 5120")
    a.e("s_waitcnt lgkmcnt(0)")
    stamp(a, 5)
    srd_off(a, sWT, "s6", "s7", WT_OFF, 80 * 10240)
    for r in range(5):
        for q in range(5):
            a.e(f"s_add_u32 m0, s{sM}, {r*20480 + q*768}")
            a.e("s_nop 0")
            a.e(f"buffer_load_dwordx4 v{vOW}, {sr(sWT,4)}, s{sOW} offen offset:{256*q} lds")
        a.e(f"s_add_u32 s{sOW}, s{sOW}, {4*40960}")
        if r >= 2:
            a.e(f"s_waitcnt vmcnt(10)")
            a.e("s_barrier")
    a.e(f"s_waitcnt vmcnt(5)")
    a.e("s_barrier")
    a.e(f"s_waitcnt vmcnt(0)")
    a.e("s_barrier")
    if DIAG:
        stamp(a, 1); stamp(a, 2); stamp(a, 3)
        k3flush()
    a.e("s_endpgm")
    a.lab("K3_COMP")
    a.e(f"s_sub_u32 s{t3}, s{sW}, 4")
    a.e(f"s_lshl_b32 s{t0}, s{sRB}, 6")
    a.e(f"s_lshl_b32 s{t1}, s{t3}, 4")
    a.e(f"s_add_u32 s{t0}, s{t0}, s{t1}")
    a.e(f"v_add_u32 v{vT+2}, s{t0}, v{vT}")
    a.e(f"v_lshlrev_b32 v{vOA}, 4, v{vT+2}")
    a.e(f"v_lshl_add_u32 v{vOA}, v{vT+1}, 15, v{vOA}")
    a.e(f"s_lshl_b32 s{t0}, s{sRB}, 3")
    a.e(f"s_add_u32 s{t0}, s{t0}, s{sCB}")
    a.e(f"s_mul_i32 s{t0}, s{t0}, 20480")
    a.e(f"s_mul_i32 s{t1}, s{t3}, 5120")
    a.e(f"s_add_u32 s{t0}, s{t0}, s{t1}")
    a.e(f"v_lshlrev_b32 v{vRD}, 4, v{vLANE}")
    a.e(f"v_add_u32 v{vYO}, s{t0}, v{vRD}")
    a.e(f"s_mul_i32 s{t0}, s{sCB}, 160")
    a.e(f"v_mul_u32_u24 v{vOO}, 1280, v{vT+2}")
    a.e(f"v_lshl_add_u32 v{vOO}, v{vT+1}, 3, v{vOO}")
    a.e(f"v_add_u32 v{vOO}, s{t0}, v{vOO}")
    a.e("s_waitcnt lgkmcnt(0)")
    stamp(a, 5)
    srd_off(a, sA, "s6", "s7", AB_OFF, 80 * 32768)
    srd_off(a, sY, "s6", "s7", Y_OFF, Y_SIZE)
    srd(a, sO, "s4", "s5", 2048 * 640 * 2)
    a.e(f"s_mov_b32 s{t0}, 0")
    a.e(f"s_movk_i32 s{t1}, 4096")
    def ldA(r):
        for ks in range(4 * r, 4 * r + 4):
            a.e(f"buffer_load_dwordx4 {vr(FA+4*ks,4)}, v{vOA}, {sr(sA,4)}, s{t0} offen")
            a.e(f"s_add_u32 s{t0}, s{t0}, {4*32768}")

    ldA(0)
    for t in range(5):
        so, off = ("0", 1024 * t) if t < 4 else (f"s{t1}", 0)
        a.e(f"buffer_load_dwordx4 {vr(ACC+4*t,4)}, v{vYO}, {sr(sY,4)}, {so} offen offset:{off}")
    ldA(1)
    ldA(2)
    a.e(f"v_add_u32 v{vT}, 51200, v{vRD}")

    def rdB(ks):
        base, off = (vRD, ks * 5120) if ks < 10 else (vT, (ks - 10) * 5120)
        return [f"ds_read_b128 {vr(FB+20*(ks&1)+4*t,4)}, v{base} offset:{off+1024*t}" for t in range(5)]

    for r in range(5):
        a.e("s_barrier")
        if r == 0:
            stamp(a, 1)
        for ins in rdB(4 * r):
            a.e(ins)
        if r < 2:
            ldA(r + 3)
        a.e(f"s_waitcnt vmcnt({[12, 12, 8, 4, 0][r]})")
        for k in range(4):
            ks = 4 * r + k
            if k < 3:
                for ins in rdB(ks + 1):
                    a.e(ins)
                a.e("s_waitcnt lgkmcnt(5)")
            else:
                a.e("s_waitcnt lgkmcnt(0)")
            for t in range(5):
                a.e(f"v_mfma_f32_16x16x32_bf16 {vr(ACC+4*t,4)}, {vr(FB+20*(ks&1)+4*t,4)}, {vr(FA+4*ks,4)}, {vr(ACC+4*t,4)}")
    stamp(a, 2)
    stamp(a, 3)
    a.e("s_nop 7")
    for t in range(5):
        A = ACC + 4 * t
        a.e(f"v_cvt_pk_bf16_f32 v{A}, v{A}, v{A+1}")
        a.e(f"v_cvt_pk_bf16_f32 v{A+1}, v{A+2}, v{A+3}")
        a.e(f"buffer_store_dwordx2 {vr(A,2)}, v{vOO}, {sr(sO,4)}, 0 offen offset:{32*t}")
    k3flush()
    a.lab("K3_END")
    a.e("s_endpgm")
    return name, NV, 102 if DIAG else 48, (256, 512, K3_LDS)


HEADER = """; Kernarg layout for this problem (88 bytes, ptrs only, base s[0:1]):
"""


def main(out_path):
    a = Asm()
    ks = []
    gens = (gen_k1, gen_k2, gen_k3) if "u" in os.environ.get("K2X", "") else (gen_k1, gen_k2)
    for g in gens:
        ks.append(g(a))
    s = HEADER
    if ONE:
        ks = [(ks[0][0], 168, 102 if DIAG else 80, (256, 768, K2_LDS))]
        if os.environ.get("LIST"):
            s += f"; @launch kernel={ks[0][0]} grid=(256,1,1) block=(768,1,1) lds={K2_LDS}\n"
        else:
            s += f"; @launch grid=(256,1,1) block=(768,1,1) lds={K2_LDS}\n"
    else:
        for name, nv, ns, (gx, bx, lds) in ks:
            s += f"; @launch kernel={name} grid=({gx},1,1) block=({bx},1,1) lds={lds}\n"
    s += '.amdgcn_target "amdgcn-amd-amdhsa--gfx950"\n.text\n'
    s += a.text()
    s += "CODE_END:\n    s_endpgm\n"
    s += '.section .rodata,"a"\n'
    for name, nv, ns, _ in ks:
        s += kd(name, nv, ns)
    open(out_path, "w").write(s)


if __name__ == "__main__":
    main(sys.argv[1] if len(sys.argv) > 1 else f"cdna_kernels/{NAME}.s")
```

```python
import struct, math, sys

NAME = "parallel_sum__mha_block__dense_activation_gelu__prompt"

QB_OFF = 0
KV_OFF = 0x280000
KVT = 2624
KVH = 64 * KVT
VP = 336


def koff(t):
    return KVT * t + (1344 if t & 1 else 0)


def voff(t):
    return 2 * KVT * (t >> 1) + 1280


AB_OFF = 0x7A0000
WT_OFF = 0x10E0000
assert KV_OFF + 32 * KVH == AB_OFF
FL_OFF = WT_OFF + 296 * 10240
FQ_REL = 1024
FH_REL = 9216
FL_SIZE = 12288
WS_END = FL_OFF + FL_SIZE
assert FL_OFF % 128 == 0
AB_SIZE = 296 * 32768
WT_SIZE = 296 * 10240
assert AB_OFF + AB_SIZE == WT_OFF


def f32(x):
    return struct.unpack("<I", struct.pack("<f", x))[0]


def hx(x):
    return "0x%08x" % (x & 0xFFFFFFFF)


class Asm:
    def __init__(self):
        self.lines = []

    def e(self, s):
        if s.startswith("s_cselect_b32"):
            ops = [x.strip() for x in s[len("s_cselect_b32"):].split(",")]

            def is_lit(x):
                try:
                    v = int(x, 0)
                except ValueError:
                    return False
                return not (-16 <= v <= 64)
            if is_lit(ops[1]) and is_lit(ops[2]):
                self.lines.append(f"    s_mov_b32 {ops[0]}, {ops[2]}")
                s = f"s_cselect_b32 {ops[0]}, {ops[1]}, {ops[0]}"
        self.lines.append("    " + s)

    def lab(self, s):
        self.lines.append(s + ":")

    def c(self, s):
        self.lines.append("    ; " + s)

    def raw(self, s):
        self.lines.append(s)

    def text(self):
        return "\n".join(self.lines) + "\n"


def vr(a, n):
    return f"v[{a}:{a+n-1}]" if n > 1 else f"v{a}"


def sr(a, n):
    return f"s[{a}:{a+n-1}]" if n > 1 else f"s{a}"


def kernel_header(a, name):
    a.raw(".p2align 8")
    a.raw(f".globl {name}")
    a.raw(f".type {name},@function")
    a.lab(name)


def kd(name, nv, ns):
    acc = (nv + 3) // 4 * 4
    return f""".p2align 6
.amdhsa_kernel {name}
  .amdhsa_next_free_vgpr {nv}
  .amdhsa_next_free_sgpr {ns}
  .amdhsa_accum_offset {acc}
  .amdhsa_group_segment_fixed_size 0
  .amdhsa_kernarg_size 88
  .amdhsa_user_sgpr_count 2
  .amdhsa_user_sgpr_kernarg_segment_ptr 1
  .amdhsa_system_sgpr_workgroup_id_x 1
.end_amdhsa_kernel
"""


def srd(a, d, lo, hi, size):
    a.e(f"s_mov_b32 s{d}, {lo}")
    a.e(f"s_mov_b32 s{d+1}, {hi}")
    a.e(f"s_mov_b32 s{d+2}, {hx(size)}")
    a.e(f"s_mov_b32 s{d+3}, 0x00020000")


def srd_off(a, d, lo, hi, off, size):
    a.e(f"s_add_u32 s{d}, {lo}, {hx(off)}")
    a.e(f"s_addc_u32 s{d+1}, {hi}, 0")
    a.e(f"s_mov_b32 s{d+2}, {hx(size)}")
    a.e(f"s_mov_b32 s{d+3}, 0x00020000")


def round_bf16_inplace(a, v, vtmp=None):
    a.e(f"v_cvt_pk_bf16_f32 v{v}, v{v}, v{v}")
    a.e(f"v_lshlrev_b32 v{v}, 16, v{v}")


OOB = 0x40000000


def code_prefetch(a, tag, start, end, sp, s_chunk, vlane, vtmp, vdst):
    a.e(f"s_getpc_b64 s[{sp}:{sp+1}]")
    a.lab(f"PCH_{tag}")
    a.e(f"s_sub_u32 s{sp}, s{sp}, PCH_{tag}-{start}")
    a.e(f"s_subb_u32 s{sp+1}, s{sp+1}, 0")
    a.e(f"s_lshl_b32 s{s_chunk}, s{s_chunk}, 13")
    a.e(f"v_lshlrev_b32 v{vtmp}, 7, v{vlane}")
    a.e(f"v_add_u32 v{vtmp}, s{s_chunk}, v{vtmp}")
    a.e(f"v_cmp_gt_u32 vcc, {end}-{start}, v{vtmp}")
    a.e(f"s_and_saveexec_b64 s[{sp+2}:{sp+3}], vcc")
    a.e(f"s_cbranch_execz PCS_{tag}")
    a.e(f"global_load_dword v{vdst}, v{vtmp}, s[{sp}:{sp+1}]")
    a.lab(f"PCS_{tag}")
    a.e(f"s_mov_b64 exec, s[{sp+2}:{sp+3}]")
import os
DIAG = int(os.environ.get("DIAG", "0"))
ONE = int(os.environ.get("ONE", "0"))
SC = " sc1" if ONE else ""
WB = os.environ.get("WB", "")
SCQ = "" if "Q" in WB else SC
SCF = "" if "F" in WB else SC
SCT = "" if "T" in WB else SC
HSM = os.environ.get("HSM", "2")
K1_SYN = 153600
POLL_MAX = 1 << 21
DIAG_OFF = 0x2000000
SD = 84


def stamp(a, i):
    if DIAG:
        a.e(f"s_memtime s[{SD+2*i}:{SD+2*i+1}]")
        if i == 0:
            a.e(f"s_memrealtime s[{SD+12}:{SD+13}]")
        if i == 4:
            a.e(f"s_memrealtime s[{SD+14}:{SD+15}]")


def stamp_flush(a, kidx, wpw, sW, ws_lo, ws_hi, n, vtmp):
    if not DIAG:
        return
    a.e("s_waitcnt lgkmcnt(0)")
    a.e(f"s_add_u32 s80, {ws_lo}, {hx(DIAG_OFF + kidx*4096*64)}")
    a.e(f"s_addc_u32 s81, {ws_hi}, 0")
    a.e(f"s_mov_b32 s82, {hx(4096*64)}")
    a.e("s_mov_b32 s83, 0x00020000")
    a.e(f"s_mul_i32 s100, s2, {wpw}")
    a.e(f"s_add_u32 s100, s100, s{sW}")
    a.e("s_lshl_b32 s100, s100, 6")
    a.e(f"v_mov_b32 v{vtmp}, 0")
    for i in range(n):
        a.e(f"v_mov_b32 v{vtmp+1}, s{SD+2*i}")
        a.e(f"buffer_store_dword v{vtmp+1}, v{vtmp}, s[80:83], s100 offen offset:{4*i}")

K1_BH = 8 * 1056
K1_SLOT = 16384 + 4 * K1_BH
K1_NS = 3
K1_SCR = K1_SLOT * K1_NS
K1_LDS = K1_SCR + 2048 + 256
QSCALE = math.log2(math.e) / math.sqrt(20.0)


def gen_k1(a):
    name = NAME + "_kernel" if ONE else "k1_gemm1_kernel"
    kernel_header(a, name)
    X = os.environ.get("K1X", "")
    sX, sB0, sB1, sWS, sT, sBI = 20, 24, 28, 32, 36, 40
    sW, sMH, sHALF, sRB, sCB, sNQ, sT0 = 44, 45, 46, 47, 48, 49, 50
    sOA, sOB0, sOB1 = 51, 52, 53
    sWA, sWB, sRD, sTS, sIT, sDA, sDB = 54, 55, 56, 57, 58, 59, 60
    t0, t1, t2, t3, t4, t5, t6, t7 = 62, 63, 64, 65, 66, 67, 68, 69
    sC1 = 70
    sTYP = 73
    sOA2, sOB0b, sOB1b = 76, 77, 78
    vLANE = 1
    vA0e, vA0o, vB0 = 2, 3, 4
    vAe, vAo, vB = 5, 6, 7
    vS = 8
    vSA = 12
    vONES = 20
    vCS = 24
    vU = 32
    FA = [40, 72]
    vT = 72
    ACC = 104
    NV = 168

    def acc(j, mt):
        return ACC + (j * 4 + mt) * 4

    def fa(s, mt):
        return FA[s] + mt * 4

    def fb(s, j):
        return FA[s] + 16 + j * 4

    def emit(lst):
        for ins in lst:
            a.e(ins)

    k1flush = lambda: (stamp(a, 4), stamp_flush(a, 0, 12, sW, "s18", "s19", 8, 2))

    def zpoll(tag, sD, vz, vd):
        srd(a, sD, "s10", "s11", 256)
        a.e(f"v_mov_b32 v{vz}, 0")
        a.e(f"s_mov_b32 s{t7}, 0")
        a.lab(f"ZP_{tag}")
        a.e(f"buffer_load_dword v{vd}, v{vz}, {sr(sD,4)}, 0 offen sc1")
        a.e(f"s_add_u32 s{t7}, s{t7}, 1")
        a.e("s_waitcnt vmcnt(0)")
        a.e(f"v_readfirstlane_b32 s{t6}, v{vd}")
        a.e(f"s_cmp_ge_u32 s{t7}, {POLL_MAX}")
        a.e(f"s_cbranch_scc1 ZD_{tag}")
        a.e(f"s_cmp_eq_u32 s{t6}, 0")
        a.e(f"s_cbranch_scc1 ZP_{tag}")
        a.lab(f"ZD_{tag}")

    def finish(kind):
        k1flush()
        if not ONE:
            a.e("s_endpgm")
            return
        if kind == "F":
            a.e("s_branch K1_SIGF")
        else:
            a.e("s_branch K1_SIGQ")

    def finalize(s1, s2, nm, rs):
        a.e(f"v_mul_f32 v{s1}, {hx(f32(1.0/640))}, v{s1}")
        a.e(f"v_mul_f32 v{s2}, {hx(f32(1.0/640))}, v{s2}")
        a.e(f"v_fma_f32 v{s2}, -v{s1}, v{s1}, v{s2}")
        a.e(f"v_max_f32 v{s2}, 0, v{s2}")
        round_bf16_inplace(a, s2)
        a.e(f"v_add_f32 v{s2}, {hx(f32(1e-5))}, v{s2}")
        round_bf16_inplace(a, s2)
        a.e(f"v_sqrt_f32 v{s2}, v{s2}")
        round_bf16_inplace(a, s1)
        round_bf16_inplace(a, s2)
        a.e(f"v_rcp_f32 v{rs}, v{s2}")
        a.e(f"v_sub_f32 v{nm}, 0, v{s1}")


    a.e("s_cmp_ge_u32 s2, 256")
    a.e("s_cbranch_scc1 K1_END")
    stamp(a, 0)
    a.e("s_load_dwordx4 s[4:7], s[0:1], 0")
    a.e("s_load_dwordx2 s[8:9], s[0:1], 16")
    a.e("s_load_dwordx4 s[12:15], s[0:1], 32")
    a.e("s_load_dwordx2 s[16:17], s[0:1], 48")
    a.e("s_load_dwordx2 s[18:19], s[0:1], 80")
    if ONE:
        a.e("s_load_dwordx2 s[10:11], s[0:1], 72")
        a.e("s_mov_b32 s72, 0")
        a.e(f"v_mov_b32 v128, {hx(OOB)}")
        a.e(f"v_mov_b32 v129, {hx(OOB)}")
    a.e(f"v_and_b32 v{vLANE}, 63, v0")
    a.e(f"v_lshrrev_b32 v{vT}, 6, v0")
    a.e(f"s_and_b32 s{t0}, s2, 7")
    a.e(f"v_readfirstlane_b32 s{sW}, v{vT}")
    a.e(f"s_lshr_b32 s{t1}, s2, 3")
    a.e(f"s_lshl_b32 s{sRB}, s{t0}, 1")
    a.e(f"s_add_u32 s{sRB}, s{sRB}, s{t1}")
    a.e(f"s_mov_b32 s{sCB}, 15")
    a.e(f"s_cmp_lt_u32 s{t1}, 2")
    a.e("s_cbranch_scc1 K1_TRANS")
    a.e(f"s_lshr_b32 s{t2}, s{t0}, 1")
    a.e(f"s_mul_i32 s{t2}, s{t2}, 30")
    a.e(f"s_add_u32 s{t2}, s{t2}, s{t1}")
    a.e(f"s_sub_u32 s{t2}, s{t2}, 2")
    a.e(f"s_lshr_b32 s{sCB}, s{t2}, 3")
    a.e(f"s_lshl_b32 s{t3}, s{sCB}, 2")
    a.e(f"s_lshr_b32 s{sCB}, s{sCB}, 2")
    a.e(f"s_mul_i32 s{sCB}, s{sCB}, 15")
    a.e(f"s_sub_u32 s{sCB}, s{t3}, s{sCB}")
    a.e(f"s_and_b32 s{t2}, s{t2}, 7")
    a.e(f"s_and_b32 s{t3}, s{t0}, 1")
    a.e(f"s_lshl_b32 s{t3}, s{t3}, 3")
    a.e(f"s_add_u32 s{sRB}, s{t2}, s{t3}")
    a.e(f"s_lshl_b32 s{sT0}, s{sCB}, 3")
    a.e(f"s_min_u32 s{sT0}, s{sT0}, 100")
    a.e(f"s_cmp_ge_u32 s{sW}, 4")
    a.e("s_cbranch_scc1 K1_COMP")
    lA = [2, 3]
    lQ = [4, 5]
    lF = [6, 7]
    lBI = 8
    a.e(f"s_lshl_b32 s{t0}, s{sRB}, 7")
    a.e(f"s_lshl_b32 s{t1}, s{sW}, 4")
    a.e(f"s_add_u32 s{t0}, s{t0}, s{t1}")
    a.e(f"v_lshrrev_b32 v{vT}, 3, v{vLANE}")
    a.e(f"v_add_u32 v{vT}, s{t0}, v{vT}")
    a.e(f"v_lshrrev_b32 v{vT+1}, 1, v{vT}")
    a.e(f"v_xor_b32 v{vT+1}, v{vT+1}, v{vLANE}")
    a.e(f"v_and_b32 v{vT+1}, 7, v{vT+1}")
    a.e(f"v_mul_u32_u24 v{vT}, 1280, v{vT}")
    a.e(f"v_lshl_add_u32 v{lA[0]}, v{vT+1}, 4, v{vT}")
    a.e(f"v_xor_b32 v{vT+1}, 4, v{vT+1}")
    a.e(f"v_lshl_add_u32 v{lA[1]}, v{vT+1}, 4, v{vT}")
    a.e(f"v_add_u32 v{lA[1]}, {8*1280}, v{lA[1]}")
    a.e(f"s_lshl_b32 s{sDA}, s{sW}, 11")
    a.e(f"s_and_b32 s{t0}, s{sW}, 1")
    a.e(f"s_lshl_b32 s{t0}, s{t0}, 1")
    a.e(f"s_lshr_b32 s{t1}, s{sW}, 1")
    a.e(f"s_lshl_b32 s{t1}, s{t1}, 3")
    a.e(f"s_or_b32 s{t0}, s{t0}, s{t1}")
    a.e(f"v_bfe_u32 v{vT}, v{vLANE}, 4, 1")
    a.e(f"v_lshlrev_b32 v{vT}, 2, v{vT}")
    a.e(f"v_lshrrev_b32 v{vT+1}, 5, v{vLANE}")
    a.e(f"v_lshl_or_b32 v{vT}, v{vT+1}, 4, v{vT}")
    a.e(f"v_or_b32 v{vT}, s{t0}, v{vT}")
    a.e(f"v_and_b32 v{vT+1}, 15, v{vLANE}")
    a.e(f"v_lshlrev_b32 v{vT+1}, 4, v{vT+1}")
    a.e(f"s_lshl_b32 s{t2}, s{sCB}, 8")
    a.e(f"s_lshl_b32 s{t3}, s{sT0}, 5")
    a.e(f"v_mul_u32_u24 v{lQ[0]}, 3840, v{vT}")
    a.e(f"v_add3_u32 v{lQ[0]}, v{lQ[0]}, v{vT+1}, s{t2}")
    a.e(f"v_add_u32 v{lQ[1]}, 3840, v{lQ[0]}")
    a.e(f"v_mul_u32_u24 v{lF[0]}, 3456, v{vT}")
    a.e(f"v_add3_u32 v{lF[0]}, v{lF[0]}, v{vT+1}, s{t3}")
    a.e(f"v_add_u32 v{lF[1]}, 3456, v{lF[0]}")
    a.e(f"s_mul_i32 s{sDB}, s{sW}, 2112")
    a.e(f"s_add_u32 s{sDB}, s{sDB}, 16384")
    ROT = "O" in X
    if ROT:
        RA, RB_ = int(os.environ.get("ROTA", "1")), int(os.environ.get("ROTB", "3"))
        a.e(f"s_and_b32 s{t0}, s{sRB}, 7")
        a.e(f"s_mul_i32 s{t0}, s{t0}, {RA}")
        a.e(f"s_min_u32 s{t1}, s{sCB}, 13")
        a.e(f"s_and_b32 s{t1}, s{t1}, 3")
        a.e(f"s_mul_i32 s{t1}, s{t1}, {RB_}")
        a.e(f"s_add_u32 s{t0}, s{t0}, s{t1}")
        a.e(f"s_mul_i32 s{t1}, s{t0}, 205")
        a.e(f"s_lshr_b32 s{t1}, s{t1}, 11")
        a.e(f"s_mul_i32 s{t1}, s{t1}, 10")
        a.e(f"s_sub_u32 s{t0}, s{t0}, s{t1}")
        a.e(f"s_lshl_b32 s{sOA}, s{t0}, 7")
        a.e(f"s_add_u32 s{sOA2}, s{sOA}, {64*1280}")
        a.e(f"s_mul_i32 s{sOB0}, s{t0}, {64*3840}")
        a.e(f"s_add_u32 s{sOB0b}, s{sOB0}, {32*3840}")
        a.e(f"s_mul_i32 s{sOB1}, s{t0}, {64*3456}")
        a.e(f"s_add_u32 s{sOB1b}, s{sOB1}, {32*3456}")
    else:
        a.e(f"s_mov_b32 s{sOA}, 0")
        a.e(f"s_mov_b32 s{sOA2}, {64*1280}")
        a.e(f"s_mov_b32 s{sOB0}, 0")
        a.e(f"s_mov_b32 s{sOB0b}, {32*3840}")
        a.e(f"s_mov_b32 s{sOB1}, 0")
        a.e(f"s_mov_b32 s{sOB1b}, {32*3456}")
    a.e(f"s_mov_b32 s{sWA}, s{sDA}")
    a.e(f"s_mov_b32 s{sWB}, s{sDB}")
    a.e("s_waitcnt lgkmcnt(0)")
    stamp(a, 5)
    srd(a, sX, "s4", "s5", 2048 * 640 * 2)
    srd(a, sB0, "s6", "s7", 640 * 1920 * 2)
    srd(a, sB1, "s12", "s13", 640 * 1728 * 2)

    lR0 = 10
    lR = 14
    lD = 20
    lS = 36
    lU = 40

    def stats_ops():
        va = []
        for r in range(16):
            src = lD + r
            lo, hi = lU + 2 * (r & 1), lU + 2 * (r & 1) + 1
            va.append(f"v_lshlrev_b32 v{lo}, 16, v{src}")
            va.append(f"v_and_b32 v{hi}, 0xffff0000, v{src}")
            va.append(f"v_add_f32 v{lS}, v{lS}, v{lo}")
            va.append(f"v_add_f32 v{lS+1}, v{lS+1}, v{hi}")
            va.append(f"v_fmac_f32 v{lS+2}, v{lo}, v{lo}")
            va.append(f"v_fmac_f32 v{lS+3}, v{hi}, v{hi}")
        return va

    def stats_reads():
        for i in range(4):
            a.e(f"v_add_u32 v{lR+i}, s{sRD}, v{lR0+i}")
        for i in range(4):
            a.e(f"ds_read_b128 {vr(lD+4*i,4)}, v{lR+i}")
        a.e(f"s_add_u32 s{sRD}, s{sRD}, {K1_SLOT}")
        a.e(f"s_cmp_eq_u32 s{sRD}, {K1_SCR}")
        a.e(f"s_cselect_b32 s{sRD}, 0, s{sRD}")

    def stage(with_stats=False, dma=True):
        spec = [(sWA, 0, lA, 1024, sX, sOA, 128),
                (sWA, 8192, lA, 1024, sX, sOA2, 128),
                (sWB, 0, lQ, 1056, sB0, sOB0, 64 * 3840),
                (sWB, 2 * K1_BH, lF, 1056, sB1, sOB1, 64 * 3456),
                (sWB, K1_BH, lQ, 1056, sB0, sOB0b, 64 * 3840),
                (sWB, 3 * K1_BH, lF, 1056, sB1, sOB1b, 64 * 3456)]
        va = stats_ops() if with_stats else []
        if with_stats:
            stats_reads()
        n = 0
        for (sD, dof, vO, d2, sR, sO, inc) in spec:
            for q in range(2):
                d = dof + q * d2
                if dma:
                    a.e(f"s_add_u32 m0, s{sD}, {d}" if d else f"s_mov_b32 m0, s{sD}")
                    a.e("s_nop 0")
                    a.e(f"buffer_load_dwordx4 v{vO[q]}, {sr(sR,4)}, s{sO} offen lds")
                n += 1
                if with_stats and n >= 2:
                    if n == 2:
                        a.e("s_waitcnt lgkmcnt(0)")
                    k = 9 if n < 12 else len(va)
                    for ins in va[:k]:
                        a.e(ins)
                    va = va[k:]
            if dma:
                a.e(f"s_add_u32 s{sO}, s{sO}, {inc}")
        if dma:
            a.e(f"s_add_u32 s{sWA}, s{sWA}, {K1_SLOT}")
            a.e(f"s_add_u32 s{sWB}, s{sWB}, {K1_SLOT}")
            a.e(f"s_cmp_ge_u32 s{sWA}, {K1_SCR}")
            a.e(f"s_cselect_b32 s{sWA}, s{sDA}, s{sWA}")
            a.e(f"s_cselect_b32 s{sWB}, s{sDB}, s{sWB}")
            if ROT:
                a.e(f"s_cmp_eq_u32 s{sOA}, 1280")
                a.e(f"s_cselect_b32 s{sOA}, 0, s{sOA}")
                a.e(f"s_cselect_b32 s{sOA2}, {64*1280}, s{sOA2}")
                a.e(f"s_cselect_b32 s{sOB0}, 0, s{sOB0}")
                a.e(f"s_cselect_b32 s{sOB0b}, {32*3840}, s{sOB0b}")
                a.e(f"s_cselect_b32 s{sOB1}, 0, s{sOB1}")
                a.e(f"s_cselect_b32 s{sOB1b}, {32*3456}, s{sOB1b}")

    stage()
    srd(a, sBI, "s14", "s15", 1728 * 2)
    a.e(f"v_lshlrev_b32 v{vT}, 2, v{vLANE}")
    a.e(f"buffer_load_dword v{lBI}, v{vT}, {sr(sBI,4)}, s{t3} offen")
    stage()
    S3 = "S" in X
    if S3:
        stage()
    a.e(f"v_and_b32 v{vT+1}, 31, v{vLANE}")
    a.e(f"v_lshrrev_b32 v{vT+2}, 5, v{vLANE}")
    a.e(f"v_lshlrev_b32 v{vT+2}, 2, v{vT+2}")
    a.e(f"v_bfe_u32 v{vT+3}, v{vLANE}, 1, 3")
    a.e(f"v_xor_b32 v{vT+2}, v{vT+2}, v{vT+3}")
    a.e(f"v_lshlrev_b32 v{vT+2}, 4, v{vT+2}")
    a.e(f"v_lshl_add_u32 v{vT+2}, v{vT+1}, 7, v{vT+2}")
    a.e(f"s_lshl_b32 s{t0}, s{sW}, 12")
    a.e(f"v_add_u32 v{lR0}, s{t0}, v{vT+2}")
    for i in range(1, 4):
        a.e(f"v_xor_b32 v{lR0+i}, {16*i}, v{lR0}")
    for i in range(4):
        a.e(f"v_mov_b32 v{lS+i}, 0")
    a.e(f"s_mov_b32 s{sRD}, 0")
    a.e(f"s_mov_b32 s{sIT}, 0")
    a.e(f"s_waitcnt vmcnt({24 if S3 else 12})")
    a.e(f"v_add_u32 v{vT}, {K1_SCR+2048}, v{vT}")
    a.e(f"ds_write_b32 v{vT}, v{lBI}")
    if ONE:
        a.e(f"v_mov_b32 v{vT+4}, {K1_SYN}")
        a.e(f"ds_write_b128 v{vT+4}, {vr(lS,4)}")
    a.e("s_barrier")
    stamp(a, 1)
    stage(True, not S3)
    a.lab("K1_LD")
    a.e("s_waitcnt vmcnt(12)")
    a.e("s_barrier")
    stage(True, True)
    a.e(f"s_add_u32 s{sIT}, s{sIT}, 1")
    a.e(f"s_cmp_lt_u32 s{sIT}, 7")
    a.e("s_cbranch_scc1 K1_LD")
    a.e("s_waitcnt vmcnt(12)")
    a.e("s_barrier")
    a.e(f"s_mov_b32 s{sIT}, 0")
    a.lab("K1_LD2")
    stage(True, False)
    a.e(f"s_cmp_eq_u32 s{sIT}, 1")
    a.e("s_cbranch_scc1 K1_LD3")
    if ONE:
        a.e(f"s_cmp_lg_u32 s{sW}, 0")
        a.e("s_cbranch_scc1 ZD_ld")
        zpoll("ld", sBI, vT + 4, vT + 5)
    a.e("s_waitcnt vmcnt(0)")
    a.e("s_barrier")
    a.e(f"s_mov_b32 s{sIT}, 1")
    a.e("s_branch K1_LD2")
    a.lab("K1_LD3")
    a.e(f"v_add_f32 v{lS}, v{lS}, v{lS+1}")
    a.e(f"v_add_f32 v{lS+1}, v{lS+2}, v{lS+3}")
    a.e(f"v_mov_b32 v{lU}, v{lS}")
    a.e(f"v_mov_b32 v{lU+1}, v{lS+1}")
    a.e("s_nop 1")
    a.e(f"v_permlane32_swap_b32 v{lS}, v{lU}")
    a.e(f"v_permlane32_swap_b32 v{lS+1}, v{lU+1}")
    a.e(f"v_add_f32 v{lS}, v{lS}, v{lU}")
    a.e(f"v_add_f32 v{lS+1}, v{lS+1}, v{lU+1}")
    finalize(lS, lS + 1, lS + 2, lS + 3)
    a.e(f"v_lshlrev_b32 v{vT+1}, 2, v{vT+1}")
    a.e(f"s_lshl_b32 s{t0}, s{sW}, 7")
    a.e(f"s_add_u32 s{t0}, s{t0}, {K1_SCR}")
    a.e(f"v_add_u32 v{vT+1}, s{t0}, v{vT+1}")
    a.e(f"ds_write_b32 v{vT+1}, v{lS+2}")
    a.e(f"ds_write_b32 v{vT+1}, v{lS+3} offset:512")
    a.e("s_waitcnt lgkmcnt(0)")
    a.e("s_barrier")
    if DIAG:
        stamp(a, 2); stamp(a, 3)
        k1flush()
    if ONE:
        a.e("s_barrier")
        a.e("s_branch P2_ENTRY")
    else:
        a.e("s_endpgm")
    a.lab("K1_COMP")
    a.e(f"s_and_b32 s{sMH}, s{sW}, 1")
    a.e(f"s_bfe_u32 s{sNQ}, s{sW}, 0x10001")
    a.e(f"s_lshr_b32 s{sHALF}, s{sW}, 3")
    if "C" in X:
        NPF = int(os.environ.get("NPF", "8"))
        a.e(f"s_cmp_ge_u32 s2, {NPF}")
        a.e("s_cbranch_scc1 K1_NOCP")
        a.e(f"s_cmp_ge_u32 s{sW}, 8")
        a.e("s_cbranch_scc1 K1_NOCP")
        a.e(f"s_and_b32 s{t0}, s{sW}, 3")
        code_prefetch(a, "k1", "k1_gemm1_kernel", "CODE_END", 64, t0, vLANE, vT, 36)
        a.lab("K1_NOCP")
    if "P" in X:
        vPF = 36
        a.e(f"s_and_b32 s{t0}, s{sW}, 3")
        a.e(f"s_lshl_b32 s{t0}, s{t0}, 6")
        a.e(f"v_add_u32 v{vT}, s{t0}, v{vLANE}")
        a.e(f"s_cmp_eq_u32 s{sHALF}, 1")
        a.e("s_cbranch_scc1 K1_PFB")
        a.e(f"s_and_b32 s{t1}, s{sCB}, 3")
        a.e(f"s_lshl_b32 s{t1}, s{t1}, 5")
        a.e(f"s_lshl_b32 s{t2}, s{sRB}, 7")
        a.e(f"s_add_u32 s{t1}, s{t1}, s{t2}")
        a.e(f"v_lshrrev_b32 v{vT+1}, 3, v{vT}")
        a.e(f"v_add_u32 v{vT+1}, s{t1}, v{vT+1}")
        a.e(f"v_mul_u32_u24 v{vT+1}, 1280, v{vT+1}")
        a.e(f"v_and_b32 v{vT+2}, 7, v{vT}")
        a.e(f"v_lshl_add_u32 v{vT+1}, v{vT+2}, 7, v{vT+1}")
        a.e("s_waitcnt lgkmcnt(0)")
        srd(a, sX, "s4", "s5", 2048 * 640 * 2)
        a.e(f"buffer_load_dword v{vPF}, v{vT+1}, {sr(sX,4)}, 0 offen offset:256")
        a.e("s_branch K1_PFD")
        a.lab("K1_PFB")
        a.e(f"s_and_b32 s{t1}, s{sRB}, 7")
        a.e(f"s_lshl_b32 s{t1}, s{t1}, 6")
        a.e(f"s_add_u32 s{t1}, s{t1}, 128")
        a.e(f"v_lshrrev_b32 v{vT+1}, 2, v{vT}")
        a.e(f"v_add_u32 v{vT+1}, s{t1}, v{vT+1}")
        a.e(f"v_and_b32 v{vT+2}, 1, v{vT}")
        a.e(f"v_lshlrev_b32 v{vT+2}, 7, v{vT+2}")
        a.e(f"s_lshl_b32 s{t2}, s{sCB}, 8")
        a.e(f"s_lshl_b32 s{t3}, s{sT0}, 5")
        a.e(f"v_mul_u32_u24 v{vT+3}, 3840, v{vT+1}")
        a.e(f"v_add3_u32 v{vT+3}, v{vT+3}, v{vT+2}, s{t2}")
        a.e(f"v_mul_u32_u24 v{vT+4}, 3456, v{vT+1}")
        a.e(f"v_add3_u32 v{vT+4}, v{vT+4}, v{vT+2}, s{t3}")
        a.e("s_waitcnt lgkmcnt(0)")
        srd(a, sB0, "s6", "s7", 640 * 1920 * 2)
        srd(a, sB1, "s12", "s13", 640 * 1728 * 2)
        a.e("s_mov_b32 exec_lo, 0x33333333")
        a.e("s_mov_b32 exec_hi, 0x33333333")
        a.e(f"buffer_load_dword v{vPF}, v{vT+3}, {sr(sB0,4)}, 0 offen")
        a.e("s_not_b64 exec, exec")
        a.e(f"buffer_load_dword v{vPF+1}, v{vT+4}, {sr(sB1,4)}, 0 offen")
        a.e("s_mov_b64 exec, -1")
        a.lab("K1_PFD")
    a.e(f"s_lshl_b32 s{t0}, s{sMH}, 13")
    a.e(f"v_and_b32 v{vT+4}, 15, v{vLANE}")
    a.e(f"v_lshrrev_b32 v{vT}, 4, v{vLANE}")
    a.e(f"v_lshrrev_b32 v{vT+1}, 1, v{vT+4}")
    a.e(f"v_xor_b32 v{vT+1}, v{vT+1}, v{vT}")
    a.e(f"v_lshlrev_b32 v{vT+1}, 4, v{vT+1}")
    a.e(f"v_lshl_add_u32 v{vA0e}, v{vT+4}, 7, v{vT+1}")
    a.e(f"v_add_u32 v{vA0e}, s{t0}, v{vA0e}")
    a.e(f"v_xor_b32 v{vA0o}, 64, v{vA0e}")
    a.e(f"v_bfe_u32 v{vT+1}, v{vLANE}, 2, 3")
    a.e(f"v_mul_u32_u24 v{vT+1}, 1056, v{vT+1}")
    a.e(f"v_lshrrev_b32 v{vT+2}, 5, v{vLANE}")
    a.e(f"v_lshl_add_u32 v{vT+1}, v{vT+2}, 9, v{vT+1}")
    a.e(f"v_and_b32 v{vT+2}, 3, v{vLANE}")
    a.e(f"v_lshl_add_u32 v{vT+1}, v{vT+2}, 3, v{vT+1}")
    a.e(f"s_mul_i32 s{t0}, s{sHALF}, {2*K1_BH}")
    a.e(f"s_lshl_b32 s{t1}, s{sNQ}, 7")
    a.e(f"s_add_u32 s{t0}, s{t0}, s{t1}")
    a.e(f"s_add_u32 s{t0}, s{t0}, 16384")
    a.e(f"v_add_u32 v{vB0}, s{t0}, v{vT+1}")
    for i in range(64):
        a.e(f"v_mov_b32 v{ACC+i}, 0")
    for i in range(4):
        a.e(f"v_mov_b32 v{vS+i}, 0")
        a.e(f"v_mov_b32 v{vONES+i}, 0x3f803f80")
    for i in range(8):
        a.e(f"v_mov_b32 v{vCS+i}, 0")
        a.e(f"v_mov_b32 v{vSA+i}, {hx(OOB)}")
    a.e(f"s_mov_b32 s{sRD}, 0")
    a.e(f"s_mov_b32 s{sIT}, 0")
    a.e(f"s_mov_b32 s{sTS}, 0")
    a.e(f"s_cmp_ge_u32 s{sCB}, 10")
    a.e(f"s_cselect_b32 s{sTYP}, 1, 0")
    a.e(f"s_cmp_eq_u32 s{sHALF}, 1")
    a.e(f"s_cselect_b32 s{sTYP}, 2, s{sTYP}")
    a.e(f"s_lshl_b32 s{t6}, s{sRB}, 2")
    a.e(f"s_lshl_b32 s{t7}, s{sMH}, 1")
    a.e(f"s_add_u32 s{t6}, s{t6}, s{t7}")
    a.e(f"s_cmp_eq_u32 s{sTYP}, 1")
    a.e("s_cbranch_scc1 K1_PRE_V")
    a.e(f"s_cmp_eq_u32 s{sTYP}, 2")
    a.e("s_cbranch_scc1 K1_PRE_F")
    a.e(f"s_cmp_lt_u32 s{sCB}, 5")
    a.e(f"s_cselect_b32 s{t1}, 81920, {KVH}")
    a.e(f"s_cselect_b32 s{t2}, 1280, {KVT}")
    a.e(f"s_cselect_b32 s{sTS}, 1280, {koff(1)}")
    a.e(f"s_cselect_b32 s{t3}, {hx(QB_OFF)}, {hx(KV_OFF)}")
    a.e(f"s_cselect_b32 s{t5}, 0, 5")
    a.e(f"s_sub_u32 s{t5}, s{sCB}, s{t5}")
    a.e(f"s_lshl_b32 s{t5}, s{t5}, 5")
    a.e(f"s_lshl_b32 s{t7}, s{sNQ}, 4")
    a.e(f"s_add_u32 s{t5}, s{t5}, s{t7}")
    a.e(f"s_mul_i32 s{t6}, s{t6}, s{t2}")
    a.e(f"s_add_u32 s{t3}, s{t3}, s{t6}")
    rA0, vG = vT + 6, vT + 10
    a.e(f"v_lshlrev_b32 v{rA0}, 3, v{vT+4}")
    a.e(f"v_add_u32 v{rA0}, s{t3}, v{rA0}")
    a.e(f"v_add_u32 v{vG}, s{t5}, v{vT}")
    for j in range(4):
        tt, h, dg = vT + 11, vT + 12, vT + 13
        a.e(f"v_add_u32 v{tt}, {4*j}, v{vG}")
        a.e(f"v_mul_u32_u24 v{h}, 205, v{tt}")
        a.e(f"v_lshrrev_b32 v{h}, 10, v{h}")
        a.e(f"v_mad_i32_i24 v{dg}, v{h}, -5, v{tt}")
        a.e(f"v_mad_u32_u24 v{h}, v{h}, s{t1}, v{rA0}")
        a.e(f"v_lshl_add_u32 v{vSA+j}, v{dg}, 8, v{h}")
    a.e("s_branch K1_PRE_DONE")
    a.lab("K1_PRE_V")
    vWA = [8, 9, 10, 11]
    a.e(f"s_sub_u32 s{t5}, s{sCB}, 10")
    a.e(f"s_lshl_b32 s{t5}, s{t5}, 7")
    a.e(f"s_lshl_b32 s{t7}, s{sNQ}, 6")
    a.e(f"s_add_u32 s{t5}, s{t5}, s{t7}")
    a.e(f"s_mul_i32 s{t6}, s{t6}, {KVT}")
    a.e(f"s_add_u32 s{t6}, s{t6}, {hx(KV_OFF + 1280)}")
    a.e(f"s_mov_b32 s{t1}, {KVH}")
    a.e(f"s_mov_b32 s{t2}, -20")
    a.e(f"s_lshl_b32 s{t3}, s{sW}, 13")
    n, h, d = vT + 5, vT + 6, vT + 7
    a.e(f"v_add_u32 v{vT+2}, s{t5}, v{vT+4}")
    a.e(f"v_lshlrev_b32 v{vT+1}, 7, v{vT+4}")
    a.e(f"v_add_u32 v{vT+1}, s{t3}, v{vT+1}")
    for j in range(4):
        a.e(f"v_add_u32 v{n}, {16*j}, v{vT+2}")
        a.e(f"v_mul_u32_u24 v{h}, 3277, v{n}")
        a.e(f"v_lshrrev_b32 v{h}, 16, v{h}")
        a.e(f"v_mad_i32_i24 v{d}, v{h}, s{t2}, v{n}")
        a.e(f"v_bfe_u32 v{d}, v{d}, 1, 3")
        a.e(f"v_xor_b32 v{d}, v{d}, v{vT}")
        a.e(f"v_lshl_add_u32 v{vWA[j]}, v{d}, 4, v{vT+1}")
    a.e(f"v_lshrrev_b32 v{vT+2}, 3, v{vLANE}")
    a.e(f"v_add_u32 v{vT+2}, s{t5}, v{vT+2}")
    a.e(f"v_and_b32 v{vT+1}, 7, v{vLANE}")
    a.e(f"v_lshlrev_b32 v{vT+1}, 4, v{vT+1}")
    a.e(f"v_add_u32 v{vT+1}, s{t6}, v{vT+1}")
    for q in range(8):
        a.e(f"v_add_u32 v{n}, {8*q}, v{vT+2}")
        a.e(f"v_mul_u32_u24 v{h}, 3277, v{n}")
        a.e(f"v_lshrrev_b32 v{h}, 16, v{h}")
        a.e(f"v_mad_i32_i24 v{d}, v{h}, s{t2}, v{n}")
        a.e(f"v_mad_u32_u24 v{h}, v{h}, s{t1}, v{vT+1}")
        a.e(f"v_lshl_add_u32 v{vSA+q}, v{d}, 7, v{h}")
    a.e("s_branch K1_PRE_DONE")
    a.lab("K1_PRE_F")
    a.e(f"s_lshl_b32 s{t0}, s{sCB}, 1")
    a.e(f"s_add_u32 s{t0}, s{t0}, s{sNQ}")
    a.e(f"s_cmp_eq_u32 s{t0}, 26")
    a.e("s_cbranch_scc1 K1_PRE_DONE")
    a.e(f"s_cmp_ge_u32 s{t0}, 28")
    a.e("s_cbranch_scc1 K1_PRE_DONE")
    a.e(f"s_lshl_b32 s{t0}, s{t6}, 5")
    a.e(f"v_add_u32 v{vSA}, s{t0}, v{vT+4}")
    a.e(f"v_lshlrev_b32 v{vSA}, 4, v{vSA}")
    a.e(f"v_lshl_add_u32 v{vSA}, v{vT}, 15, v{vSA}")
    a.e(f"s_lshl_b32 s{t0}, s{sT0}, 16")
    a.e(f"s_lshl_b32 s{t1}, s{sNQ}, 18")
    a.e(f"s_add_u32 s{t0}, s{t0}, s{t1}")
    a.e(f"s_add_u32 s{t0}, s{t0}, {hx(AB_OFF + 80*32768)}")
    a.e(f"v_add_u32 v{vSA}, s{t0}, v{vSA}")
    a.e(f"v_add_u32 v{vSA+1}, {hx(131072)}, v{vSA}")
    a.lab("K1_PRE_DONE")
    a.e("s_waitcnt lgkmcnt(0)")
    stamp(a, 5)
    srd(a, sWS, "s18", "s19", WS_END)
    a.e(f"s_and_b32 s{t0}, s{sTYP}, 1")
    a.e(f"s_lshl_b32 s{t0}, s{t0}, 1")
    a.e(f"s_add_u32 s{t0}, s{t0}, s{sMH}")
    for v in range(1, 4):
        a.e(f"s_cmp_eq_u32 s{t0}, {v}")
        a.e(f"s_cbranch_scc1 K1_V{v}")

    def reads(fs):
        vA = vAe if fs == 0 else vAo
        ra = [f"ds_read_b128 {vr(fa(fs,mt),4)}, v{vA} offset:{2048*mt}" for mt in range(4)]
        rb = []
        for j in range(4):
            rb.append(f"ds_read_b64_tr_b16 {vr(fb(fs,j),2)}, v{vB} offset:{fs*K1_BH+32*j}")
            rb.append(f"ds_read_b64_tr_b16 {vr(fb(fs,j)+2,2)}, v{vB} offset:{fs*K1_BH+32*j+256}")
        return rb[0:2] + ra + rb[2:]

    def addr_update():
        return [f"v_add_u32 v{vB}, s{sRD}, v{vB0}",
                f"v_add_u32 v{vAe}, s{sRD}, v{vA0e}",
                f"v_add_u32 v{vAo}, s{sRD}, v{vA0o}",
                f"s_add_u32 s{sRD}, s{sRD}, {K1_SLOT}",
                f"s_cmp_eq_u32 s{sRD}, {K1_SCR}",
                f"s_cselect_b32 s{sRD}, 0, s{sRD}"]

    for var in range(4):
        typ, mh, nq = var >> 1, var & 1, 0
        cst = [2 * mh, 2 * mh + 1]
        smt = (2 if typ == 2 else 0) + nq
        a.raw(".p2align 3")
        a.lab(f"K1_V{var}")
        emit(addr_update())
        a.e("s_barrier")
        stamp(a, 1)
        emit(reads(0))
        a.raw(".p2align 6")
        a.lab(f"K1_L{var}")
        for fs in range(2):
            mf = []
            for j in range(4):
                for mt in range(4):
                    if typ == 1:
                        mf.append(f"v_mfma_f32_16x16x32_bf16 {vr(acc(j,mt),4)}, {vr(fa(fs,mt),4)}, {vr(fb(fs,j),4)}, {vr(acc(j,mt),4)}")
                    else:
                        mf.append(f"v_mfma_f32_16x16x32_bf16 {vr(acc(j,mt),4)}, {vr(fb(fs,j),4)}, {vr(fa(fs,mt),4)}, {vr(acc(j,mt),4)}")
                if j in cst:
                    c = vCS + 4 * cst.index(j)
                    mf.append(f"v_mfma_f32_16x16x32_bf16 {vr(c,4)}, {vr(fb(fs,j),4)}, {vr(vONES,4)}, {vr(c,4)}")
            va = []
            for r in range(4):
                src = fa(fs, smt) + r
                lo, hi = vU + 2 * (r & 1), vU + 2 * (r & 1) + 1
                va.append(f"v_lshlrev_b32 v{lo}, 16, v{src}")
                va.append(f"v_and_b32 v{hi}, 0xffff0000, v{src}")
                va.append(f"v_add_f32 v{vS}, v{vS}, v{lo}")
                va.append(f"v_add_f32 v{vS+1}, v{vS+1}, v{hi}")
                va.append(f"v_fmac_f32 v{vS+2}, v{lo}, v{lo}")
                va.append(f"v_fmac_f32 v{vS+3}, v{hi}, v{hi}")
            rd = reads(fs ^ 1)
            va = []
            if "r" in X: rd = []
            if "M" in X: mf = mf[:2]
            a.e("s_waitcnt lgkmcnt(0)")
            npre = 0
            if fs == 1:
                npre = 2
                for m in mf[:npre]:
                    a.e(m)
                emit(addr_update())
                a.e("s_barrier")
            rest = mf[npre:]
            nm = max(1, len(rest))
            ri = di = 0
            for i, m in enumerate(rest):
                if ri < len(rd):
                    a.e(rd[ri]); ri += 1
                a.e(m)
                want_d = (len(va) * (i + 1) + nm - 1) // nm
                while di < want_d:
                    a.e(va[di]); di += 1
            while ri < len(rd):
                a.e(rd[ri]); ri += 1
            while di < len(va):
                a.e(va[di]); di += 1
        a.e(f"s_add_u32 s{sIT}, s{sIT}, 1")
        a.e(f"s_cmp_lt_u32 s{sIT}, 10")
        a.e(f"s_cbranch_scc1 K1_L{var}")
        a.e(f"s_branch K1_EPI")

    a.raw(".p2align 3")
    a.lab("K1_EPI")
    stamp(a, 2)
    a.e("s_waitcnt vmcnt(0)")
    a.e(f"v_and_b32 v{vT}, 15, v{vLANE}")
    a.e(f"v_lshlrev_b32 v{vT}, 2, v{vT}")
    a.e(f"s_lshl_b32 s{t0}, s{sHALF}, 7")
    a.e(f"s_lshl_b32 s{t1}, s{sNQ}, 6")
    a.e(f"s_add_u32 s{t0}, s{t0}, s{t1}")
    a.e(f"s_lshl_b32 s{t2}, s{sMH}, 8")
    a.e(f"s_add_u32 s{t2}, s{t2}, {K1_SCR}")
    a.e(f"s_add_u32 s{t0}, s{t0}, s{t2}")
    a.e(f"v_add_u32 v{vT+1}, s{t0}, v{vT}")
    a.e(f"v_lshrrev_b32 v{vT+2}, 4, v{vLANE}")
    a.e(f"v_lshlrev_b32 v{vT+2}, 4, v{vT+2}")
    a.e(f"s_lshl_b32 s{t3}, s{sHALF}, 9")
    a.e(f"s_lshl_b32 s{t1}, s{sNQ}, 8")
    a.e(f"s_add_u32 s{t3}, s{t3}, s{t1}")
    a.e(f"s_add_u32 s{t3}, s{t3}, {K1_SCR+1024}")
    a.e(f"s_lshl_b32 s{t1}, s{sMH}, 7")
    a.e(f"s_add_u32 s{t0}, s{t3}, s{t1}")
    a.e(f"v_add_u32 v{vT+3}, s{t0}, v{vT+2}")
    a.e("s_mov_b32 exec_lo, 0x00010001")
    a.e("s_mov_b32 exec_hi, 0x00010001")
    a.e(f"ds_write_b128 v{vT+3}, {vr(vCS,4)}")
    a.e(f"ds_write_b128 v{vT+3}, {vr(vCS+4,4)} offset:64")
    a.e("s_mov_b64 exec, -1")
    a.e("s_waitcnt lgkmcnt(0)")
    a.e("s_barrier")
    stamp(a, 3)
    a.e(f"s_cmp_eq_u32 s{sTYP}, 1")
    a.e("s_cbranch_scc1 K1_EPI_V")

    vNM, vRS = 32, 36
    vC4 = 40
    vBB = 56
    a.e(f"v_add_u32 v{vT}, s{t2}, v{vT}")
    a.e(f"ds_read2_b32 {vr(vNM,2)}, v{vT} offset0:0 offset1:16")
    a.e(f"ds_read2_b32 {vr(vNM+2,2)}, v{vT} offset0:32 offset1:48")
    a.e(f"ds_read2_b32 {vr(vRS,2)}, v{vT} offset0:128 offset1:144")
    a.e(f"ds_read2_b32 {vr(vRS+2,2)}, v{vT} offset0:160 offset1:176")
    a.e(f"v_add_u32 v{vT+1}, s{t3}, v{vT+2}")
    for j in range(4):
        a.e(f"ds_read_b128 {vr(vC4+4*j,4)}, v{vT+1} offset:{64*j}")
    a.e(f"s_cmp_eq_u32 s{sTYP}, 2")
    a.e("s_cbranch_scc1 K1_EPI_F")

    def sel3(mt):
        return f"op_sel:[0,{mt&1},0] op_sel_hi:[1,{mt&1},1]"

    def sel2(mt):
        return f"op_sel:[0,{mt&1}] op_sel_hi:[1,{mt&1}]"
    a.e(f"s_cmp_lt_u32 s{sCB}, 5")
    a.e(f"s_cselect_b32 s{t0}, {hx(f32(QSCALE))}, 1.0")
    a.e("s_waitcnt lgkmcnt(4)")
    for i in range(4):
        a.e(f"v_mul_f32 v{vRS+i}, s{t0}, v{vRS+i}")
    for j in range(4):
        a.e(f"s_waitcnt lgkmcnt({3-j})")
        for mt in range(4):
            A = acc(j, mt)
            for p in range(2):
                a.e(f"v_pk_fma_f32 {vr(A+2*p,2)}, {vr(vC4+4*j+2*p,2)}, {vr(vNM+(mt&2),2)}, {vr(A+2*p,2)} {sel3(mt)}")
        for mt in range(4):
            A = acc(j, mt)
            for p in range(2):
                a.e(f"v_pk_mul_f32 {vr(A+2*p,2)}, {vr(A+2*p,2)}, {vr(vRS+(mt&2),2)} {sel2(mt)}")
        for mt in range(4):
            A = acc(j, mt)
            a.e(f"v_cvt_pk_bf16_f32 v{A}, v{A}, v{A+1}")
            a.e(f"v_cvt_pk_bf16_f32 v{A+1}, v{A+2}, v{A+3}")
            so = f"s{sTS}" if mt & 2 else "0"
            a.e(f"buffer_store_dwordx2 {vr(A,2)}, v{vSA+j}, {sr(sWS,4)}, {so} offen offset:{128*(mt&1)}{SCQ}")
    finish("Q")
    a.lab("K1_EPI_F")
    c0 = -2.0 * math.sqrt(2.0 / math.pi) * math.log2(math.e)
    c1 = c0 * 0.044715
    vC0, vONE = 64, 66
    a.e(f"v_lshrrev_b32 v{vT+2}, 1, v{vT+2}")
    a.e(f"s_lshl_b32 s{t0}, s{sNQ}, 7")
    a.e(f"s_add_u32 s{t0}, s{t0}, {K1_SCR+2048}")
    a.e(f"v_add_u32 v{vT+2}, s{t0}, v{vT+2}")
    for j in range(4):
        a.e(f"ds_read_b64 {vr(vBB+2*j,2)}, v{vT+2} offset:{32*j}")
    a.e(f"v_mov_b32 v{vC0}, {hx(f32(c0))}")
    a.e(f"v_mov_b32 v{vC0+1}, {hx(f32(c0))}")
    a.e(f"v_mov_b32 v{vONE}, 1.0")
    a.e(f"v_mov_b32 v{vONE+1}, 1.0")
    a.e(f"s_mov_b32 s{sC1}, {hx(f32(c1))}")
    a.e(f"s_mov_b32 s{sC1+1}, {hx(f32(c1))}")
    vBF = 68
    vW = 88
    a.e("s_waitcnt lgkmcnt(0)")
    for j in (2, 3, 0, 1):
        a.e(f"v_lshlrev_b32 v{vBF}, 16, v{vBB+2*j}")
        a.e(f"v_and_b32 v{vBF+1}, 0xffff0000, v{vBB+2*j}")
        a.e(f"v_lshlrev_b32 v{vBF+2}, 16, v{vBB+2*j+1}")
        a.e(f"v_and_b32 v{vBF+3}, 0xffff0000, v{vBB+2*j+1}")
        for mp in range(2):
            prs = [(mt, p) for mt in (2 * mp, 2 * mp + 1) for p in range(2)]
            for i, (mt, p) in enumerate(prs):
                A = acc(j, mt) + 2 * p
                a.e(f"v_pk_fma_f32 {vr(A,2)}, {vr(vC4+4*j+2*p,2)}, {vr(vNM+(mt&2),2)}, {vr(A,2)} {sel3(mt)}")
            for i, (mt, p) in enumerate(prs):
                A = acc(j, mt) + 2 * p
                a.e(f"v_pk_fma_f32 {vr(A,2)}, {vr(A,2)}, {vr(vRS+(mt&2),2)}, {vr(vBF+2*p,2)} {sel3(mt)}")
            for i, (mt, p) in enumerate(prs):
                A = acc(j, mt) + 2 * p
                a.e(f"v_pk_mul_f32 {vr(vW+2*i,2)}, {vr(A,2)}, {vr(A,2)}")
            for i, (mt, p) in enumerate(prs):
                a.e(f"v_pk_fma_f32 {vr(vW+2*i,2)}, {vr(vW+2*i,2)}, {sr(sC1,2)}, {vr(vC0,2)}")
            for i, (mt, p) in enumerate(prs):
                A = acc(j, mt) + 2 * p
                a.e(f"v_pk_mul_f32 {vr(vW+2*i,2)}, {vr(vW+2*i,2)}, {vr(A,2)}")
            for i in range(8):
                a.e(f"v_exp_f32 v{vW+i}, v{vW+i}")
            for i in range(4):
                a.e(f"v_pk_add_f32 {vr(vW+2*i,2)}, {vr(vW+2*i,2)}, {vr(vONE,2)}")
            for i in range(8):
                a.e(f"v_rcp_f32 v{vW+i}, v{vW+i}")
            for i, (mt, p) in enumerate(prs):
                A = acc(j, mt) + 2 * p
                a.e(f"v_pk_mul_f32 {vr(A,2)}, {vr(A,2)}, {vr(vW+2*i,2)}")
            for mt in (2 * mp, 2 * mp + 1):
                A = acc(j, mt)
                Dq = acc(2, mt) if j >= 2 else acc(3, mt)
                D = Dq + 2 * (j & 1)
                a.e(f"v_cvt_pk_bf16_f32 v{D}, v{A}, v{A+1}")
                a.e(f"v_cvt_pk_bf16_f32 v{D+1}, v{A+2}, v{A+3}")
                if j & 1 and (not ONE or HSM == "0"):
                    a.e(f"buffer_store_dwordx4 {vr(Dq,4)}, v{vSA+j//2}, {sr(sWS,4)}, 0 offen offset:{256*mt}{SC}")
    if ONE and HSM == "1":
        for p in range(2):
            for mt in range(4):
                a.e(f"buffer_store_dwordx4 {vr(acc(3-p,mt),4)}, v{vSA+p}, {sr(sWS,4)}, 0 offen offset:{256*mt} sc1")
    k1flush()
    if ONE:
        a.e(f"v_mov_b32 v128, v{vSA}")
        a.e(f"v_mov_b32 v129, v{vSA+1}")
        a.e(f"s_lshl_b32 s{t0}, s{sRB}, 7")
        a.e(f"s_lshl_b32 s{t1}, s{sCB}, 2")
        a.e(f"s_add_u32 s{t0}, s{t0}, s{t1}")
        a.e(f"s_add_u32 s72, s{t0}, {hx(FL_OFF + FH_REL)}")
        a.e("s_branch P2_ENTRY")
    else:
        a.e("s_endpgm")
    a.lab("K1_EPI_V")
    vNMv, vRSv = 40, 56
    vCSv = 88
    a.e(f"v_add_u32 v{vT+1}, s{t2}, v{vT+2}")
    for mt in range(4):
        a.e(f"ds_read_b128 {vr(vNMv+4*mt,4)}, v{vT+1} offset:{64*mt}")
    for mt in range(4):
        a.e(f"ds_read_b128 {vr(vRSv+4*mt,4)}, v{vT+1} offset:{512+64*mt}")
    a.e(f"v_add_u32 v{vT+3}, s{t3}, v{vT}")
    for j in range(4):
        a.e(f"ds_read_b32 v{vCSv+2*j}, v{vT+3} offset:{64*j}")
    a.e("s_waitcnt lgkmcnt(0)")
    for j in range(4):
        for mt in range(4):
            A = acc(j, mt)
            for p in range(2):
                a.e(f"v_pk_fma_f32 {vr(A+2*p,2)}, {vr(vNMv+4*mt+2*p,2)}, {vr(vCSv+2*j,2)}, {vr(A+2*p,2)} op_sel:[0,0,0] op_sel_hi:[1,0,1]")
        for mt in range(4):
            A = acc(j, mt)
            for p in range(2):
                a.e(f"v_pk_mul_f32 {vr(A+2*p,2)}, {vr(A+2*p,2)}, {vr(vRSv+4*mt+2*p,2)}")
        for t2_ in range(2):
            A0, A1 = acc(j, 2 * t2_), acc(j, 2 * t2_ + 1)
            a.e(f"v_cvt_pk_bf16_f32 v{A0}, v{A0}, v{A0+1}")
            a.e(f"v_cvt_pk_bf16_f32 v{A0+1}, v{A0+2}, v{A0+3}")
            a.e(f"v_cvt_pk_bf16_f32 v{A0+2}, v{A1}, v{A1+1}")
            a.e(f"v_cvt_pk_bf16_f32 v{A0+3}, v{A1+2}, v{A1+3}")
            if t2_:
                a.e(f"v_xor_b32 v{vWA[j]}, 64, v{vWA[j]}")
            a.e(f"ds_write_b128 v{vWA[j]}, {vr(A0,4)} offset:{2048*j}")
    a.e(f"s_lshl_b32 s{t3}, s{sW}, 13")
    a.e(f"v_lshlrev_b32 v{vT}, 4, v{vLANE}")
    a.e(f"v_add_u32 v{vT}, s{t3}, v{vT}")
    a.e("s_waitcnt lgkmcnt(0)")
    for q in range(8):
        a.e(f"ds_read_b128 {vr(40+4*q,4)}, v{vT} offset:{1024*q}")
    for q in range(8):
        a.e(f"s_waitcnt lgkmcnt({7-q})")
        a.e(f"buffer_store_dwordx4 {vr(40+4*q,4)}, v{vSA+q}, {sr(sWS,4)}, 0 offen{SCQ}")
    finish("Q")
    if ONE:
        for kind in "Q":
            a.lab(f"K1_SIG{kind}")
            a.e(f"v_mov_b32 v2, {K1_SYN + (4 if kind == 'F' else 0)}")
            a.e("v_mov_b32 v3, 1")
            if kind == "Q":
                a.e(f"v_lshlrev_b32 v5, 11, v{vLANE}")
                a.e(f"s_lshl_b32 s{t0}, s{sCB}, 7")
                a.e(f"s_lshl_b32 s{t1}, s{sRB}, 2")
                a.e(f"s_add_u32 s{t0}, s{t0}, s{t1}")
                a.e(f"s_add_u32 s{t0}, s{t0}, {hx(FL_OFF + FQ_REL)}")
            else:
                a.e("v_mov_b32 v5, 0")
                a.e(f"s_lshl_b32 s{t0}, s{sRB}, 7")
                a.e(f"s_lshl_b32 s{t1}, s{sCB}, 2")
                a.e(f"s_add_u32 s{t0}, s{t0}, s{t1}")
                a.e(f"s_add_u32 s{t0}, s{t0}, {hx(FL_OFF + FH_REL)}")
            a.e("s_waitcnt vmcnt(0)")
            a.e("s_mov_b64 exec, 1")
            a.e("ds_add_rtn_u32 v4, v2, v3")
            a.e("s_waitcnt lgkmcnt(0)")
            a.e(f"v_readfirstlane_b32 s{t1}, v4")
            a.e("s_mov_b64 exec, -1")
            a.e(f"s_cmp_lg_u32 s{t1}, 3")
            a.e("s_cbranch_scc1 P2_ENTRY")
            if kind in WB:
                a.e("buffer_wbl2 sc1")
                a.e("s_waitcnt vmcnt(0)")
            a.e(f"s_mov_b64 exec, {15 if kind == 'Q' else 1}")
            a.e(f"buffer_store_dword v3, v5, {sr(sWS,4)}, s{t0} offen sc1")
            a.e("s_mov_b64 exec, -1")
            a.e("s_branch P2_ENTRY")

    a.lab("K1_TRANS")
    sTAU, sSEL0, sSEL1 = 51, 52, 53
    NB_T = 4
    sTs = [24, 28, 36, 40]
    sK = [54, 56, 58, 76]
    vTO = [2, 3, 4, 5]
    vTS = [6, 7, 8, 9]
    vTL = [88, 104, 120, 136]
    a.e(f"s_mul_i32 s{sTAU}, s{sRB}, 12")
    a.e(f"s_add_u32 s{sTAU}, s{sTAU}, s{sW}")
    a.e(f"s_mov_b32 s{sSEL0}, 0x05040100")
    a.e(f"s_mov_b32 s{sSEL1}, 0x07060302")
    a.e(f"v_lshlrev_b32 v{vT}, 2, v{vLANE}")
    a.e(f"v_lshlrev_b32 v{vT+1}, 4, v{vLANE}")
    a.e(f"s_lshl_b32 s{t0}, s{sW}, 13")
    a.e(f"v_lshlrev_b32 v10, 5, v{vLANE}")
    a.e(f"v_add_u32 v10, s{t0}, v10")
    a.e(f"v_add_u32 v11, s{t0}, v{vT+1}")
    a.e("s_waitcnt lgkmcnt(0)")
    srd(a, sWS, "s18", "s19", WS_END)
    if "Q" in X:
        srd(a, sX, "s4", "s5", 2048 * 640 * 2)
        srd(a, sB0, "s6", "s7", 640 * 1920 * 2)
        srd(a, sB1, "s12", "s13", 640 * 1728 * 2)
        a.e(f"s_lshl_b32 s{t0}, s{sTAU}, 13")
        a.e(f"v_lshlrev_b32 v20, 7, v{vLANE}")
        a.e(f"v_add_u32 v20, s{t0}, v20")
        a.e(f"s_mov_b32 s{t1}, {192*3840}")
        a.e(f"s_mov_b32 s{t2}, {192*3456}")
        a.e(f"s_mov_b32 s{t3}, {192*3840 + 12288*128}")
        a.e(f"s_mov_b32 s{t4}, {12288*128}")
        a.e(f"buffer_load_dword v21, v20, {sr(sB0,4)}, s{t1} offen")
        a.e(f"buffer_load_dword v22, v20, {sr(sB1,4)}, s{t2} offen")
        a.e(f"buffer_load_dword v23, v20, {sr(sX,4)}, 0 offen")
        a.e(f"buffer_load_dword v24, v20, {sr(sX,4)}, s{t4} offen")
        a.e(f"buffer_load_dword v25, v20, {sr(sB0,4)}, s{t3} offen")
    a.e(f"s_lshl_b32 s{t0}, s{sTAU}, 3")
    a.e(f"v_lshrrev_b32 v{vT+2}, 3, v{vLANE}")
    a.e(f"v_add_u32 v{vT+2}, s{t0}, v{vT+2}")
    a.e(f"v_mul_u32_u24 v{vT+2}, {2*KVT}, v{vT+2}")
    a.e(f"v_and_b32 v{vT+3}, 7, v{vLANE}")
    a.e(f"v_lshl_add_u32 v{vT+2}, v{vT+3}, 4, v{vT+2}")
    a.e(f"s_cmp_lt_u32 s{sTAU}, 128")
    a.e(f"s_cselect_b32 s{t0}, {hx(KV_OFF + 1280 + 20*128)}, {hx(OOB)}")
    for i in range(4):
        a.e(f"v_mov_b32 v{12+i}, 0x3f803f80")
    a.e(f"buffer_store_dwordx4 v[12:15], v{vT+2}, {sr(sWS,4)}, s{t0} offen{SC}")
    a.e(f"s_lshl_b32 s{t1}, s{sW}, 10")
    a.e(f"s_add_u32 s{t1}, s{t1}, {hx(FL_OFF)}")
    a.e(f"s_cmp_eq_u32 s{sRB}, 0")
    a.e(f"s_cselect_b32 s{t0}, s{t1}, {hx(OOB)}")
    for i in range(4):
        a.e(f"v_mov_b32 v{16+i}, 0")
    a.e(f"v_lshlrev_b32 v{vT+3}, 4, v{vLANE}")
    a.e(f"buffer_store_dwordx4 v[16:19], v{vT+3}, {sr(sWS,4)}, s{t0} offen{SC}")
    if ONE:
        a.e(f"v_mov_b32 v20, {K1_SYN}")
        a.e("ds_write_b128 v20, v[16:19]")
        a.e("s_waitcnt vmcnt(0) lgkmcnt(0)")
        a.e("s_barrier")
        a.e(f"s_cmp_lg_u32 s{sW}, 0")
        a.e("s_cbranch_scc1 K1_TGO")
        a.e("v_mov_b32 v21, 1")
        a.e(f"s_cmp_lg_u32 s{sRB}, 0")
        a.e("s_cbranch_scc1 K1_TZ")
        srd(a, sX, "s10", "s11", 256)
        a.e("s_mov_b64 exec, 1")
        a.e(f"buffer_store_dword v21, v16, {sr(sX,4)}, 0 offen sc1")
        a.e("s_mov_b64 exec, -1")
        a.lab("K1_TZ")
        a.lab("K1_TGO")
    a.e(f"s_mov_b32 s{sIT+3}, 0")
    a.lab("K1_TL")
    for b in range(NB_T):
        T = sTs[b]
        a.e(f"s_mul_i32 s{t1}, s{sTAU}, 13108")
        a.e(f"s_lshr_b32 s{t1}, s{t1}, 16")
        a.e(f"s_mul_i32 s{t2}, s{t1}, 5")
        a.e(f"s_sub_u32 s{t2}, s{sTAU}, s{t2}")
        a.e(f"s_lshr_b32 s{t5}, s{t1}, 1")
        a.e(f"s_mul_i32 s{t5}, s{t5}, 20")
        a.e(f"s_and_b32 s{t6}, s{t1}, 1")
        a.e(f"s_lshl_b32 s{t6}, s{t6}, 2")
        a.e(f"s_add_u32 s{t5}, s{t5}, s{t6}")
        a.e(f"s_add_u32 s{t6}, s{t5}, 8")
        a.e(f"s_sub_u32 s{t3}, s{t1}, 64")
        a.e(f"s_mul_i32 s{t3}, s{t3}, 40")
        a.e(f"s_add_u32 s{t4}, s{t3}, 36")
        a.e(f"s_add_u32 s{t3}, s{t3}, 16")
        a.e(f"s_cmp_lt_u32 s{t1}, 64")
        a.e(f"s_cselect_b32 s{t5}, s{t5}, s{t3}")
        a.e(f"s_cselect_b32 s{t6}, s{t6}, s{t4}")
        a.e(f"s_sub_u32 s{t3}, s{t1}, 80")
        a.e(f"s_lshr_b32 s{t4}, s{t3}, 2")
        a.e(f"s_lshl_b32 s{t4}, s{t4}, 5")
        a.e(f"s_and_b32 s{t3}, s{t3}, 3")
        a.e(f"s_lshl_b32 s{t3}, s{t3}, 2")
        a.e(f"s_add_u32 s{t3}, s{t3}, s{t4}")
        a.e(f"s_add_u32 s{t4}, s{t3}, 16")
        a.e(f"s_cmp_lt_u32 s{t1}, 80")
        a.e(f"s_cselect_b32 s{t5}, s{t5}, s{t3}")
        a.e(f"s_cselect_b32 s{t6}, s{t6}, s{t4}")
        a.e(f"s_cselect_b32 s{T}, s8, s16")
        a.e(f"s_cselect_b32 s{T+1}, s9, s17")
        a.e(f"s_cselect_b32 s{T+2}, {hx(640*640*2)}, {hx(1728*640*2)}")
        a.e(f"s_mov_b32 s{T+3}, 0x00020000")
        a.e(f"s_mul_i32 s{sK[b]}, s{t5}, 1280")
        a.e(f"s_mul_i32 s{sK[b]+1}, s{t6}, 1280")
        a.e(f"s_lshl_b32 s{t3}, s{t2}, 8")
        a.e(f"v_add_u32 v{vTO[b]}, s{t3}, v{vT}")
        for j in range(8):
            so = sK[b] if j < 4 else sK[b] + 1
            a.e(f"buffer_load_dword v{vTL[b]+j}, v{vTO[b]}, {sr(T,4)}, s{so} offen offset:{(j&3)*1280}")
        a.e(f"s_mul_i32 s{t1}, s{t1}, 10240")
        a.e(f"s_lshl_b32 s{t2}, s{t2}, 11")
        a.e(f"s_add_u32 s{t1}, s{t1}, s{t2}")
        a.e(f"s_add_u32 s{t1}, s{t1}, {hx(WT_OFF)}")
        a.e(f"s_cmp_lt_u32 s{sTAU}, 1480")
        a.e(f"s_cselect_b32 s{t1}, s{t1}, {hx(OOB)}")
        a.e(f"v_add_u32 v{vTS[b]}, s{t1}, v{vT+1}")
        a.e(f"s_add_u32 s{sTAU}, s{sTAU}, 192")
    for b in range(NB_T):
        a.e(f"s_waitcnt vmcnt({8*(NB_T-1-b)})")
        for i in range(4):
            a.e(f"v_perm_b32 v{vTL[b]+8+i}, v{vTL[b]+2*i+1}, v{vTL[b]+2*i}, s{sSEL0}")
            a.e(f"v_perm_b32 v{vTL[b]+12+i}, v{vTL[b]+2*i+1}, v{vTL[b]+2*i}, s{sSEL1}")
        a.e(f"ds_write_b128 v10, {vr(vTL[b]+8,4)} offset:{2048*b}")
        a.e(f"ds_write_b128 v10, {vr(vTL[b]+12,4)} offset:{2048*b+16}")
    a.e("s_waitcnt lgkmcnt(0)")
    for b in range(NB_T):
        a.e(f"ds_read_b128 {vr(vTL[b]+8,4)}, v11 offset:{2048*b}")
        a.e(f"ds_read_b128 {vr(vTL[b]+12,4)}, v11 offset:{2048*b+1024}")
    for b in range(NB_T):
        a.e(f"s_waitcnt lgkmcnt({2*(NB_T-1-b)})")
        a.e(f"buffer_store_dwordx4 {vr(vTL[b]+8,4)}, v{vTS[b]}, {sr(sWS,4)}, 0 offen{SCT}")
        a.e(f"buffer_store_dwordx4 {vr(vTL[b]+12,4)}, v{vTS[b]}, {sr(sWS,4)}, 0 offen offset:1024{SCT}")
    a.e(f"s_add_u32 s{sIT+3}, s{sIT+3}, 1")
    a.e(f"s_cmp_lt_u32 s{sIT+3}, 2")
    a.e("s_cbranch_scc1 K1_TL")
    if DIAG:
        for i in (1, 2, 3, 5):
            stamp(a, i)
    k1flush()
    if ONE:
        a.e("s_waitcnt vmcnt(0)")
        a.e("s_barrier")
        a.e(f"s_cmp_lg_u32 s{sW}, 0")
        a.e("s_cbranch_scc1 P2_ENTRY")
        zpoll("tr", sX, 22, 23)
        a.e(f"v_lshlrev_b32 v22, 11, v{vLANE}")
        a.e(f"s_lshl_b32 s{t1}, s{sRB}, 2")
        a.e(f"s_add_u32 s{t1}, s{t1}, {hx(FL_OFF + FQ_REL + 15*128)}")
        a.e("s_mov_b64 exec, 15")
        a.e(f"buffer_store_dword v21, v22, {sr(sWS,4)}, s{t1} offen sc1")
        a.e("s_mov_b64 exec, -1")
        a.e("s_branch P2_ENTRY")
    a.lab("K1_END")
    a.e("s_endpgm")
    return name, NV, 102 if DIAG else 80, (256, 768, K1_LDS)


K2_LDS = 163840
Y_OFF = 0x1400000
Y_SIZE = 2048 * 640 * 4
WS_ALL = Y_OFF + Y_SIZE


def gen_k2(a):
    name = "k2_attn_kernel"
    if ONE:
        a.raw(".p2align 6")
        a.lab("P2_ENTRY")
    else:
        kernel_header(a, name)
    X2 = os.environ.get("K2X", "")
    sWS, sKV = 12, 16
    sW, sH, sQT, sOFF, sIT, sG = 20, 21, 22, 23, 24, 25
    sLD = 26
    t0, t1, t2, t3 = 28, 29, 30, 31
    sBM = 32
    vLANE = 1
    vL16, vKa, vKb, vV = 2, 3, 4, 5
    vT = 6
    QA, QB = [12, 20], [16, 24]
    KA, KB = 28, 32
    V0, V1 = 36, 40
    P0, P1 = 44, 48
    O = [64, 80]
    S = [96, 112]
    NV = 168
    RG = 81920
    FUSE = "u" not in X2
    k2flush = lambda: (stamp(a, 4), stamp_flush(a, 1, 12, sW, "s4", "s5", 8, 2))

    if not ONE:
        a.e("s_cmp_ge_u32 s2, 256")
        a.e("s_cbranch_scc1 K2_END")
    stamp(a, 0)
    a.e("s_load_dwordx2 s[4:5], s[0:1], 80")
    a.e("s_load_dwordx2 s[6:7], s[0:1], 0")
    a.e("s_load_dwordx2 s[8:9], s[0:1], 56")
    a.e("s_load_dwordx4 s[60:63], s[0:1], 64")
    a.e(f"v_and_b32 v{vLANE}, 63, v0")
    a.e(f"v_lshrrev_b32 v{vT}, 6, v0")
    a.e(f"s_and_b32 s{t0}, s2, 7")
    a.e(f"v_readfirstlane_b32 s{sW}, v{vT}")
    a.e(f"s_lshr_b32 s{t1}, s2, 3")
    a.e(f"s_lshl_b32 s{t2}, s{t0}, 2")
    a.e(f"s_and_b32 s{t3}, s{t1}, 3")
    a.e(f"s_add_u32 s{sH}, s{t2}, s{t3}")
    a.e(f"v_lshlrev_b32 v{vL16}, 4, v{vLANE}")
    a.e(f"s_mul_i32 s{t2}, s{sH}, {KVH}")
    a.e(f"s_add_u32 s{t2}, s{t2}, {hx(KV_OFF)}")
    a.e("s_waitcnt lgkmcnt(0)")
    stamp(a, 5)
    a.e(f"s_add_u32 s{sKV}, s4, s{t2}")
    a.e(f"s_addc_u32 s{sKV+1}, s5, 0")
    a.e(f"s_mov_b32 s{sKV+2}, {KVH}")
    a.e(f"s_mov_b32 s{sKV+3}, 0x00020000")
    sFL = 64

    def gpoll(tag, vaddr, vd):
        a.e(f"s_mov_b32 s{sIT}, 0")
        a.lab(f"GP_{tag}")
        a.e(f"buffer_load_dword v{vd}, v{vaddr}, {sr(sFL,4)}, 0 offen sc1")
        a.e(f"s_add_u32 s{sIT}, s{sIT}, 1")
        a.e("s_waitcnt vmcnt(0)")
        a.e(f"v_cmp_ne_u32 vcc, 1, v{vd}")
        a.e(f"s_cmp_ge_u32 s{sIT}, {POLL_MAX}")
        a.e(f"s_cbranch_scc1 GD_{tag}")
        a.e(f"s_cbranch_vccz GD_{tag}")
        a.e("s_sleep 3")
        a.e(f"s_branch GP_{tag}")
        a.lab(f"GD_{tag}")

    if ONE:
        a.e(f"v_mov_b32 v{vT+5}, {K1_SYN + 8}")
        a.e(f"s_cmp_lg_u32 s{sW}, 0")
        a.e("s_cbranch_scc1 P2_SPIN")
        srd_off(a, sFL, "s4", "s5", FL_OFF, FL_SIZE)
        a.e(f"s_mul_i32 s{t2}, s{sH}, 20")
        a.e(f"s_and_b32 s{t3}, s2, 3")
        a.e(f"s_lshl_b32 s{t3}, s{t3}, 11")
        a.e(f"s_add_u32 s{t3}, s{t3}, {FQ_REL}")
        a.e(f"v_lshrrev_b32 v{vT}, 5, v{vLANE}")
        a.e(f"v_mul_u32_u24 v{vT}, 640, v{vT}")
        a.e(f"v_bfe_u32 v{vT+1}, v{vLANE}, 4, 1")
        a.e(f"v_mul_u32_u24 v{vT+1}, 19, v{vT+1}")
        a.e(f"v_add3_u32 v{vT}, v{vT}, v{vT+1}, s{t2}")
        a.e(f"v_add_u32 v{vT}, 640, v{vT}")
        a.e(f"v_and_b32 v{vT}, 0xffffff80, v{vT}")
        a.e(f"v_and_b32 v{vT+1}, 15, v{vLANE}")
        a.e(f"v_lshl_add_u32 v{vT}, v{vT+1}, 2, v{vT}")
        a.e(f"v_add_u32 v{vT}, s{t3}, v{vT}")
        a.e(f"v_and_b32 v{vT+2}, 1, v{vLANE}")
        a.e(f"v_mul_u32_u24 v{vT+2}, 19, v{vT+2}")
        a.e(f"v_add_u32 v{vT+2}, s{t2}, v{vT+2}")
        a.e(f"v_and_b32 v{vT+2}, 0xffffff80, v{vT+2}")
        a.e(f"v_bfe_u32 v{vT+3}, v{vLANE}, 1, 1")
        a.e(f"s_lshr_b32 s{t2}, s2, 5")
        a.e(f"s_lshl_b32 s{t2}, s{t2}, 1")
        a.e(f"v_add_u32 v{vT+3}, s{t2}, v{vT+3}")
        a.e(f"v_lshl_add_u32 v{vT+2}, v{vT+3}, 2, v{vT+2}")
        a.e(f"v_lshlrev_b32 v{vT+3}, 2, v{vT+1}")
        a.e(f"v_add_u32 v{vT+3}, {15*128}, v{vT+3}")
        a.e(f"v_cmp_gt_u32 vcc, 16, v{vLANE}")
        a.e("s_nop 1")
        a.e(f"v_cndmask_b32 v{vT+2}, v{vT+2}, v{vT+3}, vcc")
        a.e(f"v_add_u32 v{vT+2}, s{t3}, v{vT+2}")
        a.e(f"s_mov_b32 s{sIT}, 0")
        a.lab("GP_go")
        a.e(f"buffer_load_dword v{vT+4}, v{vT}, {sr(sFL,4)}, 0 offen sc1")
        a.e(f"buffer_load_dword v{vT+3}, v{vT+2}, {sr(sFL,4)}, 0 offen sc1")
        a.e(f"s_add_u32 s{sIT}, s{sIT}, 1")
        a.e("s_waitcnt vmcnt(0)")
        a.e(f"v_and_b32 v{vT+4}, v{vT+4}, v{vT+3}")
        a.e(f"v_cmp_ne_u32 vcc, 1, v{vT+4}")
        a.e(f"s_cmp_ge_u32 s{sIT}, {POLL_MAX}")
        a.e("s_cbranch_scc1 GD_go")
        a.e("s_cbranch_vccz GD_go")
        a.e(f"s_sleep {os.environ.get('GSL', '3')}")
        a.e("s_branch GP_go")
        a.lab("GD_go")
        a.e(f"v_mov_b32 v{vT+4}, 1")
        a.e(f"ds_write_b32 v{vT+5}, v{vT+4}")
        a.e("s_branch P2_GO")
        a.lab("P2_SPIN")
        a.e(f"ds_read_b32 v{vT+4}, v{vT+5}")
        a.e("s_waitcnt lgkmcnt(0)")
        a.e(f"v_readfirstlane_b32 s{t2}, v{vT+4}")
        a.e(f"s_cmp_eq_u32 s{t2}, 1")
        a.e("s_cbranch_scc1 P2_GO")
        a.e("s_sleep 1")
        a.e("s_branch P2_SPIN")
        a.lab("P2_GO")
        stamp(a, 5)
    a.e(f"s_cmp_ge_u32 s{sW}, 4")
    a.e("s_cbranch_scc1 K2_ATT")
    sA, sWT, sXX, sB2, sY = 36, 40, 44, 48, 52
    sRB, sCB, sOA, sOW = 56, 57, 58, 59
    vOA, vOW, vXO, vBO, vYO = 3, 4, 5, 12, 13
    F = 16
    ACC = 88

    def fA(s_, mt):
        return F + 36 * s_ + 4 * mt

    def fW(s_, t):
        return F + 36 * s_ + 16 + 4 * t

    def kvdma(n):
        for t in range(n):
            a.e(f"s_mov_b32 m0, s{sLD}")
            a.e(f"s_add_u32 s{sLD}, s{sLD}, 2048")
            a.e(f"buffer_load_dwordx4 v{vL16}, {sr(sKV,4)}, s{sOFF} offen{SC} lds")
            a.e(f"s_add_u32 s{sOFF}, s{sOFF}, 2048")

    a.e("s_setprio 3")
    a.e(f"s_and_b32 s{t2}, s{sW}, 1")
    a.e(f"s_lshr_b32 s{t3}, s{sW}, 1")
    a.e(f"s_lshl_b32 s{t3}, s{t3}, 10")
    a.e(f"s_mul_i32 s{sOFF}, s{t2}, {32*KVT}")
    a.e(f"s_add_u32 s{sOFF}, s{sOFF}, s{t3}")
    a.e(f"s_mul_i32 s{sLD}, s{t2}, {RG}")
    a.e(f"s_add_u32 s{sLD}, s{sLD}, s{t3}")
    a.e(f"s_add_u32 m0, s{sLD}, {15*2*KVT}")
    a.e(f"s_add_u32 s{t2}, s{sOFF}, {15*2*KVT + 1280}")
    a.e(f"buffer_load_dwordx4 v{vL16}, {sr(sKV,4)}, s{t2} offen{SC} lds")
    a.e(f"s_cmp_eq_u32 s{t3}, 0")
    a.e(f"s_cselect_b32 exec_hi, 0xff, 0")
    a.e(f"s_cselect_b32 exec_lo, -1, 1")
    a.e(f"s_cselect_b32 s{sBM}, 2048, 0")
    a.e(f"s_add_u32 s{t2}, s{t2}, s{sBM}")
    a.e(f"s_add_u32 s{sBM}, s{sBM}, s{sLD}")
    a.e(f"s_add_u32 m0, s{sBM}, {15*2*KVT}")
    a.e("s_nop 0")
    a.e(f"buffer_load_dwordx4 v{vL16}, {sr(sKV,4)}, s{t2} offen{SC} lds")
    a.e("s_mov_b64 exec, -1")
    NPRE = int(os.environ.get("NPRE", "6"))
    NMID = int(os.environ.get("NMID", "10"))
    kvdma(NPRE)
    a.e(f"s_lshl_b32 s{t0}, s{t0}, 2")
    a.e(f"s_and_b32 s{t2}, s{t1}, 3")
    a.e(f"s_add_u32 s{sRB}, s{t0}, s{t2}")
    a.e(f"s_lshr_b32 s{sCB}, s{t1}, 2")
    srd_off(a, sA, "s4", "s5", AB_OFF + 80 * 32768, AB_SIZE - 80 * 32768)
    srd_off(a, sWT, "s4", "s5", WT_OFF + 80 * 10240, WT_SIZE - 80 * 10240)
    srd(a, sXX, "s6", "s7", 2048 * 640 * 2)
    srd(a, sB2, "s8", "s9", 640 * 2)
    a.e(f"v_and_b32 v{vT}, 15, v{vLANE}")
    a.e(f"v_lshrrev_b32 v{vT+1}, 4, v{vLANE}")
    a.e(f"s_lshl_b32 s{t0}, s{sRB}, 6")
    a.e(f"v_add_u32 v{vT+2}, s{t0}, v{vT}")
    a.e(f"v_lshlrev_b32 v{vOA}, 4, v{vT+2}")
    a.e(f"v_lshl_add_u32 v{vOA}, v{vT+1}, 15, v{vOA}")
    a.e(f"s_mul_i32 s{t1}, s{sCB}, 80")
    a.e(f"v_add_u32 v{vT+3}, s{t1}, v{vT}")
    a.e(f"v_lshlrev_b32 v{vOW}, 4, v{vT+3}")
    a.e(f"v_mul_u32_u24 v{vT+3}, 10240, v{vT+1}")
    a.e(f"v_add_u32 v{vOW}, v{vOW}, v{vT+3}")
    a.e(f"s_lshl_b32 s{sOA}, s{sW}, 17")
    a.e(f"s_mul_i32 s{sOW}, s{sW}, 40960")
    a.e(f"v_lshlrev_b32 v{vBO}, 3, v{vT+1}")
    a.e(f"s_lshl_b32 s{t2}, s{t1}, 1")
    a.e(f"v_add_u32 v{vBO}, s{t2}, v{vBO}")
    a.e(f"s_lshl_b32 s{t2}, s{sW}, 4")
    a.e(f"v_add_u32 v{vT+2}, s{t2}, v{vT+2}")
    a.e(f"v_mul_u32_u24 v{vXO}, 1280, v{vT+2}")
    a.e(f"v_add_u32 v{vXO}, v{vXO}, v{vBO}")
    a.e(f"s_lshl_b32 s{t0}, s{sRB}, 3")
    a.e(f"s_add_u32 s{t0}, s{t0}, s{sCB}")
    a.e(f"s_mul_i32 s{t0}, s{t0}, 20480")
    a.e(f"s_mul_i32 s{t2}, s{sW}, 5120")
    a.e(f"s_add_u32 s{t0}, s{t0}, s{t2}")
    a.e(f"v_add_u32 v{vYO}, s{t0}, v{vL16}")
    for i in range(80):
        a.e(f"v_mov_b32 v{ACC+i}, 0")
    a.e(f"s_mov_b32 s{sIT}, 0")
    a.e(f"s_mov_b32 s{sBM}, {hx(0 if 'B' in X2 else (1 << 1))}")
    a.e(f"v_mov_b32 v{vT}, 0")
    a.e(f"s_waitcnt vmcnt({NPRE})")
    a.e("s_barrier")
    stamp(a, 1)
    kvdma(NMID)
    a.e(f"s_waitcnt vmcnt({NPRE + NMID - 6})")
    a.e("s_barrier")
    kvdma(38 - NPRE - NMID)
    a.e(f"s_lshr_b32 s{t3}, s{sW}, 1")
    a.e(f"s_cmp_eq_u32 s{t3}, 0")
    a.e(f"s_cselect_b32 exec_hi, 0xffffff, 0")
    a.e(f"s_cselect_b32 exec_lo, -1, 1")
    a.e(f"s_cselect_b32 s{t3}, 0, 2048")
    a.e(f"s_sub_u32 s{sLD}, s{sLD}, s{t3}")
    a.e(f"s_sub_u32 s{sOFF}, s{sOFF}, s{t3}")
    kvdma(1)
    a.e("s_mov_b64 exec, -1")

    def loads(s_):
        r = [f"buffer_load_dwordx4 {vr(fA(s_,mt),4)}, v{vOA}, {sr(sA,4)}, s{sOA} offen offset:{256*mt}{SC}" for mt in range(4)]
        for t in range(5):
            r.append(f"buffer_load_dwordx4 {vr(fW(s_,t),4)}, v{vOW}, {sr(sWT,4)}, s{sOW} offen offset:{256*t}{SC}")
        r.append(f"s_add_u32 s{sOA}, s{sOA}, {4*131072}")
        r.append(f"s_add_u32 s{sOW}, s{sOW}, {4*40960}")
        return r

    a.e("s_waitcnt vmcnt(29)")
    a.e("s_barrier")
    if ONE:
        srd_off(a, sFL, "s4", "s5", FL_OFF, FL_SIZE)
        a.e(f"v_min_u32 v{vT+1}, 13, v{vLANE}")
        a.e(f"v_lshlrev_b32 v{vT+1}, 2, v{vT+1}")
        a.e(f"s_lshr_b32 s{t2}, s{sRB}, 1")
        a.e(f"s_lshl_b32 s{t2}, s{t2}, 7")
        a.e(f"s_add_u32 s{t2}, s{t2}, {FH_REL}")
        a.e(f"v_add_u32 v{vT+1}, s{t2}, v{vT+1}")
        a.e("s_waitcnt vmcnt(0)")
        a.e("s_barrier")
        a.e("s_mov_b64 exec, 0xffff")
        gpoll("h", vT + 1, vT + 4)
        a.e("s_mov_b64 exec, -1")
        a.e(f"s_mov_b32 s{sIT}, 0")
        for s_ in range(2):
            for ins in loads(s_):
                a.e(ins)
    else:
        for s_ in range(2):
            for ins in loads(s_):
                a.e(ins)
        a.e("s_waitcnt vmcnt(18)")
        a.e("s_barrier")
    stamp(a, 2)
    a.e(f"s_setprio {3 if 'Z' in X2 else (1 if 'y' in X2 else 0)}")
    a.raw(".p2align 3")
    a.lab("K2_GL")
    for s_ in range(2):
        ld = loads(s_)
        a.e("s_waitcnt vmcnt(9)")
        for t in range(5):
            for mt in range(4):
                A_ = ACC + 20 * mt + 4 * t
                a.e(f"v_mfma_f32_16x16x32_bf16 {vr(A_,4)}, {vr(fW(s_,t),4)}, {vr(fA(s_,mt),4)}, {vr(A_,4)}")
                if t == 4:
                    a.e(ld[mt])
            a.e(ld[4 + t])
        a.e(ld[9]); a.e(ld[10])
    a.e(f"s_add_u32 s{sIT}, s{sIT}, 1")
    a.e(f"s_cmp_lt_u32 s{sIT}, 7")
    a.e("s_cbranch_scc1 K2_GL")
    stamp(a, 3)
    a.e("s_setprio 3")
    a.e("s_waitcnt vmcnt(0)")
    XR = 68
    for q in range(5):
        a.e(f"buffer_load_dwordx2 {vr(XR+2*q,2)}, v{vXO}, {sr(sXX,4)}, 0 offen offset:{32*q}")
        a.e(f"buffer_load_dwordx2 {vr(XR+10+2*q,2)}, v{vBO}, {sr(sB2,4)}, 0 offen offset:{32*q}")
    srd_off(a, sWT, "s4", "s5", WT_OFF, 80 * 10240)
    srd_off(a, sA, "s4", "s5", AB_OFF, 80 * 32768)
    srd(a, sY, "s60", "s61", 2048 * 640 * 2)
    srd_off(a, sFL, "s4", "s5", FL_OFF, FL_SIZE)
    a.e(f"s_mul_i32 s{sOW}, s{sW}, {5*40960}")
    a.e(f"s_lshr_b32 s{t0}, s{sW}, 1")
    a.e(f"s_mul_i32 s{t0}, s{t0}, {RG}")
    a.e(f"s_and_b32 s{t1}, s{sW}, 1")
    a.e(f"s_mul_i32 s{t1}, s{t1}, 25600")
    a.e(f"s_add_u32 s{t0}, s{t0}, s{t1}")
    if 'B' not in X2:
        a.e("s_barrier")
    for r in range(5):
        for q in range(5):
            a.e(f"s_add_u32 m0, s{t0}, {r*5120 + q*768}")
            a.e("s_nop 0")
            a.e(f"buffer_load_dwordx4 v{vOW}, {sr(sWT,4)}, s{sOW} offen offset:{256*q}{SC} lds")
        a.e(f"s_add_u32 s{sOW}, s{sOW}, 40960")
    a.e(f"s_lshl_b32 s{t2}, s{sW}, 8")
    a.e(f"v_add_u32 v{vOA}, s{t2}, v{vOA}")
    a.e(f"v_and_b32 v{vYO}, 0x7fff, v{vOA}")
    a.e(f"v_lshrrev_b32 v{vYO}, 1, v{vYO}")
    a.e(f"v_and_b32 v{vBO}, 0xffff8000, v{vOA}")
    a.e(f"v_add_u32 v{vYO}, v{vYO}, v{vBO}")
    a.e(f"v_add_u32 v{vBO}, 16384, v{vYO}")
    a.e(f"v_add_u32 v{vT+2}, {RG}, v{vL16}")
    a.e(f"v_mov_b32 v{vT+1}, 1")
    a.e(f"s_lshr_b32 s{t2}, s2, 5")
    a.e(f"s_lshl_b32 s{t2}, s{t2}, 5")
    a.e(f"s_add_u32 s{t2}, s{t2}, s{sH}")
    a.e(f"s_lshl_b32 s{t2}, s{t2}, 2")
    a.e(f"s_lshr_b32 s{t3}, s{sRB}, 2")
    a.e(f"s_lshl_b32 s{t3}, s{t3}, 7")
    a.e(f"v_lshlrev_b32 v{vT+4}, 2, v{vLANE}")
    a.e(f"v_add_u32 v{vT+4}, s{t3}, v{vT+4}")
    Y = 16
    for m in range(4):
        a.e(f"s_cmp_lg_u32 s{sW}, {m}")
        a.e(f"s_cbranch_scc1 K2_KP{m}")
        for i in range(20):
            a.e(f"v_mov_b32 v{Y+i}, v{ACC+20*m+i}")
        a.lab(f"K2_KP{m}")
    a.e("s_waitcnt vmcnt(25)")
    U = 36
    for q in range(5):
        for k, src in enumerate((XR + 2 * q, XR + 10 + 2 * q)):
            u = U + 4 * k
            a.e(f"v_lshlrev_b32 v{u}, 16, v{src}")
            a.e(f"v_and_b32 v{u+1}, 0xffff0000, v{src}")
            a.e(f"v_lshlrev_b32 v{u+2}, 16, v{src+1}")
            a.e(f"v_and_b32 v{u+3}, 0xffff0000, v{src+1}")
        for i in range(4):
            a.e(f"v_add_f32 v{Y+4*q+i}, v{Y+4*q+i}, v{U+i}")
        for i in range(4):
            a.e(f"v_add_f32 v{Y+4*q+i}, v{Y+4*q+i}, v{U+4+i}")
    a.e("s_barrier")
    a.e("s_waitcnt vmcnt(0)")
    a.e("s_barrier")
    stamp(a, 1)
    a.e(f"s_cmp_lg_u32 s{sW}, 0")
    a.e("s_cbranch_scc1 K2_NF")
    a.e("s_mov_b64 exec, 1")
    a.e(f"buffer_store_dword v{vT+1}, v{vT}, {sr(sFL,4)}, s{t2} offen sc1")
    a.e("s_mov_b64 exec, -1")
    a.lab("K2_NF")

    def slot_addr(sdst, s_slot):
        a.e(f"s_mul_i32 s{sdst}, s{s_slot}, 5120")
        a.e(f"s_cmp_ge_u32 s{s_slot}, 6")
        a.e(f"s_cselect_b32 s{s_slot}, {RG - 6*5120 + 51200}, 51200")
        a.e(f"s_add_u32 s{sdst}, s{sdst}, s{s_slot}")

    for m in range(4):
        a.e(f"s_cmp_eq_u32 s{sW}, {m}")
        a.e(f"s_cbranch_scc1 K2_SK{m}")
        a.e(f"s_cmp_gt_u32 s{sW}, {m}")
        a.e(f"s_cselect_b32 s{t1}, {3*m-1}, {3*m}")
        a.e(f"s_add_u32 s{t1}, s{t1}, s{sW}")
        slot_addr(t0, t1)
        a.e(f"v_add_u32 v{vT+3}, s{t0}, v{vL16}")
        for q in range(5):
            a.e(f"ds_write_b128 v{vT+3}, {vr(ACC+20*m+4*q,4)} offset:{1024*q}")
        a.lab(f"K2_SK{m}")
    a.e(f"s_mul_i32 s{t1}, s{sW}, 3")
    slot_addr(t0, t1)
    a.e(f"v_add_u32 v{vT+3}, s{t0}, v{vL16}")
    a.e("s_waitcnt lgkmcnt(0)")
    a.e("s_barrier")
    for p in range(3):
        for q in range(5):
            a.e(f"ds_read_b128 {vr(ACC+20*p+4*q,4)}, v{vT+3} offset:{5120*p+1024*q}")
    for p in range(3):
        a.e(f"s_waitcnt lgkmcnt({5*(2-p)})")
        for i in range(20):
            a.e(f"v_add_f32 v{Y+i}, v{Y+i}, v{ACC+20*p+i}")
    a.e(f"s_cmp_lg_u32 s{sW}, 0")
    a.e("s_cbranch_scc1 K2_PW")
    a.e("s_mov_b32 exec_hi, 0")
    gpoll("o", vT + 4, vT + 3)
    a.e("s_mov_b64 exec, -1")
    a.lab("K2_PW")
    a.e("s_barrier")
    stamp(a, 2)
    YA = [Y + 4 * q for q in range(5)]
    FAr = [88 + 4 * i for i in range(20)]
    FBr = [[36 + 4 * t for t in range(5)], [56 + 4 * t for t in range(5)]]
    a.e(f"s_mov_b32 s{sOA}, 0")
    for ks in range(20):
        if ks < 16:
            a.e(f"buffer_load_dwordx4 {vr(FAr[ks],4)}, v{vOA}, {sr(sA,4)}, s{sOA} offen sc1")
        else:
            a.e(f"buffer_load_dwordx2 {vr(FAr[ks],2)}, v{vYO}, {sr(sA,4)}, s{sOA} offen sc1")
            a.e(f"buffer_load_dwordx2 {vr(FAr[ks]+2,2)}, v{vBO}, {sr(sA,4)}, s{sOA} offen sc1")
        a.e(f"s_add_u32 s{sOA}, s{sOA}, 131072")

    def rdB(ks):
        base, off = (vL16, ks * 5120) if ks < 10 else (vT + 2, (ks - 10) * 5120)
        return [f"ds_read_b128 {vr(FBr[ks&1][t],4)}, v{base} offset:{off+1024*t}" for t in range(5)]

    for ins in rdB(0):
        a.e(ins)
    for ks in range(20):
        if ks < 19:
            for ins in rdB(ks + 1):
                a.e(ins)
        a.e(f"s_waitcnt vmcnt({23-ks if ks < 16 else 2*(19-ks)}) lgkmcnt({5 if ks < 19 else 0})")
        for t in range(5):
            a.e(f"v_mfma_f32_16x16x32_bf16 {vr(YA[t],4)}, {vr(FBr[ks&1][t],4)}, {vr(FAr[ks],4)}, {vr(YA[t],4)}")
    a.e("s_nop 7")
    for t in range(5):
        A_ = YA[t]
        a.e(f"v_cvt_pk_bf16_f32 v{A_}, v{A_}, v{A_+1}")
        a.e(f"v_cvt_pk_bf16_f32 v{A_+1}, v{A_+2}, v{A_+3}")
        a.e(f"buffer_store_dwordx2 {vr(A_,2)}, v{vXO}, {sr(sY,4)}, 0 offen offset:{32*t}")
    k2flush()
    a.e("s_endpgm")

    a.lab("K2_ATT")
    vKa0, vKb0, vV0 = 52, 53, 54
    srd(a, sWS, "s4", "s5", WS_END)
    if "C" in X2:
        NPF = int(os.environ.get("NPF", "8"))
        a.e(f"s_cmp_ge_u32 s2, {NPF}")
        a.e("s_cbranch_scc1 K2_NOCP")
        a.e(f"s_cmp_ge_u32 s{sW}, 6")
        a.e("s_cbranch_scc1 K2_NOCP")
        a.e(f"s_and_b32 s{t0}, s{sW}, 1")
        code_prefetch(a, "k2", "k2_attn_kernel", "CODE_END", 36, t0, vLANE, vT, 60)
        a.lab("K2_NOCP")
    a.e(f"s_lshr_b32 s{sG}, s{sW}, 3")
    a.e(f"s_lshr_b32 s{t1}, s{t1}, 2")
    a.e(f"s_lshl_b32 s{t1}, s{t1}, 3")
    a.e(f"s_and_b32 s{t2}, s{sW}, 3")
    a.e(f"s_lshl_b32 s{t2}, s{t2}, 1")
    a.e(f"s_add_u32 s{sQT}, s{t1}, s{t2}")
    a.e(f"s_mul_i32 s{t0}, s{sH}, 81920")
    a.e(f"s_mul_i32 s{t1}, s{sQT}, 1280")
    a.e(f"s_add_u32 s{t0}, s{t0}, s{t1}")
    if QB_OFF:
        a.e(f"s_add_u32 s{t0}, s{t0}, {hx(QB_OFF)}")
    a.e(f"v_and_b32 v{vT}, 31, v{vLANE}")
    a.e(f"v_lshrrev_b32 v{vT+1}, 5, v{vLANE}")
    a.e(f"v_lshlrev_b32 v{vKb0}, 3, v{vT}")
    a.e(f"v_lshl_add_u32 v{vT+2}, v{vT+1}, 30, v{vKb0}")
    a.e(f"v_add_u32 v{vKb0}, 1024, v{vKb0}")
    a.e(f"v_lshlrev_b32 v{vKa0}, 3, v{vLANE}")
    a.e(f"v_min_u32 v{vT+3}, 20, v{vT}")
    a.e(f"v_bfe_u32 v{vT+4}, v{vT+3}, 1, 3")
    a.e(f"v_xor_b32 v{vT+4}, v{vT+4}, v{vT+1}")
    a.e(f"v_lshlrev_b32 v{vT+4}, 4, v{vT+4}")
    a.e(f"v_lshl_add_u32 v{vV0}, v{vT+3}, 7, v{vT+4}")
    vVV = [vV, 18, 19, 26]
    K2A, V0B, V1B, K2B = 56, 60, 132, 130
    for i in range(1, 4):
        a.e(f"v_xor_b32 v{vVV[i]}, {32*i}, v{vV0}")
    a.e(f"s_mul_i32 s{sOFF}, s{sG}, {32*KVT}")
    a.e(f"s_add_u32 s{sOFF}, s{sOFF}, {30*KVT}")
    a.e(f"s_add_u32 s{t1}, s{sOFF}, {koff(1)}")
    a.e(f"buffer_load_dwordx2 {vr(QA[0],2)}, v{vKa0}, {sr(sWS,4)}, s{t0} offen{SC}")
    a.e(f"buffer_load_dwordx2 {vr(QA[0]+2,2)}, v{vKa0}, {sr(sWS,4)}, s{t0} offen offset:512{SC}")
    a.e(f"buffer_load_dwordx2 {vr(QB[0],2)}, v{vT+2}, {sr(sWS,4)}, s{t0} offen offset:1024{SC}")
    a.e(f"buffer_load_dwordx2 {vr(KA,2)}, v{vKa0}, {sr(sKV,4)}, s{sOFF} offen{SC}")
    a.e(f"buffer_load_dwordx2 {vr(KA+2,2)}, v{vKa0}, {sr(sKV,4)}, s{sOFF} offen offset:512{SC}")
    a.e(f"buffer_load_dwordx2 {vr(KB,2)}, v{vKb0}, {sr(sKV,4)}, s{sOFF} offen{SC}")
    a.e(f"buffer_load_dwordx2 {vr(QA[1],2)}, v{vKa0}, {sr(sWS,4)}, s{t0} offen offset:1280{SC}")
    a.e(f"buffer_load_dwordx2 {vr(QA[1]+2,2)}, v{vKa0}, {sr(sWS,4)}, s{t0} offen offset:{1280+512}{SC}")
    a.e(f"buffer_load_dwordx2 {vr(QB[1],2)}, v{vT+2}, {sr(sWS,4)}, s{t0} offen offset:2304{SC}")
    a.e(f"buffer_load_dwordx2 {vr(K2A,2)}, v{vKa0}, {sr(sKV,4)}, s{t1} offen{SC}")
    a.e(f"buffer_load_dwordx2 {vr(K2A+2,2)}, v{vKa0}, {sr(sKV,4)}, s{t1} offen offset:512{SC}")
    a.e(f"buffer_load_dwordx2 {vr(K2B,2)}, v{vKb0}, {sr(sKV,4)}, s{t1} offen{SC}")
    a.e(f"s_mul_i32 s{t1}, s{sG}, {RG}")
    a.e(f"v_add_u32 v{vKa}, s{t1}, v{vKa0}")
    a.e(f"v_add_u32 v{vKb}, s{t1}, v{vKb0}")
    a.e(f"v_add_u32 v{vV}, s{t1}, v{vV0}")
    for i in range(1, 4):
        a.e(f"v_add_u32 v{vVV[i]}, s{t1}, v{vVV[i]}")
    for i in range(4):
        a.e(f"v_add_u32 v{vT+i}, {15*2*KVT}, v{vVV[i]}")
    for i in range(32):
        a.e(f"v_mov_b32 v{O[0]+i}, 0")
    a.e(f"s_mov_b32 s{sIT}, 0")
    a.e(f"s_mov_b32 s{sBM}, {hx((1 << 1) | (1 << 2) | (1 << 9))}")
    a.e("s_waitcnt vmcnt(6)")
    a.e(f"v_mfma_f32_32x32x16_bf16 {vr(S[0],16)}, {vr(KA,4)}, {vr(QA[0],4)}, 0")
    a.e(f"v_mfma_f32_32x32x8_bf16 {vr(S[0],16)}, {vr(KB,2)}, {vr(QB[0],2)}, {vr(S[0],16)}")
    a.e("s_waitcnt vmcnt(0)")
    a.e("s_nop 7")

    def rdKa(t):
        return [f"ds_read_b64 {vr(KA,2)}, v{vKa} offset:{koff(t)}",
                f"ds_read_b64 {vr(KA+2,2)}, v{vKa} offset:{koff(t)+512}"]

    def rdKb(t):
        return [f"ds_read_b64 {vr(KB,2)}, v{vKb} offset:{koff(t)}"]

    def rdV(m, t):
        return [f"ds_read_b128 {vr(V0 if m == 0 else V1,4)}, v{vVV[2*(t&1)+m]} offset:{voff(t)}"]

    def movs(dst, src, n):
        return [f"v_mov_b32 v{dst+i}, v{src+i}" for i in range(n)]

    def item(x, lt, mode=""):
        Sc, Sn = S[x], S[x ^ 1]

        def ex(lo):
            for i in range(lo, lo + 4):
                a.e(f"v_exp_f32 v{Sc+i}, v{Sc+i}")

        def cv(P, lo):
            a.e(f"v_cvt_pk_bf16_f32 v{P}, v{Sc+lo}, v{Sc+lo+1}")
            a.e(f"v_cvt_pk_bf16_f32 v{P+1}, v{Sc+lo+2}, v{Sc+lo+3}")

        def em(l):
            for ins in l:
                a.e(ins)

        if x == 1 and mode != "1":
            a.e(f"s_waitcnt lgkmcnt({1 if mode == '2' else 2})")
        a.e(f"v_mfma_f32_32x32x16_bf16 {vr(Sn,16)}, {vr(KA,4)}, {vr(QA[x^1],4)}, 0")
        if x == 0:
            em(movs(KA, K2A, 4) if mode == "1" else rdKa(lt + 1))
        ex(0)
        cv(P0, 0)
        if x == 1 and mode != "1":
            a.e(f"s_waitcnt lgkmcnt({0 if mode == '2' else 1})")
        a.e(f"v_mfma_f32_32x32x8_bf16 {vr(Sn,16)}, {vr(KB,2)}, {vr(QB[x^1],2)}, {vr(Sn,16)}")
        if x == 0:
            em(movs(KB, K2B, 2) if mode == "1" else rdKb(lt + 1))
        ex(8)
        cv(P0 + 2, 8)
        if mode == "1" and x == 0:
            a.e("s_barrier")
            stamp(a, 1)
            for i, dst in enumerate((V0, V1, V0B, V1B)):
                a.e(f"ds_read_b128 {vr(dst,4)}, v{vT+i}")
        if not (mode == "1" and x == 0):
            if x == 1 and mode == "":
                a.e("s_waitcnt lgkmcnt(0)")
            a.e(f"v_mfma_f32_32x32x16_bf16 {vr(O[x^1],16)}, {vr(V1,4)}, {vr(P1,4)}, {vr(O[x^1],16)}")
            if x == 0:
                em(movs(V1, V1B, 4) if mode == "2" else rdV(1, lt))
        ex(4)
        cv(P1, 4)
        if x == 0 and mode == "":
            a.e("s_waitcnt lgkmcnt(4)")
        if x == 0 and mode == "1":
            a.e("s_waitcnt lgkmcnt(0)")
        a.e(f"v_mfma_f32_32x32x16_bf16 {vr(O[x],16)}, {vr(V0,4)}, {vr(P0,4)}, {vr(O[x],16)}")
        if x == 1:
            em(movs(V0, V0B, 4) if mode == "1" else rdV(0, lt + 1))
        ex(12)
        cv(P1 + 2, 12)

    BUNCH = False
    a.e("s_setprio 2")
    item(0, -2, "1")
    item(1, -2, "1")
    a.e("s_barrier")
    if ONE and HSM == "2":
        a.e("s_cmp_eq_u32 s72, 0")
        a.e("s_cbranch_scc1 K2_NOHS")
        for p in range(2):
            for mt in range(4):
                src = (152 if p == 0 else 136) + 4 * mt
                a.e(f"buffer_store_dwordx4 {vr(src,4)}, v{128+p}, {sr(sWS,4)}, 0 offen offset:{256*mt} sc1")
        a.lab("K2_NOHS")
    item(0, -1, "2")
    item(1, -1, "2")
    a.raw(".p2align 6")
    a.lab("K2_LOOP")
    NT = 6
    for t in range(NT):
        if t % 3 == 0:
            k = t // 3
            a.e(f"s_bitcmp1_b32 s{sBM}, s{sIT}")
            a.e(f"s_cbranch_scc1 K2_BAR{k}")
            a.lab(f"K2_BODY{k}")
            a.e(f"s_add_u32 s{sIT}, s{sIT}, 1")
        for x in range(2):
            a.e(f"s_setprio {2 - x}")
            item(x, t)
    a.e(f"v_add_u32 v{vKa}, {KVT*NT}, v{vKa}")
    a.e(f"v_add_u32 v{vKb}, {KVT*NT}, v{vKb}")
    for i in range(4):
        a.e(f"v_add_u32 v{vVV[i]}, {KVT*NT}, v{vVV[i]}")
    a.e(f"s_cmp_lt_u32 s{sIT}, 10")
    a.e("s_cbranch_scc1 K2_LOOP")
    stamp(a, 3)
    a.e("s_nop 1")
    if BUNCH:
        a.e(f"v_mfma_f32_32x32x16_bf16 {vr(O[1],16)}, {vr(V0,4)}, {vr(PP[1],4)}, {vr(O[1],16)}")
        a.e(f"v_mfma_f32_32x32x16_bf16 {vr(O[1],16)}, {vr(V1,4)}, {vr(PP[1]+4,4)}, {vr(O[1],16)}")
    else:
        a.e(f"v_mfma_f32_32x32x16_bf16 {vr(O[1],16)}, {vr(V1,4)}, {vr(P1,4)}, {vr(O[1],16)}")
    a.e(f"s_and_b32 s{t2}, s{sW}, 3")
    a.e(f"s_lshl_b32 s{t2}, s{t2}, 12")
    a.e(f"s_add_u32 s{t2}, s{t2}, 51200")
    a.e(f"s_mul_i32 s{t0}, s{sG}, {RG}")
    a.e(f"s_add_u32 s{t0}, s{t0}, s{t2}")
    a.e(f"s_xor_b32 s{t1}, s{sG}, 1")
    a.e(f"s_mul_i32 s{t1}, s{t1}, {RG}")
    a.e(f"s_add_u32 s{t1}, s{t1}, s{t2}")
    a.e(f"v_add_u32 v{vT}, s{t0}, v{vL16}")
    a.e(f"v_add_u32 v{vT+1}, s{t1}, v{vL16}")
    a.e(f"s_add_u32 s{sQT}, s{sQT}, s{sG}")
    a.e(f"s_cmp_eq_u32 s{sG}, 1")
    a.e("s_cbranch_scc1 K2_X1")
    a.e("s_nop 3")
    for q in range(4):
        a.e(f"ds_write_b128 v{vT}, {vr(O[1]+4*q,4)} offset:{1024*q}")
    a.e("s_branch K2_X2")
    a.lab("K2_X1")
    for q in range(4):
        a.e(f"ds_write_b128 v{vT}, {vr(O[0]+4*q,4)} offset:{1024*q}")
    a.e("s_nop 1")
    for i in range(16):
        a.e(f"v_mov_b32 v{O[0]+i}, v{O[1]+i}")
    for i in range(4):
        a.e(f"v_mov_b32 v{QA[0]+i}, v{QA[1]+i}")
    for i in range(2):
        a.e(f"v_mov_b32 v{QB[0]+i}, v{QB[1]+i}")
    a.lab("K2_X2")
    OO = O[0]
    sS0, sS1 = 34, 35
    a.e(f"s_lshl_b32 s{t0}, s{sH}, 16")
    a.e(f"s_add_u32 s{sS0}, s{t0}, {hx(AB_OFF)}")
    a.e(f"s_lshl_b32 s{t0}, s{sH}, 14")
    a.e(f"s_add_u32 s{sS1}, s{t0}, {hx(AB_OFF + 64*32768)}")
    a.e(f"s_lshl_b32 s{t3}, s{sQT}, 9")
    vSA0, vSA1 = 56, 57
    a.e(f"v_and_b32 v{vT+2}, 31, v{vLANE}")
    a.e(f"v_lshlrev_b32 v{vT+2}, 4, v{vT+2}")
    a.e(f"v_add_u32 v{vT+2}, s{t3}, v{vT+2}")
    a.e(f"v_lshrrev_b32 v{vT+3}, 5, v{vLANE}")
    a.e(f"v_lshl_add_u32 v{vSA0}, v{vT+3}, 15, v{vT+2}")
    a.e(f"v_lshrrev_b32 v{vT+2}, 1, v{vT+2}")
    a.e(f"v_lshl_add_u32 v{vSA1}, v{vT+3}, 30, v{vT+2}")
    a.e("s_waitcnt lgkmcnt(0)")
    a.e("s_barrier")
    for q in range(4):
        a.e(f"ds_read_b128 {vr(S[0]+4*q,4)}, v{vT+1} offset:{1024*q}")
    a.e(f"v_mov_b32 v{vT+3}, {hx(f32(2.0**-60))}")
    a.e(f"v_mov_b32 v{vT+4}, {hx(f32(2.0**100))}")
    a.e(f"v_mov_b32 v{vT+5}, {hx(f32(2.0**120))}")
    a.e("s_waitcnt lgkmcnt(0)")
    for i in range(13):
        a.e(f"v_add_f32 v{OO+i}, v{OO+i}, v{S[0]+i}")
    a.e(f"v_max3_f32 v{vT+1}, abs(v{OO}), abs(v{OO+1}), abs(v{OO+2})")
    for i in range(3, 11, 2):
        a.e(f"v_max3_f32 v{vT+1}, abs(v{OO+i}), abs(v{OO+i+1}), v{vT+1}")
    a.e(f"v_max_f32 v{vT+1}, abs(v{OO+11}), v{vT+1}")
    a.e(f"v_add_f32 v{vT+2}, v{OO}, v{OO+1}")
    for i in range(2, 12):
        a.e(f"v_add_f32 v{vT+2}, v{vT+2}, v{OO+i}")
    a.e(f"v_cmp_gt_f32 {sr(t0,2)}, v{OO+12}, v{vT+3}")
    a.e(f"v_cmp_lt_f32 {sr(t2,2)}, v{OO+12}, v{vT+4}")
    a.e(f"v_cmp_lt_f32 vcc, v{vT+1}, v{vT+5}")
    a.e("s_nop 1")
    a.e(f"s_and_b64 {sr(t0,2)}, {sr(t0,2)}, {sr(t2,2)}")
    a.e(f"s_and_b64 {sr(t0,2)}, {sr(t0,2)}, vcc")
    a.e(f"v_cmp_o_f32 vcc, v{vT+2}, v{vT+2}")
    a.e("s_nop 1")
    a.e(f"s_and_b64 {sr(t0,2)}, {sr(t0,2)}, vcc")
    a.e(f"s_cmp_eq_u64 {sr(t0,2)}, -1")
    if 'B' not in X2:
        a.e("s_cbranch_scc0 K2_SLOW")
    a.lab("K2_FIN")
    a.e(f"v_rcp_f32 v{vT}, v{OO+12}")
    a.e("s_nop 0")
    for i in range(12):
        a.e(f"v_mul_f32 v{OO+i}, v{OO+i}, v{vT}")
    for i in range(6):
        a.e(f"v_cvt_pk_bf16_f32 v{OO+i}, v{OO+2*i}, v{OO+2*i+1}")
    sc = " sc1" if FUSE else ""
    a.e(f"buffer_store_dwordx4 {vr(OO,4)}, v{vSA0}, {sr(sWS,4)}, s{sS0} offen{sc}")
    a.e(f"buffer_store_dwordx2 {vr(OO+4,2)}, v{vSA1}, {sr(sWS,4)}, s{sS1} offen{sc}")
    if FUSE:
        a.e("s_waitcnt vmcnt(0)")
        a.e("s_barrier")
    k2flush()
    a.lab("K2_END")
    a.e("s_endpgm")
    a.lab("K2_BAR1")
    a.e("s_barrier")
    stamp(a, 2)
    a.e("s_branch K2_BODY1")
    a.lab("K2_BAR0")
    a.e("s_waitcnt vmcnt(0)")
    a.e("s_barrier")
    stamp(a, 2)
    if ONE:
        a.e("s_cmp_eq_u32 s72, 0")
        a.e("s_cbranch_scc1 K2_BODY0")
        a.e(f"s_cmp_lg_u32 s{sW}, 8")
        a.e("s_cbranch_scc1 K2_BODY0")
        a.e("v_mov_b32 v128, 0")
        a.e("v_mov_b32 v129, 1")
        a.e("s_mov_b64 exec, 1")
        a.e(f"buffer_store_dword v129, v128, {sr(sWS,4)}, s72 offen sc1")
        a.e("s_mov_b64 exec, -1")
        a.e("s_mov_b32 s72, 0")
    a.e("s_branch K2_BODY0")
    a.lab("K2_SLOW")
    vM = 58
    Sc = S[0]
    for ps in range(2):
        if ps == 0:
            a.e(f"v_mov_b32 v{vM}, 0xff800000")
        else:
            for i in range(16):
                a.e(f"v_mov_b32 v{OO+i}, 0")
        a.e(f"s_mov_b32 s{sOFF}, 0")
        a.e(f"s_mov_b32 s{sIT}, 0")
        a.lab(f"K2_SL{ps}")
        a.e(f"s_bitcmp1_b32 s{sIT}, 0")
        a.e(f"s_cselect_b32 s{t0}, 1344, 0")
        a.e(f"s_cselect_b32 s{t1}, {1280-KVT}, 1280")
        a.e(f"s_cselect_b32 s{t2}, 64, 0")
        a.e(f"s_add_u32 s{t0}, s{t0}, s{sOFF}")
        a.e(f"s_add_u32 s{t1}, s{t1}, s{sOFF}")
        a.e(f"s_add_u32 s{sIT}, s{sIT}, 1")
        a.e(f"v_xor_b32 v{vT+1}, s{t2}, v{vV0}")
        a.e(f"v_xor_b32 v{vT+2}, 32, v{vT+1}")
        a.e(f"buffer_load_dwordx2 {vr(KA,2)}, v{vKa0}, {sr(sKV,4)}, s{t0} offen{SC}")
        a.e(f"buffer_load_dwordx2 {vr(KA+2,2)}, v{vKa0}, {sr(sKV,4)}, s{t0} offen offset:512{SC}")
        a.e(f"buffer_load_dwordx2 {vr(KB,2)}, v{vKb0}, {sr(sKV,4)}, s{t0} offen{SC}")
        if ps == 1:
            a.e(f"buffer_load_dwordx4 {vr(V0,4)}, v{vT+1}, {sr(sKV,4)}, s{t1} offen{SC}")
            a.e(f"buffer_load_dwordx4 {vr(V1,4)}, v{vT+2}, {sr(sKV,4)}, s{t1} offen{SC}")
        a.e("s_waitcnt vmcnt(0)")
        a.e(f"v_mfma_f32_32x32x16_bf16 {vr(Sc,16)}, {vr(KA,4)}, {vr(QA[0],4)}, 0")
        a.e(f"v_mfma_f32_32x32x8_bf16 {vr(Sc,16)}, {vr(KB,2)}, {vr(QB[0],2)}, {vr(Sc,16)}")
        a.e("s_nop 15")
        a.e("s_nop 3")
        if ps == 0:
            for i in range(0, 16, 2):
                a.e(f"v_max3_f32 v{vM}, v{Sc+i}, v{Sc+i+1}, v{vM}")
        else:
            for i in range(16):
                a.e(f"v_sub_f32 v{Sc+i}, v{Sc+i}, v{vM}")
            for i in range(16):
                a.e(f"v_exp_f32 v{Sc+i}, v{Sc+i}")
            a.e("s_nop 0")
            for i, g_ in enumerate((0, 2, 1, 3)):
                a.e(f"v_cvt_pk_bf16_f32 v{P0+2*i}, v{Sc+4*g_}, v{Sc+4*g_+1}")
                a.e(f"v_cvt_pk_bf16_f32 v{P0+2*i+1}, v{Sc+4*g_+2}, v{Sc+4*g_+3}")
            a.e("s_nop 1")
            a.e(f"v_mfma_f32_32x32x16_bf16 {vr(OO,16)}, {vr(V0,4)}, {vr(P0,4)}, {vr(OO,16)}")
            a.e(f"v_mfma_f32_32x32x16_bf16 {vr(OO,16)}, {vr(V1,4)}, {vr(P1,4)}, {vr(OO,16)}")
            a.e("s_nop 7")
        a.e(f"s_add_u32 s{sOFF}, s{sOFF}, {KVT}")
        a.e(f"s_cmp_lt_u32 s{sOFF}, {KVH}")
        a.e(f"s_cbranch_scc1 K2_SL{ps}")
        if ps == 0:
            a.e(f"v_mov_b32 v{vT+4}, v{vM}")
            a.e("s_nop 1")
            a.e(f"v_permlane32_swap_b32 v{vM}, v{vT+4}")
            a.e(f"v_max_f32 v{vM}, v{vM}, v{vT+4}")
    a.e("s_nop 15")
    a.e("s_nop 3")
    a.e("s_branch K2_FIN")
    return name, NV, 102 if DIAG else 80, (256, 768, K2_LDS)


K3_LDS = 102400


def gen_k3(a):
    name = "k3_out_kernel"
    kernel_header(a, name)
    sA, sWT, sY, sO = 12, 16, 20, 24
    sW, sRB, sCB, sOW, sM = 32, 33, 34, 35, 36
    t0, t1, t2, t3 = 38, 39, 40, 41
    vLANE, vOA, vOW, vYO, vOO, vRD = 1, 2, 3, 4, 5, 6
    vT = 8
    ACC = 12
    FB = 32
    FA = 72
    NV = 152
    k3flush = lambda: (stamp(a, 4), stamp_flush(a, 2, 8, sW, "s6", "s7", 8, 2))

    a.e("s_cmp_ge_u32 s2, 256")
    a.e("s_cbranch_scc1 K3_END")
    stamp(a, 0)
    a.e("s_load_dwordx2 s[4:5], s[0:1], 64")
    a.e("s_load_dwordx2 s[6:7], s[0:1], 80")
    a.e(f"v_and_b32 v{vLANE}, 63, v0")
    a.e(f"v_lshrrev_b32 v{vT}, 6, v0")
    a.e(f"s_and_b32 s{t0}, s2, 7")
    a.e(f"v_readfirstlane_b32 s{sW}, v{vT}")
    a.e(f"s_lshr_b32 s{t1}, s2, 3")
    a.e(f"s_lshl_b32 s{t0}, s{t0}, 2")
    a.e(f"s_and_b32 s{t2}, s{t1}, 3")
    a.e(f"s_add_u32 s{sRB}, s{t0}, s{t2}")
    a.e(f"s_lshr_b32 s{sCB}, s{t1}, 2")
    a.e(f"v_and_b32 v{vT}, 15, v{vLANE}")
    a.e(f"v_lshrrev_b32 v{vT+1}, 4, v{vLANE}")
    a.e(f"s_cmp_ge_u32 s{sW}, 4")
    a.e("s_cbranch_scc1 K3_COMP")
    a.e(f"s_mul_i32 s{t0}, s{sCB}, 80")
    a.e(f"v_add_u32 v{vOW}, s{t0}, v{vT}")
    a.e(f"v_lshlrev_b32 v{vOW}, 4, v{vOW}")
    a.e(f"v_mul_u32_u24 v{vT+2}, 10240, v{vT+1}")
    a.e(f"v_add_u32 v{vOW}, v{vOW}, v{vT+2}")
    a.e(f"s_mul_i32 s{sOW}, s{sW}, 40960")
    a.e(f"s_mul_i32 s{sM}, s{sW}, 5120")
    a.e("s_waitcnt lgkmcnt(0)")
    stamp(a, 5)
    srd_off(a, sWT, "s6", "s7", WT_OFF, 80 * 10240)
    for r in range(5):
        for q in range(5):
            a.e(f"s_add_u32 m0, s{sM}, {r*20480 + q*768}")
            a.e("s_nop 0")
            a.e(f"buffer_load_dwordx4 v{vOW}, {sr(sWT,4)}, s{sOW} offen offset:{256*q} lds")
        a.e(f"s_add_u32 s{sOW}, s{sOW}, {4*40960}")
        if r >= 2:
            a.e(f"s_waitcnt vmcnt(10)")
            a.e("s_barrier")
    a.e(f"s_waitcnt vmcnt(5)")
    a.e("s_barrier")
    a.e(f"s_waitcnt vmcnt(0)")
    a.e("s_barrier")
    if DIAG:
        stamp(a, 1); stamp(a, 2); stamp(a, 3)
        k3flush()
    a.e("s_endpgm")
    a.lab("K3_COMP")
    a.e(f"s_sub_u32 s{t3}, s{sW}, 4")
    a.e(f"s_lshl_b32 s{t0}, s{sRB}, 6")
    a.e(f"s_lshl_b32 s{t1}, s{t3}, 4")
    a.e(f"s_add_u32 s{t0}, s{t0}, s{t1}")
    a.e(f"v_add_u32 v{vT+2}, s{t0}, v{vT}")
    a.e(f"v_lshlrev_b32 v{vOA}, 4, v{vT+2}")
    a.e(f"v_lshl_add_u32 v{vOA}, v{vT+1}, 15, v{vOA}")
    a.e(f"s_lshl_b32 s{t0}, s{sRB}, 3")
    a.e(f"s_add_u32 s{t0}, s{t0}, s{sCB}")
    a.e(f"s_mul_i32 s{t0}, s{t0}, 20480")
    a.e(f"s_mul_i32 s{t1}, s{t3}, 5120")
    a.e(f"s_add_u32 s{t0}, s{t0}, s{t1}")
    a.e(f"v_lshlrev_b32 v{vRD}, 4, v{vLANE}")
    a.e(f"v_add_u32 v{vYO}, s{t0}, v{vRD}")
    a.e(f"s_mul_i32 s{t0}, s{sCB}, 160")
    a.e(f"v_mul_u32_u24 v{vOO}, 1280, v{vT+2}")
    a.e(f"v_lshl_add_u32 v{vOO}, v{vT+1}, 3, v{vOO}")
    a.e(f"v_add_u32 v{vOO}, s{t0}, v{vOO}")
    a.e("s_waitcnt lgkmcnt(0)")
    stamp(a, 5)
    srd_off(a, sA, "s6", "s7", AB_OFF, 80 * 32768)
    srd_off(a, sY, "s6", "s7", Y_OFF, Y_SIZE)
    srd(a, sO, "s4", "s5", 2048 * 640 * 2)
    a.e(f"s_mov_b32 s{t0}, 0")
    a.e(f"s_movk_i32 s{t1}, 4096")
    def ldA(r):
        for ks in range(4 * r, 4 * r + 4):
            a.e(f"buffer_load_dwordx4 {vr(FA+4*ks,4)}, v{vOA}, {sr(sA,4)}, s{t0} offen")
            a.e(f"s_add_u32 s{t0}, s{t0}, {4*32768}")

    ldA(0)
    for t in range(5):
        so, off = ("0", 1024 * t) if t < 4 else (f"s{t1}", 0)
        a.e(f"buffer_load_dwordx4 {vr(ACC+4*t,4)}, v{vYO}, {sr(sY,4)}, {so} offen offset:{off}")
    ldA(1)
    ldA(2)
    a.e(f"v_add_u32 v{vT}, 51200, v{vRD}")

    def rdB(ks):
        base, off = (vRD, ks * 5120) if ks < 10 else (vT, (ks - 10) * 5120)
        return [f"ds_read_b128 {vr(FB+20*(ks&1)+4*t,4)}, v{base} offset:{off+1024*t}" for t in range(5)]

    for r in range(5):
        a.e("s_barrier")
        if r == 0:
            stamp(a, 1)
        for ins in rdB(4 * r):
            a.e(ins)
        if r < 2:
            ldA(r + 3)
        a.e(f"s_waitcnt vmcnt({[12, 12, 8, 4, 0][r]})")
        for k in range(4):
            ks = 4 * r + k
            if k < 3:
                for ins in rdB(ks + 1):
                    a.e(ins)
                a.e("s_waitcnt lgkmcnt(5)")
            else:
                a.e("s_waitcnt lgkmcnt(0)")
            for t in range(5):
                a.e(f"v_mfma_f32_16x16x32_bf16 {vr(ACC+4*t,4)}, {vr(FB+20*(ks&1)+4*t,4)}, {vr(FA+4*ks,4)}, {vr(ACC+4*t,4)}")
    stamp(a, 2)
    stamp(a, 3)
    a.e("s_nop 7")
    for t in range(5):
        A = ACC + 4 * t
        a.e(f"v_cvt_pk_bf16_f32 v{A}, v{A}, v{A+1}")
        a.e(f"v_cvt_pk_bf16_f32 v{A+1}, v{A+2}, v{A+3}")
        a.e(f"buffer_store_dwordx2 {vr(A,2)}, v{vOO}, {sr(sO,4)}, 0 offen offset:{32*t}")
    k3flush()
    a.lab("K3_END")
    a.e("s_endpgm")
    return name, NV, 102 if DIAG else 48, (256, 512, K3_LDS)


HEADER = """; Kernarg layout for this problem (88 bytes, ptrs only, base s[0:1]):
"""


def main(out_path):
    a = Asm()
    ks = []
    gens = (gen_k1, gen_k2, gen_k3) if "u" in os.environ.get("K2X", "") else (gen_k1, gen_k2)
    for g in gens:
        ks.append(g(a))
    s = HEADER
    if ONE:
        ks = [(ks[0][0], 168, 102 if DIAG else 80, (256, 768, K2_LDS))]
        if os.environ.get("LIST"):
            s += f"; @launch kernel={ks[0][0]} grid=(256,1,1) block=(768,1,1) lds={K2_LDS}\n"
        else:
            s += f"; @launch grid=(256,1,1) block=(768,1,1) lds={K2_LDS}\n"
    else:
        for name, nv, ns, (gx, bx, lds) in ks:
            s += f"; @launch kernel={name} grid=({gx},1,1) block=({bx},1,1) lds={lds}\n"
    s += '.amdgcn_target "amdgcn-amd-amdhsa--gfx950"\n.text\n'
    s += a.text()
    s += "CODE_END:\n    s_endpgm\n"
    s += '.section .rodata,"a"\n'
    for name, nv, ns, _ in ks:
        s += kd(name, nv, ns)
    open(out_path, "w").write(s)


if __name__ == "__main__":
    main(sys.argv[1] if len(sys.argv) > 1 else f"cdna_kernels/{NAME}.s")
```

```python
import struct, math, sys

NAME = "parallel_sum__mha_block__dense_activation_gelu__prompt"

QB_OFF = 0
KV_OFF = 0x280000
KVT = 2624
KVH = 64 * KVT
VP = 336


def koff(t):
    return KVT * t + (1344 if t & 1 else 0)


def voff(t):
    return 2 * KVT * (t >> 1) + 1280


AB_OFF = 0x7A0000
WT_OFF = 0x10E0000
assert KV_OFF + 32 * KVH == AB_OFF
FL_OFF = WT_OFF + 296 * 10240
FQ_REL = 1024
FH_REL = 9216
FL_SIZE = 12288
WS_END = FL_OFF + FL_SIZE
assert FL_OFF % 128 == 0
AB_SIZE = 296 * 32768
WT_SIZE = 296 * 10240
assert AB_OFF + AB_SIZE == WT_OFF


def f32(x):
    return struct.unpack("<I", struct.pack("<f", x))[0]


def hx(x):
    return "0x%08x" % (x & 0xFFFFFFFF)


class Asm:
    def __init__(self):
        self.lines = []

    def e(self, s):
        if s.startswith("s_cselect_b32"):
            ops = [x.strip() for x in s[len("s_cselect_b32"):].split(",")]

            def is_lit(x):
                try:
                    v = int(x, 0)
                except ValueError:
                    return False
                return not (-16 <= v <= 64)
            if is_lit(ops[1]) and is_lit(ops[2]):
                self.lines.append(f"    s_mov_b32 {ops[0]}, {ops[2]}")
                s = f"s_cselect_b32 {ops[0]}, {ops[1]}, {ops[0]}"
        self.lines.append("    " + s)

    def lab(self, s):
        self.lines.append(s + ":")

    def c(self, s):
        self.lines.append("    ; " + s)

    def raw(self, s):
        self.lines.append(s)

    def text(self):
        return "\n".join(self.lines) + "\n"


def vr(a, n):
    return f"v[{a}:{a+n-1}]" if n > 1 else f"v{a}"


def sr(a, n):
    return f"s[{a}:{a+n-1}]" if n > 1 else f"s{a}"


def kernel_header(a, name):
    a.raw(".p2align 8")
    a.raw(f".globl {name}")
    a.raw(f".type {name},@function")
    a.lab(name)


def kd(name, nv, ns):
    acc = (nv + 3) // 4 * 4
    return f""".p2align 6
.amdhsa_kernel {name}
  .amdhsa_next_free_vgpr {nv}
  .amdhsa_next_free_sgpr {ns}
  .amdhsa_accum_offset {acc}
  .amdhsa_group_segment_fixed_size 0
  .amdhsa_kernarg_size 88
  .amdhsa_user_sgpr_count 2
  .amdhsa_user_sgpr_kernarg_segment_ptr 1
  .amdhsa_system_sgpr_workgroup_id_x 1
.end_amdhsa_kernel
"""


def srd(a, d, lo, hi, size):
    a.e(f"s_mov_b32 s{d}, {lo}")
    a.e(f"s_mov_b32 s{d+1}, {hi}")
    a.e(f"s_mov_b32 s{d+2}, {hx(size)}")
    a.e(f"s_mov_b32 s{d+3}, 0x00020000")


def srd_off(a, d, lo, hi, off, size):
    a.e(f"s_add_u32 s{d}, {lo}, {hx(off)}")
    a.e(f"s_addc_u32 s{d+1}, {hi}, 0")
    a.e(f"s_mov_b32 s{d+2}, {hx(size)}")
    a.e(f"s_mov_b32 s{d+3}, 0x00020000")


def round_bf16_inplace(a, v, vtmp=None):
    a.e(f"v_cvt_pk_bf16_f32 v{v}, v{v}, v{v}")
    a.e(f"v_lshlrev_b32 v{v}, 16, v{v}")


OOB = 0x40000000


def code_prefetch(a, tag, start, end, sp, s_chunk, vlane, vtmp, vdst):
    a.e(f"s_getpc_b64 s[{sp}:{sp+1}]")
    a.lab(f"PCH_{tag}")
    a.e(f"s_sub_u32 s{sp}, s{sp}, PCH_{tag}-{start}")
    a.e(f"s_subb_u32 s{sp+1}, s{sp+1}, 0")
    a.e(f"s_lshl_b32 s{s_chunk}, s{s_chunk}, 13")
    a.e(f"v_lshlrev_b32 v{vtmp}, 7, v{vlane}")
    a.e(f"v_add_u32 v{vtmp}, s{s_chunk}, v{vtmp}")
    a.e(f"v_cmp_gt_u32 vcc, {end}-{start}, v{vtmp}")
    a.e(f"s_and_saveexec_b64 s[{sp+2}:{sp+3}], vcc")
    a.e(f"s_cbranch_execz PCS_{tag}")
    a.e(f"global_load_dword v{vdst}, v{vtmp}, s[{sp}:{sp+1}]")
    a.lab(f"PCS_{tag}")
    a.e(f"s_mov_b64 exec, s[{sp+2}:{sp+3}]")
import os
DIAG = int(os.environ.get("DIAG", "0"))
ONE = int(os.environ.get("ONE", "0"))
SC = " sc1" if ONE else ""
WB = os.environ.get("WB", "")
SCQ = "" if "Q" in WB else SC
SCF = "" if "F" in WB else SC
SCT = "" if "T" in WB else SC
HSM = os.environ.get("HSM", "2")
K1_SYN = 153600
POLL_MAX = 1 << 21
DIAG_OFF = 0x2000000
SD = 84


DBG = int(os.environ.get("DBG", "0"))


def dstamp(a, k, inv=False):
    if not DBG:
        return
    a.e("s_load_dwordx2 s[80:81], s[0:1], 72")
    a.e("s_memrealtime s[84:85]")
    a.e("s_waitcnt lgkmcnt(0)")
    a.e("s_mov_b32 s82, 256")
    a.e("s_mov_b32 s83, 0x00020000")
    if inv:
        a.e("s_not_b32 s84, s84")
    a.e("s_mov_b64 s[86:87], exec")
    a.e("s_mov_b64 exec, 1")
    a.e("v_mov_b32 v14, s84")
    a.e("v_mov_b32 v15, 0")
    a.e(f"buffer_atomic_umax v14, v15, s[80:83], 0 offen offset:{4*k} sc1")
    a.e("s_mov_b64 exec, s[86:87]")


def stamp(a, i):
    if DIAG:
        a.e(f"s_memtime s[{SD+2*i}:{SD+2*i+1}]")
        if i == 0:
            a.e(f"s_memrealtime s[{SD+12}:{SD+13}]")
        if i == 4:
            a.e(f"s_memrealtime s[{SD+14}:{SD+15}]")


def stamp_flush(a, kidx, wpw, sW, ws_lo, ws_hi, n, vtmp):
    if not DIAG:
        return
    a.e("s_waitcnt lgkmcnt(0)")
    a.e(f"s_add_u32 s80, {ws_lo}, {hx(DIAG_OFF + kidx*4096*64)}")
    a.e(f"s_addc_u32 s81, {ws_hi}, 0")
    a.e(f"s_mov_b32 s82, {hx(4096*64)}")
    a.e("s_mov_b32 s83, 0x00020000")
    a.e(f"s_mul_i32 s100, s2, {wpw}")
    a.e(f"s_add_u32 s100, s100, s{sW}")
    a.e("s_lshl_b32 s100, s100, 6")
    a.e(f"v_mov_b32 v{vtmp}, 0")
    for i in range(n):
        a.e(f"v_mov_b32 v{vtmp+1}, s{SD+2*i}")
        a.e(f"buffer_store_dword v{vtmp+1}, v{vtmp}, s[80:83], s100 offen offset:{4*i}")

K1_BH = 8 * 1056
K1_SLOT = 16384 + 4 * K1_BH
K1_NS = 3
K1_SCR = K1_SLOT * K1_NS
K1_LDS = K1_SCR + 2048 + 256
QSCALE = math.log2(math.e) / math.sqrt(20.0)


def gen_k1(a):
    name = NAME + "_kernel" if ONE else "k1_gemm1_kernel"
    kernel_header(a, name)
    X = os.environ.get("K1X", "")
    sX, sB0, sB1, sWS, sT, sBI = 20, 24, 28, 32, 36, 40
    sW, sMH, sHALF, sRB, sCB, sNQ, sT0 = 44, 45, 46, 47, 48, 49, 50
    sOA, sOB0, sOB1 = 51, 52, 53
    sWA, sWB, sRD, sTS, sIT, sDA, sDB = 54, 55, 56, 57, 58, 59, 60
    t0, t1, t2, t3, t4, t5, t6, t7 = 62, 63, 64, 65, 66, 67, 68, 69
    sC1 = 70
    sTYP = 73
    sOA2, sOB0b, sOB1b = 76, 77, 78
    vLANE = 1
    vA0e, vA0o, vB0 = 2, 3, 4
    vAe, vAo, vB = 5, 6, 7
    vS = 8
    vSA = 12
    vONES = 20
    vCS = 24
    vU = 32
    FA = [40, 72]
    vT = 72
    ACC = 104
    NV = 168

    def acc(j, mt):
        return ACC + (j * 4 + mt) * 4

    def fa(s, mt):
        return FA[s] + mt * 4

    def fb(s, j):
        return FA[s] + 16 + j * 4

    def emit(lst):
        for ins in lst:
            a.e(ins)

    k1flush = lambda: (stamp(a, 4), stamp_flush(a, 0, 12, sW, "s18", "s19", 8, 2))

    def zpoll(tag, sD, vz, vd):
        srd(a, sD, "s10", "s11", 256)
        a.e(f"v_mov_b32 v{vz}, 0")
        a.e(f"s_mov_b32 s{t7}, 0")
        a.lab(f"ZP_{tag}")
        a.e(f"buffer_load_dword v{vd}, v{vz}, {sr(sD,4)}, 0 offen sc1")
        a.e(f"s_add_u32 s{t7}, s{t7}, 1")
        a.e("s_waitcnt vmcnt(0)")
        a.e(f"v_readfirstlane_b32 s{t6}, v{vd}")
        a.e(f"s_cmp_ge_u32 s{t7}, {POLL_MAX}")
        a.e(f"s_cbranch_scc1 ZD_{tag}")
        a.e(f"s_cmp_eq_u32 s{t6}, 0")
        a.e(f"s_cbranch_scc1 ZP_{tag}")
        a.lab(f"ZD_{tag}")

    def finish(kind):
        k1flush()
        if not ONE:
            a.e("s_endpgm")
            return
        if kind == "F":
            a.e("s_branch K1_SIGF")
        else:
            a.e("s_branch K1_SIGQ")

    def finalize(s1, s2, nm, rs):
        a.e(f"v_mul_f32 v{s1}, {hx(f32(1.0/640))}, v{s1}")
        a.e(f"v_mul_f32 v{s2}, {hx(f32(1.0/640))}, v{s2}")
        a.e(f"v_fma_f32 v{s2}, -v{s1}, v{s1}, v{s2}")
        a.e(f"v_max_f32 v{s2}, 0, v{s2}")
        round_bf16_inplace(a, s2)
        a.e(f"v_add_f32 v{s2}, {hx(f32(1e-5))}, v{s2}")
        round_bf16_inplace(a, s2)
        a.e(f"v_sqrt_f32 v{s2}, v{s2}")
        round_bf16_inplace(a, s1)
        round_bf16_inplace(a, s2)
        a.e(f"v_rcp_f32 v{rs}, v{s2}")
        a.e(f"v_sub_f32 v{nm}, 0, v{s1}")


    a.e("s_cmp_ge_u32 s2, 256")
    a.e("s_cbranch_scc1 K1_END")
    stamp(a, 0)
    a.e("s_load_dwordx4 s[4:7], s[0:1], 0")
    a.e("s_load_dwordx2 s[8:9], s[0:1], 16")
    a.e("s_load_dwordx4 s[12:15], s[0:1], 32")
    a.e("s_load_dwordx2 s[16:17], s[0:1], 48")
    a.e("s_load_dwordx2 s[18:19], s[0:1], 80")
    if ONE:
        a.e("s_load_dwordx2 s[10:11], s[0:1], 72")
        a.e("s_mov_b32 s72, 0")
        a.e(f"v_mov_b32 v128, {hx(OOB)}")
        a.e(f"v_mov_b32 v129, {hx(OOB)}")
    a.e(f"v_and_b32 v{vLANE}, 63, v0")
    a.e(f"v_lshrrev_b32 v{vT}, 6, v0")
    a.e(f"s_and_b32 s{t0}, s2, 7")
    a.e(f"v_readfirstlane_b32 s{sW}, v{vT}")
    a.e(f"s_lshr_b32 s{t1}, s2, 3")
    a.e(f"s_lshl_b32 s{sRB}, s{t0}, 1")
    a.e(f"s_add_u32 s{sRB}, s{sRB}, s{t1}")
    a.e(f"s_mov_b32 s{sCB}, 15")
    a.e(f"s_cmp_lt_u32 s{t1}, 2")
    a.e("s_cbranch_scc1 K1_TRANS")
    a.e(f"s_lshr_b32 s{t2}, s{t0}, 1")
    a.e(f"s_mul_i32 s{t2}, s{t2}, 30")
    a.e(f"s_add_u32 s{t2}, s{t2}, s{t1}")
    a.e(f"s_sub_u32 s{t2}, s{t2}, 2")
    a.e(f"s_lshr_b32 s{sCB}, s{t2}, 3")
    a.e(f"s_lshl_b32 s{t3}, s{sCB}, 2")
    a.e(f"s_lshr_b32 s{sCB}, s{sCB}, 2")
    a.e(f"s_mul_i32 s{sCB}, s{sCB}, 15")
    a.e(f"s_sub_u32 s{sCB}, s{t3}, s{sCB}")
    a.e(f"s_and_b32 s{t2}, s{t2}, 7")
    a.e(f"s_and_b32 s{t3}, s{t0}, 1")
    a.e(f"s_lshl_b32 s{t3}, s{t3}, 3")
    a.e(f"s_add_u32 s{sRB}, s{t2}, s{t3}")
    a.e(f"s_lshl_b32 s{sT0}, s{sCB}, 3")
    a.e(f"s_min_u32 s{sT0}, s{sT0}, 100")
    a.e(f"s_cmp_ge_u32 s{sW}, 4")
    a.e("s_cbranch_scc1 K1_COMP")
    dstamp(a, 1, True)
    dstamp(a, 2)
    lA = [2, 3]
    lQ = [4, 5]
    lF = [6, 7]
    lBI = 8
    a.e(f"s_lshl_b32 s{t0}, s{sRB}, 7")
    a.e(f"s_lshl_b32 s{t1}, s{sW}, 4")
    a.e(f"s_add_u32 s{t0}, s{t0}, s{t1}")
    a.e(f"v_lshrrev_b32 v{vT}, 3, v{vLANE}")
    a.e(f"v_add_u32 v{vT}, s{t0}, v{vT}")
    a.e(f"v_lshrrev_b32 v{vT+1}, 1, v{vT}")
    a.e(f"v_xor_b32 v{vT+1}, v{vT+1}, v{vLANE}")
    a.e(f"v_and_b32 v{vT+1}, 7, v{vT+1}")
    a.e(f"v_mul_u32_u24 v{vT}, 1280, v{vT}")
    a.e(f"v_lshl_add_u32 v{lA[0]}, v{vT+1}, 4, v{vT}")
    a.e(f"v_xor_b32 v{vT+1}, 4, v{vT+1}")
    a.e(f"v_lshl_add_u32 v{lA[1]}, v{vT+1}, 4, v{vT}")
    a.e(f"v_add_u32 v{lA[1]}, {8*1280}, v{lA[1]}")
    a.e(f"s_lshl_b32 s{sDA}, s{sW}, 11")
    a.e(f"s_and_b32 s{t0}, s{sW}, 1")
    a.e(f"s_lshl_b32 s{t0}, s{t0}, 1")
    a.e(f"s_lshr_b32 s{t1}, s{sW}, 1")
    a.e(f"s_lshl_b32 s{t1}, s{t1}, 3")
    a.e(f"s_or_b32 s{t0}, s{t0}, s{t1}")
    a.e(f"v_bfe_u32 v{vT}, v{vLANE}, 4, 1")
    a.e(f"v_lshlrev_b32 v{vT}, 2, v{vT}")
    a.e(f"v_lshrrev_b32 v{vT+1}, 5, v{vLANE}")
    a.e(f"v_lshl_or_b32 v{vT}, v{vT+1}, 4, v{vT}")
    a.e(f"v_or_b32 v{vT}, s{t0}, v{vT}")
    a.e(f"v_and_b32 v{vT+1}, 15, v{vLANE}")
    a.e(f"v_lshlrev_b32 v{vT+1}, 4, v{vT+1}")
    a.e(f"s_lshl_b32 s{t2}, s{sCB}, 8")
    a.e(f"s_lshl_b32 s{t3}, s{sT0}, 5")
    a.e(f"v_mul_u32_u24 v{lQ[0]}, 3840, v{vT}")
    a.e(f"v_add3_u32 v{lQ[0]}, v{lQ[0]}, v{vT+1}, s{t2}")
    a.e(f"v_add_u32 v{lQ[1]}, 3840, v{lQ[0]}")
    a.e(f"v_mul_u32_u24 v{lF[0]}, 3456, v{vT}")
    a.e(f"v_add3_u32 v{lF[0]}, v{lF[0]}, v{vT+1}, s{t3}")
    a.e(f"v_add_u32 v{lF[1]}, 3456, v{lF[0]}")
    a.e(f"s_mul_i32 s{sDB}, s{sW}, 2112")
    a.e(f"s_add_u32 s{sDB}, s{sDB}, 16384")
    ROT = "O" in X
    if ROT:
        RA, RB_ = int(os.environ.get("ROTA", "1")), int(os.environ.get("ROTB", "3"))
        a.e(f"s_and_b32 s{t0}, s{sRB}, 7")
        a.e(f"s_mul_i32 s{t0}, s{t0}, {RA}")
        a.e(f"s_min_u32 s{t1}, s{sCB}, 13")
        a.e(f"s_and_b32 s{t1}, s{t1}, 3")
        a.e(f"s_mul_i32 s{t1}, s{t1}, {RB_}")
        a.e(f"s_add_u32 s{t0}, s{t0}, s{t1}")
        a.e(f"s_mul_i32 s{t1}, s{t0}, 205")
        a.e(f"s_lshr_b32 s{t1}, s{t1}, 11")
        a.e(f"s_mul_i32 s{t1}, s{t1}, 10")
        a.e(f"s_sub_u32 s{t0}, s{t0}, s{t1}")
        a.e(f"s_lshl_b32 s{sOA}, s{t0}, 7")
        a.e(f"s_add_u32 s{sOA2}, s{sOA}, {64*1280}")
        a.e(f"s_mul_i32 s{sOB0}, s{t0}, {64*3840}")
        a.e(f"s_add_u32 s{sOB0b}, s{sOB0}, {32*3840}")
        a.e(f"s_mul_i32 s{sOB1}, s{t0}, {64*3456}")
        a.e(f"s_add_u32 s{sOB1b}, s{sOB1}, {32*3456}")
    else:
        a.e(f"s_mov_b32 s{sOA}, 0")
        a.e(f"s_mov_b32 s{sOA2}, {64*1280}")
        a.e(f"s_mov_b32 s{sOB0}, 0")
        a.e(f"s_mov_b32 s{sOB0b}, {32*3840}")
        a.e(f"s_mov_b32 s{sOB1}, 0")
        a.e(f"s_mov_b32 s{sOB1b}, {32*3456}")
    a.e(f"s_mov_b32 s{sWA}, s{sDA}")
    a.e(f"s_mov_b32 s{sWB}, s{sDB}")
    a.e("s_waitcnt lgkmcnt(0)")
    stamp(a, 5)
    srd(a, sX, "s4", "s5", 2048 * 640 * 2)
    srd(a, sB0, "s6", "s7", 640 * 1920 * 2)
    srd(a, sB1, "s12", "s13", 640 * 1728 * 2)

    lR0 = 10
    lR = 14
    lD = 20
    lS = 36
    lU = 40

    def stats_ops():
        va = []
        for r in range(16):
            src = lD + r
            lo, hi = lU + 2 * (r & 1), lU + 2 * (r & 1) + 1
            va.append(f"v_lshlrev_b32 v{lo}, 16, v{src}")
            va.append(f"v_and_b32 v{hi}, 0xffff0000, v{src}")
            va.append(f"v_add_f32 v{lS}, v{lS}, v{lo}")
            va.append(f"v_add_f32 v{lS+1}, v{lS+1}, v{hi}")
            va.append(f"v_fmac_f32 v{lS+2}, v{lo}, v{lo}")
            va.append(f"v_fmac_f32 v{lS+3}, v{hi}, v{hi}")
        return va

    def stats_reads():
        for i in range(4):
            a.e(f"v_add_u32 v{lR+i}, s{sRD}, v{lR0+i}")
        for i in range(4):
            a.e(f"ds_read_b128 {vr(lD+4*i,4)}, v{lR+i}")
        a.e(f"s_add_u32 s{sRD}, s{sRD}, {K1_SLOT}")
        a.e(f"s_cmp_eq_u32 s{sRD}, {K1_SCR}")
        a.e(f"s_cselect_b32 s{sRD}, 0, s{sRD}")

    def stage(with_stats=False, dma=True):
        spec = [(sWA, 0, lA, 1024, sX, sOA, 128),
                (sWA, 8192, lA, 1024, sX, sOA2, 128),
                (sWB, 0, lQ, 1056, sB0, sOB0, 64 * 3840),
                (sWB, 2 * K1_BH, lF, 1056, sB1, sOB1, 64 * 3456),
                (sWB, K1_BH, lQ, 1056, sB0, sOB0b, 64 * 3840),
                (sWB, 3 * K1_BH, lF, 1056, sB1, sOB1b, 64 * 3456)]
        va = stats_ops() if with_stats else []
        if with_stats:
            stats_reads()
        n = 0
        for (sD, dof, vO, d2, sR, sO, inc) in spec:
            for q in range(2):
                d = dof + q * d2
                if dma:
                    a.e(f"s_add_u32 m0, s{sD}, {d}" if d else f"s_mov_b32 m0, s{sD}")
                    a.e("s_nop 0")
                    a.e(f"buffer_load_dwordx4 v{vO[q]}, {sr(sR,4)}, s{sO} offen lds")
                n += 1
                if with_stats and n >= 2:
                    if n == 2:
                        a.e("s_waitcnt lgkmcnt(0)")
                    k = 9 if n < 12 else len(va)
                    for ins in va[:k]:
                        a.e(ins)
                    va = va[k:]
            if dma:
                a.e(f"s_add_u32 s{sO}, s{sO}, {inc}")
        if dma:
            a.e(f"s_add_u32 s{sWA}, s{sWA}, {K1_SLOT}")
            a.e(f"s_add_u32 s{sWB}, s{sWB}, {K1_SLOT}")
            a.e(f"s_cmp_ge_u32 s{sWA}, {K1_SCR}")
            a.e(f"s_cselect_b32 s{sWA}, s{sDA}, s{sWA}")
            a.e(f"s_cselect_b32 s{sWB}, s{sDB}, s{sWB}")
            if ROT:
                a.e(f"s_cmp_eq_u32 s{sOA}, 1280")
                a.e(f"s_cselect_b32 s{sOA}, 0, s{sOA}")
                a.e(f"s_cselect_b32 s{sOA2}, {64*1280}, s{sOA2}")
                a.e(f"s_cselect_b32 s{sOB0}, 0, s{sOB0}")
                a.e(f"s_cselect_b32 s{sOB0b}, {32*3840}, s{sOB0b}")
                a.e(f"s_cselect_b32 s{sOB1}, 0, s{sOB1}")
                a.e(f"s_cselect_b32 s{sOB1b}, {32*3456}, s{sOB1b}")

    stage()
    srd(a, sBI, "s14", "s15", 1728 * 2)
    a.e(f"v_lshlrev_b32 v{vT}, 2, v{vLANE}")
    a.e(f"buffer_load_dword v{lBI}, v{vT}, {sr(sBI,4)}, s{t3} offen")
    stage()
    S3 = "S" in X
    if S3:
        stage()
    a.e(f"v_and_b32 v{vT+1}, 31, v{vLANE}")
    a.e(f"v_lshrrev_b32 v{vT+2}, 5, v{vLANE}")
    a.e(f"v_lshlrev_b32 v{vT+2}, 2, v{vT+2}")
    a.e(f"v_bfe_u32 v{vT+3}, v{vLANE}, 1, 3")
    a.e(f"v_xor_b32 v{vT+2}, v{vT+2}, v{vT+3}")
    a.e(f"v_lshlrev_b32 v{vT+2}, 4, v{vT+2}")
    a.e(f"v_lshl_add_u32 v{vT+2}, v{vT+1}, 7, v{vT+2}")
    a.e(f"s_lshl_b32 s{t0}, s{sW}, 12")
    a.e(f"v_add_u32 v{lR0}, s{t0}, v{vT+2}")
    for i in range(1, 4):
        a.e(f"v_xor_b32 v{lR0+i}, {16*i}, v{lR0}")
    for i in range(4):
        a.e(f"v_mov_b32 v{lS+i}, 0")
    a.e(f"s_mov_b32 s{sRD}, 0")
    a.e(f"s_mov_b32 s{sIT}, 0")
    a.e(f"s_waitcnt vmcnt({24 if S3 else 12})")
    a.e(f"v_add_u32 v{vT}, {K1_SCR+2048}, v{vT}")
    a.e(f"ds_write_b32 v{vT}, v{lBI}")
    if ONE:
        a.e(f"v_mov_b32 v{vT+4}, {K1_SYN}")
        a.e(f"ds_write_b128 v{vT+4}, {vr(lS,4)}")
    a.e("s_barrier")
    stamp(a, 1)
    stage(True, not S3)
    a.lab("K1_LD")
    a.e("s_waitcnt vmcnt(12)")
    a.e("s_barrier")
    stage(True, True)
    a.e(f"s_add_u32 s{sIT}, s{sIT}, 1")
    a.e(f"s_cmp_lt_u32 s{sIT}, 7")
    a.e("s_cbranch_scc1 K1_LD")
    a.e("s_waitcnt vmcnt(12)")
    a.e("s_barrier")
    a.e(f"s_mov_b32 s{sIT}, 0")
    a.lab("K1_LD2")
    stage(True, False)
    a.e(f"s_cmp_eq_u32 s{sIT}, 1")
    a.e("s_cbranch_scc1 K1_LD3")
    if ONE:
        a.e(f"s_cmp_lg_u32 s{sW}, 0")
        a.e("s_cbranch_scc1 ZD_ld")
        zpoll("ld", sBI, vT + 4, vT + 5)
    a.e("s_waitcnt vmcnt(0)")
    a.e("s_barrier")
    a.e(f"s_mov_b32 s{sIT}, 1")
    a.e("s_branch K1_LD2")
    a.lab("K1_LD3")
    a.e(f"v_add_f32 v{lS}, v{lS}, v{lS+1}")
    a.e(f"v_add_f32 v{lS+1}, v{lS+2}, v{lS+3}")
    a.e(f"v_mov_b32 v{lU}, v{lS}")
    a.e(f"v_mov_b32 v{lU+1}, v{lS+1}")
    a.e("s_nop 1")
    a.e(f"v_permlane32_swap_b32 v{lS}, v{lU}")
    a.e(f"v_permlane32_swap_b32 v{lS+1}, v{lU+1}")
    a.e(f"v_add_f32 v{lS}, v{lS}, v{lU}")
    a.e(f"v_add_f32 v{lS+1}, v{lS+1}, v{lU+1}")
    finalize(lS, lS + 1, lS + 2, lS + 3)
    a.e(f"v_lshlrev_b32 v{vT+1}, 2, v{vT+1}")
    a.e(f"s_lshl_b32 s{t0}, s{sW}, 7")
    a.e(f"s_add_u32 s{t0}, s{t0}, {K1_SCR}")
    a.e(f"v_add_u32 v{vT+1}, s{t0}, v{vT+1}")
    a.e(f"ds_write_b32 v{vT+1}, v{lS+2}")
    a.e(f"ds_write_b32 v{vT+1}, v{lS+3} offset:512")
    a.e("s_waitcnt lgkmcnt(0)")
    a.e("s_barrier")
    if DIAG:
        stamp(a, 2); stamp(a, 3)
        k1flush()
    if ONE:
        a.e("s_barrier")
        dstamp(a, 3)
        a.e("s_branch P2_ENTRY")
    else:
        a.e("s_endpgm")
    a.lab("K1_COMP")
    a.e(f"s_and_b32 s{sMH}, s{sW}, 1")
    a.e(f"s_bfe_u32 s{sNQ}, s{sW}, 0x10001")
    a.e(f"s_lshr_b32 s{sHALF}, s{sW}, 3")
    if "C" in X:
        NPF = int(os.environ.get("NPF", "8"))
        a.e(f"s_cmp_ge_u32 s2, {NPF}")
        a.e("s_cbranch_scc1 K1_NOCP")
        a.e(f"s_cmp_ge_u32 s{sW}, 8")
        a.e("s_cbranch_scc1 K1_NOCP")
        a.e(f"s_and_b32 s{t0}, s{sW}, 3")
        code_prefetch(a, "k1", "k1_gemm1_kernel", "CODE_END", 64, t0, vLANE, vT, 36)
        a.lab("K1_NOCP")
    if "P" in X:
        vPF = 36
        a.e(f"s_and_b32 s{t0}, s{sW}, 3")
        a.e(f"s_lshl_b32 s{t0}, s{t0}, 6")
        a.e(f"v_add_u32 v{vT}, s{t0}, v{vLANE}")
        a.e(f"s_cmp_eq_u32 s{sHALF}, 1")
        a.e("s_cbranch_scc1 K1_PFB")
        a.e(f"s_and_b32 s{t1}, s{sCB}, 3")
        a.e(f"s_lshl_b32 s{t1}, s{t1}, 5")
        a.e(f"s_lshl_b32 s{t2}, s{sRB}, 7")
        a.e(f"s_add_u32 s{t1}, s{t1}, s{t2}")
        a.e(f"v_lshrrev_b32 v{vT+1}, 3, v{vT}")
        a.e(f"v_add_u32 v{vT+1}, s{t1}, v{vT+1}")
        a.e(f"v_mul_u32_u24 v{vT+1}, 1280, v{vT+1}")
        a.e(f"v_and_b32 v{vT+2}, 7, v{vT}")
        a.e(f"v_lshl_add_u32 v{vT+1}, v{vT+2}, 7, v{vT+1}")
        a.e("s_waitcnt lgkmcnt(0)")
        srd(a, sX, "s4", "s5", 2048 * 640 * 2)
        a.e(f"buffer_load_dword v{vPF}, v{vT+1}, {sr(sX,4)}, 0 offen offset:256")
        a.e("s_branch K1_PFD")
        a.lab("K1_PFB")
        a.e(f"s_and_b32 s{t1}, s{sRB}, 7")
        a.e(f"s_lshl_b32 s{t1}, s{t1}, 6")
        a.e(f"s_add_u32 s{t1}, s{t1}, 128")
        a.e(f"v_lshrrev_b32 v{vT+1}, 2, v{vT}")
        a.e(f"v_add_u32 v{vT+1}, s{t1}, v{vT+1}")
        a.e(f"v_and_b32 v{vT+2}, 1, v{vT}")
        a.e(f"v_lshlrev_b32 v{vT+2}, 7, v{vT+2}")
        a.e(f"s_lshl_b32 s{t2}, s{sCB}, 8")
        a.e(f"s_lshl_b32 s{t3}, s{sT0}, 5")
        a.e(f"v_mul_u32_u24 v{vT+3}, 3840, v{vT+1}")
        a.e(f"v_add3_u32 v{vT+3}, v{vT+3}, v{vT+2}, s{t2}")
        a.e(f"v_mul_u32_u24 v{vT+4}, 3456, v{vT+1}")
        a.e(f"v_add3_u32 v{vT+4}, v{vT+4}, v{vT+2}, s{t3}")
        a.e("s_waitcnt lgkmcnt(0)")
        srd(a, sB0, "s6", "s7", 640 * 1920 * 2)
        srd(a, sB1, "s12", "s13", 640 * 1728 * 2)
        a.e("s_mov_b32 exec_lo, 0x33333333")
        a.e("s_mov_b32 exec_hi, 0x33333333")
        a.e(f"buffer_load_dword v{vPF}, v{vT+3}, {sr(sB0,4)}, 0 offen")
        a.e("s_not_b64 exec, exec")
        a.e(f"buffer_load_dword v{vPF+1}, v{vT+4}, {sr(sB1,4)}, 0 offen")
        a.e("s_mov_b64 exec, -1")
        a.lab("K1_PFD")
    a.e(f"s_lshl_b32 s{t0}, s{sMH}, 13")
    a.e(f"v_and_b32 v{vT+4}, 15, v{vLANE}")
    a.e(f"v_lshrrev_b32 v{vT}, 4, v{vLANE}")
    a.e(f"v_lshrrev_b32 v{vT+1}, 1, v{vT+4}")
    a.e(f"v_xor_b32 v{vT+1}, v{vT+1}, v{vT}")
    a.e(f"v_lshlrev_b32 v{vT+1}, 4, v{vT+1}")
    a.e(f"v_lshl_add_u32 v{vA0e}, v{vT+4}, 7, v{vT+1}")
    a.e(f"v_add_u32 v{vA0e}, s{t0}, v{vA0e}")
    a.e(f"v_xor_b32 v{vA0o}, 64, v{vA0e}")
    a.e(f"v_bfe_u32 v{vT+1}, v{vLANE}, 2, 3")
    a.e(f"v_mul_u32_u24 v{vT+1}, 1056, v{vT+1}")
    a.e(f"v_lshrrev_b32 v{vT+2}, 5, v{vLANE}")
    a.e(f"v_lshl_add_u32 v{vT+1}, v{vT+2}, 9, v{vT+1}")
    a.e(f"v_and_b32 v{vT+2}, 3, v{vLANE}")
    a.e(f"v_lshl_add_u32 v{vT+1}, v{vT+2}, 3, v{vT+1}")
    a.e(f"s_mul_i32 s{t0}, s{sHALF}, {2*K1_BH}")
    a.e(f"s_lshl_b32 s{t1}, s{sNQ}, 7")
    a.e(f"s_add_u32 s{t0}, s{t0}, s{t1}")
    a.e(f"s_add_u32 s{t0}, s{t0}, 16384")
    a.e(f"v_add_u32 v{vB0}, s{t0}, v{vT+1}")
    for i in range(64):
        a.e(f"v_mov_b32 v{ACC+i}, 0")
    for i in range(4):
        a.e(f"v_mov_b32 v{vS+i}, 0")
        a.e(f"v_mov_b32 v{vONES+i}, 0x3f803f80")
    for i in range(8):
        a.e(f"v_mov_b32 v{vCS+i}, 0")
        a.e(f"v_mov_b32 v{vSA+i}, {hx(OOB)}")
    a.e(f"s_mov_b32 s{sRD}, 0")
    a.e(f"s_mov_b32 s{sIT}, 0")
    a.e(f"s_mov_b32 s{sTS}, 0")
    a.e(f"s_cmp_ge_u32 s{sCB}, 10")
    a.e(f"s_cselect_b32 s{sTYP}, 1, 0")
    a.e(f"s_cmp_eq_u32 s{sHALF}, 1")
    a.e(f"s_cselect_b32 s{sTYP}, 2, s{sTYP}")
    a.e(f"s_lshl_b32 s{t6}, s{sRB}, 2")
    a.e(f"s_lshl_b32 s{t7}, s{sMH}, 1")
    a.e(f"s_add_u32 s{t6}, s{t6}, s{t7}")
    a.e(f"s_cmp_eq_u32 s{sTYP}, 1")
    a.e("s_cbranch_scc1 K1_PRE_V")
    a.e(f"s_cmp_eq_u32 s{sTYP}, 2")
    a.e("s_cbranch_scc1 K1_PRE_F")
    a.e(f"s_cmp_lt_u32 s{sCB}, 5")
    a.e(f"s_cselect_b32 s{t1}, 81920, {KVH}")
    a.e(f"s_cselect_b32 s{t2}, 1280, {KVT}")
    a.e(f"s_cselect_b32 s{sTS}, 1280, {koff(1)}")
    a.e(f"s_cselect_b32 s{t3}, {hx(QB_OFF)}, {hx(KV_OFF)}")
    a.e(f"s_cselect_b32 s{t5}, 0, 5")
    a.e(f"s_sub_u32 s{t5}, s{sCB}, s{t5}")
    a.e(f"s_lshl_b32 s{t5}, s{t5}, 5")
    a.e(f"s_lshl_b32 s{t7}, s{sNQ}, 4")
    a.e(f"s_add_u32 s{t5}, s{t5}, s{t7}")
    a.e(f"s_mul_i32 s{t6}, s{t6}, s{t2}")
    a.e(f"s_add_u32 s{t3}, s{t3}, s{t6}")
    rA0, vG = vT + 6, vT + 10
    a.e(f"v_lshlrev_b32 v{rA0}, 3, v{vT+4}")
    a.e(f"v_add_u32 v{rA0}, s{t3}, v{rA0}")
    a.e(f"v_add_u32 v{vG}, s{t5}, v{vT}")
    for j in range(4):
        tt, h, dg = vT + 11, vT + 12, vT + 13
        a.e(f"v_add_u32 v{tt}, {4*j}, v{vG}")
        a.e(f"v_mul_u32_u24 v{h}, 205, v{tt}")
        a.e(f"v_lshrrev_b32 v{h}, 10, v{h}")
        a.e(f"v_mad_i32_i24 v{dg}, v{h}, -5, v{tt}")
        a.e(f"v_mad_u32_u24 v{h}, v{h}, s{t1}, v{rA0}")
        a.e(f"v_lshl_add_u32 v{vSA+j}, v{dg}, 8, v{h}")
    a.e("s_branch K1_PRE_DONE")
    a.lab("K1_PRE_V")
    vWA = [8, 9, 10, 11]
    a.e(f"s_sub_u32 s{t5}, s{sCB}, 10")
    a.e(f"s_lshl_b32 s{t5}, s{t5}, 7")
    a.e(f"s_lshl_b32 s{t7}, s{sNQ}, 6")
    a.e(f"s_add_u32 s{t5}, s{t5}, s{t7}")
    a.e(f"s_mul_i32 s{t6}, s{t6}, {KVT}")
    a.e(f"s_add_u32 s{t6}, s{t6}, {hx(KV_OFF + 1280)}")
    a.e(f"s_mov_b32 s{t1}, {KVH}")
    a.e(f"s_mov_b32 s{t2}, -20")
    a.e(f"s_lshl_b32 s{t3}, s{sW}, 13")
    n, h, d = vT + 5, vT + 6, vT + 7
    a.e(f"v_add_u32 v{vT+2}, s{t5}, v{vT+4}")
    a.e(f"v_lshlrev_b32 v{vT+1}, 7, v{vT+4}")
    a.e(f"v_add_u32 v{vT+1}, s{t3}, v{vT+1}")
    for j in range(4):
        a.e(f"v_add_u32 v{n}, {16*j}, v{vT+2}")
        a.e(f"v_mul_u32_u24 v{h}, 3277, v{n}")
        a.e(f"v_lshrrev_b32 v{h}, 16, v{h}")
        a.e(f"v_mad_i32_i24 v{d}, v{h}, s{t2}, v{n}")
        a.e(f"v_bfe_u32 v{d}, v{d}, 1, 3")
        a.e(f"v_xor_b32 v{d}, v{d}, v{vT}")
        a.e(f"v_lshl_add_u32 v{vWA[j]}, v{d}, 4, v{vT+1}")
    a.e(f"v_lshrrev_b32 v{vT+2}, 3, v{vLANE}")
    a.e(f"v_add_u32 v{vT+2}, s{t5}, v{vT+2}")
    a.e(f"v_and_b32 v{vT+1}, 7, v{vLANE}")
    a.e(f"v_lshlrev_b32 v{vT+1}, 4, v{vT+1}")
    a.e(f"v_add_u32 v{vT+1}, s{t6}, v{vT+1}")
    for q in range(8):
        a.e(f"v_add_u32 v{n}, {8*q}, v{vT+2}")
        a.e(f"v_mul_u32_u24 v{h}, 3277, v{n}")
        a.e(f"v_lshrrev_b32 v{h}, 16, v{h}")
        a.e(f"v_mad_i32_i24 v{d}, v{h}, s{t2}, v{n}")
        a.e(f"v_mad_u32_u24 v{h}, v{h}, s{t1}, v{vT+1}")
        a.e(f"v_lshl_add_u32 v{vSA+q}, v{d}, 7, v{h}")
    a.e("s_branch K1_PRE_DONE")
    a.lab("K1_PRE_F")
    a.e(f"s_lshl_b32 s{t0}, s{sCB}, 1")
    a.e(f"s_add_u32 s{t0}, s{t0}, s{sNQ}")
    a.e(f"s_cmp_eq_u32 s{t0}, 26")
    a.e("s_cbranch_scc1 K1_PRE_DONE")
    a.e(f"s_cmp_ge_u32 s{t0}, 28")
    a.e("s_cbranch_scc1 K1_PRE_DONE")
    a.e(f"s_lshl_b32 s{t0}, s{t6}, 5")
    a.e(f"v_add_u32 v{vSA}, s{t0}, v{vT+4}")
    a.e(f"v_lshlrev_b32 v{vSA}, 4, v{vSA}")
    a.e(f"v_lshl_add_u32 v{vSA}, v{vT}, 15, v{vSA}")
    a.e(f"s_lshl_b32 s{t0}, s{sT0}, 16")
    a.e(f"s_lshl_b32 s{t1}, s{sNQ}, 18")
    a.e(f"s_add_u32 s{t0}, s{t0}, s{t1}")
    a.e(f"s_add_u32 s{t0}, s{t0}, {hx(AB_OFF + 80*32768)}")
    a.e(f"v_add_u32 v{vSA}, s{t0}, v{vSA}")
    a.e(f"v_add_u32 v{vSA+1}, {hx(131072)}, v{vSA}")
    a.lab("K1_PRE_DONE")
    a.e("s_waitcnt lgkmcnt(0)")
    stamp(a, 5)
    srd(a, sWS, "s18", "s19", WS_END)
    a.e(f"s_and_b32 s{t0}, s{sTYP}, 1")
    a.e(f"s_lshl_b32 s{t0}, s{t0}, 1")
    a.e(f"s_add_u32 s{t0}, s{t0}, s{sMH}")
    for v in range(1, 4):
        a.e(f"s_cmp_eq_u32 s{t0}, {v}")
        a.e(f"s_cbranch_scc1 K1_V{v}")

    def reads(fs):
        vA = vAe if fs == 0 else vAo
        ra = [f"ds_read_b128 {vr(fa(fs,mt),4)}, v{vA} offset:{2048*mt}" for mt in range(4)]
        rb = []
        for j in range(4):
            rb.append(f"ds_read_b64_tr_b16 {vr(fb(fs,j),2)}, v{vB} offset:{fs*K1_BH+32*j}")
            rb.append(f"ds_read_b64_tr_b16 {vr(fb(fs,j)+2,2)}, v{vB} offset:{fs*K1_BH+32*j+256}")
        return rb[0:2] + ra + rb[2:]

    def addr_update():
        return [f"v_add_u32 v{vB}, s{sRD}, v{vB0}",
                f"v_add_u32 v{vAe}, s{sRD}, v{vA0e}",
                f"v_add_u32 v{vAo}, s{sRD}, v{vA0o}",
                f"s_add_u32 s{sRD}, s{sRD}, {K1_SLOT}",
                f"s_cmp_eq_u32 s{sRD}, {K1_SCR}",
                f"s_cselect_b32 s{sRD}, 0, s{sRD}"]

    for var in range(4):
        typ, mh, nq = var >> 1, var & 1, 0
        cst = [2 * mh, 2 * mh + 1]
        smt = (2 if typ == 2 else 0) + nq
        a.raw(".p2align 3")
        a.lab(f"K1_V{var}")
        emit(addr_update())
        a.e("s_barrier")
        stamp(a, 1)
        emit(reads(0))
        a.raw(".p2align 6")
        a.lab(f"K1_L{var}")
        for fs in range(2):
            mf = []
            for j in range(4):
                for mt in range(4):
                    if typ == 1:
                        mf.append(f"v_mfma_f32_16x16x32_bf16 {vr(acc(j,mt),4)}, {vr(fa(fs,mt),4)}, {vr(fb(fs,j),4)}, {vr(acc(j,mt),4)}")
                    else:
                        mf.append(f"v_mfma_f32_16x16x32_bf16 {vr(acc(j,mt),4)}, {vr(fb(fs,j),4)}, {vr(fa(fs,mt),4)}, {vr(acc(j,mt),4)}")
                if j in cst:
                    c = vCS + 4 * cst.index(j)
                    mf.append(f"v_mfma_f32_16x16x32_bf16 {vr(c,4)}, {vr(fb(fs,j),4)}, {vr(vONES,4)}, {vr(c,4)}")
            va = []
            for r in range(4):
                src = fa(fs, smt) + r
                lo, hi = vU + 2 * (r & 1), vU + 2 * (r & 1) + 1
                va.append(f"v_lshlrev_b32 v{lo}, 16, v{src}")
                va.append(f"v_and_b32 v{hi}, 0xffff0000, v{src}")
                va.append(f"v_add_f32 v{vS}, v{vS}, v{lo}")
                va.append(f"v_add_f32 v{vS+1}, v{vS+1}, v{hi}")
                va.append(f"v_fmac_f32 v{vS+2}, v{lo}, v{lo}")
                va.append(f"v_fmac_f32 v{vS+3}, v{hi}, v{hi}")
            rd = reads(fs ^ 1)
            va = []
            if "r" in X: rd = []
            if "M" in X: mf = mf[:2]
            a.e("s_waitcnt lgkmcnt(0)")
            npre = 0
            if fs == 1:
                npre = 2
                for m in mf[:npre]:
                    a.e(m)
                emit(addr_update())
                a.e("s_barrier")
            rest = mf[npre:]
            nm = max(1, len(rest))
            ri = di = 0
            for i, m in enumerate(rest):
                if ri < len(rd):
                    a.e(rd[ri]); ri += 1
                a.e(m)
                want_d = (len(va) * (i + 1) + nm - 1) // nm
                while di < want_d:
                    a.e(va[di]); di += 1
            while ri < len(rd):
                a.e(rd[ri]); ri += 1
            while di < len(va):
                a.e(va[di]); di += 1
        a.e(f"s_add_u32 s{sIT}, s{sIT}, 1")
        a.e(f"s_cmp_lt_u32 s{sIT}, 10")
        a.e(f"s_cbranch_scc1 K1_L{var}")
        a.e(f"s_branch K1_EPI")

    a.raw(".p2align 3")
    a.lab("K1_EPI")
    stamp(a, 2)
    a.e("s_waitcnt vmcnt(0)")
    a.e(f"v_and_b32 v{vT}, 15, v{vLANE}")
    a.e(f"v_lshlrev_b32 v{vT}, 2, v{vT}")
    a.e(f"s_lshl_b32 s{t0}, s{sHALF}, 7")
    a.e(f"s_lshl_b32 s{t1}, s{sNQ}, 6")
    a.e(f"s_add_u32 s{t0}, s{t0}, s{t1}")
    a.e(f"s_lshl_b32 s{t2}, s{sMH}, 8")
    a.e(f"s_add_u32 s{t2}, s{t2}, {K1_SCR}")
    a.e(f"s_add_u32 s{t0}, s{t0}, s{t2}")
    a.e(f"v_add_u32 v{vT+1}, s{t0}, v{vT}")
    a.e(f"v_lshrrev_b32 v{vT+2}, 4, v{vLANE}")
    a.e(f"v_lshlrev_b32 v{vT+2}, 4, v{vT+2}")
    a.e(f"s_lshl_b32 s{t3}, s{sHALF}, 9")
    a.e(f"s_lshl_b32 s{t1}, s{sNQ}, 8")
    a.e(f"s_add_u32 s{t3}, s{t3}, s{t1}")
    a.e(f"s_add_u32 s{t3}, s{t3}, {K1_SCR+1024}")
    a.e(f"s_lshl_b32 s{t1}, s{sMH}, 7")
    a.e(f"s_add_u32 s{t0}, s{t3}, s{t1}")
    a.e(f"v_add_u32 v{vT+3}, s{t0}, v{vT+2}")
    a.e("s_mov_b32 exec_lo, 0x00010001")
    a.e("s_mov_b32 exec_hi, 0x00010001")
    a.e(f"ds_write_b128 v{vT+3}, {vr(vCS,4)}")
    a.e(f"ds_write_b128 v{vT+3}, {vr(vCS+4,4)} offset:64")
    a.e("s_mov_b64 exec, -1")
    a.e("s_waitcnt lgkmcnt(0)")
    a.e("s_barrier")
    stamp(a, 3)
    a.e(f"s_cmp_eq_u32 s{sTYP}, 1")
    a.e("s_cbranch_scc1 K1_EPI_V")

    vNM, vRS = 32, 36
    vC4 = 40
    vBB = 56
    a.e(f"v_add_u32 v{vT}, s{t2}, v{vT}")
    a.e(f"ds_read2_b32 {vr(vNM,2)}, v{vT} offset0:0 offset1:16")
    a.e(f"ds_read2_b32 {vr(vNM+2,2)}, v{vT} offset0:32 offset1:48")
    a.e(f"ds_read2_b32 {vr(vRS,2)}, v{vT} offset0:128 offset1:144")
    a.e(f"ds_read2_b32 {vr(vRS+2,2)}, v{vT} offset0:160 offset1:176")
    a.e(f"v_add_u32 v{vT+1}, s{t3}, v{vT+2}")
    for j in range(4):
        a.e(f"ds_read_b128 {vr(vC4+4*j,4)}, v{vT+1} offset:{64*j}")
    a.e(f"s_cmp_eq_u32 s{sTYP}, 2")
    a.e("s_cbranch_scc1 K1_EPI_F")

    def sel3(mt):
        return f"op_sel:[0,{mt&1},0] op_sel_hi:[1,{mt&1},1]"

    def sel2(mt):
        return f"op_sel:[0,{mt&1}] op_sel_hi:[1,{mt&1}]"
    a.e(f"s_cmp_lt_u32 s{sCB}, 5")
    a.e(f"s_cselect_b32 s{t0}, {hx(f32(QSCALE))}, 1.0")
    a.e("s_waitcnt lgkmcnt(4)")
    for i in range(4):
        a.e(f"v_mul_f32 v{vRS+i}, s{t0}, v{vRS+i}")
    for j in range(4):
        a.e(f"s_waitcnt lgkmcnt({3-j})")
        for mt in range(4):
            A = acc(j, mt)
            for p in range(2):
                a.e(f"v_pk_fma_f32 {vr(A+2*p,2)}, {vr(vC4+4*j+2*p,2)}, {vr(vNM+(mt&2),2)}, {vr(A+2*p,2)} {sel3(mt)}")
        for mt in range(4):
            A = acc(j, mt)
            for p in range(2):
                a.e(f"v_pk_mul_f32 {vr(A+2*p,2)}, {vr(A+2*p,2)}, {vr(vRS+(mt&2),2)} {sel2(mt)}")
        for mt in range(4):
            A = acc(j, mt)
            a.e(f"v_cvt_pk_bf16_f32 v{A}, v{A}, v{A+1}")
            a.e(f"v_cvt_pk_bf16_f32 v{A+1}, v{A+2}, v{A+3}")
            so = f"s{sTS}" if mt & 2 else "0"
            a.e(f"buffer_store_dwordx2 {vr(A,2)}, v{vSA+j}, {sr(sWS,4)}, {so} offen offset:{128*(mt&1)}{SCQ}")
    finish("Q")
    a.lab("K1_EPI_F")
    c0 = -2.0 * math.sqrt(2.0 / math.pi) * math.log2(math.e)
    c1 = c0 * 0.044715
    vC0, vONE = 64, 66
    a.e(f"v_lshrrev_b32 v{vT+2}, 1, v{vT+2}")
    a.e(f"s_lshl_b32 s{t0}, s{sNQ}, 7")
    a.e(f"s_add_u32 s{t0}, s{t0}, {K1_SCR+2048}")
    a.e(f"v_add_u32 v{vT+2}, s{t0}, v{vT+2}")
    for j in range(4):
        a.e(f"ds_read_b64 {vr(vBB+2*j,2)}, v{vT+2} offset:{32*j}")
    a.e(f"v_mov_b32 v{vC0}, {hx(f32(c0))}")
    a.e(f"v_mov_b32 v{vC0+1}, {hx(f32(c0))}")
    a.e(f"v_mov_b32 v{vONE}, 1.0")
    a.e(f"v_mov_b32 v{vONE+1}, 1.0")
    a.e(f"s_mov_b32 s{sC1}, {hx(f32(c1))}")
    a.e(f"s_mov_b32 s{sC1+1}, {hx(f32(c1))}")
    vBF = 68
    vW = 88
    a.e("s_waitcnt lgkmcnt(0)")
    for j in (2, 3, 0, 1):
        a.e(f"v_lshlrev_b32 v{vBF}, 16, v{vBB+2*j}")
        a.e(f"v_and_b32 v{vBF+1}, 0xffff0000, v{vBB+2*j}")
        a.e(f"v_lshlrev_b32 v{vBF+2}, 16, v{vBB+2*j+1}")
        a.e(f"v_and_b32 v{vBF+3}, 0xffff0000, v{vBB+2*j+1}")
        for mp in range(2):
            prs = [(mt, p) for mt in (2 * mp, 2 * mp + 1) for p in range(2)]
            for i, (mt, p) in enumerate(prs):
                A = acc(j, mt) + 2 * p
                a.e(f"v_pk_fma_f32 {vr(A,2)}, {vr(vC4+4*j+2*p,2)}, {vr(vNM+(mt&2),2)}, {vr(A,2)} {sel3(mt)}")
            for i, (mt, p) in enumerate(prs):
                A = acc(j, mt) + 2 * p
                a.e(f"v_pk_fma_f32 {vr(A,2)}, {vr(A,2)}, {vr(vRS+(mt&2),2)}, {vr(vBF+2*p,2)} {sel3(mt)}")
            for i, (mt, p) in enumerate(prs):
                A = acc(j, mt) + 2 * p
                a.e(f"v_pk_mul_f32 {vr(vW+2*i,2)}, {vr(A,2)}, {vr(A,2)}")
            for i, (mt, p) in enumerate(prs):
                a.e(f"v_pk_fma_f32 {vr(vW+2*i,2)}, {vr(vW+2*i,2)}, {sr(sC1,2)}, {vr(vC0,2)}")
            for i, (mt, p) in enumerate(prs):
                A = acc(j, mt) + 2 * p
                a.e(f"v_pk_mul_f32 {vr(vW+2*i,2)}, {vr(vW+2*i,2)}, {vr(A,2)}")
            for i in range(8):
                a.e(f"v_exp_f32 v{vW+i}, v{vW+i}")
            for i in range(4):
                a.e(f"v_pk_add_f32 {vr(vW+2*i,2)}, {vr(vW+2*i,2)}, {vr(vONE,2)}")
            for i in range(8):
                a.e(f"v_rcp_f32 v{vW+i}, v{vW+i}")
            for i, (mt, p) in enumerate(prs):
                A = acc(j, mt) + 2 * p
                a.e(f"v_pk_mul_f32 {vr(A,2)}, {vr(A,2)}, {vr(vW+2*i,2)}")
            for mt in (2 * mp, 2 * mp + 1):
                A = acc(j, mt)
                Dq = acc(2, mt) if j >= 2 else acc(3, mt)
                D = Dq + 2 * (j & 1)
                a.e(f"v_cvt_pk_bf16_f32 v{D}, v{A}, v{A+1}")
                a.e(f"v_cvt_pk_bf16_f32 v{D+1}, v{A+2}, v{A+3}")
                if j & 1 and (not ONE or HSM == "0"):
                    a.e(f"buffer_store_dwordx4 {vr(Dq,4)}, v{vSA+j//2}, {sr(sWS,4)}, 0 offen offset:{256*mt}{SC}")
    if ONE and HSM == "1":
        for p in range(2):
            for mt in range(4):
                a.e(f"buffer_store_dwordx4 {vr(acc(3-p,mt),4)}, v{vSA+p}, {sr(sWS,4)}, 0 offen offset:{256*mt} sc1")
    k1flush()
    if ONE:
        a.e(f"v_mov_b32 v128, v{vSA}")
        a.e(f"v_mov_b32 v129, v{vSA+1}")
        a.e(f"s_lshl_b32 s{t0}, s{sRB}, 7")
        a.e(f"s_lshl_b32 s{t1}, s{sCB}, 2")
        a.e(f"s_add_u32 s{t0}, s{t0}, s{t1}")
        a.e(f"s_add_u32 s72, s{t0}, {hx(FL_OFF + FH_REL)}")
        a.e("s_branch P2_ENTRY")
    else:
        a.e("s_endpgm")
    a.lab("K1_EPI_V")
    vNMv, vRSv = 40, 56
    vCSv = 88
    a.e(f"v_add_u32 v{vT+1}, s{t2}, v{vT+2}")
    for mt in range(4):
        a.e(f"ds_read_b128 {vr(vNMv+4*mt,4)}, v{vT+1} offset:{64*mt}")
    for mt in range(4):
        a.e(f"ds_read_b128 {vr(vRSv+4*mt,4)}, v{vT+1} offset:{512+64*mt}")
    a.e(f"v_add_u32 v{vT+3}, s{t3}, v{vT}")
    for j in range(4):
        a.e(f"ds_read_b32 v{vCSv+2*j}, v{vT+3} offset:{64*j}")
    a.e("s_waitcnt lgkmcnt(0)")
    for j in range(4):
        for mt in range(4):
            A = acc(j, mt)
            for p in range(2):
                a.e(f"v_pk_fma_f32 {vr(A+2*p,2)}, {vr(vNMv+4*mt+2*p,2)}, {vr(vCSv+2*j,2)}, {vr(A+2*p,2)} op_sel:[0,0,0] op_sel_hi:[1,0,1]")
        for mt in range(4):
            A = acc(j, mt)
            for p in range(2):
                a.e(f"v_pk_mul_f32 {vr(A+2*p,2)}, {vr(A+2*p,2)}, {vr(vRSv+4*mt+2*p,2)}")
        for t2_ in range(2):
            A0, A1 = acc(j, 2 * t2_), acc(j, 2 * t2_ + 1)
            a.e(f"v_cvt_pk_bf16_f32 v{A0}, v{A0}, v{A0+1}")
            a.e(f"v_cvt_pk_bf16_f32 v{A0+1}, v{A0+2}, v{A0+3}")
            a.e(f"v_cvt_pk_bf16_f32 v{A0+2}, v{A1}, v{A1+1}")
            a.e(f"v_cvt_pk_bf16_f32 v{A0+3}, v{A1+2}, v{A1+3}")
            if t2_:
                a.e(f"v_xor_b32 v{vWA[j]}, 64, v{vWA[j]}")
            a.e(f"ds_write_b128 v{vWA[j]}, {vr(A0,4)} offset:{2048*j}")
    a.e(f"s_lshl_b32 s{t3}, s{sW}, 13")
    a.e(f"v_lshlrev_b32 v{vT}, 4, v{vLANE}")
    a.e(f"v_add_u32 v{vT}, s{t3}, v{vT}")
    a.e("s_waitcnt lgkmcnt(0)")
    for q in range(8):
        a.e(f"ds_read_b128 {vr(40+4*q,4)}, v{vT} offset:{1024*q}")
    for q in range(8):
        a.e(f"s_waitcnt lgkmcnt({7-q})")
        a.e(f"buffer_store_dwordx4 {vr(40+4*q,4)}, v{vSA+q}, {sr(sWS,4)}, 0 offen{SCQ}")
    finish("Q")
    if ONE:
        for kind in "Q":
            a.lab(f"K1_SIG{kind}")
            a.e(f"v_mov_b32 v2, {K1_SYN + (4 if kind == 'F' else 0)}")
            a.e("v_mov_b32 v3, 1")
            if kind == "Q":
                a.e(f"v_lshlrev_b32 v5, 11, v{vLANE}")
                a.e(f"s_lshl_b32 s{t0}, s{sCB}, 7")
                a.e(f"s_lshl_b32 s{t1}, s{sRB}, 2")
                a.e(f"s_add_u32 s{t0}, s{t0}, s{t1}")
                a.e(f"s_add_u32 s{t0}, s{t0}, {hx(FL_OFF + FQ_REL)}")
            else:
                a.e("v_mov_b32 v5, 0")
                a.e(f"s_lshl_b32 s{t0}, s{sRB}, 7")
                a.e(f"s_lshl_b32 s{t1}, s{sCB}, 2")
                a.e(f"s_add_u32 s{t0}, s{t0}, s{t1}")
                a.e(f"s_add_u32 s{t0}, s{t0}, {hx(FL_OFF + FH_REL)}")
            a.e("s_waitcnt vmcnt(0)")
            a.e("s_mov_b64 exec, 1")
            a.e("ds_add_rtn_u32 v4, v2, v3")
            a.e("s_waitcnt lgkmcnt(0)")
            a.e(f"v_readfirstlane_b32 s{t1}, v4")
            a.e("s_mov_b64 exec, -1")
            a.e(f"s_cmp_lg_u32 s{t1}, 3")
            a.e("s_cbranch_scc1 P2_ENTRY")
            if kind in WB:
                a.e("buffer_wbl2 sc1")
                a.e("s_waitcnt vmcnt(0)")
            a.e(f"s_mov_b64 exec, {15 if kind == 'Q' else 1}")
            a.e(f"buffer_store_dword v3, v5, {sr(sWS,4)}, s{t0} offen sc1")
            a.e("s_mov_b64 exec, -1")
            a.e("s_branch P2_ENTRY")

    a.lab("K1_TRANS")
    sTAU, sSEL0, sSEL1 = 51, 52, 53
    NB_T = 4
    sTs = [24, 28, 36, 40]
    sK = [54, 56, 58, 76]
    vTO = [2, 3, 4, 5]
    vTS = [6, 7, 8, 9]
    vTL = [88, 104, 120, 136]
    a.e(f"s_mul_i32 s{sTAU}, s{sRB}, 12")
    a.e(f"s_add_u32 s{sTAU}, s{sTAU}, s{sW}")
    a.e(f"s_mov_b32 s{sSEL0}, 0x05040100")
    a.e(f"s_mov_b32 s{sSEL1}, 0x07060302")
    a.e(f"v_lshlrev_b32 v{vT}, 2, v{vLANE}")
    a.e(f"v_lshlrev_b32 v{vT+1}, 4, v{vLANE}")
    a.e(f"s_lshl_b32 s{t0}, s{sW}, 13")
    a.e(f"v_lshlrev_b32 v10, 5, v{vLANE}")
    a.e(f"v_add_u32 v10, s{t0}, v10")
    a.e(f"v_add_u32 v11, s{t0}, v{vT+1}")
    a.e("s_waitcnt lgkmcnt(0)")
    srd(a, sWS, "s18", "s19", WS_END)
    if "Q" in X:
        srd(a, sX, "s4", "s5", 2048 * 640 * 2)
        srd(a, sB0, "s6", "s7", 640 * 1920 * 2)
        srd(a, sB1, "s12", "s13", 640 * 1728 * 2)
        a.e(f"s_lshl_b32 s{t0}, s{sTAU}, 13")
        a.e(f"v_lshlrev_b32 v20, 7, v{vLANE}")
        a.e(f"v_add_u32 v20, s{t0}, v20")
        a.e(f"s_mov_b32 s{t1}, {192*3840}")
        a.e(f"s_mov_b32 s{t2}, {192*3456}")
        a.e(f"s_mov_b32 s{t3}, {192*3840 + 12288*128}")
        a.e(f"s_mov_b32 s{t4}, {12288*128}")
        a.e(f"buffer_load_dword v21, v20, {sr(sB0,4)}, s{t1} offen")
        a.e(f"buffer_load_dword v22, v20, {sr(sB1,4)}, s{t2} offen")
        a.e(f"buffer_load_dword v23, v20, {sr(sX,4)}, 0 offen")
        a.e(f"buffer_load_dword v24, v20, {sr(sX,4)}, s{t4} offen")
        a.e(f"buffer_load_dword v25, v20, {sr(sB0,4)}, s{t3} offen")
    a.e(f"s_lshl_b32 s{t0}, s{sTAU}, 3")
    a.e(f"v_lshrrev_b32 v{vT+2}, 3, v{vLANE}")
    a.e(f"v_add_u32 v{vT+2}, s{t0}, v{vT+2}")
    a.e(f"v_mul_u32_u24 v{vT+2}, {2*KVT}, v{vT+2}")
    a.e(f"v_and_b32 v{vT+3}, 7, v{vLANE}")
    a.e(f"v_lshl_add_u32 v{vT+2}, v{vT+3}, 4, v{vT+2}")
    a.e(f"s_cmp_lt_u32 s{sTAU}, 128")
    a.e(f"s_cselect_b32 s{t0}, {hx(KV_OFF + 1280 + 20*128)}, {hx(OOB)}")
    for i in range(4):
        a.e(f"v_mov_b32 v{12+i}, 0x3f803f80")
    a.e(f"buffer_store_dwordx4 v[12:15], v{vT+2}, {sr(sWS,4)}, s{t0} offen{SC}")
    a.e(f"s_lshl_b32 s{t1}, s{sW}, 10")
    a.e(f"s_add_u32 s{t1}, s{t1}, {hx(FL_OFF)}")
    a.e(f"s_cmp_eq_u32 s{sRB}, 0")
    a.e(f"s_cselect_b32 s{t0}, s{t1}, {hx(OOB)}")
    for i in range(4):
        a.e(f"v_mov_b32 v{16+i}, 0")
    a.e(f"v_lshlrev_b32 v{vT+3}, 4, v{vLANE}")
    a.e(f"buffer_store_dwordx4 v[16:19], v{vT+3}, {sr(sWS,4)}, s{t0} offen{SC}")
    if ONE:
        a.e(f"v_mov_b32 v20, {K1_SYN}")
        a.e("ds_write_b128 v20, v[16:19]")
        a.e("s_waitcnt vmcnt(0) lgkmcnt(0)")
        a.e("s_barrier")
        a.e(f"s_cmp_lg_u32 s{sW}, 0")
        a.e("s_cbranch_scc1 K1_TGO")
        a.e("v_mov_b32 v21, 1")
        a.e(f"s_cmp_lg_u32 s{sRB}, 0")
        a.e("s_cbranch_scc1 K1_TZ")
        srd(a, sX, "s10", "s11", 256)
        a.e("s_mov_b64 exec, 1")
        a.e(f"buffer_store_dword v21, v16, {sr(sX,4)}, 0 offen sc1")
        a.e("s_mov_b64 exec, -1")
        a.lab("K1_TZ")
        a.lab("K1_TGO")
    a.e(f"s_mov_b32 s{sIT+3}, 0")
    a.lab("K1_TL")
    for b in range(NB_T):
        T = sTs[b]
        a.e(f"s_mul_i32 s{t1}, s{sTAU}, 13108")
        a.e(f"s_lshr_b32 s{t1}, s{t1}, 16")
        a.e(f"s_mul_i32 s{t2}, s{t1}, 5")
        a.e(f"s_sub_u32 s{t2}, s{sTAU}, s{t2}")
        a.e(f"s_lshr_b32 s{t5}, s{t1}, 1")
        a.e(f"s_mul_i32 s{t5}, s{t5}, 20")
        a.e(f"s_and_b32 s{t6}, s{t1}, 1")
        a.e(f"s_lshl_b32 s{t6}, s{t6}, 2")
        a.e(f"s_add_u32 s{t5}, s{t5}, s{t6}")
        a.e(f"s_add_u32 s{t6}, s{t5}, 8")
        a.e(f"s_sub_u32 s{t3}, s{t1}, 64")
        a.e(f"s_mul_i32 s{t3}, s{t3}, 40")
        a.e(f"s_add_u32 s{t4}, s{t3}, 36")
        a.e(f"s_add_u32 s{t3}, s{t3}, 16")
        a.e(f"s_cmp_lt_u32 s{t1}, 64")
        a.e(f"s_cselect_b32 s{t5}, s{t5}, s{t3}")
        a.e(f"s_cselect_b32 s{t6}, s{t6}, s{t4}")
        a.e(f"s_sub_u32 s{t3}, s{t1}, 80")
        a.e(f"s_lshr_b32 s{t4}, s{t3}, 2")
        a.e(f"s_lshl_b32 s{t4}, s{t4}, 5")
        a.e(f"s_and_b32 s{t3}, s{t3}, 3")
        a.e(f"s_lshl_b32 s{t3}, s{t3}, 2")
        a.e(f"s_add_u32 s{t3}, s{t3}, s{t4}")
        a.e(f"s_add_u32 s{t4}, s{t3}, 16")
        a.e(f"s_cmp_lt_u32 s{t1}, 80")
        a.e(f"s_cselect_b32 s{t5}, s{t5}, s{t3}")
        a.e(f"s_cselect_b32 s{t6}, s{t6}, s{t4}")
        a.e(f"s_cselect_b32 s{T}, s8, s16")
        a.e(f"s_cselect_b32 s{T+1}, s9, s17")
        a.e(f"s_cselect_b32 s{T+2}, {hx(640*640*2)}, {hx(1728*640*2)}")
        a.e(f"s_mov_b32 s{T+3}, 0x00020000")
        a.e(f"s_mul_i32 s{sK[b]}, s{t5}, 1280")
        a.e(f"s_mul_i32 s{sK[b]+1}, s{t6}, 1280")
        a.e(f"s_lshl_b32 s{t3}, s{t2}, 8")
        a.e(f"v_add_u32 v{vTO[b]}, s{t3}, v{vT}")
        for j in range(8):
            so = sK[b] if j < 4 else sK[b] + 1
            a.e(f"buffer_load_dword v{vTL[b]+j}, v{vTO[b]}, {sr(T,4)}, s{so} offen offset:{(j&3)*1280}")
        a.e(f"s_mul_i32 s{t1}, s{t1}, 10240")
        a.e(f"s_lshl_b32 s{t2}, s{t2}, 11")
        a.e(f"s_add_u32 s{t1}, s{t1}, s{t2}")
        a.e(f"s_add_u32 s{t1}, s{t1}, {hx(WT_OFF)}")
        a.e(f"s_cmp_lt_u32 s{sTAU}, 1480")
        a.e(f"s_cselect_b32 s{t1}, s{t1}, {hx(OOB)}")
        a.e(f"v_add_u32 v{vTS[b]}, s{t1}, v{vT+1}")
        a.e(f"s_add_u32 s{sTAU}, s{sTAU}, 192")
    for b in range(NB_T):
        a.e(f"s_waitcnt vmcnt({8*(NB_T-1-b)})")
        for i in range(4):
            a.e(f"v_perm_b32 v{vTL[b]+8+i}, v{vTL[b]+2*i+1}, v{vTL[b]+2*i}, s{sSEL0}")
            a.e(f"v_perm_b32 v{vTL[b]+12+i}, v{vTL[b]+2*i+1}, v{vTL[b]+2*i}, s{sSEL1}")
        a.e(f"ds_write_b128 v10, {vr(vTL[b]+8,4)} offset:{2048*b}")
        a.e(f"ds_write_b128 v10, {vr(vTL[b]+12,4)} offset:{2048*b+16}")
    a.e("s_waitcnt lgkmcnt(0)")
    for b in range(NB_T):
        a.e(f"ds_read_b128 {vr(vTL[b]+8,4)}, v11 offset:{2048*b}")
        a.e(f"ds_read_b128 {vr(vTL[b]+12,4)}, v11 offset:{2048*b+1024}")
    for b in range(NB_T):
        a.e(f"s_waitcnt lgkmcnt({2*(NB_T-1-b)})")
        a.e(f"buffer_store_dwordx4 {vr(vTL[b]+8,4)}, v{vTS[b]}, {sr(sWS,4)}, 0 offen{SCT}")
        a.e(f"buffer_store_dwordx4 {vr(vTL[b]+12,4)}, v{vTS[b]}, {sr(sWS,4)}, 0 offen offset:1024{SCT}")
    a.e(f"s_add_u32 s{sIT+3}, s{sIT+3}, 1")
    a.e(f"s_cmp_lt_u32 s{sIT+3}, 2")
    a.e("s_cbranch_scc1 K1_TL")
    if DIAG:
        for i in (1, 2, 3, 5):
            stamp(a, i)
    k1flush()
    if ONE:
        a.e("s_waitcnt vmcnt(0)")
        a.e("s_barrier")
        a.e(f"s_cmp_lg_u32 s{sW}, 0")
        a.e("s_cbranch_scc1 P2_ENTRY")
        zpoll("tr", sX, 22, 23)
        a.e(f"v_lshlrev_b32 v22, 11, v{vLANE}")
        a.e(f"s_lshl_b32 s{t1}, s{sRB}, 2")
        a.e(f"s_add_u32 s{t1}, s{t1}, {hx(FL_OFF + FQ_REL + 15*128)}")
        a.e("s_mov_b64 exec, 15")
        a.e(f"buffer_store_dword v21, v22, {sr(sWS,4)}, s{t1} offen sc1")
        a.e("s_mov_b64 exec, -1")
        a.e("s_branch P2_ENTRY")
    a.lab("K1_END")
    a.e("s_endpgm")
    return name, NV, 102 if (DIAG or DBG) else 80, (256, 768, K1_LDS)


K2_LDS = 163840
Y_OFF = 0x1400000
Y_SIZE = 2048 * 640 * 4
WS_ALL = Y_OFF + Y_SIZE


def gen_k2(a):
    name = "k2_attn_kernel"
    if ONE:
        a.raw(".p2align 6")
        a.lab("P2_ENTRY")
    else:
        kernel_header(a, name)
    X2 = os.environ.get("K2X", "")
    sWS, sKV = 12, 16
    sW, sH, sQT, sOFF, sIT, sG = 20, 21, 22, 23, 24, 25
    sLD = 26
    t0, t1, t2, t3 = 28, 29, 30, 31
    sBM = 32
    vLANE = 1
    vL16, vKa, vKb, vV = 2, 3, 4, 5
    vT = 6
    QA, QB = [12, 20], [16, 24]
    KA, KB = 28, 32
    V0, V1 = 36, 40
    P0, P1 = 44, 48
    O = [64, 80]
    S = [96, 112]
    NV = 168
    RG = 81920
    FUSE = "u" not in X2
    k2flush = lambda: (stamp(a, 4), stamp_flush(a, 1, 12, sW, "s4", "s5", 8, 2))

    if not ONE:
        a.e("s_cmp_ge_u32 s2, 256")
        a.e("s_cbranch_scc1 K2_END")
    stamp(a, 0)
    a.e("s_load_dwordx2 s[4:5], s[0:1], 80")
    a.e("s_load_dwordx2 s[6:7], s[0:1], 0")
    a.e("s_load_dwordx2 s[8:9], s[0:1], 56")
    a.e("s_load_dwordx4 s[60:63], s[0:1], 64")
    a.e(f"v_and_b32 v{vLANE}, 63, v0")
    a.e(f"v_lshrrev_b32 v{vT}, 6, v0")
    a.e(f"s_and_b32 s{t0}, s2, 7")
    a.e(f"v_readfirstlane_b32 s{sW}, v{vT}")
    a.e(f"s_lshr_b32 s{t1}, s2, 3")
    a.e(f"s_lshl_b32 s{t2}, s{t0}, 2")
    a.e(f"s_and_b32 s{t3}, s{t1}, 3")
    a.e(f"s_add_u32 s{sH}, s{t2}, s{t3}")
    a.e(f"v_lshlrev_b32 v{vL16}, 4, v{vLANE}")
    a.e(f"s_mul_i32 s{t2}, s{sH}, {KVH}")
    a.e(f"s_add_u32 s{t2}, s{t2}, {hx(KV_OFF)}")
    a.e("s_waitcnt lgkmcnt(0)")
    stamp(a, 5)
    a.e(f"s_add_u32 s{sKV}, s4, s{t2}")
    a.e(f"s_addc_u32 s{sKV+1}, s5, 0")
    a.e(f"s_mov_b32 s{sKV+2}, {KVH}")
    a.e(f"s_mov_b32 s{sKV+3}, 0x00020000")
    sFL = 64

    def gpoll(tag, vaddr, vd):
        a.e(f"s_mov_b32 s{sIT}, 0")
        a.lab(f"GP_{tag}")
        a.e(f"buffer_load_dword v{vd}, v{vaddr}, {sr(sFL,4)}, 0 offen sc1")
        a.e(f"s_add_u32 s{sIT}, s{sIT}, 1")
        a.e("s_waitcnt vmcnt(0)")
        a.e(f"v_cmp_ne_u32 vcc, 1, v{vd}")
        a.e(f"s_cmp_ge_u32 s{sIT}, {POLL_MAX}")
        a.e(f"s_cbranch_scc1 GD_{tag}")
        a.e(f"s_cbranch_vccz GD_{tag}")
        a.e("s_sleep 3")
        a.e(f"s_branch GP_{tag}")
        a.lab(f"GD_{tag}")

    if ONE:
        a.e(f"v_mov_b32 v{vT+5}, {K1_SYN + 8}")
        a.e(f"s_cmp_lg_u32 s{sW}, 0")
        a.e("s_cbranch_scc1 P2_SPIN")
        srd_off(a, sFL, "s4", "s5", FL_OFF, FL_SIZE)
        a.e(f"s_mul_i32 s{t2}, s{sH}, 20")
        a.e(f"s_and_b32 s{t3}, s2, 3")
        a.e(f"s_lshl_b32 s{t3}, s{t3}, 11")
        a.e(f"s_add_u32 s{t3}, s{t3}, {FQ_REL}")
        a.e(f"v_lshrrev_b32 v{vT}, 5, v{vLANE}")
        a.e(f"v_mul_u32_u24 v{vT}, 640, v{vT}")
        a.e(f"v_bfe_u32 v{vT+1}, v{vLANE}, 4, 1")
        a.e(f"v_mul_u32_u24 v{vT+1}, 19, v{vT+1}")
        a.e(f"v_add3_u32 v{vT}, v{vT}, v{vT+1}, s{t2}")
        a.e(f"v_add_u32 v{vT}, 640, v{vT}")
        a.e(f"v_and_b32 v{vT}, 0xffffff80, v{vT}")
        a.e(f"v_and_b32 v{vT+1}, 15, v{vLANE}")
        a.e(f"v_lshl_add_u32 v{vT}, v{vT+1}, 2, v{vT}")
        a.e(f"v_add_u32 v{vT}, s{t3}, v{vT}")
        a.e(f"v_and_b32 v{vT+2}, 1, v{vLANE}")
        a.e(f"v_mul_u32_u24 v{vT+2}, 19, v{vT+2}")
        a.e(f"v_add_u32 v{vT+2}, s{t2}, v{vT+2}")
        a.e(f"v_and_b32 v{vT+2}, 0xffffff80, v{vT+2}")
        a.e(f"v_bfe_u32 v{vT+3}, v{vLANE}, 1, 1")
        a.e(f"s_lshr_b32 s{t2}, s2, 5")
        a.e(f"s_lshl_b32 s{t2}, s{t2}, 1")
        a.e(f"v_add_u32 v{vT+3}, s{t2}, v{vT+3}")
        a.e(f"v_lshl_add_u32 v{vT+2}, v{vT+3}, 2, v{vT+2}")
        a.e(f"v_lshlrev_b32 v{vT+3}, 2, v{vT+1}")
        a.e(f"v_add_u32 v{vT+3}, {15*128}, v{vT+3}")
        a.e(f"v_cmp_gt_u32 vcc, 16, v{vLANE}")
        a.e("s_nop 1")
        a.e(f"v_cndmask_b32 v{vT+2}, v{vT+2}, v{vT+3}, vcc")
        a.e(f"v_add_u32 v{vT+2}, s{t3}, v{vT+2}")
        a.e(f"s_mov_b32 s{sIT}, 0")
        a.lab("GP_go")
        a.e(f"buffer_load_dword v{vT+4}, v{vT}, {sr(sFL,4)}, 0 offen sc1")
        a.e(f"buffer_load_dword v{vT+3}, v{vT+2}, {sr(sFL,4)}, 0 offen sc1")
        a.e(f"s_add_u32 s{sIT}, s{sIT}, 1")
        a.e("s_waitcnt vmcnt(0)")
        a.e(f"v_and_b32 v{vT+4}, v{vT+4}, v{vT+3}")
        a.e(f"v_cmp_ne_u32 vcc, 1, v{vT+4}")
        a.e(f"s_cmp_ge_u32 s{sIT}, {POLL_MAX}")
        a.e("s_cbranch_scc1 GD_go")
        a.e("s_cbranch_vccz GD_go")
        a.e(f"s_sleep {os.environ.get('GSL', '3')}")
        a.e("s_branch GP_go")
        a.lab("GD_go")
        a.e(f"v_mov_b32 v{vT+4}, 1")
        a.e(f"ds_write_b32 v{vT+5}, v{vT+4}")
        a.e("s_branch P2_GO")
        a.lab("P2_SPIN")
        a.e(f"ds_read_b32 v{vT+4}, v{vT+5}")
        a.e("s_waitcnt lgkmcnt(0)")
        a.e(f"v_readfirstlane_b32 s{t2}, v{vT+4}")
        a.e(f"s_cmp_eq_u32 s{t2}, 1")
        a.e("s_cbranch_scc1 P2_GO")
        a.e("s_sleep 1")
        a.e("s_branch P2_SPIN")
        a.lab("P2_GO")
        stamp(a, 5)
    a.e(f"s_cmp_ge_u32 s{sW}, 4")
    a.e("s_cbranch_scc1 K2_ATT")
    sA, sWT, sXX, sB2, sY = 36, 40, 44, 48, 52
    sRB, sCB, sOA, sOW = 56, 57, 58, 59
    vOA, vOW, vXO, vBO, vYO = 3, 4, 5, 12, 13
    F = 16
    ACC = 88

    def fA(s_, mt):
        return F + 36 * s_ + 4 * mt

    def fW(s_, t):
        return F + 36 * s_ + 16 + 4 * t

    def kvdma(n):
        for t in range(n):
            a.e(f"s_mov_b32 m0, s{sLD}")
            a.e(f"s_add_u32 s{sLD}, s{sLD}, 2048")
            a.e(f"buffer_load_dwordx4 v{vL16}, {sr(sKV,4)}, s{sOFF} offen{SC} lds")
            a.e(f"s_add_u32 s{sOFF}, s{sOFF}, 2048")

    dstamp(a, 4)
    dstamp(a, 5, True)
    a.e("s_setprio 3")
    a.e(f"s_and_b32 s{t2}, s{sW}, 1")
    a.e(f"s_lshr_b32 s{t3}, s{sW}, 1")
    a.e(f"s_lshl_b32 s{t3}, s{t3}, 10")
    a.e(f"s_mul_i32 s{sOFF}, s{t2}, {32*KVT}")
    a.e(f"s_add_u32 s{sOFF}, s{sOFF}, s{t3}")
    a.e(f"s_mul_i32 s{sLD}, s{t2}, {RG}")
    a.e(f"s_add_u32 s{sLD}, s{sLD}, s{t3}")
    a.e(f"s_add_u32 m0, s{sLD}, {15*2*KVT}")
    a.e(f"s_add_u32 s{t2}, s{sOFF}, {15*2*KVT + 1280}")
    a.e(f"buffer_load_dwordx4 v{vL16}, {sr(sKV,4)}, s{t2} offen{SC} lds")
    a.e(f"s_cmp_eq_u32 s{t3}, 0")
    a.e(f"s_cselect_b32 exec_hi, 0xff, 0")
    a.e(f"s_cselect_b32 exec_lo, -1, 1")
    a.e(f"s_cselect_b32 s{sBM}, 2048, 0")
    a.e(f"s_add_u32 s{t2}, s{t2}, s{sBM}")
    a.e(f"s_add_u32 s{sBM}, s{sBM}, s{sLD}")
    a.e(f"s_add_u32 m0, s{sBM}, {15*2*KVT}")
    a.e("s_nop 0")
    a.e(f"buffer_load_dwordx4 v{vL16}, {sr(sKV,4)}, s{t2} offen{SC} lds")
    a.e("s_mov_b64 exec, -1")
    NPRE = int(os.environ.get("NPRE", "6"))
    NMID = int(os.environ.get("NMID", "10"))
    kvdma(NPRE)
    a.e(f"s_lshl_b32 s{t0}, s{t0}, 2")
    a.e(f"s_and_b32 s{t2}, s{t1}, 3")
    a.e(f"s_add_u32 s{sRB}, s{t0}, s{t2}")
    a.e(f"s_lshr_b32 s{sCB}, s{t1}, 2")
    srd_off(a, sA, "s4", "s5", AB_OFF + 80 * 32768, AB_SIZE - 80 * 32768)
    srd_off(a, sWT, "s4", "s5", WT_OFF + 80 * 10240, WT_SIZE - 80 * 10240)
    srd(a, sXX, "s6", "s7", 2048 * 640 * 2)
    srd(a, sB2, "s8", "s9", 640 * 2)
    a.e(f"v_and_b32 v{vT}, 15, v{vLANE}")
    a.e(f"v_lshrrev_b32 v{vT+1}, 4, v{vLANE}")
    a.e(f"s_lshl_b32 s{t0}, s{sRB}, 6")
    a.e(f"v_add_u32 v{vT+2}, s{t0}, v{vT}")
    a.e(f"v_lshlrev_b32 v{vOA}, 4, v{vT+2}")
    a.e(f"v_lshl_add_u32 v{vOA}, v{vT+1}, 15, v{vOA}")
    a.e(f"s_mul_i32 s{t1}, s{sCB}, 80")
    a.e(f"v_add_u32 v{vT+3}, s{t1}, v{vT}")
    a.e(f"v_lshlrev_b32 v{vOW}, 4, v{vT+3}")
    a.e(f"v_mul_u32_u24 v{vT+3}, 10240, v{vT+1}")
    a.e(f"v_add_u32 v{vOW}, v{vOW}, v{vT+3}")
    a.e(f"s_lshl_b32 s{sOA}, s{sW}, 17")
    a.e(f"s_mul_i32 s{sOW}, s{sW}, 40960")
    a.e(f"v_lshlrev_b32 v{vBO}, 3, v{vT+1}")
    a.e(f"s_lshl_b32 s{t2}, s{t1}, 1")
    a.e(f"v_add_u32 v{vBO}, s{t2}, v{vBO}")
    a.e(f"s_lshl_b32 s{t2}, s{sW}, 4")
    a.e(f"v_add_u32 v{vT+2}, s{t2}, v{vT+2}")
    a.e(f"v_mul_u32_u24 v{vXO}, 1280, v{vT+2}")
    a.e(f"v_add_u32 v{vXO}, v{vXO}, v{vBO}")
    a.e(f"s_lshl_b32 s{t0}, s{sRB}, 3")
    a.e(f"s_add_u32 s{t0}, s{t0}, s{sCB}")
    a.e(f"s_mul_i32 s{t0}, s{t0}, 20480")
    a.e(f"s_mul_i32 s{t2}, s{sW}, 5120")
    a.e(f"s_add_u32 s{t0}, s{t0}, s{t2}")
    a.e(f"v_add_u32 v{vYO}, s{t0}, v{vL16}")
    for i in range(80):
        a.e(f"v_mov_b32 v{ACC+i}, 0")
    a.e(f"s_mov_b32 s{sIT}, 0")
    a.e(f"s_mov_b32 s{sBM}, {hx(0 if 'B' in X2 else (1 << 1))}")
    a.e(f"v_mov_b32 v{vT}, 0")
    a.e(f"s_waitcnt vmcnt({NPRE})")
    a.e("s_barrier")
    stamp(a, 1)
    kvdma(NMID)
    a.e(f"s_waitcnt vmcnt({NPRE + NMID - 6})")
    a.e("s_barrier")
    kvdma(38 - NPRE - NMID)
    a.e(f"s_lshr_b32 s{t3}, s{sW}, 1")
    a.e(f"s_cmp_eq_u32 s{t3}, 0")
    a.e(f"s_cselect_b32 exec_hi, 0xffffff, 0")
    a.e(f"s_cselect_b32 exec_lo, -1, 1")
    a.e(f"s_cselect_b32 s{t3}, 0, 2048")
    a.e(f"s_sub_u32 s{sLD}, s{sLD}, s{t3}")
    a.e(f"s_sub_u32 s{sOFF}, s{sOFF}, s{t3}")
    kvdma(1)
    a.e("s_mov_b64 exec, -1")

    def loads(s_):
        r = [f"buffer_load_dwordx4 {vr(fA(s_,mt),4)}, v{vOA}, {sr(sA,4)}, s{sOA} offen offset:{256*mt}{SC}" for mt in range(4)]
        for t in range(5):
            r.append(f"buffer_load_dwordx4 {vr(fW(s_,t),4)}, v{vOW}, {sr(sWT,4)}, s{sOW} offen offset:{256*t}{SC}")
        r.append(f"s_add_u32 s{sOA}, s{sOA}, {4*131072}")
        r.append(f"s_add_u32 s{sOW}, s{sOW}, {4*40960}")
        return r

    a.e("s_waitcnt vmcnt(29)")
    a.e("s_barrier")
    if ONE:
        srd_off(a, sFL, "s4", "s5", FL_OFF, FL_SIZE)
        a.e(f"v_min_u32 v{vT+1}, 13, v{vLANE}")
        a.e(f"v_lshlrev_b32 v{vT+1}, 2, v{vT+1}")
        a.e(f"s_lshr_b32 s{t2}, s{sRB}, 1")
        a.e(f"s_lshl_b32 s{t2}, s{t2}, 7")
        a.e(f"s_add_u32 s{t2}, s{t2}, {FH_REL}")
        a.e(f"v_add_u32 v{vT+1}, s{t2}, v{vT+1}")
        a.e("s_waitcnt vmcnt(0)")
        a.e("s_barrier")
        a.e("s_mov_b64 exec, 0xffff")
        gpoll("h", vT + 1, vT + 4)
        a.e("s_mov_b64 exec, -1")
        a.e(f"s_mov_b32 s{sIT}, 0")
        for s_ in range(2):
            for ins in loads(s_):
                a.e(ins)
    else:
        for s_ in range(2):
            for ins in loads(s_):
                a.e(ins)
        a.e("s_waitcnt vmcnt(18)")
        a.e("s_barrier")
    stamp(a, 2)
    a.e(f"s_setprio {3 if 'Z' in X2 else (1 if 'y' in X2 else 0)}")
    a.raw(".p2align 3")
    a.lab("K2_GL")
    for s_ in range(2):
        ld = loads(s_)
        a.e("s_waitcnt vmcnt(9)")
        for t in range(5):
            for mt in range(4):
                A_ = ACC + 20 * mt + 4 * t
                a.e(f"v_mfma_f32_16x16x32_bf16 {vr(A_,4)}, {vr(fW(s_,t),4)}, {vr(fA(s_,mt),4)}, {vr(A_,4)}")
                if t == 4:
                    a.e(ld[mt])
            a.e(ld[4 + t])
        a.e(ld[9]); a.e(ld[10])
    a.e(f"s_add_u32 s{sIT}, s{sIT}, 1")
    a.e(f"s_cmp_lt_u32 s{sIT}, 7")
    a.e("s_cbranch_scc1 K2_GL")
    stamp(a, 3)
    a.e("s_setprio 3")
    a.e("s_waitcnt vmcnt(0)")
    XR = 68
    for q in range(5):
        a.e(f"buffer_load_dwordx2 {vr(XR+2*q,2)}, v{vXO}, {sr(sXX,4)}, 0 offen offset:{32*q}")
        a.e(f"buffer_load_dwordx2 {vr(XR+10+2*q,2)}, v{vBO}, {sr(sB2,4)}, 0 offen offset:{32*q}")
    srd_off(a, sWT, "s4", "s5", WT_OFF, 80 * 10240)
    srd_off(a, sA, "s4", "s5", AB_OFF, 80 * 32768)
    srd(a, sY, "s60", "s61", 2048 * 640 * 2)
    srd_off(a, sFL, "s4", "s5", FL_OFF, FL_SIZE)
    a.e(f"s_mul_i32 s{sOW}, s{sW}, {5*40960}")
    a.e(f"s_lshr_b32 s{t0}, s{sW}, 1")
    a.e(f"s_mul_i32 s{t0}, s{t0}, {RG}")
    a.e(f"s_and_b32 s{t1}, s{sW}, 1")
    a.e(f"s_mul_i32 s{t1}, s{t1}, 25600")
    a.e(f"s_add_u32 s{t0}, s{t0}, s{t1}")
    if 'B' not in X2:
        a.e("s_barrier")
    for r in range(5):
        for q in range(5):
            a.e(f"s_add_u32 m0, s{t0}, {r*5120 + q*768}")
            a.e("s_nop 0")
            a.e(f"buffer_load_dwordx4 v{vOW}, {sr(sWT,4)}, s{sOW} offen offset:{256*q}{SC} lds")
        a.e(f"s_add_u32 s{sOW}, s{sOW}, 40960")
    a.e(f"s_lshl_b32 s{t2}, s{sW}, 8")
    a.e(f"v_add_u32 v{vOA}, s{t2}, v{vOA}")
    a.e(f"v_and_b32 v{vYO}, 0x7fff, v{vOA}")
    a.e(f"v_lshrrev_b32 v{vYO}, 1, v{vYO}")
    a.e(f"v_and_b32 v{vBO}, 0xffff8000, v{vOA}")
    a.e(f"v_add_u32 v{vYO}, v{vYO}, v{vBO}")
    a.e(f"v_add_u32 v{vBO}, 16384, v{vYO}")
    a.e(f"v_add_u32 v{vT+2}, {RG}, v{vL16}")
    a.e(f"v_mov_b32 v{vT+1}, 1")
    a.e(f"s_lshr_b32 s{t2}, s2, 5")
    a.e(f"s_lshl_b32 s{t2}, s{t2}, 5")
    a.e(f"s_add_u32 s{t2}, s{t2}, s{sH}")
    a.e(f"s_lshl_b32 s{t2}, s{t2}, 2")
    a.e(f"s_lshr_b32 s{t3}, s{sRB}, 2")
    a.e(f"s_lshl_b32 s{t3}, s{t3}, 7")
    a.e(f"v_lshlrev_b32 v{vT+4}, 2, v{vLANE}")
    a.e(f"v_add_u32 v{vT+4}, s{t3}, v{vT+4}")
    Y = 16
    for m in range(4):
        a.e(f"s_cmp_lg_u32 s{sW}, {m}")
        a.e(f"s_cbranch_scc1 K2_KP{m}")
        for i in range(20):
            a.e(f"v_mov_b32 v{Y+i}, v{ACC+20*m+i}")
        a.lab(f"K2_KP{m}")
    a.e("s_waitcnt vmcnt(25)")
    U = 36
    for q in range(5):
        for k, src in enumerate((XR + 2 * q, XR + 10 + 2 * q)):
            u = U + 4 * k
            a.e(f"v_lshlrev_b32 v{u}, 16, v{src}")
            a.e(f"v_and_b32 v{u+1}, 0xffff0000, v{src}")
            a.e(f"v_lshlrev_b32 v{u+2}, 16, v{src+1}")
            a.e(f"v_and_b32 v{u+3}, 0xffff0000, v{src+1}")
        for i in range(4):
            a.e(f"v_add_f32 v{Y+4*q+i}, v{Y+4*q+i}, v{U+i}")
        for i in range(4):
            a.e(f"v_add_f32 v{Y+4*q+i}, v{Y+4*q+i}, v{U+4+i}")
    a.e("s_barrier")
    a.e("s_waitcnt vmcnt(0)")
    a.e("s_barrier")
    dstamp(a, 6)
    stamp(a, 1)
    a.e(f"s_cmp_lg_u32 s{sW}, 0")
    a.e("s_cbranch_scc1 K2_NF")
    a.e("s_mov_b64 exec, 1")
    a.e(f"buffer_store_dword v{vT+1}, v{vT}, {sr(sFL,4)}, s{t2} offen sc1")
    a.e("s_mov_b64 exec, -1")
    a.lab("K2_NF")

    def slot_addr(sdst, s_slot):
        a.e(f"s_mul_i32 s{sdst}, s{s_slot}, 5120")
        a.e(f"s_cmp_ge_u32 s{s_slot}, 6")
        a.e(f"s_cselect_b32 s{s_slot}, {RG - 6*5120 + 51200}, 51200")
        a.e(f"s_add_u32 s{sdst}, s{sdst}, s{s_slot}")

    for m in range(4):
        a.e(f"s_cmp_eq_u32 s{sW}, {m}")
        a.e(f"s_cbranch_scc1 K2_SK{m}")
        a.e(f"s_cmp_gt_u32 s{sW}, {m}")
        a.e(f"s_cselect_b32 s{t1}, {3*m-1}, {3*m}")
        a.e(f"s_add_u32 s{t1}, s{t1}, s{sW}")
        slot_addr(t0, t1)
        a.e(f"v_add_u32 v{vT+3}, s{t0}, v{vL16}")
        for q in range(5):
            a.e(f"ds_write_b128 v{vT+3}, {vr(ACC+20*m+4*q,4)} offset:{1024*q}")
        a.lab(f"K2_SK{m}")
    a.e(f"s_mul_i32 s{t1}, s{sW}, 3")
    slot_addr(t0, t1)
    a.e(f"v_add_u32 v{vT+3}, s{t0}, v{vL16}")
    a.e("s_waitcnt lgkmcnt(0)")
    a.e("s_barrier")
    for p in range(3):
        for q in range(5):
            a.e(f"ds_read_b128 {vr(ACC+20*p+4*q,4)}, v{vT+3} offset:{5120*p+1024*q}")
    for p in range(3):
        a.e(f"s_waitcnt lgkmcnt({5*(2-p)})")
        for i in range(20):
            a.e(f"v_add_f32 v{Y+i}, v{Y+i}, v{ACC+20*p+i}")
    a.e(f"s_cmp_lg_u32 s{sW}, 0")
    a.e("s_cbranch_scc1 K2_PW")
    a.e("s_mov_b32 exec_hi, 0")
    gpoll("o", vT + 4, vT + 3)
    a.e("s_mov_b64 exec, -1")
    a.lab("K2_PW")
    a.e("s_barrier")
    dstamp(a, 7)
    stamp(a, 2)
    YA = [Y + 4 * q for q in range(5)]
    FAr = [88 + 4 * i for i in range(20)]
    FBr = [[36 + 4 * t for t in range(5)], [56 + 4 * t for t in range(5)]]
    a.e(f"s_mov_b32 s{sOA}, 0")
    for ks in range(20):
        if ks < 16:
            a.e(f"buffer_load_dwordx4 {vr(FAr[ks],4)}, v{vOA}, {sr(sA,4)}, s{sOA} offen sc1")
        else:
            a.e(f"buffer_load_dwordx2 {vr(FAr[ks],2)}, v{vYO}, {sr(sA,4)}, s{sOA} offen sc1")
            a.e(f"buffer_load_dwordx2 {vr(FAr[ks]+2,2)}, v{vBO}, {sr(sA,4)}, s{sOA} offen sc1")
        a.e(f"s_add_u32 s{sOA}, s{sOA}, 131072")

    def rdB(ks):
        base, off = (vL16, ks * 5120) if ks < 10 else (vT + 2, (ks - 10) * 5120)
        return [f"ds_read_b128 {vr(FBr[ks&1][t],4)}, v{base} offset:{off+1024*t}" for t in range(5)]

    for ins in rdB(0):
        a.e(ins)
    for ks in range(20):
        if ks < 19:
            for ins in rdB(ks + 1):
                a.e(ins)
        a.e(f"s_waitcnt vmcnt({23-ks if ks < 16 else 2*(19-ks)}) lgkmcnt({5 if ks < 19 else 0})")
        for t in range(5):
            a.e(f"v_mfma_f32_16x16x32_bf16 {vr(YA[t],4)}, {vr(FBr[ks&1][t],4)}, {vr(FAr[ks],4)}, {vr(YA[t],4)}")
    a.e("s_nop 7")
    for t in range(5):
        A_ = YA[t]
        a.e(f"v_cvt_pk_bf16_f32 v{A_}, v{A_}, v{A_+1}")
        a.e(f"v_cvt_pk_bf16_f32 v{A_+1}, v{A_+2}, v{A_+3}")
        a.e(f"buffer_store_dwordx2 {vr(A_,2)}, v{vXO}, {sr(sY,4)}, 0 offen offset:{32*t}")
    dstamp(a, 8)
    k2flush()
    a.e("s_endpgm")

    a.lab("K2_ATT")
    vKa0, vKb0, vV0 = 52, 53, 54
    srd(a, sWS, "s4", "s5", WS_END)
    if "C" in X2:
        NPF = int(os.environ.get("NPF", "8"))
        a.e(f"s_cmp_ge_u32 s2, {NPF}")
        a.e("s_cbranch_scc1 K2_NOCP")
        a.e(f"s_cmp_ge_u32 s{sW}, 6")
        a.e("s_cbranch_scc1 K2_NOCP")
        a.e(f"s_and_b32 s{t0}, s{sW}, 1")
        code_prefetch(a, "k2", "k2_attn_kernel", "CODE_END", 36, t0, vLANE, vT, 60)
        a.lab("K2_NOCP")
    a.e(f"s_lshr_b32 s{sG}, s{sW}, 3")
    a.e(f"s_lshr_b32 s{t1}, s{t1}, 2")
    a.e(f"s_lshl_b32 s{t1}, s{t1}, 3")
    a.e(f"s_and_b32 s{t2}, s{sW}, 3")
    a.e(f"s_lshl_b32 s{t2}, s{t2}, 1")
    a.e(f"s_add_u32 s{sQT}, s{t1}, s{t2}")
    a.e(f"s_mul_i32 s{t0}, s{sH}, 81920")
    a.e(f"s_mul_i32 s{t1}, s{sQT}, 1280")
    a.e(f"s_add_u32 s{t0}, s{t0}, s{t1}")
    if QB_OFF:
        a.e(f"s_add_u32 s{t0}, s{t0}, {hx(QB_OFF)}")
    a.e(f"v_and_b32 v{vT}, 31, v{vLANE}")
    a.e(f"v_lshrrev_b32 v{vT+1}, 5, v{vLANE}")
    a.e(f"v_lshlrev_b32 v{vKb0}, 3, v{vT}")
    a.e(f"v_lshl_add_u32 v{vT+2}, v{vT+1}, 30, v{vKb0}")
    a.e(f"v_add_u32 v{vKb0}, 1024, v{vKb0}")
    a.e(f"v_lshlrev_b32 v{vKa0}, 3, v{vLANE}")
    a.e(f"v_min_u32 v{vT+3}, 20, v{vT}")
    a.e(f"v_bfe_u32 v{vT+4}, v{vT+3}, 1, 3")
    a.e(f"v_xor_b32 v{vT+4}, v{vT+4}, v{vT+1}")
    a.e(f"v_lshlrev_b32 v{vT+4}, 4, v{vT+4}")
    a.e(f"v_lshl_add_u32 v{vV0}, v{vT+3}, 7, v{vT+4}")
    vVV = [vV, 18, 19, 26]
    K2A, V0B, V1B, K2B = 56, 60, 132, 130
    for i in range(1, 4):
        a.e(f"v_xor_b32 v{vVV[i]}, {32*i}, v{vV0}")
    a.e(f"s_mul_i32 s{sOFF}, s{sG}, {32*KVT}")
    a.e(f"s_add_u32 s{sOFF}, s{sOFF}, {30*KVT}")
    a.e(f"s_add_u32 s{t1}, s{sOFF}, {koff(1)}")
    a.e(f"buffer_load_dwordx2 {vr(QA[0],2)}, v{vKa0}, {sr(sWS,4)}, s{t0} offen{SC}")
    a.e(f"buffer_load_dwordx2 {vr(QA[0]+2,2)}, v{vKa0}, {sr(sWS,4)}, s{t0} offen offset:512{SC}")
    a.e(f"buffer_load_dwordx2 {vr(QB[0],2)}, v{vT+2}, {sr(sWS,4)}, s{t0} offen offset:1024{SC}")
    a.e(f"buffer_load_dwordx2 {vr(KA,2)}, v{vKa0}, {sr(sKV,4)}, s{sOFF} offen{SC}")
    a.e(f"buffer_load_dwordx2 {vr(KA+2,2)}, v{vKa0}, {sr(sKV,4)}, s{sOFF} offen offset:512{SC}")
    a.e(f"buffer_load_dwordx2 {vr(KB,2)}, v{vKb0}, {sr(sKV,4)}, s{sOFF} offen{SC}")
    a.e(f"buffer_load_dwordx2 {vr(QA[1],2)}, v{vKa0}, {sr(sWS,4)}, s{t0} offen offset:1280{SC}")
    a.e(f"buffer_load_dwordx2 {vr(QA[1]+2,2)}, v{vKa0}, {sr(sWS,4)}, s{t0} offen offset:{1280+512}{SC}")
    a.e(f"buffer_load_dwordx2 {vr(QB[1],2)}, v{vT+2}, {sr(sWS,4)}, s{t0} offen offset:2304{SC}")
    a.e(f"buffer_load_dwordx2 {vr(K2A,2)}, v{vKa0}, {sr(sKV,4)}, s{t1} offen{SC}")
    a.e(f"buffer_load_dwordx2 {vr(K2A+2,2)}, v{vKa0}, {sr(sKV,4)}, s{t1} offen offset:512{SC}")
    a.e(f"buffer_load_dwordx2 {vr(K2B,2)}, v{vKb0}, {sr(sKV,4)}, s{t1} offen{SC}")
    a.e(f"s_mul_i32 s{t1}, s{sG}, {RG}")
    a.e(f"v_add_u32 v{vKa}, s{t1}, v{vKa0}")
    a.e(f"v_add_u32 v{vKb}, s{t1}, v{vKb0}")
    a.e(f"v_add_u32 v{vV}, s{t1}, v{vV0}")
    for i in range(1, 4):
        a.e(f"v_add_u32 v{vVV[i]}, s{t1}, v{vVV[i]}")
    for i in range(4):
        a.e(f"v_add_u32 v{vT+i}, {15*2*KVT}, v{vVV[i]}")
    for i in range(32):
        a.e(f"v_mov_b32 v{O[0]+i}, 0")
    a.e(f"s_mov_b32 s{sIT}, 0")
    a.e(f"s_mov_b32 s{sBM}, {hx((1 << 1) | (1 << 2) | (1 << 9))}")
    a.e("s_waitcnt vmcnt(6)")
    a.e(f"v_mfma_f32_32x32x16_bf16 {vr(S[0],16)}, {vr(KA,4)}, {vr(QA[0],4)}, 0")
    a.e(f"v_mfma_f32_32x32x8_bf16 {vr(S[0],16)}, {vr(KB,2)}, {vr(QB[0],2)}, {vr(S[0],16)}")
    a.e("s_waitcnt vmcnt(0)")
    a.e("s_nop 7")

    def rdKa(t):
        return [f"ds_read_b64 {vr(KA,2)}, v{vKa} offset:{koff(t)}",
                f"ds_read_b64 {vr(KA+2,2)}, v{vKa} offset:{koff(t)+512}"]

    def rdKb(t):
        return [f"ds_read_b64 {vr(KB,2)}, v{vKb} offset:{koff(t)}"]

    def rdV(m, t):
        return [f"ds_read_b128 {vr(V0 if m == 0 else V1,4)}, v{vVV[2*(t&1)+m]} offset:{voff(t)}"]

    def movs(dst, src, n):
        return [f"v_mov_b32 v{dst+i}, v{src+i}" for i in range(n)]

    def item(x, lt, mode=""):
        Sc, Sn = S[x], S[x ^ 1]

        def ex(lo):
            for i in range(lo, lo + 4):
                a.e(f"v_exp_f32 v{Sc+i}, v{Sc+i}")

        def cv(P, lo):
            a.e(f"v_cvt_pk_bf16_f32 v{P}, v{Sc+lo}, v{Sc+lo+1}")
            a.e(f"v_cvt_pk_bf16_f32 v{P+1}, v{Sc+lo+2}, v{Sc+lo+3}")

        def em(l):
            for ins in l:
                a.e(ins)

        if x == 1 and mode != "1":
            a.e(f"s_waitcnt lgkmcnt({1 if mode == '2' else 2})")
        a.e(f"v_mfma_f32_32x32x16_bf16 {vr(Sn,16)}, {vr(KA,4)}, {vr(QA[x^1],4)}, 0")
        if x == 0:
            em(movs(KA, K2A, 4) if mode == "1" else rdKa(lt + 1))
        ex(0)
        cv(P0, 0)
        if x == 1 and mode != "1":
            a.e(f"s_waitcnt lgkmcnt({0 if mode == '2' else 1})")
        a.e(f"v_mfma_f32_32x32x8_bf16 {vr(Sn,16)}, {vr(KB,2)}, {vr(QB[x^1],2)}, {vr(Sn,16)}")
        if x == 0:
            em(movs(KB, K2B, 2) if mode == "1" else rdKb(lt + 1))
        ex(8)
        cv(P0 + 2, 8)
        if mode == "1" and x == 0:
            a.e("s_barrier")
            stamp(a, 1)
            for i, dst in enumerate((V0, V1, V0B, V1B)):
                a.e(f"ds_read_b128 {vr(dst,4)}, v{vT+i}")
        if not (mode == "1" and x == 0):
            if x == 1 and mode == "":
                a.e("s_waitcnt lgkmcnt(0)")
            a.e(f"v_mfma_f32_32x32x16_bf16 {vr(O[x^1],16)}, {vr(V1,4)}, {vr(P1,4)}, {vr(O[x^1],16)}")
            if x == 0:
                em(movs(V1, V1B, 4) if mode == "2" else rdV(1, lt))
        ex(4)
        cv(P1, 4)
        if x == 0 and mode == "":
            a.e("s_waitcnt lgkmcnt(4)")
        if x == 0 and mode == "1":
            a.e("s_waitcnt lgkmcnt(0)")
        a.e(f"v_mfma_f32_32x32x16_bf16 {vr(O[x],16)}, {vr(V0,4)}, {vr(P0,4)}, {vr(O[x],16)}")
        if x == 1:
            em(movs(V0, V0B, 4) if mode == "1" else rdV(0, lt + 1))
        ex(12)
        cv(P1 + 2, 12)

    BUNCH = False
    a.e("s_setprio 2")
    item(0, -2, "1")
    item(1, -2, "1")
    a.e("s_barrier")
    if ONE and HSM == "2":
        a.e("s_cmp_eq_u32 s72, 0")
        a.e("s_cbranch_scc1 K2_NOHS")
        for p in range(2):
            for mt in range(4):
                src = (152 if p == 0 else 136) + 4 * mt
                a.e(f"buffer_store_dwordx4 {vr(src,4)}, v{128+p}, {sr(sWS,4)}, 0 offen offset:{256*mt} sc1")
        a.lab("K2_NOHS")
    item(0, -1, "2")
    item(1, -1, "2")
    a.raw(".p2align 6")
    a.lab("K2_LOOP")
    NT = 6
    for t in range(NT):
        if t % 3 == 0:
            k = t // 3
            a.e(f"s_bitcmp1_b32 s{sBM}, s{sIT}")
            a.e(f"s_cbranch_scc1 K2_BAR{k}")
            a.lab(f"K2_BODY{k}")
            a.e(f"s_add_u32 s{sIT}, s{sIT}, 1")
        for x in range(2):
            a.e(f"s_setprio {2 - x}")
            item(x, t)
    a.e(f"v_add_u32 v{vKa}, {KVT*NT}, v{vKa}")
    a.e(f"v_add_u32 v{vKb}, {KVT*NT}, v{vKb}")
    for i in range(4):
        a.e(f"v_add_u32 v{vVV[i]}, {KVT*NT}, v{vVV[i]}")
    a.e(f"s_cmp_lt_u32 s{sIT}, 10")
    a.e("s_cbranch_scc1 K2_LOOP")
    stamp(a, 3)
    a.e("s_nop 1")
    if BUNCH:
        a.e(f"v_mfma_f32_32x32x16_bf16 {vr(O[1],16)}, {vr(V0,4)}, {vr(PP[1],4)}, {vr(O[1],16)}")
        a.e(f"v_mfma_f32_32x32x16_bf16 {vr(O[1],16)}, {vr(V1,4)}, {vr(PP[1]+4,4)}, {vr(O[1],16)}")
    else:
        a.e(f"v_mfma_f32_32x32x16_bf16 {vr(O[1],16)}, {vr(V1,4)}, {vr(P1,4)}, {vr(O[1],16)}")
    a.e(f"s_and_b32 s{t2}, s{sW}, 3")
    a.e(f"s_lshl_b32 s{t2}, s{t2}, 12")
    a.e(f"s_add_u32 s{t2}, s{t2}, 51200")
    a.e(f"s_mul_i32 s{t0}, s{sG}, {RG}")
    a.e(f"s_add_u32 s{t0}, s{t0}, s{t2}")
    a.e(f"s_xor_b32 s{t1}, s{sG}, 1")
    a.e(f"s_mul_i32 s{t1}, s{t1}, {RG}")
    a.e(f"s_add_u32 s{t1}, s{t1}, s{t2}")
    a.e(f"v_add_u32 v{vT}, s{t0}, v{vL16}")
    a.e(f"v_add_u32 v{vT+1}, s{t1}, v{vL16}")
    a.e(f"s_add_u32 s{sQT}, s{sQT}, s{sG}")
    a.e(f"s_cmp_eq_u32 s{sG}, 1")
    a.e("s_cbranch_scc1 K2_X1")
    a.e("s_nop 3")
    for q in range(4):
        a.e(f"ds_write_b128 v{vT}, {vr(O[1]+4*q,4)} offset:{1024*q}")
    a.e("s_branch K2_X2")
    a.lab("K2_X1")
    for q in range(4):
        a.e(f"ds_write_b128 v{vT}, {vr(O[0]+4*q,4)} offset:{1024*q}")
    a.e("s_nop 1")
    for i in range(16):
        a.e(f"v_mov_b32 v{O[0]+i}, v{O[1]+i}")
    for i in range(4):
        a.e(f"v_mov_b32 v{QA[0]+i}, v{QA[1]+i}")
    for i in range(2):
        a.e(f"v_mov_b32 v{QB[0]+i}, v{QB[1]+i}")
    a.lab("K2_X2")
    OO = O[0]
    sS0, sS1 = 34, 35
    a.e(f"s_lshl_b32 s{t0}, s{sH}, 16")
    a.e(f"s_add_u32 s{sS0}, s{t0}, {hx(AB_OFF)}")
    a.e(f"s_lshl_b32 s{t0}, s{sH}, 14")
    a.e(f"s_add_u32 s{sS1}, s{t0}, {hx(AB_OFF + 64*32768)}")
    a.e(f"s_lshl_b32 s{t3}, s{sQT}, 9")
    vSA0, vSA1 = 56, 57
    a.e(f"v_and_b32 v{vT+2}, 31, v{vLANE}")
    a.e(f"v_lshlrev_b32 v{vT+2}, 4, v{vT+2}")
    a.e(f"v_add_u32 v{vT+2}, s{t3}, v{vT+2}")
    a.e(f"v_lshrrev_b32 v{vT+3}, 5, v{vLANE}")
    a.e(f"v_lshl_add_u32 v{vSA0}, v{vT+3}, 15, v{vT+2}")
    a.e(f"v_lshrrev_b32 v{vT+2}, 1, v{vT+2}")
    a.e(f"v_lshl_add_u32 v{vSA1}, v{vT+3}, 30, v{vT+2}")
    a.e("s_waitcnt lgkmcnt(0)")
    a.e("s_barrier")
    for q in range(4):
        a.e(f"ds_read_b128 {vr(S[0]+4*q,4)}, v{vT+1} offset:{1024*q}")
    a.e(f"v_mov_b32 v{vT+3}, {hx(f32(2.0**-60))}")
    a.e(f"v_mov_b32 v{vT+4}, {hx(f32(2.0**100))}")
    a.e(f"v_mov_b32 v{vT+5}, {hx(f32(2.0**120))}")
    a.e("s_waitcnt lgkmcnt(0)")
    for i in range(13):
        a.e(f"v_add_f32 v{OO+i}, v{OO+i}, v{S[0]+i}")
    a.e(f"v_max3_f32 v{vT+1}, abs(v{OO}), abs(v{OO+1}), abs(v{OO+2})")
    for i in range(3, 11, 2):
        a.e(f"v_max3_f32 v{vT+1}, abs(v{OO+i}), abs(v{OO+i+1}), v{vT+1}")
    a.e(f"v_max_f32 v{vT+1}, abs(v{OO+11}), v{vT+1}")
    a.e(f"v_add_f32 v{vT+2}, v{OO}, v{OO+1}")
    for i in range(2, 12):
        a.e(f"v_add_f32 v{vT+2}, v{vT+2}, v{OO+i}")
    a.e(f"v_cmp_gt_f32 {sr(t0,2)}, v{OO+12}, v{vT+3}")
    a.e(f"v_cmp_lt_f32 {sr(t2,2)}, v{OO+12}, v{vT+4}")
    a.e(f"v_cmp_lt_f32 vcc, v{vT+1}, v{vT+5}")
    a.e("s_nop 1")
    a.e(f"s_and_b64 {sr(t0,2)}, {sr(t0,2)}, {sr(t2,2)}")
    a.e(f"s_and_b64 {sr(t0,2)}, {sr(t0,2)}, vcc")
    a.e(f"v_cmp_o_f32 vcc, v{vT+2}, v{vT+2}")
    a.e("s_nop 1")
    a.e(f"s_and_b64 {sr(t0,2)}, {sr(t0,2)}, vcc")
    a.e(f"s_cmp_eq_u64 {sr(t0,2)}, -1")
    if 'B' not in X2:
        a.e("s_cbranch_scc0 K2_SLOW")
    a.lab("K2_FIN")
    a.e(f"v_rcp_f32 v{vT}, v{OO+12}")
    a.e("s_nop 0")
    for i in range(12):
        a.e(f"v_mul_f32 v{OO+i}, v{OO+i}, v{vT}")
    for i in range(6):
        a.e(f"v_cvt_pk_bf16_f32 v{OO+i}, v{OO+2*i}, v{OO+2*i+1}")
    sc = " sc1" if FUSE else ""
    a.e(f"buffer_store_dwordx4 {vr(OO,4)}, v{vSA0}, {sr(sWS,4)}, s{sS0} offen{sc}")
    a.e(f"buffer_store_dwordx2 {vr(OO+4,2)}, v{vSA1}, {sr(sWS,4)}, s{sS1} offen{sc}")
    if FUSE:
        a.e("s_waitcnt vmcnt(0)")
        a.e("s_barrier")
    k2flush()
    a.lab("K2_END")
    a.e("s_endpgm")
    a.lab("K2_BAR1")
    a.e("s_barrier")
    stamp(a, 2)
    a.e("s_branch K2_BODY1")
    a.lab("K2_BAR0")
    a.e("s_waitcnt vmcnt(0)")
    a.e("s_barrier")
    stamp(a, 2)
    if ONE:
        a.e("s_cmp_eq_u32 s72, 0")
        a.e("s_cbranch_scc1 K2_BODY0")
        a.e(f"s_cmp_lg_u32 s{sW}, 8")
        a.e("s_cbranch_scc1 K2_BODY0")
        a.e("v_mov_b32 v128, 0")
        a.e("v_mov_b32 v129, 1")
        a.e("s_mov_b64 exec, 1")
        a.e(f"buffer_store_dword v129, v128, {sr(sWS,4)}, s72 offen sc1")
        a.e("s_mov_b64 exec, -1")
        a.e("s_mov_b32 s72, 0")
    a.e("s_branch K2_BODY0")
    a.lab("K2_SLOW")
    vM = 58
    Sc = S[0]
    for ps in range(2):
        if ps == 0:
            a.e(f"v_mov_b32 v{vM}, 0xff800000")
        else:
            for i in range(16):
                a.e(f"v_mov_b32 v{OO+i}, 0")
        a.e(f"s_mov_b32 s{sOFF}, 0")
        a.e(f"s_mov_b32 s{sIT}, 0")
        a.lab(f"K2_SL{ps}")
        a.e(f"s_bitcmp1_b32 s{sIT}, 0")
        a.e(f"s_cselect_b32 s{t0}, 1344, 0")
        a.e(f"s_cselect_b32 s{t1}, {1280-KVT}, 1280")
        a.e(f"s_cselect_b32 s{t2}, 64, 0")
        a.e(f"s_add_u32 s{t0}, s{t0}, s{sOFF}")
        a.e(f"s_add_u32 s{t1}, s{t1}, s{sOFF}")
        a.e(f"s_add_u32 s{sIT}, s{sIT}, 1")
        a.e(f"v_xor_b32 v{vT+1}, s{t2}, v{vV0}")
        a.e(f"v_xor_b32 v{vT+2}, 32, v{vT+1}")
        a.e(f"buffer_load_dwordx2 {vr(KA,2)}, v{vKa0}, {sr(sKV,4)}, s{t0} offen{SC}")
        a.e(f"buffer_load_dwordx2 {vr(KA+2,2)}, v{vKa0}, {sr(sKV,4)}, s{t0} offen offset:512{SC}")
        a.e(f"buffer_load_dwordx2 {vr(KB,2)}, v{vKb0}, {sr(sKV,4)}, s{t0} offen{SC}")
        if ps == 1:
            a.e(f"buffer_load_dwordx4 {vr(V0,4)}, v{vT+1}, {sr(sKV,4)}, s{t1} offen{SC}")
            a.e(f"buffer_load_dwordx4 {vr(V1,4)}, v{vT+2}, {sr(sKV,4)}, s{t1} offen{SC}")
        a.e("s_waitcnt vmcnt(0)")
        a.e(f"v_mfma_f32_32x32x16_bf16 {vr(Sc,16)}, {vr(KA,4)}, {vr(QA[0],4)}, 0")
        a.e(f"v_mfma_f32_32x32x8_bf16 {vr(Sc,16)}, {vr(KB,2)}, {vr(QB[0],2)}, {vr(Sc,16)}")
        a.e("s_nop 15")
        a.e("s_nop 3")
        if ps == 0:
            for i in range(0, 16, 2):
                a.e(f"v_max3_f32 v{vM}, v{Sc+i}, v{Sc+i+1}, v{vM}")
        else:
            for i in range(16):
                a.e(f"v_sub_f32 v{Sc+i}, v{Sc+i}, v{vM}")
            for i in range(16):
                a.e(f"v_exp_f32 v{Sc+i}, v{Sc+i}")
            a.e("s_nop 0")
            for i, g_ in enumerate((0, 2, 1, 3)):
                a.e(f"v_cvt_pk_bf16_f32 v{P0+2*i}, v{Sc+4*g_}, v{Sc+4*g_+1}")
                a.e(f"v_cvt_pk_bf16_f32 v{P0+2*i+1}, v{Sc+4*g_+2}, v{Sc+4*g_+3}")
            a.e("s_nop 1")
            a.e(f"v_mfma_f32_32x32x16_bf16 {vr(OO,16)}, {vr(V0,4)}, {vr(P0,4)}, {vr(OO,16)}")
            a.e(f"v_mfma_f32_32x32x16_bf16 {vr(OO,16)}, {vr(V1,4)}, {vr(P1,4)}, {vr(OO,16)}")
            a.e("s_nop 7")
        a.e(f"s_add_u32 s{sOFF}, s{sOFF}, {KVT}")
        a.e(f"s_cmp_lt_u32 s{sOFF}, {KVH}")
        a.e(f"s_cbranch_scc1 K2_SL{ps}")
        if ps == 0:
            a.e(f"v_mov_b32 v{vT+4}, v{vM}")
            a.e("s_nop 1")
            a.e(f"v_permlane32_swap_b32 v{vM}, v{vT+4}")
            a.e(f"v_max_f32 v{vM}, v{vM}, v{vT+4}")
    a.e("s_nop 15")
    a.e("s_nop 3")
    a.e("s_branch K2_FIN")
    return name, NV, 102 if (DIAG or DBG) else 80, (256, 768, K2_LDS)


K3_LDS = 102400


def gen_k3(a):
    name = "k3_out_kernel"
    kernel_header(a, name)
    sA, sWT, sY, sO = 12, 16, 20, 24
    sW, sRB, sCB, sOW, sM = 32, 33, 34, 35, 36
    t0, t1, t2, t3 = 38, 39, 40, 41
    vLANE, vOA, vOW, vYO, vOO, vRD = 1, 2, 3, 4, 5, 6
    vT = 8
    ACC = 12
    FB = 32
    FA = 72
    NV = 152
    k3flush = lambda: (stamp(a, 4), stamp_flush(a, 2, 8, sW, "s6", "s7", 8, 2))

    a.e("s_cmp_ge_u32 s2, 256")
    a.e("s_cbranch_scc1 K3_END")
    stamp(a, 0)
    a.e("s_load_dwordx2 s[4:5], s[0:1], 64")
    a.e("s_load_dwordx2 s[6:7], s[0:1], 80")
    a.e(f"v_and_b32 v{vLANE}, 63, v0")
    a.e(f"v_lshrrev_b32 v{vT}, 6, v0")
    a.e(f"s_and_b32 s{t0}, s2, 7")
    a.e(f"v_readfirstlane_b32 s{sW}, v{vT}")
    a.e(f"s_lshr_b32 s{t1}, s2, 3")
    a.e(f"s_lshl_b32 s{t0}, s{t0}, 2")
    a.e(f"s_and_b32 s{t2}, s{t1}, 3")
    a.e(f"s_add_u32 s{sRB}, s{t0}, s{t2}")
    a.e(f"s_lshr_b32 s{sCB}, s{t1}, 2")
    a.e(f"v_and_b32 v{vT}, 15, v{vLANE}")
    a.e(f"v_lshrrev_b32 v{vT+1}, 4, v{vLANE}")
    a.e(f"s_cmp_ge_u32 s{sW}, 4")
    a.e("s_cbranch_scc1 K3_COMP")
    a.e(f"s_mul_i32 s{t0}, s{sCB}, 80")
    a.e(f"v_add_u32 v{vOW}, s{t0}, v{vT}")
    a.e(f"v_lshlrev_b32 v{vOW}, 4, v{vOW}")
    a.e(f"v_mul_u32_u24 v{vT+2}, 10240, v{vT+1}")
    a.e(f"v_add_u32 v{vOW}, v{vOW}, v{vT+2}")
    a.e(f"s_mul_i32 s{sOW}, s{sW}, 40960")
    a.e(f"s_mul_i32 s{sM}, s{sW}, 5120")
    a.e("s_waitcnt lgkmcnt(0)")
    stamp(a, 5)
    srd_off(a, sWT, "s6", "s7", WT_OFF, 80 * 10240)
    for r in range(5):
        for q in range(5):
            a.e(f"s_add_u32 m0, s{sM}, {r*20480 + q*768}")
            a.e("s_nop 0")
            a.e(f"buffer_load_dwordx4 v{vOW}, {sr(sWT,4)}, s{sOW} offen offset:{256*q} lds")
        a.e(f"s_add_u32 s{sOW}, s{sOW}, {4*40960}")
        if r >= 2:
            a.e(f"s_waitcnt vmcnt(10)")
            a.e("s_barrier")
    a.e(f"s_waitcnt vmcnt(5)")
    a.e("s_barrier")
    a.e(f"s_waitcnt vmcnt(0)")
    a.e("s_barrier")
    if DIAG:
        stamp(a, 1); stamp(a, 2); stamp(a, 3)
        k3flush()
    a.e("s_endpgm")
    a.lab("K3_COMP")
    a.e(f"s_sub_u32 s{t3}, s{sW}, 4")
    a.e(f"s_lshl_b32 s{t0}, s{sRB}, 6")
    a.e(f"s_lshl_b32 s{t1}, s{t3}, 4")
    a.e(f"s_add_u32 s{t0}, s{t0}, s{t1}")
    a.e(f"v_add_u32 v{vT+2}, s{t0}, v{vT}")
    a.e(f"v_lshlrev_b32 v{vOA}, 4, v{vT+2}")
    a.e(f"v_lshl_add_u32 v{vOA}, v{vT+1}, 15, v{vOA}")
    a.e(f"s_lshl_b32 s{t0}, s{sRB}, 3")
    a.e(f"s_add_u32 s{t0}, s{t0}, s{sCB}")
    a.e(f"s_mul_i32 s{t0}, s{t0}, 20480")
    a.e(f"s_mul_i32 s{t1}, s{t3}, 5120")
    a.e(f"s_add_u32 s{t0}, s{t0}, s{t1}")
    a.e(f"v_lshlrev_b32 v{vRD}, 4, v{vLANE}")
    a.e(f"v_add_u32 v{vYO}, s{t0}, v{vRD}")
    a.e(f"s_mul_i32 s{t0}, s{sCB}, 160")
    a.e(f"v_mul_u32_u24 v{vOO}, 1280, v{vT+2}")
    a.e(f"v_lshl_add_u32 v{vOO}, v{vT+1}, 3, v{vOO}")
    a.e(f"v_add_u32 v{vOO}, s{t0}, v{vOO}")
    a.e("s_waitcnt lgkmcnt(0)")
    stamp(a, 5)
    srd_off(a, sA, "s6", "s7", AB_OFF, 80 * 32768)
    srd_off(a, sY, "s6", "s7", Y_OFF, Y_SIZE)
    srd(a, sO, "s4", "s5", 2048 * 640 * 2)
    a.e(f"s_mov_b32 s{t0}, 0")
    a.e(f"s_movk_i32 s{t1}, 4096")
    def ldA(r):
        for ks in range(4 * r, 4 * r + 4):
            a.e(f"buffer_load_dwordx4 {vr(FA+4*ks,4)}, v{vOA}, {sr(sA,4)}, s{t0} offen")
            a.e(f"s_add_u32 s{t0}, s{t0}, {4*32768}")

    ldA(0)
    for t in range(5):
        so, off = ("0", 1024 * t) if t < 4 else (f"s{t1}", 0)
        a.e(f"buffer_load_dwordx4 {vr(ACC+4*t,4)}, v{vYO}, {sr(sY,4)}, {so} offen offset:{off}")
    ldA(1)
    ldA(2)
    a.e(f"v_add_u32 v{vT}, 51200, v{vRD}")

    def rdB(ks):
        base, off = (vRD, ks * 5120) if ks < 10 else (vT, (ks - 10) * 5120)
        return [f"ds_read_b128 {vr(FB+20*(ks&1)+4*t,4)}, v{base} offset:{off+1024*t}" for t in range(5)]

    for r in range(5):
        a.e("s_barrier")
        if r == 0:
            stamp(a, 1)
        for ins in rdB(4 * r):
            a.e(ins)
        if r < 2:
            ldA(r + 3)
        a.e(f"s_waitcnt vmcnt({[12, 12, 8, 4, 0][r]})")
        for k in range(4):
            ks = 4 * r + k
            if k < 3:
                for ins in rdB(ks + 1):
                    a.e(ins)
                a.e("s_waitcnt lgkmcnt(5)")
            else:
                a.e("s_waitcnt lgkmcnt(0)")
            for t in range(5):
                a.e(f"v_mfma_f32_16x16x32_bf16 {vr(ACC+4*t,4)}, {vr(FB+20*(ks&1)+4*t,4)}, {vr(FA+4*ks,4)}, {vr(ACC+4*t,4)}")
    stamp(a, 2)
    stamp(a, 3)
    a.e("s_nop 7")
    for t in range(5):
        A = ACC + 4 * t
        a.e(f"v_cvt_pk_bf16_f32 v{A}, v{A}, v{A+1}")
        a.e(f"v_cvt_pk_bf16_f32 v{A+1}, v{A+2}, v{A+3}")
        a.e(f"buffer_store_dwordx2 {vr(A,2)}, v{vOO}, {sr(sO,4)}, 0 offen offset:{32*t}")
    k3flush()
    a.lab("K3_END")
    a.e("s_endpgm")
    return name, NV, 102 if DIAG else 48, (256, 512, K3_LDS)


HEADER = """; Kernarg layout for this problem (88 bytes, ptrs only, base s[0:1]):
"""


def main(out_path):
    a = Asm()
    ks = []
    gens = (gen_k1, gen_k2, gen_k3) if "u" in os.environ.get("K2X", "") else (gen_k1, gen_k2)
    for g in gens:
        ks.append(g(a))
    s = HEADER
    if ONE:
        ks = [(ks[0][0], 168, 102 if (DIAG or DBG) else 80, (256, 768, K2_LDS))]
        if os.environ.get("LIST"):
            s += f"; @launch kernel={ks[0][0]} grid=(256,1,1) block=(768,1,1) lds={K2_LDS}\n"
        else:
            s += f"; @launch grid=(256,1,1) block=(768,1,1) lds={K2_LDS}\n"
    else:
        for name, nv, ns, (gx, bx, lds) in ks:
            s += f"; @launch kernel={name} grid=({gx},1,1) block=({bx},1,1) lds={lds}\n"
    s += '.amdgcn_target "amdgcn-amd-amdhsa--gfx950"\n.text\n'
    s += a.text()
    s += "CODE_END:\n    s_endpgm\n"
    s += '.section .rodata,"a"\n'
    for name, nv, ns, _ in ks:
        s += kd(name, nv, ns)
    open(out_path, "w").write(s)


if __name__ == "__main__":
    main(sys.argv[1] if len(sys.argv) > 1 else f"cdna_kernels/{NAME}.s")
```

```python
import struct, math, sys

NAME = "parallel_sum__mha_block__dense_activation_gelu__prompt"

QB_OFF = 0
KV_OFF = 0x280000
KVT = 2624
KVH = 64 * KVT
VP = 336


def koff(t):
    return KVT * t + (1344 if t & 1 else 0)


def voff(t):
    return 2 * KVT * (t >> 1) + 1280


AB_OFF = 0x7A0000
WT_OFF = 0x10E0000
assert KV_OFF + 32 * KVH == AB_OFF
FL_OFF = WT_OFF + 296 * 10240
FQ_REL = 1024
FH_REL = 9216
FL_SIZE = 12288
WS_END = FL_OFF + FL_SIZE
assert FL_OFF % 128 == 0
AB_SIZE = 296 * 32768
WT_SIZE = 296 * 10240
assert AB_OFF + AB_SIZE == WT_OFF


def f32(x):
    return struct.unpack("<I", struct.pack("<f", x))[0]


def hx(x):
    return "0x%08x" % (x & 0xFFFFFFFF)


class Asm:
    def __init__(self):
        self.lines = []

    def e(self, s):
        if s.startswith("s_cselect_b32"):
            ops = [x.strip() for x in s[len("s_cselect_b32"):].split(",")]

            def is_lit(x):
                try:
                    v = int(x, 0)
                except ValueError:
                    return False
                return not (-16 <= v <= 64)
            if is_lit(ops[1]) and is_lit(ops[2]):
                self.lines.append(f"    s_mov_b32 {ops[0]}, {ops[2]}")
                s = f"s_cselect_b32 {ops[0]}, {ops[1]}, {ops[0]}"
        self.lines.append("    " + s)

    def lab(self, s):
        self.lines.append(s + ":")

    def c(self, s):
        self.lines.append("    ; " + s)

    def raw(self, s):
        self.lines.append(s)

    def text(self):
        return "\n".join(self.lines) + "\n"


def vr(a, n):
    return f"v[{a}:{a+n-1}]" if n > 1 else f"v{a}"


def sr(a, n):
    return f"s[{a}:{a+n-1}]" if n > 1 else f"s{a}"


def kernel_header(a, name):
    a.raw(".p2align 8")
    a.raw(f".globl {name}")
    a.raw(f".type {name},@function")
    a.lab(name)


def kd(name, nv, ns):
    acc = (nv + 3) // 4 * 4
    return f""".p2align 6
.amdhsa_kernel {name}
  .amdhsa_next_free_vgpr {nv}
  .amdhsa_next_free_sgpr {ns}
  .amdhsa_accum_offset {acc}
  .amdhsa_group_segment_fixed_size 0
  .amdhsa_kernarg_size 88
  .amdhsa_user_sgpr_count 2
  .amdhsa_user_sgpr_kernarg_segment_ptr 1
  .amdhsa_system_sgpr_workgroup_id_x 1
.end_amdhsa_kernel
"""


def srd(a, d, lo, hi, size):
    a.e(f"s_mov_b32 s{d}, {lo}")
    a.e(f"s_mov_b32 s{d+1}, {hi}")
    a.e(f"s_mov_b32 s{d+2}, {hx(size)}")
    a.e(f"s_mov_b32 s{d+3}, 0x00020000")


def srd_off(a, d, lo, hi, off, size):
    a.e(f"s_add_u32 s{d}, {lo}, {hx(off)}")
    a.e(f"s_addc_u32 s{d+1}, {hi}, 0")
    a.e(f"s_mov_b32 s{d+2}, {hx(size)}")
    a.e(f"s_mov_b32 s{d+3}, 0x00020000")


def round_bf16_inplace(a, v, vtmp=None):
    a.e(f"v_cvt_pk_bf16_f32 v{v}, v{v}, v{v}")
    a.e(f"v_lshlrev_b32 v{v}, 16, v{v}")


OOB = 0x40000000


def code_prefetch(a, tag, start, end, sp, s_chunk, vlane, vtmp, vdst):
    a.e(f"s_getpc_b64 s[{sp}:{sp+1}]")
    a.lab(f"PCH_{tag}")
    a.e(f"s_sub_u32 s{sp}, s{sp}, PCH_{tag}-{start}")
    a.e(f"s_subb_u32 s{sp+1}, s{sp+1}, 0")
    a.e(f"s_lshl_b32 s{s_chunk}, s{s_chunk}, 13")
    a.e(f"v_lshlrev_b32 v{vtmp}, 7, v{vlane}")
    a.e(f"v_add_u32 v{vtmp}, s{s_chunk}, v{vtmp}")
    a.e(f"v_cmp_gt_u32 vcc, {end}-{start}, v{vtmp}")
    a.e(f"s_and_saveexec_b64 s[{sp+2}:{sp+3}], vcc")
    a.e(f"s_cbranch_execz PCS_{tag}")
    a.e(f"global_load_dword v{vdst}, v{vtmp}, s[{sp}:{sp+1}]")
    a.lab(f"PCS_{tag}")
    a.e(f"s_mov_b64 exec, s[{sp+2}:{sp+3}]")
import os
DIAG = int(os.environ.get("DIAG", "0"))
ONE = int(os.environ.get("ONE", "0"))
SC = " sc1" if ONE else ""
WB = os.environ.get("WB", "")
SCQ = "" if "Q" in WB else SC
SCF = "" if "F" in WB else SC
SCT = "" if "T" in WB else SC
HSM = os.environ.get("HSM", "2")
K1_SYN = 153600
POLL_MAX = 1 << 21
DIAG_OFF = 0x2000000
SD = 84


DBG = int(os.environ.get("DBG", "0"))


_dn = [0]


def dstamp(a, k, inv=False):
    if not DBG or inv:
        return
    _dn[0] += 1
    n = _dn[0]
    a.e("v_readfirstlane_b32 s86, v0")
    a.e("s_cmp_lg_u32 s86, 0")
    a.e(f"s_cbranch_scc1 DS_{n}")
    a.e("s_cmp_eq_u32 s2, 17")
    a.e("s_cselect_b32 s87, 0, 28")
    a.e(f"s_cbranch_scc1 DT_{n}")
    a.e("s_cmp_lg_u32 s2, 250")
    a.e(f"s_cbranch_scc1 DS_{n}")
    a.lab(f"DT_{n}")
    a.e("s_load_dwordx2 s[80:81], s[0:1], 72")
    a.e("s_memrealtime s[84:85]")
    a.e("s_waitcnt lgkmcnt(0)")
    a.e("s_mov_b32 s82, 256")
    a.e("s_mov_b32 s83, 0x00020000")
    a.e("v_mov_b32 v14, s84")
    a.e("v_mov_b32 v15, 0")
    a.e(f"buffer_store_dword v14, v15, s[80:83], s87 offen offset:{4*n}")
    a.lab(f"DS_{n}")


def stamp(a, i):
    if DIAG:
        a.e(f"s_memtime s[{SD+2*i}:{SD+2*i+1}]")
        if i == 0:
            a.e(f"s_memrealtime s[{SD+12}:{SD+13}]")
        if i == 4:
            a.e(f"s_memrealtime s[{SD+14}:{SD+15}]")


def stamp_flush(a, kidx, wpw, sW, ws_lo, ws_hi, n, vtmp):
    if not DIAG:
        return
    a.e("s_waitcnt lgkmcnt(0)")
    a.e(f"s_add_u32 s80, {ws_lo}, {hx(DIAG_OFF + kidx*4096*64)}")
    a.e(f"s_addc_u32 s81, {ws_hi}, 0")
    a.e(f"s_mov_b32 s82, {hx(4096*64)}")
    a.e("s_mov_b32 s83, 0x00020000")
    a.e(f"s_mul_i32 s100, s2, {wpw}")
    a.e(f"s_add_u32 s100, s100, s{sW}")
    a.e("s_lshl_b32 s100, s100, 6")
    a.e(f"v_mov_b32 v{vtmp}, 0")
    for i in range(n):
        a.e(f"v_mov_b32 v{vtmp+1}, s{SD+2*i}")
        a.e(f"buffer_store_dword v{vtmp+1}, v{vtmp}, s[80:83], s100 offen offset:{4*i}")

K1_BH = 8 * 1056
K1_SLOT = 16384 + 4 * K1_BH
K1_NS = 3
K1_SCR = K1_SLOT * K1_NS
K1_LDS = K1_SCR + 2048 + 256
QSCALE = math.log2(math.e) / math.sqrt(20.0)


def gen_k1(a):
    name = NAME + "_kernel" if ONE else "k1_gemm1_kernel"
    kernel_header(a, name)
    X = os.environ.get("K1X", "")
    sX, sB0, sB1, sWS, sT, sBI = 20, 24, 28, 32, 36, 40
    sW, sMH, sHALF, sRB, sCB, sNQ, sT0 = 44, 45, 46, 47, 48, 49, 50
    sOA, sOB0, sOB1 = 51, 52, 53
    sWA, sWB, sRD, sTS, sIT, sDA, sDB = 54, 55, 56, 57, 58, 59, 60
    t0, t1, t2, t3, t4, t5, t6, t7 = 62, 63, 64, 65, 66, 67, 68, 69
    sC1 = 70
    sTYP = 73
    sOA2, sOB0b, sOB1b = 76, 77, 78
    vLANE = 1
    vA0e, vA0o, vB0 = 2, 3, 4
    vAe, vAo, vB = 5, 6, 7
    vS = 8
    vSA = 12
    vONES = 20
    vCS = 24
    vU = 32
    FA = [40, 72]
    vT = 72
    ACC = 104
    NV = 168

    def acc(j, mt):
        return ACC + (j * 4 + mt) * 4

    def fa(s, mt):
        return FA[s] + mt * 4

    def fb(s, j):
        return FA[s] + 16 + j * 4

    def emit(lst):
        for ins in lst:
            a.e(ins)

    k1flush = lambda: (stamp(a, 4), stamp_flush(a, 0, 12, sW, "s18", "s19", 8, 2))

    def zpoll(tag, sD, vz, vd):
        srd(a, sD, "s10", "s11", 256)
        a.e(f"v_mov_b32 v{vz}, 0")
        a.e(f"s_mov_b32 s{t7}, 0")
        a.lab(f"ZP_{tag}")
        a.e(f"buffer_load_dword v{vd}, v{vz}, {sr(sD,4)}, 0 offen sc1")
        a.e(f"s_add_u32 s{t7}, s{t7}, 1")
        a.e("s_waitcnt vmcnt(0)")
        a.e(f"v_readfirstlane_b32 s{t6}, v{vd}")
        a.e(f"s_cmp_ge_u32 s{t7}, {POLL_MAX}")
        a.e(f"s_cbranch_scc1 ZD_{tag}")
        a.e(f"s_cmp_eq_u32 s{t6}, 0")
        a.e(f"s_cbranch_scc1 ZP_{tag}")
        a.lab(f"ZD_{tag}")

    def finish(kind):
        k1flush()
        if not ONE:
            a.e("s_endpgm")
            return
        if kind == "F":
            a.e("s_branch K1_SIGF")
        else:
            a.e("s_branch K1_SIGQ")

    def finalize(s1, s2, nm, rs):
        a.e(f"v_mul_f32 v{s1}, {hx(f32(1.0/640))}, v{s1}")
        a.e(f"v_mul_f32 v{s2}, {hx(f32(1.0/640))}, v{s2}")
        a.e(f"v_fma_f32 v{s2}, -v{s1}, v{s1}, v{s2}")
        a.e(f"v_max_f32 v{s2}, 0, v{s2}")
        round_bf16_inplace(a, s2)
        a.e(f"v_add_f32 v{s2}, {hx(f32(1e-5))}, v{s2}")
        round_bf16_inplace(a, s2)
        a.e(f"v_sqrt_f32 v{s2}, v{s2}")
        round_bf16_inplace(a, s1)
        round_bf16_inplace(a, s2)
        a.e(f"v_rcp_f32 v{rs}, v{s2}")
        a.e(f"v_sub_f32 v{nm}, 0, v{s1}")


    a.e("s_cmp_ge_u32 s2, 256")
    a.e("s_cbranch_scc1 K1_END")
    stamp(a, 0)
    a.e("s_load_dwordx4 s[4:7], s[0:1], 0")
    a.e("s_load_dwordx2 s[8:9], s[0:1], 16")
    a.e("s_load_dwordx4 s[12:15], s[0:1], 32")
    a.e("s_load_dwordx2 s[16:17], s[0:1], 48")
    a.e("s_load_dwordx2 s[18:19], s[0:1], 80")
    if ONE:
        a.e("s_load_dwordx2 s[10:11], s[0:1], 72")
        a.e("s_mov_b32 s72, 0")
        a.e(f"v_mov_b32 v128, {hx(OOB)}")
        a.e(f"v_mov_b32 v129, {hx(OOB)}")
    a.e(f"v_and_b32 v{vLANE}, 63, v0")
    a.e(f"v_lshrrev_b32 v{vT}, 6, v0")
    a.e(f"s_and_b32 s{t0}, s2, 7")
    a.e(f"v_readfirstlane_b32 s{sW}, v{vT}")
    a.e(f"s_lshr_b32 s{t1}, s2, 3")
    a.e(f"s_lshl_b32 s{sRB}, s{t0}, 1")
    a.e(f"s_add_u32 s{sRB}, s{sRB}, s{t1}")
    a.e(f"s_mov_b32 s{sCB}, 15")
    a.e(f"s_cmp_lt_u32 s{t1}, 2")
    a.e("s_cbranch_scc1 K1_TRANS")
    a.e(f"s_lshr_b32 s{t2}, s{t0}, 1")
    a.e(f"s_mul_i32 s{t2}, s{t2}, 30")
    a.e(f"s_add_u32 s{t2}, s{t2}, s{t1}")
    a.e(f"s_sub_u32 s{t2}, s{t2}, 2")
    a.e(f"s_lshr_b32 s{sCB}, s{t2}, 3")
    a.e(f"s_lshl_b32 s{t3}, s{sCB}, 2")
    a.e(f"s_lshr_b32 s{sCB}, s{sCB}, 2")
    a.e(f"s_mul_i32 s{sCB}, s{sCB}, 15")
    a.e(f"s_sub_u32 s{sCB}, s{t3}, s{sCB}")
    a.e(f"s_and_b32 s{t2}, s{t2}, 7")
    a.e(f"s_and_b32 s{t3}, s{t0}, 1")
    a.e(f"s_lshl_b32 s{t3}, s{t3}, 3")
    a.e(f"s_add_u32 s{sRB}, s{t2}, s{t3}")
    a.e(f"s_lshl_b32 s{sT0}, s{sCB}, 3")
    a.e(f"s_min_u32 s{sT0}, s{sT0}, 100")
    a.e(f"s_cmp_ge_u32 s{sW}, 4")
    a.e("s_cbranch_scc1 K1_COMP")
    dstamp(a, 1, True)
    dstamp(a, 2)
    lA = [2, 3]
    lQ = [4, 5]
    lF = [6, 7]
    lBI = 8
    a.e(f"s_lshl_b32 s{t0}, s{sRB}, 7")
    a.e(f"s_lshl_b32 s{t1}, s{sW}, 4")
    a.e(f"s_add_u32 s{t0}, s{t0}, s{t1}")
    a.e(f"v_lshrrev_b32 v{vT}, 3, v{vLANE}")
    a.e(f"v_add_u32 v{vT}, s{t0}, v{vT}")
    a.e(f"v_lshrrev_b32 v{vT+1}, 1, v{vT}")
    a.e(f"v_xor_b32 v{vT+1}, v{vT+1}, v{vLANE}")
    a.e(f"v_and_b32 v{vT+1}, 7, v{vT+1}")
    a.e(f"v_mul_u32_u24 v{vT}, 1280, v{vT}")
    a.e(f"v_lshl_add_u32 v{lA[0]}, v{vT+1}, 4, v{vT}")
    a.e(f"v_xor_b32 v{vT+1}, 4, v{vT+1}")
    a.e(f"v_lshl_add_u32 v{lA[1]}, v{vT+1}, 4, v{vT}")
    a.e(f"v_add_u32 v{lA[1]}, {8*1280}, v{lA[1]}")
    a.e(f"s_lshl_b32 s{sDA}, s{sW}, 11")
    a.e(f"s_and_b32 s{t0}, s{sW}, 1")
    a.e(f"s_lshl_b32 s{t0}, s{t0}, 1")
    a.e(f"s_lshr_b32 s{t1}, s{sW}, 1")
    a.e(f"s_lshl_b32 s{t1}, s{t1}, 3")
    a.e(f"s_or_b32 s{t0}, s{t0}, s{t1}")
    a.e(f"v_bfe_u32 v{vT}, v{vLANE}, 4, 1")
    a.e(f"v_lshlrev_b32 v{vT}, 2, v{vT}")
    a.e(f"v_lshrrev_b32 v{vT+1}, 5, v{vLANE}")
    a.e(f"v_lshl_or_b32 v{vT}, v{vT+1}, 4, v{vT}")
    a.e(f"v_or_b32 v{vT}, s{t0}, v{vT}")
    a.e(f"v_and_b32 v{vT+1}, 15, v{vLANE}")
    a.e(f"v_lshlrev_b32 v{vT+1}, 4, v{vT+1}")
    a.e(f"s_lshl_b32 s{t2}, s{sCB}, 8")
    a.e(f"s_lshl_b32 s{t3}, s{sT0}, 5")
    a.e(f"v_mul_u32_u24 v{lQ[0]}, 3840, v{vT}")
    a.e(f"v_add3_u32 v{lQ[0]}, v{lQ[0]}, v{vT+1}, s{t2}")
    a.e(f"v_add_u32 v{lQ[1]}, 3840, v{lQ[0]}")
    a.e(f"v_mul_u32_u24 v{lF[0]}, 3456, v{vT}")
    a.e(f"v_add3_u32 v{lF[0]}, v{lF[0]}, v{vT+1}, s{t3}")
    a.e(f"v_add_u32 v{lF[1]}, 3456, v{lF[0]}")
    a.e(f"s_mul_i32 s{sDB}, s{sW}, 2112")
    a.e(f"s_add_u32 s{sDB}, s{sDB}, 16384")
    ROT = "O" in X
    if ROT:
        RA, RB_ = int(os.environ.get("ROTA", "1")), int(os.environ.get("ROTB", "3"))
        a.e(f"s_and_b32 s{t0}, s{sRB}, 7")
        a.e(f"s_mul_i32 s{t0}, s{t0}, {RA}")
        a.e(f"s_min_u32 s{t1}, s{sCB}, 13")
        a.e(f"s_and_b32 s{t1}, s{t1}, 3")
        a.e(f"s_mul_i32 s{t1}, s{t1}, {RB_}")
        a.e(f"s_add_u32 s{t0}, s{t0}, s{t1}")
        a.e(f"s_mul_i32 s{t1}, s{t0}, 205")
        a.e(f"s_lshr_b32 s{t1}, s{t1}, 11")
        a.e(f"s_mul_i32 s{t1}, s{t1}, 10")
        a.e(f"s_sub_u32 s{t0}, s{t0}, s{t1}")
        a.e(f"s_lshl_b32 s{sOA}, s{t0}, 7")
        a.e(f"s_add_u32 s{sOA2}, s{sOA}, {64*1280}")
        a.e(f"s_mul_i32 s{sOB0}, s{t0}, {64*3840}")
        a.e(f"s_add_u32 s{sOB0b}, s{sOB0}, {32*3840}")
        a.e(f"s_mul_i32 s{sOB1}, s{t0}, {64*3456}")
        a.e(f"s_add_u32 s{sOB1b}, s{sOB1}, {32*3456}")
    else:
        a.e(f"s_mov_b32 s{sOA}, 0")
        a.e(f"s_mov_b32 s{sOA2}, {64*1280}")
        a.e(f"s_mov_b32 s{sOB0}, 0")
        a.e(f"s_mov_b32 s{sOB0b}, {32*3840}")
        a.e(f"s_mov_b32 s{sOB1}, 0")
        a.e(f"s_mov_b32 s{sOB1b}, {32*3456}")
    a.e(f"s_mov_b32 s{sWA}, s{sDA}")
    a.e(f"s_mov_b32 s{sWB}, s{sDB}")
    a.e("s_waitcnt lgkmcnt(0)")
    stamp(a, 5)
    srd(a, sX, "s4", "s5", 2048 * 640 * 2)
    srd(a, sB0, "s6", "s7", 640 * 1920 * 2)
    srd(a, sB1, "s12", "s13", 640 * 1728 * 2)

    lR0 = 10
    lR = 14
    lD = 20
    lS = 36
    lU = 40

    def stats_ops():
        va = []
        for r in range(16):
            src = lD + r
            lo, hi = lU + 2 * (r & 1), lU + 2 * (r & 1) + 1
            va.append(f"v_lshlrev_b32 v{lo}, 16, v{src}")
            va.append(f"v_and_b32 v{hi}, 0xffff0000, v{src}")
            va.append(f"v_add_f32 v{lS}, v{lS}, v{lo}")
            va.append(f"v_add_f32 v{lS+1}, v{lS+1}, v{hi}")
            va.append(f"v_fmac_f32 v{lS+2}, v{lo}, v{lo}")
            va.append(f"v_fmac_f32 v{lS+3}, v{hi}, v{hi}")
        return va

    def stats_reads():
        for i in range(4):
            a.e(f"v_add_u32 v{lR+i}, s{sRD}, v{lR0+i}")
        for i in range(4):
            a.e(f"ds_read_b128 {vr(lD+4*i,4)}, v{lR+i}")
        a.e(f"s_add_u32 s{sRD}, s{sRD}, {K1_SLOT}")
        a.e(f"s_cmp_eq_u32 s{sRD}, {K1_SCR}")
        a.e(f"s_cselect_b32 s{sRD}, 0, s{sRD}")

    def stage(with_stats=False, dma=True):
        spec = [(sWA, 0, lA, 1024, sX, sOA, 128),
                (sWA, 8192, lA, 1024, sX, sOA2, 128),
                (sWB, 0, lQ, 1056, sB0, sOB0, 64 * 3840),
                (sWB, 2 * K1_BH, lF, 1056, sB1, sOB1, 64 * 3456),
                (sWB, K1_BH, lQ, 1056, sB0, sOB0b, 64 * 3840),
                (sWB, 3 * K1_BH, lF, 1056, sB1, sOB1b, 64 * 3456)]
        va = stats_ops() if with_stats else []
        if with_stats:
            stats_reads()
        n = 0
        for (sD, dof, vO, d2, sR, sO, inc) in spec:
            for q in range(2):
                d = dof + q * d2
                if dma:
                    a.e(f"s_add_u32 m0, s{sD}, {d}" if d else f"s_mov_b32 m0, s{sD}")
                    a.e("s_nop 0")
                    a.e(f"buffer_load_dwordx4 v{vO[q]}, {sr(sR,4)}, s{sO} offen lds")
                n += 1
                if with_stats and n >= 2:
                    if n == 2:
                        a.e("s_waitcnt lgkmcnt(0)")
                    k = 9 if n < 12 else len(va)
                    for ins in va[:k]:
                        a.e(ins)
                    va = va[k:]
            if dma:
                a.e(f"s_add_u32 s{sO}, s{sO}, {inc}")
        if dma:
            a.e(f"s_add_u32 s{sWA}, s{sWA}, {K1_SLOT}")
            a.e(f"s_add_u32 s{sWB}, s{sWB}, {K1_SLOT}")
            a.e(f"s_cmp_ge_u32 s{sWA}, {K1_SCR}")
            a.e(f"s_cselect_b32 s{sWA}, s{sDA}, s{sWA}")
            a.e(f"s_cselect_b32 s{sWB}, s{sDB}, s{sWB}")
            if ROT:
                a.e(f"s_cmp_eq_u32 s{sOA}, 1280")
                a.e(f"s_cselect_b32 s{sOA}, 0, s{sOA}")
                a.e(f"s_cselect_b32 s{sOA2}, {64*1280}, s{sOA2}")
                a.e(f"s_cselect_b32 s{sOB0}, 0, s{sOB0}")
                a.e(f"s_cselect_b32 s{sOB0b}, {32*3840}, s{sOB0b}")
                a.e(f"s_cselect_b32 s{sOB1}, 0, s{sOB1}")
                a.e(f"s_cselect_b32 s{sOB1b}, {32*3456}, s{sOB1b}")

    stage()
    srd(a, sBI, "s14", "s15", 1728 * 2)
    a.e(f"v_lshlrev_b32 v{vT}, 2, v{vLANE}")
    a.e(f"buffer_load_dword v{lBI}, v{vT}, {sr(sBI,4)}, s{t3} offen")
    stage()
    S3 = "S" in X
    if S3:
        stage()
    a.e(f"v_and_b32 v{vT+1}, 31, v{vLANE}")
    a.e(f"v_lshrrev_b32 v{vT+2}, 5, v{vLANE}")
    a.e(f"v_lshlrev_b32 v{vT+2}, 2, v{vT+2}")
    a.e(f"v_bfe_u32 v{vT+3}, v{vLANE}, 1, 3")
    a.e(f"v_xor_b32 v{vT+2}, v{vT+2}, v{vT+3}")
    a.e(f"v_lshlrev_b32 v{vT+2}, 4, v{vT+2}")
    a.e(f"v_lshl_add_u32 v{vT+2}, v{vT+1}, 7, v{vT+2}")
    a.e(f"s_lshl_b32 s{t0}, s{sW}, 12")
    a.e(f"v_add_u32 v{lR0}, s{t0}, v{vT+2}")
    for i in range(1, 4):
        a.e(f"v_xor_b32 v{lR0+i}, {16*i}, v{lR0}")
    for i in range(4):
        a.e(f"v_mov_b32 v{lS+i}, 0")
    a.e(f"s_mov_b32 s{sRD}, 0")
    a.e(f"s_mov_b32 s{sIT}, 0")
    a.e(f"s_waitcnt vmcnt({24 if S3 else 12})")
    a.e(f"v_add_u32 v{vT}, {K1_SCR+2048}, v{vT}")
    a.e(f"ds_write_b32 v{vT}, v{lBI}")
    if ONE:
        a.e(f"v_mov_b32 v{vT+4}, {K1_SYN}")
        a.e(f"ds_write_b128 v{vT+4}, {vr(lS,4)}")
    a.e("s_barrier")
    stamp(a, 1)
    stage(True, not S3)
    a.lab("K1_LD")
    a.e("s_waitcnt vmcnt(12)")
    a.e("s_barrier")
    stage(True, True)
    a.e(f"s_add_u32 s{sIT}, s{sIT}, 1")
    a.e(f"s_cmp_lt_u32 s{sIT}, 7")
    a.e("s_cbranch_scc1 K1_LD")
    a.e("s_waitcnt vmcnt(12)")
    a.e("s_barrier")
    a.e(f"s_mov_b32 s{sIT}, 0")
    a.lab("K1_LD2")
    stage(True, False)
    a.e(f"s_cmp_eq_u32 s{sIT}, 1")
    a.e("s_cbranch_scc1 K1_LD3")
    if ONE:
        a.e(f"s_cmp_lg_u32 s{sW}, 0")
        a.e("s_cbranch_scc1 ZD_ld")
        zpoll("ld", sBI, vT + 4, vT + 5)
    a.e("s_waitcnt vmcnt(0)")
    a.e("s_barrier")
    a.e(f"s_mov_b32 s{sIT}, 1")
    a.e("s_branch K1_LD2")
    a.lab("K1_LD3")
    a.e(f"v_add_f32 v{lS}, v{lS}, v{lS+1}")
    a.e(f"v_add_f32 v{lS+1}, v{lS+2}, v{lS+3}")
    a.e(f"v_mov_b32 v{lU}, v{lS}")
    a.e(f"v_mov_b32 v{lU+1}, v{lS+1}")
    a.e("s_nop 1")
    a.e(f"v_permlane32_swap_b32 v{lS}, v{lU}")
    a.e(f"v_permlane32_swap_b32 v{lS+1}, v{lU+1}")
    a.e(f"v_add_f32 v{lS}, v{lS}, v{lU}")
    a.e(f"v_add_f32 v{lS+1}, v{lS+1}, v{lU+1}")
    finalize(lS, lS + 1, lS + 2, lS + 3)
    a.e(f"v_lshlrev_b32 v{vT+1}, 2, v{vT+1}")
    a.e(f"s_lshl_b32 s{t0}, s{sW}, 7")
    a.e(f"s_add_u32 s{t0}, s{t0}, {K1_SCR}")
    a.e(f"v_add_u32 v{vT+1}, s{t0}, v{vT+1}")
    a.e(f"ds_write_b32 v{vT+1}, v{lS+2}")
    a.e(f"ds_write_b32 v{vT+1}, v{lS+3} offset:512")
    a.e("s_waitcnt lgkmcnt(0)")
    a.e("s_barrier")
    if DIAG:
        stamp(a, 2); stamp(a, 3)
        k1flush()
    if ONE:
        a.e("s_barrier")
        dstamp(a, 3)
        a.e("s_branch P2_ENTRY")
    else:
        a.e("s_endpgm")
    a.lab("K1_COMP")
    a.e(f"s_and_b32 s{sMH}, s{sW}, 1")
    a.e(f"s_bfe_u32 s{sNQ}, s{sW}, 0x10001")
    a.e(f"s_lshr_b32 s{sHALF}, s{sW}, 3")
    if "C" in X:
        NPF = int(os.environ.get("NPF", "8"))
        a.e(f"s_cmp_ge_u32 s2, {NPF}")
        a.e("s_cbranch_scc1 K1_NOCP")
        a.e(f"s_cmp_ge_u32 s{sW}, 8")
        a.e("s_cbranch_scc1 K1_NOCP")
        a.e(f"s_and_b32 s{t0}, s{sW}, 3")
        code_prefetch(a, "k1", "k1_gemm1_kernel", "CODE_END", 64, t0, vLANE, vT, 36)
        a.lab("K1_NOCP")
    if "P" in X:
        vPF = 36
        a.e(f"s_and_b32 s{t0}, s{sW}, 3")
        a.e(f"s_lshl_b32 s{t0}, s{t0}, 6")
        a.e(f"v_add_u32 v{vT}, s{t0}, v{vLANE}")
        a.e(f"s_cmp_eq_u32 s{sHALF}, 1")
        a.e("s_cbranch_scc1 K1_PFB")
        a.e(f"s_and_b32 s{t1}, s{sCB}, 3")
        a.e(f"s_lshl_b32 s{t1}, s{t1}, 5")
        a.e(f"s_lshl_b32 s{t2}, s{sRB}, 7")
        a.e(f"s_add_u32 s{t1}, s{t1}, s{t2}")
        a.e(f"v_lshrrev_b32 v{vT+1}, 3, v{vT}")
        a.e(f"v_add_u32 v{vT+1}, s{t1}, v{vT+1}")
        a.e(f"v_mul_u32_u24 v{vT+1}, 1280, v{vT+1}")
        a.e(f"v_and_b32 v{vT+2}, 7, v{vT}")
        a.e(f"v_lshl_add_u32 v{vT+1}, v{vT+2}, 7, v{vT+1}")
        a.e("s_waitcnt lgkmcnt(0)")
        srd(a, sX, "s4", "s5", 2048 * 640 * 2)
        a.e(f"buffer_load_dword v{vPF}, v{vT+1}, {sr(sX,4)}, 0 offen offset:256")
        a.e("s_branch K1_PFD")
        a.lab("K1_PFB")
        a.e(f"s_and_b32 s{t1}, s{sRB}, 7")
        a.e(f"s_lshl_b32 s{t1}, s{t1}, 6")
        a.e(f"s_add_u32 s{t1}, s{t1}, 128")
        a.e(f"v_lshrrev_b32 v{vT+1}, 2, v{vT}")
        a.e(f"v_add_u32 v{vT+1}, s{t1}, v{vT+1}")
        a.e(f"v_and_b32 v{vT+2}, 1, v{vT}")
        a.e(f"v_lshlrev_b32 v{vT+2}, 7, v{vT+2}")
        a.e(f"s_lshl_b32 s{t2}, s{sCB}, 8")
        a.e(f"s_lshl_b32 s{t3}, s{sT0}, 5")
        a.e(f"v_mul_u32_u24 v{vT+3}, 3840, v{vT+1}")
        a.e(f"v_add3_u32 v{vT+3}, v{vT+3}, v{vT+2}, s{t2}")
        a.e(f"v_mul_u32_u24 v{vT+4}, 3456, v{vT+1}")
        a.e(f"v_add3_u32 v{vT+4}, v{vT+4}, v{vT+2}, s{t3}")
        a.e("s_waitcnt lgkmcnt(0)")
        srd(a, sB0, "s6", "s7", 640 * 1920 * 2)
        srd(a, sB1, "s12", "s13", 640 * 1728 * 2)
        a.e("s_mov_b32 exec_lo, 0x33333333")
        a.e("s_mov_b32 exec_hi, 0x33333333")
        a.e(f"buffer_load_dword v{vPF}, v{vT+3}, {sr(sB0,4)}, 0 offen")
        a.e("s_not_b64 exec, exec")
        a.e(f"buffer_load_dword v{vPF+1}, v{vT+4}, {sr(sB1,4)}, 0 offen")
        a.e("s_mov_b64 exec, -1")
        a.lab("K1_PFD")
    a.e(f"s_lshl_b32 s{t0}, s{sMH}, 13")
    a.e(f"v_and_b32 v{vT+4}, 15, v{vLANE}")
    a.e(f"v_lshrrev_b32 v{vT}, 4, v{vLANE}")
    a.e(f"v_lshrrev_b32 v{vT+1}, 1, v{vT+4}")
    a.e(f"v_xor_b32 v{vT+1}, v{vT+1}, v{vT}")
    a.e(f"v_lshlrev_b32 v{vT+1}, 4, v{vT+1}")
    a.e(f"v_lshl_add_u32 v{vA0e}, v{vT+4}, 7, v{vT+1}")
    a.e(f"v_add_u32 v{vA0e}, s{t0}, v{vA0e}")
    a.e(f"v_xor_b32 v{vA0o}, 64, v{vA0e}")
    a.e(f"v_bfe_u32 v{vT+1}, v{vLANE}, 2, 3")
    a.e(f"v_mul_u32_u24 v{vT+1}, 1056, v{vT+1}")
    a.e(f"v_lshrrev_b32 v{vT+2}, 5, v{vLANE}")
    a.e(f"v_lshl_add_u32 v{vT+1}, v{vT+2}, 9, v{vT+1}")
    a.e(f"v_and_b32 v{vT+2}, 3, v{vLANE}")
    a.e(f"v_lshl_add_u32 v{vT+1}, v{vT+2}, 3, v{vT+1}")
    a.e(f"s_mul_i32 s{t0}, s{sHALF}, {2*K1_BH}")
    a.e(f"s_lshl_b32 s{t1}, s{sNQ}, 7")
    a.e(f"s_add_u32 s{t0}, s{t0}, s{t1}")
    a.e(f"s_add_u32 s{t0}, s{t0}, 16384")
    a.e(f"v_add_u32 v{vB0}, s{t0}, v{vT+1}")
    for i in range(64):
        a.e(f"v_mov_b32 v{ACC+i}, 0")
    for i in range(4):
        a.e(f"v_mov_b32 v{vS+i}, 0")
        a.e(f"v_mov_b32 v{vONES+i}, 0x3f803f80")
    for i in range(8):
        a.e(f"v_mov_b32 v{vCS+i}, 0")
        a.e(f"v_mov_b32 v{vSA+i}, {hx(OOB)}")
    a.e(f"s_mov_b32 s{sRD}, 0")
    a.e(f"s_mov_b32 s{sIT}, 0")
    a.e(f"s_mov_b32 s{sTS}, 0")
    a.e(f"s_cmp_ge_u32 s{sCB}, 10")
    a.e(f"s_cselect_b32 s{sTYP}, 1, 0")
    a.e(f"s_cmp_eq_u32 s{sHALF}, 1")
    a.e(f"s_cselect_b32 s{sTYP}, 2, s{sTYP}")
    a.e(f"s_lshl_b32 s{t6}, s{sRB}, 2")
    a.e(f"s_lshl_b32 s{t7}, s{sMH}, 1")
    a.e(f"s_add_u32 s{t6}, s{t6}, s{t7}")
    a.e(f"s_cmp_eq_u32 s{sTYP}, 1")
    a.e("s_cbranch_scc1 K1_PRE_V")
    a.e(f"s_cmp_eq_u32 s{sTYP}, 2")
    a.e("s_cbranch_scc1 K1_PRE_F")
    a.e(f"s_cmp_lt_u32 s{sCB}, 5")
    a.e(f"s_cselect_b32 s{t1}, 81920, {KVH}")
    a.e(f"s_cselect_b32 s{t2}, 1280, {KVT}")
    a.e(f"s_cselect_b32 s{sTS}, 1280, {koff(1)}")
    a.e(f"s_cselect_b32 s{t3}, {hx(QB_OFF)}, {hx(KV_OFF)}")
    a.e(f"s_cselect_b32 s{t5}, 0, 5")
    a.e(f"s_sub_u32 s{t5}, s{sCB}, s{t5}")
    a.e(f"s_lshl_b32 s{t5}, s{t5}, 5")
    a.e(f"s_lshl_b32 s{t7}, s{sNQ}, 4")
    a.e(f"s_add_u32 s{t5}, s{t5}, s{t7}")
    a.e(f"s_mul_i32 s{t6}, s{t6}, s{t2}")
    a.e(f"s_add_u32 s{t3}, s{t3}, s{t6}")
    rA0, vG = vT + 6, vT + 10
    a.e(f"v_lshlrev_b32 v{rA0}, 3, v{vT+4}")
    a.e(f"v_add_u32 v{rA0}, s{t3}, v{rA0}")
    a.e(f"v_add_u32 v{vG}, s{t5}, v{vT}")
    for j in range(4):
        tt, h, dg = vT + 11, vT + 12, vT + 13
        a.e(f"v_add_u32 v{tt}, {4*j}, v{vG}")
        a.e(f"v_mul_u32_u24 v{h}, 205, v{tt}")
        a.e(f"v_lshrrev_b32 v{h}, 10, v{h}")
        a.e(f"v_mad_i32_i24 v{dg}, v{h}, -5, v{tt}")
        a.e(f"v_mad_u32_u24 v{h}, v{h}, s{t1}, v{rA0}")
        a.e(f"v_lshl_add_u32 v{vSA+j}, v{dg}, 8, v{h}")
    a.e("s_branch K1_PRE_DONE")
    a.lab("K1_PRE_V")
    vWA = [8, 9, 10, 11]
    a.e(f"s_sub_u32 s{t5}, s{sCB}, 10")
    a.e(f"s_lshl_b32 s{t5}, s{t5}, 7")
    a.e(f"s_lshl_b32 s{t7}, s{sNQ}, 6")
    a.e(f"s_add_u32 s{t5}, s{t5}, s{t7}")
    a.e(f"s_mul_i32 s{t6}, s{t6}, {KVT}")
    a.e(f"s_add_u32 s{t6}, s{t6}, {hx(KV_OFF + 1280)}")
    a.e(f"s_mov_b32 s{t1}, {KVH}")
    a.e(f"s_mov_b32 s{t2}, -20")
    a.e(f"s_lshl_b32 s{t3}, s{sW}, 13")
    n, h, d = vT + 5, vT + 6, vT + 7
    a.e(f"v_add_u32 v{vT+2}, s{t5}, v{vT+4}")
    a.e(f"v_lshlrev_b32 v{vT+1}, 7, v{vT+4}")
    a.e(f"v_add_u32 v{vT+1}, s{t3}, v{vT+1}")
    for j in range(4):
        a.e(f"v_add_u32 v{n}, {16*j}, v{vT+2}")
        a.e(f"v_mul_u32_u24 v{h}, 3277, v{n}")
        a.e(f"v_lshrrev_b32 v{h}, 16, v{h}")
        a.e(f"v_mad_i32_i24 v{d}, v{h}, s{t2}, v{n}")
        a.e(f"v_bfe_u32 v{d}, v{d}, 1, 3")
        a.e(f"v_xor_b32 v{d}, v{d}, v{vT}")
        a.e(f"v_lshl_add_u32 v{vWA[j]}, v{d}, 4, v{vT+1}")
    a.e(f"v_lshrrev_b32 v{vT+2}, 3, v{vLANE}")
    a.e(f"v_add_u32 v{vT+2}, s{t5}, v{vT+2}")
    a.e(f"v_and_b32 v{vT+1}, 7, v{vLANE}")
    a.e(f"v_lshlrev_b32 v{vT+1}, 4, v{vT+1}")
    a.e(f"v_add_u32 v{vT+1}, s{t6}, v{vT+1}")
    for q in range(8):
        a.e(f"v_add_u32 v{n}, {8*q}, v{vT+2}")
        a.e(f"v_mul_u32_u24 v{h}, 3277, v{n}")
        a.e(f"v_lshrrev_b32 v{h}, 16, v{h}")
        a.e(f"v_mad_i32_i24 v{d}, v{h}, s{t2}, v{n}")
        a.e(f"v_mad_u32_u24 v{h}, v{h}, s{t1}, v{vT+1}")
        a.e(f"v_lshl_add_u32 v{vSA+q}, v{d}, 7, v{h}")
    a.e("s_branch K1_PRE_DONE")
    a.lab("K1_PRE_F")
    a.e(f"s_lshl_b32 s{t0}, s{sCB}, 1")
    a.e(f"s_add_u32 s{t0}, s{t0}, s{sNQ}")
    a.e(f"s_cmp_eq_u32 s{t0}, 26")
    a.e("s_cbranch_scc1 K1_PRE_DONE")
    a.e(f"s_cmp_ge_u32 s{t0}, 28")
    a.e("s_cbranch_scc1 K1_PRE_DONE")
    a.e(f"s_lshl_b32 s{t0}, s{t6}, 5")
    a.e(f"v_add_u32 v{vSA}, s{t0}, v{vT+4}")
    a.e(f"v_lshlrev_b32 v{vSA}, 4, v{vSA}")
    a.e(f"v_lshl_add_u32 v{vSA}, v{vT}, 15, v{vSA}")
    a.e(f"s_lshl_b32 s{t0}, s{sT0}, 16")
    a.e(f"s_lshl_b32 s{t1}, s{sNQ}, 18")
    a.e(f"s_add_u32 s{t0}, s{t0}, s{t1}")
    a.e(f"s_add_u32 s{t0}, s{t0}, {hx(AB_OFF + 80*32768)}")
    a.e(f"v_add_u32 v{vSA}, s{t0}, v{vSA}")
    a.e(f"v_add_u32 v{vSA+1}, {hx(131072)}, v{vSA}")
    a.lab("K1_PRE_DONE")
    a.e("s_waitcnt lgkmcnt(0)")
    stamp(a, 5)
    srd(a, sWS, "s18", "s19", WS_END)
    a.e(f"s_and_b32 s{t0}, s{sTYP}, 1")
    a.e(f"s_lshl_b32 s{t0}, s{t0}, 1")
    a.e(f"s_add_u32 s{t0}, s{t0}, s{sMH}")
    for v in range(1, 4):
        a.e(f"s_cmp_eq_u32 s{t0}, {v}")
        a.e(f"s_cbranch_scc1 K1_V{v}")

    def reads(fs):
        vA = vAe if fs == 0 else vAo
        ra = [f"ds_read_b128 {vr(fa(fs,mt),4)}, v{vA} offset:{2048*mt}" for mt in range(4)]
        rb = []
        for j in range(4):
            rb.append(f"ds_read_b64_tr_b16 {vr(fb(fs,j),2)}, v{vB} offset:{fs*K1_BH+32*j}")
            rb.append(f"ds_read_b64_tr_b16 {vr(fb(fs,j)+2,2)}, v{vB} offset:{fs*K1_BH+32*j+256}")
        return rb[0:2] + ra + rb[2:]

    def addr_update():
        return [f"v_add_u32 v{vB}, s{sRD}, v{vB0}",
                f"v_add_u32 v{vAe}, s{sRD}, v{vA0e}",
                f"v_add_u32 v{vAo}, s{sRD}, v{vA0o}",
                f"s_add_u32 s{sRD}, s{sRD}, {K1_SLOT}",
                f"s_cmp_eq_u32 s{sRD}, {K1_SCR}",
                f"s_cselect_b32 s{sRD}, 0, s{sRD}"]

    for var in range(4):
        typ, mh, nq = var >> 1, var & 1, 0
        cst = [2 * mh, 2 * mh + 1]
        smt = (2 if typ == 2 else 0) + nq
        a.raw(".p2align 3")
        a.lab(f"K1_V{var}")
        emit(addr_update())
        a.e("s_barrier")
        stamp(a, 1)
        emit(reads(0))
        a.raw(".p2align 6")
        a.lab(f"K1_L{var}")
        for fs in range(2):
            mf = []
            for j in range(4):
                for mt in range(4):
                    if typ == 1:
                        mf.append(f"v_mfma_f32_16x16x32_bf16 {vr(acc(j,mt),4)}, {vr(fa(fs,mt),4)}, {vr(fb(fs,j),4)}, {vr(acc(j,mt),4)}")
                    else:
                        mf.append(f"v_mfma_f32_16x16x32_bf16 {vr(acc(j,mt),4)}, {vr(fb(fs,j),4)}, {vr(fa(fs,mt),4)}, {vr(acc(j,mt),4)}")
                if j in cst:
                    c = vCS + 4 * cst.index(j)
                    mf.append(f"v_mfma_f32_16x16x32_bf16 {vr(c,4)}, {vr(fb(fs,j),4)}, {vr(vONES,4)}, {vr(c,4)}")
            va = []
            for r in range(4):
                src = fa(fs, smt) + r
                lo, hi = vU + 2 * (r & 1), vU + 2 * (r & 1) + 1
                va.append(f"v_lshlrev_b32 v{lo}, 16, v{src}")
                va.append(f"v_and_b32 v{hi}, 0xffff0000, v{src}")
                va.append(f"v_add_f32 v{vS}, v{vS}, v{lo}")
                va.append(f"v_add_f32 v{vS+1}, v{vS+1}, v{hi}")
                va.append(f"v_fmac_f32 v{vS+2}, v{lo}, v{lo}")
                va.append(f"v_fmac_f32 v{vS+3}, v{hi}, v{hi}")
            rd = reads(fs ^ 1)
            va = []
            if "r" in X: rd = []
            if "M" in X: mf = mf[:2]
            a.e("s_waitcnt lgkmcnt(0)")
            npre = 0
            if fs == 1:
                npre = 2
                for m in mf[:npre]:
                    a.e(m)
                emit(addr_update())
                a.e("s_barrier")
            rest = mf[npre:]
            nm = max(1, len(rest))
            ri = di = 0
            for i, m in enumerate(rest):
                if ri < len(rd):
                    a.e(rd[ri]); ri += 1
                a.e(m)
                want_d = (len(va) * (i + 1) + nm - 1) // nm
                while di < want_d:
                    a.e(va[di]); di += 1
            while ri < len(rd):
                a.e(rd[ri]); ri += 1
            while di < len(va):
                a.e(va[di]); di += 1
        a.e(f"s_add_u32 s{sIT}, s{sIT}, 1")
        a.e(f"s_cmp_lt_u32 s{sIT}, 10")
        a.e(f"s_cbranch_scc1 K1_L{var}")
        a.e(f"s_branch K1_EPI")

    a.raw(".p2align 3")
    a.lab("K1_EPI")
    stamp(a, 2)
    a.e("s_waitcnt vmcnt(0)")
    a.e(f"v_and_b32 v{vT}, 15, v{vLANE}")
    a.e(f"v_lshlrev_b32 v{vT}, 2, v{vT}")
    a.e(f"s_lshl_b32 s{t0}, s{sHALF}, 7")
    a.e(f"s_lshl_b32 s{t1}, s{sNQ}, 6")
    a.e(f"s_add_u32 s{t0}, s{t0}, s{t1}")
    a.e(f"s_lshl_b32 s{t2}, s{sMH}, 8")
    a.e(f"s_add_u32 s{t2}, s{t2}, {K1_SCR}")
    a.e(f"s_add_u32 s{t0}, s{t0}, s{t2}")
    a.e(f"v_add_u32 v{vT+1}, s{t0}, v{vT}")
    a.e(f"v_lshrrev_b32 v{vT+2}, 4, v{vLANE}")
    a.e(f"v_lshlrev_b32 v{vT+2}, 4, v{vT+2}")
    a.e(f"s_lshl_b32 s{t3}, s{sHALF}, 9")
    a.e(f"s_lshl_b32 s{t1}, s{sNQ}, 8")
    a.e(f"s_add_u32 s{t3}, s{t3}, s{t1}")
    a.e(f"s_add_u32 s{t3}, s{t3}, {K1_SCR+1024}")
    a.e(f"s_lshl_b32 s{t1}, s{sMH}, 7")
    a.e(f"s_add_u32 s{t0}, s{t3}, s{t1}")
    a.e(f"v_add_u32 v{vT+3}, s{t0}, v{vT+2}")
    a.e("s_mov_b32 exec_lo, 0x00010001")
    a.e("s_mov_b32 exec_hi, 0x00010001")
    a.e(f"ds_write_b128 v{vT+3}, {vr(vCS,4)}")
    a.e(f"ds_write_b128 v{vT+3}, {vr(vCS+4,4)} offset:64")
    a.e("s_mov_b64 exec, -1")
    a.e("s_waitcnt lgkmcnt(0)")
    a.e("s_barrier")
    stamp(a, 3)
    a.e(f"s_cmp_eq_u32 s{sTYP}, 1")
    a.e("s_cbranch_scc1 K1_EPI_V")

    vNM, vRS = 32, 36
    vC4 = 40
    vBB = 56
    a.e(f"v_add_u32 v{vT}, s{t2}, v{vT}")
    a.e(f"ds_read2_b32 {vr(vNM,2)}, v{vT} offset0:0 offset1:16")
    a.e(f"ds_read2_b32 {vr(vNM+2,2)}, v{vT} offset0:32 offset1:48")
    a.e(f"ds_read2_b32 {vr(vRS,2)}, v{vT} offset0:128 offset1:144")
    a.e(f"ds_read2_b32 {vr(vRS+2,2)}, v{vT} offset0:160 offset1:176")
    a.e(f"v_add_u32 v{vT+1}, s{t3}, v{vT+2}")
    for j in range(4):
        a.e(f"ds_read_b128 {vr(vC4+4*j,4)}, v{vT+1} offset:{64*j}")
    a.e(f"s_cmp_eq_u32 s{sTYP}, 2")
    a.e("s_cbranch_scc1 K1_EPI_F")

    def sel3(mt):
        return f"op_sel:[0,{mt&1},0] op_sel_hi:[1,{mt&1},1]"

    def sel2(mt):
        return f"op_sel:[0,{mt&1}] op_sel_hi:[1,{mt&1}]"
    a.e(f"s_cmp_lt_u32 s{sCB}, 5")
    a.e(f"s_cselect_b32 s{t0}, {hx(f32(QSCALE))}, 1.0")
    a.e("s_waitcnt lgkmcnt(4)")
    for i in range(4):
        a.e(f"v_mul_f32 v{vRS+i}, s{t0}, v{vRS+i}")
    for j in range(4):
        a.e(f"s_waitcnt lgkmcnt({3-j})")
        for mt in range(4):
            A = acc(j, mt)
            for p in range(2):
                a.e(f"v_pk_fma_f32 {vr(A+2*p,2)}, {vr(vC4+4*j+2*p,2)}, {vr(vNM+(mt&2),2)}, {vr(A+2*p,2)} {sel3(mt)}")
        for mt in range(4):
            A = acc(j, mt)
            for p in range(2):
                a.e(f"v_pk_mul_f32 {vr(A+2*p,2)}, {vr(A+2*p,2)}, {vr(vRS+(mt&2),2)} {sel2(mt)}")
        for mt in range(4):
            A = acc(j, mt)
            a.e(f"v_cvt_pk_bf16_f32 v{A}, v{A}, v{A+1}")
            a.e(f"v_cvt_pk_bf16_f32 v{A+1}, v{A+2}, v{A+3}")
            so = f"s{sTS}" if mt & 2 else "0"
            a.e(f"buffer_store_dwordx2 {vr(A,2)}, v{vSA+j}, {sr(sWS,4)}, {so} offen offset:{128*(mt&1)}{SCQ}")
    finish("Q")
    a.lab("K1_EPI_F")
    c0 = -2.0 * math.sqrt(2.0 / math.pi) * math.log2(math.e)
    c1 = c0 * 0.044715
    vC0, vONE = 64, 66
    a.e(f"v_lshrrev_b32 v{vT+2}, 1, v{vT+2}")
    a.e(f"s_lshl_b32 s{t0}, s{sNQ}, 7")
    a.e(f"s_add_u32 s{t0}, s{t0}, {K1_SCR+2048}")
    a.e(f"v_add_u32 v{vT+2}, s{t0}, v{vT+2}")
    for j in range(4):
        a.e(f"ds_read_b64 {vr(vBB+2*j,2)}, v{vT+2} offset:{32*j}")
    a.e(f"v_mov_b32 v{vC0}, {hx(f32(c0))}")
    a.e(f"v_mov_b32 v{vC0+1}, {hx(f32(c0))}")
    a.e(f"v_mov_b32 v{vONE}, 1.0")
    a.e(f"v_mov_b32 v{vONE+1}, 1.0")
    a.e(f"s_mov_b32 s{sC1}, {hx(f32(c1))}")
    a.e(f"s_mov_b32 s{sC1+1}, {hx(f32(c1))}")
    vBF = 68
    vW = 88
    a.e("s_waitcnt lgkmcnt(0)")
    for j in (2, 3, 0, 1):
        a.e(f"v_lshlrev_b32 v{vBF}, 16, v{vBB+2*j}")
        a.e(f"v_and_b32 v{vBF+1}, 0xffff0000, v{vBB+2*j}")
        a.e(f"v_lshlrev_b32 v{vBF+2}, 16, v{vBB+2*j+1}")
        a.e(f"v_and_b32 v{vBF+3}, 0xffff0000, v{vBB+2*j+1}")
        for mp in range(2):
            prs = [(mt, p) for mt in (2 * mp, 2 * mp + 1) for p in range(2)]
            for i, (mt, p) in enumerate(prs):
                A = acc(j, mt) + 2 * p
                a.e(f"v_pk_fma_f32 {vr(A,2)}, {vr(vC4+4*j+2*p,2)}, {vr(vNM+(mt&2),2)}, {vr(A,2)} {sel3(mt)}")
            for i, (mt, p) in enumerate(prs):
                A = acc(j, mt) + 2 * p
                a.e(f"v_pk_fma_f32 {vr(A,2)}, {vr(A,2)}, {vr(vRS+(mt&2),2)}, {vr(vBF+2*p,2)} {sel3(mt)}")
            for i, (mt, p) in enumerate(prs):
                A = acc(j, mt) + 2 * p
                a.e(f"v_pk_mul_f32 {vr(vW+2*i,2)}, {vr(A,2)}, {vr(A,2)}")
            for i, (mt, p) in enumerate(prs):
                a.e(f"v_pk_fma_f32 {vr(vW+2*i,2)}, {vr(vW+2*i,2)}, {sr(sC1,2)}, {vr(vC0,2)}")
            for i, (mt, p) in enumerate(prs):
                A = acc(j, mt) + 2 * p
                a.e(f"v_pk_mul_f32 {vr(vW+2*i,2)}, {vr(vW+2*i,2)}, {vr(A,2)}")
            for i in range(8):
                a.e(f"v_exp_f32 v{vW+i}, v{vW+i}")
            for i in range(4):
                a.e(f"v_pk_add_f32 {vr(vW+2*i,2)}, {vr(vW+2*i,2)}, {vr(vONE,2)}")
            for i in range(8):
                a.e(f"v_rcp_f32 v{vW+i}, v{vW+i}")
            for i, (mt, p) in enumerate(prs):
                A = acc(j, mt) + 2 * p
                a.e(f"v_pk_mul_f32 {vr(A,2)}, {vr(A,2)}, {vr(vW+2*i,2)}")
            for mt in (2 * mp, 2 * mp + 1):
                A = acc(j, mt)
                Dq = acc(2, mt) if j >= 2 else acc(3, mt)
                D = Dq + 2 * (j & 1)
                a.e(f"v_cvt_pk_bf16_f32 v{D}, v{A}, v{A+1}")
                a.e(f"v_cvt_pk_bf16_f32 v{D+1}, v{A+2}, v{A+3}")
                if j & 1 and (not ONE or HSM == "0"):
                    a.e(f"buffer_store_dwordx4 {vr(Dq,4)}, v{vSA+j//2}, {sr(sWS,4)}, 0 offen offset:{256*mt}{SC}")
    if ONE and HSM == "1":
        for p in range(2):
            for mt in range(4):
                a.e(f"buffer_store_dwordx4 {vr(acc(3-p,mt),4)}, v{vSA+p}, {sr(sWS,4)}, 0 offen offset:{256*mt} sc1")
    k1flush()
    if ONE:
        a.e(f"v_mov_b32 v128, v{vSA}")
        a.e(f"v_mov_b32 v129, v{vSA+1}")
        a.e(f"s_lshl_b32 s{t0}, s{sRB}, 7")
        a.e(f"s_lshl_b32 s{t1}, s{sCB}, 2")
        a.e(f"s_add_u32 s{t0}, s{t0}, s{t1}")
        a.e(f"s_add_u32 s72, s{t0}, {hx(FL_OFF + FH_REL)}")
        a.e("s_branch P2_ENTRY")
    else:
        a.e("s_endpgm")
    a.lab("K1_EPI_V")
    vNMv, vRSv = 40, 56
    vCSv = 88
    a.e(f"v_add_u32 v{vT+1}, s{t2}, v{vT+2}")
    for mt in range(4):
        a.e(f"ds_read_b128 {vr(vNMv+4*mt,4)}, v{vT+1} offset:{64*mt}")
    for mt in range(4):
        a.e(f"ds_read_b128 {vr(vRSv+4*mt,4)}, v{vT+1} offset:{512+64*mt}")
    a.e(f"v_add_u32 v{vT+3}, s{t3}, v{vT}")
    for j in range(4):
        a.e(f"ds_read_b32 v{vCSv+2*j}, v{vT+3} offset:{64*j}")
    a.e("s_waitcnt lgkmcnt(0)")
    for j in range(4):
        for mt in range(4):
            A = acc(j, mt)
            for p in range(2):
                a.e(f"v_pk_fma_f32 {vr(A+2*p,2)}, {vr(vNMv+4*mt+2*p,2)}, {vr(vCSv+2*j,2)}, {vr(A+2*p,2)} op_sel:[0,0,0] op_sel_hi:[1,0,1]")
        for mt in range(4):
            A = acc(j, mt)
            for p in range(2):
                a.e(f"v_pk_mul_f32 {vr(A+2*p,2)}, {vr(A+2*p,2)}, {vr(vRSv+4*mt+2*p,2)}")
        for t2_ in range(2):
            A0, A1 = acc(j, 2 * t2_), acc(j, 2 * t2_ + 1)
            a.e(f"v_cvt_pk_bf16_f32 v{A0}, v{A0}, v{A0+1}")
            a.e(f"v_cvt_pk_bf16_f32 v{A0+1}, v{A0+2}, v{A0+3}")
            a.e(f"v_cvt_pk_bf16_f32 v{A0+2}, v{A1}, v{A1+1}")
            a.e(f"v_cvt_pk_bf16_f32 v{A0+3}, v{A1+2}, v{A1+3}")
            if t2_:
                a.e(f"v_xor_b32 v{vWA[j]}, 64, v{vWA[j]}")
            a.e(f"ds_write_b128 v{vWA[j]}, {vr(A0,4)} offset:{2048*j}")
    a.e(f"s_lshl_b32 s{t3}, s{sW}, 13")
    a.e(f"v_lshlrev_b32 v{vT}, 4, v{vLANE}")
    a.e(f"v_add_u32 v{vT}, s{t3}, v{vT}")
    a.e("s_waitcnt lgkmcnt(0)")
    for q in range(8):
        a.e(f"ds_read_b128 {vr(40+4*q,4)}, v{vT} offset:{1024*q}")
    for q in range(8):
        a.e(f"s_waitcnt lgkmcnt({7-q})")
        a.e(f"buffer_store_dwordx4 {vr(40+4*q,4)}, v{vSA+q}, {sr(sWS,4)}, 0 offen{SCQ}")
    finish("Q")
    if ONE:
        for kind in "Q":
            a.lab(f"K1_SIG{kind}")
            a.e(f"v_mov_b32 v2, {K1_SYN + (4 if kind == 'F' else 0)}")
            a.e("v_mov_b32 v3, 1")
            if kind == "Q":
                a.e(f"v_lshlrev_b32 v5, 11, v{vLANE}")
                a.e(f"s_lshl_b32 s{t0}, s{sCB}, 7")
                a.e(f"s_lshl_b32 s{t1}, s{sRB}, 2")
                a.e(f"s_add_u32 s{t0}, s{t0}, s{t1}")
                a.e(f"s_add_u32 s{t0}, s{t0}, {hx(FL_OFF + FQ_REL)}")
            else:
                a.e("v_mov_b32 v5, 0")
                a.e(f"s_lshl_b32 s{t0}, s{sRB}, 7")
                a.e(f"s_lshl_b32 s{t1}, s{sCB}, 2")
                a.e(f"s_add_u32 s{t0}, s{t0}, s{t1}")
                a.e(f"s_add_u32 s{t0}, s{t0}, {hx(FL_OFF + FH_REL)}")
            a.e("s_waitcnt vmcnt(0)")
            a.e("s_mov_b64 exec, 1")
            a.e("ds_add_rtn_u32 v4, v2, v3")
            a.e("s_waitcnt lgkmcnt(0)")
            a.e(f"v_readfirstlane_b32 s{t1}, v4")
            a.e("s_mov_b64 exec, -1")
            a.e(f"s_cmp_lg_u32 s{t1}, 3")
            a.e("s_cbranch_scc1 P2_ENTRY")
            if kind in WB:
                a.e("buffer_wbl2 sc1")
                a.e("s_waitcnt vmcnt(0)")
            a.e(f"s_mov_b64 exec, {15 if kind == 'Q' else 1}")
            a.e(f"buffer_store_dword v3, v5, {sr(sWS,4)}, s{t0} offen sc1")
            a.e("s_mov_b64 exec, -1")
            a.e("s_branch P2_ENTRY")

    a.lab("K1_TRANS")
    sTAU, sSEL0, sSEL1 = 51, 52, 53
    NB_T = 4
    sTs = [24, 28, 36, 40]
    sK = [54, 56, 58, 76]
    vTO = [2, 3, 4, 5]
    vTS = [6, 7, 8, 9]
    vTL = [88, 104, 120, 136]
    a.e(f"s_mul_i32 s{sTAU}, s{sRB}, 12")
    a.e(f"s_add_u32 s{sTAU}, s{sTAU}, s{sW}")
    a.e(f"s_mov_b32 s{sSEL0}, 0x05040100")
    a.e(f"s_mov_b32 s{sSEL1}, 0x07060302")
    a.e(f"v_lshlrev_b32 v{vT}, 2, v{vLANE}")
    a.e(f"v_lshlrev_b32 v{vT+1}, 4, v{vLANE}")
    a.e(f"s_lshl_b32 s{t0}, s{sW}, 13")
    a.e(f"v_lshlrev_b32 v10, 5, v{vLANE}")
    a.e(f"v_add_u32 v10, s{t0}, v10")
    a.e(f"v_add_u32 v11, s{t0}, v{vT+1}")
    a.e("s_waitcnt lgkmcnt(0)")
    srd(a, sWS, "s18", "s19", WS_END)
    if "Q" in X:
        srd(a, sX, "s4", "s5", 2048 * 640 * 2)
        srd(a, sB0, "s6", "s7", 640 * 1920 * 2)
        srd(a, sB1, "s12", "s13", 640 * 1728 * 2)
        a.e(f"s_lshl_b32 s{t0}, s{sTAU}, 13")
        a.e(f"v_lshlrev_b32 v20, 7, v{vLANE}")
        a.e(f"v_add_u32 v20, s{t0}, v20")
        a.e(f"s_mov_b32 s{t1}, {192*3840}")
        a.e(f"s_mov_b32 s{t2}, {192*3456}")
        a.e(f"s_mov_b32 s{t3}, {192*3840 + 12288*128}")
        a.e(f"s_mov_b32 s{t4}, {12288*128}")
        a.e(f"buffer_load_dword v21, v20, {sr(sB0,4)}, s{t1} offen")
        a.e(f"buffer_load_dword v22, v20, {sr(sB1,4)}, s{t2} offen")
        a.e(f"buffer_load_dword v23, v20, {sr(sX,4)}, 0 offen")
        a.e(f"buffer_load_dword v24, v20, {sr(sX,4)}, s{t4} offen")
        a.e(f"buffer_load_dword v25, v20, {sr(sB0,4)}, s{t3} offen")
    a.e(f"s_lshl_b32 s{t0}, s{sTAU}, 3")
    a.e(f"v_lshrrev_b32 v{vT+2}, 3, v{vLANE}")
    a.e(f"v_add_u32 v{vT+2}, s{t0}, v{vT+2}")
    a.e(f"v_mul_u32_u24 v{vT+2}, {2*KVT}, v{vT+2}")
    a.e(f"v_and_b32 v{vT+3}, 7, v{vLANE}")
    a.e(f"v_lshl_add_u32 v{vT+2}, v{vT+3}, 4, v{vT+2}")
    a.e(f"s_cmp_lt_u32 s{sTAU}, 128")
    a.e(f"s_cselect_b32 s{t0}, {hx(KV_OFF + 1280 + 20*128)}, {hx(OOB)}")
    for i in range(4):
        a.e(f"v_mov_b32 v{12+i}, 0x3f803f80")
    a.e(f"buffer_store_dwordx4 v[12:15], v{vT+2}, {sr(sWS,4)}, s{t0} offen{SC}")
    a.e(f"s_lshl_b32 s{t1}, s{sW}, 10")
    a.e(f"s_add_u32 s{t1}, s{t1}, {hx(FL_OFF)}")
    a.e(f"s_cmp_eq_u32 s{sRB}, 0")
    a.e(f"s_cselect_b32 s{t0}, s{t1}, {hx(OOB)}")
    for i in range(4):
        a.e(f"v_mov_b32 v{16+i}, 0")
    a.e(f"v_lshlrev_b32 v{vT+3}, 4, v{vLANE}")
    a.e(f"buffer_store_dwordx4 v[16:19], v{vT+3}, {sr(sWS,4)}, s{t0} offen{SC}")
    if ONE:
        a.e(f"v_mov_b32 v20, {K1_SYN}")
        a.e("ds_write_b128 v20, v[16:19]")
        a.e("s_waitcnt vmcnt(0) lgkmcnt(0)")
        a.e("s_barrier")
        a.e(f"s_cmp_lg_u32 s{sW}, 0")
        a.e("s_cbranch_scc1 K1_TGO")
        a.e("v_mov_b32 v21, 1")
        a.e(f"s_cmp_lg_u32 s{sRB}, 0")
        a.e("s_cbranch_scc1 K1_TZ")
        srd(a, sX, "s10", "s11", 256)
        a.e("s_mov_b64 exec, 1")
        a.e(f"buffer_store_dword v21, v16, {sr(sX,4)}, 0 offen sc1")
        a.e("s_mov_b64 exec, -1")
        a.lab("K1_TZ")
        a.lab("K1_TGO")
    a.e(f"s_mov_b32 s{sIT+3}, 0")
    a.lab("K1_TL")
    for b in range(NB_T):
        T = sTs[b]
        a.e(f"s_mul_i32 s{t1}, s{sTAU}, 13108")
        a.e(f"s_lshr_b32 s{t1}, s{t1}, 16")
        a.e(f"s_mul_i32 s{t2}, s{t1}, 5")
        a.e(f"s_sub_u32 s{t2}, s{sTAU}, s{t2}")
        a.e(f"s_lshr_b32 s{t5}, s{t1}, 1")
        a.e(f"s_mul_i32 s{t5}, s{t5}, 20")
        a.e(f"s_and_b32 s{t6}, s{t1}, 1")
        a.e(f"s_lshl_b32 s{t6}, s{t6}, 2")
        a.e(f"s_add_u32 s{t5}, s{t5}, s{t6}")
        a.e(f"s_add_u32 s{t6}, s{t5}, 8")
        a.e(f"s_sub_u32 s{t3}, s{t1}, 64")
        a.e(f"s_mul_i32 s{t3}, s{t3}, 40")
        a.e(f"s_add_u32 s{t4}, s{t3}, 36")
        a.e(f"s_add_u32 s{t3}, s{t3}, 16")
        a.e(f"s_cmp_lt_u32 s{t1}, 64")
        a.e(f"s_cselect_b32 s{t5}, s{t5}, s{t3}")
        a.e(f"s_cselect_b32 s{t6}, s{t6}, s{t4}")
        a.e(f"s_sub_u32 s{t3}, s{t1}, 80")
        a.e(f"s_lshr_b32 s{t4}, s{t3}, 2")
        a.e(f"s_lshl_b32 s{t4}, s{t4}, 5")
        a.e(f"s_and_b32 s{t3}, s{t3}, 3")
        a.e(f"s_lshl_b32 s{t3}, s{t3}, 2")
        a.e(f"s_add_u32 s{t3}, s{t3}, s{t4}")
        a.e(f"s_add_u32 s{t4}, s{t3}, 16")
        a.e(f"s_cmp_lt_u32 s{t1}, 80")
        a.e(f"s_cselect_b32 s{t5}, s{t5}, s{t3}")
        a.e(f"s_cselect_b32 s{t6}, s{t6}, s{t4}")
        a.e(f"s_cselect_b32 s{T}, s8, s16")
        a.e(f"s_cselect_b32 s{T+1}, s9, s17")
        a.e(f"s_cselect_b32 s{T+2}, {hx(640*640*2)}, {hx(1728*640*2)}")
        a.e(f"s_mov_b32 s{T+3}, 0x00020000")
        a.e(f"s_mul_i32 s{sK[b]}, s{t5}, 1280")
        a.e(f"s_mul_i32 s{sK[b]+1}, s{t6}, 1280")
        a.e(f"s_lshl_b32 s{t3}, s{t2}, 8")
        a.e(f"v_add_u32 v{vTO[b]}, s{t3}, v{vT}")
        for j in range(8):
            so = sK[b] if j < 4 else sK[b] + 1
            a.e(f"buffer_load_dword v{vTL[b]+j}, v{vTO[b]}, {sr(T,4)}, s{so} offen offset:{(j&3)*1280}")
        a.e(f"s_mul_i32 s{t1}, s{t1}, 10240")
        a.e(f"s_lshl_b32 s{t2}, s{t2}, 11")
        a.e(f"s_add_u32 s{t1}, s{t1}, s{t2}")
        a.e(f"s_add_u32 s{t1}, s{t1}, {hx(WT_OFF)}")
        a.e(f"s_cmp_lt_u32 s{sTAU}, 1480")
        a.e(f"s_cselect_b32 s{t1}, s{t1}, {hx(OOB)}")
        a.e(f"v_add_u32 v{vTS[b]}, s{t1}, v{vT+1}")
        a.e(f"s_add_u32 s{sTAU}, s{sTAU}, 192")
    for b in range(NB_T):
        a.e(f"s_waitcnt vmcnt({8*(NB_T-1-b)})")
        for i in range(4):
            a.e(f"v_perm_b32 v{vTL[b]+8+i}, v{vTL[b]+2*i+1}, v{vTL[b]+2*i}, s{sSEL0}")
            a.e(f"v_perm_b32 v{vTL[b]+12+i}, v{vTL[b]+2*i+1}, v{vTL[b]+2*i}, s{sSEL1}")
        a.e(f"ds_write_b128 v10, {vr(vTL[b]+8,4)} offset:{2048*b}")
        a.e(f"ds_write_b128 v10, {vr(vTL[b]+12,4)} offset:{2048*b+16}")
    a.e("s_waitcnt lgkmcnt(0)")
    for b in range(NB_T):
        a.e(f"ds_read_b128 {vr(vTL[b]+8,4)}, v11 offset:{2048*b}")
        a.e(f"ds_read_b128 {vr(vTL[b]+12,4)}, v11 offset:{2048*b+1024}")
    for b in range(NB_T):
        a.e(f"s_waitcnt lgkmcnt({2*(NB_T-1-b)})")
        a.e(f"buffer_store_dwordx4 {vr(vTL[b]+8,4)}, v{vTS[b]}, {sr(sWS,4)}, 0 offen{SCT}")
        a.e(f"buffer_store_dwordx4 {vr(vTL[b]+12,4)}, v{vTS[b]}, {sr(sWS,4)}, 0 offen offset:1024{SCT}")
    a.e(f"s_add_u32 s{sIT+3}, s{sIT+3}, 1")
    a.e(f"s_cmp_lt_u32 s{sIT+3}, 2")
    a.e("s_cbranch_scc1 K1_TL")
    if DIAG:
        for i in (1, 2, 3, 5):
            stamp(a, i)
    k1flush()
    if ONE:
        a.e("s_waitcnt vmcnt(0)")
        a.e("s_barrier")
        a.e(f"s_cmp_lg_u32 s{sW}, 0")
        a.e("s_cbranch_scc1 P2_ENTRY")
        zpoll("tr", sX, 22, 23)
        a.e(f"v_lshlrev_b32 v22, 11, v{vLANE}")
        a.e(f"s_lshl_b32 s{t1}, s{sRB}, 2")
        a.e(f"s_add_u32 s{t1}, s{t1}, {hx(FL_OFF + FQ_REL + 15*128)}")
        a.e("s_mov_b64 exec, 15")
        a.e(f"buffer_store_dword v21, v22, {sr(sWS,4)}, s{t1} offen sc1")
        a.e("s_mov_b64 exec, -1")
        a.e("s_branch P2_ENTRY")
    a.lab("K1_END")
    a.e("s_endpgm")
    return name, NV, 102 if (DIAG or DBG) else 80, (256, 768, K1_LDS)


K2_LDS = 163840
Y_OFF = 0x1400000
Y_SIZE = 2048 * 640 * 4
WS_ALL = Y_OFF + Y_SIZE


def gen_k2(a):
    name = "k2_attn_kernel"
    if ONE:
        a.raw(".p2align 6")
        a.lab("P2_ENTRY")
    else:
        kernel_header(a, name)
    X2 = os.environ.get("K2X", "")
    sWS, sKV = 12, 16
    sW, sH, sQT, sOFF, sIT, sG = 20, 21, 22, 23, 24, 25
    sLD = 26
    t0, t1, t2, t3 = 28, 29, 30, 31
    sBM = 32
    vLANE = 1
    vL16, vKa, vKb, vV = 2, 3, 4, 5
    vT = 6
    QA, QB = [12, 20], [16, 24]
    KA, KB = 28, 32
    V0, V1 = 36, 40
    P0, P1 = 44, 48
    O = [64, 80]
    S = [96, 112]
    NV = 168
    RG = 81920
    FUSE = "u" not in X2
    k2flush = lambda: (stamp(a, 4), stamp_flush(a, 1, 12, sW, "s4", "s5", 8, 2))

    if not ONE:
        a.e("s_cmp_ge_u32 s2, 256")
        a.e("s_cbranch_scc1 K2_END")
    stamp(a, 0)
    a.e("s_load_dwordx2 s[4:5], s[0:1], 80")
    a.e("s_load_dwordx2 s[6:7], s[0:1], 0")
    a.e("s_load_dwordx2 s[8:9], s[0:1], 56")
    a.e("s_load_dwordx4 s[60:63], s[0:1], 64")
    a.e(f"v_and_b32 v{vLANE}, 63, v0")
    a.e(f"v_lshrrev_b32 v{vT}, 6, v0")
    a.e(f"s_and_b32 s{t0}, s2, 7")
    a.e(f"v_readfirstlane_b32 s{sW}, v{vT}")
    a.e(f"s_lshr_b32 s{t1}, s2, 3")
    a.e(f"s_lshl_b32 s{t2}, s{t0}, 2")
    a.e(f"s_and_b32 s{t3}, s{t1}, 3")
    a.e(f"s_add_u32 s{sH}, s{t2}, s{t3}")
    a.e(f"v_lshlrev_b32 v{vL16}, 4, v{vLANE}")
    a.e(f"s_mul_i32 s{t2}, s{sH}, {KVH}")
    a.e(f"s_add_u32 s{t2}, s{t2}, {hx(KV_OFF)}")
    a.e("s_waitcnt lgkmcnt(0)")
    stamp(a, 5)
    a.e(f"s_add_u32 s{sKV}, s4, s{t2}")
    a.e(f"s_addc_u32 s{sKV+1}, s5, 0")
    a.e(f"s_mov_b32 s{sKV+2}, {KVH}")
    a.e(f"s_mov_b32 s{sKV+3}, 0x00020000")
    sFL = 64

    def gpoll(tag, vaddr, vd):
        a.e(f"s_mov_b32 s{sIT}, 0")
        a.lab(f"GP_{tag}")
        a.e(f"buffer_load_dword v{vd}, v{vaddr}, {sr(sFL,4)}, 0 offen sc1")
        a.e(f"s_add_u32 s{sIT}, s{sIT}, 1")
        a.e("s_waitcnt vmcnt(0)")
        a.e(f"v_cmp_ne_u32 vcc, 1, v{vd}")
        a.e(f"s_cmp_ge_u32 s{sIT}, {POLL_MAX}")
        a.e(f"s_cbranch_scc1 GD_{tag}")
        a.e(f"s_cbranch_vccz GD_{tag}")
        a.e("s_sleep 3")
        a.e(f"s_branch GP_{tag}")
        a.lab(f"GD_{tag}")

    if ONE:
        a.e(f"v_mov_b32 v{vT+5}, {K1_SYN + 8}")
        a.e(f"s_cmp_lg_u32 s{sW}, 0")
        a.e("s_cbranch_scc1 P2_SPIN")
        srd_off(a, sFL, "s4", "s5", FL_OFF, FL_SIZE)
        a.e(f"s_mul_i32 s{t2}, s{sH}, 20")
        a.e(f"s_and_b32 s{t3}, s2, 3")
        a.e(f"s_lshl_b32 s{t3}, s{t3}, 11")
        a.e(f"s_add_u32 s{t3}, s{t3}, {FQ_REL}")
        a.e(f"v_lshrrev_b32 v{vT}, 5, v{vLANE}")
        a.e(f"v_mul_u32_u24 v{vT}, 640, v{vT}")
        a.e(f"v_bfe_u32 v{vT+1}, v{vLANE}, 4, 1")
        a.e(f"v_mul_u32_u24 v{vT+1}, 19, v{vT+1}")
        a.e(f"v_add3_u32 v{vT}, v{vT}, v{vT+1}, s{t2}")
        a.e(f"v_add_u32 v{vT}, 640, v{vT}")
        a.e(f"v_and_b32 v{vT}, 0xffffff80, v{vT}")
        a.e(f"v_and_b32 v{vT+1}, 15, v{vLANE}")
        a.e(f"v_lshl_add_u32 v{vT}, v{vT+1}, 2, v{vT}")
        a.e(f"v_add_u32 v{vT}, s{t3}, v{vT}")
        a.e(f"v_and_b32 v{vT+2}, 1, v{vLANE}")
        a.e(f"v_mul_u32_u24 v{vT+2}, 19, v{vT+2}")
        a.e(f"v_add_u32 v{vT+2}, s{t2}, v{vT+2}")
        a.e(f"v_and_b32 v{vT+2}, 0xffffff80, v{vT+2}")
        a.e(f"v_bfe_u32 v{vT+3}, v{vLANE}, 1, 1")
        a.e(f"s_lshr_b32 s{t2}, s2, 5")
        a.e(f"s_lshl_b32 s{t2}, s{t2}, 1")
        a.e(f"v_add_u32 v{vT+3}, s{t2}, v{vT+3}")
        a.e(f"v_lshl_add_u32 v{vT+2}, v{vT+3}, 2, v{vT+2}")
        a.e(f"v_lshlrev_b32 v{vT+3}, 2, v{vT+1}")
        a.e(f"v_add_u32 v{vT+3}, {15*128}, v{vT+3}")
        a.e(f"v_cmp_gt_u32 vcc, 16, v{vLANE}")
        a.e("s_nop 1")
        a.e(f"v_cndmask_b32 v{vT+2}, v{vT+2}, v{vT+3}, vcc")
        a.e(f"v_add_u32 v{vT+2}, s{t3}, v{vT+2}")
        a.e(f"s_mov_b32 s{sIT}, 0")
        a.lab("GP_go")
        a.e(f"buffer_load_dword v{vT+4}, v{vT}, {sr(sFL,4)}, 0 offen sc1")
        a.e(f"buffer_load_dword v{vT+3}, v{vT+2}, {sr(sFL,4)}, 0 offen sc1")
        a.e(f"s_add_u32 s{sIT}, s{sIT}, 1")
        a.e("s_waitcnt vmcnt(0)")
        a.e(f"v_and_b32 v{vT+4}, v{vT+4}, v{vT+3}")
        a.e(f"v_cmp_ne_u32 vcc, 1, v{vT+4}")
        a.e(f"s_cmp_ge_u32 s{sIT}, {POLL_MAX}")
        a.e("s_cbranch_scc1 GD_go")
        a.e("s_cbranch_vccz GD_go")
        a.e(f"s_sleep {os.environ.get('GSL', '3')}")
        a.e("s_branch GP_go")
        a.lab("GD_go")
        a.e(f"v_mov_b32 v{vT+4}, 1")
        a.e(f"ds_write_b32 v{vT+5}, v{vT+4}")
        a.e("s_branch P2_GO")
        a.lab("P2_SPIN")
        a.e(f"ds_read_b32 v{vT+4}, v{vT+5}")
        a.e("s_waitcnt lgkmcnt(0)")
        a.e(f"v_readfirstlane_b32 s{t2}, v{vT+4}")
        a.e(f"s_cmp_eq_u32 s{t2}, 1")
        a.e("s_cbranch_scc1 P2_GO")
        a.e("s_sleep 1")
        a.e("s_branch P2_SPIN")
        a.lab("P2_GO")
        stamp(a, 5)
    a.e(f"s_cmp_ge_u32 s{sW}, 4")
    a.e("s_cbranch_scc1 K2_ATT")
    sA, sWT, sXX, sB2, sY = 36, 40, 44, 48, 52
    sRB, sCB, sOA, sOW = 56, 57, 58, 59
    vOA, vOW, vXO, vBO, vYO = 3, 4, 5, 12, 13
    F = 16
    ACC = 88

    def fA(s_, mt):
        return F + 36 * s_ + 4 * mt

    def fW(s_, t):
        return F + 36 * s_ + 16 + 4 * t

    def kvdma(n):
        for t in range(n):
            a.e(f"s_mov_b32 m0, s{sLD}")
            a.e(f"s_add_u32 s{sLD}, s{sLD}, 2048")
            a.e(f"buffer_load_dwordx4 v{vL16}, {sr(sKV,4)}, s{sOFF} offen{SC} lds")
            a.e(f"s_add_u32 s{sOFF}, s{sOFF}, 2048")

    dstamp(a, 4)
    dstamp(a, 5, True)
    a.e("s_setprio 3")
    a.e(f"s_and_b32 s{t2}, s{sW}, 1")
    a.e(f"s_lshr_b32 s{t3}, s{sW}, 1")
    a.e(f"s_lshl_b32 s{t3}, s{t3}, 10")
    a.e(f"s_mul_i32 s{sOFF}, s{t2}, {32*KVT}")
    a.e(f"s_add_u32 s{sOFF}, s{sOFF}, s{t3}")
    a.e(f"s_mul_i32 s{sLD}, s{t2}, {RG}")
    a.e(f"s_add_u32 s{sLD}, s{sLD}, s{t3}")
    a.e(f"s_add_u32 m0, s{sLD}, {15*2*KVT}")
    a.e(f"s_add_u32 s{t2}, s{sOFF}, {15*2*KVT + 1280}")
    a.e(f"buffer_load_dwordx4 v{vL16}, {sr(sKV,4)}, s{t2} offen{SC} lds")
    a.e(f"s_cmp_eq_u32 s{t3}, 0")
    a.e(f"s_cselect_b32 exec_hi, 0xff, 0")
    a.e(f"s_cselect_b32 exec_lo, -1, 1")
    a.e(f"s_cselect_b32 s{sBM}, 2048, 0")
    a.e(f"s_add_u32 s{t2}, s{t2}, s{sBM}")
    a.e(f"s_add_u32 s{sBM}, s{sBM}, s{sLD}")
    a.e(f"s_add_u32 m0, s{sBM}, {15*2*KVT}")
    a.e("s_nop 0")
    a.e(f"buffer_load_dwordx4 v{vL16}, {sr(sKV,4)}, s{t2} offen{SC} lds")
    a.e("s_mov_b64 exec, -1")
    NPRE = int(os.environ.get("NPRE", "6"))
    NMID = int(os.environ.get("NMID", "10"))
    kvdma(NPRE)
    a.e(f"s_lshl_b32 s{t0}, s{t0}, 2")
    a.e(f"s_and_b32 s{t2}, s{t1}, 3")
    a.e(f"s_add_u32 s{sRB}, s{t0}, s{t2}")
    a.e(f"s_lshr_b32 s{sCB}, s{t1}, 2")
    srd_off(a, sA, "s4", "s5", AB_OFF + 80 * 32768, AB_SIZE - 80 * 32768)
    srd_off(a, sWT, "s4", "s5", WT_OFF + 80 * 10240, WT_SIZE - 80 * 10240)
    srd(a, sXX, "s6", "s7", 2048 * 640 * 2)
    srd(a, sB2, "s8", "s9", 640 * 2)
    a.e(f"v_and_b32 v{vT}, 15, v{vLANE}")
    a.e(f"v_lshrrev_b32 v{vT+1}, 4, v{vLANE}")
    a.e(f"s_lshl_b32 s{t0}, s{sRB}, 6")
    a.e(f"v_add_u32 v{vT+2}, s{t0}, v{vT}")
    a.e(f"v_lshlrev_b32 v{vOA}, 4, v{vT+2}")
    a.e(f"v_lshl_add_u32 v{vOA}, v{vT+1}, 15, v{vOA}")
    a.e(f"s_mul_i32 s{t1}, s{sCB}, 80")
    a.e(f"v_add_u32 v{vT+3}, s{t1}, v{vT}")
    a.e(f"v_lshlrev_b32 v{vOW}, 4, v{vT+3}")
    a.e(f"v_mul_u32_u24 v{vT+3}, 10240, v{vT+1}")
    a.e(f"v_add_u32 v{vOW}, v{vOW}, v{vT+3}")
    a.e(f"s_lshl_b32 s{sOA}, s{sW}, 17")
    a.e(f"s_mul_i32 s{sOW}, s{sW}, 40960")
    a.e(f"v_lshlrev_b32 v{vBO}, 3, v{vT+1}")
    a.e(f"s_lshl_b32 s{t2}, s{t1}, 1")
    a.e(f"v_add_u32 v{vBO}, s{t2}, v{vBO}")
    a.e(f"s_lshl_b32 s{t2}, s{sW}, 4")
    a.e(f"v_add_u32 v{vT+2}, s{t2}, v{vT+2}")
    a.e(f"v_mul_u32_u24 v{vXO}, 1280, v{vT+2}")
    a.e(f"v_add_u32 v{vXO}, v{vXO}, v{vBO}")
    a.e(f"s_lshl_b32 s{t0}, s{sRB}, 3")
    a.e(f"s_add_u32 s{t0}, s{t0}, s{sCB}")
    a.e(f"s_mul_i32 s{t0}, s{t0}, 20480")
    a.e(f"s_mul_i32 s{t2}, s{sW}, 5120")
    a.e(f"s_add_u32 s{t0}, s{t0}, s{t2}")
    a.e(f"v_add_u32 v{vYO}, s{t0}, v{vL16}")
    for i in range(80):
        a.e(f"v_mov_b32 v{ACC+i}, 0")
    a.e(f"s_mov_b32 s{sIT}, 0")
    a.e(f"s_mov_b32 s{sBM}, {hx(0 if 'B' in X2 else (1 << 1))}")
    a.e(f"v_mov_b32 v{vT}, 0")
    a.e(f"s_waitcnt vmcnt({NPRE})")
    a.e("s_barrier")
    stamp(a, 1)
    kvdma(NMID)
    a.e(f"s_waitcnt vmcnt({NPRE + NMID - 6})")
    a.e("s_barrier")
    kvdma(38 - NPRE - NMID)
    a.e(f"s_lshr_b32 s{t3}, s{sW}, 1")
    a.e(f"s_cmp_eq_u32 s{t3}, 0")
    a.e(f"s_cselect_b32 exec_hi, 0xffffff, 0")
    a.e(f"s_cselect_b32 exec_lo, -1, 1")
    a.e(f"s_cselect_b32 s{t3}, 0, 2048")
    a.e(f"s_sub_u32 s{sLD}, s{sLD}, s{t3}")
    a.e(f"s_sub_u32 s{sOFF}, s{sOFF}, s{t3}")
    kvdma(1)
    a.e("s_mov_b64 exec, -1")

    def loads(s_):
        r = [f"buffer_load_dwordx4 {vr(fA(s_,mt),4)}, v{vOA}, {sr(sA,4)}, s{sOA} offen offset:{256*mt}{SC}" for mt in range(4)]
        for t in range(5):
            r.append(f"buffer_load_dwordx4 {vr(fW(s_,t),4)}, v{vOW}, {sr(sWT,4)}, s{sOW} offen offset:{256*t}{SC}")
        r.append(f"s_add_u32 s{sOA}, s{sOA}, {4*131072}")
        r.append(f"s_add_u32 s{sOW}, s{sOW}, {4*40960}")
        return r

    a.e("s_waitcnt vmcnt(29)")
    a.e("s_barrier")
    if ONE:
        srd_off(a, sFL, "s4", "s5", FL_OFF, FL_SIZE)
        a.e(f"v_min_u32 v{vT+1}, 13, v{vLANE}")
        a.e(f"v_lshlrev_b32 v{vT+1}, 2, v{vT+1}")
        a.e(f"s_lshr_b32 s{t2}, s{sRB}, 1")
        a.e(f"s_lshl_b32 s{t2}, s{t2}, 7")
        a.e(f"s_add_u32 s{t2}, s{t2}, {FH_REL}")
        a.e(f"v_add_u32 v{vT+1}, s{t2}, v{vT+1}")
        a.e("s_waitcnt vmcnt(0)")
        a.e("s_barrier")
        a.e("s_mov_b64 exec, 0xffff")
        gpoll("h", vT + 1, vT + 4)
        a.e("s_mov_b64 exec, -1")
        a.e(f"s_mov_b32 s{sIT}, 0")
        for s_ in range(2):
            for ins in loads(s_):
                a.e(ins)
    else:
        for s_ in range(2):
            for ins in loads(s_):
                a.e(ins)
        a.e("s_waitcnt vmcnt(18)")
        a.e("s_barrier")
    stamp(a, 2)
    a.e(f"s_setprio {3 if 'Z' in X2 else (1 if 'y' in X2 else 0)}")
    a.raw(".p2align 3")
    a.lab("K2_GL")
    for s_ in range(2):
        ld = loads(s_)
        a.e("s_waitcnt vmcnt(9)")
        for t in range(5):
            for mt in range(4):
                A_ = ACC + 20 * mt + 4 * t
                a.e(f"v_mfma_f32_16x16x32_bf16 {vr(A_,4)}, {vr(fW(s_,t),4)}, {vr(fA(s_,mt),4)}, {vr(A_,4)}")
                if t == 4:
                    a.e(ld[mt])
            a.e(ld[4 + t])
        a.e(ld[9]); a.e(ld[10])
    a.e(f"s_add_u32 s{sIT}, s{sIT}, 1")
    a.e(f"s_cmp_lt_u32 s{sIT}, 7")
    a.e("s_cbranch_scc1 K2_GL")
    stamp(a, 3)
    a.e("s_setprio 3")
    a.e("s_waitcnt vmcnt(0)")
    XR = 68
    for q in range(5):
        a.e(f"buffer_load_dwordx2 {vr(XR+2*q,2)}, v{vXO}, {sr(sXX,4)}, 0 offen offset:{32*q}")
        a.e(f"buffer_load_dwordx2 {vr(XR+10+2*q,2)}, v{vBO}, {sr(sB2,4)}, 0 offen offset:{32*q}")
    srd_off(a, sWT, "s4", "s5", WT_OFF, 80 * 10240)
    srd_off(a, sA, "s4", "s5", AB_OFF, 80 * 32768)
    srd(a, sY, "s60", "s61", 2048 * 640 * 2)
    srd_off(a, sFL, "s4", "s5", FL_OFF, FL_SIZE)
    a.e(f"s_mul_i32 s{sOW}, s{sW}, {5*40960}")
    a.e(f"s_lshr_b32 s{t0}, s{sW}, 1")
    a.e(f"s_mul_i32 s{t0}, s{t0}, {RG}")
    a.e(f"s_and_b32 s{t1}, s{sW}, 1")
    a.e(f"s_mul_i32 s{t1}, s{t1}, 25600")
    a.e(f"s_add_u32 s{t0}, s{t0}, s{t1}")
    if 'B' not in X2:
        a.e("s_barrier")
    for r in range(5):
        for q in range(5):
            a.e(f"s_add_u32 m0, s{t0}, {r*5120 + q*768}")
            a.e("s_nop 0")
            a.e(f"buffer_load_dwordx4 v{vOW}, {sr(sWT,4)}, s{sOW} offen offset:{256*q}{SC} lds")
        a.e(f"s_add_u32 s{sOW}, s{sOW}, 40960")
    a.e(f"s_lshl_b32 s{t2}, s{sW}, 8")
    a.e(f"v_add_u32 v{vOA}, s{t2}, v{vOA}")
    a.e(f"v_and_b32 v{vYO}, 0x7fff, v{vOA}")
    a.e(f"v_lshrrev_b32 v{vYO}, 1, v{vYO}")
    a.e(f"v_and_b32 v{vBO}, 0xffff8000, v{vOA}")
    a.e(f"v_add_u32 v{vYO}, v{vYO}, v{vBO}")
    a.e(f"v_add_u32 v{vBO}, 16384, v{vYO}")
    a.e(f"v_add_u32 v{vT+2}, {RG}, v{vL16}")
    a.e(f"v_mov_b32 v{vT+1}, 1")
    a.e(f"s_lshr_b32 s{t2}, s2, 5")
    a.e(f"s_lshl_b32 s{t2}, s{t2}, 5")
    a.e(f"s_add_u32 s{t2}, s{t2}, s{sH}")
    a.e(f"s_lshl_b32 s{t2}, s{t2}, 2")
    a.e(f"s_lshr_b32 s{t3}, s{sRB}, 2")
    a.e(f"s_lshl_b32 s{t3}, s{t3}, 7")
    a.e(f"v_lshlrev_b32 v{vT+4}, 2, v{vLANE}")
    a.e(f"v_add_u32 v{vT+4}, s{t3}, v{vT+4}")
    Y = 16
    for m in range(4):
        a.e(f"s_cmp_lg_u32 s{sW}, {m}")
        a.e(f"s_cbranch_scc1 K2_KP{m}")
        for i in range(20):
            a.e(f"v_mov_b32 v{Y+i}, v{ACC+20*m+i}")
        a.lab(f"K2_KP{m}")
    a.e("s_waitcnt vmcnt(25)")
    U = 36
    for q in range(5):
        for k, src in enumerate((XR + 2 * q, XR + 10 + 2 * q)):
            u = U + 4 * k
            a.e(f"v_lshlrev_b32 v{u}, 16, v{src}")
            a.e(f"v_and_b32 v{u+1}, 0xffff0000, v{src}")
            a.e(f"v_lshlrev_b32 v{u+2}, 16, v{src+1}")
            a.e(f"v_and_b32 v{u+3}, 0xffff0000, v{src+1}")
        for i in range(4):
            a.e(f"v_add_f32 v{Y+4*q+i}, v{Y+4*q+i}, v{U+i}")
        for i in range(4):
            a.e(f"v_add_f32 v{Y+4*q+i}, v{Y+4*q+i}, v{U+4+i}")
    a.e("s_barrier")
    a.e("s_waitcnt vmcnt(0)")
    a.e("s_barrier")
    dstamp(a, 6)
    stamp(a, 1)
    a.e(f"s_cmp_lg_u32 s{sW}, 0")
    a.e("s_cbranch_scc1 K2_NF")
    a.e("s_mov_b64 exec, 1")
    a.e(f"buffer_store_dword v{vT+1}, v{vT}, {sr(sFL,4)}, s{t2} offen sc1")
    a.e("s_mov_b64 exec, -1")
    a.lab("K2_NF")

    def slot_addr(sdst, s_slot):
        a.e(f"s_mul_i32 s{sdst}, s{s_slot}, 5120")
        a.e(f"s_cmp_ge_u32 s{s_slot}, 6")
        a.e(f"s_cselect_b32 s{s_slot}, {RG - 6*5120 + 51200}, 51200")
        a.e(f"s_add_u32 s{sdst}, s{sdst}, s{s_slot}")

    for m in range(4):
        a.e(f"s_cmp_eq_u32 s{sW}, {m}")
        a.e(f"s_cbranch_scc1 K2_SK{m}")
        a.e(f"s_cmp_gt_u32 s{sW}, {m}")
        a.e(f"s_cselect_b32 s{t1}, {3*m-1}, {3*m}")
        a.e(f"s_add_u32 s{t1}, s{t1}, s{sW}")
        slot_addr(t0, t1)
        a.e(f"v_add_u32 v{vT+3}, s{t0}, v{vL16}")
        for q in range(5):
            a.e(f"ds_write_b128 v{vT+3}, {vr(ACC+20*m+4*q,4)} offset:{1024*q}")
        a.lab(f"K2_SK{m}")
    a.e(f"s_mul_i32 s{t1}, s{sW}, 3")
    slot_addr(t0, t1)
    a.e(f"v_add_u32 v{vT+3}, s{t0}, v{vL16}")
    a.e("s_waitcnt lgkmcnt(0)")
    a.e("s_barrier")
    for p in range(3):
        for q in range(5):
            a.e(f"ds_read_b128 {vr(ACC+20*p+4*q,4)}, v{vT+3} offset:{5120*p+1024*q}")
    for p in range(3):
        a.e(f"s_waitcnt lgkmcnt({5*(2-p)})")
        for i in range(20):
            a.e(f"v_add_f32 v{Y+i}, v{Y+i}, v{ACC+20*p+i}")
    a.e(f"s_cmp_lg_u32 s{sW}, 0")
    a.e("s_cbranch_scc1 K2_PW")
    a.e("s_mov_b32 exec_hi, 0")
    gpoll("o", vT + 4, vT + 3)
    a.e("s_mov_b64 exec, -1")
    a.lab("K2_PW")
    a.e("s_barrier")
    dstamp(a, 7)
    stamp(a, 2)
    YA = [Y + 4 * q for q in range(5)]
    FAr = [88 + 4 * i for i in range(20)]
    FBr = [[36 + 4 * t for t in range(5)], [56 + 4 * t for t in range(5)]]
    a.e(f"s_mov_b32 s{sOA}, 0")
    for ks in range(20):
        if ks < 16:
            a.e(f"buffer_load_dwordx4 {vr(FAr[ks],4)}, v{vOA}, {sr(sA,4)}, s{sOA} offen sc1")
        else:
            a.e(f"buffer_load_dwordx2 {vr(FAr[ks],2)}, v{vYO}, {sr(sA,4)}, s{sOA} offen sc1")
            a.e(f"buffer_load_dwordx2 {vr(FAr[ks]+2,2)}, v{vBO}, {sr(sA,4)}, s{sOA} offen sc1")
        a.e(f"s_add_u32 s{sOA}, s{sOA}, 131072")

    def rdB(ks):
        base, off = (vL16, ks * 5120) if ks < 10 else (vT + 2, (ks - 10) * 5120)
        return [f"ds_read_b128 {vr(FBr[ks&1][t],4)}, v{base} offset:{off+1024*t}" for t in range(5)]

    for ins in rdB(0):
        a.e(ins)
    for ks in range(20):
        if ks < 19:
            for ins in rdB(ks + 1):
                a.e(ins)
        a.e(f"s_waitcnt vmcnt({23-ks if ks < 16 else 2*(19-ks)}) lgkmcnt({5 if ks < 19 else 0})")
        for t in range(5):
            a.e(f"v_mfma_f32_16x16x32_bf16 {vr(YA[t],4)}, {vr(FBr[ks&1][t],4)}, {vr(FAr[ks],4)}, {vr(YA[t],4)}")
    a.e("s_nop 7")
    for t in range(5):
        A_ = YA[t]
        a.e(f"v_cvt_pk_bf16_f32 v{A_}, v{A_}, v{A_+1}")
        a.e(f"v_cvt_pk_bf16_f32 v{A_+1}, v{A_+2}, v{A_+3}")
        a.e(f"buffer_store_dwordx2 {vr(A_,2)}, v{vXO}, {sr(sY,4)}, 0 offen offset:{32*t}")
    dstamp(a, 8)
    k2flush()
    a.e("s_endpgm")

    a.lab("K2_ATT")
    vKa0, vKb0, vV0 = 52, 53, 54
    srd(a, sWS, "s4", "s5", WS_END)
    if "C" in X2:
        NPF = int(os.environ.get("NPF", "8"))
        a.e(f"s_cmp_ge_u32 s2, {NPF}")
        a.e("s_cbranch_scc1 K2_NOCP")
        a.e(f"s_cmp_ge_u32 s{sW}, 6")
        a.e("s_cbranch_scc1 K2_NOCP")
        a.e(f"s_and_b32 s{t0}, s{sW}, 1")
        code_prefetch(a, "k2", "k2_attn_kernel", "CODE_END", 36, t0, vLANE, vT, 60)
        a.lab("K2_NOCP")
    a.e(f"s_lshr_b32 s{sG}, s{sW}, 3")
    a.e(f"s_lshr_b32 s{t1}, s{t1}, 2")
    a.e(f"s_lshl_b32 s{t1}, s{t1}, 3")
    a.e(f"s_and_b32 s{t2}, s{sW}, 3")
    a.e(f"s_lshl_b32 s{t2}, s{t2}, 1")
    a.e(f"s_add_u32 s{sQT}, s{t1}, s{t2}")
    a.e(f"s_mul_i32 s{t0}, s{sH}, 81920")
    a.e(f"s_mul_i32 s{t1}, s{sQT}, 1280")
    a.e(f"s_add_u32 s{t0}, s{t0}, s{t1}")
    if QB_OFF:
        a.e(f"s_add_u32 s{t0}, s{t0}, {hx(QB_OFF)}")
    a.e(f"v_and_b32 v{vT}, 31, v{vLANE}")
    a.e(f"v_lshrrev_b32 v{vT+1}, 5, v{vLANE}")
    a.e(f"v_lshlrev_b32 v{vKb0}, 3, v{vT}")
    a.e(f"v_lshl_add_u32 v{vT+2}, v{vT+1}, 30, v{vKb0}")
    a.e(f"v_add_u32 v{vKb0}, 1024, v{vKb0}")
    a.e(f"v_lshlrev_b32 v{vKa0}, 3, v{vLANE}")
    a.e(f"v_min_u32 v{vT+3}, 20, v{vT}")
    a.e(f"v_bfe_u32 v{vT+4}, v{vT+3}, 1, 3")
    a.e(f"v_xor_b32 v{vT+4}, v{vT+4}, v{vT+1}")
    a.e(f"v_lshlrev_b32 v{vT+4}, 4, v{vT+4}")
    a.e(f"v_lshl_add_u32 v{vV0}, v{vT+3}, 7, v{vT+4}")
    vVV = [vV, 18, 19, 26]
    K2A, V0B, V1B, K2B = 56, 60, 132, 130
    for i in range(1, 4):
        a.e(f"v_xor_b32 v{vVV[i]}, {32*i}, v{vV0}")
    a.e(f"s_mul_i32 s{sOFF}, s{sG}, {32*KVT}")
    a.e(f"s_add_u32 s{sOFF}, s{sOFF}, {30*KVT}")
    a.e(f"s_add_u32 s{t1}, s{sOFF}, {koff(1)}")
    a.e(f"buffer_load_dwordx2 {vr(QA[0],2)}, v{vKa0}, {sr(sWS,4)}, s{t0} offen{SC}")
    a.e(f"buffer_load_dwordx2 {vr(QA[0]+2,2)}, v{vKa0}, {sr(sWS,4)}, s{t0} offen offset:512{SC}")
    a.e(f"buffer_load_dwordx2 {vr(QB[0],2)}, v{vT+2}, {sr(sWS,4)}, s{t0} offen offset:1024{SC}")
    a.e(f"buffer_load_dwordx2 {vr(KA,2)}, v{vKa0}, {sr(sKV,4)}, s{sOFF} offen{SC}")
    a.e(f"buffer_load_dwordx2 {vr(KA+2,2)}, v{vKa0}, {sr(sKV,4)}, s{sOFF} offen offset:512{SC}")
    a.e(f"buffer_load_dwordx2 {vr(KB,2)}, v{vKb0}, {sr(sKV,4)}, s{sOFF} offen{SC}")
    a.e(f"buffer_load_dwordx2 {vr(QA[1],2)}, v{vKa0}, {sr(sWS,4)}, s{t0} offen offset:1280{SC}")
    a.e(f"buffer_load_dwordx2 {vr(QA[1]+2,2)}, v{vKa0}, {sr(sWS,4)}, s{t0} offen offset:{1280+512}{SC}")
    a.e(f"buffer_load_dwordx2 {vr(QB[1],2)}, v{vT+2}, {sr(sWS,4)}, s{t0} offen offset:2304{SC}")
    a.e(f"buffer_load_dwordx2 {vr(K2A,2)}, v{vKa0}, {sr(sKV,4)}, s{t1} offen{SC}")
    a.e(f"buffer_load_dwordx2 {vr(K2A+2,2)}, v{vKa0}, {sr(sKV,4)}, s{t1} offen offset:512{SC}")
    a.e(f"buffer_load_dwordx2 {vr(K2B,2)}, v{vKb0}, {sr(sKV,4)}, s{t1} offen{SC}")
    a.e(f"s_mul_i32 s{t1}, s{sG}, {RG}")
    a.e(f"v_add_u32 v{vKa}, s{t1}, v{vKa0}")
    a.e(f"v_add_u32 v{vKb}, s{t1}, v{vKb0}")
    a.e(f"v_add_u32 v{vV}, s{t1}, v{vV0}")
    for i in range(1, 4):
        a.e(f"v_add_u32 v{vVV[i]}, s{t1}, v{vVV[i]}")
    for i in range(4):
        a.e(f"v_add_u32 v{vT+i}, {15*2*KVT}, v{vVV[i]}")
    for i in range(32):
        a.e(f"v_mov_b32 v{O[0]+i}, 0")
    a.e(f"s_mov_b32 s{sIT}, 0")
    a.e(f"s_mov_b32 s{sBM}, {hx((1 << 1) | (1 << 2) | (1 << 9))}")
    a.e("s_waitcnt vmcnt(6)")
    a.e(f"v_mfma_f32_32x32x16_bf16 {vr(S[0],16)}, {vr(KA,4)}, {vr(QA[0],4)}, 0")
    a.e(f"v_mfma_f32_32x32x8_bf16 {vr(S[0],16)}, {vr(KB,2)}, {vr(QB[0],2)}, {vr(S[0],16)}")
    a.e("s_waitcnt vmcnt(0)")
    a.e("s_nop 7")

    def rdKa(t):
        return [f"ds_read_b64 {vr(KA,2)}, v{vKa} offset:{koff(t)}",
                f"ds_read_b64 {vr(KA+2,2)}, v{vKa} offset:{koff(t)+512}"]

    def rdKb(t):
        return [f"ds_read_b64 {vr(KB,2)}, v{vKb} offset:{koff(t)}"]

    def rdV(m, t):
        return [f"ds_read_b128 {vr(V0 if m == 0 else V1,4)}, v{vVV[2*(t&1)+m]} offset:{voff(t)}"]

    def movs(dst, src, n):
        return [f"v_mov_b32 v{dst+i}, v{src+i}" for i in range(n)]

    def item(x, lt, mode=""):
        Sc, Sn = S[x], S[x ^ 1]

        def ex(lo):
            for i in range(lo, lo + 4):
                a.e(f"v_exp_f32 v{Sc+i}, v{Sc+i}")

        def cv(P, lo):
            a.e(f"v_cvt_pk_bf16_f32 v{P}, v{Sc+lo}, v{Sc+lo+1}")
            a.e(f"v_cvt_pk_bf16_f32 v{P+1}, v{Sc+lo+2}, v{Sc+lo+3}")

        def em(l):
            for ins in l:
                a.e(ins)

        if x == 1 and mode != "1":
            a.e(f"s_waitcnt lgkmcnt({1 if mode == '2' else 2})")
        a.e(f"v_mfma_f32_32x32x16_bf16 {vr(Sn,16)}, {vr(KA,4)}, {vr(QA[x^1],4)}, 0")
        if x == 0:
            em(movs(KA, K2A, 4) if mode == "1" else rdKa(lt + 1))
        ex(0)
        cv(P0, 0)
        if x == 1 and mode != "1":
            a.e(f"s_waitcnt lgkmcnt({0 if mode == '2' else 1})")
        a.e(f"v_mfma_f32_32x32x8_bf16 {vr(Sn,16)}, {vr(KB,2)}, {vr(QB[x^1],2)}, {vr(Sn,16)}")
        if x == 0:
            em(movs(KB, K2B, 2) if mode == "1" else rdKb(lt + 1))
        ex(8)
        cv(P0 + 2, 8)
        if mode == "1" and x == 0:
            a.e("s_barrier")
            stamp(a, 1)
            for i, dst in enumerate((V0, V1, V0B, V1B)):
                a.e(f"ds_read_b128 {vr(dst,4)}, v{vT+i}")
        if not (mode == "1" and x == 0):
            if x == 1 and mode == "":
                a.e("s_waitcnt lgkmcnt(0)")
            a.e(f"v_mfma_f32_32x32x16_bf16 {vr(O[x^1],16)}, {vr(V1,4)}, {vr(P1,4)}, {vr(O[x^1],16)}")
            if x == 0:
                em(movs(V1, V1B, 4) if mode == "2" else rdV(1, lt))
        ex(4)
        cv(P1, 4)
        if x == 0 and mode == "":
            a.e("s_waitcnt lgkmcnt(4)")
        if x == 0 and mode == "1":
            a.e("s_waitcnt lgkmcnt(0)")
        a.e(f"v_mfma_f32_32x32x16_bf16 {vr(O[x],16)}, {vr(V0,4)}, {vr(P0,4)}, {vr(O[x],16)}")
        if x == 1:
            em(movs(V0, V0B, 4) if mode == "1" else rdV(0, lt + 1))
        ex(12)
        cv(P1 + 2, 12)

    BUNCH = False
    a.e("s_setprio 2")
    item(0, -2, "1")
    item(1, -2, "1")
    a.e("s_barrier")
    if ONE and HSM == "2":
        a.e("s_cmp_eq_u32 s72, 0")
        a.e("s_cbranch_scc1 K2_NOHS")
        for p in range(2):
            for mt in range(4):
                src = (152 if p == 0 else 136) + 4 * mt
                a.e(f"buffer_store_dwordx4 {vr(src,4)}, v{128+p}, {sr(sWS,4)}, 0 offen offset:{256*mt} sc1")
        a.lab("K2_NOHS")
    item(0, -1, "2")
    item(1, -1, "2")
    a.raw(".p2align 6")
    a.lab("K2_LOOP")
    NT = 6
    for t in range(NT):
        if t % 3 == 0:
            k = t // 3
            a.e(f"s_bitcmp1_b32 s{sBM}, s{sIT}")
            a.e(f"s_cbranch_scc1 K2_BAR{k}")
            a.lab(f"K2_BODY{k}")
            a.e(f"s_add_u32 s{sIT}, s{sIT}, 1")
        for x in range(2):
            a.e(f"s_setprio {2 - x}")
            item(x, t)
    a.e(f"v_add_u32 v{vKa}, {KVT*NT}, v{vKa}")
    a.e(f"v_add_u32 v{vKb}, {KVT*NT}, v{vKb}")
    for i in range(4):
        a.e(f"v_add_u32 v{vVV[i]}, {KVT*NT}, v{vVV[i]}")
    a.e(f"s_cmp_lt_u32 s{sIT}, 10")
    a.e("s_cbranch_scc1 K2_LOOP")
    stamp(a, 3)
    a.e("s_nop 1")
    if BUNCH:
        a.e(f"v_mfma_f32_32x32x16_bf16 {vr(O[1],16)}, {vr(V0,4)}, {vr(PP[1],4)}, {vr(O[1],16)}")
        a.e(f"v_mfma_f32_32x32x16_bf16 {vr(O[1],16)}, {vr(V1,4)}, {vr(PP[1]+4,4)}, {vr(O[1],16)}")
    else:
        a.e(f"v_mfma_f32_32x32x16_bf16 {vr(O[1],16)}, {vr(V1,4)}, {vr(P1,4)}, {vr(O[1],16)}")
    a.e(f"s_and_b32 s{t2}, s{sW}, 3")
    a.e(f"s_lshl_b32 s{t2}, s{t2}, 12")
    a.e(f"s_add_u32 s{t2}, s{t2}, 51200")
    a.e(f"s_mul_i32 s{t0}, s{sG}, {RG}")
    a.e(f"s_add_u32 s{t0}, s{t0}, s{t2}")
    a.e(f"s_xor_b32 s{t1}, s{sG}, 1")
    a.e(f"s_mul_i32 s{t1}, s{t1}, {RG}")
    a.e(f"s_add_u32 s{t1}, s{t1}, s{t2}")
    a.e(f"v_add_u32 v{vT}, s{t0}, v{vL16}")
    a.e(f"v_add_u32 v{vT+1}, s{t1}, v{vL16}")
    a.e(f"s_add_u32 s{sQT}, s{sQT}, s{sG}")
    a.e(f"s_cmp_eq_u32 s{sG}, 1")
    a.e("s_cbranch_scc1 K2_X1")
    a.e("s_nop 3")
    for q in range(4):
        a.e(f"ds_write_b128 v{vT}, {vr(O[1]+4*q,4)} offset:{1024*q}")
    a.e("s_branch K2_X2")
    a.lab("K2_X1")
    for q in range(4):
        a.e(f"ds_write_b128 v{vT}, {vr(O[0]+4*q,4)} offset:{1024*q}")
    a.e("s_nop 1")
    for i in range(16):
        a.e(f"v_mov_b32 v{O[0]+i}, v{O[1]+i}")
    for i in range(4):
        a.e(f"v_mov_b32 v{QA[0]+i}, v{QA[1]+i}")
    for i in range(2):
        a.e(f"v_mov_b32 v{QB[0]+i}, v{QB[1]+i}")
    a.lab("K2_X2")
    OO = O[0]
    sS0, sS1 = 34, 35
    a.e(f"s_lshl_b32 s{t0}, s{sH}, 16")
    a.e(f"s_add_u32 s{sS0}, s{t0}, {hx(AB_OFF)}")
    a.e(f"s_lshl_b32 s{t0}, s{sH}, 14")
    a.e(f"s_add_u32 s{sS1}, s{t0}, {hx(AB_OFF + 64*32768)}")
    a.e(f"s_lshl_b32 s{t3}, s{sQT}, 9")
    vSA0, vSA1 = 56, 57
    a.e(f"v_and_b32 v{vT+2}, 31, v{vLANE}")
    a.e(f"v_lshlrev_b32 v{vT+2}, 4, v{vT+2}")
    a.e(f"v_add_u32 v{vT+2}, s{t3}, v{vT+2}")
    a.e(f"v_lshrrev_b32 v{vT+3}, 5, v{vLANE}")
    a.e(f"v_lshl_add_u32 v{vSA0}, v{vT+3}, 15, v{vT+2}")
    a.e(f"v_lshrrev_b32 v{vT+2}, 1, v{vT+2}")
    a.e(f"v_lshl_add_u32 v{vSA1}, v{vT+3}, 30, v{vT+2}")
    a.e("s_waitcnt lgkmcnt(0)")
    a.e("s_barrier")
    for q in range(4):
        a.e(f"ds_read_b128 {vr(S[0]+4*q,4)}, v{vT+1} offset:{1024*q}")
    a.e(f"v_mov_b32 v{vT+3}, {hx(f32(2.0**-60))}")
    a.e(f"v_mov_b32 v{vT+4}, {hx(f32(2.0**100))}")
    a.e(f"v_mov_b32 v{vT+5}, {hx(f32(2.0**120))}")
    a.e("s_waitcnt lgkmcnt(0)")
    for i in range(13):
        a.e(f"v_add_f32 v{OO+i}, v{OO+i}, v{S[0]+i}")
    a.e(f"v_max3_f32 v{vT+1}, abs(v{OO}), abs(v{OO+1}), abs(v{OO+2})")
    for i in range(3, 11, 2):
        a.e(f"v_max3_f32 v{vT+1}, abs(v{OO+i}), abs(v{OO+i+1}), v{vT+1}")
    a.e(f"v_max_f32 v{vT+1}, abs(v{OO+11}), v{vT+1}")
    a.e(f"v_add_f32 v{vT+2}, v{OO}, v{OO+1}")
    for i in range(2, 12):
        a.e(f"v_add_f32 v{vT+2}, v{vT+2}, v{OO+i}")
    a.e(f"v_cmp_gt_f32 {sr(t0,2)}, v{OO+12}, v{vT+3}")
    a.e(f"v_cmp_lt_f32 {sr(t2,2)}, v{OO+12}, v{vT+4}")
    a.e(f"v_cmp_lt_f32 vcc, v{vT+1}, v{vT+5}")
    a.e("s_nop 1")
    a.e(f"s_and_b64 {sr(t0,2)}, {sr(t0,2)}, {sr(t2,2)}")
    a.e(f"s_and_b64 {sr(t0,2)}, {sr(t0,2)}, vcc")
    a.e(f"v_cmp_o_f32 vcc, v{vT+2}, v{vT+2}")
    a.e("s_nop 1")
    a.e(f"s_and_b64 {sr(t0,2)}, {sr(t0,2)}, vcc")
    a.e(f"s_cmp_eq_u64 {sr(t0,2)}, -1")
    if 'B' not in X2:
        a.e("s_cbranch_scc0 K2_SLOW")
    a.lab("K2_FIN")
    a.e(f"v_rcp_f32 v{vT}, v{OO+12}")
    a.e("s_nop 0")
    for i in range(12):
        a.e(f"v_mul_f32 v{OO+i}, v{OO+i}, v{vT}")
    for i in range(6):
        a.e(f"v_cvt_pk_bf16_f32 v{OO+i}, v{OO+2*i}, v{OO+2*i+1}")
    sc = " sc1" if FUSE else ""
    a.e(f"buffer_store_dwordx4 {vr(OO,4)}, v{vSA0}, {sr(sWS,4)}, s{sS0} offen{sc}")
    a.e(f"buffer_store_dwordx2 {vr(OO+4,2)}, v{vSA1}, {sr(sWS,4)}, s{sS1} offen{sc}")
    if FUSE:
        a.e("s_waitcnt vmcnt(0)")
        a.e("s_barrier")
    k2flush()
    a.lab("K2_END")
    a.e("s_endpgm")
    a.lab("K2_BAR1")
    a.e("s_barrier")
    stamp(a, 2)
    a.e("s_branch K2_BODY1")
    a.lab("K2_BAR0")
    a.e("s_waitcnt vmcnt(0)")
    a.e("s_barrier")
    stamp(a, 2)
    if ONE:
        a.e("s_cmp_eq_u32 s72, 0")
        a.e("s_cbranch_scc1 K2_BODY0")
        a.e(f"s_cmp_lg_u32 s{sW}, 8")
        a.e("s_cbranch_scc1 K2_BODY0")
        a.e("v_mov_b32 v128, 0")
        a.e("v_mov_b32 v129, 1")
        a.e("s_mov_b64 exec, 1")
        a.e(f"buffer_store_dword v129, v128, {sr(sWS,4)}, s72 offen sc1")
        a.e("s_mov_b64 exec, -1")
        a.e("s_mov_b32 s72, 0")
    a.e("s_branch K2_BODY0")
    a.lab("K2_SLOW")
    vM = 58
    Sc = S[0]
    for ps in range(2):
        if ps == 0:
            a.e(f"v_mov_b32 v{vM}, 0xff800000")
        else:
            for i in range(16):
                a.e(f"v_mov_b32 v{OO+i}, 0")
        a.e(f"s_mov_b32 s{sOFF}, 0")
        a.e(f"s_mov_b32 s{sIT}, 0")
        a.lab(f"K2_SL{ps}")
        a.e(f"s_bitcmp1_b32 s{sIT}, 0")
        a.e(f"s_cselect_b32 s{t0}, 1344, 0")
        a.e(f"s_cselect_b32 s{t1}, {1280-KVT}, 1280")
        a.e(f"s_cselect_b32 s{t2}, 64, 0")
        a.e(f"s_add_u32 s{t0}, s{t0}, s{sOFF}")
        a.e(f"s_add_u32 s{t1}, s{t1}, s{sOFF}")
        a.e(f"s_add_u32 s{sIT}, s{sIT}, 1")
        a.e(f"v_xor_b32 v{vT+1}, s{t2}, v{vV0}")
        a.e(f"v_xor_b32 v{vT+2}, 32, v{vT+1}")
        a.e(f"buffer_load_dwordx2 {vr(KA,2)}, v{vKa0}, {sr(sKV,4)}, s{t0} offen{SC}")
        a.e(f"buffer_load_dwordx2 {vr(KA+2,2)}, v{vKa0}, {sr(sKV,4)}, s{t0} offen offset:512{SC}")
        a.e(f"buffer_load_dwordx2 {vr(KB,2)}, v{vKb0}, {sr(sKV,4)}, s{t0} offen{SC}")
        if ps == 1:
            a.e(f"buffer_load_dwordx4 {vr(V0,4)}, v{vT+1}, {sr(sKV,4)}, s{t1} offen{SC}")
            a.e(f"buffer_load_dwordx4 {vr(V1,4)}, v{vT+2}, {sr(sKV,4)}, s{t1} offen{SC}")
        a.e("s_waitcnt vmcnt(0)")
        a.e(f"v_mfma_f32_32x32x16_bf16 {vr(Sc,16)}, {vr(KA,4)}, {vr(QA[0],4)}, 0")
        a.e(f"v_mfma_f32_32x32x8_bf16 {vr(Sc,16)}, {vr(KB,2)}, {vr(QB[0],2)}, {vr(Sc,16)}")
        a.e("s_nop 15")
        a.e("s_nop 3")
        if ps == 0:
            for i in range(0, 16, 2):
                a.e(f"v_max3_f32 v{vM}, v{Sc+i}, v{Sc+i+1}, v{vM}")
        else:
            for i in range(16):
                a.e(f"v_sub_f32 v{Sc+i}, v{Sc+i}, v{vM}")
            for i in range(16):
                a.e(f"v_exp_f32 v{Sc+i}, v{Sc+i}")
            a.e("s_nop 0")
            for i, g_ in enumerate((0, 2, 1, 3)):
                a.e(f"v_cvt_pk_bf16_f32 v{P0+2*i}, v{Sc+4*g_}, v{Sc+4*g_+1}")
                a.e(f"v_cvt_pk_bf16_f32 v{P0+2*i+1}, v{Sc+4*g_+2}, v{Sc+4*g_+3}")
            a.e("s_nop 1")
            a.e(f"v_mfma_f32_32x32x16_bf16 {vr(OO,16)}, {vr(V0,4)}, {vr(P0,4)}, {vr(OO,16)}")
            a.e(f"v_mfma_f32_32x32x16_bf16 {vr(OO,16)}, {vr(V1,4)}, {vr(P1,4)}, {vr(OO,16)}")
            a.e("s_nop 7")
        a.e(f"s_add_u32 s{sOFF}, s{sOFF}, {KVT}")
        a.e(f"s_cmp_lt_u32 s{sOFF}, {KVH}")
        a.e(f"s_cbranch_scc1 K2_SL{ps}")
        if ps == 0:
            a.e(f"v_mov_b32 v{vT+4}, v{vM}")
            a.e("s_nop 1")
            a.e(f"v_permlane32_swap_b32 v{vM}, v{vT+4}")
            a.e(f"v_max_f32 v{vM}, v{vM}, v{vT+4}")
    a.e("s_nop 15")
    a.e("s_nop 3")
    a.e("s_branch K2_FIN")
    return name, NV, 102 if (DIAG or DBG) else 80, (256, 768, K2_LDS)


K3_LDS = 102400


def gen_k3(a):
    name = "k3_out_kernel"
    kernel_header(a, name)
    sA, sWT, sY, sO = 12, 16, 20, 24
    sW, sRB, sCB, sOW, sM = 32, 33, 34, 35, 36
    t0, t1, t2, t3 = 38, 39, 40, 41
    vLANE, vOA, vOW, vYO, vOO, vRD = 1, 2, 3, 4, 5, 6
    vT = 8
    ACC = 12
    FB = 32
    FA = 72
    NV = 152
    k3flush = lambda: (stamp(a, 4), stamp_flush(a, 2, 8, sW, "s6", "s7", 8, 2))

    a.e("s_cmp_ge_u32 s2, 256")
    a.e("s_cbranch_scc1 K3_END")
    stamp(a, 0)
    a.e("s_load_dwordx2 s[4:5], s[0:1], 64")
    a.e("s_load_dwordx2 s[6:7], s[0:1], 80")
    a.e(f"v_and_b32 v{vLANE}, 63, v0")
    a.e(f"v_lshrrev_b32 v{vT}, 6, v0")
    a.e(f"s_and_b32 s{t0}, s2, 7")
    a.e(f"v_readfirstlane_b32 s{sW}, v{vT}")
    a.e(f"s_lshr_b32 s{t1}, s2, 3")
    a.e(f"s_lshl_b32 s{t0}, s{t0}, 2")
    a.e(f"s_and_b32 s{t2}, s{t1}, 3")
    a.e(f"s_add_u32 s{sRB}, s{t0}, s{t2}")
    a.e(f"s_lshr_b32 s{sCB}, s{t1}, 2")
    a.e(f"v_and_b32 v{vT}, 15, v{vLANE}")
    a.e(f"v_lshrrev_b32 v{vT+1}, 4, v{vLANE}")
    a.e(f"s_cmp_ge_u32 s{sW}, 4")
    a.e("s_cbranch_scc1 K3_COMP")
    a.e(f"s_mul_i32 s{t0}, s{sCB}, 80")
    a.e(f"v_add_u32 v{vOW}, s{t0}, v{vT}")
    a.e(f"v_lshlrev_b32 v{vOW}, 4, v{vOW}")
    a.e(f"v_mul_u32_u24 v{vT+2}, 10240, v{vT+1}")
    a.e(f"v_add_u32 v{vOW}, v{vOW}, v{vT+2}")
    a.e(f"s_mul_i32 s{sOW}, s{sW}, 40960")
    a.e(f"s_mul_i32 s{sM}, s{sW}, 5120")
    a.e("s_waitcnt lgkmcnt(0)")
    stamp(a, 5)
    srd_off(a, sWT, "s6", "s7", WT_OFF, 80 * 10240)
    for r in range(5):
        for q in range(5):
            a.e(f"s_add_u32 m0, s{sM}, {r*20480 + q*768}")
            a.e("s_nop 0")
            a.e(f"buffer_load_dwordx4 v{vOW}, {sr(sWT,4)}, s{sOW} offen offset:{256*q} lds")
        a.e(f"s_add_u32 s{sOW}, s{sOW}, {4*40960}")
        if r >= 2:
            a.e(f"s_waitcnt vmcnt(10)")
            a.e("s_barrier")
    a.e(f"s_waitcnt vmcnt(5)")
    a.e("s_barrier")
    a.e(f"s_waitcnt vmcnt(0)")
    a.e("s_barrier")
    if DIAG:
        stamp(a, 1); stamp(a, 2); stamp(a, 3)
        k3flush()
    a.e("s_endpgm")
    a.lab("K3_COMP")
    a.e(f"s_sub_u32 s{t3}, s{sW}, 4")
    a.e(f"s_lshl_b32 s{t0}, s{sRB}, 6")
    a.e(f"s_lshl_b32 s{t1}, s{t3}, 4")
    a.e(f"s_add_u32 s{t0}, s{t0}, s{t1}")
    a.e(f"v_add_u32 v{vT+2}, s{t0}, v{vT}")
    a.e(f"v_lshlrev_b32 v{vOA}, 4, v{vT+2}")
    a.e(f"v_lshl_add_u32 v{vOA}, v{vT+1}, 15, v{vOA}")
    a.e(f"s_lshl_b32 s{t0}, s{sRB}, 3")
    a.e(f"s_add_u32 s{t0}, s{t0}, s{sCB}")
    a.e(f"s_mul_i32 s{t0}, s{t0}, 20480")
    a.e(f"s_mul_i32 s{t1}, s{t3}, 5120")
    a.e(f"s_add_u32 s{t0}, s{t0}, s{t1}")
    a.e(f"v_lshlrev_b32 v{vRD}, 4, v{vLANE}")
    a.e(f"v_add_u32 v{vYO}, s{t0}, v{vRD}")
    a.e(f"s_mul_i32 s{t0}, s{sCB}, 160")
    a.e(f"v_mul_u32_u24 v{vOO}, 1280, v{vT+2}")
    a.e(f"v_lshl_add_u32 v{vOO}, v{vT+1}, 3, v{vOO}")
    a.e(f"v_add_u32 v{vOO}, s{t0}, v{vOO}")
    a.e("s_waitcnt lgkmcnt(0)")
    stamp(a, 5)
    srd_off(a, sA, "s6", "s7", AB_OFF, 80 * 32768)
    srd_off(a, sY, "s6", "s7", Y_OFF, Y_SIZE)
    srd(a, sO, "s4", "s5", 2048 * 640 * 2)
    a.e(f"s_mov_b32 s{t0}, 0")
    a.e(f"s_movk_i32 s{t1}, 4096")
    def ldA(r):
        for ks in range(4 * r, 4 * r + 4):
            a.e(f"buffer_load_dwordx4 {vr(FA+4*ks,4)}, v{vOA}, {sr(sA,4)}, s{t0} offen")
            a.e(f"s_add_u32 s{t0}, s{t0}, {4*32768}")

    ldA(0)
    for t in range(5):
        so, off = ("0", 1024 * t) if t < 4 else (f"s{t1}", 0)
        a.e(f"buffer_load_dwordx4 {vr(ACC+4*t,4)}, v{vYO}, {sr(sY,4)}, {so} offen offset:{off}")
    ldA(1)
    ldA(2)
    a.e(f"v_add_u32 v{vT}, 51200, v{vRD}")

    def rdB(ks):
        base, off = (vRD, ks * 5120) if ks < 10 else (vT, (ks - 10) * 5120)
        return [f"ds_read_b128 {vr(FB+20*(ks&1)+4*t,4)}, v{base} offset:{off+1024*t}" for t in range(5)]

    for r in range(5):
        a.e("s_barrier")
        if r == 0:
            stamp(a, 1)
        for ins in rdB(4 * r):
            a.e(ins)
        if r < 2:
            ldA(r + 3)
        a.e(f"s_waitcnt vmcnt({[12, 12, 8, 4, 0][r]})")
        for k in range(4):
            ks = 4 * r + k
            if k < 3:
                for ins in rdB(ks + 1):
                    a.e(ins)
                a.e("s_waitcnt lgkmcnt(5)")
            else:
                a.e("s_waitcnt lgkmcnt(0)")
            for t in range(5):
                a.e(f"v_mfma_f32_16x16x32_bf16 {vr(ACC+4*t,4)}, {vr(FB+20*(ks&1)+4*t,4)}, {vr(FA+4*ks,4)}, {vr(ACC+4*t,4)}")
    stamp(a, 2)
    stamp(a, 3)
    a.e("s_nop 7")
    for t in range(5):
        A = ACC + 4 * t
        a.e(f"v_cvt_pk_bf16_f32 v{A}, v{A}, v{A+1}")
        a.e(f"v_cvt_pk_bf16_f32 v{A+1}, v{A+2}, v{A+3}")
        a.e(f"buffer_store_dwordx2 {vr(A,2)}, v{vOO}, {sr(sO,4)}, 0 offen offset:{32*t}")
    k3flush()
    a.lab("K3_END")
    a.e("s_endpgm")
    return name, NV, 102 if DIAG else 48, (256, 512, K3_LDS)


HEADER = """; Kernarg layout for this problem (88 bytes, ptrs only, base s[0:1]):
"""


def main(out_path):
    a = Asm()
    ks = []
    gens = (gen_k1, gen_k2, gen_k3) if "u" in os.environ.get("K2X", "") else (gen_k1, gen_k2)
    for g in gens:
        ks.append(g(a))
    s = HEADER
    if ONE:
        ks = [(ks[0][0], 168, 102 if (DIAG or DBG) else 80, (256, 768, K2_LDS))]
        if os.environ.get("LIST"):
            s += f"; @launch kernel={ks[0][0]} grid=(256,1,1) block=(768,1,1) lds={K2_LDS}\n"
        else:
            s += f"; @launch grid=(256,1,1) block=(768,1,1) lds={K2_LDS}\n"
    else:
        for name, nv, ns, (gx, bx, lds) in ks:
            s += f"; @launch kernel={name} grid=({gx},1,1) block=({bx},1,1) lds={lds}\n"
    s += '.amdgcn_target "amdgcn-amd-amdhsa--gfx950"\n.text\n'
    s += a.text()
    s += "CODE_END:\n    s_endpgm\n"
    s += '.section .rodata,"a"\n'
    for name, nv, ns, _ in ks:
        s += kd(name, nv, ns)
    open(out_path, "w").write(s)


if __name__ == "__main__":
    main(sys.argv[1] if len(sys.argv) > 1 else f"cdna_kernels/{NAME}.s")
```

```python
import struct, math, sys

NAME = "parallel_sum__mha_block__dense_activation_gelu__prompt"

QB_OFF = 0
KV_OFF = 0x280000
KVT = 2624
KVH = 64 * KVT
VP = 336


def koff(t):
    return KVT * t + (1344 if t & 1 else 0)


def voff(t):
    return 2 * KVT * (t >> 1) + 1280


AB_OFF = 0x7A0000
WT_OFF = 0x10E0000
assert KV_OFF + 32 * KVH == AB_OFF
FL_OFF = WT_OFF + 296 * 10240
FQ_REL = 1024
FH_REL = 9216
FL_SIZE = 12288
WS_END = FL_OFF + FL_SIZE
assert FL_OFF % 128 == 0
AB_SIZE = 296 * 32768
WT_SIZE = 296 * 10240
assert AB_OFF + AB_SIZE == WT_OFF


def f32(x):
    return struct.unpack("<I", struct.pack("<f", x))[0]


def hx(x):
    return "0x%08x" % (x & 0xFFFFFFFF)


class Asm:
    def __init__(self):
        self.lines = []

    def e(self, s):
        if s.startswith("s_cselect_b32"):
            ops = [x.strip() for x in s[len("s_cselect_b32"):].split(",")]

            def is_lit(x):
                try:
                    v = int(x, 0)
                except ValueError:
                    return False
                return not (-16 <= v <= 64)
            if is_lit(ops[1]) and is_lit(ops[2]):
                self.lines.append(f"    s_mov_b32 {ops[0]}, {ops[2]}")
                s = f"s_cselect_b32 {ops[0]}, {ops[1]}, {ops[0]}"
        self.lines.append("    " + s)

    def lab(self, s):
        self.lines.append(s + ":")

    def c(self, s):
        self.lines.append("    ; " + s)

    def raw(self, s):
        self.lines.append(s)

    def text(self):
        return "\n".join(self.lines) + "\n"


def vr(a, n):
    return f"v[{a}:{a+n-1}]" if n > 1 else f"v{a}"


def sr(a, n):
    return f"s[{a}:{a+n-1}]" if n > 1 else f"s{a}"


def kernel_header(a, name):
    a.raw(".p2align 8")
    a.raw(f".globl {name}")
    a.raw(f".type {name},@function")
    a.lab(name)


def kd(name, nv, ns):
    acc = (nv + 3) // 4 * 4
    return f""".p2align 6
.amdhsa_kernel {name}
  .amdhsa_next_free_vgpr {nv}
  .amdhsa_next_free_sgpr {ns}
  .amdhsa_accum_offset {acc}
  .amdhsa_group_segment_fixed_size 0
  .amdhsa_kernarg_size 88
  .amdhsa_user_sgpr_count 2
  .amdhsa_user_sgpr_kernarg_segment_ptr 1
  .amdhsa_system_sgpr_workgroup_id_x 1
.end_amdhsa_kernel
"""


def srd(a, d, lo, hi, size):
    a.e(f"s_mov_b32 s{d}, {lo}")
    a.e(f"s_mov_b32 s{d+1}, {hi}")
    a.e(f"s_mov_b32 s{d+2}, {hx(size)}")
    a.e(f"s_mov_b32 s{d+3}, 0x00020000")


def srd_off(a, d, lo, hi, off, size):
    a.e(f"s_add_u32 s{d}, {lo}, {hx(off)}")
    a.e(f"s_addc_u32 s{d+1}, {hi}, 0")
    a.e(f"s_mov_b32 s{d+2}, {hx(size)}")
    a.e(f"s_mov_b32 s{d+3}, 0x00020000")


def round_bf16_inplace(a, v, vtmp=None):
    a.e(f"v_cvt_pk_bf16_f32 v{v}, v{v}, v{v}")
    a.e(f"v_lshlrev_b32 v{v}, 16, v{v}")


OOB = 0x40000000


def code_prefetch(a, tag, start, end, sp, s_chunk, vlane, vtmp, vdst):
    a.e(f"s_getpc_b64 s[{sp}:{sp+1}]")
    a.lab(f"PCH_{tag}")
    a.e(f"s_sub_u32 s{sp}, s{sp}, PCH_{tag}-{start}")
    a.e(f"s_subb_u32 s{sp+1}, s{sp+1}, 0")
    a.e(f"s_lshl_b32 s{s_chunk}, s{s_chunk}, 13")
    a.e(f"v_lshlrev_b32 v{vtmp}, 7, v{vlane}")
    a.e(f"v_add_u32 v{vtmp}, s{s_chunk}, v{vtmp}")
    a.e(f"v_cmp_gt_u32 vcc, {end}-{start}, v{vtmp}")
    a.e(f"s_and_saveexec_b64 s[{sp+2}:{sp+3}], vcc")
    a.e(f"s_cbranch_execz PCS_{tag}")
    a.e(f"global_load_dword v{vdst}, v{vtmp}, s[{sp}:{sp+1}]")
    a.lab(f"PCS_{tag}")
    a.e(f"s_mov_b64 exec, s[{sp+2}:{sp+3}]")
import os
DIAG = int(os.environ.get("DIAG", "0"))
ONE = int(os.environ.get("ONE", "1"))
SC = " sc1" if ONE else ""
WB = os.environ.get("WB", "")
SCQ = "" if "Q" in WB else SC
SCF = "" if "F" in WB else SC
SCT = "" if "T" in WB else SC
HDUMP = 114688
HSM = os.environ.get("HSM", "3")
K1_SYN = 153600
POLL_MAX = 1 << 21
DIAG_OFF = 0x2000000
SD = 84


DBG = int(os.environ.get("DBG", "0"))


_dn = [0]


def dstamp(a, k, inv=False):
    if not DBG or inv:
        return
    _dn[0] += 1
    n = _dn[0]
    a.e("v_readfirstlane_b32 s86, v0")
    a.e("s_cmp_lg_u32 s86, 0")
    a.e(f"s_cbranch_scc1 DS_{n}")
    a.e("s_cmp_eq_u32 s2, 17")
    a.e("s_cselect_b32 s87, 0, 28")
    a.e(f"s_cbranch_scc1 DT_{n}")
    a.e("s_cmp_lg_u32 s2, 250")
    a.e(f"s_cbranch_scc1 DS_{n}")
    a.lab(f"DT_{n}")
    a.e("s_load_dwordx2 s[80:81], s[0:1], 72")
    a.e("s_memrealtime s[84:85]")
    a.e("s_waitcnt lgkmcnt(0)")
    a.e("s_mov_b32 s82, 256")
    a.e("s_mov_b32 s83, 0x00020000")
    a.e("v_mov_b32 v14, s84")
    a.e("v_mov_b32 v15, 0")
    a.e(f"buffer_store_dword v14, v15, s[80:83], s87 offen offset:{4*n}")
    a.lab(f"DS_{n}")


def stamp(a, i):
    if DIAG:
        a.e(f"s_memtime s[{SD+2*i}:{SD+2*i+1}]")
        if i == 0:
            a.e(f"s_memrealtime s[{SD+12}:{SD+13}]")
        if i == 4:
            a.e(f"s_memrealtime s[{SD+14}:{SD+15}]")


def stamp_flush(a, kidx, wpw, sW, ws_lo, ws_hi, n, vtmp):
    if not DIAG:
        return
    a.e("s_waitcnt lgkmcnt(0)")
    a.e(f"s_add_u32 s80, {ws_lo}, {hx(DIAG_OFF + kidx*4096*64)}")
    a.e(f"s_addc_u32 s81, {ws_hi}, 0")
    a.e(f"s_mov_b32 s82, {hx(4096*64)}")
    a.e("s_mov_b32 s83, 0x00020000")
    a.e(f"s_mul_i32 s100, s2, {wpw}")
    a.e(f"s_add_u32 s100, s100, s{sW}")
    a.e("s_lshl_b32 s100, s100, 6")
    a.e(f"v_mov_b32 v{vtmp}, 0")
    for i in range(n):
        a.e(f"v_mov_b32 v{vtmp+1}, s{SD+2*i}")
        a.e(f"buffer_store_dword v{vtmp+1}, v{vtmp}, s[80:83], s100 offen offset:{4*i}")

K1_BH = 8 * 1056
K1_SLOT = 16384 + 4 * K1_BH
K1_NS = 3
K1_SCR = K1_SLOT * K1_NS
K1_LDS = K1_SCR + 2048 + 256
QSCALE = math.log2(math.e) / math.sqrt(20.0)


def gen_k1(a):
    name = NAME + "_kernel" if ONE else "k1_gemm1_kernel"
    kernel_header(a, name)
    X = os.environ.get("K1X", "")
    sX, sB0, sB1, sWS, sT, sBI = 20, 24, 28, 32, 36, 40
    sW, sMH, sHALF, sRB, sCB, sNQ, sT0 = 44, 45, 46, 47, 48, 49, 50
    sOA, sOB0, sOB1 = 51, 52, 53
    sWA, sWB, sRD, sTS, sIT, sDA, sDB = 54, 55, 56, 57, 58, 59, 60
    t0, t1, t2, t3, t4, t5, t6, t7 = 62, 63, 64, 65, 66, 67, 68, 69
    sC1 = 70
    sTYP = 73
    sOA2, sOB0b, sOB1b = 76, 77, 78
    vLANE = 1
    vA0e, vA0o, vB0 = 2, 3, 4
    vAe, vAo, vB = 5, 6, 7
    vS = 8
    vSA = 12
    vONES = 20
    vCS = 24
    vU = 32
    FA = [40, 72]
    vT = 72
    ACC = 104
    NV = 168

    def acc(j, mt):
        return ACC + (j * 4 + mt) * 4

    def fa(s, mt):
        return FA[s] + mt * 4

    def fb(s, j):
        return FA[s] + 16 + j * 4

    def emit(lst):
        for ins in lst:
            a.e(ins)

    k1flush = lambda: (stamp(a, 4), stamp_flush(a, 0, 12, sW, "s18", "s19", 8, 2))

    def zpoll(tag, sD, vz, vd):
        srd(a, sD, "s10", "s11", 256)
        a.e(f"v_mov_b32 v{vz}, 0")
        a.e(f"s_mov_b32 s{t7}, 0")
        a.lab(f"ZP_{tag}")
        a.e(f"buffer_load_dword v{vd}, v{vz}, {sr(sD,4)}, 0 offen sc1")
        a.e(f"s_add_u32 s{t7}, s{t7}, 1")
        a.e("s_waitcnt vmcnt(0)")
        a.e(f"v_readfirstlane_b32 s{t6}, v{vd}")
        a.e(f"s_cmp_ge_u32 s{t7}, {POLL_MAX}")
        a.e(f"s_cbranch_scc1 ZD_{tag}")
        a.e(f"s_cmp_eq_u32 s{t6}, 0")
        a.e(f"s_cbranch_scc1 ZP_{tag}")
        a.lab(f"ZD_{tag}")

    def finish(kind):
        k1flush()
        if not ONE:
            a.e("s_endpgm")
            return
        if kind == "F":
            a.e("s_branch K1_SIGF")
        else:
            a.e("s_branch K1_SIGQ")

    def finalize(s1, s2, nm, rs):
        a.e(f"v_mul_f32 v{s1}, {hx(f32(1.0/640))}, v{s1}")
        a.e(f"v_mul_f32 v{s2}, {hx(f32(1.0/640))}, v{s2}")
        a.e(f"v_fma_f32 v{s2}, -v{s1}, v{s1}, v{s2}")
        a.e(f"v_max_f32 v{s2}, 0, v{s2}")
        round_bf16_inplace(a, s2)
        a.e(f"v_add_f32 v{s2}, {hx(f32(1e-5))}, v{s2}")
        round_bf16_inplace(a, s2)
        a.e(f"v_sqrt_f32 v{s2}, v{s2}")
        round_bf16_inplace(a, s1)
        round_bf16_inplace(a, s2)
        a.e(f"v_rcp_f32 v{rs}, v{s2}")
        a.e(f"v_sub_f32 v{nm}, 0, v{s1}")


    a.e("s_cmp_ge_u32 s2, 256")
    a.e("s_cbranch_scc1 K1_END")
    stamp(a, 0)
    a.e("s_load_dwordx4 s[4:7], s[0:1], 0")
    a.e("s_load_dwordx2 s[8:9], s[0:1], 16")
    a.e("s_load_dwordx4 s[12:15], s[0:1], 32")
    a.e("s_load_dwordx2 s[16:17], s[0:1], 48")
    a.e("s_load_dwordx2 s[18:19], s[0:1], 80")
    if ONE:
        a.e("s_load_dwordx2 s[10:11], s[0:1], 72")
        a.e("s_mov_b32 s72, 0")
        a.e(f"v_mov_b32 v128, {hx(OOB)}")
        a.e(f"v_mov_b32 v129, {hx(OOB)}")
    a.e(f"v_and_b32 v{vLANE}, 63, v0")
    a.e(f"v_lshrrev_b32 v{vT}, 6, v0")
    a.e(f"s_and_b32 s{t0}, s2, 7")
    a.e(f"v_readfirstlane_b32 s{sW}, v{vT}")
    a.e(f"s_lshr_b32 s{t1}, s2, 3")
    a.e(f"s_lshl_b32 s{sRB}, s{t0}, 1")
    a.e(f"s_add_u32 s{sRB}, s{sRB}, s{t1}")
    a.e(f"s_mov_b32 s{sCB}, 15")
    a.e(f"s_cmp_lt_u32 s{t1}, 2")
    a.e("s_cbranch_scc1 K1_TRANS")
    a.e(f"s_lshr_b32 s{t2}, s{t0}, 1")
    a.e(f"s_mul_i32 s{t2}, s{t2}, 30")
    a.e(f"s_add_u32 s{t2}, s{t2}, s{t1}")
    a.e(f"s_sub_u32 s{t2}, s{t2}, 2")
    a.e(f"s_lshr_b32 s{sCB}, s{t2}, 3")
    a.e(f"s_lshl_b32 s{t3}, s{sCB}, 2")
    a.e(f"s_lshr_b32 s{sCB}, s{sCB}, 2")
    a.e(f"s_mul_i32 s{sCB}, s{sCB}, 15")
    a.e(f"s_sub_u32 s{sCB}, s{t3}, s{sCB}")
    a.e(f"s_and_b32 s{t2}, s{t2}, 7")
    a.e(f"s_and_b32 s{t3}, s{t0}, 1")
    a.e(f"s_lshl_b32 s{t3}, s{t3}, 3")
    a.e(f"s_add_u32 s{sRB}, s{t2}, s{t3}")
    a.e(f"s_lshl_b32 s{sT0}, s{sCB}, 3")
    a.e(f"s_min_u32 s{sT0}, s{sT0}, 100")
    a.e(f"s_cmp_ge_u32 s{sW}, 4")
    a.e("s_cbranch_scc1 K1_COMP")
    dstamp(a, 1, True)
    dstamp(a, 2)
    lA = [2, 3]
    lQ = [4, 5]
    lF = [6, 7]
    lBI = 8
    a.e(f"s_lshl_b32 s{t0}, s{sRB}, 7")
    a.e(f"s_lshl_b32 s{t1}, s{sW}, 4")
    a.e(f"s_add_u32 s{t0}, s{t0}, s{t1}")
    a.e(f"v_lshrrev_b32 v{vT}, 3, v{vLANE}")
    a.e(f"v_add_u32 v{vT}, s{t0}, v{vT}")
    a.e(f"v_lshrrev_b32 v{vT+1}, 1, v{vT}")
    a.e(f"v_xor_b32 v{vT+1}, v{vT+1}, v{vLANE}")
    a.e(f"v_and_b32 v{vT+1}, 7, v{vT+1}")
    a.e(f"v_mul_u32_u24 v{vT}, 1280, v{vT}")
    a.e(f"v_lshl_add_u32 v{lA[0]}, v{vT+1}, 4, v{vT}")
    a.e(f"v_xor_b32 v{vT+1}, 4, v{vT+1}")
    a.e(f"v_lshl_add_u32 v{lA[1]}, v{vT+1}, 4, v{vT}")
    a.e(f"v_add_u32 v{lA[1]}, {8*1280}, v{lA[1]}")
    a.e(f"s_lshl_b32 s{sDA}, s{sW}, 11")
    a.e(f"s_and_b32 s{t0}, s{sW}, 1")
    a.e(f"s_lshl_b32 s{t0}, s{t0}, 1")
    a.e(f"s_lshr_b32 s{t1}, s{sW}, 1")
    a.e(f"s_lshl_b32 s{t1}, s{t1}, 3")
    a.e(f"s_or_b32 s{t0}, s{t0}, s{t1}")
    a.e(f"v_bfe_u32 v{vT}, v{vLANE}, 4, 1")
    a.e(f"v_lshlrev_b32 v{vT}, 2, v{vT}")
    a.e(f"v_lshrrev_b32 v{vT+1}, 5, v{vLANE}")
    a.e(f"v_lshl_or_b32 v{vT}, v{vT+1}, 4, v{vT}")
    a.e(f"v_or_b32 v{vT}, s{t0}, v{vT}")
    a.e(f"v_and_b32 v{vT+1}, 15, v{vLANE}")
    a.e(f"v_lshlrev_b32 v{vT+1}, 4, v{vT+1}")
    a.e(f"s_lshl_b32 s{t2}, s{sCB}, 8")
    a.e(f"s_lshl_b32 s{t3}, s{sT0}, 5")
    a.e(f"v_mul_u32_u24 v{lQ[0]}, 3840, v{vT}")
    a.e(f"v_add3_u32 v{lQ[0]}, v{lQ[0]}, v{vT+1}, s{t2}")
    a.e(f"v_add_u32 v{lQ[1]}, 3840, v{lQ[0]}")
    a.e(f"v_mul_u32_u24 v{lF[0]}, 3456, v{vT}")
    a.e(f"v_add3_u32 v{lF[0]}, v{lF[0]}, v{vT+1}, s{t3}")
    a.e(f"v_add_u32 v{lF[1]}, 3456, v{lF[0]}")
    a.e(f"s_mul_i32 s{sDB}, s{sW}, 2112")
    a.e(f"s_add_u32 s{sDB}, s{sDB}, 16384")
    ROT = "O" in X
    if ROT:
        RA, RB_ = int(os.environ.get("ROTA", "1")), int(os.environ.get("ROTB", "3"))
        a.e(f"s_and_b32 s{t0}, s{sRB}, 7")
        a.e(f"s_mul_i32 s{t0}, s{t0}, {RA}")
        a.e(f"s_min_u32 s{t1}, s{sCB}, 13")
        a.e(f"s_and_b32 s{t1}, s{t1}, 3")
        a.e(f"s_mul_i32 s{t1}, s{t1}, {RB_}")
        a.e(f"s_add_u32 s{t0}, s{t0}, s{t1}")
        a.e(f"s_mul_i32 s{t1}, s{t0}, 205")
        a.e(f"s_lshr_b32 s{t1}, s{t1}, 11")
        a.e(f"s_mul_i32 s{t1}, s{t1}, 10")
        a.e(f"s_sub_u32 s{t0}, s{t0}, s{t1}")
        a.e(f"s_lshl_b32 s{sOA}, s{t0}, 7")
        a.e(f"s_add_u32 s{sOA2}, s{sOA}, {64*1280}")
        a.e(f"s_mul_i32 s{sOB0}, s{t0}, {64*3840}")
        a.e(f"s_add_u32 s{sOB0b}, s{sOB0}, {32*3840}")
        a.e(f"s_mul_i32 s{sOB1}, s{t0}, {64*3456}")
        a.e(f"s_add_u32 s{sOB1b}, s{sOB1}, {32*3456}")
    else:
        a.e(f"s_mov_b32 s{sOA}, 0")
        a.e(f"s_mov_b32 s{sOA2}, {64*1280}")
        a.e(f"s_mov_b32 s{sOB0}, 0")
        a.e(f"s_mov_b32 s{sOB0b}, {32*3840}")
        a.e(f"s_mov_b32 s{sOB1}, 0")
        a.e(f"s_mov_b32 s{sOB1b}, {32*3456}")
    a.e(f"s_mov_b32 s{sWA}, s{sDA}")
    a.e(f"s_mov_b32 s{sWB}, s{sDB}")
    a.e("s_waitcnt lgkmcnt(0)")
    stamp(a, 5)
    srd(a, sX, "s4", "s5", 2048 * 640 * 2)
    srd(a, sB0, "s6", "s7", 640 * 1920 * 2)
    srd(a, sB1, "s12", "s13", 640 * 1728 * 2)

    lR0 = 10
    lR = 14
    lD = 20
    lS = 36
    lU = 40

    def stats_ops():
        va = []
        for r in range(16):
            src = lD + r
            lo, hi = lU + 2 * (r & 1), lU + 2 * (r & 1) + 1
            va.append(f"v_lshlrev_b32 v{lo}, 16, v{src}")
            va.append(f"v_and_b32 v{hi}, 0xffff0000, v{src}")
            va.append(f"v_add_f32 v{lS}, v{lS}, v{lo}")
            va.append(f"v_add_f32 v{lS+1}, v{lS+1}, v{hi}")
            va.append(f"v_fmac_f32 v{lS+2}, v{lo}, v{lo}")
            va.append(f"v_fmac_f32 v{lS+3}, v{hi}, v{hi}")
        return va

    def stats_reads():
        for i in range(4):
            a.e(f"v_add_u32 v{lR+i}, s{sRD}, v{lR0+i}")
        for i in range(4):
            a.e(f"ds_read_b128 {vr(lD+4*i,4)}, v{lR+i}")
        a.e(f"s_add_u32 s{sRD}, s{sRD}, {K1_SLOT}")
        a.e(f"s_cmp_eq_u32 s{sRD}, {K1_SCR}")
        a.e(f"s_cselect_b32 s{sRD}, 0, s{sRD}")

    def stage(with_stats=False, dma=True):
        spec = [(sWA, 0, lA, 1024, sX, sOA, 128),
                (sWA, 8192, lA, 1024, sX, sOA2, 128),
                (sWB, 0, lQ, 1056, sB0, sOB0, 64 * 3840),
                (sWB, 2 * K1_BH, lF, 1056, sB1, sOB1, 64 * 3456),
                (sWB, K1_BH, lQ, 1056, sB0, sOB0b, 64 * 3840),
                (sWB, 3 * K1_BH, lF, 1056, sB1, sOB1b, 64 * 3456)]
        va = stats_ops() if with_stats else []
        if with_stats:
            stats_reads()
        n = 0
        for (sD, dof, vO, d2, sR, sO, inc) in spec:
            for q in range(2):
                d = dof + q * d2
                if dma:
                    a.e(f"s_add_u32 m0, s{sD}, {d}" if d else f"s_mov_b32 m0, s{sD}")
                    a.e("s_nop 0")
                    a.e(f"buffer_load_dwordx4 v{vO[q]}, {sr(sR,4)}, s{sO} offen lds")
                n += 1
                if with_stats and n >= 2:
                    if n == 2:
                        a.e("s_waitcnt lgkmcnt(0)")
                    k = 9 if n < 12 else len(va)
                    for ins in va[:k]:
                        a.e(ins)
                    va = va[k:]
            if dma:
                a.e(f"s_add_u32 s{sO}, s{sO}, {inc}")
        if dma:
            a.e(f"s_add_u32 s{sWA}, s{sWA}, {K1_SLOT}")
            a.e(f"s_add_u32 s{sWB}, s{sWB}, {K1_SLOT}")
            a.e(f"s_cmp_ge_u32 s{sWA}, {K1_SCR}")
            a.e(f"s_cselect_b32 s{sWA}, s{sDA}, s{sWA}")
            a.e(f"s_cselect_b32 s{sWB}, s{sDB}, s{sWB}")
            if ROT:
                a.e(f"s_cmp_eq_u32 s{sOA}, 1280")
                a.e(f"s_cselect_b32 s{sOA}, 0, s{sOA}")
                a.e(f"s_cselect_b32 s{sOA2}, {64*1280}, s{sOA2}")
                a.e(f"s_cselect_b32 s{sOB0}, 0, s{sOB0}")
                a.e(f"s_cselect_b32 s{sOB0b}, {32*3840}, s{sOB0b}")
                a.e(f"s_cselect_b32 s{sOB1}, 0, s{sOB1}")
                a.e(f"s_cselect_b32 s{sOB1b}, {32*3456}, s{sOB1b}")

    stage()
    srd(a, sBI, "s14", "s15", 1728 * 2)
    a.e(f"v_lshlrev_b32 v{vT}, 2, v{vLANE}")
    a.e(f"buffer_load_dword v{lBI}, v{vT}, {sr(sBI,4)}, s{t3} offen")
    stage()
    S3 = "S" in X
    if S3:
        stage()
    a.e(f"v_and_b32 v{vT+1}, 31, v{vLANE}")
    a.e(f"v_lshrrev_b32 v{vT+2}, 5, v{vLANE}")
    a.e(f"v_lshlrev_b32 v{vT+2}, 2, v{vT+2}")
    a.e(f"v_bfe_u32 v{vT+3}, v{vLANE}, 1, 3")
    a.e(f"v_xor_b32 v{vT+2}, v{vT+2}, v{vT+3}")
    a.e(f"v_lshlrev_b32 v{vT+2}, 4, v{vT+2}")
    a.e(f"v_lshl_add_u32 v{vT+2}, v{vT+1}, 7, v{vT+2}")
    a.e(f"s_lshl_b32 s{t0}, s{sW}, 12")
    a.e(f"v_add_u32 v{lR0}, s{t0}, v{vT+2}")
    for i in range(1, 4):
        a.e(f"v_xor_b32 v{lR0+i}, {16*i}, v{lR0}")
    for i in range(4):
        a.e(f"v_mov_b32 v{lS+i}, 0")
    a.e(f"s_mov_b32 s{sRD}, 0")
    a.e(f"s_mov_b32 s{sIT}, 0")
    a.e(f"s_waitcnt vmcnt({24 if S3 else 12})")
    a.e(f"v_add_u32 v{vT}, {K1_SCR+2048}, v{vT}")
    a.e(f"ds_write_b32 v{vT}, v{lBI}")
    if ONE:
        a.e(f"v_mov_b32 v{vT+4}, {K1_SYN}")
        a.e(f"ds_write_b128 v{vT+4}, {vr(lS,4)}")
    a.e("s_barrier")
    stamp(a, 1)
    stage(True, not S3)
    a.lab("K1_LD")
    a.e("s_waitcnt vmcnt(12)")
    a.e("s_barrier")
    stage(True, True)
    a.e(f"s_add_u32 s{sIT}, s{sIT}, 1")
    a.e(f"s_cmp_lt_u32 s{sIT}, 7")
    a.e("s_cbranch_scc1 K1_LD")
    a.e("s_waitcnt vmcnt(12)")
    a.e("s_barrier")
    a.e(f"s_mov_b32 s{sIT}, 0")
    a.lab("K1_LD2")
    stage(True, False)
    a.e(f"s_cmp_eq_u32 s{sIT}, 1")
    a.e("s_cbranch_scc1 K1_LD3")
    if ONE:
        a.e(f"s_cmp_lg_u32 s{sW}, 0")
        a.e("s_cbranch_scc1 ZD_ld")
        zpoll("ld", sBI, vT + 4, vT + 5)
    a.e("s_waitcnt vmcnt(0)")
    a.e("s_barrier")
    a.e(f"s_mov_b32 s{sIT}, 1")
    a.e("s_branch K1_LD2")
    a.lab("K1_LD3")
    a.e(f"v_add_f32 v{lS}, v{lS}, v{lS+1}")
    a.e(f"v_add_f32 v{lS+1}, v{lS+2}, v{lS+3}")
    a.e(f"v_mov_b32 v{lU}, v{lS}")
    a.e(f"v_mov_b32 v{lU+1}, v{lS+1}")
    a.e("s_nop 1")
    a.e(f"v_permlane32_swap_b32 v{lS}, v{lU}")
    a.e(f"v_permlane32_swap_b32 v{lS+1}, v{lU+1}")
    a.e(f"v_add_f32 v{lS}, v{lS}, v{lU}")
    a.e(f"v_add_f32 v{lS+1}, v{lS+1}, v{lU+1}")
    finalize(lS, lS + 1, lS + 2, lS + 3)
    a.e(f"v_lshlrev_b32 v{vT+1}, 2, v{vT+1}")
    a.e(f"s_lshl_b32 s{t0}, s{sW}, 7")
    a.e(f"s_add_u32 s{t0}, s{t0}, {K1_SCR}")
    a.e(f"v_add_u32 v{vT+1}, s{t0}, v{vT+1}")
    a.e(f"ds_write_b32 v{vT+1}, v{lS+2}")
    a.e(f"ds_write_b32 v{vT+1}, v{lS+3} offset:512")
    a.e("s_waitcnt lgkmcnt(0)")
    a.e("s_barrier")
    if DIAG:
        stamp(a, 2); stamp(a, 3)
        k1flush()
    if ONE:
        if HSM == "3":
            a.e(f"s_lshl_b32 s{t0}, s{sRB}, 7")
            a.e(f"s_lshl_b32 s{t1}, s{sCB}, 2")
            a.e(f"s_add_u32 s{t0}, s{t0}, s{t1}")
            a.e(f"s_add_u32 s72, s{t0}, {FH_REL}")
        a.e("s_barrier")
        dstamp(a, 3)
        a.e("s_branch P2_ENTRY")
    else:
        a.e("s_endpgm")
    a.lab("K1_COMP")
    a.e(f"s_and_b32 s{sMH}, s{sW}, 1")
    a.e(f"s_bfe_u32 s{sNQ}, s{sW}, 0x10001")
    a.e(f"s_lshr_b32 s{sHALF}, s{sW}, 3")
    if "C" in X:
        NPF = int(os.environ.get("NPF", "8"))
        a.e(f"s_cmp_ge_u32 s2, {NPF}")
        a.e("s_cbranch_scc1 K1_NOCP")
        a.e(f"s_cmp_ge_u32 s{sW}, 8")
        a.e("s_cbranch_scc1 K1_NOCP")
        a.e(f"s_and_b32 s{t0}, s{sW}, 3")
        code_prefetch(a, "k1", "k1_gemm1_kernel", "CODE_END", 64, t0, vLANE, vT, 36)
        a.lab("K1_NOCP")
    if "P" in X:
        vPF = 36
        a.e(f"s_and_b32 s{t0}, s{sW}, 3")
        a.e(f"s_lshl_b32 s{t0}, s{t0}, 6")
        a.e(f"v_add_u32 v{vT}, s{t0}, v{vLANE}")
        a.e(f"s_cmp_eq_u32 s{sHALF}, 1")
        a.e("s_cbranch_scc1 K1_PFB")
        a.e(f"s_and_b32 s{t1}, s{sCB}, 3")
        a.e(f"s_lshl_b32 s{t1}, s{t1}, 5")
        a.e(f"s_lshl_b32 s{t2}, s{sRB}, 7")
        a.e(f"s_add_u32 s{t1}, s{t1}, s{t2}")
        a.e(f"v_lshrrev_b32 v{vT+1}, 3, v{vT}")
        a.e(f"v_add_u32 v{vT+1}, s{t1}, v{vT+1}")
        a.e(f"v_mul_u32_u24 v{vT+1}, 1280, v{vT+1}")
        a.e(f"v_and_b32 v{vT+2}, 7, v{vT}")
        a.e(f"v_lshl_add_u32 v{vT+1}, v{vT+2}, 7, v{vT+1}")
        a.e("s_waitcnt lgkmcnt(0)")
        srd(a, sX, "s4", "s5", 2048 * 640 * 2)
        a.e(f"buffer_load_dword v{vPF}, v{vT+1}, {sr(sX,4)}, 0 offen offset:256")
        a.e("s_branch K1_PFD")
        a.lab("K1_PFB")
        a.e(f"s_and_b32 s{t1}, s{sRB}, 7")
        a.e(f"s_lshl_b32 s{t1}, s{t1}, 6")
        a.e(f"s_add_u32 s{t1}, s{t1}, 128")
        a.e(f"v_lshrrev_b32 v{vT+1}, 2, v{vT}")
        a.e(f"v_add_u32 v{vT+1}, s{t1}, v{vT+1}")
        a.e(f"v_and_b32 v{vT+2}, 1, v{vT}")
        a.e(f"v_lshlrev_b32 v{vT+2}, 7, v{vT+2}")
        a.e(f"s_lshl_b32 s{t2}, s{sCB}, 8")
        a.e(f"s_lshl_b32 s{t3}, s{sT0}, 5")
        a.e(f"v_mul_u32_u24 v{vT+3}, 3840, v{vT+1}")
        a.e(f"v_add3_u32 v{vT+3}, v{vT+3}, v{vT+2}, s{t2}")
        a.e(f"v_mul_u32_u24 v{vT+4}, 3456, v{vT+1}")
        a.e(f"v_add3_u32 v{vT+4}, v{vT+4}, v{vT+2}, s{t3}")
        a.e("s_waitcnt lgkmcnt(0)")
        srd(a, sB0, "s6", "s7", 640 * 1920 * 2)
        srd(a, sB1, "s12", "s13", 640 * 1728 * 2)
        a.e("s_mov_b32 exec_lo, 0x33333333")
        a.e("s_mov_b32 exec_hi, 0x33333333")
        a.e(f"buffer_load_dword v{vPF}, v{vT+3}, {sr(sB0,4)}, 0 offen")
        a.e("s_not_b64 exec, exec")
        a.e(f"buffer_load_dword v{vPF+1}, v{vT+4}, {sr(sB1,4)}, 0 offen")
        a.e("s_mov_b64 exec, -1")
        a.lab("K1_PFD")
    a.e(f"s_lshl_b32 s{t0}, s{sMH}, 13")
    a.e(f"v_and_b32 v{vT+4}, 15, v{vLANE}")
    a.e(f"v_lshrrev_b32 v{vT}, 4, v{vLANE}")
    a.e(f"v_lshrrev_b32 v{vT+1}, 1, v{vT+4}")
    a.e(f"v_xor_b32 v{vT+1}, v{vT+1}, v{vT}")
    a.e(f"v_lshlrev_b32 v{vT+1}, 4, v{vT+1}")
    a.e(f"v_lshl_add_u32 v{vA0e}, v{vT+4}, 7, v{vT+1}")
    a.e(f"v_add_u32 v{vA0e}, s{t0}, v{vA0e}")
    a.e(f"v_xor_b32 v{vA0o}, 64, v{vA0e}")
    a.e(f"v_bfe_u32 v{vT+1}, v{vLANE}, 2, 3")
    a.e(f"v_mul_u32_u24 v{vT+1}, 1056, v{vT+1}")
    a.e(f"v_lshrrev_b32 v{vT+2}, 5, v{vLANE}")
    a.e(f"v_lshl_add_u32 v{vT+1}, v{vT+2}, 9, v{vT+1}")
    a.e(f"v_and_b32 v{vT+2}, 3, v{vLANE}")
    a.e(f"v_lshl_add_u32 v{vT+1}, v{vT+2}, 3, v{vT+1}")
    a.e(f"s_mul_i32 s{t0}, s{sHALF}, {2*K1_BH}")
    a.e(f"s_lshl_b32 s{t1}, s{sNQ}, 7")
    a.e(f"s_add_u32 s{t0}, s{t0}, s{t1}")
    a.e(f"s_add_u32 s{t0}, s{t0}, 16384")
    a.e(f"v_add_u32 v{vB0}, s{t0}, v{vT+1}")
    for i in range(64):
        a.e(f"v_mov_b32 v{ACC+i}, 0")
    for i in range(4):
        a.e(f"v_mov_b32 v{vS+i}, 0")
        a.e(f"v_mov_b32 v{vONES+i}, 0x3f803f80")
    for i in range(8):
        a.e(f"v_mov_b32 v{vCS+i}, 0")
        a.e(f"v_mov_b32 v{vSA+i}, {hx(OOB)}")
    a.e(f"s_mov_b32 s{sRD}, 0")
    a.e(f"s_mov_b32 s{sIT}, 0")
    a.e(f"s_mov_b32 s{sTS}, 0")
    a.e(f"s_cmp_ge_u32 s{sCB}, 10")
    a.e(f"s_cselect_b32 s{sTYP}, 1, 0")
    a.e(f"s_cmp_eq_u32 s{sHALF}, 1")
    a.e(f"s_cselect_b32 s{sTYP}, 2, s{sTYP}")
    a.e(f"s_lshl_b32 s{t6}, s{sRB}, 2")
    a.e(f"s_lshl_b32 s{t7}, s{sMH}, 1")
    a.e(f"s_add_u32 s{t6}, s{t6}, s{t7}")
    a.e(f"s_cmp_eq_u32 s{sTYP}, 1")
    a.e("s_cbranch_scc1 K1_PRE_V")
    a.e(f"s_cmp_eq_u32 s{sTYP}, 2")
    a.e("s_cbranch_scc1 K1_PRE_F")
    a.e(f"s_cmp_lt_u32 s{sCB}, 5")
    a.e(f"s_cselect_b32 s{t1}, 81920, {KVH}")
    a.e(f"s_cselect_b32 s{t2}, 1280, {KVT}")
    a.e(f"s_cselect_b32 s{sTS}, 1280, {koff(1)}")
    a.e(f"s_cselect_b32 s{t3}, {hx(QB_OFF)}, {hx(KV_OFF)}")
    a.e(f"s_cselect_b32 s{t5}, 0, 5")
    a.e(f"s_sub_u32 s{t5}, s{sCB}, s{t5}")
    a.e(f"s_lshl_b32 s{t5}, s{t5}, 5")
    a.e(f"s_lshl_b32 s{t7}, s{sNQ}, 4")
    a.e(f"s_add_u32 s{t5}, s{t5}, s{t7}")
    a.e(f"s_mul_i32 s{t6}, s{t6}, s{t2}")
    a.e(f"s_add_u32 s{t3}, s{t3}, s{t6}")
    rA0, vG = vT + 6, vT + 10
    a.e(f"v_lshlrev_b32 v{rA0}, 3, v{vT+4}")
    a.e(f"v_add_u32 v{rA0}, s{t3}, v{rA0}")
    a.e(f"v_add_u32 v{vG}, s{t5}, v{vT}")
    for j in range(4):
        tt, h, dg = vT + 11, vT + 12, vT + 13
        a.e(f"v_add_u32 v{tt}, {4*j}, v{vG}")
        a.e(f"v_mul_u32_u24 v{h}, 205, v{tt}")
        a.e(f"v_lshrrev_b32 v{h}, 10, v{h}")
        a.e(f"v_mad_i32_i24 v{dg}, v{h}, -5, v{tt}")
        a.e(f"v_mad_u32_u24 v{h}, v{h}, s{t1}, v{rA0}")
        a.e(f"v_lshl_add_u32 v{vSA+j}, v{dg}, 8, v{h}")
    a.e("s_branch K1_PRE_DONE")
    a.lab("K1_PRE_V")
    vWA = [8, 9, 10, 11]
    a.e(f"s_sub_u32 s{t5}, s{sCB}, 10")
    a.e(f"s_lshl_b32 s{t5}, s{t5}, 7")
    a.e(f"s_lshl_b32 s{t7}, s{sNQ}, 6")
    a.e(f"s_add_u32 s{t5}, s{t5}, s{t7}")
    a.e(f"s_mul_i32 s{t6}, s{t6}, {KVT}")
    a.e(f"s_add_u32 s{t6}, s{t6}, {hx(KV_OFF + 1280)}")
    a.e(f"s_mov_b32 s{t1}, {KVH}")
    a.e(f"s_mov_b32 s{t2}, -20")
    a.e(f"s_lshl_b32 s{t3}, s{sW}, 13")
    n, h, d = vT + 5, vT + 6, vT + 7
    a.e(f"v_add_u32 v{vT+2}, s{t5}, v{vT+4}")
    a.e(f"v_lshlrev_b32 v{vT+1}, 7, v{vT+4}")
    a.e(f"v_add_u32 v{vT+1}, s{t3}, v{vT+1}")
    for j in range(4):
        a.e(f"v_add_u32 v{n}, {16*j}, v{vT+2}")
        a.e(f"v_mul_u32_u24 v{h}, 3277, v{n}")
        a.e(f"v_lshrrev_b32 v{h}, 16, v{h}")
        a.e(f"v_mad_i32_i24 v{d}, v{h}, s{t2}, v{n}")
        a.e(f"v_bfe_u32 v{d}, v{d}, 1, 3")
        a.e(f"v_xor_b32 v{d}, v{d}, v{vT}")
        a.e(f"v_lshl_add_u32 v{vWA[j]}, v{d}, 4, v{vT+1}")
    a.e(f"v_lshrrev_b32 v{vT+2}, 3, v{vLANE}")
    a.e(f"v_add_u32 v{vT+2}, s{t5}, v{vT+2}")
    a.e(f"v_and_b32 v{vT+1}, 7, v{vLANE}")
    a.e(f"v_lshlrev_b32 v{vT+1}, 4, v{vT+1}")
    a.e(f"v_add_u32 v{vT+1}, s{t6}, v{vT+1}")
    for q in range(8):
        a.e(f"v_add_u32 v{n}, {8*q}, v{vT+2}")
        a.e(f"v_mul_u32_u24 v{h}, 3277, v{n}")
        a.e(f"v_lshrrev_b32 v{h}, 16, v{h}")
        a.e(f"v_mad_i32_i24 v{d}, v{h}, s{t2}, v{n}")
        a.e(f"v_mad_u32_u24 v{h}, v{h}, s{t1}, v{vT+1}")
        a.e(f"v_lshl_add_u32 v{vSA+q}, v{d}, 7, v{h}")
    a.e("s_branch K1_PRE_DONE")
    a.lab("K1_PRE_F")
    a.e(f"s_lshl_b32 s{t0}, s{sCB}, 1")
    a.e(f"s_add_u32 s{t0}, s{t0}, s{sNQ}")
    a.e(f"s_cmp_eq_u32 s{t0}, 26")
    a.e("s_cbranch_scc1 K1_PRE_DONE")
    a.e(f"s_cmp_ge_u32 s{t0}, 28")
    a.e("s_cbranch_scc1 K1_PRE_DONE")
    a.e(f"s_lshl_b32 s{t0}, s{t6}, 5")
    a.e(f"v_add_u32 v{vSA}, s{t0}, v{vT+4}")
    a.e(f"v_lshlrev_b32 v{vSA}, 4, v{vSA}")
    a.e(f"v_lshl_add_u32 v{vSA}, v{vT}, 15, v{vSA}")
    a.e(f"s_lshl_b32 s{t0}, s{sT0}, 16")
    a.e(f"s_lshl_b32 s{t1}, s{sNQ}, 18")
    a.e(f"s_add_u32 s{t0}, s{t0}, s{t1}")
    a.e(f"s_add_u32 s{t0}, s{t0}, {hx(AB_OFF + 80*32768)}")
    a.e(f"v_add_u32 v{vSA}, s{t0}, v{vSA}")
    a.e(f"v_add_u32 v{vSA+1}, {hx(131072)}, v{vSA}")
    a.lab("K1_PRE_DONE")
    a.e("s_waitcnt lgkmcnt(0)")
    stamp(a, 5)
    srd(a, sWS, "s18", "s19", WS_END)
    a.e(f"s_and_b32 s{t0}, s{sTYP}, 1")
    a.e(f"s_lshl_b32 s{t0}, s{t0}, 1")
    a.e(f"s_add_u32 s{t0}, s{t0}, s{sMH}")
    for v in range(1, 4):
        a.e(f"s_cmp_eq_u32 s{t0}, {v}")
        a.e(f"s_cbranch_scc1 K1_V{v}")

    def reads(fs):
        vA = vAe if fs == 0 else vAo
        ra = [f"ds_read_b128 {vr(fa(fs,mt),4)}, v{vA} offset:{2048*mt}" for mt in range(4)]
        rb = []
        for j in range(4):
            rb.append(f"ds_read_b64_tr_b16 {vr(fb(fs,j),2)}, v{vB} offset:{fs*K1_BH+32*j}")
            rb.append(f"ds_read_b64_tr_b16 {vr(fb(fs,j)+2,2)}, v{vB} offset:{fs*K1_BH+32*j+256}")
        return rb[0:2] + ra + rb[2:]

    def addr_update():
        return [f"v_add_u32 v{vB}, s{sRD}, v{vB0}",
                f"v_add_u32 v{vAe}, s{sRD}, v{vA0e}",
                f"v_add_u32 v{vAo}, s{sRD}, v{vA0o}",
                f"s_add_u32 s{sRD}, s{sRD}, {K1_SLOT}",
                f"s_cmp_eq_u32 s{sRD}, {K1_SCR}",
                f"s_cselect_b32 s{sRD}, 0, s{sRD}"]

    for var in range(4):
        typ, mh, nq = var >> 1, var & 1, 0
        cst = [2 * mh, 2 * mh + 1]
        smt = (2 if typ == 2 else 0) + nq
        a.raw(".p2align 3")
        a.lab(f"K1_V{var}")
        emit(addr_update())
        a.e("s_barrier")
        stamp(a, 1)
        emit(reads(0))
        a.raw(".p2align 6")
        a.lab(f"K1_L{var}")
        for fs in range(2):
            mf = []
            for j in range(4):
                for mt in range(4):
                    if typ == 1:
                        mf.append(f"v_mfma_f32_16x16x32_bf16 {vr(acc(j,mt),4)}, {vr(fa(fs,mt),4)}, {vr(fb(fs,j),4)}, {vr(acc(j,mt),4)}")
                    else:
                        mf.append(f"v_mfma_f32_16x16x32_bf16 {vr(acc(j,mt),4)}, {vr(fb(fs,j),4)}, {vr(fa(fs,mt),4)}, {vr(acc(j,mt),4)}")
                if j in cst:
                    c = vCS + 4 * cst.index(j)
                    mf.append(f"v_mfma_f32_16x16x32_bf16 {vr(c,4)}, {vr(fb(fs,j),4)}, {vr(vONES,4)}, {vr(c,4)}")
            va = []
            for r in range(4):
                src = fa(fs, smt) + r
                lo, hi = vU + 2 * (r & 1), vU + 2 * (r & 1) + 1
                va.append(f"v_lshlrev_b32 v{lo}, 16, v{src}")
                va.append(f"v_and_b32 v{hi}, 0xffff0000, v{src}")
                va.append(f"v_add_f32 v{vS}, v{vS}, v{lo}")
                va.append(f"v_add_f32 v{vS+1}, v{vS+1}, v{hi}")
                va.append(f"v_fmac_f32 v{vS+2}, v{lo}, v{lo}")
                va.append(f"v_fmac_f32 v{vS+3}, v{hi}, v{hi}")
            rd = reads(fs ^ 1)
            va = []
            if "r" in X: rd = []
            if "M" in X: mf = mf[:2]
            a.e("s_waitcnt lgkmcnt(0)")
            npre = 0
            if fs == 1:
                npre = 2
                for m in mf[:npre]:
                    a.e(m)
                emit(addr_update())
                a.e("s_barrier")
            rest = mf[npre:]
            nm = max(1, len(rest))
            ri = di = 0
            for i, m in enumerate(rest):
                if ri < len(rd):
                    a.e(rd[ri]); ri += 1
                a.e(m)
                want_d = (len(va) * (i + 1) + nm - 1) // nm
                while di < want_d:
                    a.e(va[di]); di += 1
            while ri < len(rd):
                a.e(rd[ri]); ri += 1
            while di < len(va):
                a.e(va[di]); di += 1
        a.e(f"s_add_u32 s{sIT}, s{sIT}, 1")
        a.e(f"s_cmp_lt_u32 s{sIT}, 10")
        a.e(f"s_cbranch_scc1 K1_L{var}")
        a.e(f"s_branch K1_EPI")

    a.raw(".p2align 3")
    a.lab("K1_EPI")
    stamp(a, 2)
    a.e("s_waitcnt vmcnt(0)")
    a.e(f"v_and_b32 v{vT}, 15, v{vLANE}")
    a.e(f"v_lshlrev_b32 v{vT}, 2, v{vT}")
    a.e(f"s_lshl_b32 s{t0}, s{sHALF}, 7")
    a.e(f"s_lshl_b32 s{t1}, s{sNQ}, 6")
    a.e(f"s_add_u32 s{t0}, s{t0}, s{t1}")
    a.e(f"s_lshl_b32 s{t2}, s{sMH}, 8")
    a.e(f"s_add_u32 s{t2}, s{t2}, {K1_SCR}")
    a.e(f"s_add_u32 s{t0}, s{t0}, s{t2}")
    a.e(f"v_add_u32 v{vT+1}, s{t0}, v{vT}")
    a.e(f"v_lshrrev_b32 v{vT+2}, 4, v{vLANE}")
    a.e(f"v_lshlrev_b32 v{vT+2}, 4, v{vT+2}")
    a.e(f"s_lshl_b32 s{t3}, s{sHALF}, 9")
    a.e(f"s_lshl_b32 s{t1}, s{sNQ}, 8")
    a.e(f"s_add_u32 s{t3}, s{t3}, s{t1}")
    a.e(f"s_add_u32 s{t3}, s{t3}, {K1_SCR+1024}")
    a.e(f"s_lshl_b32 s{t1}, s{sMH}, 7")
    a.e(f"s_add_u32 s{t0}, s{t3}, s{t1}")
    a.e(f"v_add_u32 v{vT+3}, s{t0}, v{vT+2}")
    a.e("s_mov_b32 exec_lo, 0x00010001")
    a.e("s_mov_b32 exec_hi, 0x00010001")
    a.e(f"ds_write_b128 v{vT+3}, {vr(vCS,4)}")
    a.e(f"ds_write_b128 v{vT+3}, {vr(vCS+4,4)} offset:64")
    a.e("s_mov_b64 exec, -1")
    a.e("s_waitcnt lgkmcnt(0)")
    a.e("s_barrier")
    stamp(a, 3)
    a.e(f"s_cmp_eq_u32 s{sTYP}, 1")
    a.e("s_cbranch_scc1 K1_EPI_V")

    vNM, vRS = 32, 36
    vC4 = 40
    vBB = 56
    a.e(f"v_add_u32 v{vT}, s{t2}, v{vT}")
    a.e(f"ds_read2_b32 {vr(vNM,2)}, v{vT} offset0:0 offset1:16")
    a.e(f"ds_read2_b32 {vr(vNM+2,2)}, v{vT} offset0:32 offset1:48")
    a.e(f"ds_read2_b32 {vr(vRS,2)}, v{vT} offset0:128 offset1:144")
    a.e(f"ds_read2_b32 {vr(vRS+2,2)}, v{vT} offset0:160 offset1:176")
    a.e(f"v_add_u32 v{vT+1}, s{t3}, v{vT+2}")
    for j in range(4):
        a.e(f"ds_read_b128 {vr(vC4+4*j,4)}, v{vT+1} offset:{64*j}")
    a.e(f"s_cmp_eq_u32 s{sTYP}, 2")
    a.e("s_cbranch_scc1 K1_EPI_F")

    def sel3(mt):
        return f"op_sel:[0,{mt&1},0] op_sel_hi:[1,{mt&1},1]"

    def sel2(mt):
        return f"op_sel:[0,{mt&1}] op_sel_hi:[1,{mt&1}]"
    a.e(f"s_cmp_lt_u32 s{sCB}, 5")
    a.e(f"s_cselect_b32 s{t0}, {hx(f32(QSCALE))}, 1.0")
    a.e("s_waitcnt lgkmcnt(4)")
    for i in range(4):
        a.e(f"v_mul_f32 v{vRS+i}, s{t0}, v{vRS+i}")
    for j in range(4):
        a.e(f"s_waitcnt lgkmcnt({3-j})")
        for mt in range(4):
            A = acc(j, mt)
            for p in range(2):
                a.e(f"v_pk_fma_f32 {vr(A+2*p,2)}, {vr(vC4+4*j+2*p,2)}, {vr(vNM+(mt&2),2)}, {vr(A+2*p,2)} {sel3(mt)}")
        for mt in range(4):
            A = acc(j, mt)
            for p in range(2):
                a.e(f"v_pk_mul_f32 {vr(A+2*p,2)}, {vr(A+2*p,2)}, {vr(vRS+(mt&2),2)} {sel2(mt)}")
        for mt in range(4):
            A = acc(j, mt)
            a.e(f"v_cvt_pk_bf16_f32 v{A}, v{A}, v{A+1}")
            a.e(f"v_cvt_pk_bf16_f32 v{A+1}, v{A+2}, v{A+3}")
            so = f"s{sTS}" if mt & 2 else "0"
            a.e(f"buffer_store_dwordx2 {vr(A,2)}, v{vSA+j}, {sr(sWS,4)}, {so} offen offset:{128*(mt&1)}{SCQ}")
    finish("Q")
    a.lab("K1_EPI_F")
    c0 = -2.0 * math.sqrt(2.0 / math.pi) * math.log2(math.e)
    c1 = c0 * 0.044715
    vC0, vONE = 64, 66
    a.e(f"v_lshrrev_b32 v{vT+2}, 1, v{vT+2}")
    a.e(f"s_lshl_b32 s{t0}, s{sNQ}, 7")
    a.e(f"s_add_u32 s{t0}, s{t0}, {K1_SCR+2048}")
    a.e(f"v_add_u32 v{vT+2}, s{t0}, v{vT+2}")
    for j in range(4):
        a.e(f"ds_read_b64 {vr(vBB+2*j,2)}, v{vT+2} offset:{32*j}")
    a.e(f"v_mov_b32 v{vC0}, {hx(f32(c0))}")
    a.e(f"v_mov_b32 v{vC0+1}, {hx(f32(c0))}")
    a.e(f"v_mov_b32 v{vONE}, 1.0")
    a.e(f"v_mov_b32 v{vONE+1}, 1.0")
    a.e(f"s_mov_b32 s{sC1}, {hx(f32(c1))}")
    a.e(f"s_mov_b32 s{sC1+1}, {hx(f32(c1))}")
    vBF = 68
    vW = 88
    a.e("s_waitcnt lgkmcnt(0)")
    for j in (2, 3, 0, 1):
        a.e(f"v_lshlrev_b32 v{vBF}, 16, v{vBB+2*j}")
        a.e(f"v_and_b32 v{vBF+1}, 0xffff0000, v{vBB+2*j}")
        a.e(f"v_lshlrev_b32 v{vBF+2}, 16, v{vBB+2*j+1}")
        a.e(f"v_and_b32 v{vBF+3}, 0xffff0000, v{vBB+2*j+1}")
        for mp in range(2):
            prs = [(mt, p) for mt in (2 * mp, 2 * mp + 1) for p in range(2)]
            for i, (mt, p) in enumerate(prs):
                A = acc(j, mt) + 2 * p
                a.e(f"v_pk_fma_f32 {vr(A,2)}, {vr(vC4+4*j+2*p,2)}, {vr(vNM+(mt&2),2)}, {vr(A,2)} {sel3(mt)}")
            for i, (mt, p) in enumerate(prs):
                A = acc(j, mt) + 2 * p
                a.e(f"v_pk_fma_f32 {vr(A,2)}, {vr(A,2)}, {vr(vRS+(mt&2),2)}, {vr(vBF+2*p,2)} {sel3(mt)}")
            for i, (mt, p) in enumerate(prs):
                A = acc(j, mt) + 2 * p
                a.e(f"v_pk_mul_f32 {vr(vW+2*i,2)}, {vr(A,2)}, {vr(A,2)}")
            for i, (mt, p) in enumerate(prs):
                a.e(f"v_pk_fma_f32 {vr(vW+2*i,2)}, {vr(vW+2*i,2)}, {sr(sC1,2)}, {vr(vC0,2)}")
            for i, (mt, p) in enumerate(prs):
                A = acc(j, mt) + 2 * p
                a.e(f"v_pk_mul_f32 {vr(vW+2*i,2)}, {vr(vW+2*i,2)}, {vr(A,2)}")
            for i in range(8):
                a.e(f"v_exp_f32 v{vW+i}, v{vW+i}")
            for i in range(4):
                a.e(f"v_pk_add_f32 {vr(vW+2*i,2)}, {vr(vW+2*i,2)}, {vr(vONE,2)}")
            for i in range(8):
                a.e(f"v_rcp_f32 v{vW+i}, v{vW+i}")
            for i, (mt, p) in enumerate(prs):
                A = acc(j, mt) + 2 * p
                a.e(f"v_pk_mul_f32 {vr(A,2)}, {vr(A,2)}, {vr(vW+2*i,2)}")
            for mt in (2 * mp, 2 * mp + 1):
                A = acc(j, mt)
                Dq = acc(2, mt) if j >= 2 else acc(3, mt)
                D = Dq + 2 * (j & 1)
                a.e(f"v_cvt_pk_bf16_f32 v{D}, v{A}, v{A+1}")
                a.e(f"v_cvt_pk_bf16_f32 v{D+1}, v{A+2}, v{A+3}")
                if j & 1 and (not ONE or HSM == "0"):
                    a.e(f"buffer_store_dwordx4 {vr(Dq,4)}, v{vSA+j//2}, {sr(sWS,4)}, 0 offen offset:{256*mt}{SC}")
    if ONE and HSM == "1":
        for p in range(2):
            for mt in range(4):
                a.e(f"buffer_store_dwordx4 {vr(acc(3-p,mt),4)}, v{vSA+p}, {sr(sWS,4)}, 0 offen offset:{256*mt} sc1")
    k1flush()
    if ONE and HSM == "3":
        a.e(f"s_sub_u32 s{t0}, s{sW}, 8")
        a.e(f"s_mul_i32 s{t0}, s{t0}, 8704")
        a.e(f"s_add_u32 s{t0}, s{t0}, {HDUMP}")
        a.e(f"v_lshlrev_b32 v{vT}, 4, v{vLANE}")
        a.e(f"v_add_u32 v{vT}, s{t0}, v{vT}")
        for q in range(8):
            a.e(f"ds_write_b128 v{vT}, {vr(136+4*q,4)} offset:{1024*q}")
        a.e(f"v_lshlrev_b32 v{vT}, 3, v{vLANE}")
        a.e(f"v_add_u32 v{vT}, s{t0}, v{vT}")
        a.e(f"ds_write_b64 v{vT}, {vr(vSA,2)} offset:8192")
        a.e("s_branch P2_ENTRY")
    elif ONE:
        a.e(f"v_mov_b32 v128, v{vSA}")
        a.e(f"v_mov_b32 v129, v{vSA+1}")
        a.e(f"s_lshl_b32 s{t0}, s{sRB}, 7")
        a.e(f"s_lshl_b32 s{t1}, s{sCB}, 2")
        a.e(f"s_add_u32 s{t0}, s{t0}, s{t1}")
        a.e(f"s_add_u32 s72, s{t0}, {hx(FL_OFF + FH_REL)}")
        a.e("s_branch P2_ENTRY")
    else:
        a.e("s_endpgm")
    a.lab("K1_EPI_V")
    vNMv, vRSv = 40, 56
    vCSv = 88
    a.e(f"v_add_u32 v{vT+1}, s{t2}, v{vT+2}")
    for mt in range(4):
        a.e(f"ds_read_b128 {vr(vNMv+4*mt,4)}, v{vT+1} offset:{64*mt}")
    for mt in range(4):
        a.e(f"ds_read_b128 {vr(vRSv+4*mt,4)}, v{vT+1} offset:{512+64*mt}")
    a.e(f"v_add_u32 v{vT+3}, s{t3}, v{vT}")
    for j in range(4):
        a.e(f"ds_read_b32 v{vCSv+2*j}, v{vT+3} offset:{64*j}")
    a.e("s_waitcnt lgkmcnt(0)")
    for j in range(4):
        for mt in range(4):
            A = acc(j, mt)
            for p in range(2):
                a.e(f"v_pk_fma_f32 {vr(A+2*p,2)}, {vr(vNMv+4*mt+2*p,2)}, {vr(vCSv+2*j,2)}, {vr(A+2*p,2)} op_sel:[0,0,0] op_sel_hi:[1,0,1]")
        for mt in range(4):
            A = acc(j, mt)
            for p in range(2):
                a.e(f"v_pk_mul_f32 {vr(A+2*p,2)}, {vr(A+2*p,2)}, {vr(vRSv+4*mt+2*p,2)}")
        for t2_ in range(2):
            A0, A1 = acc(j, 2 * t2_), acc(j, 2 * t2_ + 1)
            a.e(f"v_cvt_pk_bf16_f32 v{A0}, v{A0}, v{A0+1}")
            a.e(f"v_cvt_pk_bf16_f32 v{A0+1}, v{A0+2}, v{A0+3}")
            a.e(f"v_cvt_pk_bf16_f32 v{A0+2}, v{A1}, v{A1+1}")
            a.e(f"v_cvt_pk_bf16_f32 v{A0+3}, v{A1+2}, v{A1+3}")
            if t2_:
                a.e(f"v_xor_b32 v{vWA[j]}, 64, v{vWA[j]}")
            a.e(f"ds_write_b128 v{vWA[j]}, {vr(A0,4)} offset:{2048*j}")
    a.e(f"s_lshl_b32 s{t3}, s{sW}, 13")
    a.e(f"v_lshlrev_b32 v{vT}, 4, v{vLANE}")
    a.e(f"v_add_u32 v{vT}, s{t3}, v{vT}")
    a.e("s_waitcnt lgkmcnt(0)")
    for q in range(8):
        a.e(f"ds_read_b128 {vr(40+4*q,4)}, v{vT} offset:{1024*q}")
    for q in range(8):
        a.e(f"s_waitcnt lgkmcnt({7-q})")
        a.e(f"buffer_store_dwordx4 {vr(40+4*q,4)}, v{vSA+q}, {sr(sWS,4)}, 0 offen{SCQ}")
    finish("Q")
    if ONE:
        for kind in "Q":
            a.lab(f"K1_SIG{kind}")
            a.e(f"v_mov_b32 v2, {K1_SYN + (4 if kind == 'F' else 0)}")
            a.e("v_mov_b32 v3, 1")
            if kind == "Q":
                a.e(f"v_lshlrev_b32 v5, 11, v{vLANE}")
                a.e(f"s_lshl_b32 s{t0}, s{sCB}, 7")
                a.e(f"s_lshl_b32 s{t1}, s{sRB}, 2")
                a.e(f"s_add_u32 s{t0}, s{t0}, s{t1}")
                a.e(f"s_add_u32 s{t0}, s{t0}, {hx(FL_OFF + FQ_REL)}")
            else:
                a.e("v_mov_b32 v5, 0")
                a.e(f"s_lshl_b32 s{t0}, s{sRB}, 7")
                a.e(f"s_lshl_b32 s{t1}, s{sCB}, 2")
                a.e(f"s_add_u32 s{t0}, s{t0}, s{t1}")
                a.e(f"s_add_u32 s{t0}, s{t0}, {hx(FL_OFF + FH_REL)}")
            a.e("s_waitcnt vmcnt(0)")
            a.e("s_mov_b64 exec, 1")
            a.e("ds_add_rtn_u32 v4, v2, v3")
            a.e("s_waitcnt lgkmcnt(0)")
            a.e(f"v_readfirstlane_b32 s{t1}, v4")
            a.e("s_mov_b64 exec, -1")
            a.e(f"s_cmp_lg_u32 s{t1}, 3")
            a.e("s_cbranch_scc1 P2_ENTRY")
            if kind in WB:
                a.e("buffer_wbl2 sc1")
                a.e("s_waitcnt vmcnt(0)")
            a.e(f"s_mov_b64 exec, {15 if kind == 'Q' else 1}")
            a.e(f"buffer_store_dword v3, v5, {sr(sWS,4)}, s{t0} offen sc1")
            a.e("s_mov_b64 exec, -1")
            a.e("s_branch P2_ENTRY")

    a.lab("K1_TRANS")
    sTAU, sSEL0, sSEL1 = 51, 52, 53
    NB_T = 4
    sTs = [24, 28, 36, 40]
    sK = [54, 56, 58, 76]
    vTO = [2, 3, 4, 5]
    vTS = [6, 7, 8, 9]
    vTL = [88, 104, 120, 136]
    a.e(f"s_mul_i32 s{sTAU}, s{sRB}, 12")
    a.e(f"s_add_u32 s{sTAU}, s{sTAU}, s{sW}")
    a.e(f"s_mov_b32 s{sSEL0}, 0x05040100")
    a.e(f"s_mov_b32 s{sSEL1}, 0x07060302")
    a.e(f"v_lshlrev_b32 v{vT}, 2, v{vLANE}")
    a.e(f"v_lshlrev_b32 v{vT+1}, 4, v{vLANE}")
    a.e(f"s_lshl_b32 s{t0}, s{sW}, 13")
    a.e(f"v_lshlrev_b32 v10, 5, v{vLANE}")
    a.e(f"v_add_u32 v10, s{t0}, v10")
    a.e(f"v_add_u32 v11, s{t0}, v{vT+1}")
    a.e("s_waitcnt lgkmcnt(0)")
    srd(a, sWS, "s18", "s19", WS_END)
    if "Q" in X:
        srd(a, sX, "s4", "s5", 2048 * 640 * 2)
        srd(a, sB0, "s6", "s7", 640 * 1920 * 2)
        srd(a, sB1, "s12", "s13", 640 * 1728 * 2)
        a.e(f"s_lshl_b32 s{t0}, s{sTAU}, 13")
        a.e(f"v_lshlrev_b32 v20, 7, v{vLANE}")
        a.e(f"v_add_u32 v20, s{t0}, v20")
        a.e(f"s_mov_b32 s{t1}, {192*3840}")
        a.e(f"s_mov_b32 s{t2}, {192*3456}")
        a.e(f"s_mov_b32 s{t3}, {192*3840 + 12288*128}")
        a.e(f"s_mov_b32 s{t4}, {12288*128}")
        a.e(f"buffer_load_dword v21, v20, {sr(sB0,4)}, s{t1} offen")
        a.e(f"buffer_load_dword v22, v20, {sr(sB1,4)}, s{t2} offen")
        a.e(f"buffer_load_dword v23, v20, {sr(sX,4)}, 0 offen")
        a.e(f"buffer_load_dword v24, v20, {sr(sX,4)}, s{t4} offen")
        a.e(f"buffer_load_dword v25, v20, {sr(sB0,4)}, s{t3} offen")
    a.e(f"s_lshl_b32 s{t0}, s{sTAU}, 3")
    a.e(f"v_lshrrev_b32 v{vT+2}, 3, v{vLANE}")
    a.e(f"v_add_u32 v{vT+2}, s{t0}, v{vT+2}")
    a.e(f"v_mul_u32_u24 v{vT+2}, {2*KVT}, v{vT+2}")
    a.e(f"v_and_b32 v{vT+3}, 7, v{vLANE}")
    a.e(f"v_lshl_add_u32 v{vT+2}, v{vT+3}, 4, v{vT+2}")
    a.e(f"s_cmp_lt_u32 s{sTAU}, 128")
    a.e(f"s_cselect_b32 s{t0}, {hx(KV_OFF + 1280 + 20*128)}, {hx(OOB)}")
    for i in range(4):
        a.e(f"v_mov_b32 v{12+i}, 0x3f803f80")
    a.e(f"buffer_store_dwordx4 v[12:15], v{vT+2}, {sr(sWS,4)}, s{t0} offen{SC}")
    a.e(f"s_lshl_b32 s{t1}, s{sW}, 10")
    a.e(f"s_add_u32 s{t1}, s{t1}, {hx(FL_OFF)}")
    a.e(f"s_cmp_eq_u32 s{sRB}, 0")
    a.e(f"s_cselect_b32 s{t0}, s{t1}, {hx(OOB)}")
    for i in range(4):
        a.e(f"v_mov_b32 v{16+i}, 0")
    a.e(f"v_lshlrev_b32 v{vT+3}, 4, v{vLANE}")
    a.e(f"buffer_store_dwordx4 v[16:19], v{vT+3}, {sr(sWS,4)}, s{t0} offen{SC}")
    if ONE:
        a.e(f"v_mov_b32 v20, {K1_SYN}")
        a.e("ds_write_b128 v20, v[16:19]")
        a.e("s_waitcnt vmcnt(0) lgkmcnt(0)")
        a.e("s_barrier")
        a.e(f"s_cmp_lg_u32 s{sW}, 0")
        a.e("s_cbranch_scc1 K1_TGO")
        a.e("v_mov_b32 v21, 1")
        a.e(f"s_cmp_lg_u32 s{sRB}, 0")
        a.e("s_cbranch_scc1 K1_TZ")
        srd(a, sX, "s10", "s11", 256)
        a.e("s_mov_b64 exec, 1")
        a.e(f"buffer_store_dword v21, v16, {sr(sX,4)}, 0 offen sc1")
        a.e("s_mov_b64 exec, -1")
        a.lab("K1_TZ")
        a.lab("K1_TGO")
    a.e(f"s_mov_b32 s{sIT+3}, 0")
    a.lab("K1_TL")
    for b in range(NB_T):
        T = sTs[b]
        a.e(f"s_mul_i32 s{t1}, s{sTAU}, 13108")
        a.e(f"s_lshr_b32 s{t1}, s{t1}, 16")
        a.e(f"s_mul_i32 s{t2}, s{t1}, 5")
        a.e(f"s_sub_u32 s{t2}, s{sTAU}, s{t2}")
        a.e(f"s_lshr_b32 s{t5}, s{t1}, 1")
        a.e(f"s_mul_i32 s{t5}, s{t5}, 20")
        a.e(f"s_and_b32 s{t6}, s{t1}, 1")
        a.e(f"s_lshl_b32 s{t6}, s{t6}, 2")
        a.e(f"s_add_u32 s{t5}, s{t5}, s{t6}")
        a.e(f"s_add_u32 s{t6}, s{t5}, 8")
        a.e(f"s_sub_u32 s{t3}, s{t1}, 64")
        a.e(f"s_mul_i32 s{t3}, s{t3}, 40")
        a.e(f"s_add_u32 s{t4}, s{t3}, 36")
        a.e(f"s_add_u32 s{t3}, s{t3}, 16")
        a.e(f"s_cmp_lt_u32 s{t1}, 64")
        a.e(f"s_cselect_b32 s{t5}, s{t5}, s{t3}")
        a.e(f"s_cselect_b32 s{t6}, s{t6}, s{t4}")
        a.e(f"s_sub_u32 s{t3}, s{t1}, 80")
        a.e(f"s_lshr_b32 s{t4}, s{t3}, 2")
        a.e(f"s_lshl_b32 s{t4}, s{t4}, 5")
        a.e(f"s_and_b32 s{t3}, s{t3}, 3")
        a.e(f"s_lshl_b32 s{t3}, s{t3}, 2")
        a.e(f"s_add_u32 s{t3}, s{t3}, s{t4}")
        a.e(f"s_add_u32 s{t4}, s{t3}, 16")
        a.e(f"s_cmp_lt_u32 s{t1}, 80")
        a.e(f"s_cselect_b32 s{t5}, s{t5}, s{t3}")
        a.e(f"s_cselect_b32 s{t6}, s{t6}, s{t4}")
        a.e(f"s_cselect_b32 s{T}, s8, s16")
        a.e(f"s_cselect_b32 s{T+1}, s9, s17")
        a.e(f"s_cselect_b32 s{T+2}, {hx(640*640*2)}, {hx(1728*640*2)}")
        a.e(f"s_mov_b32 s{T+3}, 0x00020000")
        a.e(f"s_mul_i32 s{sK[b]}, s{t5}, 1280")
        a.e(f"s_mul_i32 s{sK[b]+1}, s{t6}, 1280")
        a.e(f"s_lshl_b32 s{t3}, s{t2}, 8")
        a.e(f"v_add_u32 v{vTO[b]}, s{t3}, v{vT}")
        for j in range(8):
            so = sK[b] if j < 4 else sK[b] + 1
            a.e(f"buffer_load_dword v{vTL[b]+j}, v{vTO[b]}, {sr(T,4)}, s{so} offen offset:{(j&3)*1280}")
        a.e(f"s_mul_i32 s{t1}, s{t1}, 10240")
        a.e(f"s_lshl_b32 s{t2}, s{t2}, 11")
        a.e(f"s_add_u32 s{t1}, s{t1}, s{t2}")
        a.e(f"s_add_u32 s{t1}, s{t1}, {hx(WT_OFF)}")
        a.e(f"s_cmp_lt_u32 s{sTAU}, 1480")
        a.e(f"s_cselect_b32 s{t1}, s{t1}, {hx(OOB)}")
        a.e(f"v_add_u32 v{vTS[b]}, s{t1}, v{vT+1}")
        a.e(f"s_add_u32 s{sTAU}, s{sTAU}, 192")
    for b in range(NB_T):
        a.e(f"s_waitcnt vmcnt({8*(NB_T-1-b)})")
        for i in range(4):
            a.e(f"v_perm_b32 v{vTL[b]+8+i}, v{vTL[b]+2*i+1}, v{vTL[b]+2*i}, s{sSEL0}")
            a.e(f"v_perm_b32 v{vTL[b]+12+i}, v{vTL[b]+2*i+1}, v{vTL[b]+2*i}, s{sSEL1}")
        a.e(f"ds_write_b128 v10, {vr(vTL[b]+8,4)} offset:{2048*b}")
        a.e(f"ds_write_b128 v10, {vr(vTL[b]+12,4)} offset:{2048*b+16}")
    a.e("s_waitcnt lgkmcnt(0)")
    for b in range(NB_T):
        a.e(f"ds_read_b128 {vr(vTL[b]+8,4)}, v11 offset:{2048*b}")
        a.e(f"ds_read_b128 {vr(vTL[b]+12,4)}, v11 offset:{2048*b+1024}")
    for b in range(NB_T):
        a.e(f"s_waitcnt lgkmcnt({2*(NB_T-1-b)})")
        a.e(f"buffer_store_dwordx4 {vr(vTL[b]+8,4)}, v{vTS[b]}, {sr(sWS,4)}, 0 offen{SCT}")
        a.e(f"buffer_store_dwordx4 {vr(vTL[b]+12,4)}, v{vTS[b]}, {sr(sWS,4)}, 0 offen offset:1024{SCT}")
    a.e(f"s_add_u32 s{sIT+3}, s{sIT+3}, 1")
    a.e(f"s_cmp_lt_u32 s{sIT+3}, 2")
    a.e("s_cbranch_scc1 K1_TL")
    if DIAG:
        for i in (1, 2, 3, 5):
            stamp(a, i)
    k1flush()
    if ONE:
        a.e("s_waitcnt vmcnt(0)")
        a.e("s_barrier")
        a.e(f"s_cmp_lg_u32 s{sW}, 0")
        a.e("s_cbranch_scc1 P2_ENTRY")
        zpoll("tr", sX, 22, 23)
        a.e(f"v_lshlrev_b32 v22, 11, v{vLANE}")
        a.e(f"s_lshl_b32 s{t1}, s{sRB}, 2")
        a.e(f"s_add_u32 s{t1}, s{t1}, {hx(FL_OFF + FQ_REL + 15*128)}")
        a.e("s_mov_b64 exec, 15")
        a.e(f"buffer_store_dword v21, v22, {sr(sWS,4)}, s{t1} offen sc1")
        a.e("s_mov_b64 exec, -1")
        a.e("s_branch P2_ENTRY")
    a.lab("K1_END")
    a.e("s_endpgm")
    return name, NV, 102 if (DIAG or DBG) else 80, (256, 768, K1_LDS)


K2_LDS = 163840
Y_OFF = 0x1400000
Y_SIZE = 2048 * 640 * 4
WS_ALL = Y_OFF + Y_SIZE


def gen_k2(a):
    name = "k2_attn_kernel"
    if ONE:
        a.raw(".p2align 6")
        a.lab("P2_ENTRY")
    else:
        kernel_header(a, name)
    X2 = os.environ.get("K2X", "")
    sWS, sKV = 12, 16
    sW, sH, sQT, sOFF, sIT, sG = 20, 21, 22, 23, 24, 25
    sLD = 26
    t0, t1, t2, t3 = 28, 29, 30, 31
    sBM = 32
    vLANE = 1
    vL16, vKa, vKb, vV = 2, 3, 4, 5
    vT = 6
    QA, QB = [12, 20], [16, 24]
    KA, KB = 28, 32
    V0, V1 = 36, 40
    P0, P1 = 44, 48
    O = [64, 80]
    S = [96, 112]
    NV = 168
    RG = 81920
    FUSE = "u" not in X2
    k2flush = lambda: (stamp(a, 4), stamp_flush(a, 1, 12, sW, "s4", "s5", 8, 2))

    if not ONE:
        a.e("s_cmp_ge_u32 s2, 256")
        a.e("s_cbranch_scc1 K2_END")
    stamp(a, 0)
    a.e("s_load_dwordx2 s[4:5], s[0:1], 80")
    a.e("s_load_dwordx2 s[6:7], s[0:1], 0")
    a.e("s_load_dwordx2 s[8:9], s[0:1], 56")
    a.e("s_load_dwordx4 s[60:63], s[0:1], 64")
    a.e(f"v_and_b32 v{vLANE}, 63, v0")
    a.e(f"v_lshrrev_b32 v{vT}, 6, v0")
    a.e(f"s_and_b32 s{t0}, s2, 7")
    a.e(f"v_readfirstlane_b32 s{sW}, v{vT}")
    a.e(f"s_lshr_b32 s{t1}, s2, 3")
    a.e(f"s_lshl_b32 s{t2}, s{t0}, 2")
    a.e(f"s_and_b32 s{t3}, s{t1}, 3")
    a.e(f"s_add_u32 s{sH}, s{t2}, s{t3}")
    a.e(f"v_lshlrev_b32 v{vL16}, 4, v{vLANE}")
    a.e(f"s_mul_i32 s{t2}, s{sH}, {KVH}")
    a.e(f"s_add_u32 s{t2}, s{t2}, {hx(KV_OFF)}")
    a.e("s_waitcnt lgkmcnt(0)")
    stamp(a, 5)
    a.e(f"s_add_u32 s{sKV}, s4, s{t2}")
    a.e(f"s_addc_u32 s{sKV+1}, s5, 0")
    a.e(f"s_mov_b32 s{sKV+2}, {KVH}")
    a.e(f"s_mov_b32 s{sKV+3}, 0x00020000")
    sFL = 64

    def gpoll(tag, vaddr, vd):
        a.e(f"s_mov_b32 s{sIT}, 0")
        a.lab(f"GP_{tag}")
        a.e(f"buffer_load_dword v{vd}, v{vaddr}, {sr(sFL,4)}, 0 offen sc1")
        a.e(f"s_add_u32 s{sIT}, s{sIT}, 1")
        a.e("s_waitcnt vmcnt(0)")
        a.e(f"v_cmp_ne_u32 vcc, 1, v{vd}")
        a.e(f"s_cmp_ge_u32 s{sIT}, {POLL_MAX}")
        a.e(f"s_cbranch_scc1 GD_{tag}")
        a.e(f"s_cbranch_vccz GD_{tag}")
        a.e("s_sleep 3")
        a.e(f"s_branch GP_{tag}")
        a.lab(f"GD_{tag}")

    if ONE:
        a.e(f"v_mov_b32 v{vT+5}, {K1_SYN + 8}")
        a.e(f"s_cmp_lg_u32 s{sW}, 0")
        a.e("s_cbranch_scc1 P2_SPIN")
        srd_off(a, sFL, "s4", "s5", FL_OFF, FL_SIZE)
        a.e(f"s_mul_i32 s{t2}, s{sH}, 20")
        a.e(f"s_and_b32 s{t3}, s2, 3")
        a.e(f"s_lshl_b32 s{t3}, s{t3}, 11")
        a.e(f"s_add_u32 s{t3}, s{t3}, {FQ_REL}")
        a.e(f"v_lshrrev_b32 v{vT}, 5, v{vLANE}")
        a.e(f"v_mul_u32_u24 v{vT}, 640, v{vT}")
        a.e(f"v_bfe_u32 v{vT+1}, v{vLANE}, 4, 1")
        a.e(f"v_mul_u32_u24 v{vT+1}, 19, v{vT+1}")
        a.e(f"v_add3_u32 v{vT}, v{vT}, v{vT+1}, s{t2}")
        a.e(f"v_add_u32 v{vT}, 640, v{vT}")
        a.e(f"v_and_b32 v{vT}, 0xffffff80, v{vT}")
        a.e(f"v_and_b32 v{vT+1}, 15, v{vLANE}")
        a.e(f"v_lshl_add_u32 v{vT}, v{vT+1}, 2, v{vT}")
        a.e(f"v_add_u32 v{vT}, s{t3}, v{vT}")
        a.e(f"v_and_b32 v{vT+2}, 1, v{vLANE}")
        a.e(f"v_mul_u32_u24 v{vT+2}, 19, v{vT+2}")
        a.e(f"v_add_u32 v{vT+2}, s{t2}, v{vT+2}")
        a.e(f"v_and_b32 v{vT+2}, 0xffffff80, v{vT+2}")
        a.e(f"v_bfe_u32 v{vT+3}, v{vLANE}, 1, 1")
        a.e(f"s_lshr_b32 s{t2}, s2, 5")
        a.e(f"s_lshl_b32 s{t2}, s{t2}, 1")
        a.e(f"v_add_u32 v{vT+3}, s{t2}, v{vT+3}")
        a.e(f"v_lshl_add_u32 v{vT+2}, v{vT+3}, 2, v{vT+2}")
        a.e(f"v_lshlrev_b32 v{vT+3}, 2, v{vT+1}")
        a.e(f"v_add_u32 v{vT+3}, {15*128}, v{vT+3}")
        a.e(f"v_cmp_gt_u32 vcc, 16, v{vLANE}")
        a.e("s_nop 1")
        a.e(f"v_cndmask_b32 v{vT+2}, v{vT+2}, v{vT+3}, vcc")
        a.e(f"v_add_u32 v{vT+2}, s{t3}, v{vT+2}")
        a.e(f"s_mov_b32 s{sIT}, 0")
        a.lab("GP_go")
        a.e(f"buffer_load_dword v{vT+4}, v{vT}, {sr(sFL,4)}, 0 offen sc1")
        a.e(f"buffer_load_dword v{vT+3}, v{vT+2}, {sr(sFL,4)}, 0 offen sc1")
        a.e(f"s_add_u32 s{sIT}, s{sIT}, 1")
        a.e("s_waitcnt vmcnt(0)")
        a.e(f"v_and_b32 v{vT+4}, v{vT+4}, v{vT+3}")
        a.e(f"v_cmp_ne_u32 vcc, 1, v{vT+4}")
        a.e(f"s_cmp_ge_u32 s{sIT}, {POLL_MAX}")
        a.e("s_cbranch_scc1 GD_go")
        a.e("s_cbranch_vccz GD_go")
        a.e(f"s_sleep {os.environ.get('GSL', '3')}")
        a.e("s_branch GP_go")
        a.lab("GD_go")
        a.e(f"v_mov_b32 v{vT+4}, 1")
        a.e(f"ds_write_b32 v{vT+5}, v{vT+4}")
        a.e("s_branch P2_GO")
        a.lab("P2_SPIN")
        a.e(f"ds_read_b32 v{vT+4}, v{vT+5}")
        a.e("s_waitcnt lgkmcnt(0)")
        a.e(f"v_readfirstlane_b32 s{t2}, v{vT+4}")
        a.e(f"s_cmp_eq_u32 s{t2}, 1")
        a.e("s_cbranch_scc1 P2_GO")
        a.e("s_sleep 1")
        a.e("s_branch P2_SPIN")
        a.lab("P2_GO")
        stamp(a, 5)
    a.e(f"s_cmp_ge_u32 s{sW}, 4")
    a.e("s_cbranch_scc1 K2_ATT")
    sA, sWT, sXX, sB2, sY = 36, 40, 44, 48, 52
    sRB, sCB, sOA, sOW = 56, 57, 58, 59
    vOA, vOW, vXO, vBO, vYO = 3, 4, 5, 12, 13
    F = 16
    ACC = 88

    def fA(s_, mt):
        return F + 36 * s_ + 4 * mt

    def fW(s_, t):
        return F + 36 * s_ + 16 + 4 * t

    def kvdma(n):
        for t in range(n):
            a.e(f"s_mov_b32 m0, s{sLD}")
            a.e(f"s_add_u32 s{sLD}, s{sLD}, 2048")
            a.e(f"buffer_load_dwordx4 v{vL16}, {sr(sKV,4)}, s{sOFF} offen{SC} lds")
            a.e(f"s_add_u32 s{sOFF}, s{sOFF}, 2048")

    dstamp(a, 4)
    dstamp(a, 5, True)
    a.e("s_setprio 3")
    a.e(f"s_and_b32 s{t2}, s{sW}, 1")
    a.e(f"s_lshr_b32 s{t3}, s{sW}, 1")
    a.e(f"s_lshl_b32 s{t3}, s{t3}, 10")
    a.e(f"s_mul_i32 s{sOFF}, s{t2}, {32*KVT}")
    a.e(f"s_add_u32 s{sOFF}, s{sOFF}, s{t3}")
    a.e(f"s_mul_i32 s{sLD}, s{t2}, {RG}")
    a.e(f"s_add_u32 s{sLD}, s{sLD}, s{t3}")
    a.e(f"s_add_u32 m0, s{sLD}, {15*2*KVT}")
    a.e(f"s_add_u32 s{t2}, s{sOFF}, {15*2*KVT + 1280}")
    a.e(f"buffer_load_dwordx4 v{vL16}, {sr(sKV,4)}, s{t2} offen{SC} lds")
    a.e(f"s_cmp_eq_u32 s{t3}, 0")
    a.e(f"s_cselect_b32 exec_hi, 0xff, 0")
    a.e(f"s_cselect_b32 exec_lo, -1, 1")
    a.e(f"s_cselect_b32 s{sBM}, 2048, 0")
    a.e(f"s_add_u32 s{t2}, s{t2}, s{sBM}")
    a.e(f"s_add_u32 s{sBM}, s{sBM}, s{sLD}")
    a.e(f"s_add_u32 m0, s{sBM}, {15*2*KVT}")
    a.e("s_nop 0")
    a.e(f"buffer_load_dwordx4 v{vL16}, {sr(sKV,4)}, s{t2} offen{SC} lds")
    a.e("s_mov_b64 exec, -1")
    NPRE = int(os.environ.get("NPRE", "6"))
    NMID = int(os.environ.get("NMID", "10"))
    kvdma(NPRE)
    a.e(f"s_lshl_b32 s{t0}, s{t0}, 2")
    a.e(f"s_and_b32 s{t2}, s{t1}, 3")
    a.e(f"s_add_u32 s{sRB}, s{t0}, s{t2}")
    a.e(f"s_lshr_b32 s{sCB}, s{t1}, 2")
    srd_off(a, sA, "s4", "s5", AB_OFF + 80 * 32768, AB_SIZE - 80 * 32768)
    srd_off(a, sWT, "s4", "s5", WT_OFF + 80 * 10240, WT_SIZE - 80 * 10240)
    srd(a, sXX, "s6", "s7", 2048 * 640 * 2)
    srd(a, sB2, "s8", "s9", 640 * 2)
    a.e(f"v_and_b32 v{vT}, 15, v{vLANE}")
    a.e(f"v_lshrrev_b32 v{vT+1}, 4, v{vLANE}")
    a.e(f"s_lshl_b32 s{t0}, s{sRB}, 6")
    a.e(f"v_add_u32 v{vT+2}, s{t0}, v{vT}")
    a.e(f"v_lshlrev_b32 v{vOA}, 4, v{vT+2}")
    a.e(f"v_lshl_add_u32 v{vOA}, v{vT+1}, 15, v{vOA}")
    a.e(f"s_mul_i32 s{t1}, s{sCB}, 80")
    a.e(f"v_add_u32 v{vT+3}, s{t1}, v{vT}")
    a.e(f"v_lshlrev_b32 v{vOW}, 4, v{vT+3}")
    a.e(f"v_mul_u32_u24 v{vT+3}, 10240, v{vT+1}")
    a.e(f"v_add_u32 v{vOW}, v{vOW}, v{vT+3}")
    a.e(f"s_lshl_b32 s{sOA}, s{sW}, 17")
    a.e(f"s_mul_i32 s{sOW}, s{sW}, 40960")
    a.e(f"v_lshlrev_b32 v{vBO}, 3, v{vT+1}")
    a.e(f"s_lshl_b32 s{t2}, s{t1}, 1")
    a.e(f"v_add_u32 v{vBO}, s{t2}, v{vBO}")
    a.e(f"s_lshl_b32 s{t2}, s{sW}, 4")
    a.e(f"v_add_u32 v{vT+2}, s{t2}, v{vT+2}")
    a.e(f"v_mul_u32_u24 v{vXO}, 1280, v{vT+2}")
    a.e(f"v_add_u32 v{vXO}, v{vXO}, v{vBO}")
    a.e(f"s_lshl_b32 s{t0}, s{sRB}, 3")
    a.e(f"s_add_u32 s{t0}, s{t0}, s{sCB}")
    a.e(f"s_mul_i32 s{t0}, s{t0}, 20480")
    a.e(f"s_mul_i32 s{t2}, s{sW}, 5120")
    a.e(f"s_add_u32 s{t0}, s{t0}, s{t2}")
    a.e(f"v_add_u32 v{vYO}, s{t0}, v{vL16}")
    for i in range(80):
        a.e(f"v_mov_b32 v{ACC+i}, 0")
    a.e(f"s_mov_b32 s{sIT}, 0")
    a.e(f"s_mov_b32 s{sBM}, {hx(0 if 'B' in X2 else (1 << 1))}")
    a.e(f"v_mov_b32 v{vT}, 0")
    a.e(f"s_waitcnt vmcnt({NPRE})")
    a.e("s_barrier")
    stamp(a, 1)
    HR = 16
    if ONE and HSM == "3":
        a.e(f"v_mov_b32 v{HR+32}, {hx(OOB)}")
        a.e(f"v_mov_b32 v{HR+33}, {hx(OOB)}")
        a.e("s_cmp_eq_u32 s72, 0")
        a.e("s_cbranch_scc1 K2_NOHR")
        a.e(f"s_mul_i32 s{t2}, s{sW}, 8704")
        a.e(f"s_add_u32 s{t2}, s{t2}, {HDUMP}")
        a.e(f"v_add_u32 v{vT+1}, s{t2}, v{vL16}")
        for q in range(8):
            a.e(f"ds_read_b128 {vr(HR+4*q,4)}, v{vT+1} offset:{1024*q}")
        a.e(f"v_lshlrev_b32 v{vT+1}, 3, v{vLANE}")
        a.e(f"v_add_u32 v{vT+1}, s{t2}, v{vT+1}")
        a.e(f"ds_read_b64 {vr(HR+32,2)}, v{vT+1} offset:8192")
        a.lab("K2_NOHR")
    kvdma(NMID)
    a.e(f"s_waitcnt vmcnt({NPRE + NMID - 6}) lgkmcnt(0)")
    a.e("s_barrier")
    kvdma(38 - NPRE - NMID)
    a.e(f"s_lshr_b32 s{t3}, s{sW}, 1")
    a.e(f"s_cmp_eq_u32 s{t3}, 0")
    a.e(f"s_cselect_b32 exec_hi, 0xffffff, 0")
    a.e(f"s_cselect_b32 exec_lo, -1, 1")
    a.e(f"s_cselect_b32 s{t3}, 0, 2048")
    a.e(f"s_sub_u32 s{sLD}, s{sLD}, s{t3}")
    a.e(f"s_sub_u32 s{sOFF}, s{sOFF}, s{t3}")
    kvdma(1)
    a.e("s_mov_b64 exec, -1")

    def loads(s_):
        r = [f"buffer_load_dwordx4 {vr(fA(s_,mt),4)}, v{vOA}, {sr(sA,4)}, s{sOA} offen offset:{256*mt}{SC}" for mt in range(4)]
        for t in range(5):
            r.append(f"buffer_load_dwordx4 {vr(fW(s_,t),4)}, v{vOW}, {sr(sWT,4)}, s{sOW} offen offset:{256*t}{SC}")
        r.append(f"s_add_u32 s{sOA}, s{sOA}, {4*131072}")
        r.append(f"s_add_u32 s{sOW}, s{sOW}, {4*40960}")
        return r

    a.e("s_waitcnt vmcnt(29)")
    a.e("s_barrier")
    if ONE and HSM == "3":
        srd(a, sWS, "s4", "s5", WS_END)
        for q in range(8):
            a.e(f"buffer_store_dwordx4 {vr(HR+4*q,4)}, v{HR+33 if q < 4 else HR+32}, {sr(sWS,4)}, 0 offen offset:{256*(q&3)} sc1")
    if ONE:
        srd_off(a, sFL, "s4", "s5", FL_OFF, FL_SIZE)
        a.e(f"v_min_u32 v{vT+1}, 13, v{vLANE}")
        a.e(f"v_lshlrev_b32 v{vT+1}, 2, v{vT+1}")
        a.e(f"s_lshr_b32 s{t2}, s{sRB}, 1")
        a.e(f"s_lshl_b32 s{t2}, s{t2}, 7")
        a.e(f"s_add_u32 s{t2}, s{t2}, {FH_REL}")
        a.e(f"v_add_u32 v{vT+1}, s{t2}, v{vT+1}")
        a.e("s_waitcnt vmcnt(0)")
        a.e("s_barrier")
        if HSM == "3":
            a.e(f"s_cmp_lg_u32 s{sW}, 0")
            a.e("s_cbranch_scc1 K2_NOHF")
            a.e("s_cmp_eq_u32 s72, 0")
            a.e("s_cbranch_scc1 K2_NOHF")
            a.e(f"v_mov_b32 v{vT+4}, 1")
            a.e("s_mov_b64 exec, 1")
            a.e(f"buffer_store_dword v{vT+4}, v{vT}, {sr(sFL,4)}, s72 offen sc1")
            a.lab("K2_NOHF")
        a.e("s_mov_b64 exec, 0xffff")
        gpoll("h", vT + 1, vT + 4)
        a.e("s_mov_b64 exec, -1")
        a.e(f"s_mov_b32 s{sIT}, 0")
        for s_ in range(2):
            for ins in loads(s_):
                a.e(ins)
    else:
        for s_ in range(2):
            for ins in loads(s_):
                a.e(ins)
        a.e("s_waitcnt vmcnt(18)")
        a.e("s_barrier")
    stamp(a, 2)
    a.e(f"s_setprio {3 if 'Z' in X2 else (1 if 'y' in X2 else 0)}")
    a.raw(".p2align 3")
    a.lab("K2_GL")
    for s_ in range(2):
        ld = loads(s_)
        a.e("s_waitcnt vmcnt(9)")
        for t in range(5):
            for mt in range(4):
                A_ = ACC + 20 * mt + 4 * t
                a.e(f"v_mfma_f32_16x16x32_bf16 {vr(A_,4)}, {vr(fW(s_,t),4)}, {vr(fA(s_,mt),4)}, {vr(A_,4)}")
                if t == 4:
                    a.e(ld[mt])
            a.e(ld[4 + t])
        a.e(ld[9]); a.e(ld[10])
    a.e(f"s_add_u32 s{sIT}, s{sIT}, 1")
    a.e(f"s_cmp_lt_u32 s{sIT}, 7")
    a.e("s_cbranch_scc1 K2_GL")
    stamp(a, 3)
    a.e("s_setprio 3")
    a.e("s_waitcnt vmcnt(0)")
    XR = 68
    for q in range(5):
        a.e(f"buffer_load_dwordx2 {vr(XR+2*q,2)}, v{vXO}, {sr(sXX,4)}, 0 offen offset:{32*q}")
        a.e(f"buffer_load_dwordx2 {vr(XR+10+2*q,2)}, v{vBO}, {sr(sB2,4)}, 0 offen offset:{32*q}")
    srd_off(a, sWT, "s4", "s5", WT_OFF, 80 * 10240)
    srd_off(a, sA, "s4", "s5", AB_OFF, 80 * 32768)
    srd(a, sY, "s60", "s61", 2048 * 640 * 2)
    srd_off(a, sFL, "s4", "s5", FL_OFF, FL_SIZE)
    a.e(f"s_mul_i32 s{sOW}, s{sW}, {5*40960}")
    a.e(f"s_lshr_b32 s{t0}, s{sW}, 1")
    a.e(f"s_mul_i32 s{t0}, s{t0}, {RG}")
    a.e(f"s_and_b32 s{t1}, s{sW}, 1")
    a.e(f"s_mul_i32 s{t1}, s{t1}, 25600")
    a.e(f"s_add_u32 s{t0}, s{t0}, s{t1}")
    if 'B' not in X2:
        a.e("s_barrier")
    for r in range(5):
        for q in range(5):
            a.e(f"s_add_u32 m0, s{t0}, {r*5120 + q*768}")
            a.e("s_nop 0")
            a.e(f"buffer_load_dwordx4 v{vOW}, {sr(sWT,4)}, s{sOW} offen offset:{256*q}{SC} lds")
        a.e(f"s_add_u32 s{sOW}, s{sOW}, 40960")
    a.e(f"s_lshl_b32 s{t2}, s{sW}, 8")
    a.e(f"v_add_u32 v{vOA}, s{t2}, v{vOA}")
    a.e(f"v_and_b32 v{vYO}, 0x7fff, v{vOA}")
    a.e(f"v_lshrrev_b32 v{vYO}, 1, v{vYO}")
    a.e(f"v_and_b32 v{vBO}, 0xffff8000, v{vOA}")
    a.e(f"v_add_u32 v{vYO}, v{vYO}, v{vBO}")
    a.e(f"v_add_u32 v{vBO}, 16384, v{vYO}")
    a.e(f"v_add_u32 v{vT+2}, {RG}, v{vL16}")
    a.e(f"v_mov_b32 v{vT+1}, 1")
    a.e(f"s_lshr_b32 s{t2}, s2, 5")
    a.e(f"s_lshl_b32 s{t2}, s{t2}, 5")
    a.e(f"s_add_u32 s{t2}, s{t2}, s{sH}")
    a.e(f"s_lshl_b32 s{t2}, s{t2}, 2")
    a.e(f"s_lshr_b32 s{t3}, s{sRB}, 2")
    a.e(f"s_lshl_b32 s{t3}, s{t3}, 7")
    a.e(f"v_lshlrev_b32 v{vT+4}, 2, v{vLANE}")
    a.e(f"v_add_u32 v{vT+4}, s{t3}, v{vT+4}")
    Y = 16
    for m in range(4):
        a.e(f"s_cmp_lg_u32 s{sW}, {m}")
        a.e(f"s_cbranch_scc1 K2_KP{m}")
        for i in range(20):
            a.e(f"v_mov_b32 v{Y+i}, v{ACC+20*m+i}")
        a.lab(f"K2_KP{m}")
    a.e("s_waitcnt vmcnt(25)")
    U = 36
    for q in range(5):
        for k, src in enumerate((XR + 2 * q, XR + 10 + 2 * q)):
            u = U + 4 * k
            a.e(f"v_lshlrev_b32 v{u}, 16, v{src}")
            a.e(f"v_and_b32 v{u+1}, 0xffff0000, v{src}")
            a.e(f"v_lshlrev_b32 v{u+2}, 16, v{src+1}")
            a.e(f"v_and_b32 v{u+3}, 0xffff0000, v{src+1}")
        for i in range(4):
            a.e(f"v_add_f32 v{Y+4*q+i}, v{Y+4*q+i}, v{U+i}")
        for i in range(4):
            a.e(f"v_add_f32 v{Y+4*q+i}, v{Y+4*q+i}, v{U+4+i}")
    a.e("s_barrier")
    a.e("s_waitcnt vmcnt(0)")
    a.e("s_barrier")
    dstamp(a, 6)
    stamp(a, 1)
    a.e(f"s_cmp_lg_u32 s{sW}, 0")
    a.e("s_cbranch_scc1 K2_NF")
    a.e("s_mov_b64 exec, 1")
    a.e(f"buffer_store_dword v{vT+1}, v{vT}, {sr(sFL,4)}, s{t2} offen sc1")
    a.e("s_mov_b64 exec, -1")
    a.lab("K2_NF")

    def slot_addr(sdst, s_slot):
        a.e(f"s_mul_i32 s{sdst}, s{s_slot}, 5120")
        a.e(f"s_cmp_ge_u32 s{s_slot}, 6")
        a.e(f"s_cselect_b32 s{s_slot}, {RG - 6*5120 + 51200}, 51200")
        a.e(f"s_add_u32 s{sdst}, s{sdst}, s{s_slot}")

    for m in range(4):
        a.e(f"s_cmp_eq_u32 s{sW}, {m}")
        a.e(f"s_cbranch_scc1 K2_SK{m}")
        a.e(f"s_cmp_gt_u32 s{sW}, {m}")
        a.e(f"s_cselect_b32 s{t1}, {3*m-1}, {3*m}")
        a.e(f"s_add_u32 s{t1}, s{t1}, s{sW}")
        slot_addr(t0, t1)
        a.e(f"v_add_u32 v{vT+3}, s{t0}, v{vL16}")
        for q in range(5):
            a.e(f"ds_write_b128 v{vT+3}, {vr(ACC+20*m+4*q,4)} offset:{1024*q}")
        a.lab(f"K2_SK{m}")
    a.e(f"s_mul_i32 s{t1}, s{sW}, 3")
    slot_addr(t0, t1)
    a.e(f"v_add_u32 v{vT+3}, s{t0}, v{vL16}")
    a.e("s_waitcnt lgkmcnt(0)")
    a.e("s_barrier")
    for p in range(3):
        for q in range(5):
            a.e(f"ds_read_b128 {vr(ACC+20*p+4*q,4)}, v{vT+3} offset:{5120*p+1024*q}")
    for p in range(3):
        a.e(f"s_waitcnt lgkmcnt({5*(2-p)})")
        for i in range(20):
            a.e(f"v_add_f32 v{Y+i}, v{Y+i}, v{ACC+20*p+i}")
    a.e(f"s_cmp_lg_u32 s{sW}, 0")
    a.e("s_cbranch_scc1 K2_PW")
    a.e("s_mov_b32 exec_hi, 0")
    gpoll("o", vT + 4, vT + 3)
    a.e("s_mov_b64 exec, -1")
    a.lab("K2_PW")
    a.e("s_barrier")
    dstamp(a, 7)
    stamp(a, 2)
    YA = [Y + 4 * q for q in range(5)]
    FAr = [88 + 4 * i for i in range(20)]
    FBr = [[36 + 4 * t for t in range(5)], [56 + 4 * t for t in range(5)]]
    a.e(f"s_mov_b32 s{sOA}, 0")
    for ks in range(20):
        if ks < 16:
            a.e(f"buffer_load_dwordx4 {vr(FAr[ks],4)}, v{vOA}, {sr(sA,4)}, s{sOA} offen sc1")
        else:
            a.e(f"buffer_load_dwordx2 {vr(FAr[ks],2)}, v{vYO}, {sr(sA,4)}, s{sOA} offen sc1")
            a.e(f"buffer_load_dwordx2 {vr(FAr[ks]+2,2)}, v{vBO}, {sr(sA,4)}, s{sOA} offen sc1")
        a.e(f"s_add_u32 s{sOA}, s{sOA}, 131072")

    def rdB(ks):
        base, off = (vL16, ks * 5120) if ks < 10 else (vT + 2, (ks - 10) * 5120)
        return [f"ds_read_b128 {vr(FBr[ks&1][t],4)}, v{base} offset:{off+1024*t}" for t in range(5)]

    for ins in rdB(0):
        a.e(ins)
    for ks in range(20):
        if ks < 19:
            for ins in rdB(ks + 1):
                a.e(ins)
        a.e(f"s_waitcnt vmcnt({23-ks if ks < 16 else 2*(19-ks)}) lgkmcnt({5 if ks < 19 else 0})")
        for t in range(5):
            a.e(f"v_mfma_f32_16x16x32_bf16 {vr(YA[t],4)}, {vr(FBr[ks&1][t],4)}, {vr(FAr[ks],4)}, {vr(YA[t],4)}")
    a.e("s_nop 7")
    for t in range(5):
        A_ = YA[t]
        a.e(f"v_cvt_pk_bf16_f32 v{A_}, v{A_}, v{A_+1}")
        a.e(f"v_cvt_pk_bf16_f32 v{A_+1}, v{A_+2}, v{A_+3}")
        a.e(f"buffer_store_dwordx2 {vr(A_,2)}, v{vXO}, {sr(sY,4)}, 0 offen offset:{32*t}")
    dstamp(a, 8)
    k2flush()
    a.e("s_endpgm")

    a.lab("K2_ATT")
    vKa0, vKb0, vV0 = 52, 53, 54
    srd(a, sWS, "s4", "s5", WS_END)
    if "C" in X2:
        NPF = int(os.environ.get("NPF", "8"))
        a.e(f"s_cmp_ge_u32 s2, {NPF}")
        a.e("s_cbranch_scc1 K2_NOCP")
        a.e(f"s_cmp_ge_u32 s{sW}, 6")
        a.e("s_cbranch_scc1 K2_NOCP")
        a.e(f"s_and_b32 s{t0}, s{sW}, 1")
        code_prefetch(a, "k2", "k2_attn_kernel", "CODE_END", 36, t0, vLANE, vT, 60)
        a.lab("K2_NOCP")
    a.e(f"s_lshr_b32 s{sG}, s{sW}, 3")
    a.e(f"s_lshr_b32 s{t1}, s{t1}, 2")
    a.e(f"s_lshl_b32 s{t1}, s{t1}, 3")
    a.e(f"s_and_b32 s{t2}, s{sW}, 3")
    a.e(f"s_lshl_b32 s{t2}, s{t2}, 1")
    a.e(f"s_add_u32 s{sQT}, s{t1}, s{t2}")
    a.e(f"s_mul_i32 s{t0}, s{sH}, 81920")
    a.e(f"s_mul_i32 s{t1}, s{sQT}, 1280")
    a.e(f"s_add_u32 s{t0}, s{t0}, s{t1}")
    if QB_OFF:
        a.e(f"s_add_u32 s{t0}, s{t0}, {hx(QB_OFF)}")
    a.e(f"v_and_b32 v{vT}, 31, v{vLANE}")
    a.e(f"v_lshrrev_b32 v{vT+1}, 5, v{vLANE}")
    a.e(f"v_lshlrev_b32 v{vKb0}, 3, v{vT}")
    a.e(f"v_lshl_add_u32 v{vT+2}, v{vT+1}, 30, v{vKb0}")
    a.e(f"v_add_u32 v{vKb0}, 1024, v{vKb0}")
    a.e(f"v_lshlrev_b32 v{vKa0}, 3, v{vLANE}")
    a.e(f"v_min_u32 v{vT+3}, 20, v{vT}")
    a.e(f"v_bfe_u32 v{vT+4}, v{vT+3}, 1, 3")
    a.e(f"v_xor_b32 v{vT+4}, v{vT+4}, v{vT+1}")
    a.e(f"v_lshlrev_b32 v{vT+4}, 4, v{vT+4}")
    a.e(f"v_lshl_add_u32 v{vV0}, v{vT+3}, 7, v{vT+4}")
    vVV = [vV, 18, 19, 26]
    K2A, V0B, V1B, K2B = 56, 60, 132, 130
    for i in range(1, 4):
        a.e(f"v_xor_b32 v{vVV[i]}, {32*i}, v{vV0}")
    a.e(f"s_mul_i32 s{sOFF}, s{sG}, {32*KVT}")
    a.e(f"s_add_u32 s{sOFF}, s{sOFF}, {30*KVT}")
    a.e(f"s_add_u32 s{t1}, s{sOFF}, {koff(1)}")
    a.e(f"buffer_load_dwordx2 {vr(QA[0],2)}, v{vKa0}, {sr(sWS,4)}, s{t0} offen{SC}")
    a.e(f"buffer_load_dwordx2 {vr(QA[0]+2,2)}, v{vKa0}, {sr(sWS,4)}, s{t0} offen offset:512{SC}")
    a.e(f"buffer_load_dwordx2 {vr(QB[0],2)}, v{vT+2}, {sr(sWS,4)}, s{t0} offen offset:1024{SC}")
    a.e(f"buffer_load_dwordx2 {vr(KA,2)}, v{vKa0}, {sr(sKV,4)}, s{sOFF} offen{SC}")
    a.e(f"buffer_load_dwordx2 {vr(KA+2,2)}, v{vKa0}, {sr(sKV,4)}, s{sOFF} offen offset:512{SC}")
    a.e(f"buffer_load_dwordx2 {vr(KB,2)}, v{vKb0}, {sr(sKV,4)}, s{sOFF} offen{SC}")
    a.e(f"buffer_load_dwordx2 {vr(QA[1],2)}, v{vKa0}, {sr(sWS,4)}, s{t0} offen offset:1280{SC}")
    a.e(f"buffer_load_dwordx2 {vr(QA[1]+2,2)}, v{vKa0}, {sr(sWS,4)}, s{t0} offen offset:{1280+512}{SC}")
    a.e(f"buffer_load_dwordx2 {vr(QB[1],2)}, v{vT+2}, {sr(sWS,4)}, s{t0} offen offset:2304{SC}")
    a.e(f"buffer_load_dwordx2 {vr(K2A,2)}, v{vKa0}, {sr(sKV,4)}, s{t1} offen{SC}")
    a.e(f"buffer_load_dwordx2 {vr(K2A+2,2)}, v{vKa0}, {sr(sKV,4)}, s{t1} offen offset:512{SC}")
    a.e(f"buffer_load_dwordx2 {vr(K2B,2)}, v{vKb0}, {sr(sKV,4)}, s{t1} offen{SC}")
    a.e(f"s_mul_i32 s{t1}, s{sG}, {RG}")
    a.e(f"v_add_u32 v{vKa}, s{t1}, v{vKa0}")
    a.e(f"v_add_u32 v{vKb}, s{t1}, v{vKb0}")
    a.e(f"v_add_u32 v{vV}, s{t1}, v{vV0}")
    for i in range(1, 4):
        a.e(f"v_add_u32 v{vVV[i]}, s{t1}, v{vVV[i]}")
    for i in range(4):
        a.e(f"v_add_u32 v{vT+i}, {15*2*KVT}, v{vVV[i]}")
    for i in range(32):
        a.e(f"v_mov_b32 v{O[0]+i}, 0")
    a.e(f"s_mov_b32 s{sIT}, 0")
    a.e(f"s_mov_b32 s{sBM}, {hx((1 << 1) | (1 << 2) | (1 << 9))}")
    a.e("s_waitcnt vmcnt(6)")
    a.e(f"v_mfma_f32_32x32x16_bf16 {vr(S[0],16)}, {vr(KA,4)}, {vr(QA[0],4)}, 0")
    a.e(f"v_mfma_f32_32x32x8_bf16 {vr(S[0],16)}, {vr(KB,2)}, {vr(QB[0],2)}, {vr(S[0],16)}")
    a.e("s_waitcnt vmcnt(0)")
    a.e("s_nop 7")

    def rdKa(t):
        return [f"ds_read_b64 {vr(KA,2)}, v{vKa} offset:{koff(t)}",
                f"ds_read_b64 {vr(KA+2,2)}, v{vKa} offset:{koff(t)+512}"]

    def rdKb(t):
        return [f"ds_read_b64 {vr(KB,2)}, v{vKb} offset:{koff(t)}"]

    def rdV(m, t):
        return [f"ds_read_b128 {vr(V0 if m == 0 else V1,4)}, v{vVV[2*(t&1)+m]} offset:{voff(t)}"]

    def movs(dst, src, n):
        return [f"v_mov_b32 v{dst+i}, v{src+i}" for i in range(n)]

    def item(x, lt, mode=""):
        Sc, Sn = S[x], S[x ^ 1]

        def ex(lo):
            for i in range(lo, lo + 4):
                a.e(f"v_exp_f32 v{Sc+i}, v{Sc+i}")

        def cv(P, lo):
            a.e(f"v_cvt_pk_bf16_f32 v{P}, v{Sc+lo}, v{Sc+lo+1}")
            a.e(f"v_cvt_pk_bf16_f32 v{P+1}, v{Sc+lo+2}, v{Sc+lo+3}")

        def em(l):
            for ins in l:
                a.e(ins)

        if x == 1 and mode != "1":
            a.e(f"s_waitcnt lgkmcnt({1 if mode == '2' else 2})")
        a.e(f"v_mfma_f32_32x32x16_bf16 {vr(Sn,16)}, {vr(KA,4)}, {vr(QA[x^1],4)}, 0")
        if x == 0:
            em(movs(KA, K2A, 4) if mode == "1" else rdKa(lt + 1))
        ex(0)
        cv(P0, 0)
        if x == 1 and mode != "1":
            a.e(f"s_waitcnt lgkmcnt({0 if mode == '2' else 1})")
        a.e(f"v_mfma_f32_32x32x8_bf16 {vr(Sn,16)}, {vr(KB,2)}, {vr(QB[x^1],2)}, {vr(Sn,16)}")
        if x == 0:
            em(movs(KB, K2B, 2) if mode == "1" else rdKb(lt + 1))
        ex(8)
        cv(P0 + 2, 8)
        if mode == "1" and x == 0:
            a.e("s_barrier")
            stamp(a, 1)
            for i, dst in enumerate((V0, V1, V0B, V1B)):
                a.e(f"ds_read_b128 {vr(dst,4)}, v{vT+i}")
        if not (mode == "1" and x == 0):
            if x == 1 and mode == "":
                a.e("s_waitcnt lgkmcnt(0)")
            a.e(f"v_mfma_f32_32x32x16_bf16 {vr(O[x^1],16)}, {vr(V1,4)}, {vr(P1,4)}, {vr(O[x^1],16)}")
            if x == 0:
                em(movs(V1, V1B, 4) if mode == "2" else rdV(1, lt))
        ex(4)
        cv(P1, 4)
        if x == 0 and mode == "":
            a.e("s_waitcnt lgkmcnt(4)")
        if x == 0 and mode == "1":
            a.e("s_waitcnt lgkmcnt(0)")
        a.e(f"v_mfma_f32_32x32x16_bf16 {vr(O[x],16)}, {vr(V0,4)}, {vr(P0,4)}, {vr(O[x],16)}")
        if x == 1:
            em(movs(V0, V0B, 4) if mode == "1" else rdV(0, lt + 1))
        ex(12)
        cv(P1 + 2, 12)

    BUNCH = False
    a.e("s_setprio 2")
    item(0, -2, "1")
    item(1, -2, "1")
    a.e("s_barrier")
    if ONE and HSM == "2":
        a.e("s_cmp_eq_u32 s72, 0")
        a.e("s_cbranch_scc1 K2_NOHS")
        for p in range(2):
            for mt in range(4):
                src = (152 if p == 0 else 136) + 4 * mt
                a.e(f"buffer_store_dwordx4 {vr(src,4)}, v{128+p}, {sr(sWS,4)}, 0 offen offset:{256*mt} sc1")
        a.lab("K2_NOHS")
    item(0, -1, "2")
    item(1, -1, "2")
    a.raw(".p2align 6")
    a.lab("K2_LOOP")
    NT = 6
    for t in range(NT):
        if t % 3 == 0:
            k = t // 3
            a.e(f"s_bitcmp1_b32 s{sBM}, s{sIT}")
            a.e(f"s_cbranch_scc1 K2_BAR{k}")
            a.lab(f"K2_BODY{k}")
            a.e(f"s_add_u32 s{sIT}, s{sIT}, 1")
        for x in range(2):
            a.e(f"s_setprio {2 - x}")
            item(x, t)
    a.e(f"v_add_u32 v{vKa}, {KVT*NT}, v{vKa}")
    a.e(f"v_add_u32 v{vKb}, {KVT*NT}, v{vKb}")
    for i in range(4):
        a.e(f"v_add_u32 v{vVV[i]}, {KVT*NT}, v{vVV[i]}")
    a.e(f"s_cmp_lt_u32 s{sIT}, 10")
    a.e("s_cbranch_scc1 K2_LOOP")
    stamp(a, 3)
    a.e("s_nop 1")
    if BUNCH:
        a.e(f"v_mfma_f32_32x32x16_bf16 {vr(O[1],16)}, {vr(V0,4)}, {vr(PP[1],4)}, {vr(O[1],16)}")
        a.e(f"v_mfma_f32_32x32x16_bf16 {vr(O[1],16)}, {vr(V1,4)}, {vr(PP[1]+4,4)}, {vr(O[1],16)}")
    else:
        a.e(f"v_mfma_f32_32x32x16_bf16 {vr(O[1],16)}, {vr(V1,4)}, {vr(P1,4)}, {vr(O[1],16)}")
    a.e(f"s_and_b32 s{t2}, s{sW}, 3")
    a.e(f"s_lshl_b32 s{t2}, s{t2}, 12")
    a.e(f"s_add_u32 s{t2}, s{t2}, 51200")
    a.e(f"s_mul_i32 s{t0}, s{sG}, {RG}")
    a.e(f"s_add_u32 s{t0}, s{t0}, s{t2}")
    a.e(f"s_xor_b32 s{t1}, s{sG}, 1")
    a.e(f"s_mul_i32 s{t1}, s{t1}, {RG}")
    a.e(f"s_add_u32 s{t1}, s{t1}, s{t2}")
    a.e(f"v_add_u32 v{vT}, s{t0}, v{vL16}")
    a.e(f"v_add_u32 v{vT+1}, s{t1}, v{vL16}")
    a.e(f"s_add_u32 s{sQT}, s{sQT}, s{sG}")
    a.e(f"s_cmp_eq_u32 s{sG}, 1")
    a.e("s_cbranch_scc1 K2_X1")
    a.e("s_nop 3")
    for q in range(4):
        a.e(f"ds_write_b128 v{vT}, {vr(O[1]+4*q,4)} offset:{1024*q}")
    a.e("s_branch K2_X2")
    a.lab("K2_X1")
    for q in range(4):
        a.e(f"ds_write_b128 v{vT}, {vr(O[0]+4*q,4)} offset:{1024*q}")
    a.e("s_nop 1")
    for i in range(16):
        a.e(f"v_mov_b32 v{O[0]+i}, v{O[1]+i}")
    for i in range(4):
        a.e(f"v_mov_b32 v{QA[0]+i}, v{QA[1]+i}")
    for i in range(2):
        a.e(f"v_mov_b32 v{QB[0]+i}, v{QB[1]+i}")
    a.lab("K2_X2")
    OO = O[0]
    sS0, sS1 = 34, 35
    a.e(f"s_lshl_b32 s{t0}, s{sH}, 16")
    a.e(f"s_add_u32 s{sS0}, s{t0}, {hx(AB_OFF)}")
    a.e(f"s_lshl_b32 s{t0}, s{sH}, 14")
    a.e(f"s_add_u32 s{sS1}, s{t0}, {hx(AB_OFF + 64*32768)}")
    a.e(f"s_lshl_b32 s{t3}, s{sQT}, 9")
    vSA0, vSA1 = 56, 57
    a.e(f"v_and_b32 v{vT+2}, 31, v{vLANE}")
    a.e(f"v_lshlrev_b32 v{vT+2}, 4, v{vT+2}")
    a.e(f"v_add_u32 v{vT+2}, s{t3}, v{vT+2}")
    a.e(f"v_lshrrev_b32 v{vT+3}, 5, v{vLANE}")
    a.e(f"v_lshl_add_u32 v{vSA0}, v{vT+3}, 15, v{vT+2}")
    a.e(f"v_lshrrev_b32 v{vT+2}, 1, v{vT+2}")
    a.e(f"v_lshl_add_u32 v{vSA1}, v{vT+3}, 30, v{vT+2}")
    a.e("s_waitcnt lgkmcnt(0)")
    a.e("s_barrier")
    for q in range(4):
        a.e(f"ds_read_b128 {vr(S[0]+4*q,4)}, v{vT+1} offset:{1024*q}")
    a.e(f"v_mov_b32 v{vT+3}, {hx(f32(2.0**-60))}")
    a.e(f"v_mov_b32 v{vT+4}, {hx(f32(2.0**100))}")
    a.e(f"v_mov_b32 v{vT+5}, {hx(f32(2.0**120))}")
    a.e("s_waitcnt lgkmcnt(0)")
    for i in range(13):
        a.e(f"v_add_f32 v{OO+i}, v{OO+i}, v{S[0]+i}")
    a.e(f"v_max3_f32 v{vT+1}, abs(v{OO}), abs(v{OO+1}), abs(v{OO+2})")
    for i in range(3, 11, 2):
        a.e(f"v_max3_f32 v{vT+1}, abs(v{OO+i}), abs(v{OO+i+1}), v{vT+1}")
    a.e(f"v_max_f32 v{vT+1}, abs(v{OO+11}), v{vT+1}")
    a.e(f"v_add_f32 v{vT+2}, v{OO}, v{OO+1}")
    for i in range(2, 12):
        a.e(f"v_add_f32 v{vT+2}, v{vT+2}, v{OO+i}")
    a.e(f"v_cmp_gt_f32 {sr(t0,2)}, v{OO+12}, v{vT+3}")
    a.e(f"v_cmp_lt_f32 {sr(t2,2)}, v{OO+12}, v{vT+4}")
    a.e(f"v_cmp_lt_f32 vcc, v{vT+1}, v{vT+5}")
    a.e("s_nop 1")
    a.e(f"s_and_b64 {sr(t0,2)}, {sr(t0,2)}, {sr(t2,2)}")
    a.e(f"s_and_b64 {sr(t0,2)}, {sr(t0,2)}, vcc")
    a.e(f"v_cmp_o_f32 vcc, v{vT+2}, v{vT+2}")
    a.e("s_nop 1")
    a.e(f"s_and_b64 {sr(t0,2)}, {sr(t0,2)}, vcc")
    a.e(f"s_cmp_eq_u64 {sr(t0,2)}, -1")
    if 'B' not in X2:
        a.e("s_cbranch_scc0 K2_SLOW")
    a.lab("K2_FIN")
    a.e(f"v_rcp_f32 v{vT}, v{OO+12}")
    a.e("s_nop 0")
    for i in range(12):
        a.e(f"v_mul_f32 v{OO+i}, v{OO+i}, v{vT}")
    for i in range(6):
        a.e(f"v_cvt_pk_bf16_f32 v{OO+i}, v{OO+2*i}, v{OO+2*i+1}")
    sc = " sc1" if FUSE else ""
    a.e(f"buffer_store_dwordx4 {vr(OO,4)}, v{vSA0}, {sr(sWS,4)}, s{sS0} offen{sc}")
    a.e(f"buffer_store_dwordx2 {vr(OO+4,2)}, v{vSA1}, {sr(sWS,4)}, s{sS1} offen{sc}")
    if FUSE:
        a.e("s_waitcnt vmcnt(0)")
        a.e("s_barrier")
    k2flush()
    a.lab("K2_END")
    a.e("s_endpgm")
    a.lab("K2_BAR1")
    a.e("s_barrier")
    stamp(a, 2)
    a.e("s_branch K2_BODY1")
    a.lab("K2_BAR0")
    a.e("s_waitcnt vmcnt(0)")
    a.e("s_barrier")
    stamp(a, 2)
    if ONE and HSM != "3":
        a.e("s_cmp_eq_u32 s72, 0")
        a.e("s_cbranch_scc1 K2_BODY0")
        a.e(f"s_cmp_lg_u32 s{sW}, 8")
        a.e("s_cbranch_scc1 K2_BODY0")
        a.e("v_mov_b32 v128, 0")
        a.e("v_mov_b32 v129, 1")
        a.e("s_mov_b64 exec, 1")
        a.e(f"buffer_store_dword v129, v128, {sr(sWS,4)}, s72 offen sc1")
        a.e("s_mov_b64 exec, -1")
        a.e("s_mov_b32 s72, 0")
    a.e("s_branch K2_BODY0")
    a.lab("K2_SLOW")
    vM = 58
    Sc = S[0]
    for ps in range(2):
        if ps == 0:
            a.e(f"v_mov_b32 v{vM}, 0xff800000")
        else:
            for i in range(16):
                a.e(f"v_mov_b32 v{OO+i}, 0")
        a.e(f"s_mov_b32 s{sOFF}, 0")
        a.e(f"s_mov_b32 s{sIT}, 0")
        a.lab(f"K2_SL{ps}")
        a.e(f"s_bitcmp1_b32 s{sIT}, 0")
        a.e(f"s_cselect_b32 s{t0}, 1344, 0")
        a.e(f"s_cselect_b32 s{t1}, {1280-KVT}, 1280")
        a.e(f"s_cselect_b32 s{t2}, 64, 0")
        a.e(f"s_add_u32 s{t0}, s{t0}, s{sOFF}")
        a.e(f"s_add_u32 s{t1}, s{t1}, s{sOFF}")
        a.e(f"s_add_u32 s{sIT}, s{sIT}, 1")
        a.e(f"v_xor_b32 v{vT+1}, s{t2}, v{vV0}")
        a.e(f"v_xor_b32 v{vT+2}, 32, v{vT+1}")
        a.e(f"buffer_load_dwordx2 {vr(KA,2)}, v{vKa0}, {sr(sKV,4)}, s{t0} offen{SC}")
        a.e(f"buffer_load_dwordx2 {vr(KA+2,2)}, v{vKa0}, {sr(sKV,4)}, s{t0} offen offset:512{SC}")
        a.e(f"buffer_load_dwordx2 {vr(KB,2)}, v{vKb0}, {sr(sKV,4)}, s{t0} offen{SC}")
        if ps == 1:
            a.e(f"buffer_load_dwordx4 {vr(V0,4)}, v{vT+1}, {sr(sKV,4)}, s{t1} offen{SC}")
            a.e(f"buffer_load_dwordx4 {vr(V1,4)}, v{vT+2}, {sr(sKV,4)}, s{t1} offen{SC}")
        a.e("s_waitcnt vmcnt(0)")
        a.e(f"v_mfma_f32_32x32x16_bf16 {vr(Sc,16)}, {vr(KA,4)}, {vr(QA[0],4)}, 0")
        a.e(f"v_mfma_f32_32x32x8_bf16 {vr(Sc,16)}, {vr(KB,2)}, {vr(QB[0],2)}, {vr(Sc,16)}")
        a.e("s_nop 15")
        a.e("s_nop 3")
        if ps == 0:
            for i in range(0, 16, 2):
                a.e(f"v_max3_f32 v{vM}, v{Sc+i}, v{Sc+i+1}, v{vM}")
        else:
            for i in range(16):
                a.e(f"v_sub_f32 v{Sc+i}, v{Sc+i}, v{vM}")
            for i in range(16):
                a.e(f"v_exp_f32 v{Sc+i}, v{Sc+i}")
            a.e("s_nop 0")
            for i, g_ in enumerate((0, 2, 1, 3)):
                a.e(f"v_cvt_pk_bf16_f32 v{P0+2*i}, v{Sc+4*g_}, v{Sc+4*g_+1}")
                a.e(f"v_cvt_pk_bf16_f32 v{P0+2*i+1}, v{Sc+4*g_+2}, v{Sc+4*g_+3}")
            a.e("s_nop 1")
            a.e(f"v_mfma_f32_32x32x16_bf16 {vr(OO,16)}, {vr(V0,4)}, {vr(P0,4)}, {vr(OO,16)}")
            a.e(f"v_mfma_f32_32x32x16_bf16 {vr(OO,16)}, {vr(V1,4)}, {vr(P1,4)}, {vr(OO,16)}")
            a.e("s_nop 7")
        a.e(f"s_add_u32 s{sOFF}, s{sOFF}, {KVT}")
        a.e(f"s_cmp_lt_u32 s{sOFF}, {KVH}")
        a.e(f"s_cbranch_scc1 K2_SL{ps}")
        if ps == 0:
            a.e(f"v_mov_b32 v{vT+4}, v{vM}")
            a.e("s_nop 1")
            a.e(f"v_permlane32_swap_b32 v{vM}, v{vT+4}")
            a.e(f"v_max_f32 v{vM}, v{vM}, v{vT+4}")
    a.e("s_nop 15")
    a.e("s_nop 3")
    a.e("s_branch K2_FIN")
    return name, NV, 102 if (DIAG or DBG) else 80, (256, 768, K2_LDS)


K3_LDS = 102400


def gen_k3(a):
    name = "k3_out_kernel"
    kernel_header(a, name)
    sA, sWT, sY, sO = 12, 16, 20, 24
    sW, sRB, sCB, sOW, sM = 32, 33, 34, 35, 36
    t0, t1, t2, t3 = 38, 39, 40, 41
    vLANE, vOA, vOW, vYO, vOO, vRD = 1, 2, 3, 4, 5, 6
    vT = 8
    ACC = 12
    FB = 32
    FA = 72
    NV = 152
    k3flush = lambda: (stamp(a, 4), stamp_flush(a, 2, 8, sW, "s6", "s7", 8, 2))

    a.e("s_cmp_ge_u32 s2, 256")
    a.e("s_cbranch_scc1 K3_END")
    stamp(a, 0)
    a.e("s_load_dwordx2 s[4:5], s[0:1], 64")
    a.e("s_load_dwordx2 s[6:7], s[0:1], 80")
    a.e(f"v_and_b32 v{vLANE}, 63, v0")
    a.e(f"v_lshrrev_b32 v{vT}, 6, v0")
    a.e(f"s_and_b32 s{t0}, s2, 7")
    a.e(f"v_readfirstlane_b32 s{sW}, v{vT}")
    a.e(f"s_lshr_b32 s{t1}, s2, 3")
    a.e(f"s_lshl_b32 s{t0}, s{t0}, 2")
    a.e(f"s_and_b32 s{t2}, s{t1}, 3")
    a.e(f"s_add_u32 s{sRB}, s{t0}, s{t2}")
    a.e(f"s_lshr_b32 s{sCB}, s{t1}, 2")
    a.e(f"v_and_b32 v{vT}, 15, v{vLANE}")
    a.e(f"v_lshrrev_b32 v{vT+1}, 4, v{vLANE}")
    a.e(f"s_cmp_ge_u32 s{sW}, 4")
    a.e("s_cbranch_scc1 K3_COMP")
    a.e(f"s_mul_i32 s{t0}, s{sCB}, 80")
    a.e(f"v_add_u32 v{vOW}, s{t0}, v{vT}")
    a.e(f"v_lshlrev_b32 v{vOW}, 4, v{vOW}")
    a.e(f"v_mul_u32_u24 v{vT+2}, 10240, v{vT+1}")
    a.e(f"v_add_u32 v{vOW}, v{vOW}, v{vT+2}")
    a.e(f"s_mul_i32 s{sOW}, s{sW}, 40960")
    a.e(f"s_mul_i32 s{sM}, s{sW}, 5120")
    a.e("s_waitcnt lgkmcnt(0)")
    stamp(a, 5)
    srd_off(a, sWT, "s6", "s7", WT_OFF, 80 * 10240)
    for r in range(5):
        for q in range(5):
            a.e(f"s_add_u32 m0, s{sM}, {r*20480 + q*768}")
            a.e("s_nop 0")
            a.e(f"buffer_load_dwordx4 v{vOW}, {sr(sWT,4)}, s{sOW} offen offset:{256*q} lds")
        a.e(f"s_add_u32 s{sOW}, s{sOW}, {4*40960}")
        if r >= 2:
            a.e(f"s_waitcnt vmcnt(10)")
            a.e("s_barrier")
    a.e(f"s_waitcnt vmcnt(5)")
    a.e("s_barrier")
    a.e(f"s_waitcnt vmcnt(0)")
    a.e("s_barrier")
    if DIAG:
        stamp(a, 1); stamp(a, 2); stamp(a, 3)
        k3flush()
    a.e("s_endpgm")
    a.lab("K3_COMP")
    a.e(f"s_sub_u32 s{t3}, s{sW}, 4")
    a.e(f"s_lshl_b32 s{t0}, s{sRB}, 6")
    a.e(f"s_lshl_b32 s{t1}, s{t3}, 4")
    a.e(f"s_add_u32 s{t0}, s{t0}, s{t1}")
    a.e(f"v_add_u32 v{vT+2}, s{t0}, v{vT}")
    a.e(f"v_lshlrev_b32 v{vOA}, 4, v{vT+2}")
    a.e(f"v_lshl_add_u32 v{vOA}, v{vT+1}, 15, v{vOA}")
    a.e(f"s_lshl_b32 s{t0}, s{sRB}, 3")
    a.e(f"s_add_u32 s{t0}, s{t0}, s{sCB}")
    a.e(f"s_mul_i32 s{t0}, s{t0}, 20480")
    a.e(f"s_mul_i32 s{t1}, s{t3}, 5120")
    a.e(f"s_add_u32 s{t0}, s{t0}, s{t1}")
    a.e(f"v_lshlrev_b32 v{vRD}, 4, v{vLANE}")
    a.e(f"v_add_u32 v{vYO}, s{t0}, v{vRD}")
    a.e(f"s_mul_i32 s{t0}, s{sCB}, 160")
    a.e(f"v_mul_u32_u24 v{vOO}, 1280, v{vT+2}")
    a.e(f"v_lshl_add_u32 v{vOO}, v{vT+1}, 3, v{vOO}")
    a.e(f"v_add_u32 v{vOO}, s{t0}, v{vOO}")
    a.e("s_waitcnt lgkmcnt(0)")
    stamp(a, 5)
    srd_off(a, sA, "s6", "s7", AB_OFF, 80 * 32768)
    srd_off(a, sY, "s6", "s7", Y_OFF, Y_SIZE)
    srd(a, sO, "s4", "s5", 2048 * 640 * 2)
    a.e(f"s_mov_b32 s{t0}, 0")
    a.e(f"s_movk_i32 s{t1}, 4096")
    def ldA(r):
        for ks in range(4 * r, 4 * r + 4):
            a.e(f"buffer_load_dwordx4 {vr(FA+4*ks,4)}, v{vOA}, {sr(sA,4)}, s{t0} offen")
            a.e(f"s_add_u32 s{t0}, s{t0}, {4*32768}")

    ldA(0)
    for t in range(5):
        so, off = ("0", 1024 * t) if t < 4 else (f"s{t1}", 0)
        a.e(f"buffer_load_dwordx4 {vr(ACC+4*t,4)}, v{vYO}, {sr(sY,4)}, {so} offen offset:{off}")
    ldA(1)
    ldA(2)
    a.e(f"v_add_u32 v{vT}, 51200, v{vRD}")

    def rdB(ks):
        base, off = (vRD, ks * 5120) if ks < 10 else (vT, (ks - 10) * 5120)
        return [f"ds_read_b128 {vr(FB+20*(ks&1)+4*t,4)}, v{base} offset:{off+1024*t}" for t in range(5)]

    for r in range(5):
        a.e("s_barrier")
        if r == 0:
            stamp(a, 1)
        for ins in rdB(4 * r):
            a.e(ins)
        if r < 2:
            ldA(r + 3)
        a.e(f"s_waitcnt vmcnt({[12, 12, 8, 4, 0][r]})")
        for k in range(4):
            ks = 4 * r + k
            if k < 3:
                for ins in rdB(ks + 1):
                    a.e(ins)
                a.e("s_waitcnt lgkmcnt(5)")
            else:
                a.e("s_waitcnt lgkmcnt(0)")
            for t in range(5):
                a.e(f"v_mfma_f32_16x16x32_bf16 {vr(ACC+4*t,4)}, {vr(FB+20*(ks&1)+4*t,4)}, {vr(FA+4*ks,4)}, {vr(ACC+4*t,4)}")
    stamp(a, 2)
    stamp(a, 3)
    a.e("s_nop 7")
    for t in range(5):
        A = ACC + 4 * t
        a.e(f"v_cvt_pk_bf16_f32 v{A}, v{A}, v{A+1}")
        a.e(f"v_cvt_pk_bf16_f32 v{A+1}, v{A+2}, v{A+3}")
        a.e(f"buffer_store_dwordx2 {vr(A,2)}, v{vOO}, {sr(sO,4)}, 0 offen offset:{32*t}")
    k3flush()
    a.lab("K3_END")
    a.e("s_endpgm")
    return name, NV, 102 if DIAG else 48, (256, 512, K3_LDS)


HEADER = """; Kernarg layout for this problem (88 bytes, ptrs only, base s[0:1]):
"""


def main(out_path):
    a = Asm()
    ks = []
    gens = (gen_k1, gen_k2, gen_k3) if "u" in os.environ.get("K2X", "") else (gen_k1, gen_k2)
    for g in gens:
        ks.append(g(a))
    s = HEADER
    if ONE:
        ks = [(ks[0][0], 168, 102 if (DIAG or DBG) else 80, (256, 768, K2_LDS))]
        if os.environ.get("LIST"):
            s += f"; @launch kernel={ks[0][0]} grid=(256,1,1) block=(768,1,1) lds={K2_LDS}\n"
        else:
            s += f"; @launch grid=(256,1,1) block=(768,1,1) lds={K2_LDS}\n"
    else:
        for name, nv, ns, (gx, bx, lds) in ks:
            s += f"; @launch kernel={name} grid=({gx},1,1) block=({bx},1,1) lds={lds}\n"
    s += '.amdgcn_target "amdgcn-amd-amdhsa--gfx950"\n.text\n'
    s += a.text()
    s += "CODE_END:\n    s_endpgm\n"
    s += '.section .rodata,"a"\n'
    for name, nv, ns, _ in ks:
        s += kd(name, nv, ns)
    open(out_path, "w").write(s)


if __name__ == "__main__":
    main(sys.argv[1] if len(sys.argv) > 1 else f"cdna_kernels/{NAME}.s")
```
